```python
import torch

def _softmax(x, axis=-1):
    return torch.softmax(x, dim=axis)

def _gelu(x):
    return torch.nn.functional.gelu(x, approximate='tanh')

def _silu(x):
    return torch.nn.functional.silu(x)

def _sigmoid(x):
    return torch.sigmoid(x)

def _layernorm(x, axis=-1, eps=1e-05):
    m = x.mean(dim=axis, keepdim=True)
    v = x.var(dim=axis, keepdim=True, unbiased=False)
    return (x - m) / torch.sqrt(v + eps)

def _scatter_add(tgt, idx, src, axis=0):
    return tgt.clone().index_add_(axis, idx, src)

def _segment_sum(src, seg, n):
    out = torch.zeros((n,) + src.shape[1:], dtype=src.dtype)
    return out.index_add_(0, seg, src)

def _pad(x, pw):
    flat = tuple((v for pair in reversed(pw) for v in pair))
    return torch.nn.functional.pad(x, flat)
kernel_name = 'sequential_preLN__memory_aug_recurrent_mem_tr__glu_gated_glu__prompt'

def setup_inputs():

    _w = lambda a: (lambda t: t.to(torch.bfloat16) if t.is_floating_point() else t)(torch.as_tensor(a))

    def _A_setup():
        B, S, Dm = (1, 2048, 1024)
        H, Dh = (32, 128)
        M, seg = (8, 32)
        seg = min(seg, S)
        S = S // seg * seg
        return {'x': _w((lambda *s: torch.randn(*s, dtype=torch.bfloat16) * 0.05)(B, S, Dm)), 'mem0': _w((lambda *s: torch.randn(*s, dtype=torch.bfloat16) * 0.2)(B, M, Dm)), 'Wq': _w((lambda *s: torch.randn(*s, dtype=torch.bfloat16) * 1.6)(Dm, H, Dh) * Dm ** (-0.5)), 'Wk': _w((lambda *s: torch.randn(*s, dtype=torch.bfloat16) * 1.6)(Dm, H, Dh) * Dm ** (-0.5)), 'Wv': _w((lambda *s: torch.randn(*s, dtype=torch.bfloat16) * 0.2)(Dm, H, Dh) * Dm ** (-0.5)), 'Wo': _w((lambda *s: torch.randn(*s, dtype=torch.bfloat16) * 0.2)(H, Dh, Dm) * (H * Dh) ** (-0.5)), 'seg_len': seg}
    _A_in = _A_setup()

    def _B_setup():
        B, S, D, F = (1, 2048, 1024, 3584)
        return {'x': _w((lambda *s: torch.randn(*s, dtype=torch.bfloat16) * 0.05)(B, S, D)), 'w_gate': _w((lambda *s: torch.randn(*s, dtype=torch.bfloat16) * 0.05)(D, F)), 'w_up': _w((lambda *s: torch.randn(*s, dtype=torch.bfloat16) * 0.05)(D, F)), 'w_down': _w((lambda *s: torch.randn(*s, dtype=torch.bfloat16) * 0.05)(F, D))}
    _B_in = _B_setup()
    return {'A_x': _A_in['x'], 'A_mem0': _A_in['mem0'], 'A_Wq': _A_in['Wq'], 'A_Wk': _A_in['Wk'], 'A_Wv': _A_in['Wv'], 'A_Wo': _A_in['Wo'], 'A_seg_len': _A_in['seg_len'], 'B_x': _B_in['x'], 'B_w_gate': _B_in['w_gate'], 'B_w_up': _B_in['w_up'], 'B_w_down': _B_in['w_down']}

def reference(A_x, A_mem0, A_Wq, A_Wk, A_Wv, A_Wo, A_seg_len, B_x, B_w_gate, B_w_up, B_w_down):

    def _A_ref(x, mem0, Wq, Wk, Wv, Wo, seg_len):
        B, S, Dm = x.shape
        H, Dh = (Wq.shape[1], Wq.shape[2])
        M = mem0.shape[1]
        scale = Dh ** (-0.5)
        n_seg = S // seg_len
        L = M + seg_len
        idx = torch.arange(L)
        mask = (idx[:, None] < M) | (idx[:, None] >= idx[None, :])
        mem = mem0
        outs = []
        for s in range(n_seg):
            xs = x[:, s * seg_len:(s + 1) * seg_len, :].clone()
            h = torch.concatenate([mem, xs], axis=1)
            q = torch.einsum('btd,dhe->bhte', h, Wq)
            k = torch.einsum('btd,dhe->bhte', h, Wk)
            v = torch.einsum('btd,dhe->bhte', h, Wv)
            scores = torch.einsum('bhqe,bhke->bhqk', q, k) * scale
            scores = torch.where(mask[None, None], scores, -1000000000.0)
            p = _softmax(scores, axis=-1)
            o = torch.einsum('bhqk,bhke->bhqe', p, v)
            o = torch.einsum('bhte,hed->btd', o, Wo)
            mem = o[:, :M, :].clone()
            outs.append(o[:, M:, :])
        return torch.concatenate(outs, axis=1)

    def _B_ref(x, w_gate, w_up, w_down):
        g = torch.einsum('bsd,df->bsf', x, w_gate)
        u = torch.einsum('bsd,df->bsf', x, w_up)
        h = _sigmoid(g) * u
        return torch.einsum('bsf,fd->bsd', h, w_down)
    x = A_x
    h = x + _A_ref(_layernorm(x, axis=-1), A_mem0, A_Wq, A_Wk, A_Wv, A_Wo, A_seg_len)
    h2 = h + _B_ref(_layernorm(h, axis=-1), B_w_gate, B_w_up, B_w_down)
    return h2
```

```python
KNAME = 'sequential_preLN__memory_aug_recurrent_mem_tr__glu_gated_glu__prompt_kernel'

KA_X, KA_MEM0, KA_WQ, KA_WK, KA_WV, KA_WO, KA_SEG, KA_BX, KA_WG, KA_WU, KA_WD, KA_OUT, KA_DBG, KA_WS = \
    0, 8, 16, 24, 32, 40, 48, 56, 64, 72, 80, 88, 96, 104

WS_XN   = 0x0000000
WS_KF   = 0x0400000
WS_VT   = 0x1400000
WS_OF   = 0x2400000
WS_HB   = 0x3400000
WS_HN   = 0x3800000
WS_ACT  = 0x3C00000
WS_SM   = 0x4C00000
SM_QKM  = 0x0
SM_VMG  = 0x800000
SM_MEMF = 0xC00000
SM_PART = 0xD00000
SM_CNT  = 0xE00000
SM_SIZE = 0x1000000
WS_QKM  = WS_SM + SM_QKM
WS_VMG  = WS_SM + SM_VMG
WS_MEMF = WS_SM + SM_MEMF
WS_PART = WS_SM + SM_PART
WS_CNT  = WS_SM + SM_CNT
WS_QF   = 0x6000000
WS_P1   = 0x7000000
WS_P2   = 0x9000000
WS_SIZE = 268435456

def vr(b, n=1):
    return f'v{b}' if n == 1 else f'v[{b}:{b+n-1}]'
def ar(b, n=1):
    return f'a{b}' if n == 1 else f'a[{b}:{b+n-1}]'
def sr(b, n=1):
    return f's{b}' if n == 1 else f's[{b}:{b+n-1}]'

class Asm:
    def __init__(self):
        self.lines = []
        self._lab = 0
    def __call__(self, s):
        for l in s.split('\n'):
            self.lines.append('    ' + l.strip() if l.strip() else '')
    def e(self, s):
        self(s)
    def c(self, s):
        self.lines.append('    ; ' + s)
    def label(self, name):
        self.lines.append(name + ':')
    def newlabel(self, base='L'):
        self._lab += 1
        return f'{base}_{self._lab}'
    def text(self):
        return '\n'.join(self.lines) + '\n'
    def ext(self, lst):
        for l in lst:
            self(l)
    def srd(self, s, ptr_s, nbytes, add=0):
        if add:
            self(f's_add_u32 s{s}, s{ptr_s}, 0x{add:x}')
            self(f's_addc_u32 s{s+1}, s{ptr_s+1}, 0')
        else:
            self(f's_mov_b32 s{s}, s{ptr_s}')
            self(f's_mov_b32 s{s+1}, s{ptr_s+1}')
        self(f's_and_b32 s{s+1}, s{s+1}, 0xffff')
        self(f's_mov_b32 s{s+2}, 0x{nbytes:x}')
        self(f's_mov_b32 s{s+3}, 0x00020000')

def interleave(main, fill, start=0, every=1, per=1):
    out = []
    fi = 0
    for i, m in enumerate(main):
        out.append(m)
        if i >= start and (i - start) % every == 0:
            for _ in range(per):
                if fi < len(fill):
                    f = fill[fi]; fi += 1
                    if isinstance(f, (list, tuple)): out.extend(f)
                    else: out.append(f)
    while fi < len(fill):
        f = fill[fi]; fi += 1
        if isinstance(f, (list, tuple)): out.extend(f)
        else: out.append(f)
    return out

def kernel_desc(name, vgpr, acc, sgpr=102):
    return f""".amdhsa_kernel {name}
  .amdhsa_next_free_vgpr {vgpr}
  .amdhsa_next_free_sgpr {sgpr}
  .amdhsa_accum_offset {acc}
  .amdhsa_group_segment_fixed_size 0
  .amdhsa_kernarg_size 112
  .amdhsa_user_sgpr_count 2
  .amdhsa_user_sgpr_kernarg_segment_ptr 1
  .amdhsa_system_sgpr_workgroup_id_x 1
.end_amdhsa_kernel
"""

def kernel_head(name):
    return f""".globl {name}
.p2align 8
.type {name},@function
{name}:
"""

def assemble_file(header_comment, launches, kernels):
    out = [header_comment.rstrip('\n')]
    if len(launches) == 1 and launches[0][0] == KNAME and len(kernels) == 1:
        _, g, b, lds = launches[0]
        out.append(f'; @launch grid=({g[0]},{g[1]},{g[2]}) block=({b[0]},{b[1]},{b[2]}) lds={lds}')
    else:
        for (lab, g, b, lds) in launches:
            out.append(f'; @launch kernel={lab} grid=({g[0]},{g[1]},{g[2]}) block=({b[0]},{b[1]},{b[2]}) lds={lds}')
    out.append('.amdgcn_target "amdgcn-amd-amdhsa--gfx950"')
    out.append('.text')
    for (lab, body, vg, acc) in kernels:
        out.append(kernel_head(lab).rstrip('\n'))
        out.append(body.rstrip('\n'))
    out.append('.section .rodata,"a"')
    for (lab, body, vg, acc) in kernels:
        out.append('.p2align 6')
        out.append(kernel_desc(lab, vg, acc).rstrip('\n'))
    return '\n'.join(out) + '\n'
```

```python
from asmlib import *

S_WSRD, S_XSRD = 4, 8
S_WCOL, S_XBASE, S_WROW, S_XSTR = 12, 13, 14, 15
S_SOFFW, S_SOFFX, S_NLOOP, S_WAVE, S_M0W, S_M0X = 16, 17, 18, 19, 20, 21
S_T0, S_T1, S_T2 = 22, 23, 24
S_GU = 25
S_WADV = 26

class Eng:
    def __init__(self, MT=2, NT=4, NSUB=2, NBUF=4, vbase=8, ldsbase=0):
        self.MT = MT; self.NT = NT; self.NSUB = NSUB; self.NBUF = NBUF
        self.TM = 64 * MT
        self.NMB = self.TM // 32
        self.XOFF = NSUB * 8192
        self.STG = self.XOFF + self.NMB * 2048
        self.nW = NSUB * 8 // 4
        self.nX = self.NMB * 2 // 4
        self.lds = self.STG * NBUF
        v = vbase
        self.vW = list(range(v, v + self.nW)); v += self.nW
        self.nXv = max(1, self.nX // 2)
        self.vX = list(range(v, v + self.nXv)); v += self.nXv
        self.nhi = 2 if self.STG * NBUF > 65536 else 1
        self.hi_b = (NBUF // 2) if self.nhi == 2 else NBUF
        self.vAW = [[v + t * self.nhi + h for h in range(self.nhi)] for t in range(NT)]; v += NT * self.nhi
        self.vAX = [v + h for h in range(self.nhi)]; v += self.nhi
        v = (v + 3) & ~3
        self.fW = [[v + (s * NT + t) * 4 for t in range(NT)] for s in range(2)]; v += 2 * NT * 4
        self.fX = [[v + (s * MT + t) * 4 for t in range(MT)] for s in range(2)]; v += 2 * MT * 4
        self.vfree = v
        self.nacc = MT * NT * 16

    def acc(self, mt, nt):
        return (mt * self.NT + nt) * 16

    def setup(self, e, vt0, vt1, vt2):
        lane, t1, t2 = vt0, vt1, vt2
        T0, T1 = S_T0, S_T1
        e(f'v_and_b32 v{lane}, 63, v0')
        e(f's_lshl_b32 s{S_WADV}, s{S_WROW}, 5')
        e(f's_mul_i32 s{T0}, s{S_WAVE}, {self.nW}')
        e(f's_and_b32 s{T0}, s{T0}, 7')
        e(f's_lshl_b32 s{T0}, s{T0}, 2')
        e(f's_mul_i32 s{T0}, s{T0}, s{S_WROW}')
        e(f's_add_u32 s{T0}, s{T0}, s{S_WCOL}')
        e(f'v_lshrrev_b32 v{t1}, 4, v{lane}')
        e(f'v_lshlrev_b32 v{t2}, 2, v{t1}')
        e(f'v_and_b32 v{self.vW[0]}, 15, v{lane}')
        e(f'v_xor_b32 v{self.vW[0]}, v{self.vW[0]}, v{t2}')
        e(f'v_lshlrev_b32 v{self.vW[0]}, 4, v{self.vW[0]}')
        e(f'v_mul_lo_u32 v{t1}, s{S_WROW}, v{t1}')
        e(f'v_add3_u32 v{self.vW[0]}, v{self.vW[0]}, v{t1}, s{T0}')
        e(f's_lshl_b32 s{T0}, s{S_WROW}, 2')
        e(f's_sub_u32 s{T0}, s{T0}, 1024')
        for i in range(1, self.nW):
            e(f'v_add_u32 v{self.vW[i]}, s{T0}, v{self.vW[i-1]}')
        e(f'v_lshlrev_b32 v{t1}, 4, v{lane}')
        if self.nX >= 2:
            e(f's_mul_i32 s{T0}, s{S_WAVE}, s{S_XSTR}')
            if self.nX > 2: e(f's_mul_i32 s{T0}, s{T0}, {self.nX//2}')
            e(f's_add_u32 s{T0}, s{T0}, s{S_XBASE}')
            e(f'v_add_u32 v{self.vX[0]}, s{T0}, v{t1}')
            for j in range(1, self.nXv):
                e(f's_sub_u32 s{T0}, s{S_XSTR}, 2048')
                e(f'v_add_u32 v{self.vX[j]}, s{T0}, v{self.vX[j-1]}')
        else:
            e(f's_lshr_b32 s{T0}, s{S_WAVE}, 1')
            e(f's_mul_i32 s{T0}, s{T0}, s{S_XSTR}')
            e(f's_and_b32 s{T1}, s{S_WAVE}, 1')
            e(f's_lshl_b32 s{T1}, s{T1}, 10')
            e(f's_add_u32 s{T0}, s{T0}, s{T1}')
            e(f's_add_u32 s{T0}, s{T0}, s{S_XBASE}')
            e(f'v_add_u32 v{self.vX[0]}, s{T0}, v{t1}')
        e(f's_mul_i32 s{S_M0W}, s{S_WAVE}, {self.nW*1024}')
        e(f's_mul_i32 s{S_M0X}, s{S_WAVE}, {self.nX*1024}')
        e(f's_add_u32 s{S_M0X}, s{S_M0X}, {self.XOFF}')
        e(f'v_bfe_u32 v{t1}, v{lane}, 2, 2')
        e(f'v_lshrrev_b32 v{t2}, 5, v{lane}')
        e(f'v_lshl_add_u32 v{t2}, v{t2}, 2, v{t1}')
        e(f'v_lshlrev_b32 v{t2}, 8, v{t2}')
        base = self.vAW[0][0]
        e(f'v_bfe_u32 v{base}, v{lane}, 4, 1')
        e(f'v_lshl_add_u32 v{t2}, v{base}, 5, v{t2}')
        e(f'v_bfe_u32 v{base}, v{lane}, 1, 1')
        e(f'v_lshl_add_u32 v{t2}, v{base}, 4, v{t2}')
        e(f'v_and_b32 v{base}, 1, v{lane}')
        e(f'v_lshl_add_u32 v{t2}, v{base}, 3, v{t2}')
        e(f's_and_b32 s{T0}, s{S_WAVE}, 1')
        for t in range(self.NT):
            r = self.vAW[t][0]
            if self.NSUB == 2:
                assert self.NT == 4
                e(f's_lshl_b32 s{T1}, s{T0}, 1')
                e(f's_add_u32 s{T1}, s{T1}, {t & 1}')
                e(f's_cmp_lg_u32 s{S_GU}, 0')
                e(f's_cselect_b32 s{T1}, s{T1}, {t}')
                e(f's_cselect_b32 s{S_T2}, {t >> 1}, s{T0}')
                e(f's_lshl_b32 s{S_T2}, s{S_T2}, 13')
                e(f'v_xor_b32 v{r}, s{T1}, v{t1}')
                e(f'v_lshl_add_u32 v{r}, v{r}, 6, v{t2}')
                e(f'v_add_u32 v{r}, s{S_T2}, v{r}')
            else:
                assert self.NT == 2
                e(f's_lshl_b32 s{T1}, s{T0}, 1')
                e(f's_add_u32 s{T1}, s{T1}, {t}')
                e(f'v_xor_b32 v{r}, s{T1}, v{t1}')
                e(f'v_lshl_add_u32 v{r}, v{r}, 6, v{t2}')
            if self.nhi == 2:
                e(f'v_add_u32 v{self.vAW[t][1]}, {self.hi_b*self.STG}, v{r}')
        e(f's_lshr_b32 s{T0}, s{S_WAVE}, 1')
        e(f's_mul_i32 s{T0}, s{T0}, {self.MT*2048}')
        e(f's_add_u32 s{T0}, s{T0}, {self.XOFF}')
        e(f'v_lshlrev_b32 v{self.vAX[0]}, 4, v{lane}')
        e(f'v_add_u32 v{self.vAX[0]}, s{T0}, v{self.vAX[0]}')
        if self.nhi == 2:
            e(f'v_add_u32 v{self.vAX[1]}, {self.hi_b*self.STG}, v{self.vAX[0]}')

    def dmaW(self, b):
        g = []
        for i in range(self.nW):
            ins = []
            if i == 0:
                ins.append(f's_add_u32 m0, s{S_M0W}, {b*self.STG}' if b else f's_mov_b32 m0, s{S_M0W}')
                ins.append('s_nop 0')
            ins.append(f'buffer_load_dwordx4 v{self.vW[i]}, s[4:7], s{S_SOFFW} offen offset:{i*1024} lds')
            if i == self.nW - 1: ins.append(f's_add_u32 s{S_SOFFW}, s{S_SOFFW}, s{S_WADV}')
            g.append(ins)
        return g
    def dmaX(self, b):
        g = []
        for i in range(self.nX):
            ins = []
            if i == 0:
                ins.append(f's_add_u32 m0, s{S_M0X}, {b*self.STG}')
                ins.append('s_nop 0')
            ins.append(f'buffer_load_dwordx4 v{self.vX[i >> 1]}, s[8:11], s{S_SOFFX} offen offset:{i*1024} lds')
            if i == self.nX - 1: ins.append(f's_add_u32 s{S_SOFFX}, s{S_SOFFX}, 2048')
            g.append(ins)
        return g
    def reads(self, b, kk, st):
        h = 1 if b >= self.hi_b else 0
        sb = (b - (self.hi_b if h else 0)) * self.STG
        rx, rw = [], []
        for mt in range(self.MT):
            r = self.fX[st][mt]
            rx.append(f'ds_read_b128 v[{r}:{r+3}], v{self.vAX[h]} offset:{sb + mt*2048 + kk*1024}')
        for nt in range(self.NT):
            r = self.fW[st][nt]
            rw.append(f'ds_read_b64_tr_b16 v[{r}:{r+1}], v{self.vAW[nt][h]} offset:{sb + kk*4096}')
            rw.append(f'ds_read_b64_tr_b16 v[{r+2}:{r+3}], v{self.vAW[nt][h]} offset:{sb + kk*4096 + 2048}')
        return [rx[0]] + rw + rx[1:]
    def mfmas(self, st, swap):
        out = []
        for mt in range(self.MT):
            for nt in range(self.NT):
                ac = self.acc(mt, nt)
                w = self.fW[st][nt]; x = self.fX[st][mt]
                A, B = (x, w) if swap else (w, x)
                out.append(f'v_mfma_f32_32x32x16_bf16 a[{ac}:{ac+15}], v[{A}:{A+3}], v[{B}:{B+3}], a[{ac}:{ac+15}]')
        return out

    def mainloop(self, e, swap, name):
        NB = self.NBUF
        nper = self.nW + self.nX
        for s in range(NB):
            for g in self.dmaW(s): e.ext(g)
            if s < NB - 1:
                for g in self.dmaX(s): e.ext(g)
        for r in range(self.nacc):
            e(f'v_accvgpr_write_b32 a{r}, 0')
        e(f's_waitcnt vmcnt({(NB-2)*nper + self.nW})')
        e('s_barrier')
        e.ext(self.reads(0, 0, 0))
        def stage(b, dma_x, dma_w, wait_n, last):
            e('s_waitcnt lgkmcnt(0)')
            fill = [[r] for r in self.reads(b, 1, 1)]
            dm = self.dmaX((b - 1) % NB) if dma_x else []
            e.ext(self.merge(self.mfmas(0, swap), fill, dm))
            if not last:
                e(f's_waitcnt vmcnt({wait_n}) lgkmcnt(0)')
                e('s_barrier')
                fill = [[r] for r in self.reads((b + 1) % NB, 0, 0)]
            else:
                e('s_waitcnt lgkmcnt(0)')
                fill = []
            dm = self.dmaW(b) if dma_w else []
            e.ext(self.merge(self.mfmas(1, swap), fill, dm))
        lab = e.newlabel(name + '_loop')
        e.label(lab)
        for b in range(NB): stage(b, True, True, (NB - 2) * nper, False)
        e(f's_sub_u32 s{S_NLOOP}, s{S_NLOOP}, 1')
        e(f's_cmp_lg_u32 s{S_NLOOP}, 0')
        e(f's_cbranch_scc1 {lab}')
        for j in range(NB):
            k = max(0, (NB - 1 - j) - 1)
            stage(j, j == 0, False, k * nper, j == NB - 1)

    def merge(self, m, fill, dm):
        out = []
        nf = len(fill); nd = len(dm)
        dpos = {}
        if nd:
            step = max(1, len(m) // nd)
            for j in range(nd):
                p = min(len(m) - 1, 1 + j * step)
                dpos[p] = dpos.get(p, []) + dm[j]
        fi = 0
        per = max(1, -(-nf // max(1, len(m) - 2)))
        for i, x in enumerate(m):
            out.append(x)
            for _ in range(per):
                if fi < nf:
                    out.extend(fill[fi]); fi += 1
            if i in dpos: out.extend(dpos[i])
        while fi < nf:
            out.extend(fill[fi]); fi += 1
        return out
```

```python
from asmlib import *

def bf16_round(a, dst, src, tmp=None):
    a(f'v_cvt_pk_bf16_f32 v{dst}, v{src}, v{src}')
    a(f'v_and_b32 v{dst}, 0xffff0000, v{dst}')

def reduce_bits345(a, v, t):
    a(f's_nop 1')
    a(f'v_add_f32_dpp v{v}, v{v}, v{v} row_ror:8 row_mask:0xf bank_mask:0xf')
    a(f'v_mov_b32 v{t}, v{v}')
    a(f's_nop 1')
    a(f'v_permlane16_swap_b32 v{v}, v{t}')
    a(f's_nop 1')
    a(f'v_add_f32 v{v}, v{v}, v{t}')
    a(f'v_mov_b32 v{t}, v{v}')
    a(f's_nop 1')
    a(f'v_permlane32_swap_b32 v{v}, v{t}')
    a(f's_nop 1')
    a(f'v_add_f32 v{v}, v{v}, v{t}')

def ln_finish_stats(a, vsum_mean, vvar, t):
    pass

def gen_ln1():
    a = Asm()
    a('s_cmp_ge_u32 s2, 64')
    a('s_cbranch_scc1 LN1_END')
    a(f's_load_dwordx2 s[4:5], s[0:1], {KA_X}')
    a(f's_load_dwordx2 s[6:7], s[0:1], {KA_WS}')
    a('v_and_b32 v1, 63, v0')
    a('v_lshrrev_b32 v2, 6, v0')
    a('s_lshl_b32 s3, s2, 2')
    a('v_add_u32 v2, s3, v2')
    a('v_and_b32 v3, 7, v1')
    a('v_bfe_u32 v4, v1, 3, 1')
    a('v_lshrrev_b32 v5, 4, v1')
    a('v_lshl_add_u32 v6, v2, 3, v3')
    a('v_lshlrev_b32 v6, 11, v6')
    a('v_lshl_add_u32 v6, v5, 5, v6')
    a('v_lshl_add_u32 v6, v4, 3, v6')
    a('v_lshrrev_b32 v7, 2, v2')
    a('v_lshlrev_b32 v7, 16, v7')
    a('v_lshl_add_u32 v7, v5, 10, v7')
    a('v_and_b32 v8, 3, v2')
    a('v_lshl_add_u32 v8, v8, 3, v3')
    a('v_lshl_add_u32 v8, v4, 5, v8')
    a('v_lshl_add_u32 v7, v8, 4, v7')
    a('s_waitcnt lgkmcnt(0)')
    a.srd(8, 4, 2048*1024*2)
    a.srd(12, 6, 4*1024*1024, add=WS_XN)
    D = 16
    F = 80
    for it in range(16):
        for h in range(2):
            r = D + (it*2+h)*2
            a(f'buffer_load_dwordx2 v[{r}:{r+1}], v6, s[8:11], 0 offen offset:{it*128+h*16}')
    for i in range(64):
        if i % 4 == 0:
            a(f's_waitcnt vmcnt({31 - (i//2) - 1 if 31-(i//2)-1 >= 0 else 0})') if False else None
    for g in range(32):
        a(f's_waitcnt vmcnt({31-g})')
        for q in range(2):
            i = g*2+q
            a(f'v_lshlrev_b32 v{F+2*i}, 16, v{D+i}')
            a(f'v_and_b32 v{F+2*i+1}, 0xffff0000, v{D+i}')
    for c in range(4):
        a(f'v_add_f32 v{10+c}, v{F+c}, v{F+4+c}')
    for i in range(8, 128, 4):
        for c in range(4):
            a(f'v_add_f32 v{10+c}, v{10+c}, v{F+i+c}')
    a('v_add_f32 v10, v10, v11')
    a('v_add_f32 v12, v12, v13')
    a('v_add_f32 v10, v10, v12')
    reduce_bits345(a, 10, 14)
    a('v_mul_f32 v10, 0x3a800000, v10')
    for c in range(4):
        a(f'v_mov_b32 v{11+c if c<3 else 9}, 0')
    acc = [11, 12, 13, 9]
    for i in range(128):
        a(f'v_sub_f32 v15, v{F+i}, v10') if False else None
    for i in range(0, 128, 4):
        for c in range(4):
            a(f'v_sub_f32 v{D+c}, v{F+i+c}, v10')
        for c in range(4):
            a(f'v_fmac_f32 v{acc[c]}, v{D+c}, v{D+c}')
    a('v_add_f32 v11, v11, v12')
    a('v_add_f32 v13, v13, v9')
    a('v_add_f32 v11, v11, v13')
    reduce_bits345(a, 11, 14)
    a('v_mul_f32 v11, 0x3a800000, v11')
    bf16_round(a, 11, 11)
    a('v_add_f32 v11, 0x3727c5ac, v11')
    bf16_round(a, 11, 11)
    a('v_sqrt_f32 v11, v11')
    a('s_nop 0')
    bf16_round(a, 11, 11)
    a('v_rcp_f32 v11, v11')
    bf16_round(a, 10, 10)
    for it in range(16):
        base = F + it*8
        o = D + (it % 4)*4
        t = D + 16
        for c in range(8):
            a(f'v_sub_f32 v{base+c}, v{base+c}, v10')
        for c in range(4):
            a(f'v_cvt_pk_bf16_f32 v{t+c}, v{base+2*c}, v{base+2*c+1}')
        for c in range(4):
            a(f'v_lshlrev_b32 v{base+2*c}, 16, v{t+c}')
            a(f'v_and_b32 v{base+2*c+1}, 0xffff0000, v{t+c}')
        for c in range(8):
            a(f'v_mul_f32 v{base+c}, v{base+c}, v11')
        if it >= 4:
            a(f's_waitcnt vmcnt(3)')
        for c in range(4):
            a(f'v_cvt_pk_bf16_f32 v{o+c}, v{base+2*c}, v{base+2*c+1}')
        a(f's_mov_b32 s16, {it*4096}')
        a(f'buffer_store_dwordx4 v[{o}:{o+3}], v7, s[12:15], s16 offen')
    a.label('LN1_END')
    a('s_endpgm')
    return a.text()
```

```python
from asmlib import *

L_QB  = 0x0000
L_OB  = 0x1000
L_KT  = 0x2000
L_MEM = 0x4000
L_WV  = 0x8000
L_WO  = 0x18000
REC_LDS = 0x28000

V_MEMR = [0, 1, 2, 3]
V_POLLM = 0
V_KTG, V_VT, V_QKW, V_WVL, V_WOL, V_VMW = 4, 5, 6, 7, 8, 9
V_KTR0, V_QBR, V_PQK, V_PVM = 10, 11, 12, 13
V_OBW0, V_OBW1, V_OBR, V_PTW, V_PTR, V_MFW = 14, 15, 16, 17, 18, 19
V_IDX, V_SEL0, V_SEL1, V_T = 20, 21, 22, 23
VTOK = 24
AQ, AK, AV = 32, 36, 40
VM, PV = 44, 46
WVB = 48
POLL = 64
AFR = 80
WV_R = 128
WO_R = 192
LN = 24

S_SM = 4
S_KV = 8
S_W = 12
S_STEP, S_W_, S_H, S_J = 16, 17, 18, 19
S_MEMF = 20
S_QKM, S_VMG, S_KVO, S_TAG, S_BUD = 24, 25, 26, 27, 28
S_PW = 30
S_PR = 34
S_MEMN = 38
S_EVEN = 40
S_LO8 = 42
S_M0K = 44
S_T0, S_T1, S_T2, S_T3 = 45, 46, 47, 48
S_PTR = 50
S_WS = 52
S_NST = 54

ORDER = [0, 4, 8, 12, 1, 2, 3, 5, 6, 7, 9, 10, 11, 13, 14, 15]
PI = {s: i for i, s in enumerate(ORDER)}
SENT_MAX = -2
SOFT_C = '0x3e0293ee'


def smf(a, acc, A, B):
    a(f'v_smfmac_f32_16x16x64_bf16 v[{acc}:{acc+3}], v[{A}:{A+3}], {B}, v{V_IDX}')

def wq(pi): return f'a[{8*pi}:{8*pi+7}]'
def wk(pi): return f'a[{128+8*pi}:{128+8*pi+7}]'
def vreg8(r): return f'v[{r}:{r+7}]'


def poll_end(a, lab, done):
    a(f's_cbranch_vccz {done}')
    a(f's_cmp_eq_u32 s{S_BUD}, 0')
    a(f's_cbranch_scc1 {done}')
    a(f's_sub_u32 s{S_BUD}, s{S_BUD}, 1')
    a(f's_branch {lab}')
    a.label(done)

def max_chain(a, dst, regs):
    a(f'v_max3_u32 v{dst}, v{regs[0]}, v{regs[1]}, v{regs[2]}')
    i = 3
    while i + 1 < len(regs):
        a(f'v_max3_u32 v{dst}, v{dst}, v{regs[i]}, v{regs[i+1]}')
        i += 2
    if i < len(regs):
        a(f'v_max_u32 v{dst}, v{dst}, v{regs[i]}')


def rec_setup(a):
    a(f's_load_dwordx2 s[{S_WS}:{S_WS+1}], s[0:1], {KA_WS}')
    a('v_lshrrev_b32 v1, 6, v0')
    a(f'v_and_b32 v{LN}, 63, v0')
    a(f'v_readfirstlane_b32 s{S_W_}, v1')
    a(f's_lshr_b32 s{S_T0}, s2, 4'); a(f's_lshl_b32 s{S_T0}, s{S_T0}, 3')
    a(f's_and_b32 s{S_H}, s2, 7'); a(f's_add_u32 s{S_H}, s{S_H}, s{S_T0}')
    a(f's_lshr_b32 s{S_J}, s2, 3'); a(f's_and_b32 s{S_J}, s{S_J}, 1')
    W, H, J = f's{S_W_}', f's{S_H}', f's{S_J}'
    T0, T1, T2 = f's{S_T0}', f's{S_T1}', f's{S_T2}'
    l16, c, g4, t1, t2 = 28, 29, 30, 31, 32
    a(f'v_lshlrev_b32 v{l16}, 4, v{LN}')
    a(f'v_and_b32 v{c}, 15, v{LN}')
    a(f'v_lshrrev_b32 v{g4}, 4, v{LN}')
    for y in range(4):
        a(f's_xor_b32 {T0}, {W}, {y}'); a(f's_lshl_b32 {T0}, {T0}, 10')
        a(f'v_add_u32 v{V_MEMR[y]}, {T0}, v{l16}')
    a(f's_lshl_b32 {T0}, {W}, 11')
    a(f'v_add_u32 v{V_KTG}, {T0}, v{l16}')
    a(f's_add_u32 s{S_M0K}, {T0}, {L_KT}')
    a(f's_lshl_b32 {T2}, {J}, 2'); a(f's_add_u32 {T2}, {T2}, {W}')
    a(f's_lshr_b32 {T0}, {T2}, 1'); a(f's_lshl_b32 {T0}, {T0}, 11')
    a(f's_and_b32 {T1}, {T2}, 1'); a(f's_lshl_b32 {T1}, {T1}, 8')
    a(f's_add_u32 {T0}, {T0}, {T1}'); a(f's_add_u32 {T0}, {T0}, 0x1000000')
    a(f'v_lshrrev_b32 v{t1}, 5, v{LN}'); a(f'v_lshlrev_b32 v{t1}, 10, v{t1}')
    a(f'v_and_b32 v{t2}, 1, v{g4}')
    a(f'v_lshl_add_u32 v{t1}, v{t2}, 9, v{t1}')
    a(f'v_lshl_add_u32 v{t1}, v{c}, 4, v{t1}')
    a(f'v_add_u32 v{V_VT}, {T0}, v{t1}')
    a(f's_lshl_b32 {T0}, {J}, 10')
    a(f's_lshr_b32 {T1}, {W}, 1'); a(f's_lshl_b32 {T1}, {T1}, 9'); a(f's_add_u32 {T0}, {T0}, {T1}')
    a(f's_and_b32 {T1}, {W}, 1'); a(f's_lshl_b32 {T1}, {T1}, 8'); a(f's_add_u32 {T0}, {T0}, {T1}')
    a(f'v_lshrrev_b32 v{t1}, 5, v{LN}'); a(f'v_lshlrev_b32 v{t1}, 11, v{t1}')
    a(f'v_bfe_u32 v{t2}, v{LN}, 2, 1'); a(f'v_lshl_add_u32 v{t1}, v{t2}, 7, v{t1}')
    a(f'v_bfe_u32 v{t2}, v{LN}, 4, 1'); a(f'v_lshl_add_u32 v{t1}, v{t2}, 6, v{t1}')
    a(f'v_and_b32 v{t2}, 1, v{LN}'); a(f'v_lshl_add_u32 v{t1}, v{t2}, 5, v{t1}')
    a(f'v_bfe_u32 v{t2}, v{LN}, 3, 1'); a(f'v_lshl_add_u32 v{t1}, v{t2}, 3, v{t1}')
    a(f'v_bfe_u32 v{t2}, v{LN}, 1, 1'); a(f'v_lshl_add_u32 v{t1}, v{t2}, 2, v{t1}')
    a(f'v_add_u32 v{V_QKW}, {T0}, v{t1}')
    a(f's_lshl_b32 {T0}, {W}, 14')
    a(f's_add_u32 {T1}, {T0}, {L_WV}'); a(f'v_add_u32 v{V_WVL}, {T1}, v{l16}')
    a(f's_add_u32 {T1}, {T0}, {L_WO}'); a(f'v_add_u32 v{V_WOL}, {T1}, v{l16}')
    a(f's_lshr_b32 {T0}, {T2}, 1'); a(f's_lshl_b32 {T0}, {T0}, 9')
    a(f's_and_b32 {T1}, {T2}, 1'); a(f's_lshl_b32 {T1}, {T1}, 7'); a(f's_add_u32 {T0}, {T0}, {T1}')
    a(f'v_bfe_u32 v{t2}, v{LN}, 4, 1'); a(f'v_lshlrev_b32 v{t1}, 8, v{t2}')
    a(f'v_lshl_add_u32 v{t1}, v{c}, 3, v{t1}')
    a(f'v_add_u32 v{V_PVM}, {T0}, v{t1}')
    a(f'v_xor_b32 v{V_PVM}, 0x400, v{V_PVM}')
    a(f'v_lshrrev_b32 v{t2}, 5, v{LN}'); a(f'v_lshl_add_u32 v{t1}, v{t2}, 2, v{t1}')
    a(f'v_add_u32 v{V_VMW}, {T0}, v{t1}')
    a(f'v_bfe_u32 v{t1}, v{LN}, 3, 1'); a(f'v_lshlrev_b32 v{t1}, 4, v{t1}')
    a(f'v_and_b32 v{t2}, 7, v{LN}'); a(f'v_add_u32 v{t1}, v{t1}, v{t2}')
    a(f'v_bfe_u32 v{t2}, v{LN}, 4, 1'); a(f'v_lshl_add_u32 v{t1}, v{t2}, 5, v{t1}')
    a(f'v_lshlrev_b32 v{t1}, 4, v{t1}')
    a(f'v_lshrrev_b32 v{t2}, 5, v{LN}'); a(f'v_lshl_add_u32 v{t1}, v{t2}, 10, v{t1}')
    a(f's_lshl_b32 {T0}, {J}, 12'); a(f's_add_u32 {T0}, {T0}, {L_KT}')
    a(f'v_add_u32 v{V_KTR0}, {T0}, v{t1}')
    a(f'v_and_b32 v{t2}, 7, v{LN}'); a(f'v_lshlrev_b32 v{t1}, 4, v{t2}')
    a(f'v_lshl_add_u32 v{t1}, v{g4}, 7, v{t1}')
    a(f's_lshl_b32 {T0}, {J}, 10')
    a(f'v_add_u32 v{V_QBR}, {T0}, v{t1}')
    a(f'v_xor_b32 v{V_PQK}, 0x400, v{V_QBR}')
    a(f's_lshl_b32 {T0}, {J}, 10'); a(f's_lshl_b32 {T1}, {W}, 8'); a(f's_add_u32 {T0}, {T0}, {T1}'); a(f's_add_u32 {T0}, {T0}, {L_OB}')
    a(f'v_lshlrev_b32 v{t1}, 4, v{c}'); a(f'v_lshl_add_u32 v{t1}, v{g4}, 2, v{t1}')
    a(f'v_add_u32 v{V_OBW0}, {T0}, v{t1}')
    a(f'v_xor_b32 v{V_OBW1}, 0x400, v{V_OBW0}')
    a(f'v_add_u32 v{V_OBR}, {L_OB}, v{l16}')
    a(f's_lshl_b32 {T0}, {J}, 5'); a(f's_lshl_b32 {T1}, {W}, 3'); a(f's_add_u32 {T0}, {T0}, {T1}')
    a(f's_lshl_b32 {T0}, {T0}, 14'); a(f's_lshl_b32 {T1}, {H}, 9'); a(f's_add_u32 {T0}, {T0}, {T1}')
    a(f'v_lshrrev_b32 v{t1}, 5, v{LN}'); a(f'v_lshlrev_b32 v{t1}, 14, v{t1}')
    a(f'v_bfe_u32 v{t2}, v{LN}, 4, 1'); a(f'v_lshl_add_u32 v{t1}, v{t2}, 8, v{t1}')
    a(f'v_bfe_u32 v{t2}, v{LN}, 1, 1'); a(f'v_lshl_add_u32 v{t1}, v{t2}, 7, v{t1}')
    a(f'v_bfe_u32 v{t2}, v{LN}, 2, 2'); a(f'v_lshl_add_u32 v{t1}, v{t2}, 5, v{t1}')
    a(f'v_and_b32 v{t2}, 1, v{LN}'); a(f'v_lshl_add_u32 v{t1}, v{t2}, 4, v{t1}')
    a(f'v_add_u32 v{V_PTW}, {T0}, v{t1}')
    a(f's_lshl_b32 {T0}, s2, 14'); a(f's_lshl_b32 {T1}, {W}, 7'); a(f's_add_u32 {T0}, {T0}, {T1}')
    a(f'v_lshrrev_b32 v{t1}, 3, v{LN}'); a(f'v_lshlrev_b32 v{t1}, 9, v{t1}')
    a(f'v_and_b32 v{t2}, 7, v{LN}'); a(f'v_lshl_add_u32 v{t1}, v{t2}, 4, v{t1}')
    a(f'v_add_u32 v{V_PTR}, {T0}, v{t1}')
    a(f's_lshl_b32 {T0}, s2, 8')
    a(f's_and_b32 {T1}, {W}, 1'); a(f's_lshl_b32 {T1}, {T1}, 7'); a(f's_add_u32 {T0}, {T0}, {T1}')
    a(f's_lshr_b32 {T1}, {W}, 1'); a(f's_lshl_b32 {T1}, {T1}, 6'); a(f's_add_u32 {T0}, {T0}, {T1}')
    a(f'v_lshlrev_b32 v{t1}, 4, v{g4}')
    a(f'v_bfe_u32 v{t2}, v{LN}, 1, 2'); a(f'v_lshl_add_u32 v{t1}, v{t2}, 2, v{t1}')
    a(f'v_add_u32 v{t1}, {T0}, v{t1}')
    a(f'v_and_b32 v{t2}, 9, v{LN}')
    a(f'v_cmp_eq_u32 vcc, 0, v{t2}')
    a(f'v_mov_b32 v{V_MFW}, 0x40000000')
    a('s_nop 1')
    a(f'v_cndmask_b32 v{V_MFW}, v{V_MFW}, v{t1}, vcc')
    a(f's_mov_b32 s{S_EVEN}, 0x55555555'); a(f's_mov_b32 s{S_EVEN+1}, 0x55555555')
    a(f's_mov_b32 s{S_LO8}, 0x00ff00ff'); a(f's_mov_b32 s{S_LO8+1}, 0x00ff00ff')
    a(f'v_mov_b32 v{V_IDX}, 0xeeee'); a(f'v_mov_b32 v{t1}, 0x4444')
    a(f'v_cndmask_b32 v{V_IDX}, v{V_IDX}, v{t1}, s[{S_LO8}:{S_LO8+1}]')
    a(f'v_mov_b32 v{V_SEL0}, 0x01000504'); a(f'v_mov_b32 v{t1}, 0x05040100')
    a(f'v_cndmask_b32 v{V_SEL0}, v{V_SEL0}, v{t1}, s[{S_EVEN}:{S_EVEN+1}]')
    a(f'v_mov_b32 v{V_SEL1}, 0x03020706'); a(f'v_mov_b32 v{t1}, 0x07060302')
    a(f'v_cndmask_b32 v{V_SEL1}, v{V_SEL1}, v{t1}, s[{S_EVEN}:{S_EVEN+1}]')
    for p in range(4):
        a(f's_mov_b32 s{S_PW+p}, {SM_PART + p*32768}')
        a(f's_mov_b32 s{S_PR+p}, {SM_PART + p*4096}')
        a(f's_mov_b32 s{S_MEMF+p}, {SM_MEMF + p*4096}')
    a(f's_mov_b32 s{S_MEMN}, {SM_MEMF + 16384}')
    a(f's_lshl_b32 s{S_QKM}, {H}, 12')
    a(f's_lshl_b32 s{S_VMG}, {H}, 11'); a(f's_add_u32 s{S_VMG}, s{S_VMG}, {SM_VMG}')
    a(f's_lshl_b32 s{S_KVO}, {H}, 13')
    a(f's_mov_b32 s{S_TAG}, 1')
    a(f's_mov_b32 s{S_STEP}, 0')
    a(f's_mov_b32 s{S_BUD}, 300000')
    a('s_waitcnt lgkmcnt(0)')
    a.srd(S_SM, S_WS, SM_SIZE, add=WS_SM)
    a.srd(S_KV, S_WS, 32 << 20, add=WS_KF)


def stage_weights(a):
    W, H, J = f's{S_W_}', f's{S_H}', f's{S_J}'
    T0, T1, T2, T3 = f's{S_T0}', f's{S_T1}', f's{S_T2}', f's{S_T3}'
    VE, VO = 28, 29
    TB = [30, 31, 32, 33]
    TB2 = [34, 35, 36, 37]
    VOF = [40 + f for f in range(8)]
    OB_A = [48 + n for n in range(8)]
    OB_B = [56 + n for n in range(8)]
    t1, t2, t3 = 38, 39, 25
    a(f'v_lshrrev_b32 v{t1}, 3, v{LN}'); a(f'v_lshlrev_b32 v{t1}, 13, v{t1}')
    a(f'v_bfe_u32 v{t2}, v{LN}, 4, 1'); a(f'v_lshlrev_b32 v{t2}, 1, v{t2}')
    a(f'v_and_b32 v{t3}, 7, v{LN}'); a(f'v_xor_b32 v{t2}, v{t2}, v{t3}')
    a(f'v_lshl_add_u32 v{t1}, v{t2}, 4, v{t1}')
    a(f's_lshl_b32 {T0}, {H}, 8'); a(f's_lshl_b32 {T1}, {J}, 7'); a(f's_add_u32 {T0}, {T0}, {T1}')
    a(f'v_add_u32 v{VE}, {T0}, v{t1}')
    a(f'v_xor_b32 v{VO}, 64, v{VE}')
    a(f'v_lshrrev_b32 v{t1}, 4, v{LN}'); a(f'v_lshlrev_b32 v{t1}, 3, v{t1}')
    a(f'v_bfe_u32 v{t2}, v{LN}, 2, 2'); a(f'v_add_u32 v{t1}, v{t1}, v{t2}')
    a(f'v_lshlrev_b32 v{t1}, 7, v{t1}')
    a(f'v_bfe_u32 v{t2}, v{LN}, 3, 1')
    a(f'v_bfe_u32 v{t3}, v{LN}, 4, 1'); a(f'v_lshl_or_b32 v{t2}, v{t3}, 1, v{t2}')
    a(f'v_lshlrev_b32 v{t2}, 1, v{t2}')
    a(f'v_bfe_u32 v{t3}, v{LN}, 1, 1')
    a(f's_lshl_b32 {T0}, {W}, 1'); a(f'v_add_u32 v{t3}, {T0}, v{t3}')
    a(f'v_xor_b32 v{t2}, v{t2}, v{t3}')
    a(f'v_lshl_add_u32 v{t1}, v{t2}, 4, v{t1}')
    a(f'v_and_b32 v{t2}, 1, v{LN}'); a(f'v_lshl_add_u32 v{t1}, v{t2}, 3, v{t1}')
    for x in range(4):
        a(f's_xor_b32 {T0}, {W}, {x}'); a(f's_lshl_b32 {T0}, {T0}, 13')
        a(f's_add_u32 {T1}, {T0}, {L_WV}'); a(f'v_add_u32 v{TB[x]}, {T1}, v{t1}')
        a(f's_add_u32 {T1}, {T0}, {L_WO}'); a(f'v_add_u32 v{TB2[x]}, {T1}, v{t1}')
    a(f's_lshl_b32 {T0}, {J}, 10'); a(f'v_lshlrev_b32 v{t1}, 4, v{LN}'); a(f'v_add_u32 v{t1}, {T0}, v{t1}')
    for f in range(8):
        a(f'v_xor_b32 v{VOF[f]}, {f << 5}, v{t1}')
    a(f'v_lshrrev_b32 v{t1}, 4, v{LN}'); a(f'v_lshlrev_b32 v{t1}, 3, v{t1}')
    a(f'v_bfe_u32 v{t2}, v{LN}, 2, 2'); a(f'v_add_u32 v{t1}, v{t1}, v{t2}')
    a(f'v_lshlrev_b32 v{t1}, 10, v{t1}')
    a(f'v_bfe_u32 v{t3}, v{LN}, 4, 1'); a(f'v_lshl_or_b32 v{t2}, v{t3}, 2, v{t2}')
    a(f'v_lshlrev_b32 v{t2}, 1, v{t2}')
    a(f'v_bfe_u32 v{t3}, v{LN}, 1, 1'); a(f'v_add_u32 v{t2}, v{t2}, v{t3}')
    a(f'v_lshl_add_u32 v{t1}, v{t2}, 4, v{t1}')
    a(f'v_and_b32 v{t2}, 1, v{LN}'); a(f'v_lshl_add_u32 v{t1}, v{t2}, 3, v{t1}')
    a(f's_lshl_b32 {T0}, {W}, 8'); a(f'v_add_u32 v{t1}, {T0}, v{t1}')
    for n in range(8):
        a(f'v_xor_b32 v{t2}, {n << 5}, v{t1}')
        a(f'v_add_u32 v{OB_A[n]}, {L_WV}, v{t2}')
        a(f'v_add_u32 v{OB_B[n]}, {L_WO}, v{t2}')

    def load_ptr(ka):
        a(f's_load_dwordx2 s[{S_PTR}:{S_PTR+1}], s[0:1], {ka}')
        a('s_waitcnt lgkmcnt(0)')
        a.srd(S_W, S_PTR, 8 << 20)

    def dma_qkv(P, region):
        a(f's_lshl_b32 {T0}, {W}, 20'); a(f's_add_u32 {T0}, {T0}, {P << 22}')
        a(f's_lshl_b32 {T1}, {W}, 14'); a(f's_add_u32 m0, {T1}, {region}')
        for i in range(16):
            a(f'buffer_load_dwordx4 v{VO if i & 1 else VE}, s[{S_W}:{S_W+3}], {T0} offen lds')
            if i < 15:
                a(f's_add_u32 {T0}, {T0}, 65536'); a('s_add_u32 m0, m0, 1024'); a('s_nop 0')

    def dma_wo(cp, region):
        a(f's_lshl_b32 {T0}, {H}, 7'); a(f's_lshl_b32 {T1}, {W}, 4'); a(f's_add_u32 {T0}, {T0}, {T1}')
        a(f's_add_u32 {T0}, {T0}, {64*cp}'); a(f's_lshl_b32 {T0}, {T0}, 11')
        a(f's_lshl_b32 {T1}, {W}, 14'); a(f's_add_u32 m0, {T1}, {region}')
        for i in range(16):
            f = (i & 3) | (((i >> 3) & 1) << 2)
            a(f'buffer_load_dwordx4 v{VOF[f]}, s[{S_W}:{S_W+3}], {T0} offen lds')
            if i < 15:
                a(f's_add_u32 {T0}, {T0}, 2048'); a('s_add_u32 m0, m0, 1024'); a('s_nop 0')

    def read_qkv(P, tb, dest):
        n = 0
        for cs in range(8):
            pi = PI[8 * P + cs]
            d = dest(pi)
            for hq in range(2):
                for q in range(2):
                    r = 4 * hq + 2 * q
                    a(f'ds_read_b64_tr_b16 {d(r)}, v{tb[cs & 3]} offset:{(cs >> 2)*32768 + hq*4096 + q*512}')
                    n += 1
            a('s_waitcnt lgkmcnt(8)')

    def read_wo(ad, dest):
        for nu in range(8):
            for hq in range(2):
                for q in range(2):
                    r = dest + 8 * nu + 4 * hq + 2 * q
                    a(f'ds_read_b64_tr_b16 v[{r}:{r+1}], v{ad[nu]} offset:{hq*32768 + q*4096}')
            a('s_waitcnt lgkmcnt(8)')

    dq = lambda pi: (lambda r: f'a[{8*pi+r}:{8*pi+r+1}]')
    dk = lambda pi: (lambda r: f'a[{128+8*pi+r}:{128+8*pi+r+1}]')
    def dv(pi):
        b = WV_R + 8 * pi if pi < 8 else 64 + 8 * (pi - 8)
        return lambda r: f'v[{b+r}:{b+r+1}]'

    pieces = [('q', 0), ('q', 1), ('k', 0), ('k', 1), ('v', 0), ('v', 1), ('o', 0), ('o', 1)]
    ptrs = {'q': KA_WQ, 'k': KA_WK, 'v': KA_WV, 'o': KA_WO}
    def issue(n):
        m, P = pieces[n]
        if P == 0: load_ptr(ptrs[m])
        reg = L_WO if n & 1 else L_WV
        if m == 'o': dma_wo(P, reg)
        else: dma_qkv(P, reg)
    issue(0); issue(1)
    for n in range(8):
        m, P = pieces[n]
        a(f's_waitcnt vmcnt({16 if n < 7 else 0})')
        a('s_barrier')
        if m == 'q': read_qkv(P, TB2 if n & 1 else TB, dq)
        elif m == 'k': read_qkv(P, TB2 if n & 1 else TB, dk)
        elif m == 'v': read_qkv(P, TB2 if n & 1 else TB, dv)
        elif P == 0: read_wo(OB_A, WO_R)
        else:
            read_wo(OB_B, 64)
        a('s_waitcnt lgkmcnt(0)')
        a('s_barrier')
        if n + 2 < 8: issue(n + 2)
        if n == 6:
            for pi in range(8):
                for q2 in range(2):
                    r = 64 + 8 * pi + 4 * q2
                    a(f'ds_write_b128 v{V_WVL}, v[{r}:{r+3}] offset:{pi*2048 + q2*1024}')
            a('s_waitcnt lgkmcnt(0)')
        if n == 7:
            for nu in range(8):
                for q2 in range(2):
                    r = 64 + 8 * nu + 4 * q2
                    a(f'ds_write_b128 v{V_WOL}, v[{r}:{r+3}] offset:{nu*2048 + q2*1024}')
            a('s_waitcnt lgkmcnt(0)')


WS_DBG = 0xC000000

def dbg_dump(a, regs, slot):
    a('s_waitcnt vmcnt(0) lgkmcnt(0)')
    a('s_nop 7'); a('s_nop 7')
    a.srd(56, S_WS, 8 << 20, add=WS_DBG + slot * (4 << 20))
    a(f's_lshl_b32 s60, s2, 2'); a(f's_add_u32 s60, s60, s{S_W_}'); a('s_lshl_b32 s60, s60, 14')
    a(f'v_mbcnt_lo_u32_b32 v{V_T}, -1, 0'); a(f'v_mbcnt_hi_u32_b32 v{V_T}, -1, v{V_T}')
    a(f'v_lshlrev_b32 v{V_T}, 2, v{V_T}')
    for i, r in enumerate(regs):
        a(f'buffer_store_dword v{r}, v{V_T}, s[56:59], s60 offen')
        a('s_add_u32 s60, s60, 256')
    a('s_waitcnt vmcnt(0)')


def rec_step(a, dbg=None):
    SM = f's[{S_SM}:{S_SM+3}]'
    KV = f's[{S_KV}:{S_KV+3}]'
    EV = f's[{S_EVEN}:{S_EVEN+1}]'
    LO = f's[{S_LO8}:{S_LO8+1}]'
    dbg = dbg or {}
    def D(name, regs):
        if name in dbg:
            lab = a.newlabel('DBG')
            a(f's_cmp_lg_u32 s{S_STEP}, {dbg[name][1]}')
            a(f's_cbranch_scc1 {lab}')
            dbg_dump(a, regs, dbg[name][0])
            a.label(lab)
    def wvload(pi, dst):
        for q2 in range(2):
            a(f'ds_read_b128 v[{dst+4*q2}:{dst+4*q2+3}], v{V_WVL} offset:{(pi-8)*2048 + q2*1024}')
    def woload(nu):
        for q2 in range(2):
            r = 64 + 8*nu + 4*q2
            a(f'ds_read_b128 v[{r}:{r+3}], v{V_WOL} offset:{nu*2048 + q2*1024}')
    def mf32(d, A, B, C):
        c = '0' if C is None else f'v[{C}:{C+3}]'
        a(f'v_mfma_f32_16x16x32_bf16 v[{d}:{d+3}], v[{A}:{A+3}], v[{B}:{B+3}], {c}')
    def mf16(d, A, B, C):
        a(f'v_mfma_f32_16x16x16_bf16 v[{d}:{d+3}], v[{A}:{A+1}], v[{B}:{B+1}], v[{C}:{C+3}]')

    a.label('REC_TOP')
    for r in range(AQ, AQ + 12):
        a(f'v_mov_b32 v{r}, 0')
    wvload(8, WVB); wvload(9, WVB + 8)
    a(f's_mov_b32 m0, s{S_M0K}')
    a.label('REC_PM')
    for x in range(4):
        a(f'buffer_load_dwordx4 v[{POLL+4*x}:{POLL+4*x+3}], v{V_POLLM}, {SM}, s{S_MEMF+x} offen sc1')
    a('s_waitcnt vmcnt(0)')
    max_chain(a, V_T, list(range(POLL, POLL + 16)))
    a(f'v_cmp_eq_u32 vcc, -1, v{V_T}')
    poll_end(a, 'REC_PM', 'REC_PM_D')
    for x in range(4):
        a(f'ds_write_b128 v{V_MEMR[0]}, v[{POLL+4*x}:{POLL+4*x+3}] offset:{L_MEM + x*4096}')
    smf(a, AQ, POLL, wq(0))
    a(f'buffer_load_dwordx4 v{V_KTG}, {KV}, s{S_KVO} offen lds')
    a(f'buffer_load_dwordx4 v{V_KTG}, {KV}, s{S_KVO} offen offset:1024 lds')
    a(f'v_xor_b32 v{V_T}, 0x1000, v{V_VT}')
    smf(a, AK, POLL, wk(0))
    a(f'buffer_load_dwordx4 v[{VTOK}:{VTOK+3}], v{V_VT}, {KV}, s{S_KVO} offen')
    a(f'buffer_load_dwordx4 v[{VTOK+4}:{VTOK+7}], v{V_T}, {KV}, s{S_KVO} offen')
    smf(a, AV, POLL, vreg8(WV_R))
    smf(a, AQ, POLL + 4, wq(1)); smf(a, AK, POLL + 4, wk(1)); smf(a, AV, POLL + 4, vreg8(WV_R + 8))
    a('s_waitcnt lgkmcnt(0)')
    a('s_barrier')
    for pi in range(4, 16):
        s = ORDER[pi]
        r = AFR + 4 * (pi - 4)
        a(f'ds_read_b128 v[{r}:{r+3}], v{V_MEMR[s & 3]} offset:{L_MEM + (s >> 2)*4096}')
    for x in (2, 3):
        smf(a, AQ, POLL + 4*x, wq(x)); smf(a, AK, POLL + 4*x, wk(x)); smf(a, AV, POLL + 4*x, vreg8(WV_R + 8*x))
    extra = 0
    for pi in range(4, 16):
        a(f's_waitcnt lgkmcnt({15 - pi + extra})')
        r = AFR + 4 * (pi - 4)
        smf(a, AQ, r, wq(pi)); smf(a, AK, r, wk(pi))
        if pi == 8:
            wvload(10, POLL); wvload(11, POLL + 8)
            extra = 4
    def vs(pi):
        r = AFR + 4 * (pi - 4)
        if pi < 8: B = WV_R + 8 * pi
        elif pi < 10: B = WVB + 8 * (pi - 8)
        elif pi < 12: B = POLL + 8 * (pi - 10)
        elif pi < 14: B = WVB + 8 * (pi - 12)
        else: B = AFR + 8 * (pi - 14)
        smf(a, AV, r, vreg8(B))
    vs(4); vs(5)
    a('s_nop 3')
    for r in range(4):
        a(f'v_permlane32_swap_b32 v{AQ+r}, v{AK+r}')
    vs(6)
    for r in range(4):
        a(f'v_add_f32 v{AQ+r}, v{AQ+r}, v{AK+r}')
    vs(7)
    a(f'v_cvt_pk_bf16_f32 v{AK}, v{AQ}, v{AQ+1}')
    a(f'v_cvt_pk_bf16_f32 v{AK+1}, v{AQ+2}, v{AQ+3}')
    wvload(14, AFR); wvload(15, AFR + 8)
    a(f'v_cndmask_b32 v{AK+2}, v{AK+1}, v{AK}, {EV}')
    a(f'v_cndmask_b32 v{AK+3}, v{AK}, v{AK+1}, {EV}')
    vs(8)
    a('s_nop 0')
    a(f'v_mov_b32_dpp v{AK}, v{AK+3} quad_perm:[1,0,3,2] row_mask:0xf bank_mask:0xf')
    vs(9)
    wvload(12, WVB); wvload(13, WVB + 8)
    a(f'v_perm_b32 v{AQ}, v{AK}, v{AK+2}, v{V_SEL0}')
    a(f'v_perm_b32 v{AQ+1}, v{AK}, v{AK+2}, v{V_SEL1}')
    a(f'v_min_u32 v{AQ}, {SENT_MAX}, v{AQ}')
    a(f'v_min_u32 v{AQ+1}, {SENT_MAX}, v{AQ+1}')
    a(f's_waitcnt lgkmcnt(8)')
    vs(10)
    a(f'buffer_store_dword v{AQ}, v{V_QKW}, {SM}, s{S_QKM} offen sc1')
    a(f'buffer_store_dword v{AQ+1}, v{V_QKW}, {SM}, s{S_QKM} offen offset:16 sc1')
    a(f'ds_write2_b32 v{V_QKW}, v{AQ}, v{AQ+1} offset0:0 offset1:4')
    vs(11)
    a(f's_waitcnt lgkmcnt(1)')
    vs(12); vs(13); vs(14); vs(15)
    a('s_nop 7')
    a('s_nop 1')
    a(f'v_permlane32_swap_b32 v{AV}, v{AV+2}')
    a(f'v_permlane32_swap_b32 v{AV+1}, v{AV+3}')
    a('s_nop 1')
    a(f'v_add_f32 v{AV}, v{AV}, v{AV+2}')
    a(f'v_add_f32 v{AV+1}, v{AV+1}, v{AV+3}')
    a(f'v_cvt_pk_bf16_f32 v{VM}, v{AV}, v{AV+1}')
    a(f'v_min_u32 v{VM}, {SENT_MAX}, v{VM}')
    a(f'buffer_store_dword v{VM}, v{V_VMW}, {SM}, s{S_VMG} offen sc1')
    a(f'v_mov_b32 v{VM+1}, v{VM}')
    a(f's_cmp_ge_u32 s{S_STEP}, s{S_NST}')
    a(f's_cbranch_scc1 REC_END')
    a(f'v_xor_b32 v{V_T}, 0x1000, v{V_KTR0}')
    a(f'v_permlane32_swap_b32 v{VM}, v{VM+1}')
    a('s_waitcnt vmcnt(5) lgkmcnt(0)')
    a('s_barrier')
    KA = 64
    QF = 96
    PQ = 112
    SA, SB, SMm = 48, 52, 56
    def pq_loads():
        for i, off in enumerate((0, 512, 2048, 2560)):
            a(f'buffer_load_dwordx4 v[{PQ+4*i}:{PQ+4*i+3}], v{V_PQK}, {SM}, s{S_QKM} offen offset:{off} sc1')
    for uu in range(2):
        a(f'ds_read_b128 v[{QF+4*uu}:{QF+4*uu+3}], v{V_QBR} offset:{L_QB + uu*512}')
        a(f'ds_read_b128 v[{QF+8+4*uu}:{QF+8+4*uu+3}], v{V_QBR} offset:{L_QB + 2048 + uu*512}')
        for tb in range(2):
            r = KA + 8*uu + 4*tb
            a(f'ds_read_b128 v[{r}:{r+3}], v{V_KTR0} offset:{uu*2048 + tb*128}')
    for uu in range(2):
        for tb in range(2):
            r = KA + 16 + 8*uu + 4*tb
            a(f'ds_read_b128 v[{r}:{r+3}], v{V_T} offset:{uu*2048 + tb*128}')
    pq_loads()
    a('s_waitcnt lgkmcnt(8)')
    mf32(SMm, QF + 8, QF, None); mf32(SA, KA, QF, None); mf32(SB, KA + 4, QF, None)
    a('s_waitcnt lgkmcnt(4)')
    mf32(SMm, QF + 12, QF + 4, SMm); mf32(SA, KA + 8, QF + 4, SA); mf32(SB, KA + 12, QF + 4, SB)
    woload(0); woload(1); woload(4); woload(5)
    ONE = 40
    for r in range(4):
        a(f'v_mov_b32 v{ONE+r}, 0x3f803f80')
    for r in range(60, 64):
        a(f'v_mov_b32 v{r}, 0')
    a('s_branch REC_PQ_CHK')
    a.label('REC_PQ')
    pq_loads()
    a.label('REC_PQ_CHK')
    a('s_waitcnt vmcnt(0)')
    max_chain(a, V_T, list(range(PQ, PQ + 16)))
    a(f'v_cmp_eq_u32 vcc, -1, v{V_T}')
    poll_end(a, 'REC_PQ', 'REC_PQ_D')
    a(f'buffer_load_dwordx2 v[{PV}:{PV+1}], v{V_PVM}, {SM}, s{S_VMG} offen sc1')
    a('s_waitcnt lgkmcnt(8)')
    mf32(SA, KA + 16, PQ, SA); mf32(SB, KA + 20, PQ, SB); mf32(SMm, PQ + 8, PQ, SMm)
    mf32(SA, KA + 24, PQ + 4, SA); mf32(SB, KA + 28, PQ + 4, SB); mf32(SMm, PQ + 12, PQ + 4, SMm)
    woload(2); woload(3)
    a('s_nop 5')
    D('S', [SA+i for i in range(12)])
    S = [SA + i for i in range(12)]
    P, PM, M, M2 = 32, 36, 38, 39
    a(f'v_max3_f32 v{M}, v{S[0]}, v{S[1]}, v{S[2]}')
    a(f'v_max3_f32 v{M2}, v{S[4]}, v{S[5]}, v{S[6]}')
    a(f'v_max3_f32 v{M}, v{M}, v{S[3]}, v{S[7]}')
    a(f'v_max3_f32 v{M2}, v{M2}, v{S[8]}, v{S[9]}')
    a(f'v_max3_f32 v{M}, v{M}, v{S[10]}, v{S[11]}')
    a(f'v_max_f32 v{M}, v{M}, v{M2}')
    a(f'v_mov_b32 v{M2}, v{M}')
    woload(6)
    a(f'v_permlane32_swap_b32 v{M}, v{M2}')
    woload(7)
    a(f'v_max_f32 v{M}, v{M}, v{M2}')
    a(f'v_mov_b32 v{M2}, v{M}')
    a(f's_mov_b32 s{S_T0}, {SOFT_C}')
    a('s_nop 0')
    a(f'v_permlane16_swap_b32 v{M}, v{M2}')
    a('s_nop 1')
    a(f'v_max_f32 v{M}, v{M}, v{M2}')
    a(f'v_mul_f32 v{M}, s{S_T0}, v{M}')
    a(f'v_add_f32 v{M2}, 1.0, v{M}')
    for i in range(12):
        a(f'v_fma_f32 v{S[i]}, v{S[i]}, s{S_T0}, -v{M if i < 8 else M2}')
    for i in range(12):
        a(f'v_exp_f32 v{S[i]}, v{S[i]}')
    a(f'v_cvt_pk_bf16_f32 v{P}, v{SA}, v{SA+1}')
    a(f'v_cvt_pk_bf16_f32 v{P+1}, v{SA+2}, v{SA+3}')
    a(f'v_cvt_pk_bf16_f32 v{P+2}, v{SB}, v{SB+1}')
    a(f'v_cvt_pk_bf16_f32 v{P+3}, v{SB+2}, v{SB+3}')
    a(f'v_cvt_pk_bf16_f32 v{PM}, v{SMm}, v{SMm+1}')
    a(f'v_cvt_pk_bf16_f32 v{PM+1}, v{SMm+2}, v{SMm+3}')
    O0, O1, SUM = 48, 52, 56
    a('s_waitcnt vmcnt(0)')
    mf32(SUM, ONE, P, None)
    mf32(O0, VTOK, P, None)
    mf32(O1, VTOK + 4, P, None)
    mf16(SUM, ONE, PM, SUM)
    mf16(O0, VM, PM, O0)
    a('s_branch REC_PV_CHK')
    a.label('REC_PV')
    a(f'buffer_load_dwordx2 v[{PV}:{PV+1}], v{V_PVM}, {SM}, s{S_VMG} offen sc1')
    a('s_waitcnt vmcnt(0)')
    a.label('REC_PV_CHK')
    a(f'v_max_u32 v{V_T}, v{PV}, v{PV+1}')
    a(f'v_cmp_eq_u32 vcc, -1, v{V_T}')
    poll_end(a, 'REC_PV', 'REC_PV_D')
    mf16(O1, PV, PM, O1)
    a(f'v_rcp_f32 v{V_T}, v{SUM}')
    for r in range(32, 48):
        a(f'v_mov_b32 v{r}, 0')
    for r in range(4):
        a(f'v_mul_f32 v{O0+r}, v{O0+r}, v{V_T}')
    for r in range(4):
        a(f'v_mul_f32 v{O1+r}, v{O1+r}, v{V_T}')
    D('O', [O0+i for i in range(8)])
    a(f'v_cvt_pk_bf16_f32 v{O0}, v{O0}, v{O0+1}')
    a(f'v_cvt_pk_bf16_f32 v{O0+2}, v{O0+2}, v{O0+3}')
    a(f'v_cvt_pk_bf16_f32 v{O1}, v{O1}, v{O1+1}')
    a(f'v_cvt_pk_bf16_f32 v{O1+2}, v{O1+2}, v{O1+3}')
    a(f'v_cndmask_b32 v{VTOK}, v{O0+2}, v{O0}, {LO}')
    a(f'v_cndmask_b32 v{VTOK+1}, v{O1+2}, v{O1}, {LO}')
    a(f'ds_write_b32 v{V_OBW0}, v{VTOK}')
    a(f'ds_write_b32 v{V_OBW1}, v{VTOK+1}')
    for r in range(48, 60):
        a(f'v_mov_b32 v{r}, 0')
    a('s_waitcnt lgkmcnt(0)')
    a('s_barrier')
    OA = VTOK
    a(f'ds_read_b128 v[{OA}:{OA+3}], v{V_OBR}')
    a(f'ds_read_b128 v[{OA+4}:{OA+7}], v{V_OBR} offset:1024')
    T = lambda nu: 32 + 4 * nu
    def wo0(nu): smf(a, T(nu), OA, vreg8(WO_R + 8*nu))
    def wo1(nu): smf(a, T(nu), OA + 4, vreg8(64 + 8*nu))
    def pack(p):
        t0, t1 = T(2*p), T(2*p + 1)
        out = []
        for r in range(4): out.append(f'v_permlane32_swap_b32 v{t0+r}, v{t1+r}')
        for r in range(4): out.append(f'v_add_f32 v{t0+r}, v{t0+r}, v{t1+r}')
        out.append(f'v_and_or_b32 v{t0}, v{t0}, -2, s{S_TAG}')
        out.append(f'buffer_store_dwordx4 v[{t0}:{t0+3}], v{V_PTW}, {SM}, s{S_PW+p} offen sc1')
        return out
    a('s_waitcnt lgkmcnt(1)')
    wo0(0); wo0(1)
    a('s_waitcnt lgkmcnt(0)')
    wo1(0); wo1(1)
    wo0(2); wo0(3); wo1(2); wo1(3)
    for p in range(1, 3):
        pk = pack(p - 1)
        n0, n1 = 2*p + 2, 2*p + 3
        a.ext(pk[0:4]); wo0(n0); a.ext(pk[4:6]); wo0(n1); a.ext(pk[6:8]); wo1(n0); a.ext(pk[8:10]); wo1(n1)
    a.ext(pack(2))
    a('s_nop 1')
    a.ext(pack(3))
    D('W', [32, 33, 34, 35, 40, 41, 42, 43, 48, 49, 50, 51, 56, 57, 58, 59])
    RD = 64
    a.label('REC_PR')
    for x in range(4):
        a(f'buffer_load_dwordx4 v[{RD+4*x}:{RD+4*x+3}], v{V_PTR}, {SM}, s{S_PR+x} offen sc1')
    a('s_waitcnt vmcnt(0)')
    a(f'v_bitop3_b32 v{V_T}, v{RD}, v{RD+4}, s{S_TAG} bitop3:{BITOP_XOROR}')
    a(f'v_bitop3_b32 v24, v{RD+8}, v{RD+12}, s{S_TAG} bitop3:{BITOP_XOROR}')
    a(f'v_bitop3_b32 v{V_T}, v{V_T}, v24, 1 bitop3:{BITOP_ORAND}')
    a(f'v_cmp_ne_u32 vcc, 0, v{V_T}')
    poll_end(a, 'REC_PR', 'REC_PR_D')
    for r in range(4):
        a(f'v_add_f32 v{RD+r}, v{RD+r}, v{RD+4+r}')
    for r in range(4):
        a(f'v_add_f32 v{RD+8+r}, v{RD+8+r}, v{RD+12+r}')
    for r in range(4):
        a(f'v_add_f32 v{RD+r}, v{RD+r}, v{RD+8+r}')
    a('s_nop 0')
    a(f'v_permlane32_swap_b32 v{RD}, v{RD+2}')
    a(f'v_permlane32_swap_b32 v{RD+1}, v{RD+3}')
    a('s_nop 1')
    a(f'v_add_f32 v{RD}, v{RD}, v{RD+2}')
    a(f'v_add_f32 v{RD+1}, v{RD+1}, v{RD+3}')
    a('s_nop 1')
    a(f'v_permlane16_swap_b32 v{RD}, v{RD+1}')
    a('s_nop 1')
    a(f'v_add_f32 v{RD}, v{RD}, v{RD+1}')
    a('s_nop 1')
    a(f'v_add_f32_dpp v{RD}, v{RD}, v{RD} row_ror:8 row_mask:0xf bank_mask:0xf')
    a('s_nop 1')
    a(f'v_mov_b32_dpp v{RD+1}, v{RD} quad_perm:[1,0,3,2] row_mask:0xf bank_mask:0xf')
    a(f'v_cvt_pk_bf16_f32 v{RD}, v{RD}, v{RD+1}')
    a(f'v_min_u32 v{RD}, {SENT_MAX}, v{RD}')
    a(f'buffer_store_dword v{RD}, v{V_MFW}, {SM}, s{S_MEMN} offen sc1')
    for x in range(4):
        a(f's_add_u32 s{S_MEMF+x}, s{S_MEMF+x}, 16384')
    a(f's_add_u32 s{S_MEMN}, s{S_MEMN}, 16384')
    a(f's_add_u32 s{S_QKM}, s{S_QKM}, {32*4096}')
    a(f's_add_u32 s{S_VMG}, s{S_VMG}, {32*2048}')
    a(f's_add_u32 s{S_KVO}, s{S_KVO}, {32*8192}')
    a(f's_xor_b32 s{S_TAG}, s{S_TAG}, 1')
    a(f's_add_u32 s{S_STEP}, s{S_STEP}, 1')
    a('s_branch REC_TOP')
    a.label('REC_END')

def _tt(f):
    v = 0
    for i in range(8):
        if f((i >> 2) & 1, (i >> 1) & 1, i & 1): v |= 1 << i
    return hex(v)
BITOP_XOROR = _tt(lambda x, y, t: (x ^ t) | (y ^ t))
BITOP_ORAND = _tt(lambda x, y, m: (x | y) & m)


def gen_rec(nsteps=63, dbg=None):
    a = Asm()
    a('s_cmp_ge_u32 s2, 64')
    a('s_cbranch_scc1 REC_EXIT')
    rec_setup(a)
    a(f's_mov_b32 s{S_NST}, {nsteps}')
    stage_weights(a)
    a('s_barrier')
    rec_step(a, dbg)
    a.label('REC_EXIT')
    a('s_endpgm')
    return a.text()


def gen_prep():
    a = Asm()
    a('s_cmp_ge_u32 s2, 256')
    a('s_cbranch_scc1 PREP_END')
    a(f's_load_dwordx2 s[4:5], s[0:1], {KA_WS}')
    a(f's_load_dwordx2 s[6:7], s[0:1], {KA_MEM0}')
    a('s_lshl_b32 s3, s2, 12')
    a('v_lshlrev_b32 v1, 4, v0')
    a('v_add_u32 v1, s3, v1')
    for r in range(4):
        a(f'v_mov_b32 v{4+r}, -1'); a(f'v_mov_b32 v{8+r}, 0')
    a('s_waitcnt lgkmcnt(0)')
    a.srd(8, 4, SM_SIZE, add=WS_SM)
    a.srd(12, 6, 8 * 1024 * 2)
    for i in range(12):
        a(f's_mov_b32 s16, {i << 20}')
        a('buffer_store_dwordx4 v[4:7], v1, s[8:11], s16 offen')
    a(f's_mov_b32 s16, {SM_PART}')
    a('buffer_store_dwordx4 v[8:11], v1, s[8:11], s16 offen')
    a('s_cmp_lt_u32 s2, 4')
    a('s_cbranch_scc1 PREP_M0')
    a(f's_mov_b32 s16, {SM_MEMF}')
    a('buffer_store_dwordx4 v[4:7], v1, s[8:11], s16 offen')
    a('s_branch PREP_END')
    a.label('PREP_M0')
    a('v_lshrrev_b32 v2, 4, v1')
    a('v_and_b32 v3, 7, v2'); a('v_lshlrev_b32 v3, 11, v3')
    a('v_lshrrev_b32 v12, 4, v2'); a('v_lshl_add_u32 v3, v12, 5, v3')
    a('v_bfe_u32 v12, v2, 3, 1'); a('v_lshl_add_u32 v3, v12, 2, v3')
    for t in range(4):
        a(f'buffer_load_dword v{4+t}, v3, s[12:15], 0 offen offset:{t*8}')
    a('s_waitcnt vmcnt(0)')
    for t in range(4):
        a(f'v_min_u32 v{4+t}, {SENT_MAX}, v{4+t}')
    a(f's_mov_b32 s16, {SM_MEMF}')
    a('buffer_store_dwordx4 v[4:7], v1, s[8:11], s16 offen')
    a.label('PREP_END')
    a('s_endpgm')
    return a.text()
```

```python
from asmlib import *
from gemm2 import *

S_RB, S_CB, S_KS = 28, 29, 30
S_PW, S_PWS = 32, 34
S_OSRD = 36
COH = ''

def set_coh(on):
    global COH
    COH = ' sc1' if on else ''

def wave_id(a):
    a('v_lshrrev_b32 v1, 6, v0')
    a('s_nop 0')
    a(f'v_readfirstlane_b32 s{S_WAVE}, v1')

def ws_srd(a, s, off, nbytes):
    a.srd(s, S_PWS, nbytes, add=off)

MB = 1024*1024
GK = {
 'K':  dict(kw=KA_WK, wrow=8192, wb=8*MB, xo=WS_XN, xb=4*MB, xstr=65536, nloop=7),
 'Q':  dict(kw=KA_WQ, wrow=8192, wb=8*MB, xo=WS_XN, xb=4*MB, xstr=65536, nloop=7),
 'V':  dict(kw=KA_WV, wrow=8192, wb=8*MB, xo=WS_XN, xb=4*MB, xstr=65536, nloop=7),
 'WO': dict(kw=KA_WO, wrow=2048, wb=8*MB, xo=WS_OF, xb=16*MB, xstr=262144, nloop=7),
 'GU': dict(kw=KA_WG, wrow=7168, wb=7*MB, xo=WS_HN, xb=4*MB, xstr=65536, nloop=7),
 'DN': dict(kw=KA_WD, wrow=2048, wb=7*MB, xo=WS_ACT, xb=14*MB, xstr=229376, nloop=6),
}

def gemm_params(a, kind):
    p = GK[kind]
    a(f's_load_dwordx2 s[{S_PW}:{S_PW+1}], s[0:1], {p["kw"]}')
    a(f's_load_dwordx2 s[{S_PWS}:{S_PWS+1}], s[0:1], {KA_WS}')
    if kind == 'GU':
        a(f's_load_dwordx2 s[40:41], s[0:1], {KA_WU}')
    a(f's_mov_b32 s{S_WROW}, {p["wrow"]}')
    a(f's_mov_b32 s{S_XSTR}, {p["xstr"]}')
    a(f's_mov_b32 s{S_NLOOP}, {p["nloop"]}')
    a(f's_mov_b32 s{S_GU}, {1 if kind == "GU" else 0}')
    a(f's_mul_i32 s{S_XBASE}, s{S_RB}, {4*p["xstr"]}')
    a(f's_lshr_b32 s{S_T0}, s{S_WAVE}, 1')
    if kind == 'GU':
        a(f's_lshl_b32 s{S_WCOL}, s{S_CB}, 8')
    else:
        a(f's_lshl_b32 s{S_WCOL}, s{S_CB}, 9')
        a(f's_lshl_b32 s{S_T1}, s{S_T0}, 8')
        a(f's_add_u32 s{S_WCOL}, s{S_WCOL}, s{S_T1}')
    if kind == 'WO':
        a(f's_lshl_b32 s{S_SOFFW}, s{S_KS}, 21')
        a(f's_lshl_b32 s{S_SOFFX}, s{S_KS}, 16')
    elif kind == 'DN':
        a(f's_mul_i32 s{S_SOFFW}, s{S_KS}, {896*2048}')
        a(f's_mul_i32 s{S_SOFFX}, s{S_KS}, {56*1024}')
    else:
        a(f's_mov_b32 s{S_SOFFW}, 0')
        a(f's_mov_b32 s{S_SOFFX}, 0')
    a('s_waitcnt lgkmcnt(0)')
    if kind == 'GU':
        a(f's_cmp_lg_u32 s{S_T0}, 0')
        a(f's_cselect_b32 s{S_PW}, s40, s{S_PW}')
        a(f's_cselect_b32 s{S_PW+1}, s41, s{S_PW+1}')
    a.srd(S_WSRD, S_PW, p['wb'])
    ws_srd(a, S_XSRD, p['xo'], p['xb'])

def epi_bf16(a, g, tile_fn, vt, vl16):
    pass

def epi_fm(a, g, soff_fn, vl16, vt):
    a('s_nop 7'); a('s_nop 7')
    cnt = 0
    for mt in range(g.MT):
        for nt in range(g.NT):
            ac = g.acc(mt, nt)
            t = vt + (cnt % 4) * 24
            if cnt >= 4:
                a('s_waitcnt vmcnt(6)')
            for r in range(16):
                a(f'v_accvgpr_read_b32 v{t+r}, a{ac+r}')
            for r in range(8):
                a(f'v_cvt_pk_bf16_f32 v{t+16+r}, v{t+2*r}, v{t+2*r+1}')
            so, off = soff_fn(mt, nt)
            a(f's_mov_b32 s{S_T2}, {so}')
            a(f'buffer_store_dwordx4 v[{t+16}:{t+19}], v{vl16}, s[{S_OSRD}:{S_OSRD+3}], s{S_T2} offen offset:{off}{COH}')
            a(f'buffer_store_dwordx4 v[{t+20}:{t+23}], v{vl16}, s[{S_OSRD}:{S_OSRD+3}], s{S_T2} offen offset:{off+1024}{COH}')
            cnt += 1

def mblk0(a, dst):
    a(f's_lshr_b32 s{dst}, s{S_WAVE}, 1')
    a(f's_lshl_b32 s{dst}, s{dst}, 1')
    a(f's_lshl_b32 s{S_T1}, s{S_RB}, 2')
    a(f's_add_u32 s{dst}, s{dst}, s{S_T1}')

def epi_KQ(a, g, wsoff):
    ws_srd(a, S_OSRD, wsoff, 16*MB)
    a('v_and_b32 v1, 63, v0'); a('v_lshlrev_b32 v1, 4, v1')
    mblk0(a, S_T0)
    a(f's_lshl_b32 s{S_T0}, s{S_T0}, 8')
    a(f's_and_b32 s{S_T1}, s{S_WAVE}, 1'); a(f's_lshl_b32 s{S_T1}, s{S_T1}, 3'); a(f's_add_u32 s{S_T0}, s{S_T0}, s{S_T1}')
    a(f's_lshl_b32 s{S_T1}, s{S_CB}, 4'); a(f's_add_u32 s{S_T0}, s{S_T0}, s{S_T1}')
    a(f's_lshl_b32 s{S_T0}, s{S_T0}, 10')
    a(f'v_add_u32 v1, s{S_T0}, v1')
    epi_fm(a, g, lambda mt, nt: (mt*256*1024 + (nt >> 1)*4096, (nt & 1)*2048), 1, g.vfree)

def epi_V(a, g):
    ws_srd(a, S_OSRD, WS_VT, 16*MB)
    a('v_and_b32 v1, 63, v0'); a('v_lshlrev_b32 v1, 4, v1')
    mblk0(a, S_T0)
    a(f's_lshl_b32 s{S_T0}, s{S_T0}, 5')
    a(f's_and_b32 s{S_T1}, s{S_WAVE}, 1'); a(f's_add_u32 s{S_T0}, s{S_T0}, s{S_T1}')
    a(f's_lshl_b32 s{S_T1}, s{S_CB}, 1'); a(f's_add_u32 s{S_T0}, s{S_T0}, s{S_T1}')
    a(f's_lshl_b32 s{S_T0}, s{S_T0}, 13')
    a(f'v_add_u32 v1, s{S_T0}, v1')
    epi_fm(a, g, lambda mt, nt: (mt*32*8192 + (nt >> 1)*4096, (nt & 1)*2048), 1, g.vfree)

def epi_part(a, g, wsoff):
    ws_srd(a, S_OSRD, wsoff, 32*MB)
    a('v_and_b32 v1, 63, v0'); a('v_lshlrev_b32 v1, 4, v1')
    mblk0(a, S_T0)
    a(f's_lshl_b32 s{S_T0}, s{S_T0}, 17')
    a(f's_lshl_b32 s{S_T1}, s{S_KS}, 23'); a(f's_add_u32 s{S_T0}, s{S_T0}, s{S_T1}')
    a(f's_lshl_b32 s{S_T1}, s{S_CB}, 15'); a(f's_add_u32 s{S_T0}, s{S_T0}, s{S_T1}')
    a(f's_and_b32 s{S_T1}, s{S_WAVE}, 1'); a(f's_lshl_b32 s{S_T1}, s{S_T1}, 14'); a(f's_add_u32 s{S_T0}, s{S_T0}, s{S_T1}')
    a(f'v_add_u32 v1, s{S_T0}, v1')
    a('s_nop 7'); a('s_nop 7')
    for mt in range(g.MT):
        for nt in range(g.NT):
            ac = g.acc(mt, nt)
            a(f's_mov_b32 s{S_T2}, {mt*(1<<17) + nt*4096}')
            for q in range(4):
                a(f'buffer_store_dwordx4 a[{ac+4*q}:{ac+4*q+3}], v1, s[{S_OSRD}:{S_OSRD+3}], s{S_T2} offen offset:{q*1024}{COH}')

def epi_gu(a, g):
    ws_srd(a, S_OSRD, WS_ACT, 14*MB)
    a('v_and_b32 v1, 63, v0'); a('v_lshlrev_b32 v1, 4, v1')
    mblk0(a, S_T0)
    a(f's_mul_i32 s{S_T0}, s{S_T0}, 224')
    a(f's_lshl_b32 s{S_T1}, s{S_CB}, 3'); a(f's_add_u32 s{S_T0}, s{S_T0}, s{S_T1}')
    a(f's_and_b32 s{S_T1}, s{S_WAVE}, 1'); a(f's_lshl_b32 s{S_T1}, s{S_T1}, 2'); a(f's_add_u32 s{S_T0}, s{S_T0}, s{S_T1}')
    a(f's_lshl_b32 s{S_T0}, s{S_T0}, 10')
    a(f'v_add_u32 v1, s{S_T0}, v1')
    a('s_nop 7'); a('s_nop 7')
    vt = g.vfree
    cnt = 0
    for mt in range(g.MT):
        for j in range(2):
            ag = g.acc(mt, j); au = g.acc(mt, 2 + j)
            t = vt + (cnt % 2) * 48
            G = t; U = t + 16; O = t + 32; T = t + 40
            if cnt >= 2:
                a('s_waitcnt vmcnt(2)')
            for r in range(16):
                a(f'v_accvgpr_read_b32 v{G+r}, a{ag+r}')
            for r in range(16):
                a(f'v_accvgpr_read_b32 v{U+r}, a{au+r}')
            for r in range(8):
                a(f'v_cvt_pk_bf16_f32 v{T+r}, v{G+2*r}, v{G+2*r+1}')
            for r in range(8):
                a(f'v_lshlrev_b32 v{G+2*r}, 16, v{T+r}')
                a(f'v_and_b32 v{G+2*r+1}, 0xffff0000, v{T+r}')
            for r in range(8):
                a(f'v_cvt_pk_bf16_f32 v{T+r}, v{U+2*r}, v{U+2*r+1}')
            for r in range(16):
                a(f'v_mul_f32 v{G+r}, 0xbfb8aa3b, v{G+r}')
            for r in range(8):
                a(f'v_lshlrev_b32 v{U+2*r}, 16, v{T+r}')
                a(f'v_and_b32 v{U+2*r+1}, 0xffff0000, v{T+r}')
            for r in range(16):
                a(f'v_exp_f32 v{G+r}, v{G+r}')
            for r in range(16):
                a(f'v_add_f32 v{G+r}, 1.0, v{G+r}')
            for r in range(16):
                a(f'v_rcp_f32 v{G+r}, v{G+r}')
            for r in range(8):
                a(f'v_cvt_pk_bf16_f32 v{T+r}, v{G+2*r}, v{G+2*r+1}')
            for r in range(8):
                a(f'v_lshlrev_b32 v{G+2*r}, 16, v{T+r}')
                a(f'v_and_b32 v{G+2*r+1}, 0xffff0000, v{T+r}')
            for r in range(16):
                a(f'v_mul_f32 v{G+r}, v{G+r}, v{U+r}')
            for r in range(8):
                a(f'v_cvt_pk_bf16_f32 v{O+r}, v{G+2*r}, v{G+2*r+1}')
            a(f's_mov_b32 s{S_T2}, {mt*224*1024}')
            a(f'buffer_store_dwordx4 v[{O}:{O+3}], v1, s[{S_OSRD}:{S_OSRD+3}], s{S_T2} offen offset:{j*2048}{COH}')
            a(f'buffer_store_dwordx4 v[{O+4}:{O+7}], v1, s[{S_OSRD}:{S_OSRD+3}], s{S_T2} offen offset:{j*2048+1024}{COH}')
            cnt += 1

def task_gemm(a, g, kind):
    gemm_params(a, kind)
    g.setup(a, 1, 2, 3)
    g.mainloop(a, kind == 'V', kind)
    if kind == 'K': epi_KQ(a, g, WS_KF)
    elif kind == 'Q': epi_KQ(a, g, WS_QF)
    elif kind == 'V': epi_V(a, g)
    elif kind == 'WO': epi_part(a, g, WS_P1)
    elif kind == 'DN': epi_part(a, g, WS_P2)
    elif kind == 'GU': epi_gu(a, g)
```

```python
from asmlib import *
import tasks
from tasks import S_RB, S_CB, S_KS, S_PW, S_PWS, S_OSRD, ws_srd, MB
from gemm2 import S_WAVE, S_T0, S_T1, S_T2
from k_ln import bf16_round, reduce_bits345

SCALE = '0x3db504f3'
LOG2E = '0x3fb8aa3b'

def task_att(a):
    coh = tasks.COH
    a(f's_load_dwordx2 s[{S_PWS}:{S_PWS+1}], s[0:1], {KA_WS}')
    a('v_and_b32 v1, 63, v0')
    a(f's_lshl_b32 s{S_T0}, s{S_CB}, 2')
    a(f's_add_u32 s{S_T0}, s{S_T0}, s{S_WAVE}')
    a(f's_lshl_b32 s{S_T1}, s{S_RB}, 5')
    a(f's_add_u32 s{S_T1}, s{S_T1}, s{S_T0}')
    a(f's_lshl_b32 s40, s{S_T1}, 13')
    a(f's_lshl_b32 s41, s{S_T1}, 11')
    a(f's_lshl_b32 s43, s{S_T1}, 12')
    a('s_add_u32 s43, s43, 2048')
    a('v_lshlrev_b32 v2, 4, v1')
    a('v_add_u32 v2, s40, v2')
    a('v_lshrrev_b32 v4, 5, v1')
    a('v_and_b32 v3, 7, v1')
    a('v_lshlrev_b32 v3, 4, v3')
    a('v_lshl_add_u32 v3, v4, 7, v3')
    a('v_add_u32 v3, s43, v3')
    a('v_and_b32 v5, 31, v1')
    a('v_lshlrev_b32 v6, 3, v5')
    a('v_lshl_add_u32 v6, v4, 8, v6')
    a('v_add_u32 v6, s41, v6')
    a('v_lshlrev_b32 v7, 2, v4')
    a('v_sub_u32 v7, v5, v7')
    a('s_waitcnt lgkmcnt(0)')
    a.srd(4, S_PWS, 16*MB, add=WS_QF)
    a.srd(8, S_PWS, 16*MB, add=WS_KF)
    a.srd(12, S_PWS, 16*MB, add=WS_VT)
    a.srd(44, S_PWS, 8*MB, add=WS_QKM)
    a.srd(48, S_PWS, 4*MB, add=WS_VMG)
    a.srd(S_OSRD, S_PWS, 16*MB, add=WS_OF)
    Q, K, KMr, VT, VM = 16, 48, 80, 112, 144
    S, SM = 160, 176
    P, PM = 192, 200
    O = 16
    T = 208
    for kb in range(8):
        a(f'buffer_load_dwordx4 v[{K+4*kb}:{K+4*kb+3}], v2, s[8:11], {"0" if kb < 4 else "s40"} offen offset:{(kb&3)*1024}') if False else None
    a('s_movk_i32 s42, 0x1000')
    def so(i): return '0' if i < 4 else 's42'
    for kb in range(8):
        a(f'buffer_load_dwordx4 v[{K+4*kb}:{K+4*kb+3}], v2, s[8:11], {so(kb)} offen offset:{(kb&3)*1024}')
        a(f'buffer_load_dwordx4 v[{Q+4*kb}:{Q+4*kb+3}], v2, s[4:7], {so(kb)} offen offset:{(kb&3)*1024}')
    for kb in range(8):
        a(f'buffer_load_dwordx4 v[{KMr+4*kb}:{KMr+4*kb+3}], v3, s[44:47], 0 offen offset:{kb*256}')
    for i in range(8):
        a(f'buffer_load_dwordx4 v[{VT+4*i}:{VT+4*i+3}], v2, s[12:15], {so(i)} offen offset:{(i&3)*1024}')
    for t in range(4):
        a(f'buffer_load_dwordx2 v[{VM+4*t}:{VM+4*t+1}], v6, s[48:51], 0 offen offset:{t*512}')
        a(f'v_mov_b32 v{VM+4*t+2}, 0'); a(f'v_mov_b32 v{VM+4*t+3}, 0')
    for r in range(16):
        cr = (r & 3) + 8 * (r >> 2)
        a(f'v_cmp_le_i32 s[{52+2*r}:{53+2*r}], {cr}, v7')
    for kb in range(8):
        a(f's_waitcnt vmcnt({12 + 8 + 2*(7-kb)})')
        c = '0' if kb == 0 else f'v[{S}:{S+15}]'
        a(f'v_mfma_f32_32x32x16_bf16 v[{S}:{S+15}], v[{K+4*kb}:{K+4*kb+3}], v[{Q+4*kb}:{Q+4*kb+3}], {c}')
    for kb in range(8):
        a(f's_waitcnt vmcnt({12 + (7-kb)})')
        c = '0' if kb == 0 else f'v[{SM}:{SM+15}]'
        a(f'v_mfma_f32_32x32x16_bf16 v[{SM}:{SM+15}], v[{KMr+4*kb}:{KMr+4*kb+3}], v[{Q+4*kb}:{Q+4*kb+3}], {c}')
    a('s_nop 7'); a('s_nop 7')
    N = 20
    def rnd():
        for r in range(N // 2):
            a(f'v_cvt_pk_bf16_f32 v{T+r}, v{S+2*r}, v{S+2*r+1}')
        for r in range(N // 2):
            a(f'v_lshlrev_b32 v{S+2*r}, 16, v{T+r}')
            a(f'v_and_b32 v{S+2*r+1}, 0xffff0000, v{T+r}')
    rnd()
    for r in range(N):
        a(f'v_mul_f32 v{S+r}, {SCALE}, v{S+r}')
    rnd()
    a(f'v_mov_b32 v{T+10}, 0xce6e6b28')
    for r in range(16):
        a(f'v_cndmask_b32 v{S+r}, v{T+10}, v{S+r}, s[{52+2*r}:{53+2*r}]')
    M = T + 11
    a(f'v_max3_f32 v{M}, v{S}, v{S+1}, v{S+2}')
    a(f'v_max3_f32 v{M+1}, v{S+3}, v{S+4}, v{S+5}')
    for r in range(6, N - 2, 4):
        a(f'v_max3_f32 v{M}, v{M}, v{S+r}, v{S+r+1}')
        a(f'v_max3_f32 v{M+1}, v{M+1}, v{S+r+2}, v{S+r+3}')
    a(f'v_max3_f32 v{M}, v{M}, v{S+18}, v{S+19}')
    a(f'v_max_f32 v{M}, v{M}, v{M+1}')
    a(f'v_mov_b32 v{M+1}, v{M}')
    a('s_nop 1')
    a(f'v_permlane32_swap_b32 v{M}, v{M+1}')
    a('s_nop 1')
    a(f'v_max_f32 v{M}, v{M}, v{M+1}')
    for r in range(N):
        a(f'v_sub_f32 v{S+r}, v{S+r}, v{M}')
    for r in range(N):
        a(f'v_mul_f32 v{S+r}, {LOG2E}, v{S+r}')
    for r in range(N):
        a(f'v_exp_f32 v{S+r}, v{S+r}')
    a(f'v_add_f32 v{M}, v{S}, v{S+1}')
    a(f'v_add_f32 v{M+1}, v{S+2}, v{S+3}')
    for r in range(4, N, 2):
        a(f'v_add_f32 v{M}, v{M}, v{S+r}')
        a(f'v_add_f32 v{M+1}, v{M+1}, v{S+r+1}')
    a(f'v_add_f32 v{M}, v{M}, v{M+1}')
    a(f'v_mov_b32 v{M+1}, v{M}')
    a('s_nop 1')
    a(f'v_permlane32_swap_b32 v{M}, v{M+1}')
    a('s_nop 1')
    a(f'v_add_f32 v{M}, v{M}, v{M+1}')
    a(f'v_rcp_f32 v{M}, v{M}')
    a('s_nop 0')
    for r in range(N):
        a(f'v_mul_f32 v{S+r}, v{S+r}, v{M}')
    for r in range(8):
        a(f'v_cvt_pk_bf16_f32 v{P+r}, v{S+2*r}, v{S+2*r+1}')
    a(f'v_cvt_pk_bf16_f32 v{PM}, v{S+16}, v{S+17}')
    a(f'v_cvt_pk_bf16_f32 v{PM+1}, v{S+18}, v{S+19}')
    a(f'v_mov_b32 v{PM+2}, 0'); a(f'v_mov_b32 v{PM+3}, 0')
    a('s_waitcnt vmcnt(0)')
    a('s_nop 1')
    for t in range(4):
        o = O + 16*t
        a(f'v_mfma_f32_32x32x16_bf16 v[{o}:{o+15}], v[{VT+8*t}:{VT+8*t+3}], v[{P}:{P+3}], 0')
    for t in range(4):
        o = O + 16*t
        a(f'v_mfma_f32_32x32x16_bf16 v[{o}:{o+15}], v[{VT+8*t+4}:{VT+8*t+7}], v[{P+4}:{P+7}], v[{o}:{o+15}]')
    for t in range(4):
        o = O + 16*t
        a(f'v_mfma_f32_32x32x16_bf16 v[{o}:{o+15}], v[{VM+4*t}:{VM+4*t+3}], v[{PM}:{PM+3}], v[{o}:{o+15}]')
    a('s_nop 7'); a('s_nop 7')
    R = 80
    for t in range(4):
        o = O + 16*t
        for r in range(8):
            a(f'v_cvt_pk_bf16_f32 v{R+8*t+r}, v{o+2*r}, v{o+2*r+1}')
        for hlf in range(2):
            i = 2*t + hlf
            a(f'buffer_store_dwordx4 v[{R+8*t+4*hlf}:{R+8*t+4*hlf+3}], v2, s[{S_OSRD}:{S_OSRD+3}], {so(i)} offen offset:{(i&3)*1024}{coh}')


def red_common(a, pws_off, need_x):
    a(f's_load_dwordx2 s[{S_PWS}:{S_PWS+1}], s[0:1], {KA_WS}')
    if need_x:
        a(f's_load_dwordx2 s[{S_PW}:{S_PW+1}], s[0:1], {KA_X}')
    else:
        a(f's_load_dwordx2 s[{S_PW}:{S_PW+1}], s[0:1], {KA_OUT}')
    a('v_and_b32 v1, 63, v0')
    a('v_and_b32 v4, 7, v1')
    a('v_bfe_u32 v5, v1, 3, 1')
    a('v_lshrrev_b32 v6, 4, v1')
    a(f's_lshr_b32 s40, s{S_RB}, 2')
    a(f's_and_b32 s41, s{S_RB}, 3')
    a(f's_lshl_b32 s41, s41, 3')
    a('v_add_u32 v7, s41, v4')
    a('v_lshl_add_u32 v8, v6, 2, v5')
    a('v_lshlrev_b32 v8, 9, v8')
    a('v_lshl_add_u32 v8, v7, 4, v8')
    a(f's_lshl_b32 s42, s{S_WAVE}, 15')
    a('s_lshl_b32 s43, s40, 17')
    a('s_add_u32 s42, s42, s43')
    a('v_add_u32 v8, s42, v8')
    a('v_lshl_add_u32 v2, v5, 5, v7')
    a('v_lshlrev_b32 v2, 4, v2')
    a('v_lshl_add_u32 v2, v6, 10, v2')
    a('s_lshl_b32 s42, s40, 16')
    a(f's_lshl_b32 s43, s{S_WAVE}, 14')
    a('s_add_u32 s42, s42, s43')
    a('v_add_u32 v2, s42, v2')
    a('s_waitcnt lgkmcnt(0)')
    a.srd(4, S_PWS, 32*MB, add=pws_off)
    L = 16
    for ks in range(4):
        for it in range(4):
            a(f's_mov_b32 s{S_T2}, {ks*(1<<23) + it*8192}')
            for h in range(2):
                r = L + ((ks*4 + it)*2 + h)*4
                a(f'buffer_load_dwordx4 v[{r}:{r+3}], v8, s[4:7], s{S_T2} offen offset:{h*1024}')
    return L

def red_sum(a, L, F, extra_outstanding):
    a(f's_waitcnt vmcnt({16 + extra_outstanding})')
    for i in range(32):
        a(f'v_add_f32 v{L+i}, v{L+i}, v{L+32+i}')
    a(f's_waitcnt vmcnt({extra_outstanding})')
    for i in range(32):
        a(f'v_add_f32 v{L+64+i}, v{L+64+i}, v{L+96+i}')
    for i in range(32):
        a(f'v_add_f32 v{L+i}, v{L+i}, v{L+64+i}')
    for i in range(16):
        a(f'v_cvt_pk_bf16_f32 v{L+32+i}, v{L+2*i}, v{L+2*i+1}')
    for i in range(16):
        a(f'v_lshlrev_b32 v{F+2*i}, 16, v{L+32+i}')
        a(f'v_and_b32 v{F+2*i+1}, 0xffff0000, v{L+32+i}')

def task_red1(a, ldsb=0):
    coh = tasks.COH
    L = red_common(a, WS_P1, True)
    a.srd(8, S_PW, 4*MB)
    a.srd(12, S_PWS, 4*MB, add=WS_HB)
    a.srd(S_OSRD, S_PWS, 4*MB, add=WS_HN)
    a(f's_lshl_b32 s42, s{S_RB}, 3')
    a('v_add_u32 v3, s42, v4')
    a('v_lshlrev_b32 v3, 11, v3')
    a('v_lshl_add_u32 v3, v6, 5, v3')
    a('v_lshl_add_u32 v3, v5, 3, v3')
    a(f's_lshl_b32 s42, s{S_WAVE}, 9')
    a('v_add_u32 v3, s42, v3')
    X = 144
    for it in range(4):
        for h in range(2):
            r = X + (it*2 + h)*2
            a(f'buffer_load_dwordx2 v[{r}:{r+1}], v3, s[8:11], 0 offen offset:{it*128 + h*16}')
    F = 160
    red_sum(a, L, F, 8)
    a('s_waitcnt vmcnt(0)')
    G = 16
    for i in range(16):
        a(f'v_lshlrev_b32 v{G+2*i}, 16, v{X+i}')
        a(f'v_and_b32 v{G+2*i+1}, 0xffff0000, v{X+i}')
    for i in range(32):
        a(f'v_add_f32 v{F+i}, v{F+i}, v{G+i}')
    H = 48
    for i in range(16):
        a(f'v_cvt_pk_bf16_f32 v{H+i}, v{F+2*i}, v{F+2*i+1}')
    for it in range(4):
        a(f's_mov_b32 s{S_T2}, {it*4096}')
        a(f'buffer_store_dwordx4 v[{H+4*it}:{H+4*it+3}], v2, s[12:15], s{S_T2} offen{coh}')
    for i in range(16):
        a(f'v_lshlrev_b32 v{F+2*i}, 16, v{H+i}')
        a(f'v_and_b32 v{F+2*i+1}, 0xffff0000, v{H+i}')
    for c in range(4):
        a(f'v_add_f32 v{10+c}, v{F+c}, v{F+4+c}')
    for i in range(8, 32, 4):
        for c in range(4):
            a(f'v_add_f32 v{10+c}, v{10+c}, v{F+i+c}')
    a('v_add_f32 v10, v10, v11'); a('v_add_f32 v12, v12, v13'); a('v_add_f32 v10, v10, v12')
    reduce_bits345(a, 10, 14)
    a(f's_lshl_b32 s42, s{S_WAVE}, 5')
    a('v_lshlrev_b32 v9, 2, v4')
    a(f'v_add_u32 v15, s42, v9')
    a(f'ds_write_b32 v15, v10 offset:{ldsb}')
    a('s_waitcnt lgkmcnt(0)')
    a('s_barrier')
    for w in range(4):
        a(f'ds_read_b32 v{10+w}, v9 offset:{ldsb + w*32}')
    a('s_waitcnt lgkmcnt(0)')
    a('v_add_f32 v10, v10, v11'); a('v_add_f32 v12, v12, v13'); a('v_add_f32 v10, v10, v12')
    a('v_mul_f32 v10, 0x3a800000, v10')
    for c in range(4):
        a(f'v_mov_b32 v{64+c}, 0')
    for i in range(0, 32, 4):
        for c in range(4):
            a(f'v_sub_f32 v{68+c}, v{F+i+c}, v10')
        for c in range(4):
            a(f'v_fmac_f32 v{64+c}, v{68+c}, v{68+c}')
    a('v_add_f32 v64, v64, v65'); a('v_add_f32 v66, v66, v67'); a('v_add_f32 v11, v64, v66')
    reduce_bits345(a, 11, 14)
    a(f'ds_write_b32 v15, v11 offset:{ldsb + 128}')
    a('s_waitcnt lgkmcnt(0)')
    a('s_barrier')
    for w in range(4):
        a(f'ds_read_b32 v{64+w}, v9 offset:{ldsb + 128 + w*32}')
    a('s_waitcnt lgkmcnt(0)')
    a('v_add_f32 v64, v64, v65'); a('v_add_f32 v66, v66, v67'); a('v_add_f32 v11, v64, v66')
    a('v_mul_f32 v11, 0x3a800000, v11')
    bf16_round(a, 11, 11)
    a('v_add_f32 v11, 0x3727c5ac, v11')
    bf16_round(a, 11, 11)
    a('v_sqrt_f32 v11, v11')
    a('s_nop 0')
    bf16_round(a, 11, 11)
    a('v_rcp_f32 v11, v11')
    bf16_round(a, 10, 10)
    for i in range(32):
        a(f'v_sub_f32 v{F+i}, v{F+i}, v10')
    for i in range(16):
        a(f'v_cvt_pk_bf16_f32 v{G+i}, v{F+2*i}, v{F+2*i+1}')
    for i in range(16):
        a(f'v_lshlrev_b32 v{F+2*i}, 16, v{G+i}')
        a(f'v_and_b32 v{F+2*i+1}, 0xffff0000, v{G+i}')
    for i in range(32):
        a(f'v_mul_f32 v{F+i}, v{F+i}, v11')
    O = 80
    for i in range(16):
        a(f'v_cvt_pk_bf16_f32 v{O+i}, v{F+2*i}, v{F+2*i+1}')
    for it in range(4):
        a(f's_mov_b32 s{S_T2}, {it*4096}')
        a(f'buffer_store_dwordx4 v[{O+4*it}:{O+4*it+3}], v2, s[{S_OSRD}:{S_OSRD+3}], s{S_T2} offen{coh}')

def task_red2(a):
    L = red_common(a, WS_P2, False)
    a.srd(8, S_PWS, 4*MB, add=WS_HB)
    a.srd(S_OSRD, S_PW, 4*MB)
    X = 144
    for it in range(4):
        a(f's_mov_b32 s{S_T2}, {it*4096}')
        a(f'buffer_load_dwordx4 v[{X+4*it}:{X+4*it+3}], v2, s[8:11], s{S_T2} offen')
    a(f's_lshl_b32 s42, s{S_RB}, 3')
    a('v_add_u32 v3, s42, v4')
    a('v_lshlrev_b32 v3, 11, v3')
    a('v_lshl_add_u32 v3, v6, 5, v3')
    a('v_lshl_add_u32 v3, v5, 4, v3')
    a(f's_lshl_b32 s42, s{S_WAVE}, 9')
    a('v_add_u32 v3, s42, v3')
    a('v_cmp_eq_u32 s[44:45], 0, v5')
    F = 160
    red_sum(a, L, F, 4)
    a('s_waitcnt vmcnt(0)')
    G = 16
    for i in range(16):
        a(f'v_lshlrev_b32 v{G+2*i}, 16, v{X+i}')
        a(f'v_and_b32 v{G+2*i+1}, 0xffff0000, v{X+i}')
    for i in range(32):
        a(f'v_add_f32 v{F+i}, v{F+i}, v{G+i}')
    H = 48
    for i in range(16):
        a(f'v_cvt_pk_bf16_f32 v{H+i}, v{F+2*i}, v{F+2*i+1}')
    S = 64; R = 80; O = 96
    for it in range(4):
        for c in range(2):
            a(f'v_cndmask_b32 v{S+2*it+c}, v{H+4*it+c}, v{H+4*it+2+c}, s[44:45]')
    a('s_nop 1')
    for i in range(8):
        a(f'v_mov_b32_dpp v{R+i}, v{S+i} row_ror:8 row_mask:0xf bank_mask:0xf')
    for it in range(4):
        for c in range(2):
            a(f'v_cndmask_b32 v{O+4*it+c}, v{R+2*it+c}, v{H+4*it+c}, s[44:45]')
            a(f'v_cndmask_b32 v{O+4*it+2+c}, v{H+4*it+2+c}, v{R+2*it+c}, s[44:45]')
    for it in range(4):
        a(f'buffer_store_dwordx4 v[{O+4*it}:{O+4*it+3}], v3, s[{S_OSRD}:{S_OSRD+3}], 0 offen offset:{it*128}')
```

```python
import sys; sys.path.insert(0,'gen')
from asmlib import *
import k_ln, tasks, tasks2, k_rec
from gemm2 import *
from tasks import *

def kern_gemm(kind, name, ntask, decode):
    a = Asm()
    g = Eng()
    a(f's_cmp_ge_u32 s2, {ntask}')
    a(f's_cbranch_scc1 {name}_END')
    wave_id(a)
    decode(a)
    task_gemm(a, g, kind)
    a.label(f'{name}_END')
    a('s_endpgm')
    return a.text(), g

def dec_kqv(a):
    a(f's_and_b32 s{S_CB}, s2, 7'); a(f's_lshl_b32 s{S_CB}, s{S_CB}, 1')
    a('s_lshr_b32 s3, s2, 3'); a('s_and_b32 s31, s3, 1'); a(f's_add_u32 s{S_CB}, s{S_CB}, s31')
    a(f's_lshr_b32 s{S_RB}, s3, 1'); a(f's_mov_b32 s{S_KS}, 0')
def dec_part(a):
    a('s_and_b32 s31, s2, 7'); a('s_lshl_b32 s31, s31, 1')
    a('s_lshr_b32 s3, s2, 3'); a('s_and_b32 s33, s3, 1'); a('s_add_u32 s31, s31, s33')
    a(f's_and_b32 s{S_CB}, s31, 3'); a(f's_lshr_b32 s{S_KS}, s31, 2')
    a(f's_lshr_b32 s{S_RB}, s3, 1')
def dec_gu(a):
    a('s_mul_i32 s3, s2, 9363'); a(f's_lshr_b32 s{S_RB}, s3, 18')
    a(f's_mul_i32 s3, s{S_RB}, 28'); a(f's_sub_u32 s{S_CB}, s2, s3'); a(f's_mov_b32 s{S_KS}, 0')

def kern_simple(name, ntask, decode, body):
    a = Asm()
    a(f's_cmp_ge_u32 s2, {ntask}')
    a(f's_cbranch_scc1 {name}_END')
    wave_id(a)
    decode(a)
    body(a)
    a.label(f'{name}_END')
    a('s_endpgm')
    return a.text()

def dec_att(a):
    a(f's_lshr_b32 s{S_RB}, s2, 3'); a(f's_and_b32 s{S_CB}, s2, 7')
def dec_red(a):
    a(f's_mov_b32 s{S_RB}, s2')

def header():
    src = open('cdna_kernels/' + KNAME[:-7] + '.s.ref').read().split('\n')
    out = []
    for l in src:
        if l.startswith('; Override launch'): break
        out.append(l)
    return '\n'.join(out)

def build(path, hdr='; test'):
    ks = []; ls = []
    ks.append(('prep_kernel', k_rec.gen_prep(), 32, 32)); ls.append(('prep_kernel', (256,1,1), (256,1,1), 0))
    ks.append(('ln1_kernel', k_ln.gen_ln1(), 256, 256)); ls.append(('ln1_kernel', (64,1,1), (256,1,1), 0))
    for kind, nm, nt, dec in [('K','kp_kernel',256,dec_kqv),('V','vp_kernel',256,dec_kqv),('Q','qp_kernel',256,dec_kqv)]:
        t, g = kern_gemm(kind, nm[:2].upper(), nt, dec)
        ks.append((nm, t, 512, 256)); ls.append((nm, (nt,1,1), (256,1,1), g.lds))
    ks.append(('rec_kernel', k_rec.gen_rec(63), 512, 256)); ls.append(('rec_kernel', (64,1,1), (256,1,1), k_rec.REC_LDS))
    ks.append(('att_kernel', kern_simple('ATT', 512, dec_att, tasks2.task_att), 224, 224)); ls.append(('att_kernel', (512,1,1), (256,1,1), 0))
    t, g = kern_gemm('WO', 'WO', 256, dec_part); ks.append(('wo_kernel', t, 512, 256)); ls.append(('wo_kernel', (256,1,1), (256,1,1), g.lds))
    ks.append(('red1_kernel', kern_simple('R1', 256, dec_red, tasks2.task_red1), 224, 224)); ls.append(('red1_kernel', (256,1,1), (256,1,1), 1024))
    t, g = kern_gemm('GU', 'GU', 448, dec_gu); ks.append(('gu_kernel', t, 512, 256)); ls.append(('gu_kernel', (448,1,1), (256,1,1), g.lds))
    t, g = kern_gemm('DN', 'DN', 256, dec_part); ks.append(('dn_kernel', t, 512, 256)); ls.append(('dn_kernel', (256,1,1), (256,1,1), g.lds))
    ks.append(('red2_kernel', kern_simple('R2', 256, dec_red, tasks2.task_red2), 224, 224)); ls.append(('red2_kernel', (256,1,1), (256,1,1), 0))
    txt = assemble_file(hdr, ls, ks)
    open(path, 'w').write(txt)
    print('lds', g.lds, 'vfree', g.vfree, 'bytes', len(txt))
    return ls
if __name__ == '__main__':
    p = 'cdna_kernels/' + KNAME[:-7] + '.s'
    build(p, header())
    import chk; chk.chk(p)
```

```python
from asmlib import *

L_QB  = 0x0000
L_OB  = 0x1000
L_KT  = 0x2000
L_MEM = 0x4000
L_WV  = 0x8000
L_WO  = 0x18000
REC_LDS = 0x28000

V_MEMR = [0, 1, 2, 3]
V_POLLM = 0
V_KTG, V_VT, V_QKW, V_WVL, V_WOL, V_VMW = 4, 5, 6, 7, 8, 9
V_KTR0, V_QBR, V_PQK, V_PVM = 10, 11, 12, 13
V_OBW0, V_OBW1, V_OBR, V_PTW, V_PTR, V_MFW = 14, 15, 16, 17, 18, 19
V_IDX, V_SEL0, V_SEL1, V_T = 20, 21, 22, 23
VTOK = 24
AQ, AK, AV = 32, 36, 40
VM, PV = 44, 46
WVB = 48
POLL = 64
AFR = 80
WV_R = 128
WO_R = 192
LN = 24

S_SM = 4
S_KV = 8
S_W = 12
S_STEP, S_W_, S_H, S_J = 16, 17, 18, 19
S_MEMF = 20
S_QKM, S_VMG, S_KVO, S_TAG, S_BUD = 24, 25, 26, 27, 28
S_PW = 30
S_PR = 34
S_MEMN = 38
S_EVEN = 40
S_LO8 = 42
S_M0K = 44
S_T0, S_T1, S_T2, S_T3 = 45, 46, 47, 48
S_PTR = 50
S_WS = 52
S_NST = 54

ORDER = [0, 4, 8, 12, 1, 2, 3, 5, 6, 7, 9, 10, 11, 13, 14, 15]
PI = {s: i for i, s in enumerate(ORDER)}
SENT_MAX = -2
SOFT_C = '0x3e0293ee'


def smf(a, acc, A, B):
    a(f'v_smfmac_f32_16x16x64_bf16 v[{acc}:{acc+3}], v[{A}:{A+3}], {B}, v{V_IDX}')

def wq(pi): return f'a[{8*pi}:{8*pi+7}]'
def wk(pi): return f'a[{128+8*pi}:{128+8*pi+7}]'
def vreg8(r): return f'v[{r}:{r+7}]'


def poll_end(a, lab, done):
    a(f's_cbranch_vccz {done}')
    a(f's_cmp_eq_u32 s{S_BUD}, 0')
    a(f's_cbranch_scc1 {done}')
    a(f's_sub_u32 s{S_BUD}, s{S_BUD}, 1')
    a(f's_branch {lab}')
    a.label(done)

def max_chain(a, dst, regs):
    a(f'v_max3_u32 v{dst}, v{regs[0]}, v{regs[1]}, v{regs[2]}')
    i = 3
    while i + 1 < len(regs):
        a(f'v_max3_u32 v{dst}, v{dst}, v{regs[i]}, v{regs[i+1]}')
        i += 2
    if i < len(regs):
        a(f'v_max_u32 v{dst}, v{dst}, v{regs[i]}')


def rec_setup(a):
    a(f's_load_dwordx2 s[{S_WS}:{S_WS+1}], s[0:1], {KA_WS}')
    a('v_lshrrev_b32 v1, 6, v0')
    a(f'v_and_b32 v{LN}, 63, v0')
    a(f'v_readfirstlane_b32 s{S_W_}, v1')
    a(f's_lshr_b32 s{S_T0}, s2, 4'); a(f's_lshl_b32 s{S_T0}, s{S_T0}, 3')
    a(f's_and_b32 s{S_H}, s2, 7'); a(f's_add_u32 s{S_H}, s{S_H}, s{S_T0}')
    a(f's_lshr_b32 s{S_J}, s2, 3'); a(f's_and_b32 s{S_J}, s{S_J}, 1')
    W, H, J = f's{S_W_}', f's{S_H}', f's{S_J}'
    T0, T1, T2 = f's{S_T0}', f's{S_T1}', f's{S_T2}'
    l16, c, g4, t1, t2 = 28, 29, 30, 31, 32
    a(f'v_lshlrev_b32 v{l16}, 4, v{LN}')
    a(f'v_and_b32 v{c}, 15, v{LN}')
    a(f'v_lshrrev_b32 v{g4}, 4, v{LN}')
    for y in range(4):
        a(f's_xor_b32 {T0}, {W}, {y}'); a(f's_lshl_b32 {T0}, {T0}, 10')
        a(f'v_add_u32 v{V_MEMR[y]}, {T0}, v{l16}')
    a(f's_lshl_b32 {T0}, {W}, 11')
    a(f'v_add_u32 v{V_KTG}, {T0}, v{l16}')
    a(f's_add_u32 s{S_M0K}, {T0}, {L_KT}')
    a(f's_lshl_b32 {T2}, {J}, 2'); a(f's_add_u32 {T2}, {T2}, {W}')
    a(f's_lshr_b32 {T0}, {T2}, 1'); a(f's_lshl_b32 {T0}, {T0}, 11')
    a(f's_and_b32 {T1}, {T2}, 1'); a(f's_lshl_b32 {T1}, {T1}, 8')
    a(f's_add_u32 {T0}, {T0}, {T1}'); a(f's_add_u32 {T0}, {T0}, 0x1000000')
    a(f'v_lshrrev_b32 v{t1}, 5, v{LN}'); a(f'v_lshlrev_b32 v{t1}, 10, v{t1}')
    a(f'v_and_b32 v{t2}, 1, v{g4}')
    a(f'v_lshl_add_u32 v{t1}, v{t2}, 9, v{t1}')
    a(f'v_lshl_add_u32 v{t1}, v{c}, 4, v{t1}')
    a(f'v_add_u32 v{V_VT}, {T0}, v{t1}')
    a(f's_lshl_b32 {T0}, {J}, 10')
    a(f's_lshr_b32 {T1}, {W}, 1'); a(f's_lshl_b32 {T1}, {T1}, 9'); a(f's_add_u32 {T0}, {T0}, {T1}')
    a(f's_and_b32 {T1}, {W}, 1'); a(f's_lshl_b32 {T1}, {T1}, 8'); a(f's_add_u32 {T0}, {T0}, {T1}')
    a(f'v_lshrrev_b32 v{t1}, 5, v{LN}'); a(f'v_lshlrev_b32 v{t1}, 11, v{t1}')
    a(f'v_bfe_u32 v{t2}, v{LN}, 2, 1'); a(f'v_lshl_add_u32 v{t1}, v{t2}, 7, v{t1}')
    a(f'v_bfe_u32 v{t2}, v{LN}, 4, 1'); a(f'v_lshl_add_u32 v{t1}, v{t2}, 6, v{t1}')
    a(f'v_and_b32 v{t2}, 1, v{LN}'); a(f'v_lshl_add_u32 v{t1}, v{t2}, 5, v{t1}')
    a(f'v_bfe_u32 v{t2}, v{LN}, 3, 1'); a(f'v_lshl_add_u32 v{t1}, v{t2}, 3, v{t1}')
    a(f'v_bfe_u32 v{t2}, v{LN}, 1, 1'); a(f'v_lshl_add_u32 v{t1}, v{t2}, 2, v{t1}')
    a(f'v_add_u32 v{V_QKW}, {T0}, v{t1}')
    a(f's_lshl_b32 {T0}, {W}, 14')
    a(f's_add_u32 {T1}, {T0}, {L_WV}'); a(f'v_add_u32 v{V_WVL}, {T1}, v{l16}')
    a(f's_add_u32 {T1}, {T0}, {L_WO}'); a(f'v_add_u32 v{V_WOL}, {T1}, v{l16}')
    a(f's_lshr_b32 {T0}, {T2}, 1'); a(f's_lshl_b32 {T0}, {T0}, 9')
    a(f's_and_b32 {T1}, {T2}, 1'); a(f's_lshl_b32 {T1}, {T1}, 7'); a(f's_add_u32 {T0}, {T0}, {T1}')
    a(f'v_bfe_u32 v{t2}, v{LN}, 4, 1'); a(f'v_lshlrev_b32 v{t1}, 8, v{t2}')
    a(f'v_lshl_add_u32 v{t1}, v{c}, 3, v{t1}')
    a(f'v_add_u32 v{V_PVM}, {T0}, v{t1}')
    a(f'v_xor_b32 v{V_PVM}, 0x400, v{V_PVM}')
    a(f'v_lshrrev_b32 v{t2}, 5, v{LN}'); a(f'v_lshl_add_u32 v{t1}, v{t2}, 2, v{t1}')
    a(f'v_add_u32 v{V_VMW}, {T0}, v{t1}')
    a(f'v_bfe_u32 v{t1}, v{LN}, 3, 1'); a(f'v_lshlrev_b32 v{t1}, 4, v{t1}')
    a(f'v_and_b32 v{t2}, 7, v{LN}'); a(f'v_add_u32 v{t1}, v{t1}, v{t2}')
    a(f'v_bfe_u32 v{t2}, v{LN}, 4, 1'); a(f'v_lshl_add_u32 v{t1}, v{t2}, 5, v{t1}')
    a(f'v_lshlrev_b32 v{t1}, 4, v{t1}')
    a(f'v_lshrrev_b32 v{t2}, 5, v{LN}'); a(f'v_lshl_add_u32 v{t1}, v{t2}, 10, v{t1}')
    a(f's_lshl_b32 {T0}, {J}, 12'); a(f's_add_u32 {T0}, {T0}, {L_KT}')
    a(f'v_add_u32 v{V_KTR0}, {T0}, v{t1}')
    a(f'v_and_b32 v{t2}, 7, v{LN}'); a(f'v_lshlrev_b32 v{t1}, 4, v{t2}')
    a(f'v_lshl_add_u32 v{t1}, v{g4}, 7, v{t1}')
    a(f's_lshl_b32 {T0}, {J}, 10')
    a(f'v_add_u32 v{V_QBR}, {T0}, v{t1}')
    a(f'v_xor_b32 v{V_PQK}, 0x400, v{V_QBR}')
    a(f's_lshl_b32 {T0}, {J}, 10'); a(f's_lshl_b32 {T1}, {W}, 8'); a(f's_add_u32 {T0}, {T0}, {T1}'); a(f's_add_u32 {T0}, {T0}, {L_OB}')
    a(f'v_lshlrev_b32 v{t1}, 4, v{c}'); a(f'v_lshl_add_u32 v{t1}, v{g4}, 2, v{t1}')
    a(f'v_add_u32 v{V_OBW0}, {T0}, v{t1}')
    a(f'v_xor_b32 v{V_OBW1}, 0x400, v{V_OBW0}')
    a(f'v_add_u32 v{V_OBR}, {L_OB}, v{l16}')
    a(f's_lshl_b32 {T0}, {J}, 5'); a(f's_lshl_b32 {T1}, {W}, 3'); a(f's_add_u32 {T0}, {T0}, {T1}')
    a(f's_lshl_b32 {T0}, {T0}, 14'); a(f's_lshl_b32 {T1}, {H}, 9'); a(f's_add_u32 {T0}, {T0}, {T1}')
    a(f'v_lshrrev_b32 v{t1}, 5, v{LN}'); a(f'v_lshlrev_b32 v{t1}, 14, v{t1}')
    a(f'v_bfe_u32 v{t2}, v{LN}, 4, 1'); a(f'v_lshl_add_u32 v{t1}, v{t2}, 8, v{t1}')
    a(f'v_bfe_u32 v{t2}, v{LN}, 1, 1'); a(f'v_lshl_add_u32 v{t1}, v{t2}, 7, v{t1}')
    a(f'v_bfe_u32 v{t2}, v{LN}, 2, 2'); a(f'v_lshl_add_u32 v{t1}, v{t2}, 5, v{t1}')
    a(f'v_and_b32 v{t2}, 1, v{LN}'); a(f'v_lshl_add_u32 v{t1}, v{t2}, 4, v{t1}')
    a(f'v_add_u32 v{V_PTW}, {T0}, v{t1}')
    a(f's_lshl_b32 {T0}, s2, 14'); a(f's_lshl_b32 {T1}, {W}, 7'); a(f's_add_u32 {T0}, {T0}, {T1}')
    a(f'v_lshrrev_b32 v{t1}, 3, v{LN}'); a(f'v_lshlrev_b32 v{t1}, 9, v{t1}')
    a(f'v_and_b32 v{t2}, 7, v{LN}'); a(f'v_lshl_add_u32 v{t1}, v{t2}, 4, v{t1}')
    a(f'v_add_u32 v{V_PTR}, {T0}, v{t1}')
    a(f's_lshl_b32 {T0}, s2, 8')
    a(f's_and_b32 {T1}, {W}, 1'); a(f's_lshl_b32 {T1}, {T1}, 7'); a(f's_add_u32 {T0}, {T0}, {T1}')
    a(f's_lshr_b32 {T1}, {W}, 1'); a(f's_lshl_b32 {T1}, {T1}, 6'); a(f's_add_u32 {T0}, {T0}, {T1}')
    a(f'v_lshlrev_b32 v{t1}, 4, v{g4}')
    a(f'v_bfe_u32 v{t2}, v{LN}, 1, 2'); a(f'v_lshl_add_u32 v{t1}, v{t2}, 2, v{t1}')
    a(f'v_add_u32 v{t1}, {T0}, v{t1}')
    a(f'v_and_b32 v{t2}, 9, v{LN}')
    a(f'v_cmp_eq_u32 vcc, 0, v{t2}')
    a(f'v_mov_b32 v{V_MFW}, 0x40000000')
    a('s_nop 1')
    a(f'v_cndmask_b32 v{V_MFW}, v{V_MFW}, v{t1}, vcc')
    a(f's_mov_b32 s{S_EVEN}, 0x55555555'); a(f's_mov_b32 s{S_EVEN+1}, 0x55555555')
    a(f's_mov_b32 s{S_LO8}, 0x00ff00ff'); a(f's_mov_b32 s{S_LO8+1}, 0x00ff00ff')
    a(f'v_mov_b32 v{V_IDX}, 0xeeee'); a(f'v_mov_b32 v{t1}, 0x4444')
    a(f'v_cndmask_b32 v{V_IDX}, v{V_IDX}, v{t1}, s[{S_LO8}:{S_LO8+1}]')
    a(f'v_mov_b32 v{V_SEL0}, 0x01000504'); a(f'v_mov_b32 v{t1}, 0x05040100')
    a(f'v_cndmask_b32 v{V_SEL0}, v{V_SEL0}, v{t1}, s[{S_EVEN}:{S_EVEN+1}]')
    a(f'v_mov_b32 v{V_SEL1}, 0x03020706'); a(f'v_mov_b32 v{t1}, 0x07060302')
    a(f'v_cndmask_b32 v{V_SEL1}, v{V_SEL1}, v{t1}, s[{S_EVEN}:{S_EVEN+1}]')
    for p in range(4):
        a(f's_mov_b32 s{S_PW+p}, {SM_PART + p*32768}')
        a(f's_mov_b32 s{S_PR+p}, {SM_PART + p*4096}')
        a(f's_mov_b32 s{S_MEMF+p}, {SM_MEMF + p*4096}')
    a(f's_mov_b32 s{S_MEMN}, {SM_MEMF + 16384}')
    a(f's_lshl_b32 s{S_QKM}, {H}, 12')
    a(f's_lshl_b32 s{S_VMG}, {H}, 11'); a(f's_add_u32 s{S_VMG}, s{S_VMG}, {SM_VMG}')
    a(f's_lshl_b32 s{S_KVO}, {H}, 13')
    a(f's_mov_b32 s{S_TAG}, 1')
    a(f's_mov_b32 s{S_STEP}, 0')
    a(f's_mov_b32 s{S_BUD}, 300000')
    a('s_waitcnt lgkmcnt(0)')
    a.srd(S_SM, S_WS, SM_SIZE, add=WS_SM)
    a.srd(S_KV, S_WS, 32 << 20, add=WS_KF)


def stage_weights(a):
    W, H, J = f's{S_W_}', f's{S_H}', f's{S_J}'
    T0, T1, T2, T3 = f's{S_T0}', f's{S_T1}', f's{S_T2}', f's{S_T3}'
    VE, VO = 28, 29
    TB = [30, 31, 32, 33]
    TB2 = [34, 35, 36, 37]
    VOF = [40 + f for f in range(8)]
    OB_A = [48 + n for n in range(8)]
    OB_B = [56 + n for n in range(8)]
    t1, t2, t3 = 38, 39, 25
    a(f'v_lshrrev_b32 v{t1}, 3, v{LN}'); a(f'v_lshlrev_b32 v{t1}, 13, v{t1}')
    a(f'v_bfe_u32 v{t2}, v{LN}, 4, 1'); a(f'v_lshlrev_b32 v{t2}, 1, v{t2}')
    a(f'v_and_b32 v{t3}, 7, v{LN}'); a(f'v_xor_b32 v{t2}, v{t2}, v{t3}')
    a(f'v_lshl_add_u32 v{t1}, v{t2}, 4, v{t1}')
    a(f's_lshl_b32 {T0}, {H}, 8'); a(f's_lshl_b32 {T1}, {J}, 7'); a(f's_add_u32 {T0}, {T0}, {T1}')
    a(f'v_add_u32 v{VE}, {T0}, v{t1}')
    a(f'v_xor_b32 v{VO}, 64, v{VE}')
    a(f'v_lshrrev_b32 v{t1}, 4, v{LN}'); a(f'v_lshlrev_b32 v{t1}, 3, v{t1}')
    a(f'v_bfe_u32 v{t2}, v{LN}, 2, 2'); a(f'v_add_u32 v{t1}, v{t1}, v{t2}')
    a(f'v_lshlrev_b32 v{t1}, 7, v{t1}')
    a(f'v_bfe_u32 v{t2}, v{LN}, 3, 1')
    a(f'v_bfe_u32 v{t3}, v{LN}, 4, 1'); a(f'v_lshl_or_b32 v{t2}, v{t3}, 1, v{t2}')
    a(f'v_lshlrev_b32 v{t2}, 1, v{t2}')
    a(f'v_bfe_u32 v{t3}, v{LN}, 1, 1')
    a(f's_lshl_b32 {T0}, {W}, 1'); a(f'v_add_u32 v{t3}, {T0}, v{t3}')
    a(f'v_xor_b32 v{t2}, v{t2}, v{t3}')
    a(f'v_lshl_add_u32 v{t1}, v{t2}, 4, v{t1}')
    a(f'v_and_b32 v{t2}, 1, v{LN}'); a(f'v_lshl_add_u32 v{t1}, v{t2}, 3, v{t1}')
    for x in range(4):
        a(f's_xor_b32 {T0}, {W}, {x}'); a(f's_lshl_b32 {T0}, {T0}, 13')
        a(f's_add_u32 {T1}, {T0}, {L_WV}'); a(f'v_add_u32 v{TB[x]}, {T1}, v{t1}')
        a(f's_add_u32 {T1}, {T0}, {L_WO}'); a(f'v_add_u32 v{TB2[x]}, {T1}, v{t1}')
    a(f's_lshl_b32 {T0}, {J}, 10'); a(f'v_lshlrev_b32 v{t1}, 4, v{LN}'); a(f'v_add_u32 v{t1}, {T0}, v{t1}')
    for f in range(8):
        a(f'v_xor_b32 v{VOF[f]}, {f << 5}, v{t1}')
    a(f'v_lshrrev_b32 v{t1}, 4, v{LN}'); a(f'v_lshlrev_b32 v{t1}, 3, v{t1}')
    a(f'v_bfe_u32 v{t2}, v{LN}, 2, 2'); a(f'v_add_u32 v{t1}, v{t1}, v{t2}')
    a(f'v_lshlrev_b32 v{t1}, 10, v{t1}')
    a(f'v_bfe_u32 v{t3}, v{LN}, 4, 1'); a(f'v_lshl_or_b32 v{t2}, v{t3}, 2, v{t2}')
    a(f'v_lshlrev_b32 v{t2}, 1, v{t2}')
    a(f'v_bfe_u32 v{t3}, v{LN}, 1, 1'); a(f'v_add_u32 v{t2}, v{t2}, v{t3}')
    a(f'v_lshl_add_u32 v{t1}, v{t2}, 4, v{t1}')
    a(f'v_and_b32 v{t2}, 1, v{LN}'); a(f'v_lshl_add_u32 v{t1}, v{t2}, 3, v{t1}')
    a(f's_lshl_b32 {T0}, {W}, 8'); a(f'v_add_u32 v{t1}, {T0}, v{t1}')
    for n in range(8):
        a(f'v_xor_b32 v{t2}, {n << 5}, v{t1}')
        a(f'v_add_u32 v{OB_A[n]}, {L_WV}, v{t2}')
        a(f'v_add_u32 v{OB_B[n]}, {L_WO}, v{t2}')

    def load_ptr(ka):
        a(f's_load_dwordx2 s[{S_PTR}:{S_PTR+1}], s[0:1], {ka}')
        a('s_waitcnt lgkmcnt(0)')
        a.srd(S_W, S_PTR, 8 << 20)

    def dma_qkv(P, region):
        a(f's_lshl_b32 {T0}, {W}, 20'); a(f's_add_u32 {T0}, {T0}, {P << 22}')
        a(f's_lshl_b32 {T1}, {W}, 14'); a(f's_add_u32 m0, {T1}, {region}')
        for i in range(16):
            a(f'buffer_load_dwordx4 v{VO if i & 1 else VE}, s[{S_W}:{S_W+3}], {T0} offen lds')
            if i < 15:
                a(f's_add_u32 {T0}, {T0}, 65536'); a('s_add_u32 m0, m0, 1024'); a('s_nop 0')

    def dma_wo(cp, region):
        a(f's_lshl_b32 {T0}, {H}, 7'); a(f's_lshl_b32 {T1}, {W}, 4'); a(f's_add_u32 {T0}, {T0}, {T1}')
        a(f's_add_u32 {T0}, {T0}, {64*cp}'); a(f's_lshl_b32 {T0}, {T0}, 11')
        a(f's_lshl_b32 {T1}, {W}, 14'); a(f's_add_u32 m0, {T1}, {region}')
        for i in range(16):
            f = (i & 3) | (((i >> 3) & 1) << 2)
            a(f'buffer_load_dwordx4 v{VOF[f]}, s[{S_W}:{S_W+3}], {T0} offen lds')
            if i < 15:
                a(f's_add_u32 {T0}, {T0}, 2048'); a('s_add_u32 m0, m0, 1024'); a('s_nop 0')

    def read_qkv(P, tb, dest):
        n = 0
        for cs in range(8):
            pi = PI[8 * P + cs]
            d = dest(pi)
            for hq in range(2):
                for q in range(2):
                    r = 4 * hq + 2 * q
                    a(f'ds_read_b64_tr_b16 {d(r)}, v{tb[cs & 3]} offset:{(cs >> 2)*32768 + hq*4096 + q*512}')
                    n += 1
            a('s_waitcnt lgkmcnt(8)')

    def read_wo(ad, dest):
        for nu in range(8):
            for hq in range(2):
                for q in range(2):
                    r = dest + 8 * nu + 4 * hq + 2 * q
                    a(f'ds_read_b64_tr_b16 v[{r}:{r+1}], v{ad[nu]} offset:{hq*32768 + q*4096}')
            a('s_waitcnt lgkmcnt(8)')

    dq = lambda pi: (lambda r: f'a[{8*pi+r}:{8*pi+r+1}]')
    dk = lambda pi: (lambda r: f'a[{128+8*pi+r}:{128+8*pi+r+1}]')
    def dv(pi):
        b = WV_R + 8 * pi if pi < 8 else 64 + 8 * (pi - 8)
        return lambda r: f'v[{b+r}:{b+r+1}]'

    pieces = [('q', 0), ('q', 1), ('k', 0), ('k', 1), ('v', 0), ('v', 1), ('o', 0), ('o', 1)]
    ptrs = {'q': KA_WQ, 'k': KA_WK, 'v': KA_WV, 'o': KA_WO}
    def issue(n):
        m, P = pieces[n]
        if P == 0: load_ptr(ptrs[m])
        reg = L_WO if n & 1 else L_WV
        if m == 'o': dma_wo(P, reg)
        else: dma_qkv(P, reg)
    issue(0); issue(1)
    for n in range(8):
        m, P = pieces[n]
        a(f's_waitcnt vmcnt({16 if n < 7 else 0})')
        a('s_barrier')
        if m == 'q': read_qkv(P, TB2 if n & 1 else TB, dq)
        elif m == 'k': read_qkv(P, TB2 if n & 1 else TB, dk)
        elif m == 'v': read_qkv(P, TB2 if n & 1 else TB, dv)
        elif P == 0: read_wo(OB_A, WO_R)
        else:
            read_wo(OB_B, 64)
        a('s_waitcnt lgkmcnt(0)')
        a('s_barrier')
        if n + 2 < 8: issue(n + 2)
        if n == 6:
            for pi in range(8):
                for q2 in range(2):
                    r = 64 + 8 * pi + 4 * q2
                    a(f'ds_write_b128 v{V_WVL}, v[{r}:{r+3}] offset:{pi*2048 + q2*1024}')
            a('s_waitcnt lgkmcnt(0)')
        if n == 7:
            for nu in range(8):
                for q2 in range(2):
                    r = 64 + 8 * nu + 4 * q2
                    a(f'ds_write_b128 v{V_WOL}, v[{r}:{r+3}] offset:{nu*2048 + q2*1024}')
            a('s_waitcnt lgkmcnt(0)')


WS_DBG = 0xC000000

def dbg_dump(a, regs, slot):
    a('s_waitcnt vmcnt(0) lgkmcnt(0)')
    a('s_nop 7'); a('s_nop 7')
    a.srd(56, S_WS, 8 << 20, add=WS_DBG + slot * (4 << 20))
    a(f's_lshl_b32 s60, s2, 2'); a(f's_add_u32 s60, s60, s{S_W_}'); a('s_lshl_b32 s60, s60, 14')
    a(f'v_mbcnt_lo_u32_b32 v{V_T}, -1, 0'); a(f'v_mbcnt_hi_u32_b32 v{V_T}, -1, v{V_T}')
    a(f'v_lshlrev_b32 v{V_T}, 2, v{V_T}')
    for i, r in enumerate(regs):
        a(f'buffer_store_dword v{r}, v{V_T}, s[56:59], s60 offen')
        a('s_add_u32 s60, s60, 256')
    a('s_waitcnt vmcnt(0)')


def rec_step(a, dbg=None):
    SM = f's[{S_SM}:{S_SM+3}]'
    KV = f's[{S_KV}:{S_KV+3}]'
    EV = f's[{S_EVEN}:{S_EVEN+1}]'
    LO = f's[{S_LO8}:{S_LO8+1}]'
    dbg = dbg or {}
    def D(name, regs):
        if name in dbg:
            lab = a.newlabel('DBG')
            a(f's_cmp_lg_u32 s{S_STEP}, {dbg[name][1]}')
            a(f's_cbranch_scc1 {lab}')
            dbg_dump(a, regs, dbg[name][0])
            a.label(lab)
    prof = dbg.get('prof')
    def ST(i):
        if prof is not None: a(f's_memtime s[{64+2*i}:{65+2*i}]')
    def wvload(pi, dst):
        for q2 in range(2):
            a(f'ds_read_b128 v[{dst+4*q2}:{dst+4*q2+3}], v{V_WVL} offset:{(pi-8)*2048 + q2*1024}')
    def woload(nu):
        for q2 in range(2):
            r = 64 + 8*nu + 4*q2
            a(f'ds_read_b128 v[{r}:{r+3}], v{V_WOL} offset:{nu*2048 + q2*1024}')
    def mf32(d, A, B, C):
        c = '0' if C is None else f'v[{C}:{C+3}]'
        a(f'v_mfma_f32_16x16x32_bf16 v[{d}:{d+3}], v[{A}:{A+3}], v[{B}:{B+3}], {c}')
    def mf16(d, A, B, C):
        a(f'v_mfma_f32_16x16x16_bf16 v[{d}:{d+3}], v[{A}:{A+1}], v[{B}:{B+1}], v[{C}:{C+3}]')

    a.label('REC_TOP')
    ST(0)
    for r in range(AQ, AQ + 12):
        a(f'v_mov_b32 v{r}, 0')
    wvload(8, WVB); wvload(9, WVB + 8)
    a(f's_mov_b32 m0, s{S_M0K}')
    a.label('REC_PM')
    for x in range(4):
        a(f'buffer_load_dwordx4 v[{POLL+4*x}:{POLL+4*x+3}], v{V_POLLM}, {SM}, s{S_MEMF+x} offen sc1')
    a('s_waitcnt vmcnt(0)')
    max_chain(a, V_T, list(range(POLL, POLL + 16)))
    a(f'v_cmp_eq_u32 vcc, -1, v{V_T}')
    poll_end(a, 'REC_PM', 'REC_PM_D')
    ST(1)
    for x in range(4):
        a(f'ds_write_b128 v{V_MEMR[0]}, v[{POLL+4*x}:{POLL+4*x+3}] offset:{L_MEM + x*4096}')
    smf(a, AQ, POLL, wq(0))
    a(f'buffer_load_dwordx4 v{V_KTG}, {KV}, s{S_KVO} offen lds')
    a(f'buffer_load_dwordx4 v{V_KTG}, {KV}, s{S_KVO} offen offset:1024 lds')
    a(f'v_xor_b32 v{V_T}, 0x1000, v{V_VT}')
    smf(a, AK, POLL, wk(0))
    a(f'buffer_load_dwordx4 v[{VTOK}:{VTOK+3}], v{V_VT}, {KV}, s{S_KVO} offen')
    a(f'buffer_load_dwordx4 v[{VTOK+4}:{VTOK+7}], v{V_T}, {KV}, s{S_KVO} offen')
    smf(a, AV, POLL, vreg8(WV_R))
    smf(a, AQ, POLL + 4, wq(1)); smf(a, AK, POLL + 4, wk(1)); smf(a, AV, POLL + 4, vreg8(WV_R + 8))
    a('s_waitcnt lgkmcnt(0)')
    a('s_barrier')
    ST(2)
    for pi in range(4, 16):
        s = ORDER[pi]
        r = AFR + 4 * (pi - 4)
        a(f'ds_read_b128 v[{r}:{r+3}], v{V_MEMR[s & 3]} offset:{L_MEM + (s >> 2)*4096}')
    for x in (2, 3):
        smf(a, AQ, POLL + 4*x, wq(x)); smf(a, AK, POLL + 4*x, wk(x)); smf(a, AV, POLL + 4*x, vreg8(WV_R + 8*x))
    extra = 0
    for pi in range(4, 16):
        a(f's_waitcnt lgkmcnt({15 - pi + extra})')
        r = AFR + 4 * (pi - 4)
        smf(a, AQ, r, wq(pi)); smf(a, AK, r, wk(pi))
        if pi == 8:
            wvload(10, POLL); wvload(11, POLL + 8)
            extra = 4
    def vs(pi):
        r = AFR + 4 * (pi - 4)
        if pi < 8: B = WV_R + 8 * pi
        elif pi < 10: B = WVB + 8 * (pi - 8)
        elif pi < 12: B = POLL + 8 * (pi - 10)
        elif pi < 14: B = WVB + 8 * (pi - 12)
        else: B = AFR + 8 * (pi - 14)
        smf(a, AV, r, vreg8(B))
    ST(3)
    vs(4); vs(5)
    a('s_nop 3')
    for r in range(4):
        a(f'v_permlane32_swap_b32 v{AQ+r}, v{AK+r}')
    vs(6)
    for r in range(4):
        a(f'v_add_f32 v{AQ+r}, v{AQ+r}, v{AK+r}')
    vs(7)
    a(f'v_cvt_pk_bf16_f32 v{AK}, v{AQ}, v{AQ+1}')
    a(f'v_cvt_pk_bf16_f32 v{AK+1}, v{AQ+2}, v{AQ+3}')
    wvload(14, AFR); wvload(15, AFR + 8)
    a(f'v_cndmask_b32 v{AK+2}, v{AK+1}, v{AK}, {EV}')
    a(f'v_cndmask_b32 v{AK+3}, v{AK}, v{AK+1}, {EV}')
    vs(8)
    a('s_nop 0')
    a(f'v_mov_b32_dpp v{AK}, v{AK+3} quad_perm:[1,0,3,2] row_mask:0xf bank_mask:0xf')
    vs(9)
    wvload(12, WVB); wvload(13, WVB + 8)
    a(f'v_perm_b32 v{AQ}, v{AK}, v{AK+2}, v{V_SEL0}')
    a(f'v_perm_b32 v{AQ+1}, v{AK}, v{AK+2}, v{V_SEL1}')
    a(f'v_min_u32 v{AQ}, {SENT_MAX}, v{AQ}')
    a(f'v_min_u32 v{AQ+1}, {SENT_MAX}, v{AQ+1}')
    a(f's_waitcnt lgkmcnt(8)')
    vs(10)
    a(f'buffer_store_dword v{AQ}, v{V_QKW}, {SM}, s{S_QKM} offen sc1')
    a(f'buffer_store_dword v{AQ+1}, v{V_QKW}, {SM}, s{S_QKM} offen offset:16 sc1')
    a(f'ds_write2_b32 v{V_QKW}, v{AQ}, v{AQ+1} offset0:0 offset1:4')
    ST(4)
    vs(11)
    a(f's_waitcnt lgkmcnt(1)')
    vs(12); vs(13); vs(14); vs(15)
    a('s_nop 7')
    a('s_nop 1')
    a(f'v_permlane32_swap_b32 v{AV}, v{AV+2}')
    a(f'v_permlane32_swap_b32 v{AV+1}, v{AV+3}')
    a('s_nop 1')
    a(f'v_add_f32 v{AV}, v{AV}, v{AV+2}')
    a(f'v_add_f32 v{AV+1}, v{AV+1}, v{AV+3}')
    a(f'v_cvt_pk_bf16_f32 v{VM}, v{AV}, v{AV+1}')
    a(f'v_min_u32 v{VM}, {SENT_MAX}, v{VM}')
    a(f'buffer_store_dword v{VM}, v{V_VMW}, {SM}, s{S_VMG} offen sc1')
    ST(5)
    a(f'v_mov_b32 v{VM+1}, v{VM}')
    a(f's_cmp_ge_u32 s{S_STEP}, s{S_NST}')
    a(f's_cbranch_scc1 REC_END')
    a(f'v_xor_b32 v{V_T}, 0x1000, v{V_KTR0}')
    a(f'v_permlane32_swap_b32 v{VM}, v{VM+1}')
    a('s_waitcnt vmcnt(5) lgkmcnt(0)')
    a('s_barrier')
    ST(6)
    KA = 64
    QF = 96
    PQ = 112
    SA, SB, SMm = 48, 52, 56
    def pq_loads():
        for i, off in enumerate((0, 512, 2048, 2560)):
            a(f'buffer_load_dwordx4 v[{PQ+4*i}:{PQ+4*i+3}], v{V_PQK}, {SM}, s{S_QKM} offen offset:{off} sc1')
    for uu in range(2):
        a(f'ds_read_b128 v[{QF+4*uu}:{QF+4*uu+3}], v{V_QBR} offset:{L_QB + uu*512}')
        a(f'ds_read_b128 v[{QF+8+4*uu}:{QF+8+4*uu+3}], v{V_QBR} offset:{L_QB + 2048 + uu*512}')
        for tb in range(2):
            r = KA + 8*uu + 4*tb
            a(f'ds_read_b128 v[{r}:{r+3}], v{V_KTR0} offset:{uu*2048 + tb*128}')
    for uu in range(2):
        for tb in range(2):
            r = KA + 16 + 8*uu + 4*tb
            a(f'ds_read_b128 v[{r}:{r+3}], v{V_T} offset:{uu*2048 + tb*128}')
    pq_loads()
    a('s_waitcnt lgkmcnt(8)')
    mf32(SMm, QF + 8, QF, None); mf32(SA, KA, QF, None); mf32(SB, KA + 4, QF, None)
    a('s_waitcnt lgkmcnt(4)')
    mf32(SMm, QF + 12, QF + 4, SMm); mf32(SA, KA + 8, QF + 4, SA); mf32(SB, KA + 12, QF + 4, SB)
    woload(0); woload(1); woload(4); woload(5)
    ONE = 40
    for r in range(4):
        a(f'v_mov_b32 v{ONE+r}, 0x3f803f80')
    for r in range(60, 64):
        a(f'v_mov_b32 v{r}, 0')
    ST(7)
    a('s_branch REC_PQ_CHK')
    a.label('REC_PQ')
    pq_loads()
    a.label('REC_PQ_CHK')
    a('s_waitcnt vmcnt(0)')
    max_chain(a, V_T, list(range(PQ, PQ + 16)))
    a(f'v_cmp_eq_u32 vcc, -1, v{V_T}')
    poll_end(a, 'REC_PQ', 'REC_PQ_D')
    ST(8)
    a(f'buffer_load_dwordx2 v[{PV}:{PV+1}], v{V_PVM}, {SM}, s{S_VMG} offen sc1')
    a('s_waitcnt lgkmcnt(8)')
    mf32(SA, KA + 16, PQ, SA); mf32(SB, KA + 20, PQ, SB); mf32(SMm, PQ + 8, PQ, SMm)
    mf32(SA, KA + 24, PQ + 4, SA); mf32(SB, KA + 28, PQ + 4, SB); mf32(SMm, PQ + 12, PQ + 4, SMm)
    woload(2); woload(3)
    a('s_nop 5')
    D('S', [SA+i for i in range(12)])
    S = [SA + i for i in range(12)]
    P, PM, M, M2 = 32, 36, 38, 39
    a(f'v_max3_f32 v{M}, v{S[0]}, v{S[1]}, v{S[2]}')
    a(f'v_max3_f32 v{M2}, v{S[4]}, v{S[5]}, v{S[6]}')
    a(f'v_max3_f32 v{M}, v{M}, v{S[3]}, v{S[7]}')
    a(f'v_max3_f32 v{M2}, v{M2}, v{S[8]}, v{S[9]}')
    a(f'v_max3_f32 v{M}, v{M}, v{S[10]}, v{S[11]}')
    a(f'v_max_f32 v{M}, v{M}, v{M2}')
    a(f'v_mov_b32 v{M2}, v{M}')
    woload(6)
    a(f'v_permlane32_swap_b32 v{M}, v{M2}')
    woload(7)
    a(f'v_max_f32 v{M}, v{M}, v{M2}')
    a(f'v_mov_b32 v{M2}, v{M}')
    a(f's_mov_b32 s{S_T0}, {SOFT_C}')
    a('s_nop 0')
    a(f'v_permlane16_swap_b32 v{M}, v{M2}')
    a('s_nop 1')
    a(f'v_max_f32 v{M}, v{M}, v{M2}')
    a(f'v_mul_f32 v{M}, s{S_T0}, v{M}')
    a(f'v_add_f32 v{M2}, 1.0, v{M}')
    for i in range(12):
        a(f'v_fma_f32 v{S[i]}, v{S[i]}, s{S_T0}, -v{M if i < 8 else M2}')
    for i in range(12):
        a(f'v_exp_f32 v{S[i]}, v{S[i]}')
    a(f'v_cvt_pk_bf16_f32 v{P}, v{SA}, v{SA+1}')
    a(f'v_cvt_pk_bf16_f32 v{P+1}, v{SA+2}, v{SA+3}')
    a(f'v_cvt_pk_bf16_f32 v{P+2}, v{SB}, v{SB+1}')
    a(f'v_cvt_pk_bf16_f32 v{P+3}, v{SB+2}, v{SB+3}')
    a(f'v_cvt_pk_bf16_f32 v{PM}, v{SMm}, v{SMm+1}')
    a(f'v_cvt_pk_bf16_f32 v{PM+1}, v{SMm+2}, v{SMm+3}')
    O0, O1, SUM = 48, 52, 56
    ST(9)
    a('s_waitcnt vmcnt(0)')
    mf32(SUM, ONE, P, None)
    mf32(O0, VTOK, P, None)
    mf32(O1, VTOK + 4, P, None)
    mf16(SUM, ONE, PM, SUM)
    mf16(O0, VM, PM, O0)
    a('s_branch REC_PV_CHK')
    a.label('REC_PV')
    a(f'buffer_load_dwordx2 v[{PV}:{PV+1}], v{V_PVM}, {SM}, s{S_VMG} offen sc1')
    a('s_waitcnt vmcnt(0)')
    a.label('REC_PV_CHK')
    a(f'v_max_u32 v{V_T}, v{PV}, v{PV+1}')
    a(f'v_cmp_eq_u32 vcc, -1, v{V_T}')
    poll_end(a, 'REC_PV', 'REC_PV_D')
    ST(10)
    mf16(O1, PV, PM, O1)
    a(f'v_rcp_f32 v{V_T}, v{SUM}')
    for r in range(32, 48):
        a(f'v_mov_b32 v{r}, 0')
    for r in range(4):
        a(f'v_mul_f32 v{O0+r}, v{O0+r}, v{V_T}')
    for r in range(4):
        a(f'v_mul_f32 v{O1+r}, v{O1+r}, v{V_T}')
    D('O', [O0+i for i in range(8)])
    a(f'v_cvt_pk_bf16_f32 v{O0}, v{O0}, v{O0+1}')
    a(f'v_cvt_pk_bf16_f32 v{O0+2}, v{O0+2}, v{O0+3}')
    a(f'v_cvt_pk_bf16_f32 v{O1}, v{O1}, v{O1+1}')
    a(f'v_cvt_pk_bf16_f32 v{O1+2}, v{O1+2}, v{O1+3}')
    a(f'v_cndmask_b32 v{VTOK}, v{O0+2}, v{O0}, {LO}')
    a(f'v_cndmask_b32 v{VTOK+1}, v{O1+2}, v{O1}, {LO}')
    a(f'ds_write_b32 v{V_OBW0}, v{VTOK}')
    a(f'ds_write_b32 v{V_OBW1}, v{VTOK+1}')
    for r in range(48, 60):
        a(f'v_mov_b32 v{r}, 0')
    a('s_waitcnt lgkmcnt(0)')
    a('s_barrier')
    ST(11)
    OA = VTOK
    a(f'ds_read_b128 v[{OA}:{OA+3}], v{V_OBR}')
    a(f'ds_read_b128 v[{OA+4}:{OA+7}], v{V_OBR} offset:1024')
    T = lambda nu: 32 + 4 * nu
    def wo0(nu): smf(a, T(nu), OA, vreg8(WO_R + 8*nu))
    def wo1(nu): smf(a, T(nu), OA + 4, vreg8(64 + 8*nu))
    def pack(p):
        t0, t1 = T(2*p), T(2*p + 1)
        out = []
        for r in range(4): out.append(f'v_permlane32_swap_b32 v{t0+r}, v{t1+r}')
        for r in range(4): out.append(f'v_add_f32 v{t0+r}, v{t0+r}, v{t1+r}')
        out.append(f'v_and_or_b32 v{t0}, v{t0}, -2, s{S_TAG}')
        out.append(f'buffer_store_dwordx4 v[{t0}:{t0+3}], v{V_PTW}, {SM}, s{S_PW+p} offen sc1')
        return out
    a('s_waitcnt lgkmcnt(1)')
    wo0(0); wo0(1)
    a('s_waitcnt lgkmcnt(0)')
    wo1(0); wo1(1)
    wo0(2); wo0(3); wo1(2); wo1(3)
    for p in range(1, 3):
        pk = pack(p - 1)
        n0, n1 = 2*p + 2, 2*p + 3
        a.ext(pk[0:4]); wo0(n0); a.ext(pk[4:6]); wo0(n1); a.ext(pk[6:8]); wo1(n0); a.ext(pk[8:10]); wo1(n1)
    a.ext(pack(2))
    a('s_nop 1')
    a.ext(pack(3))
    D('W', [32, 33, 34, 35, 40, 41, 42, 43, 48, 49, 50, 51, 56, 57, 58, 59])
    RD = 64
    ST(12)
    a.label('REC_PR')
    for x in range(4):
        a(f'buffer_load_dwordx4 v[{RD+4*x}:{RD+4*x+3}], v{V_PTR}, {SM}, s{S_PR+x} offen sc1')
    a('s_waitcnt vmcnt(0)')
    a(f'v_bitop3_b32 v{V_T}, v{RD}, v{RD+4}, s{S_TAG} bitop3:{BITOP_XOROR}')
    a(f'v_bitop3_b32 v24, v{RD+8}, v{RD+12}, s{S_TAG} bitop3:{BITOP_XOROR}')
    a(f'v_bitop3_b32 v{V_T}, v{V_T}, v24, 1 bitop3:{BITOP_ORAND}')
    a(f'v_cmp_ne_u32 vcc, 0, v{V_T}')
    poll_end(a, 'REC_PR', 'REC_PR_D')
    ST(13)
    for r in range(4):
        a(f'v_add_f32 v{RD+r}, v{RD+r}, v{RD+4+r}')
    for r in range(4):
        a(f'v_add_f32 v{RD+8+r}, v{RD+8+r}, v{RD+12+r}')
    for r in range(4):
        a(f'v_add_f32 v{RD+r}, v{RD+r}, v{RD+8+r}')
    a('s_nop 0')
    a(f'v_permlane32_swap_b32 v{RD}, v{RD+2}')
    a(f'v_permlane32_swap_b32 v{RD+1}, v{RD+3}')
    a('s_nop 1')
    a(f'v_add_f32 v{RD}, v{RD}, v{RD+2}')
    a(f'v_add_f32 v{RD+1}, v{RD+1}, v{RD+3}')
    a('s_nop 1')
    a(f'v_permlane16_swap_b32 v{RD}, v{RD+1}')
    a('s_nop 1')
    a(f'v_add_f32 v{RD}, v{RD}, v{RD+1}')
    a('s_nop 1')
    a(f'v_add_f32_dpp v{RD}, v{RD}, v{RD} row_ror:8 row_mask:0xf bank_mask:0xf')
    a('s_nop 1')
    a(f'v_mov_b32_dpp v{RD+1}, v{RD} quad_perm:[1,0,3,2] row_mask:0xf bank_mask:0xf')
    a(f'v_cvt_pk_bf16_f32 v{RD}, v{RD}, v{RD+1}')
    a(f'v_min_u32 v{RD}, {SENT_MAX}, v{RD}')
    a(f'buffer_store_dword v{RD}, v{V_MFW}, {SM}, s{S_MEMN} offen sc1')
    ST(14)
    if prof is not None:
        lab = a.newlabel('DBG')
        a(f's_cmp_lg_u32 s{S_STEP}, {prof[1]}')
        a(f's_cbranch_scc1 {lab}')
        a('s_waitcnt lgkmcnt(0)')
        a(f's_mov_b32 s94, s{S_BUD}')
        for i in range(16):
            a(f'v_mov_b32 v{64+i}, s{64+2*i}')
        dbg_dump(a, list(range(64, 80)), prof[0])
        a.label(lab)
    for x in range(4):
        a(f's_add_u32 s{S_MEMF+x}, s{S_MEMF+x}, 16384')
    a(f's_add_u32 s{S_MEMN}, s{S_MEMN}, 16384')
    a(f's_add_u32 s{S_QKM}, s{S_QKM}, {32*4096}')
    a(f's_add_u32 s{S_VMG}, s{S_VMG}, {32*2048}')
    a(f's_add_u32 s{S_KVO}, s{S_KVO}, {32*8192}')
    a(f's_xor_b32 s{S_TAG}, s{S_TAG}, 1')
    a(f's_add_u32 s{S_STEP}, s{S_STEP}, 1')
    a('s_branch REC_TOP')
    a.label('REC_END')

def _tt(f):
    v = 0
    for i in range(8):
        if f((i >> 2) & 1, (i >> 1) & 1, i & 1): v |= 1 << i
    return hex(v)
BITOP_XOROR = _tt(lambda x, y, t: (x ^ t) | (y ^ t))
BITOP_ORAND = _tt(lambda x, y, m: (x | y) & m)


def gen_rec(nsteps=63, dbg=None):
    a = Asm()
    a('s_cmp_ge_u32 s2, 64')
    a('s_cbranch_scc1 REC_EXIT')
    rec_setup(a)
    a(f's_mov_b32 s{S_NST}, {nsteps}')
    stage_weights(a)
    a('s_barrier')
    rec_step(a, dbg)
    a.label('REC_EXIT')
    a('s_endpgm')
    return a.text()


def gen_prep():
    a = Asm()
    a('s_cmp_ge_u32 s2, 256')
    a('s_cbranch_scc1 PREP_END')
    a(f's_load_dwordx2 s[4:5], s[0:1], {KA_WS}')
    a(f's_load_dwordx2 s[6:7], s[0:1], {KA_MEM0}')
    a('s_lshl_b32 s3, s2, 12')
    a('v_lshlrev_b32 v1, 4, v0')
    a('v_add_u32 v1, s3, v1')
    for r in range(4):
        a(f'v_mov_b32 v{4+r}, -1'); a(f'v_mov_b32 v{8+r}, 0')
    a('s_waitcnt lgkmcnt(0)')
    a.srd(8, 4, SM_SIZE, add=WS_SM)
    a.srd(12, 6, 8 * 1024 * 2)
    for i in range(12):
        a(f's_mov_b32 s16, {i << 20}')
        a('buffer_store_dwordx4 v[4:7], v1, s[8:11], s16 offen')
    a(f's_mov_b32 s16, {SM_PART}')
    a('buffer_store_dwordx4 v[8:11], v1, s[8:11], s16 offen')
    a('s_cmp_lt_u32 s2, 4')
    a('s_cbranch_scc1 PREP_M0')
    a(f's_mov_b32 s16, {SM_MEMF}')
    a('buffer_store_dwordx4 v[4:7], v1, s[8:11], s16 offen')
    a('s_branch PREP_END')
    a.label('PREP_M0')
    a('v_lshrrev_b32 v2, 4, v1')
    a('v_and_b32 v3, 7, v2'); a('v_lshlrev_b32 v3, 11, v3')
    a('v_lshrrev_b32 v12, 4, v2'); a('v_lshl_add_u32 v3, v12, 5, v3')
    a('v_bfe_u32 v12, v2, 3, 1'); a('v_lshl_add_u32 v3, v12, 2, v3')
    for t in range(4):
        a(f'buffer_load_dword v{4+t}, v3, s[12:15], 0 offen offset:{t*8}')
    a('s_waitcnt vmcnt(0)')
    for t in range(4):
        a(f'v_min_u32 v{4+t}, {SENT_MAX}, v{4+t}')
    a(f's_mov_b32 s16, {SM_MEMF}')
    a('buffer_store_dwordx4 v[4:7], v1, s[8:11], s16 offen')
    a.label('PREP_END')
    a('s_endpgm')
    return a.text()
```

```python
from asmlib import *

WS_X = 0xB000000
C_MEMF = SM_MEMF
C_PART = SM_PART
C_CNT = SM_CNT
CNT_MODE, CNT_FB = 2048, 2176
WS_DBGC = 0x7000000

class Cfg:
    NS = 64
    SG, SP, SH = 4096, 2048, 64
    RS_PERM = True
    dynamic = False
    force_fallback = False
    EARLY_CLR = False
    skip = ()
    def __init__(self, **kw):
        for k, v in kw.items(): setattr(self, k, v)

L_WA = 0x00000
L_WB = 0x10000
L_M = 0x20000
L_O = 0x22000
L_C = 0x22800
L_R = 0x23400
L_KV = 0x24000
REC_LDS = 0x28000

V_IDX, V_AGP, V_PTW, V_MFW, V_KDM, V_L16, V_T, V_T2 = 0, 1, 2, 3, 4, 5, 6, 7
AM = 8
AQ0, AQ1, AK0, AK1, AV0, AV1 = 40, 44, 48, 52, 56, 60
SREG = 64
WV_R = 128
WO_R = 192
XS, D0, D1, RX, VA, RV, TT = 44, 40, 48, 52, 60, 62, 56
SEL0, SEL1, KT0, KT1, VT0, VT1, SA, SB, SMM = 24, 28, 32, 36, 8, 12, 16, 20, 24
R0, R1, R2, R3, MM = 32, 36, 40, 44, 48
PB, PMQ, ONES, SUM, O0, O1 = 36, 40, 44, 52, 16, 20
WACC = [24, 28, 32, 36, 40, 44, 48, 52]
OA = 8
PR0, PR1, SELR, RD, NEG = 8, 12, 16, 20, 24

S_SM = 4
S_KV = 8
S_X = 12
S_W = 16
S_STEP, S_WV, S_H, S_J = 20, 21, 22, 23
S_MEMR, S_MEMW, S_PR, S_PR2 = 24, 25, 26, 27
S_PW = 28
S_XW, S_XR, S_XC, S_NEAR = 32, 33, 34, 35
S_KVK, S_KVV, S_QKM, S_VMG = 36, 37, 38, 39
S_LO8 = 40
S_BUD, S_NST, S_M0, S_MEMC = 42, 43, 44, 45
S_T0, S_T1, S_T2, S_T3 = 46, 47, 48, 49
S_PTR = 50
S_WS = 52
S_SWB, S_OWB, S_KVB, S_PRW = 54, 55, 56, 57
S_HI8 = 58
S_XBASE = 60
S_MODE = 61
S_LID = 62
S_SC = 63
SOFT_C = 0x3e0293ee


def smf(acc, A, B):
    return f'v_smfmac_f32_16x16x64_bf16 v[{acc}:{acc+3}], v[{A}:{A+3}], {B}, v{V_IDX}'
def wq(pi, t): b = 16*pi + 8*t; return f'a[{b}:{b+7}]'
def wk(pi, t): b = 128 + 16*pi + 8*t; return f'a[{b}:{b+7}]'
def wv(pi, t):
    b = (WV_R + 16*pi + 8*t) if pi < 4 else (SREG + 16*(pi-4) + 8*t)
    return f'v[{b}:{b+7}]'
def v8(r): return f'v[{r}:{r+7}]'
def mf32(d, A, B, C=None):
    c = '0' if C is None else f'v[{C}:{C+3}]'
    return f'v_mfma_f32_16x16x32_bf16 v[{d}:{d+3}], v[{A}:{A+3}], v[{B}:{B+3}], {c}'
def mf16(d, A, B, C):
    return f'v_mfma_f32_16x16x16_bf16 v[{d}:{d+3}], v[{A}:{A+1}], v[{B}:{B+1}], v[{C}:{C+3}]'
def pkadd(d, x, y): return f'v_pk_add_f32 v[{d}:{d+1}], v[{x}:{x+1}], v[{y}:{y+1}]'


def poll_end(a, lab, done):
    a(f's_cbranch_vccz {done}')
    a(f's_cmp_eq_u32 s{S_BUD}, 0')
    a(f's_cbranch_scc1 {done}')
    a(f's_sub_u32 s{S_BUD}, s{S_BUD}, 1')
    a(f's_branch {lab}')
    a.label(done)

def max_chain(a, dst, regs):
    if len(regs) == 2:
        a(f'v_max_u32 v{dst}, v{regs[0]}, v{regs[1]}'); return
    a(f'v_max3_u32 v{dst}, v{regs[0]}, v{regs[1]}, v{regs[2]}')
    i = 3
    while i + 1 < len(regs):
        a(f'v_max3_u32 v{dst}, v{dst}, v{regs[i]}, v{regs[i+1]}')
        i += 2
    if i < len(regs):
        a(f'v_max_u32 v{dst}, v{dst}, v{regs[i]}')


def dbg_dump(a, regs, slot, tmp=V_T):
    a('s_waitcnt vmcnt(0) lgkmcnt(0)')
    a('s_nop 7'); a('s_nop 7')
    a.srd(84, S_WS, 4 << 20, add=WS_DBGC + slot * (4 << 20))
    a(f's_lshl_b32 s88, s{S_H}, 1'); a(f's_add_u32 s88, s88, s{S_J}'); a('s_lshl_b32 s88, s88, 2')
    a(f's_add_u32 s88, s88, s{S_WV}'); a('s_lshl_b32 s88, s88, 14')
    a(f'v_lshrrev_b32 v{tmp}, 2, v{V_L16}')
    for i, r in enumerate(regs):
        a(f'buffer_store_dword v{r}, v{tmp}, s[84:87], s88 offen')
        a('s_add_u32 s88, s88, 256')
    a('s_waitcnt vmcnt(0)')


def role_static(a, exit_label):
    a(f's_and_b32 s{S_J}, s2, 7')
    a(f's_cmp_ge_u32 s{S_J}, 2'); a(f's_cbranch_scc1 {exit_label}')
    a(f's_lshr_b32 s{S_H}, s2, 3')


def role_dynamic(a, cfg, P, exit_label, nx=2):
    SM = f's[{S_SM}:{S_SM+3}]'
    T0, T1, T2, T3 = f's{S_T0}', f's{S_T1}', f's{S_T2}', f's{S_T3}'
    lw, lp, dec, fb, bc = (f'{P}_RD{i}' for i in range(5))
    a(f's_cmp_eq_u32 s{S_WV}, 0')
    a(f's_cbranch_scc0 {lw}')
    a(f's_getreg_b32 {T0}, hwreg(HW_REG_XCC_ID, 0, 4)')
    a(f's_lshl_b32 {T1}, {T0}, 7'); a(f's_add_u32 {T1}, {T1}, {C_CNT}')
    a('v_mov_b32 v8, 1'); a('v_mov_b32 v9, 0')
    a('s_mov_b64 exec, 1')
    a(f'buffer_atomic_add v8, v9, {SM}, {T1} offen sc0 sc1')
    a('s_waitcnt vmcnt(0)')
    a(f'v_readfirstlane_b32 {T2}, v8')
    a('s_mov_b64 exec, 0x1ffff')
    a(f'v_lshlrev_b32 v9, 3, v{V_L16}')
    a(f's_mov_b32 {T1}, {C_CNT}')
    a(f's_mov_b32 {T3}, {1 if cfg.force_fallback else 4000}')
    a.label(lp)
    a(f'buffer_load_dword v10, v9, {SM}, {T1} offen sc1')
    a('s_waitcnt vmcnt(0)')
    a(f'v_readlane_b32 s{S_MODE}, v10, 16')
    a(f's_cmp_lg_u32 s{S_MODE}, 0')
    a(f's_cbranch_scc1 {fb}')
    a('v_cmp_gt_u32 vcc, 32, v10')
    a(f's_and_b32 s64, vcc_lo, {(1 << nx) - 1}')
    if cfg.force_fallback:
        a('s_or_b32 s64, s64, 1')
    a(f's_mov_b32 s{S_MODE}, 1')
    a('s_cmp_eq_u32 s64, 0')
    a(f's_cbranch_scc1 {dec}')
    a(f's_mov_b32 s{S_MODE}, 2')
    a(f's_sub_u32 {T3}, {T3}, 1')
    a(f's_cmp_eq_u32 {T3}, 0')
    a(f's_cbranch_scc0 {lp}')
    a.label(dec)
    a('s_mov_b64 exec, 1')
    a(f'v_mov_b32 v10, s{S_MODE}'); a('v_mov_b32 v11, 0'); a('v_mov_b32 v9, 0')
    a(f's_mov_b32 {T1}, {C_CNT + CNT_MODE}')
    a(f'buffer_atomic_cmpswap v[10:11], v9, {SM}, {T1} offen sc0 sc1')
    a('s_waitcnt vmcnt(0)')
    a(f'v_readfirstlane_b32 {T1}, v10')
    a(f's_cmp_eq_u32 {T1}, 0')
    a(f's_cselect_b32 s{S_MODE}, s{S_MODE}, {T1}')
    a.label(fb)
    a('s_mov_b64 exec, 1')
    a(f's_cmp_eq_u32 s{S_MODE}, 1')
    a(f's_cbranch_scc1 {bc}')
    a('v_mov_b32 v8, 1'); a('v_mov_b32 v9, 0')
    a(f's_mov_b32 {T1}, {C_CNT + CNT_FB}')
    a(f'buffer_atomic_add v8, v9, {SM}, {T1} offen sc0 sc1')
    a('s_waitcnt vmcnt(0)')
    a(f'v_readfirstlane_b32 {T2}, v8')
    a(f's_and_b32 {T0}, {T2}, 1')
    a(f's_lshr_b32 {T1}, {T2}, 1')
    a(f's_mov_b32 {T2}, {T1}')
    a.label(bc)
    a(f's_cmp_lt_u32 {T0}, 2'); a(f's_cselect_b32 {T1}, 4, 0')
    a(f's_cmp_lt_u32 {T2}, 32'); a(f's_cselect_b32 {T1}, {T1}, 0')
    a(f's_or_b32 {T1}, {T1}, s{S_MODE}')
    a(f's_lshl_b32 {T2}, {T2}, 8'); a(f's_or_b32 {T1}, {T1}, {T2}')
    a(f's_lshl_b32 {T0}, {T0}, 24'); a(f's_or_b32 {T1}, {T1}, {T0}')
    a(f'v_mov_b32 v8, {T1}'); a(f'v_mov_b32 v9, {L_R}')
    a('ds_write_b32 v9, v8')
    a('s_mov_b64 exec, -1')
    a('s_waitcnt lgkmcnt(0)')
    a.label(lw)
    a('s_barrier')
    a(f'v_mov_b32 v9, {L_R}')
    a('ds_read_b32 v8, v9')
    a('s_waitcnt lgkmcnt(0)')
    a(f'v_readfirstlane_b32 s{S_LID}, v8')
    a(f's_and_b32 s{S_MODE}, s{S_LID}, 3')
    a(f's_lshr_b32 s{S_J}, s{S_LID}, 24')
    a(f's_bfe_u32 s{S_H}, s{S_LID}, 0x100008')
    a(f's_bitcmp1_b32 s{S_LID}, 2')
    a(f's_cbranch_scc0 {exit_label}')
    a(f's_and_b32 s{S_H}, s{S_H}, 31'); a(f's_and_b32 s{S_J}, s{S_J}, 1')


def common_setup(a):
    a(f's_load_dwordx2 s[{S_WS}:{S_WS+1}], s[0:1], {KA_WS}')
    a('v_lshrrev_b32 v1, 6, v0')
    a(f'v_and_b32 v{V_L16}, 63, v0')
    a(f'v_readfirstlane_b32 s{S_WV}, v1')
    a(f'v_lshlrev_b32 v{V_L16}, 4, v{V_L16}')
    a(f's_mov_b32 s{S_LO8}, 0x00ff00ff'); a(f's_mov_b32 s{S_LO8+1}, 0x00ff00ff')
    a(f's_mov_b32 s{S_HI8}, 0xff00ff00'); a(f's_mov_b32 s{S_HI8+1}, 0xff00ff00')
    a(f's_mov_b32 s{S_BUD}, 400000')
    a(f's_mov_b32 s{S_SC}, 0x{SOFT_C:x}')
    a('s_waitcnt lgkmcnt(0)')
    a.srd(S_SM, S_WS, SM_SIZE, add=WS_SM)
    a.srd(S_KV, S_WS, 32 << 20, add=WS_KF)
    a.srd(S_X, S_WS, 64 << 20, add=WS_X)


def role_setup(a, cfg):
    W, H, J = f's{S_WV}', f's{S_H}', f's{S_J}'
    T0, T1, T2 = f's{S_T0}', f's{S_T1}', f's{S_T2}'
    ln, t1, t2 = 8, 9, 10
    a(f'v_lshrrev_b32 v{ln}, 4, v{V_L16}')
    a(f'v_mov_b32 v{V_IDX}, 0xeeee'); a(f'v_mov_b32 v{t1}, 0x4444')
    a(f'v_cndmask_b32 v{V_IDX}, v{V_IDX}, v{t1}, s[{S_LO8}:{S_LO8+1}]')
    a(f's_lshl_b32 {T0}, {W}, 11')
    a(f'v_add_u32 v{V_AGP}, {T0}, v{V_L16}')
    a(f'v_lshrrev_b32 v{t1}, 5, v{ln}'); a(f'v_lshlrev_b32 v{t1}, 10, v{t1}')
    a(f'v_bfe_u32 v{t2}, v{ln}, 4, 1'); a(f'v_lshl_add_u32 v{t1}, v{t2}, 9, v{t1}')
    a(f'v_bfe_u32 v{t2}, v{ln}, 3, 1'); a(f'v_lshl_add_u32 v{t1}, v{t2}, 8, v{t1}')
    a(f'v_and_b32 v{t2}, 7, v{ln}'); a(f'v_lshl_add_u32 v{t1}, v{t2}, 4, v{t1}')
    a(f'v_add_u32 v{V_KDM}, {T0}, v{t1}')
    a(f's_lshl_b32 {T0}, {W}, 16'); a(f's_mul_i32 {T1}, {H}, {cfg.SH}'); a(f's_add_u32 {T0}, {T0}, {T1}')
    a(f'v_lshrrev_b32 v{t1}, 5, v{ln}'); a(f'v_lshlrev_b32 v{t1}, 13, v{t1}')
    a(f'v_bfe_u32 v{t2}, v{ln}, 4, 1'); a(f'v_mul_u32_u24 v{t2}, {cfg.SG}, v{t2}'); a(f'v_add_u32 v{t1}, v{t1}, v{t2}')
    a(f'v_bfe_u32 v{t2}, v{ln}, 1, 1'); a(f'v_mul_u32_u24 v{t2}, {cfg.SP}, v{t2}'); a(f'v_add_u32 v{t1}, v{t1}, v{t2}')
    a(f'v_bfe_u32 v{t2}, v{ln}, 2, 2'); a(f'v_lshl_add_u32 v{t1}, v{t2}, 4, v{t1}')
    a(f'v_and_b32 v{t2}, 1, v{ln}'); a(f'v_lshl_add_u32 v{t1}, v{t2}, 3, v{t1}')
    a(f'v_add_u32 v{V_PTW}, {T0}, v{t1}')
    a(f's_lshl_b32 {T0}, {H}, 8')
    a(f's_and_b32 {T1}, {W}, 1'); a(f's_lshl_b32 {T1}, {T1}, 7'); a(f's_add_u32 {T0}, {T0}, {T1}')
    a(f's_lshr_b32 {T1}, {W}, 1'); a(f's_lshl_b32 {T1}, {T1}, 6'); a(f's_add_u32 {T0}, {T0}, {T1}')
    a(f'v_and_b32 v{t1}, 3, v{ln}'); a(f'v_lshlrev_b32 v{t1}, 4, v{t1}')
    a(f'v_lshrrev_b32 v{t2}, 4, v{ln}'); a(f'v_lshl_add_u32 v{t1}, v{t2}, 2, v{t1}')
    a(f'v_add_u32 v{t1}, {T0}, v{t1}')
    a(f'v_and_b32 v{t2}, 12, v{ln}')
    a(f'v_cmp_eq_u32 vcc, 0, v{t2}')
    a(f'v_mov_b32 v{V_MFW}, 0x40000000')
    a('s_nop 1')
    a(f'v_cndmask_b32 v{V_MFW}, v{V_MFW}, v{t1}, vcc')
    a(f's_lshl_b32 {T0}, {J}, 13')
    a(f's_add_u32 s{S_MEMR}, {T0}, {C_MEMF}')
    a(f's_add_u32 s{S_MEMW}, s{S_MEMR}, 16384')
    a(f's_lshl_b32 {T0}, {J}, 18'); a(f's_add_u32 {T0}, {T0}, {C_PART}')
    for p in range(4):
        a(f's_add_u32 s{S_PW+p}, {T0}, {p*16384}')
    a(f's_lshl_b32 {T1}, {H}, 13'); a(f's_add_u32 s{S_PR}, {T0}, {T1}')
    a(f's_add_u32 s{S_PR2}, s{S_PR}, {16*cfg.SH}')
    a(f's_lshr_b32 {T0}, {W}, 1'); a(f's_mul_i32 {T0}, {T0}, {cfg.SG}')
    a(f's_and_b32 {T1}, {W}, 1'); a(f's_mul_i32 {T1}, {T1}, {cfg.SP}'); a(f's_add_u32 s{S_PRW}, {T0}, {T1}')
    a(f's_mul_i32 s{S_XBASE}, {H}, {cfg.NS*32768}')
    a(f's_lshl_b32 s{S_KVK}, {H}, 13')
    a(f's_add_u32 s{S_KVV}, s{S_KVK}, {16 << 20}')
    a(f's_lshl_b32 {T0}, {W}, 12'); a(f's_add_u32 s{S_KVB}, {T0}, {L_KV}')
    a(f's_lshl_b32 s{S_QKM}, {H}, 12'); a(f's_add_u32 s{S_QKM}, s{S_QKM}, {SM_QKM + 2048}')
    a(f's_lshl_b32 {T0}, {W}, 9'); a(f's_add_u32 s{S_QKM}, s{S_QKM}, {T0}')
    a(f's_lshl_b32 s{S_VMG}, {H}, 11'); a(f's_add_u32 s{S_VMG}, s{S_VMG}, {SM_VMG}'); a(f's_add_u32 s{S_VMG}, s{S_VMG}, {T0}')
    a(f's_mul_i32 {T0}, {W}, 1536'); a(f's_add_u32 s{S_SWB}, {T0}, {L_M}')
    a(f's_lshr_b32 {T0}, {W}, 1'); a(f's_lshl_b32 {T0}, {T0}, 10')
    a(f's_and_b32 {T1}, {W}, 1'); a(f's_lshl_b32 {T1}, {T1}, 3')
    a(f's_add_u32 {T0}, {T0}, {T1}'); a(f's_add_u32 s{S_OWB}, {T0}, {L_O}')
    a(f's_mov_b32 s{S_STEP}, 0')


def x_offsets(a, cfg):
    T0, T1 = f's{S_T0}', f's{S_T1}'
    a(f's_lshl_b32 {T0}, s{S_NEAR}, 13'); a(f's_add_u32 {T0}, {T0}, s{S_XBASE}')
    a(f's_lshl_b32 {T1}, s{S_WV}, 11'); a(f's_add_u32 {T0}, {T0}, {T1}')
    a(f's_lshl_b32 {T1}, s{S_J}, 14')
    a(f's_add_u32 s{S_XW}, {T0}, {T1}')
    a(f's_xor_b32 s{S_XR}, s{S_XW}, 0x4000')
    a(f's_add_u32 s{S_XC}, s{S_XW}, {(3 % cfg.NS) * 32768}')


def const_tables(a):
    ln, t1, t2, js, c0, one = 8, 9, 10, 11, 12, 13
    R = 16
    a(f'v_lshrrev_b32 v{ln}, 4, v{V_L16}')
    a(f'v_add_u32 v{t2}, {L_C}, v{V_L16}')
    a(f'v_mov_b32 v{c0}, v{t2}')
    def onehot(cond_vcc):
        a(f'v_and_b32 v{t1}, 1, v{js}')
        a(f'v_lshlrev_b32 v{t1}, 4, v{t1}')
        a(f'v_mov_b32 v{one}, 0x3f80')
        a(f'v_lshlrev_b32 v{one}, v{t1}, v{one}')
        a(f'v_lshrrev_b32 v{t1}, 1, v{js}')
        for q in range(4):
            a(f'v_cmp_eq_u32 vcc, {q}, v{t1}')
            a('s_nop 1')
            a(f'v_cndmask_b32 v{R+q}, 0, v{one}, vcc')
    for tp in range(2):
        a(f'v_and_b32 v{js}, 3, v{ln}')
        a(f'v_bfe_u32 v{t1}, v{ln}, 3, 1'); a(f'v_lshl_add_u32 v{js}, v{t1}, 2, v{js}')
        a(f'v_bfe_u32 v{t1}, v{ln}, 2, 1'); a(f'v_bfe_u32 v{t2}, v{ln}, 4, 1')
        a(f'v_xor_b32 v{t1}, v{t1}, v{t2}')
        a(f'v_lshrrev_b32 v{t2}, 5, v{ln}'); a(f'v_xor_b32 v{t2}, {tp}, v{t2}')
        a(f'v_or_b32 v{t1}, v{t1}, v{t2}')
        a(f'v_lshl_add_u32 v{js}, v{t1}, 6, v{js}')
        onehot(None)
        a(f'ds_write_b128 v{c0}, v[{R}:{R+3}] offset:{tp*1024}')
        a('s_waitcnt lgkmcnt(0)')
    a(f'v_and_b32 v{js}, 7, v{ln}')
    onehot(None)
    a(f'ds_write_b128 v{c0}, v[{R}:{R+3}] offset:2048')
    a('s_waitcnt lgkmcnt(0)')


def stage_weights(a, tag):
    W, H, J = f's{S_WV}', f's{S_H}', f's{S_J}'
    T0, T1, T2, T3 = f's{S_T0}', f's{S_T1}', f's{S_T2}', f's{S_T3}'
    LN, t1, t2, t3 = 8, 9, 10, 11
    VD = 12
    TB = [14, 15, 16, 17]
    TC = [18, 19, 20, 21]
    VOF = [24 + f for f in range(4)]
    OB = [32 + n for n in range(8)]
    OC = [40 + n for n in range(8)]
    V_WL = 48
    a(f'v_lshrrev_b32 v{LN}, 4, v{V_L16}')
    a(f'v_lshrrev_b32 v{t1}, 4, v{LN}')
    a(f'v_and_b32 v{t2}, 1, v{t1}')
    a(f'v_lshrrev_b32 v{t3}, 1, v{t1}'); a(f'v_lshl_or_b32 v{t2}, v{t3}, 2, v{t2}')
    a(f'v_and_b32 v{t3}, 15, v{LN}'); a(f'v_xor_b32 v{t2}, v{t2}, v{t3}')
    a(f'v_lshlrev_b32 v{t1}, 13, v{t1}'); a(f'v_lshl_add_u32 v{t1}, v{t2}, 4, v{t1}')
    a(f's_lshl_b32 {T0}, {H}, 8')
    a(f'v_add_u32 v{VD}, {T0}, v{t1}')
    a(f'v_lshrrev_b32 v{t1}, 4, v{LN}'); a(f'v_lshlrev_b32 v{t1}, 3, v{t1}')
    a(f'v_bfe_u32 v{t2}, v{LN}, 2, 2'); a(f'v_add_u32 v{t1}, v{t1}, v{t2}')
    a(f'v_lshlrev_b32 v{t1}, 8, v{t1}')
    a(f'v_and_b32 v{t3}, 1, v{t2}'); a(f'v_lshrrev_b32 v{t2}, 1, v{t2}'); a(f'v_lshl_or_b32 v{t2}, v{t2}, 2, v{t3}')
    a(f'v_bfe_u32 v{t3}, v{LN}, 1, 1'); a(f'v_lshlrev_b32 v{t3}, 1, v{t3}')
    a(f's_lshl_b32 {T0}, {W}, 2'); a(f'v_add_u32 v{t3}, {T0}, v{t3}')
    a(f'v_xor_b32 v{t2}, v{t2}, v{t3}')
    a(f'v_lshl_add_u32 v{t1}, v{t2}, 4, v{t1}')
    a(f'v_and_b32 v{t2}, 1, v{LN}'); a(f'v_lshl_add_u32 v{t1}, v{t2}, 3, v{t1}')
    for x in range(2):
        a(f's_and_b32 {T0}, {W}, 1'); a(f's_xor_b32 {T0}, {T0}, {x}'); a(f's_lshl_b32 {T0}, {T0}, 15')
        a(f'v_add_u32 v{TB[2*x]}, {T0}, v{t1}')
        a(f'v_xor_b32 v{TB[2*x+1]}, 16, v{TB[2*x]}')
        a(f'v_add_u32 v{TC[2*x]}, {L_WB}, v{TB[2*x]}')
        a(f'v_add_u32 v{TC[2*x+1]}, {L_WB}, v{TB[2*x+1]}')
    a(f's_lshl_b32 {T0}, {J}, 10'); a(f'v_add_u32 v{t1}, {T0}, v{V_L16}')
    for f in range(4):
        a(f'v_xor_b32 v{VOF[f]}, {f << 5}, v{t1}')
    a(f'v_bfe_u32 v{t1}, v{LN}, 4, 1'); a(f'v_lshlrev_b32 v{t1}, 5, v{t1}')
    a(f'v_lshrrev_b32 v{t2}, 5, v{LN}'); a(f'v_lshl_add_u32 v{t1}, v{t2}, 2, v{t1}')
    a(f'v_bfe_u32 v{t2}, v{LN}, 2, 2'); a(f'v_add_u32 v{t1}, v{t1}, v{t2}')
    a(f'v_lshlrev_b32 v{t1}, 10, v{t1}')
    a(f'v_lshl_add_u32 v{t1}, v{t2}, 5, v{t1}')
    a(f'v_and_b32 v{t2}, 3, v{LN}'); a(f'v_lshl_add_u32 v{t1}, v{t2}, 3, v{t1}')
    a(f's_lshl_b32 {T0}, {W}, 8'); a(f'v_add_u32 v{t1}, {T0}, v{t1}')
    for n in range(8):
        a(f'v_xor_b32 v{OB[n]}, {n << 5}, v{t1}')
        a(f'v_add_u32 v{OC[n]}, {L_WB}, v{OB[n]}')
    a(f's_lshl_b32 {T0}, {W}, 14'); a(f'v_add_u32 v{V_WL}, {T0}, v{V_L16}')

    def load_ptr(ka):
        a(f's_load_dwordx2 s[{S_PTR}:{S_PTR+1}], s[0:1], {ka}')
        a('s_waitcnt lgkmcnt(0)')
        a.srd(S_W, S_PTR, 8 << 20)

    def dma_qkv(P, region):
        a(f's_lshl_b32 {T0}, {J}, 22'); a(f's_lshl_b32 {T1}, {W}, 19'); a(f's_add_u32 {T0}, {T0}, {T1}')
        a(f's_add_u32 {T0}, {T0}, {P << 21}')
        a(f's_lshl_b32 {T1}, {W}, 14'); a(f's_add_u32 m0, {T1}, {region}')
        for i in range(16):
            a(f'buffer_load_dwordx4 v{VD}, s[{S_W}:{S_W+3}], {T0} offen lds')
            if i < 15:
                a(f's_add_u32 {T0}, {T0}, 32768'); a('s_add_u32 m0, m0, 1024'); a('s_nop 0')

    def dma_wo(cp, region):
        a(f's_lshl_b32 {T0}, {H}, 7'); a(f's_lshl_b32 {T1}, {W}, 4'); a(f's_add_u32 {T0}, {T0}, {T1}')
        a(f's_add_u32 {T0}, {T0}, {64*cp}'); a(f's_lshl_b32 {T0}, {T0}, 11')
        a(f's_lshl_b32 {T1}, {W}, 14'); a(f's_add_u32 m0, {T1}, {region}')
        for i in range(16):
            a(f'buffer_load_dwordx4 v{VOF[i & 3]}, s[{S_W}:{S_W+3}], {T0} offen lds')
            if i < 15:
                a(f's_add_u32 {T0}, {T0}, 2048'); a('s_add_u32 m0, m0, 1024'); a('s_nop 0')

    def read_qkv_range(base_pi, tb, dest):
        n = 0
        for pl in range(4):
            pi = base_pi + pl
            for tau in range(2):
                d = dest(pi, tau)
                for hq in range(2):
                    for q in range(2):
                        r = 4*hq + 2*q
                        a(f'ds_read_b64_tr_b16 {d(r)}, v{tb[2*(pl >> 1) + tau]} offset:{(pl & 1)*16384 + hq*8192 + q*1024}')
                a('s_waitcnt lgkmcnt(8)')

    def read_qkv(P, tb, dest, nm):
        l1, l2 = f'{tag}_ST{nm}A', f'{tag}_ST{nm}B'
        a(f's_lshr_b32 {T0}, {W}, 1'); a(f's_cmp_eq_u32 {T0}, {P}')
        a(f's_cbranch_scc0 {l1}')
        read_qkv_range(0, tb, dest)
        a(f's_branch {l2}')
        a.label(l1)
        read_qkv_range(4, tb, dest)
        a.label(l2)

    def read_wo(ad, dest):
        for nu in range(8):
            for hq in range(2):
                for q in range(2):
                    r = dest + 8*nu + 4*hq + 2*q
                    a(f'ds_read_b64_tr_b16 v[{r}:{r+1}], v{ad[nu]} offset:{hq*16384 + q*8192}')
            a('s_waitcnt lgkmcnt(8)')

    dq = lambda pi, t: (lambda r: f'a[{16*pi+8*t+r}:{16*pi+8*t+r+1}]')
    dk = lambda pi, t: (lambda r: f'a[{128+16*pi+8*t+r}:{128+16*pi+8*t+r+1}]')
    def dv(pi, t):
        b = WV_R + 16*pi + 8*t if pi < 4 else SREG + 16*(pi-4) + 8*t
        return lambda r: f'v[{b+r}:{b+r+1}]'

    pieces = [('q', 0), ('q', 1), ('k', 0), ('k', 1), ('v', 0), ('v', 1), ('o', 0), ('o', 1)]
    ptrs = {'q': KA_WQ, 'k': KA_WK, 'v': KA_WV, 'o': KA_WO}
    def issue(n):
        m, P = pieces[n]
        if P == 0: load_ptr(ptrs[m])
        reg = L_WB if n & 1 else L_WA
        if m == 'o': dma_wo(P, reg)
        else: dma_qkv(P, reg)
    issue(0); issue(1)
    for n in range(8):
        m, P = pieces[n]
        a(f's_waitcnt vmcnt({16 if n < 7 else 0})')
        a('s_barrier')
        tb = TC if n & 1 else TB
        if m == 'q': read_qkv(P, tb, dq, n)
        elif m == 'k': read_qkv(P, tb, dk, n)
        elif m == 'v': read_qkv(P, tb, dv, n)
        elif P == 0: read_wo(OB, WO_R)
        else: read_wo(OC, SREG)
        a('s_waitcnt lgkmcnt(0)')
        a('s_barrier')
        if n + 2 < 8: issue(n + 2)
        if n == 6:
            for i in range(16):
                r = SREG + 4*i
                a(f'ds_write_b128 v{V_WL}, v[{r}:{r+3}] offset:{L_WA + i*1024}')
            a('s_waitcnt lgkmcnt(0)')
        if n == 7:
            a(f'v_add_u32 v{V_WL}, {L_WB}, v{V_WL}')
            for i in range(16):
                r = SREG + 4*i
                a(f'ds_write_b128 v{V_WL}, v[{r}:{r+3}] offset:{i*1024}')
            a('s_waitcnt lgkmcnt(0)')


def kv_dma(cfg):
    KV = f's[{S_KV}:{S_KV+3}]'
    out = []
    out.append([f's_mov_b32 m0, s{S_KVB}', 's_nop 0', f'buffer_load_dwordx4 v{V_KDM}, {KV}, s{S_KVK} offen lds'])
    out.append([f's_add_u32 m0, s{S_KVB}, {1024-128}', 's_nop 0', f'buffer_load_dwordx4 v{V_KDM}, {KV}, s{S_KVK} offen offset:128 lds'])
    out.append([f's_add_u32 m0, s{S_KVB}, 2048', 's_nop 0', f'buffer_load_dwordx4 v{V_KDM}, {KV}, s{S_KVV} offen lds'])
    out.append([f's_add_u32 m0, s{S_KVB}, {3072-128}', 's_nop 0', f'buffer_load_dwordx4 v{V_KDM}, {KV}, s{S_KVV} offen offset:128 lds'])
    return out


def svload():
    return [f'ds_read_b128 v[{SREG+4*i}:{SREG+4*i+3}], v{V_T2} offset:{L_WA + i*1024}' for i in range(16)]

def wl_addr(a, dst, add=0):
    a(f's_lshl_b32 s{S_T0}, s{S_WV}, 14')
    if add: a(f's_add_u32 s{S_T0}, s{S_T0}, {add}')
    a(f'v_add_u32 v{dst}, s{S_T0}, v{V_L16}')


def rec_loop(a, cfg, P, sfl, dbg=None):
    SM = f's[{S_SM}:{S_SM+3}]'
    X = f's[{S_X}:{S_X+3}]'
    LO = f's[{S_LO8}:{S_LO8+1}]'
    HI = f's[{S_HI8}:{S_HI8+1}]'
    dbg = dbg or {}
    L = lambda s: f'{P}_{s}'
    def D(name, regs, tmp=V_T):
        if name in dbg:
            lab = a.newlabel(P + 'DBG')
            a(f's_cmp_lg_u32 s{S_STEP}, {dbg[name][1]}')
            a(f's_cbranch_scc1 {lab}')
            dbg_dump(a, regs, dbg[name][0], tmp)
            a.label(lab)
    prof = dbg.get('prof')
    def ST(i):
        if prof is not None: a(f's_memtime s[{64+2*i}:{65+2*i}]')

    MWr, A1, A2, A3 = AM + 8, AM + 12, AM + 20, AM + 28
    NEG = 24
    def top_prep():
        out = []
        out.append(f'v_add_u32 v{MWr}, {L_M}, v{V_AGP}')
        out.append(f'v_xor_b32 v{A1}, 0x800, v{MWr}')
        out.append(f'v_xor_b32 v{A2}, 0x1000, v{MWr}')
        out.append(f'v_xor_b32 v{A3}, 0x1800, v{MWr}')
        for r in range(40, 64, 2):
            out.append(f'v_mov_b64 v[{r}:{r+1}], 0')
        return out

    wl_addr(a, V_T2)
    sv0 = svload()
    a.ext(sv0[:8]); a('s_waitcnt lgkmcnt(0)'); a.ext(sv0[8:])
    a.ext(top_prep())
    for r in range(4): a(f'v_mov_b32 v{NEG+r}, -1')
    a.label(L('TOP'))
    ST(0)
    a.label(L('PM'))
    a(f'buffer_load_dwordx4 v[{AM}:{AM+3}], v{V_AGP}, {SM}, s{S_MEMR} offen sc1')
    a(f'buffer_load_dwordx4 v[{AM+4}:{AM+7}], v{V_AGP}, {SM}, s{S_MEMR} offen offset:1024 sc1')
    a('s_waitcnt vmcnt(0)')
    max_chain(a, V_T, list(range(AM, AM + 8)))
    a(f'v_cmp_eq_u32 vcc, -1, v{V_T}')
    poll_end(a, L('PM'), L('PM_D'))
    ST(1)
    a(f'ds_write_b128 v{MWr}, v[{AM}:{AM+3}]')
    a(f'ds_write_b128 v{MWr}, v[{AM+4}:{AM+7}] offset:1024')
    def qk(pi):
        A = AM + 4*pi
        return [smf(AQ0, A, wq(pi, 0)), smf(AQ1, A, wq(pi, 1)), smf(AK0, A, wk(pi, 0)), smf(AK1, A, wk(pi, 1))]
    def qk4(pi): a.ext(qk(pi))
    def vv(pi): return [smf(AV0, AM + 4*pi, wv(pi, 0)), smf(AV1, AM + 4*pi, wv(pi, 1))]
    kvd = kv_dma(cfg) if 'kv' not in cfg.skip else [[], [], [], []]
    xcl = [f'buffer_store_dwordx4 v[{NEG}:{NEG+3}], v{V_L16}, {X}, s{S_XC} offen sc1',
           f'buffer_store_dwordx4 v[{NEG}:{NEG+3}], v{V_L16}, {X}, s{S_XC} offen offset:1024 sc1']
    m = qk(0)
    a(m[0]); a.ext(kvd[0]); a(m[1]); a.ext(kvd[1]); a(m[2]); a(xcl[0]); a(m[3]); a(xcl[1])
    a('s_waitcnt lgkmcnt(0)')
    a('s_barrier')
    ST(2)
    for pi in range(2, 8):
        ad = [A1, A2, A3][(pi >> 1) - 1]
        a(f'ds_read_b128 v[{AM+4*pi}:{AM+4*pi+3}], v{ad} offset:{(pi & 1)*1024}')
    m = qk(1)
    a(m[0]); a.ext(kvd[2]); a(m[1]); a.ext(kvd[3]); a(m[2]); a(m[3])
    a.ext(vv(0)); a.ext(vv(1))
    D('AM', list(range(AM, AM + 32)))
    for pi in range(2, 6):
        a(f's_waitcnt lgkmcnt({7 - pi})')
        qk4(pi)
    a('s_waitcnt lgkmcnt(0)')
    for pi in (6, 7):
        a(smf(AQ0, AM + 4*pi, wq(pi, 0))); a(smf(AQ1, AM + 4*pi, wq(pi, 1)))
    a(smf(AK0, AM + 24, wk(6, 0))); a(smf(AK1, AM + 24, wk(6, 1)))
    a(f'v_permlane32_swap_b32 v{AQ0}, v{AQ1}')
    a(f'v_permlane32_swap_b32 v{AQ0+1}, v{AQ1+1}')
    a(f'v_permlane32_swap_b32 v{AQ0+2}, v{AQ1+2}')
    a(smf(AK0, AM + 28, wk(7, 0)))
    a(f'v_permlane32_swap_b32 v{AQ0+3}, v{AQ1+3}')
    a(pkadd(AQ0, AQ0, AQ1))
    a(smf(AK1, AM + 28, wk(7, 1)))
    a(pkadd(AQ0 + 2, AQ0 + 2, AQ1 + 2))
    a('s_nop 0')
    a(f'v_cvt_pk_bf16_f32 v{XS}, v{AQ0}, v{AQ0+1}')
    VS = []
    for pi in [4, 5, 6, 7, 2, 3]: VS += vv(pi)
    a(VS[0])
    a(f'v_cvt_pk_bf16_f32 v{XS+1}, v{AQ0+2}, v{AQ0+3}')
    a('s_nop 1')
    a(VS[1])
    for r in range(4):
        a(f'v_permlane32_swap_b32 v{AK0+r}, v{AK1+r}')
    a(VS[2])
    a(pkadd(AK0, AK0, AK1)); a(pkadd(AK0 + 2, AK0 + 2, AK1 + 2))
    a('s_nop 0')
    a(f'v_cvt_pk_bf16_f32 v{XS+2}, v{AK0}, v{AK0+1}')
    a(f'v_cvt_pk_bf16_f32 v{XS+3}, v{AK0+2}, v{AK0+3}')
    a(VS[3])
    a(f'buffer_store_dwordx4 v[{XS}:{XS+3}], v{V_L16}, {X}, s{S_XW} offen sc1')
    ST(3)
    D('XS', [XS, XS+1, XS+2, XS+3])
    wl_addr(a, V_T2, L_WB)
    wo_ld = [f'ds_read_b128 v[{SREG+4*i}:{SREG+4*i+3}], v{V_T2} offset:{i*1024}' for i in range(16)]
    a(f'v_add_u32 v{V_T}, {L_C}, v{V_L16}')
    a(VS[4]); a(wo_ld[0]); a(wo_ld[1]); a(wo_ld[2])
    a(VS[5]); a(wo_ld[3]); a(wo_ld[4]); a(wo_ld[5])
    a(VS[6]); a(wo_ld[6]); a(wo_ld[7])
    a(VS[7])
    a(f'ds_read_b128 v[{SEL0}:{SEL0+3}], v{V_T}')
    a(f'ds_read_b128 v[{SEL1}:{SEL1+3}], v{V_T} offset:1024')
    a(VS[8]); a(wo_ld[8]); a(wo_ld[9])
    a(VS[9]); a(wo_ld[10]); a(wo_ld[11])
    a(VS[10])
    a('s_waitcnt lgkmcnt(4)')
    a(wo_ld[12]); a(wo_ld[13])
    a(VS[11])
    a(mf32(D0, XS, SEL0))
    a(wo_ld[14]); a(wo_ld[15])
    a(mf32(D1, XS, SEL1))
    a(f'v_lshrrev_b32 v{V_T2}, 1, v{V_L16}')
    a('s_nop 4')
    for r in range(4):
        a(f'v_permlane32_swap_b32 v{AV0+r}, v{AV1+r}')
    a('s_nop 0')
    a(pkadd(AV0, AV0, AV1)); a(pkadd(AV0 + 2, AV0 + 2, AV1 + 2))
    a('s_nop 0')
    a(f'v_cvt_pk_bf16_f32 v{VA}, v{AV0}, v{AV0+1}')
    a(f'v_cvt_pk_bf16_f32 v{VA+1}, v{AV0+2}, v{AV0+3}')
    a('s_nop 1')
    a(f'v_permlane16_swap_b32 v{VA}, v{VA+1}')
    a('s_nop 1')
    a(f'v_permlane32_swap_b32 v{VA}, v{VA+1}')
    a('s_nop 1')
    a(f'buffer_store_dwordx2 v[{VA}:{VA+1}], v{V_T2}, {X}, s{S_XW} offen offset:1024 sc1')
    ST(4)
    a('s_barrier')
    SW, SR, MR, PVA = XS, XS + 1, XS + 2, XS + 3
    a(f'v_mov_b32 v{PVA}, v{V_T2}')
    a(f'v_lshrrev_b32 v{SR}, 8, v{V_L16}'); a(f'v_lshlrev_b32 v{SR}, 7, v{SR}')
    a(f'v_and_b32 v{V_T}, 0x70, v{V_L16}')
    a(f'v_add_u32 v{SR}, v{SR}, v{V_T}')
    a(f'v_add_u32 v{SW}, s{S_SWB}, v{SR}')
    a(f'v_and_b32 v{V_T2}, 0x80, v{V_L16}')
    a(f'v_lshl_add_u32 v{SR}, v{V_T2}, 2, v{SR}')
    a(f'v_add_u32 v{SR}, {L_M}, v{SR}')
    a(f'v_lshrrev_b32 v{MR}, 9, v{V_L16}'); a(f'v_lshl_add_u32 v{MR}, v{MR}, 7, v{V_T}')
    a(f'v_bfe_u32 v{V_T}, v{V_L16}, 8, 1'); a(f'v_lshl_add_u32 v{MR}, v{V_T}, 3, v{MR}')
    a(f'v_bfe_u32 v{V_T}, v{V_L16}, 7, 1'); a(f'v_lshl_add_u32 v{MR}, v{V_T}, 2, v{MR}')
    a(f'v_add_u32 v{MR}, {L_M + 1280}, v{MR}')
    a(f'v_add_u32 v{V_T}, s{S_KVB}, v{V_L16}')
    a('s_waitcnt vmcnt(1)')
    ST(5)
    a.label(L('PQ'))
    a(f'buffer_load_dwordx4 v[{RX}:{RX+3}], v{V_L16}, {X}, s{S_XR} offen sc1')
    if True:
        a(f'ds_read_b128 v[{KT0}:{KT0+3}], v{V_T}')
        a(f'ds_read_b128 v[{KT1}:{KT1+3}], v{V_T} offset:1024')
        a(f'ds_read_b128 v[{VT0}:{VT0+3}], v{V_T} offset:2048')
        a(f'ds_read_b128 v[{VT1}:{VT1+3}], v{V_T} offset:3072')
    a('s_waitcnt vmcnt(0)')
    max_chain(a, V_T2, [RX, RX+1, RX+2, RX+3])
    a(f'v_cmp_eq_u32 vcc, -1, v{V_T2}')
    poll_end(a, L('PQ'), L('PQ_D'))
    ST(6)
    a('s_waitcnt lgkmcnt(0)')
    a(mf32(D0, RX, SEL0, D0))
    a(mf32(D1, RX, SEL1, D1))
    a(f'buffer_load_dwordx2 v[{RV}:{RV+1}], v{PVA}, {X}, s{S_XR} offen offset:1024 sc1')
    a(f's_cmp_eq_u32 s{S_STEP}, s{S_NST}')
    a('s_nop 2')
    a(f'v_cvt_pk_bf16_f32 v{TT}, v{D0}, v{D0+1}')
    a(f'v_cvt_pk_bf16_f32 v{TT+1}, v{D0+2}, v{D0+3}')
    a('s_nop 0')
    a(f'v_cvt_pk_bf16_f32 v{TT+2}, v{D1}, v{D1+1}')
    a(f'v_cvt_pk_bf16_f32 v{TT+3}, v{D1+2}, v{D1+3}')
    a(f's_cbranch_scc1 {L("TAIL")}')
    a('s_nop 0')
    a(mf32(SA, KT0, TT))
    a(mf32(SB, KT1, TT))
    a(mf32(SMM, TT, TT))
    D('T', [TT, TT+1, TT+2, TT+3], V_T2)
    a(f's_mov_b64 exec, {LO}')
    a('s_nop 1')
    a(f'ds_write_b128 v{SW}, v[{SA}:{SA+3}]')
    a('s_nop 1')
    a(f'ds_write_b128 v{SW}, v[{SB}:{SB+3}] offset:512')
    a('s_nop 2')
    a(f'ds_write_b128 v{SW}, v[{SMM}:{SMM+3}] offset:1024')
    a('s_mov_b64 exec, -1')
    a('s_waitcnt lgkmcnt(0)')
    a('s_barrier')
    ST(7)
    a(f'ds_read2st64_b32 v[{MM}:{MM+1}], v{MR} offset0:0 offset1:6')
    a(f'ds_read2st64_b32 v[{MM+2}:{MM+3}], v{MR} offset0:12 offset1:18')
    for w in range(4):
        r = R0 + 4*w
        a(f'ds_read_b128 v[{r}:{r+3}], v{SR} offset:{w*1536}')
    a(f'v_mov_b32 v{V_T}, v{PVA}') if False else None
    for r in range(WACC[0], WACC[0] + 8, 2):
        a(f'v_mov_b64 v[{r}:{r+1}], 0')
    a('s_waitcnt lgkmcnt(4)')
    a(pkadd(MM, MM, MM + 2))
    a('s_waitcnt lgkmcnt(2)')
    a(pkadd(R0, R0, R1)); a(pkadd(R0 + 2, R0 + 2, R1 + 2))
    a(f'v_add_f32 v{MM}, v{MM}, v{MM+1}')
    M, M2 = MM + 2, MM + 3
    HALF = SUM + 2
    a('s_waitcnt lgkmcnt(0)')
    a(pkadd(R2, R2, R3)); a(pkadd(R2 + 2, R2 + 2, R3 + 2))
    a(pkadd(R0, R0, R2)); a(pkadd(R0 + 2, R0 + 2, R2 + 2))
    a(f'v_mov_b32 v{ONES}, 0x3f803f80')
    a(f'v_max3_f32 v{M}, v{R0}, v{R0+1}, v{MM}')
    a(f'v_mov_b32 v{ONES+1}, 0x3f803f80')
    a(f'v_max3_f32 v{M}, v{M}, v{R0+2}, v{R0+3}')
    D('S', [R0, R0+1, R0+2, R0+3, MM], V_T2)
    a(f'v_mov_b32 v{ONES+2}, 0x3f803f80')
    a(f'v_mov_b32 v{ONES+3}, 0x3f803f80')
    a(f'v_max_f32_dpp v{M}, v{M}, v{M} row_ror:8 row_mask:0xf bank_mask:0xf')
    a(f'v_mov_b32 v{PMQ+2}, 0x3f003f00')
    a(f'v_mov_b32 v{M2}, v{M}')
    a(f'v_mov_b32 v{PMQ+3}, 0x3f003f00')
    a('s_nop 0')
    a(f'v_permlane32_swap_b32 v{M}, v{M2}')
    a('s_nop 0')
    a(f'v_max_f32 v{M}, v{M}, v{M2}')
    a(f'v_mov_b32 v{M2}, v{M}')
    a('s_nop 1')
    a(f'v_permlane16_swap_b32 v{M}, v{M2}')
    a('s_nop 0')
    a(f'v_max_f32 v{M}, v{M}, v{M2}')
    a(f'v_mul_f32 v{M}, s{S_SC}, v{M}')
    E = [R0, R0+1, R0+2, R0+3, MM]
    for e in E:
        a(f'v_fma_f32 v{e}, v{e}, s{S_SC}, -v{M}')
    for e in (MM, R0, R0+1, R0+2, R0+3):
        a(f'v_exp_f32 v{e}, v{e}')
    a(f'v_mov_b32_dpp v{M2}, v{MM} row_ror:8 row_mask:0xf bank_mask:0xf')
    a(f'v_cvt_pk_bf16_f32 v{PB}, v{R0}, v{R0+1}')
    a(f'v_cvt_pk_bf16_f32 v{PB+1}, v{R0+2}, v{R0+3}')
    a(f'v_cvt_pk_bf16_f32 v{PMQ}, v{MM}, v{M2}')
    a(f'v_mov_b32_dpp v{PB+2}, v{PB} row_ror:8 row_mask:0xf bank_mask:0xf')
    a(f'v_mov_b32_dpp v{PB+3}, v{PB+1} row_ror:8 row_mask:0xf bank_mask:0xf')
    a(f'v_cvt_pk_bf16_f32 v{PMQ+1}, v{MM}, v{M2}')
    ST(8)
    a('s_waitcnt vmcnt(0)')
    a(mf32(SUM, ONES, PB))
    a(f'v_max_u32 v{V_T2}, v{RV}, v{RV+1}')
    a(f'v_cmp_eq_u32 vcc, -1, v{V_T2}')
    a(mf32(O0, VT0, PB))
    a(f's_cbranch_vccz {L("PV_D")}')
    a(f'v_lshrrev_b32 v{V_T}, 1, v{V_L16}')
    a.label(L('PV'))
    a(f'buffer_load_dwordx2 v[{RV}:{RV+1}], v{V_T}, {X}, s{S_XR} offen offset:1024 sc1')
    a('s_waitcnt vmcnt(0)')
    a(f'v_max_u32 v{V_T2}, v{RV}, v{RV+1}')
    a(f'v_cmp_eq_u32 vcc, -1, v{V_T2}')
    poll_end(a, L('PV'), L('PV_D'))
    a(f'v_swap_b32 v{VA+1}, v{RV}')
    a(mf32(O1, VT1, PB))
    a(mf16(SUM, PMQ + 2, PMQ, SUM))
    a(mf16(O0, VA, PMQ, O0))
    a(mf16(O1, VA + 2, PMQ, O1))
    ST(9)
    a(f'v_rcp_f32 v{V_T}, v{SUM}')
    a(f'v_add_u32 v{V_T2}, s{S_OWB}, v{V_L16}')
    for r in range(WACC[2], WACC[3] + 4, 2):
        pass
    for r in (48, 50):
        a(f'v_mov_b64 v[{r}:{r+1}], 0')
    for r in (32, 34):
        a(f'v_mov_b64 v[{r}:{r+1}], 0')
    a('s_nop 0')
    D('O', [O0+i for i in range(8)] + [SUM], 36)
    for r in (O0, O0 + 2, O1, O1 + 2):
        a(f'v_pk_mul_f32 v[{r}:{r+1}], v[{r}:{r+1}], v[{V_T}:{V_T+1}] op_sel_hi:[1,0]')
    a(f'v_cvt_pk_bf16_f32 v{OA}, v{O0}, v{O0+1}')
    a(f'v_cvt_pk_bf16_f32 v{OA+1}, v{O1}, v{O1+1}')
    a(f'v_cvt_pk_bf16_f32 v{OA+2}, v{O0+2}, v{O0+3}')
    a(f'v_cvt_pk_bf16_f32 v{OA+3}, v{O1+2}, v{O1+3}')
    a(f's_mov_b64 exec, {LO}')
    a(f'ds_write2_b64 v{V_T2}, v[{OA}:{OA+1}], v[{OA+2}:{OA+3}] offset0:0 offset1:16')
    a('s_mov_b64 exec, -1')
    a(f'v_add_u32 v{V_T}, {L_O}, v{V_L16}')
    for r in (36, 38, 40, 42, 44, 46, 52, 54):
        a(f'v_mov_b64 v[{r}:{r+1}], 0')
    a('s_waitcnt lgkmcnt(0)')
    a('s_barrier')
    ST(10)
    a(f'ds_read_b128 v[{OA}:{OA+3}], v{V_T}')
    a(f'ds_read_b128 v[{OA+4}:{OA+7}], v{V_T} offset:1024')
    if 'pub' not in cfg.skip: publish(a, cfg, P, 'A')
    def wo0(nu): a(smf(WACC[nu], OA, v8(WO_R + 8*nu)))
    def wo1(nu): a(smf(WACC[nu], OA + 4, v8(SREG + 8*nu)))
    def pack(p):
        t0, t1 = WACC[2*p], WACC[2*p + 1]
        out = []
        for r in range(4): out.append(f'v_permlane32_swap_b32 v{t0+r}, v{t1+r}')
        out.append(pkadd(t0, t0, t1)); out.append(pkadd(t0 + 2, t0 + 2, t1 + 2))
        out.append(f'v_cvt_pk_bf16_f32 v{t1}, v{t0}, v{t0+1}')
        out.append(f'v_cvt_pk_bf16_f32 v{t1+1}, v{t0+2}, v{t0+3}')
        out.append(f'buffer_store_dwordx2 v[{t1}:{t1+1}], v{V_PTW}, {SM}, s{S_PW+p} offen{sfl}')
        return out
    a('s_waitcnt lgkmcnt(1)')
    wo0(0); wo0(1)
    a('s_waitcnt lgkmcnt(0)')
    D('OA', [OA+i for i in range(8)])
    wo1(0); wo1(1)
    wo0(2); wo0(3)
    for p in range(1, 4):
        pk = pack(p - 1)
        a.ext(pk[0:3]); wo1(2*p); a.ext(pk[3:5]); a('s_nop 0'); wo1(2*p + 1); a(pk[5]); a('s_nop 0'); a.ext(pk[6:8])
        if p < 3:
            wo0(2*p + 2); a(pk[8]); wo0(2*p + 3)
        else:
            a(pk[8])
    wl_addr(a, V_T2)
    sv = svload()
    a.ext(sv[0:4])
    a('s_nop 1')
    pk = pack(3)
    a.ext(pk[0:4]); a('s_nop 0'); a.ext(pk[4:6]); a('s_nop 0'); a.ext(pk[6:9])
    ST(11)
    a.ext(sv[4:14])
    PRA = 28
    ln = 29
    a(f'v_lshrrev_b32 v{ln}, 4, v{V_L16}')
    if cfg.RS_PERM:
        a(f'v_lshrrev_b32 v{PRA}, 4, v{ln}'); a(f'v_lshlrev_b32 v{PRA}, 2, v{PRA}')
        a(f'v_and_b32 v{30}, 3, v{ln}'); a(f'v_add_u32 v{PRA}, v{PRA}, v{30}')
        a(f'v_mul_u32_u24 v{PRA}, {cfg.SH}, v{PRA}')
        a(f'v_bfe_u32 v{30}, v{ln}, 2, 2'); a(f'v_lshl_add_u32 v{PRA}, v{30}, 4, v{PRA}')
    else:
        a(f'v_lshrrev_b32 v{PRA}, 2, v{ln}'); a(f'v_mul_u32_u24 v{PRA}, {cfg.SH}, v{PRA}')
        a(f'v_and_b32 v{30}, 3, v{ln}'); a(f'v_lshl_add_u32 v{PRA}, v{30}, 4, v{PRA}')
    a(f'v_add_u32 v{PRA}, s{S_PRW}, v{PRA}')
    a(f'v_add_u32 v{V_T}, {L_C}, v{V_L16}')
    for r in range(4): a(f'v_mov_b32 v{NEG+r}, -1')
    a('s_waitcnt lgkmcnt(8)')
    a.ext(sv[14:16])
    a(f'ds_read_b128 v[{SELR}:{SELR+3}], v{V_T} offset:2048')
    a('s_waitcnt vmcnt(0)')
    ST(12)
    a.label(L('PR'))
    a(f'buffer_load_dwordx4 v[{PR0}:{PR0+3}], v{PRA}, {SM}, s{S_PR} offen sc1')
    a(f'buffer_load_dwordx4 v[{PR1}:{PR1+3}], v{PRA}, {SM}, s{S_PR2} offen sc1')
    a('s_waitcnt vmcnt(0)')
    max_chain(a, V_T, list(range(PR0, PR0 + 8)))
    a(f'v_cmp_eq_u32 vcc, -1, v{V_T}')
    poll_end(a, L('PR'), L('PR_D'))
    ST(13)
    a('s_waitcnt lgkmcnt(0)')
    a(mf32(RD, PR0, SELR))
    a(mf32(RD, PR1, SELR, RD))
    a(f'buffer_store_dwordx4 v[{NEG}:{NEG+3}], v{PRA}, {SM}, s{S_PR} offen{sfl}') if cfg.EARLY_CLR else None
    a(f'buffer_store_dwordx4 v[{NEG}:{NEG+3}], v{PRA}, {SM}, s{S_PR2} offen{sfl}') if cfg.EARLY_CLR else None
    a('s_nop 5' if cfg.EARLY_CLR else 's_nop 7')
    if cfg.RS_PERM:
        a(pkadd(RD, RD, RD + 2))
        a('s_nop 0')
        a(f'v_add_f32 v{RD}, v{RD}, v{RD+1}')
    else:
        a(f'v_permlane32_swap_b32 v{RD}, v{RD+2}')
        a(f'v_permlane32_swap_b32 v{RD+1}, v{RD+3}')
        a('s_nop 0')
        a(pkadd(RD, RD, RD + 2))
        a('s_nop 1')
        a(f'v_permlane16_swap_b32 v{RD}, v{RD+1}')
        a('s_nop 0')
        a(f'v_add_f32 v{RD}, v{RD}, v{RD+1}')
    a('s_nop 1')
    a(f'v_mov_b32_dpp v{RD+1}, v{RD} row_shl:4 row_mask:0xf bank_mask:0xf')
    a('s_nop 0')
    a(f'v_cvt_pk_bf16_f32 v{RD}, v{RD}, v{RD+1}')
    a(f'buffer_store_dword v{RD}, v{V_MFW}, {SM}, s{S_MEMW} offen{sfl}')
    ST(14)
    nclr = 1
    if not cfg.EARLY_CLR:
        a(f'buffer_store_dwordx4 v[{NEG}:{NEG+3}], v{PRA}, {SM}, s{S_PR} offen{sfl}')
        a(f'buffer_store_dwordx4 v[{NEG}:{NEG+3}], v{PRA}, {SM}, s{S_PR2} offen{sfl}')
        nclr = 3
    a(f'buffer_store_dword v{NEG}, v{V_MFW}, {SM}, s{S_MEMR} offen{sfl}')
    if prof is not None:
        lab = a.newlabel(P + 'DBG')
        a(f's_cmp_lg_u32 s{S_STEP}, {prof[1]}')
        a(f's_cbranch_scc1 {lab}')
        a('s_waitcnt lgkmcnt(0)')
        a(f's_mov_b32 s94, s{S_BUD}')
        for i in range(16):
            a(f'v_mov_b32 v{8+i}, s{64+2*i}')
        dbg_dump(a, list(range(8, 24)), prof[0])
        for r in range(4): a(f'v_mov_b32 v{NEG+r}, -1')
        a.label(lab)
    T0 = f's{S_T0}'
    for s in (S_MEMR, S_MEMW):
        a(f's_add_u32 {T0}, s{s}, 16384'); a(f's_and_b32 {T0}, {T0}, 0xffff')
        a(f's_and_b32 s{s}, s{s}, 0xffff0000'); a(f's_or_b32 s{s}, s{s}, {T0}')
    for s in [S_PR, S_PR2] + [S_PW + p for p in range(4)]:
        a(f's_xor_b32 s{s}, s{s}, 0x80000')
    msk = cfg.NS * 32768 - 1
    for s in (S_XW, S_XR, S_XC):
        a(f's_add_u32 {T0}, s{s}, 32768'); a(f's_and_b32 {T0}, {T0}, 0x{msk:x}')
        a(f's_add_u32 s{s}, {T0}, s{S_XBASE}')
    a(f's_add_u32 s{S_QKM}, s{S_QKM}, {32*4096}')
    a(f's_add_u32 s{S_VMG}, s{S_VMG}, {32*2048}')
    a(f's_add_u32 s{S_KVK}, s{S_KVK}, {32*8192}')
    a(f's_add_u32 s{S_KVV}, s{S_KVV}, {32*8192}')
    a(f's_add_u32 s{S_STEP}, s{S_STEP}, 1')
    a.ext(top_prep())
    a(f's_waitcnt vmcnt({nclr})')
    a(f's_branch {L("TOP")}')

    a.label(L('TAIL'))
    a(f'v_lshrrev_b32 v{V_T}, 1, v{V_L16}')
    a.label(L('TV'))
    a(f'buffer_load_dwordx2 v[{RV}:{RV+1}], v{V_T}, {X}, s{S_XR} offen offset:1024 sc1')
    a('s_waitcnt vmcnt(0)')
    a(f'v_max_u32 v{V_T2}, v{RV}, v{RV+1}')
    a(f'v_cmp_eq_u32 vcc, -1, v{V_T2}')
    poll_end(a, L('TV'), L('TV_D'))
    a(f'v_swap_b32 v{VA+1}, v{RV}')
    publish(a, cfg, P, 'B')
    a('s_waitcnt vmcnt(0)')


def publish(a, cfg, P, tag):
    SM = f's[{S_SM}:{S_SM+3}]'
    HI = f's[{S_HI8}:{S_HI8+1}]'
    l1, l2 = f'{P}_PUB{tag}1', f'{P}_PUB{tag}2'
    a(f's_cmp_eq_u32 s{S_J}, 0')
    a(f's_cbranch_scc0 {l1}')
    ad, ad2 = 62, 63
    a(f'v_lshrrev_b32 v{ad}, 8, v{V_L16}'); a(f'v_lshlrev_b32 v{ad}, 7, v{ad}')
    a(f'v_and_b32 v{ad2}, 0x70, v{V_L16}'); a(f'v_add_u32 v{ad}, v{ad}, v{ad2}')
    a(f's_mov_b64 exec, {HI}')
    a(f'buffer_store_dwordx4 v[{TT}:{TT+3}], v{ad}, {SM}, s{S_QKM} offen sc1')
    a('s_mov_b64 exec, -1')
    a(f's_branch {l2}')
    a.label(l1)
    t0, t1, t2, t3 = 56, 57, 58, 59
    def add2(x, y, dst):
        a(f'v_lshlrev_b32 v{t0}, 16, v{x}'); a(f'v_and_b32 v{t1}, 0xffff0000, v{x}')
        a(f'v_lshlrev_b32 v{t2}, 16, v{y}'); a(f'v_and_b32 v{t3}, 0xffff0000, v{y}')
        a(f'v_pk_add_f32 v[{t0}:{t1}], v[{t0}:{t1}], v[{t2}:{t3}]')
        a(f'v_cvt_pk_bf16_f32 v{dst}, v{t0}, v{t1}')
    add2(60, 61, 60)
    add2(62, 63, 61)
    ad = 62
    a(f'v_lshrrev_b32 v{ad}, 9, v{V_L16}'); a(f'v_lshlrev_b32 v{ad}, 8, v{ad}')
    a(f'v_bfe_u32 v{t0}, v{V_L16}, 8, 1'); a(f'v_lshl_add_u32 v{ad}, v{t0}, 2, v{ad}')
    a(f'v_bfe_u32 v{t0}, v{V_L16}, 7, 1'); a(f'v_lshl_add_u32 v{ad}, v{t0}, 7, v{ad}')
    a(f'v_bfe_u32 v{t0}, v{V_L16}, 4, 3'); a(f'v_lshl_add_u32 v{ad}, v{t0}, 3, v{ad}')
    a(f'buffer_store_dword v60, v{ad}, {SM}, s{S_VMG} offen sc1')
    a(f'buffer_store_dword v61, v{ad}, {SM}, s{S_VMG} offen offset:64 sc1')
    a.label(l2)


def post_v(a, cfg, P):
    X = f's[{S_X}:{S_X+3}]'
    T0 = f's{S_T0}'
    a(f's_add_u32 s{S_KVK}, s{S_KVK}, {32*8192}')
    a(f's_add_u32 s{S_KVV}, s{S_KVV}, {32*8192}')
    if 'kv' not in cfg.skip:
        for g in kv_dma(cfg): a.ext(g)
    for r in range(16, 20): a(f'v_mov_b32 v{r}, -1')
    a(f'v_lshrrev_b32 v20, 1, v{V_L16}')
    a(f'buffer_store_dwordx4 v[16:19], v{V_L16}, {X}, s{S_XC} offen sc1')
    a(f'buffer_store_dwordx2 v[16:17], v20, {X}, s{S_XC} offen offset:1024 sc1')
    msk = cfg.NS * 32768 - 1
    for s in (S_XW, S_XR, S_XC):
        a(f's_add_u32 {T0}, s{s}, 32768'); a(f's_and_b32 {T0}, {T0}, 0x{msk:x}')
        a(f's_add_u32 s{s}, {T0}, s{S_XBASE}')
    a(f's_add_u32 s{S_QKM}, s{S_QKM}, {32*4096}')
    a(f's_add_u32 s{S_VMG}, s{S_VMG}, {32*2048}')


def near_static(a, val):
    a(f's_mov_b32 s{S_NEAR}, {val}')


def near_measure(a, cfg, P):
    SM = f's[{S_SM}:{S_SM+3}]'
    X = f's[{S_X}:{S_X+3}]'
    T0, T1, T2, T3 = f's{S_T0}', f's{S_T1}', f's{S_T2}', f's{S_T3}'
    l1 = f'{P}_NM1'
    a(f's_lshl_b32 {T0}, s{S_WV}, 1'); a(f's_or_b32 {T0}, {T0}, s{S_J}')
    a(f's_cmp_eq_u32 {T0}, 0'); a(f's_cbranch_scc0 {l1}')
    a(f's_add_u32 {T0}, s{S_XBASE}, {(cfg.NS-1)*32768 + 1536}')
    a('v_mov_b32 v8, 0')
    a(f'buffer_load_dword v9, v8, {X}, {T0} offen offset:384 sc1')
    a('s_waitcnt vmcnt(0)')
    a('s_mov_b32 s70, -1'); a('s_mov_b32 s71, -1')
    for i in range(6):
        for b in range(2):
            off = b*8192 + (i % 3)*128 + (i // 3)*2048
            a(f's_add_u32 {T1}, {T0}, {off}')
            a('s_memtime s[64:65]')
            a('s_waitcnt lgkmcnt(0)')
            a(f'buffer_load_dword v9, v8, {X}, {T1} offen sc1')
            a('s_waitcnt vmcnt(0)')
            a('s_memtime s[66:67]')
            a('s_waitcnt lgkmcnt(0)')
            a('s_sub_u32 s66, s66, s64')
            a(f's_min_u32 s{70+b}, s{70+b}, s66')
    a('s_cmp_lt_u32 s71, s70'); a(f's_cselect_b32 {T2}, 1, 0')
    a(f'v_mov_b32 v9, {T2}')
    a(f's_lshl_b32 {T1}, s{S_H}, 7'); a(f's_add_u32 {T1}, {T1}, {C_CNT + 4096}')
    a('v_cmp_eq_u32 vcc, 0, v%d' % V_L16)
    a('s_and_saveexec_b64 s[64:65], vcc')
    a(f'buffer_store_dword v9, v8, {SM}, {T1} offen sc1')
    a('s_mov_b64 exec, s[64:65]')
    a('s_waitcnt vmcnt(0)')
    a.label(l1)
    lp, dn = f'{P}_NM2', f'{P}_NM3'
    a(f's_lshl_b32 {T1}, s{S_H}, 7'); a(f's_add_u32 {T1}, {T1}, {C_CNT + 4096}')
    a('v_mov_b32 v8, 0')
    a.label(lp)
    a(f'buffer_load_dword v9, v8, {SM}, {T1} offen sc1')
    a('s_waitcnt vmcnt(0)')
    a('v_cmp_eq_u32 vcc, -1, v9')
    poll_end(a, lp, dn)
    a(f'v_readfirstlane_b32 s{S_NEAR}, v9')
    a(f's_and_b32 s{S_NEAR}, s{S_NEAR}, 1')


def gen_recc(nsteps=63, dbg=None, cfg=None, P='RC', near=None, sfl=''):
    cfg = cfg or Cfg()
    a = Asm()
    a('s_cmp_ge_u32 s2, 256')
    a(f's_cbranch_scc1 {P}_EXIT')
    if cfg.dynamic:
        common_setup(a)
        role_dynamic(a, cfg, P, f'{P}_EXIT')
    else:
        role_static(a, f'{P}_EXIT')
        common_setup(a)
    role_setup(a, cfg)
    a(f's_mov_b32 s{S_NST}, {nsteps}')
    const_tables(a)
    stage_weights(a, P)
    if near is None: near_measure(a, cfg, P)
    else: near_static(a, near)
    x_offsets(a, cfg)
    a('s_waitcnt vmcnt(0) lgkmcnt(0)')
    a('s_barrier')
    if cfg.dynamic:
        a(f's_cmp_eq_u32 s{S_MODE}, 1')
        a(f's_cbranch_scc0 {P}_FB')
        rec_loop(a, cfg, P, '', dbg)
        a('s_endpgm')
        a.label(f'{P}_FB')
        rec_loop(a, cfg, P + 'F', ' sc1', None)
    else:
        rec_loop(a, cfg, P, sfl, dbg)
    a.label(f'{P}_EXIT')
    a('s_endpgm')
    return a.text()


def gen_prepc(cfg=None):
    cfg = cfg or Cfg()
    a = Asm()
    a('s_cmp_ge_u32 s2, 256')
    a('s_cbranch_scc1 PREP_END')
    a(f's_load_dwordx2 s[4:5], s[0:1], {KA_WS}')
    a(f's_load_dwordx2 s[6:7], s[0:1], {KA_MEM0}')
    a('s_lshl_b32 s3, s2, 12')
    a('v_lshlrev_b32 v1, 4, v0')
    a('v_add_u32 v1, s3, v1')
    for r in range(4):
        a(f'v_mov_b32 v{4+r}, -1'); a(f'v_mov_b32 v{8+r}, 0')
    a('s_waitcnt lgkmcnt(0)')
    a.srd(8, 4, SM_SIZE, add=WS_SM)
    a.srd(12, 6, 8 * 1024 * 2)
    a.srd(20, 4, 64 << 20, add=WS_X)
    a(f's_mov_b32 s16, {C_PART}')
    a('buffer_store_dwordx4 v[4:7], v1, s[8:11], s16 offen')
    a('s_lshr_b32 s17, s2, 3'); a(f's_mul_i32 s17, s17, {cfg.NS*32768}')
    a('s_and_b32 s18, s2, 7'); a('s_lshl_b32 s18, s18, 12'); a('s_add_u32 s17, s17, s18')
    a('v_lshlrev_b32 v2, 4, v0')
    for i in range(3):
        a('buffer_store_dwordx4 v[4:7], v2, s[20:23], s17 offen')
        a('s_add_u32 s17, s17, 32768')
    a('s_cmp_eq_u32 s2, 16'); a('s_cbranch_scc0 PREP_N1')
    a(f's_mov_b32 s16, {C_CNT}')
    a('buffer_store_dwordx4 v[8:11], v2, s[8:11], s16 offen')
    a.label('PREP_N1')
    a('s_cmp_eq_u32 s2, 17'); a('s_cbranch_scc0 PREP_N2')
    a(f's_mov_b32 s16, {C_CNT + 4096}')
    a('buffer_store_dwordx4 v[4:7], v2, s[8:11], s16 offen')
    a.label('PREP_N2')
    a('s_cmp_ge_u32 s2, 16'); a('s_cbranch_scc1 PREP_END')
    a('s_cmp_lt_u32 s2, 4')
    a('s_cbranch_scc1 PREP_M0')
    a(f's_mov_b32 s16, {C_MEMF}')
    a('buffer_store_dwordx4 v[4:7], v1, s[8:11], s16 offen')
    a('s_branch PREP_END')
    a.label('PREP_M0')
    a('v_lshrrev_b32 v2, 4, v1')
    a('v_and_b32 v3, 7, v2'); a('v_lshlrev_b32 v3, 11, v3')
    a('v_lshrrev_b32 v12, 4, v2'); a('v_lshl_add_u32 v3, v12, 5, v3')
    a('v_bfe_u32 v12, v2, 3, 1'); a('v_lshl_add_u32 v3, v12, 2, v3')
    for t in range(4):
        a(f'buffer_load_dword v{4+t}, v3, s[12:15], 0 offen offset:{t*8}')
    a('s_waitcnt vmcnt(0)')
    for t in range(4):
        a(f'v_min_u32 v{4+t}, -2, v{4+t}')
    a(f's_mov_b32 s16, {C_MEMF}')
    a('buffer_store_dwordx4 v[4:7], v1, s[8:11], s16 offen')
    a.label('PREP_END')
    a('s_endpgm')
    return a.text()
```

```python
import sys; sys.path.insert(0,'gen')
from asmlib import *
import k_ln, tasks, tasks2, k_rec, k_recc
from gemm2 import *
from tasks import *

def kern_gemm(kind, name, ntask, decode):
    a = Asm()
    g = Eng()
    a(f's_cmp_ge_u32 s2, {ntask}')
    a(f's_cbranch_scc1 {name}_END')
    wave_id(a)
    decode(a)
    task_gemm(a, g, kind)
    a.label(f'{name}_END')
    a('s_endpgm')
    return a.text(), g

def dec_kqv(a):
    a(f's_and_b32 s{S_CB}, s2, 7'); a(f's_lshl_b32 s{S_CB}, s{S_CB}, 1')
    a('s_lshr_b32 s3, s2, 3'); a('s_and_b32 s31, s3, 1'); a(f's_add_u32 s{S_CB}, s{S_CB}, s31')
    a(f's_lshr_b32 s{S_RB}, s3, 1'); a(f's_mov_b32 s{S_KS}, 0')
def dec_part(a):
    a('s_and_b32 s31, s2, 7'); a('s_lshl_b32 s31, s31, 1')
    a('s_lshr_b32 s3, s2, 3'); a('s_and_b32 s33, s3, 1'); a('s_add_u32 s31, s31, s33')
    a(f's_and_b32 s{S_CB}, s31, 3'); a(f's_lshr_b32 s{S_KS}, s31, 2')
    a(f's_lshr_b32 s{S_RB}, s3, 1')
def dec_gu(a):
    a('s_mul_i32 s3, s2, 9363'); a(f's_lshr_b32 s{S_RB}, s3, 18')
    a(f's_mul_i32 s3, s{S_RB}, 28'); a(f's_sub_u32 s{S_CB}, s2, s3'); a(f's_mov_b32 s{S_KS}, 0')

def kern_simple(name, ntask, decode, body):
    a = Asm()
    a(f's_cmp_ge_u32 s2, {ntask}')
    a(f's_cbranch_scc1 {name}_END')
    wave_id(a)
    decode(a)
    body(a)
    a.label(f'{name}_END')
    a('s_endpgm')
    return a.text()

def dec_att(a):
    a(f's_lshr_b32 s{S_RB}, s2, 3'); a(f's_and_b32 s{S_CB}, s2, 7')
def dec_red(a):
    a(f's_mov_b32 s{S_RB}, s2')

def header():
    src = open('cdna_kernels/' + KNAME[:-7] + '.s.ref').read().split('\n')
    out = []
    for l in src:
        if l.startswith('; Override launch'): break
        out.append(l)
    return '\n'.join(out)

def build(path, hdr='; test'):
    ks = []; ls = []
    cfg = k_recc.Cfg(dynamic=True, RS_PERM=False, EARLY_CLR=True)
    ks.append(('prep_kernel', k_recc.gen_prepc(cfg), 32, 32)); ls.append(('prep_kernel', (256,1,1), (256,1,1), 0))
    ks.append(('ln1_kernel', k_ln.gen_ln1(), 256, 256)); ls.append(('ln1_kernel', (64,1,1), (256,1,1), 0))
    for kind, nm, nt, dec in [('K','kp_kernel',256,dec_kqv),('V','vp_kernel',256,dec_kqv),('Q','qp_kernel',256,dec_kqv)]:
        t, g = kern_gemm(kind, nm[:2].upper(), nt, dec)
        ks.append((nm, t, 512, 256)); ls.append((nm, (nt,1,1), (256,1,1), g.lds))
    ks.append(('rec_kernel', k_recc.gen_recc(63, None, cfg, P='RC', near=None), 512, 256)); ls.append(('rec_kernel', (256,1,1), (256,1,1), k_recc.REC_LDS))
    ks.append(('att_kernel', kern_simple('ATT', 512, dec_att, tasks2.task_att), 224, 224)); ls.append(('att_kernel', (512,1,1), (256,1,1), 0))
    t, g = kern_gemm('WO', 'WO', 256, dec_part); ks.append(('wo_kernel', t, 512, 256)); ls.append(('wo_kernel', (256,1,1), (256,1,1), g.lds))
    ks.append(('red1_kernel', kern_simple('R1', 256, dec_red, tasks2.task_red1), 224, 224)); ls.append(('red1_kernel', (256,1,1), (256,1,1), 1024))
    t, g = kern_gemm('GU', 'GU', 448, dec_gu); ks.append(('gu_kernel', t, 512, 256)); ls.append(('gu_kernel', (448,1,1), (256,1,1), g.lds))
    t, g = kern_gemm('DN', 'DN', 256, dec_part); ks.append(('dn_kernel', t, 512, 256)); ls.append(('dn_kernel', (256,1,1), (256,1,1), g.lds))
    ks.append(('red2_kernel', kern_simple('R2', 256, dec_red, tasks2.task_red2), 224, 224)); ls.append(('red2_kernel', (256,1,1), (256,1,1), 0))
    txt = assemble_file(hdr, ls, ks)
    open(path, 'w').write(txt)
    print('lds', g.lds, 'vfree', g.vfree, 'bytes', len(txt))
    return ls
if __name__ == '__main__':
    p = 'cdna_kernels/' + KNAME[:-7] + '.s'
    build(p, header())
    import chk; chk.chk(p)
```

```python
from asmlib import *

WS_X = 0xB000000
C_MEMF = SM_MEMF
C_PART = SM_PART
C_CNT = SM_CNT
CNT_MODE, CNT_FB = 2048, 2176
WS_DBGC = 0x7000000

class Cfg:
    NS = 64
    SG, SP, SH = 4096, 2048, 64
    RS_PERM = True
    dynamic = False
    force_fallback = False
    EARLY_CLR = False
    skip = ()
    kvflag = None
    def __init__(self, **kw):
        for k, v in kw.items(): setattr(self, k, v)

L_WA = 0x00000
L_WB = 0x10000
L_M = 0x20000
L_O = 0x22000
L_C = 0x22800
L_R = 0x23400
L_KV = 0x24000
REC_LDS = 0x28000

V_IDX, V_AGP, V_PTW, V_MFW, V_KDM, V_L16, V_T, V_T2 = 0, 1, 2, 3, 4, 5, 6, 7
AM = 8
AQ0, AQ1, AK0, AK1, AV0, AV1 = 40, 44, 48, 52, 56, 60
SREG = 64
WV_R = 128
WO_R = 192
XS, D0, D1, RX, VA, RV, TT = 44, 40, 48, 52, 60, 62, 56
SEL0, SEL1, KT0, KT1, VT0, VT1, SA, SB, SMM = 24, 28, 32, 36, 8, 12, 16, 20, 24
R0, R1, R2, R3, MM = 32, 36, 40, 44, 48
PB, PMQ, ONES, SUM, O0, O1 = 36, 40, 44, 52, 16, 20
WACC = [24, 28, 32, 36, 40, 44, 48, 52]
OA = 8
PR0, PR1, SELR, RD, NEG = 8, 12, 16, 20, 24

S_SM = 4
S_KV = 8
S_X = 12
S_W = 16
S_STEP, S_WV, S_H, S_J = 20, 21, 22, 23
S_MEMR, S_MEMW, S_PR, S_PR2 = 24, 25, 26, 27
S_PW = 28
S_XW, S_XR, S_XC, S_NEAR = 32, 33, 34, 35
S_KVK, S_KVV, S_QKM, S_VMG = 36, 37, 38, 39
S_LO8 = 40
S_BUD, S_NST, S_M0, S_MEMC = 42, 43, 44, 45
S_T0, S_T1, S_T2, S_T3 = 46, 47, 48, 49
S_PTR = 50
S_WS = 52
S_SWB, S_OWB, S_KVB, S_PRW = 54, 55, 56, 57
S_HI8 = 58
S_XBASE = 60
S_MODE = 61
S_LID = 62
S_SC = 63
S_KVOK, S_KVFB = 96, 97
SOFT_C = 0x3e0293ee


def smf(acc, A, B):
    return f'v_smfmac_f32_16x16x64_bf16 v[{acc}:{acc+3}], v[{A}:{A+3}], {B}, v{V_IDX}'
def wq(pi, t): b = 16*pi + 8*t; return f'a[{b}:{b+7}]'
def wk(pi, t): b = 128 + 16*pi + 8*t; return f'a[{b}:{b+7}]'
def wv(pi, t):
    b = (WV_R + 16*pi + 8*t) if pi < 4 else (SREG + 16*(pi-4) + 8*t)
    return f'v[{b}:{b+7}]'
def v8(r): return f'v[{r}:{r+7}]'
def mf32(d, A, B, C=None):
    c = '0' if C is None else f'v[{C}:{C+3}]'
    return f'v_mfma_f32_16x16x32_bf16 v[{d}:{d+3}], v[{A}:{A+3}], v[{B}:{B+3}], {c}'
def mf16(d, A, B, C):
    return f'v_mfma_f32_16x16x16_bf16 v[{d}:{d+3}], v[{A}:{A+1}], v[{B}:{B+1}], v[{C}:{C+3}]'
def pkadd(d, x, y): return f'v_pk_add_f32 v[{d}:{d+1}], v[{x}:{x+1}], v[{y}:{y+1}]'


def poll_end(a, lab, done):
    a(f's_cbranch_vccz {done}')
    a(f's_cmp_eq_u32 s{S_BUD}, 0')
    a(f's_cbranch_scc1 {done}')
    a(f's_sub_u32 s{S_BUD}, s{S_BUD}, 1')
    a(f's_branch {lab}')
    a.label(done)

def max_chain(a, dst, regs):
    if len(regs) == 2:
        a(f'v_max_u32 v{dst}, v{regs[0]}, v{regs[1]}'); return
    a(f'v_max3_u32 v{dst}, v{regs[0]}, v{regs[1]}, v{regs[2]}')
    i = 3
    while i + 1 < len(regs):
        a(f'v_max3_u32 v{dst}, v{dst}, v{regs[i]}, v{regs[i+1]}')
        i += 2
    if i < len(regs):
        a(f'v_max_u32 v{dst}, v{dst}, v{regs[i]}')


def dbg_dump(a, regs, slot, tmp=V_T):
    a('s_waitcnt vmcnt(0) lgkmcnt(0)')
    a('s_nop 7'); a('s_nop 7')
    a.srd(84, S_WS, 4 << 20, add=WS_DBGC + slot * (4 << 20))
    a(f's_lshl_b32 s88, s{S_H}, 1'); a(f's_add_u32 s88, s88, s{S_J}'); a('s_lshl_b32 s88, s88, 2')
    a(f's_add_u32 s88, s88, s{S_WV}'); a('s_lshl_b32 s88, s88, 14')
    a(f'v_lshrrev_b32 v{tmp}, 2, v{V_L16}')
    for i, r in enumerate(regs):
        a(f'buffer_store_dword v{r}, v{tmp}, s[84:87], s88 offen')
        a('s_add_u32 s88, s88, 256')
    a('s_waitcnt vmcnt(0)')


def role_static(a, exit_label):
    a(f's_and_b32 s{S_J}, s2, 7')
    a(f's_cmp_ge_u32 s{S_J}, 2'); a(f's_cbranch_scc1 {exit_label}')
    a(f's_lshr_b32 s{S_H}, s2, 3')


def role_dynamic(a, cfg, P, exit_label, nx=2):
    SM = f's[{S_SM}:{S_SM+3}]'
    T0, T1, T2, T3 = f's{S_T0}', f's{S_T1}', f's{S_T2}', f's{S_T3}'
    lw, lp, dec, fb, bc = (f'{P}_RD{i}' for i in range(5))
    a(f's_cmp_eq_u32 s{S_WV}, 0')
    a(f's_cbranch_scc0 {lw}')
    a(f's_getreg_b32 {T0}, hwreg(HW_REG_XCC_ID, 0, 4)')
    a(f's_lshl_b32 {T1}, {T0}, 7'); a(f's_add_u32 {T1}, {T1}, {C_CNT}')
    a('v_mov_b32 v8, 1'); a('v_mov_b32 v9, 0')
    a('s_mov_b64 exec, 1')
    a(f'buffer_atomic_add v8, v9, {SM}, {T1} offen sc0 sc1')
    a('s_waitcnt vmcnt(0)')
    a(f'v_readfirstlane_b32 {T2}, v8')
    a('s_mov_b64 exec, 0x1ffff')
    a(f'v_lshlrev_b32 v9, 3, v{V_L16}')
    a(f's_mov_b32 {T1}, {C_CNT}')
    a(f's_mov_b32 {T3}, {1 if cfg.force_fallback else 4000}')
    a.label(lp)
    a(f'buffer_load_dword v10, v9, {SM}, {T1} offen sc1')
    a('s_waitcnt vmcnt(0)')
    a(f'v_readlane_b32 s{S_MODE}, v10, 16')
    a(f's_cmp_lg_u32 s{S_MODE}, 0')
    a(f's_cbranch_scc1 {fb}')
    a('v_cmp_gt_u32 vcc, 32, v10')
    a(f's_and_b32 s64, vcc_lo, {(1 << nx) - 1}')
    if cfg.force_fallback:
        a('s_or_b32 s64, s64, 1')
    a(f's_mov_b32 s{S_MODE}, 1')
    a('s_cmp_eq_u32 s64, 0')
    a(f's_cbranch_scc1 {dec}')
    a(f's_mov_b32 s{S_MODE}, 2')
    a(f's_sub_u32 {T3}, {T3}, 1')
    a(f's_cmp_eq_u32 {T3}, 0')
    a(f's_cbranch_scc0 {lp}')
    a.label(dec)
    a('s_mov_b64 exec, 1')
    a(f'v_mov_b32 v10, s{S_MODE}'); a('v_mov_b32 v11, 0'); a('v_mov_b32 v9, 0')
    a(f's_mov_b32 {T1}, {C_CNT + CNT_MODE}')
    a(f'buffer_atomic_cmpswap v[10:11], v9, {SM}, {T1} offen sc0 sc1')
    a('s_waitcnt vmcnt(0)')
    a(f'v_readfirstlane_b32 {T1}, v10')
    a(f's_cmp_eq_u32 {T1}, 0')
    a(f's_cselect_b32 s{S_MODE}, s{S_MODE}, {T1}')
    a.label(fb)
    a('s_mov_b64 exec, 1')
    a(f's_cmp_eq_u32 s{S_MODE}, 1')
    a(f's_cbranch_scc1 {bc}')
    a('v_mov_b32 v8, 1'); a('v_mov_b32 v9, 0')
    a(f's_mov_b32 {T1}, {C_CNT + CNT_FB}')
    a(f'buffer_atomic_add v8, v9, {SM}, {T1} offen sc0 sc1')
    a('s_waitcnt vmcnt(0)')
    a(f'v_readfirstlane_b32 {T2}, v8')
    a(f's_and_b32 {T0}, {T2}, 1')
    a(f's_lshr_b32 {T1}, {T2}, 1')
    a(f's_mov_b32 {T2}, {T1}')
    a.label(bc)
    a(f's_cmp_lt_u32 {T0}, 2'); a(f's_cselect_b32 {T1}, 4, 0')
    a(f's_cmp_lt_u32 {T2}, 32'); a(f's_cselect_b32 {T1}, {T1}, 0')
    a(f's_or_b32 {T1}, {T1}, s{S_MODE}')
    a(f's_lshl_b32 {T2}, {T2}, 8'); a(f's_or_b32 {T1}, {T1}, {T2}')
    a(f's_lshl_b32 {T0}, {T0}, 24'); a(f's_or_b32 {T1}, {T1}, {T0}')
    a(f'v_mov_b32 v8, {T1}'); a(f'v_mov_b32 v9, {L_R}')
    a('ds_write_b32 v9, v8')
    a('s_mov_b64 exec, -1')
    a('s_waitcnt lgkmcnt(0)')
    a.label(lw)
    a('s_barrier')
    a(f'v_mov_b32 v9, {L_R}')
    a('ds_read_b32 v8, v9')
    a('s_waitcnt lgkmcnt(0)')
    a(f'v_readfirstlane_b32 s{S_LID}, v8')
    a(f's_and_b32 s{S_MODE}, s{S_LID}, 3')
    a(f's_lshr_b32 s{S_J}, s{S_LID}, 24')
    a(f's_bfe_u32 s{S_H}, s{S_LID}, 0x100008')
    a(f's_bitcmp1_b32 s{S_LID}, 2')
    a(f's_cbranch_scc0 {exit_label}')
    a(f's_and_b32 s{S_H}, s{S_H}, 31'); a(f's_and_b32 s{S_J}, s{S_J}, 1')


def common_setup(a):
    a(f's_load_dwordx2 s[{S_WS}:{S_WS+1}], s[0:1], {KA_WS}')
    a('v_lshrrev_b32 v1, 6, v0')
    a(f'v_and_b32 v{V_L16}, 63, v0')
    a(f'v_readfirstlane_b32 s{S_WV}, v1')
    a(f'v_lshlrev_b32 v{V_L16}, 4, v{V_L16}')
    a(f's_mov_b32 s{S_LO8}, 0x00ff00ff'); a(f's_mov_b32 s{S_LO8+1}, 0x00ff00ff')
    a(f's_mov_b32 s{S_HI8}, 0xff00ff00'); a(f's_mov_b32 s{S_HI8+1}, 0xff00ff00')
    a(f's_mov_b32 s{S_BUD}, 400000')
    a(f's_mov_b32 s{S_SC}, 0x{SOFT_C:x}')
    a('s_waitcnt lgkmcnt(0)')
    a.srd(S_SM, S_WS, SM_SIZE, add=WS_SM)
    a.srd(S_KV, S_WS, 32 << 20, add=WS_KF)
    a.srd(S_X, S_WS, 64 << 20, add=WS_X)


def role_setup(a, cfg):
    W, H, J = f's{S_WV}', f's{S_H}', f's{S_J}'
    T0, T1, T2 = f's{S_T0}', f's{S_T1}', f's{S_T2}'
    ln, t1, t2 = 8, 9, 10
    a(f'v_lshrrev_b32 v{ln}, 4, v{V_L16}')
    a(f'v_mov_b32 v{V_IDX}, 0xeeee'); a(f'v_mov_b32 v{t1}, 0x4444')
    a(f'v_cndmask_b32 v{V_IDX}, v{V_IDX}, v{t1}, s[{S_LO8}:{S_LO8+1}]')
    a(f's_lshl_b32 {T0}, {W}, 11')
    a(f'v_add_u32 v{V_AGP}, {T0}, v{V_L16}')
    a(f'v_lshrrev_b32 v{t1}, 5, v{ln}'); a(f'v_lshlrev_b32 v{t1}, 10, v{t1}')
    a(f'v_bfe_u32 v{t2}, v{ln}, 4, 1'); a(f'v_lshl_add_u32 v{t1}, v{t2}, 9, v{t1}')
    a(f'v_bfe_u32 v{t2}, v{ln}, 3, 1'); a(f'v_lshl_add_u32 v{t1}, v{t2}, 8, v{t1}')
    a(f'v_and_b32 v{t2}, 7, v{ln}'); a(f'v_lshl_add_u32 v{t1}, v{t2}, 4, v{t1}')
    a(f'v_add_u32 v{V_KDM}, {T0}, v{t1}')
    a(f's_lshl_b32 {T0}, {W}, 16'); a(f's_mul_i32 {T1}, {H}, {cfg.SH}'); a(f's_add_u32 {T0}, {T0}, {T1}')
    a(f'v_lshrrev_b32 v{t1}, 5, v{ln}'); a(f'v_lshlrev_b32 v{t1}, 13, v{t1}')
    a(f'v_bfe_u32 v{t2}, v{ln}, 4, 1'); a(f'v_mul_u32_u24 v{t2}, {cfg.SG}, v{t2}'); a(f'v_add_u32 v{t1}, v{t1}, v{t2}')
    a(f'v_bfe_u32 v{t2}, v{ln}, 1, 1'); a(f'v_mul_u32_u24 v{t2}, {cfg.SP}, v{t2}'); a(f'v_add_u32 v{t1}, v{t1}, v{t2}')
    a(f'v_bfe_u32 v{t2}, v{ln}, 2, 2'); a(f'v_lshl_add_u32 v{t1}, v{t2}, 4, v{t1}')
    a(f'v_and_b32 v{t2}, 1, v{ln}'); a(f'v_lshl_add_u32 v{t1}, v{t2}, 3, v{t1}')
    a(f'v_add_u32 v{V_PTW}, {T0}, v{t1}')
    a(f's_lshl_b32 {T0}, {H}, 8')
    a(f's_and_b32 {T1}, {W}, 1'); a(f's_lshl_b32 {T1}, {T1}, 7'); a(f's_add_u32 {T0}, {T0}, {T1}')
    a(f's_lshr_b32 {T1}, {W}, 1'); a(f's_lshl_b32 {T1}, {T1}, 6'); a(f's_add_u32 {T0}, {T0}, {T1}')
    a(f'v_and_b32 v{t1}, 3, v{ln}'); a(f'v_lshlrev_b32 v{t1}, 4, v{t1}')
    a(f'v_lshrrev_b32 v{t2}, 4, v{ln}'); a(f'v_lshl_add_u32 v{t1}, v{t2}, 2, v{t1}')
    a(f'v_add_u32 v{t1}, {T0}, v{t1}')
    a(f'v_and_b32 v{t2}, 12, v{ln}')
    a(f'v_cmp_eq_u32 vcc, 0, v{t2}')
    a(f'v_mov_b32 v{V_MFW}, 0x40000000')
    a('s_nop 1')
    a(f'v_cndmask_b32 v{V_MFW}, v{V_MFW}, v{t1}, vcc')
    a(f's_lshl_b32 {T0}, {J}, 13')
    a(f's_add_u32 s{S_MEMR}, {T0}, {C_MEMF}')
    a(f's_add_u32 s{S_MEMW}, s{S_MEMR}, 16384')
    a(f's_lshl_b32 {T0}, {J}, 18'); a(f's_add_u32 {T0}, {T0}, {C_PART}')
    for p in range(4):
        a(f's_add_u32 s{S_PW+p}, {T0}, {p*16384}')
    a(f's_lshl_b32 {T1}, {H}, 13'); a(f's_add_u32 s{S_PR}, {T0}, {T1}')
    a(f's_add_u32 s{S_PR2}, s{S_PR}, {16*cfg.SH}')
    a(f's_lshr_b32 {T0}, {W}, 1'); a(f's_mul_i32 {T0}, {T0}, {cfg.SG}')
    a(f's_and_b32 {T1}, {W}, 1'); a(f's_mul_i32 {T1}, {T1}, {cfg.SP}'); a(f's_add_u32 s{S_PRW}, {T0}, {T1}')
    a(f's_mul_i32 s{S_XBASE}, {H}, {cfg.NS*32768}')
    a(f's_lshl_b32 s{S_KVK}, {H}, 13')
    a(f's_add_u32 s{S_KVV}, s{S_KVK}, {16 << 20}')
    a(f's_lshl_b32 {T0}, {W}, 12'); a(f's_add_u32 s{S_KVB}, {T0}, {L_KV}')
    a(f's_lshl_b32 s{S_QKM}, {H}, 12'); a(f's_add_u32 s{S_QKM}, s{S_QKM}, {SM_QKM + 2048}')
    a(f's_lshl_b32 {T0}, {W}, 9'); a(f's_add_u32 s{S_QKM}, s{S_QKM}, {T0}')
    a(f's_lshl_b32 s{S_VMG}, {H}, 11'); a(f's_add_u32 s{S_VMG}, s{S_VMG}, {SM_VMG}'); a(f's_add_u32 s{S_VMG}, s{S_VMG}, {T0}')
    a(f's_mul_i32 {T0}, {W}, 1536'); a(f's_add_u32 s{S_SWB}, {T0}, {L_M}')
    a(f's_lshr_b32 {T0}, {W}, 1'); a(f's_lshl_b32 {T0}, {T0}, 10')
    a(f's_and_b32 {T1}, {W}, 1'); a(f's_lshl_b32 {T1}, {T1}, 3')
    a(f's_add_u32 {T0}, {T0}, {T1}'); a(f's_add_u32 s{S_OWB}, {T0}, {L_O}')
    a(f's_mov_b32 s{S_STEP}, 0')


def x_offsets(a, cfg):
    T0, T1 = f's{S_T0}', f's{S_T1}'
    a(f's_lshl_b32 {T0}, s{S_NEAR}, 13'); a(f's_add_u32 {T0}, {T0}, s{S_XBASE}')
    a(f's_lshl_b32 {T1}, s{S_WV}, 11'); a(f's_add_u32 {T0}, {T0}, {T1}')
    a(f's_lshl_b32 {T1}, s{S_J}, 14')
    a(f's_add_u32 s{S_XW}, {T0}, {T1}')
    a(f's_xor_b32 s{S_XR}, s{S_XW}, 0x4000')
    a(f's_add_u32 s{S_XC}, s{S_XW}, {(3 % cfg.NS) * 32768}')


def const_tables(a):
    ln, t1, t2, js, c0, one = 8, 9, 10, 11, 12, 13
    R = 16
    a(f'v_lshrrev_b32 v{ln}, 4, v{V_L16}')
    a(f'v_add_u32 v{t2}, {L_C}, v{V_L16}')
    a(f'v_mov_b32 v{c0}, v{t2}')
    def onehot(cond_vcc):
        a(f'v_and_b32 v{t1}, 1, v{js}')
        a(f'v_lshlrev_b32 v{t1}, 4, v{t1}')
        a(f'v_mov_b32 v{one}, 0x3f80')
        a(f'v_lshlrev_b32 v{one}, v{t1}, v{one}')
        a(f'v_lshrrev_b32 v{t1}, 1, v{js}')
        for q in range(4):
            a(f'v_cmp_eq_u32 vcc, {q}, v{t1}')
            a('s_nop 1')
            a(f'v_cndmask_b32 v{R+q}, 0, v{one}, vcc')
    for tp in range(2):
        a(f'v_and_b32 v{js}, 3, v{ln}')
        a(f'v_bfe_u32 v{t1}, v{ln}, 3, 1'); a(f'v_lshl_add_u32 v{js}, v{t1}, 2, v{js}')
        a(f'v_bfe_u32 v{t1}, v{ln}, 2, 1'); a(f'v_bfe_u32 v{t2}, v{ln}, 4, 1')
        a(f'v_xor_b32 v{t1}, v{t1}, v{t2}')
        a(f'v_lshrrev_b32 v{t2}, 5, v{ln}'); a(f'v_xor_b32 v{t2}, {tp}, v{t2}')
        a(f'v_or_b32 v{t1}, v{t1}, v{t2}')
        a(f'v_lshl_add_u32 v{js}, v{t1}, 6, v{js}')
        onehot(None)
        a(f'ds_write_b128 v{c0}, v[{R}:{R+3}] offset:{tp*1024}')
        a('s_waitcnt lgkmcnt(0)')
    a(f'v_and_b32 v{js}, 7, v{ln}')
    onehot(None)
    a(f'ds_write_b128 v{c0}, v[{R}:{R+3}] offset:2048')
    a('s_waitcnt lgkmcnt(0)')


def stage_weights(a, tag):
    W, H, J = f's{S_WV}', f's{S_H}', f's{S_J}'
    T0, T1, T2, T3 = f's{S_T0}', f's{S_T1}', f's{S_T2}', f's{S_T3}'
    LN, t1, t2, t3 = 8, 9, 10, 11
    VD = 12
    TB = [14, 15, 16, 17]
    TC = [18, 19, 20, 21]
    VOF = [24 + f for f in range(4)]
    OB = [32 + n for n in range(8)]
    OC = [40 + n for n in range(8)]
    V_WL = 48
    a(f'v_lshrrev_b32 v{LN}, 4, v{V_L16}')
    a(f'v_lshrrev_b32 v{t1}, 4, v{LN}')
    a(f'v_and_b32 v{t2}, 1, v{t1}')
    a(f'v_lshrrev_b32 v{t3}, 1, v{t1}'); a(f'v_lshl_or_b32 v{t2}, v{t3}, 2, v{t2}')
    a(f'v_and_b32 v{t3}, 15, v{LN}'); a(f'v_xor_b32 v{t2}, v{t2}, v{t3}')
    a(f'v_lshlrev_b32 v{t1}, 13, v{t1}'); a(f'v_lshl_add_u32 v{t1}, v{t2}, 4, v{t1}')
    a(f's_lshl_b32 {T0}, {H}, 8')
    a(f'v_add_u32 v{VD}, {T0}, v{t1}')
    a(f'v_lshrrev_b32 v{t1}, 4, v{LN}'); a(f'v_lshlrev_b32 v{t1}, 3, v{t1}')
    a(f'v_bfe_u32 v{t2}, v{LN}, 2, 2'); a(f'v_add_u32 v{t1}, v{t1}, v{t2}')
    a(f'v_lshlrev_b32 v{t1}, 8, v{t1}')
    a(f'v_and_b32 v{t3}, 1, v{t2}'); a(f'v_lshrrev_b32 v{t2}, 1, v{t2}'); a(f'v_lshl_or_b32 v{t2}, v{t2}, 2, v{t3}')
    a(f'v_bfe_u32 v{t3}, v{LN}, 1, 1'); a(f'v_lshlrev_b32 v{t3}, 1, v{t3}')
    a(f's_lshl_b32 {T0}, {W}, 2'); a(f'v_add_u32 v{t3}, {T0}, v{t3}')
    a(f'v_xor_b32 v{t2}, v{t2}, v{t3}')
    a(f'v_lshl_add_u32 v{t1}, v{t2}, 4, v{t1}')
    a(f'v_and_b32 v{t2}, 1, v{LN}'); a(f'v_lshl_add_u32 v{t1}, v{t2}, 3, v{t1}')
    for x in range(2):
        a(f's_and_b32 {T0}, {W}, 1'); a(f's_xor_b32 {T0}, {T0}, {x}'); a(f's_lshl_b32 {T0}, {T0}, 15')
        a(f'v_add_u32 v{TB[2*x]}, {T0}, v{t1}')
        a(f'v_xor_b32 v{TB[2*x+1]}, 16, v{TB[2*x]}')
        a(f'v_add_u32 v{TC[2*x]}, {L_WB}, v{TB[2*x]}')
        a(f'v_add_u32 v{TC[2*x+1]}, {L_WB}, v{TB[2*x+1]}')
    a(f's_lshl_b32 {T0}, {J}, 10'); a(f'v_add_u32 v{t1}, {T0}, v{V_L16}')
    for f in range(4):
        a(f'v_xor_b32 v{VOF[f]}, {f << 5}, v{t1}')
    a(f'v_bfe_u32 v{t1}, v{LN}, 4, 1'); a(f'v_lshlrev_b32 v{t1}, 5, v{t1}')
    a(f'v_lshrrev_b32 v{t2}, 5, v{LN}'); a(f'v_lshl_add_u32 v{t1}, v{t2}, 2, v{t1}')
    a(f'v_bfe_u32 v{t2}, v{LN}, 2, 2'); a(f'v_add_u32 v{t1}, v{t1}, v{t2}')
    a(f'v_lshlrev_b32 v{t1}, 10, v{t1}')
    a(f'v_lshl_add_u32 v{t1}, v{t2}, 5, v{t1}')
    a(f'v_and_b32 v{t2}, 3, v{LN}'); a(f'v_lshl_add_u32 v{t1}, v{t2}, 3, v{t1}')
    a(f's_lshl_b32 {T0}, {W}, 8'); a(f'v_add_u32 v{t1}, {T0}, v{t1}')
    for n in range(8):
        a(f'v_xor_b32 v{OB[n]}, {n << 5}, v{t1}')
        a(f'v_add_u32 v{OC[n]}, {L_WB}, v{OB[n]}')
    a(f's_lshl_b32 {T0}, {W}, 14'); a(f'v_add_u32 v{V_WL}, {T0}, v{V_L16}')

    def load_ptr(ka):
        a(f's_load_dwordx2 s[{S_PTR}:{S_PTR+1}], s[0:1], {ka}')
        a('s_waitcnt lgkmcnt(0)')
        a.srd(S_W, S_PTR, 8 << 20)

    def dma_qkv(P, region):
        a(f's_lshl_b32 {T0}, {J}, 22'); a(f's_lshl_b32 {T1}, {W}, 19'); a(f's_add_u32 {T0}, {T0}, {T1}')
        a(f's_add_u32 {T0}, {T0}, {P << 21}')
        a(f's_lshl_b32 {T1}, {W}, 14'); a(f's_add_u32 m0, {T1}, {region}')
        for i in range(16):
            a(f'buffer_load_dwordx4 v{VD}, s[{S_W}:{S_W+3}], {T0} offen lds')
            if i < 15:
                a(f's_add_u32 {T0}, {T0}, 32768'); a('s_add_u32 m0, m0, 1024'); a('s_nop 0')

    def dma_wo(cp, region):
        a(f's_lshl_b32 {T0}, {H}, 7'); a(f's_lshl_b32 {T1}, {W}, 4'); a(f's_add_u32 {T0}, {T0}, {T1}')
        a(f's_add_u32 {T0}, {T0}, {64*cp}'); a(f's_lshl_b32 {T0}, {T0}, 11')
        a(f's_lshl_b32 {T1}, {W}, 14'); a(f's_add_u32 m0, {T1}, {region}')
        for i in range(16):
            a(f'buffer_load_dwordx4 v{VOF[i & 3]}, s[{S_W}:{S_W+3}], {T0} offen lds')
            if i < 15:
                a(f's_add_u32 {T0}, {T0}, 2048'); a('s_add_u32 m0, m0, 1024'); a('s_nop 0')

    def read_qkv_range(base_pi, tb, dest):
        n = 0
        for pl in range(4):
            pi = base_pi + pl
            for tau in range(2):
                d = dest(pi, tau)
                for hq in range(2):
                    for q in range(2):
                        r = 4*hq + 2*q
                        a(f'ds_read_b64_tr_b16 {d(r)}, v{tb[2*(pl >> 1) + tau]} offset:{(pl & 1)*16384 + hq*8192 + q*1024}')
                a('s_waitcnt lgkmcnt(8)')

    def read_qkv(P, tb, dest, nm):
        l1, l2 = f'{tag}_ST{nm}A', f'{tag}_ST{nm}B'
        a(f's_lshr_b32 {T0}, {W}, 1'); a(f's_cmp_eq_u32 {T0}, {P}')
        a(f's_cbranch_scc0 {l1}')
        read_qkv_range(0, tb, dest)
        a(f's_branch {l2}')
        a.label(l1)
        read_qkv_range(4, tb, dest)
        a.label(l2)

    def read_wo(ad, dest):
        for nu in range(8):
            for hq in range(2):
                for q in range(2):
                    r = dest + 8*nu + 4*hq + 2*q
                    a(f'ds_read_b64_tr_b16 v[{r}:{r+1}], v{ad[nu]} offset:{hq*16384 + q*8192}')
            a('s_waitcnt lgkmcnt(8)')

    dq = lambda pi, t: (lambda r: f'a[{16*pi+8*t+r}:{16*pi+8*t+r+1}]')
    dk = lambda pi, t: (lambda r: f'a[{128+16*pi+8*t+r}:{128+16*pi+8*t+r+1}]')
    def dv(pi, t):
        b = WV_R + 16*pi + 8*t if pi < 4 else SREG + 16*(pi-4) + 8*t
        return lambda r: f'v[{b+r}:{b+r+1}]'

    pieces = [('q', 0), ('q', 1), ('k', 0), ('k', 1), ('v', 0), ('v', 1), ('o', 0), ('o', 1)]
    ptrs = {'q': KA_WQ, 'k': KA_WK, 'v': KA_WV, 'o': KA_WO}
    def issue(n):
        m, P = pieces[n]
        if P == 0: load_ptr(ptrs[m])
        reg = L_WB if n & 1 else L_WA
        if m == 'o': dma_wo(P, reg)
        else: dma_qkv(P, reg)
    issue(0); issue(1)
    for n in range(8):
        m, P = pieces[n]
        a(f's_waitcnt vmcnt({16 if n < 7 else 0})')
        a('s_barrier')
        tb = TC if n & 1 else TB
        if m == 'q': read_qkv(P, tb, dq, n)
        elif m == 'k': read_qkv(P, tb, dk, n)
        elif m == 'v': read_qkv(P, tb, dv, n)
        elif P == 0: read_wo(OB, WO_R)
        else: read_wo(OC, SREG)
        a('s_waitcnt lgkmcnt(0)')
        a('s_barrier')
        if n + 2 < 8: issue(n + 2)
        if n == 6:
            for i in range(16):
                r = SREG + 4*i
                a(f'ds_write_b128 v{V_WL}, v[{r}:{r+3}] offset:{L_WA + i*1024}')
            a('s_waitcnt lgkmcnt(0)')
        if n == 7:
            a(f'v_add_u32 v{V_WL}, {L_WB}, v{V_WL}')
            for i in range(16):
                r = SREG + 4*i
                a(f'ds_write_b128 v{V_WL}, v[{r}:{r+3}] offset:{i*1024}')
            a('s_waitcnt lgkmcnt(0)')


def kv_dma(cfg):
    KV = f's[{S_KV}:{S_KV+3}]'
    out = []
    out.append([f's_mov_b32 m0, s{S_KVB}', 's_nop 0', f'buffer_load_dwordx4 v{V_KDM}, {KV}, s{S_KVK} offen lds'])
    out.append([f's_add_u32 m0, s{S_KVB}, {1024-128}', 's_nop 0', f'buffer_load_dwordx4 v{V_KDM}, {KV}, s{S_KVK} offen offset:128 lds'])
    out.append([f's_add_u32 m0, s{S_KVB}, 2048', 's_nop 0', f'buffer_load_dwordx4 v{V_KDM}, {KV}, s{S_KVV} offen lds'])
    out.append([f's_add_u32 m0, s{S_KVB}, {3072-128}', 's_nop 0', f'buffer_load_dwordx4 v{V_KDM}, {KV}, s{S_KVV} offen offset:128 lds'])
    return out


def svload():
    return [f'ds_read_b128 v[{SREG+4*i}:{SREG+4*i+3}], v{V_T2} offset:{L_WA + i*1024}' for i in range(16)]

def wl_addr(a, dst, add=0):
    a(f's_lshl_b32 s{S_T0}, s{S_WV}, 14')
    if add: a(f's_add_u32 s{S_T0}, s{S_T0}, {add}')
    a(f'v_add_u32 v{dst}, s{S_T0}, v{V_L16}')


def rec_loop(a, cfg, P, sfl, dbg=None):
    SM = f's[{S_SM}:{S_SM+3}]'
    X = f's[{S_X}:{S_X+3}]'
    LO = f's[{S_LO8}:{S_LO8+1}]'
    HI = f's[{S_HI8}:{S_HI8+1}]'
    dbg = dbg or {}
    L = lambda s: f'{P}_{s}'
    def D(name, regs, tmp=V_T):
        if name in dbg:
            lab = a.newlabel(P + 'DBG')
            a(f's_cmp_lg_u32 s{S_STEP}, {dbg[name][1]}')
            a(f's_cbranch_scc1 {lab}')
            dbg_dump(a, regs, dbg[name][0], tmp)
            a.label(lab)
    prof = dbg.get('prof')
    def ST(i):
        if prof is not None: a(f's_memtime s[{64+2*i}:{65+2*i}]')

    MWr, A1, A2, A3 = AM + 8, AM + 12, AM + 20, AM + 28
    NEG = 24
    def top_prep():
        out = []
        out.append(f'v_add_u32 v{MWr}, {L_M}, v{V_AGP}')
        out.append(f'v_xor_b32 v{A1}, 0x800, v{MWr}')
        out.append(f'v_xor_b32 v{A2}, 0x1000, v{MWr}')
        out.append(f'v_xor_b32 v{A3}, 0x1800, v{MWr}')
        for r in range(40, 64, 2):
            out.append(f'v_mov_b64 v[{r}:{r+1}], 0')
        return out

    wl_addr(a, V_T2)
    sv0 = svload()
    a.ext(sv0[:8]); a('s_waitcnt lgkmcnt(0)'); a.ext(sv0[8:])
    a.ext(top_prep())
    for r in range(4): a(f'v_mov_b32 v{NEG+r}, -1')
    if cfg.kvflag is not None:
        a(f's_lshr_b32 s{S_KVFB}, s{S_H}, 1'); a(f's_lshl_b32 s{S_KVFB}, s{S_KVFB}, 4')
        a(f's_add_u32 s{S_KVFB}, s{S_KVFB}, {cfg.kvflag}')
        a(f's_mov_b32 s{S_KVOK}, 0')
    a.label(L('TOP'))
    if cfg.kvflag is not None:
        a(f's_cmp_eq_u32 s{S_KVOK}, 0'); a(f's_cbranch_scc1 {L("KVW")}')
        a.label(L('KVB'))
    ST(0)
    a.label(L('PM'))
    a(f'buffer_load_dwordx4 v[{AM}:{AM+3}], v{V_AGP}, {SM}, s{S_MEMR} offen sc1')
    a(f'buffer_load_dwordx4 v[{AM+4}:{AM+7}], v{V_AGP}, {SM}, s{S_MEMR} offen offset:1024 sc1')
    a('s_waitcnt vmcnt(0)')
    max_chain(a, V_T, list(range(AM, AM + 8)))
    a(f'v_cmp_eq_u32 vcc, -1, v{V_T}')
    poll_end(a, L('PM'), L('PM_D'))
    ST(1)
    a(f'ds_write_b128 v{MWr}, v[{AM}:{AM+3}]')
    a(f'ds_write_b128 v{MWr}, v[{AM+4}:{AM+7}] offset:1024')
    def qk(pi):
        A = AM + 4*pi
        return [smf(AQ0, A, wq(pi, 0)), smf(AQ1, A, wq(pi, 1)), smf(AK0, A, wk(pi, 0)), smf(AK1, A, wk(pi, 1))]
    def qk4(pi): a.ext(qk(pi))
    def vv(pi): return [smf(AV0, AM + 4*pi, wv(pi, 0)), smf(AV1, AM + 4*pi, wv(pi, 1))]
    kvd = kv_dma(cfg) if 'kv' not in cfg.skip else [[], [], [], []]
    xcl = [f'buffer_store_dwordx4 v[{NEG}:{NEG+3}], v{V_L16}, {X}, s{S_XC} offen sc1',
           f'buffer_store_dwordx4 v[{NEG}:{NEG+3}], v{V_L16}, {X}, s{S_XC} offen offset:1024 sc1']
    m = qk(0)
    a(m[0]); a.ext(kvd[0]); a(m[1]); a.ext(kvd[1]); a(m[2]); a(xcl[0]); a(m[3]); a(xcl[1])
    a('s_waitcnt lgkmcnt(0)')
    a('s_barrier')
    ST(2)
    for pi in range(2, 8):
        ad = [A1, A2, A3][(pi >> 1) - 1]
        a(f'ds_read_b128 v[{AM+4*pi}:{AM+4*pi+3}], v{ad} offset:{(pi & 1)*1024}')
    m = qk(1)
    a(m[0]); a.ext(kvd[2]); a(m[1]); a.ext(kvd[3]); a(m[2]); a(m[3])
    a.ext(vv(0)); a.ext(vv(1))
    D('AM', list(range(AM, AM + 32)))
    for pi in range(2, 6):
        a(f's_waitcnt lgkmcnt({7 - pi})')
        qk4(pi)
    a('s_waitcnt lgkmcnt(0)')
    for pi in (6, 7):
        a(smf(AQ0, AM + 4*pi, wq(pi, 0))); a(smf(AQ1, AM + 4*pi, wq(pi, 1)))
    a(smf(AK0, AM + 24, wk(6, 0))); a(smf(AK1, AM + 24, wk(6, 1)))
    a(f'v_permlane32_swap_b32 v{AQ0}, v{AQ1}')
    a(f'v_permlane32_swap_b32 v{AQ0+1}, v{AQ1+1}')
    a(f'v_permlane32_swap_b32 v{AQ0+2}, v{AQ1+2}')
    a(smf(AK0, AM + 28, wk(7, 0)))
    a(f'v_permlane32_swap_b32 v{AQ0+3}, v{AQ1+3}')
    a(pkadd(AQ0, AQ0, AQ1))
    a(smf(AK1, AM + 28, wk(7, 1)))
    a(pkadd(AQ0 + 2, AQ0 + 2, AQ1 + 2))
    a('s_nop 0')
    a(f'v_cvt_pk_bf16_f32 v{XS}, v{AQ0}, v{AQ0+1}')
    VS = []
    for pi in [4, 5, 6, 7, 2, 3]: VS += vv(pi)
    a(VS[0])
    a(f'v_cvt_pk_bf16_f32 v{XS+1}, v{AQ0+2}, v{AQ0+3}')
    a('s_nop 1')
    a(VS[1])
    for r in range(4):
        a(f'v_permlane32_swap_b32 v{AK0+r}, v{AK1+r}')
    a(VS[2])
    a(pkadd(AK0, AK0, AK1)); a(pkadd(AK0 + 2, AK0 + 2, AK1 + 2))
    a('s_nop 0')
    a(f'v_cvt_pk_bf16_f32 v{XS+2}, v{AK0}, v{AK0+1}')
    a(f'v_cvt_pk_bf16_f32 v{XS+3}, v{AK0+2}, v{AK0+3}')
    a(VS[3])
    a(f'buffer_store_dwordx4 v[{XS}:{XS+3}], v{V_L16}, {X}, s{S_XW} offen sc1')
    ST(3)
    D('XS', [XS, XS+1, XS+2, XS+3])
    wl_addr(a, V_T2, L_WB)
    wo_ld = [f'ds_read_b128 v[{SREG+4*i}:{SREG+4*i+3}], v{V_T2} offset:{i*1024}' for i in range(16)]
    a(f'v_add_u32 v{V_T}, {L_C}, v{V_L16}')
    a(VS[4]); a(wo_ld[0]); a(wo_ld[1]); a(wo_ld[2])
    a(VS[5]); a(wo_ld[3]); a(wo_ld[4]); a(wo_ld[5])
    a(VS[6]); a(wo_ld[6]); a(wo_ld[7])
    a(VS[7])
    a(f'ds_read_b128 v[{SEL0}:{SEL0+3}], v{V_T}')
    a(f'ds_read_b128 v[{SEL1}:{SEL1+3}], v{V_T} offset:1024')
    a(VS[8]); a(wo_ld[8]); a(wo_ld[9])
    a(VS[9]); a(wo_ld[10]); a(wo_ld[11])
    a(VS[10])
    a('s_waitcnt lgkmcnt(4)')
    a(wo_ld[12]); a(wo_ld[13])
    a(VS[11])
    a(mf32(D0, XS, SEL0))
    a(wo_ld[14]); a(wo_ld[15])
    a(mf32(D1, XS, SEL1))
    a(f'v_lshrrev_b32 v{V_T2}, 1, v{V_L16}')
    a('s_nop 4')
    for r in range(4):
        a(f'v_permlane32_swap_b32 v{AV0+r}, v{AV1+r}')
    a('s_nop 0')
    a(pkadd(AV0, AV0, AV1)); a(pkadd(AV0 + 2, AV0 + 2, AV1 + 2))
    a('s_nop 0')
    a(f'v_cvt_pk_bf16_f32 v{VA}, v{AV0}, v{AV0+1}')
    a(f'v_cvt_pk_bf16_f32 v{VA+1}, v{AV0+2}, v{AV0+3}')
    a('s_nop 1')
    a(f'v_permlane16_swap_b32 v{VA}, v{VA+1}')
    a('s_nop 1')
    a(f'v_permlane32_swap_b32 v{VA}, v{VA+1}')
    a('s_nop 1')
    a(f'buffer_store_dwordx2 v[{VA}:{VA+1}], v{V_T2}, {X}, s{S_XW} offen offset:1024 sc1')
    ST(4)
    a('s_barrier')
    SW, SR, MR, PVA = XS, XS + 1, XS + 2, XS + 3
    a(f'v_mov_b32 v{PVA}, v{V_T2}')
    a(f'v_lshrrev_b32 v{SR}, 8, v{V_L16}'); a(f'v_lshlrev_b32 v{SR}, 7, v{SR}')
    a(f'v_and_b32 v{V_T}, 0x70, v{V_L16}')
    a(f'v_add_u32 v{SR}, v{SR}, v{V_T}')
    a(f'v_add_u32 v{SW}, s{S_SWB}, v{SR}')
    a(f'v_and_b32 v{V_T2}, 0x80, v{V_L16}')
    a(f'v_lshl_add_u32 v{SR}, v{V_T2}, 2, v{SR}')
    a(f'v_add_u32 v{SR}, {L_M}, v{SR}')
    a(f'v_lshrrev_b32 v{MR}, 9, v{V_L16}'); a(f'v_lshl_add_u32 v{MR}, v{MR}, 7, v{V_T}')
    a(f'v_bfe_u32 v{V_T}, v{V_L16}, 8, 1'); a(f'v_lshl_add_u32 v{MR}, v{V_T}, 3, v{MR}')
    a(f'v_bfe_u32 v{V_T}, v{V_L16}, 7, 1'); a(f'v_lshl_add_u32 v{MR}, v{V_T}, 2, v{MR}')
    a(f'v_add_u32 v{MR}, {L_M + 1280}, v{MR}')
    a(f'v_add_u32 v{V_T}, s{S_KVB}, v{V_L16}')
    a('s_waitcnt vmcnt(1)')
    ST(5)
    a.label(L('PQ'))
    a(f'buffer_load_dwordx4 v[{RX}:{RX+3}], v{V_L16}, {X}, s{S_XR} offen sc1')
    if True:
        a(f'ds_read_b128 v[{KT0}:{KT0+3}], v{V_T}')
        a(f'ds_read_b128 v[{KT1}:{KT1+3}], v{V_T} offset:1024')
        a(f'ds_read_b128 v[{VT0}:{VT0+3}], v{V_T} offset:2048')
        a(f'ds_read_b128 v[{VT1}:{VT1+3}], v{V_T} offset:3072')
    a('s_waitcnt vmcnt(0)')
    max_chain(a, V_T2, [RX, RX+1, RX+2, RX+3])
    a(f'v_cmp_eq_u32 vcc, -1, v{V_T2}')
    poll_end(a, L('PQ'), L('PQ_D'))
    ST(6)
    a('s_waitcnt lgkmcnt(0)')
    a(mf32(D0, RX, SEL0, D0))
    a(mf32(D1, RX, SEL1, D1))
    a(f'buffer_load_dwordx2 v[{RV}:{RV+1}], v{PVA}, {X}, s{S_XR} offen offset:1024 sc1')
    a(f's_cmp_eq_u32 s{S_STEP}, s{S_NST}')
    a('s_nop 2')
    a(f'v_cvt_pk_bf16_f32 v{TT}, v{D0}, v{D0+1}')
    a(f'v_cvt_pk_bf16_f32 v{TT+1}, v{D0+2}, v{D0+3}')
    a('s_nop 0')
    a(f'v_cvt_pk_bf16_f32 v{TT+2}, v{D1}, v{D1+1}')
    a(f'v_cvt_pk_bf16_f32 v{TT+3}, v{D1+2}, v{D1+3}')
    a(f's_cbranch_scc1 {L("TAIL")}')
    a('s_nop 0')
    a(mf32(SA, KT0, TT))
    a(mf32(SB, KT1, TT))
    a(mf32(SMM, TT, TT))
    D('T', [TT, TT+1, TT+2, TT+3], V_T2)
    a(f's_mov_b64 exec, {LO}')
    a('s_nop 1')
    a(f'ds_write_b128 v{SW}, v[{SA}:{SA+3}]')
    a('s_nop 1')
    a(f'ds_write_b128 v{SW}, v[{SB}:{SB+3}] offset:512')
    a('s_nop 2')
    a(f'ds_write_b128 v{SW}, v[{SMM}:{SMM+3}] offset:1024')
    a('s_mov_b64 exec, -1')
    a('s_waitcnt lgkmcnt(0)')
    a('s_barrier')
    ST(7)
    a(f'ds_read2st64_b32 v[{MM}:{MM+1}], v{MR} offset0:0 offset1:6')
    a(f'ds_read2st64_b32 v[{MM+2}:{MM+3}], v{MR} offset0:12 offset1:18')
    for w in range(4):
        r = R0 + 4*w
        a(f'ds_read_b128 v[{r}:{r+3}], v{SR} offset:{w*1536}')
    a(f'v_mov_b32 v{V_T}, v{PVA}') if False else None
    for r in range(WACC[0], WACC[0] + 8, 2):
        a(f'v_mov_b64 v[{r}:{r+1}], 0')
    a('s_waitcnt lgkmcnt(4)')
    a(pkadd(MM, MM, MM + 2))
    a('s_waitcnt lgkmcnt(2)')
    a(pkadd(R0, R0, R1)); a(pkadd(R0 + 2, R0 + 2, R1 + 2))
    a(f'v_add_f32 v{MM}, v{MM}, v{MM+1}')
    M, M2 = MM + 2, MM + 3
    HALF = SUM + 2
    a('s_waitcnt lgkmcnt(0)')
    a(pkadd(R2, R2, R3)); a(pkadd(R2 + 2, R2 + 2, R3 + 2))
    a(pkadd(R0, R0, R2)); a(pkadd(R0 + 2, R0 + 2, R2 + 2))
    a(f'v_mov_b32 v{ONES}, 0x3f803f80')
    a(f'v_max3_f32 v{M}, v{R0}, v{R0+1}, v{MM}')
    a(f'v_mov_b32 v{ONES+1}, 0x3f803f80')
    a(f'v_max3_f32 v{M}, v{M}, v{R0+2}, v{R0+3}')
    D('S', [R0, R0+1, R0+2, R0+3, MM], V_T2)
    a(f'v_mov_b32 v{ONES+2}, 0x3f803f80')
    a(f'v_mov_b32 v{ONES+3}, 0x3f803f80')
    a(f'v_max_f32_dpp v{M}, v{M}, v{M} row_ror:8 row_mask:0xf bank_mask:0xf')
    a(f'v_mov_b32 v{PMQ+2}, 0x3f003f00')
    a(f'v_mov_b32 v{M2}, v{M}')
    a(f'v_mov_b32 v{PMQ+3}, 0x3f003f00')
    a('s_nop 0')
    a(f'v_permlane32_swap_b32 v{M}, v{M2}')
    a('s_nop 0')
    a(f'v_max_f32 v{M}, v{M}, v{M2}')
    a(f'v_mov_b32 v{M2}, v{M}')
    a('s_nop 1')
    a(f'v_permlane16_swap_b32 v{M}, v{M2}')
    a('s_nop 0')
    a(f'v_max_f32 v{M}, v{M}, v{M2}')
    a(f'v_mul_f32 v{M}, s{S_SC}, v{M}')
    E = [R0, R0+1, R0+2, R0+3, MM]
    for e in E:
        a(f'v_fma_f32 v{e}, v{e}, s{S_SC}, -v{M}')
    for e in (MM, R0, R0+1, R0+2, R0+3):
        a(f'v_exp_f32 v{e}, v{e}')
    a(f'v_mov_b32_dpp v{M2}, v{MM} row_ror:8 row_mask:0xf bank_mask:0xf')
    a(f'v_cvt_pk_bf16_f32 v{PB}, v{R0}, v{R0+1}')
    a(f'v_cvt_pk_bf16_f32 v{PB+1}, v{R0+2}, v{R0+3}')
    a(f'v_cvt_pk_bf16_f32 v{PMQ}, v{MM}, v{M2}')
    a(f'v_mov_b32_dpp v{PB+2}, v{PB} row_ror:8 row_mask:0xf bank_mask:0xf')
    a(f'v_mov_b32_dpp v{PB+3}, v{PB+1} row_ror:8 row_mask:0xf bank_mask:0xf')
    a(f'v_cvt_pk_bf16_f32 v{PMQ+1}, v{MM}, v{M2}')
    ST(8)
    a('s_waitcnt vmcnt(0)')
    a(mf32(SUM, ONES, PB))
    a(f'v_max_u32 v{V_T2}, v{RV}, v{RV+1}')
    a(f'v_cmp_eq_u32 vcc, -1, v{V_T2}')
    a(mf32(O0, VT0, PB))
    a(f's_cbranch_vccz {L("PV_D")}')
    a(f'v_lshrrev_b32 v{V_T}, 1, v{V_L16}')
    a.label(L('PV'))
    a(f'buffer_load_dwordx2 v[{RV}:{RV+1}], v{V_T}, {X}, s{S_XR} offen offset:1024 sc1')
    a('s_waitcnt vmcnt(0)')
    a(f'v_max_u32 v{V_T2}, v{RV}, v{RV+1}')
    a(f'v_cmp_eq_u32 vcc, -1, v{V_T2}')
    poll_end(a, L('PV'), L('PV_D'))
    a(f'v_swap_b32 v{VA+1}, v{RV}')
    a(mf32(O1, VT1, PB))
    a(mf16(SUM, PMQ + 2, PMQ, SUM))
    a(mf16(O0, VA, PMQ, O0))
    a(mf16(O1, VA + 2, PMQ, O1))
    ST(9)
    a(f'v_rcp_f32 v{V_T}, v{SUM}')
    a(f'v_add_u32 v{V_T2}, s{S_OWB}, v{V_L16}')
    for r in range(WACC[2], WACC[3] + 4, 2):
        pass
    for r in (48, 50):
        a(f'v_mov_b64 v[{r}:{r+1}], 0')
    for r in (32, 34):
        a(f'v_mov_b64 v[{r}:{r+1}], 0')
    a('s_nop 0')
    D('O', [O0+i for i in range(8)] + [SUM], 36)
    for r in (O0, O0 + 2, O1, O1 + 2):
        a(f'v_pk_mul_f32 v[{r}:{r+1}], v[{r}:{r+1}], v[{V_T}:{V_T+1}] op_sel_hi:[1,0]')
    a(f'v_cvt_pk_bf16_f32 v{OA}, v{O0}, v{O0+1}')
    a(f'v_cvt_pk_bf16_f32 v{OA+1}, v{O1}, v{O1+1}')
    a(f'v_cvt_pk_bf16_f32 v{OA+2}, v{O0+2}, v{O0+3}')
    a(f'v_cvt_pk_bf16_f32 v{OA+3}, v{O1+2}, v{O1+3}')
    a(f's_mov_b64 exec, {LO}')
    a(f'ds_write2_b64 v{V_T2}, v[{OA}:{OA+1}], v[{OA+2}:{OA+3}] offset0:0 offset1:16')
    a('s_mov_b64 exec, -1')
    a(f'v_add_u32 v{V_T}, {L_O}, v{V_L16}')
    for r in (36, 38, 40, 42, 44, 46, 52, 54):
        a(f'v_mov_b64 v[{r}:{r+1}], 0')
    a('s_waitcnt lgkmcnt(0)')
    a('s_barrier')
    ST(10)
    a(f'ds_read_b128 v[{OA}:{OA+3}], v{V_T}')
    a(f'ds_read_b128 v[{OA+4}:{OA+7}], v{V_T} offset:1024')
    if 'pub' not in cfg.skip: publish(a, cfg, P, 'A')
    if cfg.kvflag is not None:
        a(f's_add_u32 s{S_T0}, s{S_STEP}, 1'); a(f's_lshr_b32 s{S_T0}, s{S_T0}, 2'); a(f's_lshl_b32 s{S_T0}, s{S_T0}, 8')
        a(f's_add_u32 s{S_T0}, s{S_T0}, s{S_KVFB}')
        a(f'buffer_load_dwordx2 v[56:57], off, {SM}, s{S_T0} sc1')
    def wo0(nu): a(smf(WACC[nu], OA, v8(WO_R + 8*nu)))
    def wo1(nu): a(smf(WACC[nu], OA + 4, v8(SREG + 8*nu)))
    def pack(p):
        t0, t1 = WACC[2*p], WACC[2*p + 1]
        out = []
        for r in range(4): out.append(f'v_permlane32_swap_b32 v{t0+r}, v{t1+r}')
        out.append(pkadd(t0, t0, t1)); out.append(pkadd(t0 + 2, t0 + 2, t1 + 2))
        out.append(f'v_cvt_pk_bf16_f32 v{t1}, v{t0}, v{t0+1}')
        out.append(f'v_cvt_pk_bf16_f32 v{t1+1}, v{t0+2}, v{t0+3}')
        out.append(f'buffer_store_dwordx2 v[{t1}:{t1+1}], v{V_PTW}, {SM}, s{S_PW+p} offen{sfl}')
        return out
    a('s_waitcnt lgkmcnt(1)')
    wo0(0); wo0(1)
    a('s_waitcnt lgkmcnt(0)')
    D('OA', [OA+i for i in range(8)])
    wo1(0); wo1(1)
    wo0(2); wo0(3)
    for p in range(1, 4):
        pk = pack(p - 1)
        a.ext(pk[0:3]); wo1(2*p); a.ext(pk[3:5]); a('s_nop 0'); wo1(2*p + 1); a(pk[5]); a('s_nop 0'); a.ext(pk[6:8])
        if p < 3:
            wo0(2*p + 2); a(pk[8]); wo0(2*p + 3)
        else:
            a(pk[8])
    wl_addr(a, V_T2)
    sv = svload()
    a.ext(sv[0:4])
    a('s_nop 1')
    pk = pack(3)
    a.ext(pk[0:4]); a('s_nop 0'); a.ext(pk[4:6]); a('s_nop 0'); a.ext(pk[6:9])
    ST(11)
    a.ext(sv[4:14])
    PRA = 28
    ln = 29
    a(f'v_lshrrev_b32 v{ln}, 4, v{V_L16}')
    if cfg.RS_PERM:
        a(f'v_lshrrev_b32 v{PRA}, 4, v{ln}'); a(f'v_lshlrev_b32 v{PRA}, 2, v{PRA}')
        a(f'v_and_b32 v{30}, 3, v{ln}'); a(f'v_add_u32 v{PRA}, v{PRA}, v{30}')
        a(f'v_mul_u32_u24 v{PRA}, {cfg.SH}, v{PRA}')
        a(f'v_bfe_u32 v{30}, v{ln}, 2, 2'); a(f'v_lshl_add_u32 v{PRA}, v{30}, 4, v{PRA}')
    else:
        a(f'v_lshrrev_b32 v{PRA}, 2, v{ln}'); a(f'v_mul_u32_u24 v{PRA}, {cfg.SH}, v{PRA}')
        a(f'v_and_b32 v{30}, 3, v{ln}'); a(f'v_lshl_add_u32 v{PRA}, v{30}, 4, v{PRA}')
    a(f'v_add_u32 v{PRA}, s{S_PRW}, v{PRA}')
    a(f'v_add_u32 v{V_T}, {L_C}, v{V_L16}')
    for r in range(4): a(f'v_mov_b32 v{NEG+r}, -1')
    a('s_waitcnt lgkmcnt(8)')
    a.ext(sv[14:16])
    a(f'ds_read_b128 v[{SELR}:{SELR+3}], v{V_T} offset:2048')
    a('s_waitcnt vmcnt(0)')
    ST(12)
    if cfg.kvflag is not None:
        a('v_and_b32 v56, v56, v57')
        a('s_nop 0')
        a(f'v_readfirstlane_b32 s{S_KVOK}, v56')
    a.label(L('PR'))
    a(f'buffer_load_dwordx4 v[{PR0}:{PR0+3}], v{PRA}, {SM}, s{S_PR} offen sc1')
    a(f'buffer_load_dwordx4 v[{PR1}:{PR1+3}], v{PRA}, {SM}, s{S_PR2} offen sc1')
    a('s_waitcnt vmcnt(0)')
    max_chain(a, V_T, list(range(PR0, PR0 + 8)))
    a(f'v_cmp_eq_u32 vcc, -1, v{V_T}')
    poll_end(a, L('PR'), L('PR_D'))
    ST(13)
    a('s_waitcnt lgkmcnt(0)')
    a(mf32(RD, PR0, SELR))
    a(mf32(RD, PR1, SELR, RD))
    a(f'buffer_store_dwordx4 v[{NEG}:{NEG+3}], v{PRA}, {SM}, s{S_PR} offen{sfl}') if cfg.EARLY_CLR else None
    a(f'buffer_store_dwordx4 v[{NEG}:{NEG+3}], v{PRA}, {SM}, s{S_PR2} offen{sfl}') if cfg.EARLY_CLR else None
    a('s_nop 5' if cfg.EARLY_CLR else 's_nop 7')
    if cfg.RS_PERM:
        a(pkadd(RD, RD, RD + 2))
        a('s_nop 0')
        a(f'v_add_f32 v{RD}, v{RD}, v{RD+1}')
    else:
        a(f'v_permlane32_swap_b32 v{RD}, v{RD+2}')
        a(f'v_permlane32_swap_b32 v{RD+1}, v{RD+3}')
        a('s_nop 0')
        a(pkadd(RD, RD, RD + 2))
        a('s_nop 1')
        a(f'v_permlane16_swap_b32 v{RD}, v{RD+1}')
        a('s_nop 0')
        a(f'v_add_f32 v{RD}, v{RD}, v{RD+1}')
    a('s_nop 1')
    a(f'v_mov_b32_dpp v{RD+1}, v{RD} row_shl:4 row_mask:0xf bank_mask:0xf')
    a('s_nop 0')
    a(f'v_cvt_pk_bf16_f32 v{RD}, v{RD}, v{RD+1}')
    a(f'buffer_store_dword v{RD}, v{V_MFW}, {SM}, s{S_MEMW} offen{sfl}')
    ST(14)
    nclr = 1
    if not cfg.EARLY_CLR:
        a(f'buffer_store_dwordx4 v[{NEG}:{NEG+3}], v{PRA}, {SM}, s{S_PR} offen{sfl}')
        a(f'buffer_store_dwordx4 v[{NEG}:{NEG+3}], v{PRA}, {SM}, s{S_PR2} offen{sfl}')
        nclr = 3
    a(f'buffer_store_dword v{NEG}, v{V_MFW}, {SM}, s{S_MEMR} offen{sfl}')
    if prof is not None:
        lab = a.newlabel(P + 'DBG')
        a(f's_cmp_lg_u32 s{S_STEP}, {prof[1]}')
        a(f's_cbranch_scc1 {lab}')
        a('s_waitcnt lgkmcnt(0)')
        a(f's_mov_b32 s94, s{S_BUD}')
        for i in range(16):
            a(f'v_mov_b32 v{8+i}, s{64+2*i}')
        dbg_dump(a, list(range(8, 24)), prof[0])
        for r in range(4): a(f'v_mov_b32 v{NEG+r}, -1')
        a.label(lab)
    T0 = f's{S_T0}'
    for s in (S_MEMR, S_MEMW):
        a(f's_add_u32 {T0}, s{s}, 16384'); a(f's_and_b32 {T0}, {T0}, 0xffff')
        a(f's_and_b32 s{s}, s{s}, 0xffff0000'); a(f's_or_b32 s{s}, s{s}, {T0}')
    for s in [S_PR, S_PR2] + [S_PW + p for p in range(4)]:
        a(f's_xor_b32 s{s}, s{s}, 0x80000')
    msk = cfg.NS * 32768 - 1
    for s in (S_XW, S_XR, S_XC):
        a(f's_add_u32 {T0}, s{s}, 32768'); a(f's_and_b32 {T0}, {T0}, 0x{msk:x}')
        a(f's_add_u32 s{s}, {T0}, s{S_XBASE}')
    a(f's_add_u32 s{S_QKM}, s{S_QKM}, {32*4096}')
    a(f's_add_u32 s{S_VMG}, s{S_VMG}, {32*2048}')
    a(f's_add_u32 s{S_KVK}, s{S_KVK}, {32*8192}')
    a(f's_add_u32 s{S_KVV}, s{S_KVV}, {32*8192}')
    a(f's_add_u32 s{S_STEP}, s{S_STEP}, 1')
    a.ext(top_prep())
    a(f's_waitcnt vmcnt({nclr})')
    a(f's_branch {L("TOP")}')
    if cfg.kvflag is not None:
        a.label(L('KVW'))
        a(f's_lshr_b32 s{S_T0}, s{S_STEP}, 2'); a(f's_lshl_b32 s{S_T0}, s{S_T0}, 8')
        a(f's_add_u32 s{S_T0}, s{S_T0}, s{S_KVFB}')
        a.label(L('KVP'))
        a(f'buffer_load_dwordx2 v[8:9], off, {SM}, s{S_T0} sc1')
        a('s_waitcnt vmcnt(0)')
        a('v_and_b32 v8, v8, v9')
        a('v_cmp_eq_u32 vcc, 0, v8')
        poll_end(a, L('KVP'), L('KVP_D'))
        a(f's_branch {L("KVB")}')

    a.label(L('TAIL'))
    a(f'v_lshrrev_b32 v{V_T}, 1, v{V_L16}')
    a.label(L('TV'))
    a(f'buffer_load_dwordx2 v[{RV}:{RV+1}], v{V_T}, {X}, s{S_XR} offen offset:1024 sc1')
    a('s_waitcnt vmcnt(0)')
    a(f'v_max_u32 v{V_T2}, v{RV}, v{RV+1}')
    a(f'v_cmp_eq_u32 vcc, -1, v{V_T2}')
    poll_end(a, L('TV'), L('TV_D'))
    a(f'v_swap_b32 v{VA+1}, v{RV}')
    publish(a, cfg, P, 'B')
    a('s_waitcnt vmcnt(0)')


def publish(a, cfg, P, tag):
    SM = f's[{S_SM}:{S_SM+3}]'
    HI = f's[{S_HI8}:{S_HI8+1}]'
    l1, l2 = f'{P}_PUB{tag}1', f'{P}_PUB{tag}2'
    a(f's_cmp_eq_u32 s{S_J}, 0')
    a(f's_cbranch_scc0 {l1}')
    ad, ad2 = 62, 63
    a(f'v_lshrrev_b32 v{ad}, 8, v{V_L16}'); a(f'v_lshlrev_b32 v{ad}, 7, v{ad}')
    a(f'v_and_b32 v{ad2}, 0x70, v{V_L16}'); a(f'v_add_u32 v{ad}, v{ad}, v{ad2}')
    a(f's_mov_b64 exec, {HI}')
    a(f'buffer_store_dwordx4 v[{TT}:{TT+3}], v{ad}, {SM}, s{S_QKM} offen sc1')
    a('s_mov_b64 exec, -1')
    a(f's_branch {l2}')
    a.label(l1)
    t0, t1, t2, t3 = 56, 57, 58, 59
    def add2(x, y, dst):
        a(f'v_lshlrev_b32 v{t0}, 16, v{x}'); a(f'v_and_b32 v{t1}, 0xffff0000, v{x}')
        a(f'v_lshlrev_b32 v{t2}, 16, v{y}'); a(f'v_and_b32 v{t3}, 0xffff0000, v{y}')
        a(f'v_pk_add_f32 v[{t0}:{t1}], v[{t0}:{t1}], v[{t2}:{t3}]')
        a(f'v_cvt_pk_bf16_f32 v{dst}, v{t0}, v{t1}')
    add2(60, 61, 60)
    add2(62, 63, 61)
    ad = 62
    a(f'v_lshrrev_b32 v{ad}, 9, v{V_L16}'); a(f'v_lshlrev_b32 v{ad}, 8, v{ad}')
    a(f'v_bfe_u32 v{t0}, v{V_L16}, 8, 1'); a(f'v_lshl_add_u32 v{ad}, v{t0}, 2, v{ad}')
    a(f'v_bfe_u32 v{t0}, v{V_L16}, 7, 1'); a(f'v_lshl_add_u32 v{ad}, v{t0}, 7, v{ad}')
    a(f'v_bfe_u32 v{t0}, v{V_L16}, 4, 3'); a(f'v_lshl_add_u32 v{ad}, v{t0}, 3, v{ad}')
    a(f'buffer_store_dword v60, v{ad}, {SM}, s{S_VMG} offen sc1')
    a(f'buffer_store_dword v61, v{ad}, {SM}, s{S_VMG} offen offset:64 sc1')
    a.label(l2)


def post_v(a, cfg, P):
    X = f's[{S_X}:{S_X+3}]'
    T0 = f's{S_T0}'
    a(f's_add_u32 s{S_KVK}, s{S_KVK}, {32*8192}')
    a(f's_add_u32 s{S_KVV}, s{S_KVV}, {32*8192}')
    if 'kv' not in cfg.skip:
        for g in kv_dma(cfg): a.ext(g)
    for r in range(16, 20): a(f'v_mov_b32 v{r}, -1')
    a(f'v_lshrrev_b32 v20, 1, v{V_L16}')
    a(f'buffer_store_dwordx4 v[16:19], v{V_L16}, {X}, s{S_XC} offen sc1')
    a(f'buffer_store_dwordx2 v[16:17], v20, {X}, s{S_XC} offen offset:1024 sc1')
    msk = cfg.NS * 32768 - 1
    for s in (S_XW, S_XR, S_XC):
        a(f's_add_u32 {T0}, s{s}, 32768'); a(f's_and_b32 {T0}, {T0}, 0x{msk:x}')
        a(f's_add_u32 s{s}, {T0}, s{S_XBASE}')
    a(f's_add_u32 s{S_QKM}, s{S_QKM}, {32*4096}')
    a(f's_add_u32 s{S_VMG}, s{S_VMG}, {32*2048}')


def near_static(a, val):
    a(f's_mov_b32 s{S_NEAR}, {val}')


def near_measure(a, cfg, P):
    SM = f's[{S_SM}:{S_SM+3}]'
    X = f's[{S_X}:{S_X+3}]'
    T0, T1, T2, T3 = f's{S_T0}', f's{S_T1}', f's{S_T2}', f's{S_T3}'
    l1 = f'{P}_NM1'
    a(f's_lshl_b32 {T0}, s{S_WV}, 1'); a(f's_or_b32 {T0}, {T0}, s{S_J}')
    a(f's_cmp_eq_u32 {T0}, 0'); a(f's_cbranch_scc0 {l1}')
    a(f's_add_u32 {T0}, s{S_XBASE}, {(cfg.NS-1)*32768 + 1536}')
    a('v_mov_b32 v8, 0')
    a(f'buffer_load_dword v9, v8, {X}, {T0} offen offset:384 sc1')
    a('s_waitcnt vmcnt(0)')
    a('s_mov_b32 s70, -1'); a('s_mov_b32 s71, -1')
    for i in range(6):
        for b in range(2):
            off = b*8192 + (i % 3)*128 + (i // 3)*2048
            a(f's_add_u32 {T1}, {T0}, {off}')
            a('s_memtime s[64:65]')
            a('s_waitcnt lgkmcnt(0)')
            a(f'buffer_load_dword v9, v8, {X}, {T1} offen sc1')
            a('s_waitcnt vmcnt(0)')
            a('s_memtime s[66:67]')
            a('s_waitcnt lgkmcnt(0)')
            a('s_sub_u32 s66, s66, s64')
            a(f's_min_u32 s{70+b}, s{70+b}, s66')
    a('s_cmp_lt_u32 s71, s70'); a(f's_cselect_b32 {T2}, 1, 0')
    a(f'v_mov_b32 v9, {T2}')
    a(f's_lshl_b32 {T1}, s{S_H}, 7'); a(f's_add_u32 {T1}, {T1}, {C_CNT + 4096}')
    a('v_cmp_eq_u32 vcc, 0, v%d' % V_L16)
    a('s_and_saveexec_b64 s[64:65], vcc')
    a(f'buffer_store_dword v9, v8, {SM}, {T1} offen sc1')
    a('s_mov_b64 exec, s[64:65]')
    a('s_waitcnt vmcnt(0)')
    a.label(l1)
    lp, dn = f'{P}_NM2', f'{P}_NM3'
    a(f's_lshl_b32 {T1}, s{S_H}, 7'); a(f's_add_u32 {T1}, {T1}, {C_CNT + 4096}')
    a('v_mov_b32 v8, 0')
    a.label(lp)
    a(f'buffer_load_dword v9, v8, {SM}, {T1} offen sc1')
    a('s_waitcnt vmcnt(0)')
    a('v_cmp_eq_u32 vcc, -1, v9')
    poll_end(a, lp, dn)
    a(f'v_readfirstlane_b32 s{S_NEAR}, v9')
    a(f's_and_b32 s{S_NEAR}, s{S_NEAR}, 1')


def gen_recc(nsteps=63, dbg=None, cfg=None, P='RC', near=None, sfl=''):
    cfg = cfg or Cfg()
    a = Asm()
    a('s_cmp_ge_u32 s2, 256')
    a(f's_cbranch_scc1 {P}_EXIT')
    if cfg.dynamic:
        common_setup(a)
        role_dynamic(a, cfg, P, f'{P}_EXIT')
    else:
        role_static(a, f'{P}_EXIT')
        common_setup(a)
    role_setup(a, cfg)
    a(f's_mov_b32 s{S_NST}, {nsteps}')
    const_tables(a)
    stage_weights(a, P)
    if near is None: near_measure(a, cfg, P)
    else: near_static(a, near)
    x_offsets(a, cfg)
    a('s_waitcnt vmcnt(0) lgkmcnt(0)')
    a('s_barrier')
    if cfg.dynamic:
        a(f's_cmp_eq_u32 s{S_MODE}, 1')
        a(f's_cbranch_scc0 {P}_FB')
        rec_loop(a, cfg, P, '', dbg)
        a('s_endpgm')
        a.label(f'{P}_FB')
        rec_loop(a, cfg, P + 'F', ' sc1', None)
    else:
        rec_loop(a, cfg, P, sfl, dbg)
    a.label(f'{P}_EXIT')
    a('s_endpgm')
    return a.text()


def gen_prepc(cfg=None):
    cfg = cfg or Cfg()
    a = Asm()
    a('s_cmp_ge_u32 s2, 256')
    a('s_cbranch_scc1 PREP_END')
    a(f's_load_dwordx2 s[4:5], s[0:1], {KA_WS}')
    a(f's_load_dwordx2 s[6:7], s[0:1], {KA_MEM0}')
    a('s_lshl_b32 s3, s2, 12')
    a('v_lshlrev_b32 v1, 4, v0')
    a('v_add_u32 v1, s3, v1')
    for r in range(4):
        a(f'v_mov_b32 v{4+r}, -1'); a(f'v_mov_b32 v{8+r}, 0')
    a('s_waitcnt lgkmcnt(0)')
    a.srd(8, 4, SM_SIZE, add=WS_SM)
    a.srd(12, 6, 8 * 1024 * 2)
    a.srd(20, 4, 64 << 20, add=WS_X)
    a(f's_mov_b32 s16, {C_PART}')
    a('buffer_store_dwordx4 v[4:7], v1, s[8:11], s16 offen')
    a('s_lshr_b32 s17, s2, 3'); a(f's_mul_i32 s17, s17, {cfg.NS*32768}')
    a('s_and_b32 s18, s2, 7'); a('s_lshl_b32 s18, s18, 12'); a('s_add_u32 s17, s17, s18')
    a('v_lshlrev_b32 v2, 4, v0')
    for i in range(3):
        a('buffer_store_dwordx4 v[4:7], v2, s[20:23], s17 offen')
        a('s_add_u32 s17, s17, 32768')
    a('s_cmp_eq_u32 s2, 16'); a('s_cbranch_scc0 PREP_N1')
    a(f's_mov_b32 s16, {C_CNT}')
    a('buffer_store_dwordx4 v[8:11], v2, s[8:11], s16 offen')
    a.label('PREP_N1')
    a('s_cmp_eq_u32 s2, 17'); a('s_cbranch_scc0 PREP_N2')
    a(f's_mov_b32 s16, {C_CNT + 4096}')
    a('buffer_store_dwordx4 v[4:7], v2, s[8:11], s16 offen')
    a.label('PREP_N2')
    a('s_cmp_ge_u32 s2, 16'); a('s_cbranch_scc1 PREP_END')
    a('s_cmp_lt_u32 s2, 4')
    a('s_cbranch_scc1 PREP_M0')
    a(f's_mov_b32 s16, {C_MEMF}')
    a('buffer_store_dwordx4 v[4:7], v1, s[8:11], s16 offen')
    a('s_branch PREP_END')
    a.label('PREP_M0')
    a('v_lshrrev_b32 v2, 4, v1')
    a('v_and_b32 v3, 7, v2'); a('v_lshlrev_b32 v3, 11, v3')
    a('v_lshrrev_b32 v12, 4, v2'); a('v_lshl_add_u32 v3, v12, 5, v3')
    a('v_bfe_u32 v12, v2, 3, 1'); a('v_lshl_add_u32 v3, v12, 2, v3')
    for t in range(4):
        a(f'buffer_load_dword v{4+t}, v3, s[12:15], 0 offen offset:{t*8}')
    a('s_waitcnt vmcnt(0)')
    for t in range(4):
        a(f'v_min_u32 v{4+t}, -2, v{4+t}')
    a(f's_mov_b32 s16, {C_MEMF}')
    a('buffer_store_dwordx4 v[4:7], v1, s[8:11], s16 offen')
    a.label('PREP_END')
    a('s_endpgm')
    return a.text()
```

```python
from asmlib import *
import tasks, tasks2, k_recc as rc
from gemm2 import Eng, S_WAVE, S_T0, S_T1, S_T2
from tasks import S_RB, S_CB, S_KS, S_PW, S_PWS, S_OSRD, MB, task_gemm
from k_ln import bf16_round, reduce_bits345

FL_KVQ = SM_CNT + 0x2000
FL_SEG = SM_CNT + 0x4000
F_AF, F_WF, F_RF, F_GF, F_DF = 0, 512, 1024, 1536, 2560
FL_END = FL_SEG + 64 * 4096

S_WID, S_RND, S_SEG, S_BUDW, S_EARLY, S_FOFF = 90, 91, 92, 93, 94, 95
S_FL = 96
FLS = f's[{S_FL}:{S_FL+3}]'
L_BC = 0x27F00

def budget(a, lab, done):
    a(f's_cbranch_vccz {done}')
    a(f's_cmp_eq_u32 s{S_BUDW}, 0')
    a(f's_cbranch_scc1 {done}')
    a(f's_sub_u32 s{S_BUDW}, s{S_BUDW}, 1')
    a(f's_branch {lab}')
    a.label(done)

def minchain(a, dst, regs):
    if len(regs) == 1:
        a(f'v_mov_b32 v{dst}, v{regs[0]}'); return
    if len(regs) == 2:
        a(f'v_min_u32 v{dst}, v{regs[0]}, v{regs[1]}'); return
    a(f'v_min3_u32 v{dst}, v{regs[0]}, v{regs[1]}, v{regs[2]}')
    i = 3
    while i + 1 < len(regs):
        a(f'v_min3_u32 v{dst}, v{dst}, v{regs[i]}, v{regs[i+1]}'); i += 2
    if i < len(regs): a(f'v_min_u32 v{dst}, v{dst}, v{regs[i]}')

def flag_load(a, vaddr, vdst, width):
    sfx = {1: 'dword', 4: 'dwordx4'}[width]
    r = f'v{vdst}' if width == 1 else f'v[{vdst}:{vdst+3}]'
    a(f'buffer_load_{sfx} {r}, v{vaddr}, {FLS}, s{S_FOFF} offen sc1')

def flag_test(a, vdst, width, vt):
    if width == 1:
        a(f'v_cmp_eq_u32 vcc, 0, v{vdst}')
    else:
        minchain(a, vt, list(range(vdst, vdst + 4)))
        a(f'v_cmp_eq_u32 vcc, 0, v{vt}')

def poll(a, name, vaddr, vdst, width, vt):
    lab = a.newlabel(name); done = lab + '_D'
    a.label(lab)
    flag_load(a, vaddr, vdst, width)
    a('s_waitcnt vmcnt(0)')
    flag_test(a, vdst, width, vt)
    budget(a, lab, done)

def seg_foff(a, add=0):
    a(f's_lshl_b32 s{S_FOFF}, s{S_SEG}, 12')
    a(f's_add_u32 s{S_FOFF}, s{S_FOFF}, {FL_SEG + add * 4096}')

def set_flag(a, vaddr, vone, off):
    seg_foff(a)
    a('s_mov_b64 exec, 1')
    a(f'buffer_store_dword v{vone}, v{vaddr}, {FLS}, s{S_FOFF} offen offset:{off} sc1')
    a('s_mov_b64 exec, -1')

def role_gemm(a, kind, nseg=64, prof=False):
    N = kind
    NP = 8
    def ST(i):
        if not prof: return
        a('s_memtime s[56:57]'); a('s_waitcnt lgkmcnt(0)')
        a('s_sub_u32 s59, s56, s58'); a(f's_add_u32 s{60+i}, s{60+i}, s59'); a('s_mov_b32 s58, s56')
    KS_, CB_ = 28, 29
    nk = 56 if kind == 'DN' else 64
    nch = nk // 8
    nd = nk // 4
    SW, SX, SO = 4, 8, 12
    T0, T1, T2 = f's{S_T0}', f's{S_T1}', f's{S_T2}'
    W = f's{S_WAVE}'
    LN, L16, VD, VT_, t1, t2 = 1, 2, 3, 4, 5, 6
    VXR, VPA, VPF, VFA, VONE, VOUT = 7, 8, 12, 16, 17, 18
    XF = 20
    AC0, AC1 = 52, 68
    TMP = 84
    a(f's_load_dwordx2 s[{S_PWS}:{S_PWS+1}], s[0:1], {KA_WS}')
    if kind == 'GU':
        a(f's_load_dwordx2 s[{S_PW}:{S_PW+1}], s[0:1], {KA_WG}')
        a(f's_load_dwordx2 s[40:41], s[0:1], {KA_WU}')
    else:
        a(f's_load_dwordx2 s[{S_PW}:{S_PW+1}], s[0:1], {KA_WO if kind == "WO" else KA_WD}')
    a(f'v_and_b32 v{LN}, 63, v0')
    a(f'v_lshlrev_b32 v{L16}, 4, v{LN}')
    a('s_waitcnt lgkmcnt(0)')
    if kind == 'GU':
        a(f's_cmp_ge_u32 {W}, 2')
        a(f's_cselect_b32 s{S_PW}, s40, s{S_PW}')
        a(f's_cselect_b32 s{S_PW+1}, s41, s{S_PW+1}')
    a.srd(SW, S_PW, (8 if kind == 'WO' else 7) * MB)
    xo, xb = {'WO': (WS_OF, 16*MB), 'GU': (WS_HN, 4*MB), 'DN': (WS_ACT, 14*MB)}[kind]
    a.srd(SX, S_PWS, xb, add=xo)
    oo, ob = {'WO': (WS_P1, 32*MB), 'GU': (WS_ACT, 14*MB), 'DN': (WS_P2, 32*MB)}[kind]
    a.srd(SO, S_PWS, ob, add=oo)
    S_GO, S_M0 = 42, 43
    if kind == 'GU':
        a(f'v_lshrrev_b32 v{t1}, 3, v{LN}'); a(f'v_mul_u32_u24 v{VD}, 7168, v{t1}')
        a(f'v_and_b32 v{t1}, 7, v{LN}'); a(f'v_lshl_add_u32 v{VD}, v{t1}, 4, v{VD}')
        a(f's_lshl_b32 {T0}, s{CB_}, 7')
        a(f's_and_b32 {T1}, {W}, 1'); a(f's_mul_i32 {T1}, {T1}, {64*7168}')
        a(f's_add_u32 s{S_GO}, {T0}, {T1}')
        a(f's_lshl_b32 s{S_M0}, {W}, 13')
        istep, cstep = 8 * 7168, 128 * 7168
        a(f'v_bfe_u32 v{t1}, v{LN}, 2, 2'); a(f'v_lshrrev_b32 v{t2}, 5, v{LN}')
        a(f'v_lshl_add_u32 v{t1}, v{t2}, 2, v{t1}'); a(f'v_lshlrev_b32 v{VT_}, 7, v{t1}')
        a(f'v_bfe_u32 v{t1}, v{LN}, 4, 1'); a(f'v_lshl_add_u32 v{VT_}, v{t1}, 14, v{VT_}')
        a(f'v_and_b32 v{t1}, 3, v{LN}'); a(f'v_lshl_add_u32 v{VT_}, v{t1}, 3, v{VT_}')
        a(f's_lshl_b32 {T0}, {W}, 5'); a(f'v_add_u32 v{VT_}, {T0}, v{VT_}')
        kkoff, h2off = 2048, 1024
    else:
        rows0 = 1024 if kind == 'WO' else 896
        a(f'v_lshrrev_b32 v{t1}, 4, v{LN}'); a(f'v_lshlrev_b32 v{t2}, 2, v{t1}')
        a(f'v_and_b32 v{VD}, 15, v{LN}'); a(f'v_xor_b32 v{VD}, v{VD}, v{t2}'); a(f'v_lshlrev_b32 v{VD}, 4, v{VD}')
        a(f'v_lshl_add_u32 v{VD}, v{t1}, 11, v{VD}')
        a(f's_mul_i32 {T0}, s{KS_}, {rows0 * 2048}'); a(f's_lshl_b32 {T1}, s{CB_}, 8'); a(f's_add_u32 {T0}, {T0}, {T1}')
        a(f's_lshl_b32 {T1}, {W}, 16'); a(f's_add_u32 s{S_GO}, {T0}, {T1}')
        a(f's_lshl_b32 s{S_M0}, {W}, 13')
        istep, cstep = 4 * 2048, 128 * 2048
        a(f'v_bfe_u32 v{t1}, v{LN}, 2, 2')
        a(f'v_lshrrev_b32 v{t2}, 5, v{LN}'); a(f'v_lshl_add_u32 v{t2}, v{t2}, 2, v{t1}'); a(f'v_lshlrev_b32 v{VT_}, 8, v{t2}')
        a(f'v_xor_b32 v{t1}, {W}, v{t1}'); a(f'v_lshl_add_u32 v{VT_}, v{t1}, 6, v{VT_}')
        a(f'v_bfe_u32 v{t1}, v{LN}, 4, 1'); a(f'v_lshl_add_u32 v{VT_}, v{t1}, 5, v{VT_}')
        a(f'v_and_b32 v{t1}, 3, v{LN}'); a(f'v_lshl_add_u32 v{VT_}, v{t1}, 3, v{VT_}')
        kkoff, h2off = 4096, 2048
    def wdma(q):
        a(f's_add_u32 {T0}, s{S_GO}, {q * cstep}')
        a(f's_add_u32 m0, s{S_M0}, {(q & 3) * 32768}')
        for i in range(8):
            a('s_nop 0')
            a(f'buffer_load_dwordx4 v{VD}, s[{SW}:{SW+3}], {T0} offen lds')
            if i < 7:
                a(f's_add_u32 {T0}, {T0}, {istep}'); a('s_add_u32 m0, m0, 1024')
    for q in range(min(4, nch)): wdma(q)
    for q in range(nch):
        left = min(nch, q + 4) - (q + 1)
        left = min(nch, max(4, q + 4)) - (q + 1)
        a(f's_waitcnt vmcnt({8 * left})')
        a('s_barrier')
        a(f'v_add_u32 v{t1}, {(q & 3) * 32768}, v{VT_}')
        for kk in range(8):
            kb = 8 * q + kk
            a(f'ds_read_b64_tr_b16 a[{4*kb}:{4*kb+1}], v{t1} offset:{kk * kkoff}')
            a(f'ds_read_b64_tr_b16 a[{4*kb+2}:{4*kb+3}], v{t1} offset:{kk * kkoff + h2off}')
            if kk % 4 == 3: a('s_waitcnt lgkmcnt(0)')
        a('s_barrier')
        if q + 4 < nch: wdma(q + 4)
    S_XO, S_XM0, S_OO = 44, 45, 46
    xstride = {'WO': 262144, 'GU': 65536, 'DN': 229376}[kind]
    if kind == 'WO':   a(f's_lshl_b32 s{S_XO}, s{KS_}, 16')
    elif kind == 'DN': a(f's_mul_i32 s{S_XO}, s{KS_}, {56*1024}')
    else:              a(f's_mov_b32 s{S_XO}, 0')
    a(f's_lshl_b32 {T0}, {W}, 10'); a(f's_add_u32 s{S_XO}, s{S_XO}, {T0}')
    a(f's_lshl_b32 s{S_XM0}, {W}, 10')
    if kind == 'GU':
        a(f's_lshl_b32 {T0}, s{CB_}, 2'); a(f's_add_u32 {T0}, {T0}, {W}'); a(f's_lshl_b32 s{S_OO}, {T0}, 10')
        ostride = 229376
    else:
        a(f's_lshl_b32 {T0}, s{KS_}, 23'); a(f's_lshl_b32 {T1}, s{CB_}, 14'); a(f's_add_u32 {T0}, {T0}, {T1}')
        a(f's_lshl_b32 {T1}, {W}, 12'); a(f's_add_u32 s{S_OO}, {T0}, {T1}')
        ostride = 1 << 17
    if kind == 'WO':
        a(f'v_and_b32 v{VPA}, 7, v{LN}'); a(f'v_lshlrev_b32 v{VPA}, 2, v{VPA}')
        a(f's_lshl_b32 {T0}, s{KS_}, 5'); a(f's_add_u32 {T0}, {T0}, {F_AF}'); a(f'v_add_u32 v{VPA}, {T0}, v{VPA}')
        pw = 1
    elif kind == 'GU':
        a(f'v_and_b32 v{VPA}, 3, v{LN}'); a(f'v_lshlrev_b32 v{VPA}, 4, v{VPA}'); a(f'v_add_u32 v{VPA}, {F_RF}, v{VPA}')
        pw = 4
    else:
        a(f'v_min_u32 v{VPA}, 13, v{LN}'); a(f'v_lshlrev_b32 v{VPA}, 4, v{VPA}')
        a(f's_mul_i32 {T0}, s{KS_}, {14*16}'); a(f's_add_u32 {T0}, {T0}, {F_GF}'); a(f'v_add_u32 v{VPA}, {T0}, v{VPA}')
        pw = 4
    if kind == 'GU':
        a(f's_lshl_b32 {T0}, s{CB_}, 4'); fo = F_GF
    else:
        a(f's_lshl_b32 {T0}, s{KS_}, 3'); a(f's_add_u32 {T0}, {T0}, s{CB_}'); a(f's_lshl_b32 {T0}, {T0}, 4')
        fo = F_WF if kind == 'WO' else F_DF
    a(f's_lshl_b32 {T1}, {W}, 2'); a(f's_add_u32 {T0}, {T0}, {T1}'); a(f'v_mov_b32 v{VFA}, {T0}')
    a(f'v_mov_b32 v{VONE}, 1')
    a(f'v_mov_b32 v{VOUT}, {L_BC}')
    a(f's_mov_b32 s{S_SEG}, 0'); a(f's_mov_b32 s{S_EARLY}, 0')

    def xdma(par_sreg_add):
        add = par_sreg_add
        a(f's_add_u32 {T1}, s{S_SEG}, {add}')
        a(f's_mul_i32 {T0}, {T1}, {xstride}'); a(f's_add_u32 {T0}, {T0}, s{S_XO}')
        a(f's_and_b32 {T1}, {T1}, 1'); a(f's_lshl_b32 {T1}, {T1}, 16'); a(f's_add_u32 m0, {T1}, s{S_XM0}')
        for i in range(nd):
            a('s_nop 0')
            a(f'buffer_load_dwordx4 v{L16}, s[{SX}:{SX+3}], {T0} offen lds')
            if i < nd - 1:
                a(f's_add_u32 {T0}, {T0}, 4096'); a('s_add_u32 m0, m0, 4096')

    top, have = f'{N}_TOP', f'{N}_HAVE'
    if prof:
        for i in range(NP + 1): a(f's_mov_b32 s{60+i}, 0')
        a('s_memtime s[56:57]'); a('s_waitcnt lgkmcnt(0)'); a('s_mov_b32 s58, s56')
    a.label(top)
    a(f's_cmp_lg_u32 s{S_EARLY}, 0'); a(f's_cbranch_scc1 {have}')
    nw = f'{N}_NW0'
    a(f's_cmp_lg_u32 {W}, 0'); a(f's_cbranch_scc1 {nw}')
    seg_foff(a)
    poll(a, N + '_P', VPA, VPF, pw, t1)
    a.label(nw)
    a('s_barrier')
    xdma(0)
    a.label(have)
    ST(0)
    nw2 = f'{N}_NW1'
    a(f's_cmp_lg_u32 {W}, 0'); a(f's_cbranch_scc1 {nw2}')
    seg_foff(a, 1)
    flag_load(a, VPA, VPF, pw)
    a.label(nw2)
    a(f's_and_b32 {T0}, s{S_SEG}, 1'); a(f's_lshl_b32 {T0}, {T0}, 16')
    a(f'v_add_u32 v{VXR}, {T0}, v{L16}')
    nchunk = 4
    per = nk // nchunk
    dper = nd // nchunk if nd % nchunk == 0 else None
    def rd(kb):
        r = XF + 4 * (kb % 8)
        return f'ds_read_b128 v[{r}:{r+3}], v{VXR} offset:{kb * 1024}'
    def mf(kb):
        r = XF + 4 * (kb % 8); ac = AC0 if kb % 2 == 0 else AC1
        c = '0' if kb < 2 else f'v[{ac}:{ac+15}]'
        return f'v_mfma_f32_32x32x16_bf16 v[{ac}:{ac+15}], a[{4*kb}:{4*kb+3}], v[{r}:{r+3}], {c}'
    bounds = [0, 16, 32, 48, nk] if nk == 64 else [0, 16, 32, 44, 56]
    for c in range(nchunk):
        k0, k1 = bounds[c], bounds[c + 1]
        need = (k1 + 3) // 4
        a(f's_waitcnt vmcnt({nd - need})')
        if c == nchunk - 1:
            nw3 = f'{N}_NW2'
            a(f's_cmp_lg_u32 {W}, 0'); a(f's_cbranch_scc1 {nw3}')
            a('s_waitcnt vmcnt(0)')
            flag_test(a, VPF, pw, t1)
            a(f's_cmp_eq_u64 vcc, 0'); a(f's_cselect_b32 {T0}, 1, 0')
            a(f'v_mov_b32 v{t1}, {T0}')
            a(f'ds_write_b32 v{VOUT}, v{t1}')
            a('s_waitcnt lgkmcnt(0)')
            a.label(nw3)
        a('s_barrier')
        if c == 0: ST(1)
        if c == nchunk - 1: ST(2)
        if c == nchunk - 1:
            a(f'ds_read_b32 v{t2}, v{VOUT}')
        D = 6
        ks = list(range(k0, k1))
        for kb in ks[:D]: a(rd(kb))
        for i, kb in enumerate(ks):
            rem = min(len(ks), i + D) - (i + 1)
            a(f's_waitcnt lgkmcnt({rem})')
            a(mf(kb))
            if i + D < len(ks): a(rd(ks[i + D]))
    ST(3)
    a(f'v_readfirstlane_b32 s{S_EARLY}, v{t2}')
    if prof: a(f's_add_u32 s68, s68, s{S_EARLY}')
    a(f's_cmp_ge_u32 s{S_SEG}, {nseg - 1}'); a(f's_cselect_b32 s{S_EARLY}, 0, s{S_EARLY}')
    a(f's_mul_i32 {T2}, s{S_SEG}, {ostride}'); a(f's_add_u32 {T2}, {T2}, s{S_OO}')
    a('s_nop 7'); a('s_nop 7')
    for r in range(16):
        a(f'v_add_f32 v{AC0+r}, v{AC0+r}, v{AC1+r}')
    if kind == 'GU':
        G, U, T = AC0, AC0 + 8, TMP
        for r in range(8):
            a(f'v_cvt_pk_bf16_f32 v{T+r}, v{AC0+2*r}, v{AC0+2*r+1}')
        for r in range(4):
            a(f'v_lshlrev_b32 v{G+2*r}, 16, v{T+r}'); a(f'v_and_b32 v{G+2*r+1}, 0xffff0000, v{T+r}')
        for r in range(8): a(f'v_mul_f32 v{G+r}, 0xbfb8aa3b, v{G+r}')
        for r in range(4):
            a(f'v_lshlrev_b32 v{U+2*r}, 16, v{T+4+r}'); a(f'v_and_b32 v{U+2*r+1}, 0xffff0000, v{T+4+r}')
        for r in range(8): a(f'v_exp_f32 v{G+r}, v{G+r}')
        for r in range(8): a(f'v_add_f32 v{G+r}, 1.0, v{G+r}')
        for r in range(8): a(f'v_rcp_f32 v{G+r}, v{G+r}')
        a('s_nop 0')
        for r in range(4): a(f'v_cvt_pk_bf16_f32 v{T+r}, v{G+2*r}, v{G+2*r+1}')
        for r in range(4):
            a(f'v_lshlrev_b32 v{G+2*r}, 16, v{T+r}'); a(f'v_and_b32 v{G+2*r+1}, 0xffff0000, v{T+r}')
        for r in range(8): a(f'v_mul_f32 v{G+r}, v{G+r}, v{U+r}')
        for r in range(4): a(f'v_cvt_pk_bf16_f32 v{T+r}, v{G+2*r}, v{G+2*r+1}')
        a(f'buffer_store_dwordx4 v[{T}:{T+3}], v{L16}, s[{SO}:{SO+3}], {T2} offen sc1')
    else:
        for q in range(4):
            a(f'buffer_store_dwordx4 v[{AC0+4*q}:{AC0+4*q+3}], v{L16}, s[{SO}:{SO+3}], {T2} offen offset:{q*1024} sc1')
    ST(4)
    late, fin = f'{N}_LATE', f'{N}_FIN'
    a(f's_cmp_eq_u32 s{S_EARLY}, 0'); a(f's_cbranch_scc1 {late}')
    xdma(1)
    a(f's_waitcnt vmcnt({nd})')
    a(f's_branch {fin}')
    a.label(late)
    a('s_waitcnt vmcnt(0)')
    a.label(fin)
    ST(5)
    set_flag(a, VFA, VONE, fo)
    a(f's_add_u32 s{S_SEG}, s{S_SEG}, 1')
    a(f's_cmp_lt_u32 s{S_SEG}, {nseg}'); a(f's_cbranch_scc1 {top}')
    if prof:
        a('s_waitcnt vmcnt(0)')
        a.srd(4, S_PWS, 1 << 20, add=0xF000000)
        a(f's_lshl_b32 {T0}, s2, 2'); a(f's_add_u32 {T0}, {T0}, {W}'); a(f's_lshl_b32 {T0}, {T0}, 6')
        a('v_mov_b32 v1, 0')
        a('s_mov_b64 exec, 1')
        for i in range(9):
            a(f'v_mov_b32 v2, s{60+i}')
            a(f'buffer_store_dword v2, v1, s[4:7], {T0} offen offset:{4*i}')
        a('s_mov_b64 exec, -1')
        a('s_waitcnt vmcnt(0)')


SCALE = '0x3db504f3'
LOG2E = '0x3fb8aa3b'
def role_att(a, nseg=64, prof=False):
    T0, T1, T2 = f's{S_T0}', f's{S_T1}', f's{S_T2}'
    S_HD, S_FM, S_KMO, S_VMO = 40, 41, 43, 44
    SQ, SK, SV, SO = 4, 8, 12, S_OSRD
    VA, VKM, VVM, VD, VFA, VONE, VKF = 2, 3, 6, 7, 8, 9, 10
    Q, K, KMr, VT, VM = 16, 48, 80, 112, 144
    S, SM = 160, 176
    P, PM = 192, 200
    O = 16
    T = 208
    R = 224
    def ST(i):
        if not prof: return
        a('s_memtime s[84:85]'); a('s_waitcnt lgkmcnt(0)')
        a('s_sub_u32 s87, s84, s86'); a(f's_add_u32 s{100}, s87, 0') if False else None
    a(f's_load_dwordx2 s[{S_PWS}:{S_PWS+1}], s[0:1], {KA_WS}')
    a('v_and_b32 v1, 63, v0')
    a(f's_lshl_b32 {T0}, s28, 2'); a(f's_add_u32 s{S_HD}, {T0}, s{S_WAVE}')
    a(f'v_lshlrev_b32 v{VA}, 4, v1')
    a('v_lshrrev_b32 v4, 5, v1')
    a(f'v_and_b32 v{VKM}, 7, v1'); a(f'v_lshlrev_b32 v{VKM}, 4, v{VKM}'); a(f'v_lshl_add_u32 v{VKM}, v4, 7, v{VKM}')
    a('v_and_b32 v5, 31, v1')
    a(f'v_lshlrev_b32 v{VVM}, 3, v5'); a(f'v_lshl_add_u32 v{VVM}, v4, 8, v{VVM}')
    a(f'v_lshlrev_b32 v{VD}, 2, v4'); a(f'v_sub_u32 v{VD}, v5, v{VD}')
    a(f's_lshl_b32 {T0}, s{S_HD}, 2'); a(f'v_mov_b32 v{VFA}, {T0}')
    a(f'v_mov_b32 v{VONE}, 1')
    a(f's_lshr_b32 {T0}, s{S_HD}, 1'); a(f's_lshl_b32 {T0}, {T0}, 4'); a(f'v_mov_b32 v{VKF}, {T0}')
    a('s_waitcnt lgkmcnt(0)')
    a.srd(SQ, S_PWS, 16*MB, add=WS_QF)
    a.srd(SK, S_PWS, 16*MB, add=WS_KF)
    a.srd(SV, S_PWS, 16*MB, add=WS_VT)
    a.srd(SO, S_PWS, 16*MB, add=WS_OF)
    for r in range(16):
        cr = (r & 3) + 8 * (r >> 2)
        a(f'v_cmp_le_i32 s[{52+2*r}:{53+2*r}], {cr}, v{VD}')
    for t in range(4):
        a(f'v_mov_b32 v{VM+4*t+2}, 0'); a(f'v_mov_b32 v{VM+4*t+3}, 0')
    a(f'v_mov_b32 v{PM+2}, 0'); a(f'v_mov_b32 v{PM+3}, 0')
    a(f's_mov_b32 s{S_SEG}, 0')
    def offs(add):
        a(f's_add_u32 {T0}, s{S_SEG}, {add}'); a(f's_lshl_b32 {T0}, {T0}, 5'); a(f's_add_u32 {T0}, {T0}, s{S_HD}')
        a(f's_lshl_b32 s{S_FM}, {T0}, 13')
    def qkv_loads():
        a(f's_add_u32 s42, s{S_FM}, 0x1000')
        so = lambda i: f's{S_FM}' if i < 4 else 's42'
        for kb in range(8):
            a(f'buffer_load_dwordx4 v[{K+4*kb}:{K+4*kb+3}], v{VA}, s[{SK}:{SK+3}], {so(kb)} offen offset:{(kb&3)*1024}')
            a(f'buffer_load_dwordx4 v[{Q+4*kb}:{Q+4*kb+3}], v{VA}, s[{SQ}:{SQ+3}], {so(kb)} offen offset:{(kb&3)*1024}')
        for i in range(8):
            a(f'buffer_load_dwordx4 v[{VT+4*i}:{VT+4*i+3}], v{VA}, s[{SV}:{SV+3}], {so(i)} offen offset:{(i&3)*1024}')
    def kvq_wait(add):
        lab = a.newlabel('AT_NB')
        a(f's_add_u32 {T0}, s{S_SEG}, {add}'); a(f's_and_b32 {T1}, {T0}, 3')
        a(f's_cmp_lg_u32 {T1}, 0'); a(f's_cbranch_scc1 {lab}')
        a(f's_lshr_b32 {T0}, {T0}, 2'); a(f's_lshl_b32 {T0}, {T0}, 8'); a(f's_add_u32 s{S_FOFF}, {T0}, {FL_KVQ}')
        lp = a.newlabel('AT_KF'); dn = lp + '_D'
        a.label(lp)
        a(f'buffer_load_dwordx4 v[{T}:{T+3}], v{VKF}, {FLS}, s{S_FOFF} offen sc1')
        a('s_waitcnt vmcnt(0)')
        a(f'v_min3_u32 v{T}, v{T}, v{T+1}, v{T+2}')
        a(f'v_cmp_eq_u32 vcc, 0, v{T}')
        budget(a, lp, dn)
        a.label(lab)
    kvq_wait(0); offs(0); qkv_loads()
    a.label('AT_TOP')
    for kb in range(8):
        a(f's_waitcnt vmcnt({8 + 2*(7-kb)})')
        c = '0' if kb == 0 else f'v[{S}:{S+15}]'
        a(f'v_mfma_f32_32x32x16_bf16 v[{S}:{S+15}], v[{K+4*kb}:{K+4*kb+3}], v[{Q+4*kb}:{Q+4*kb+3}], {c}')
    a(f's_lshl_b32 {T0}, s{S_SEG}, 5'); a(f's_add_u32 {T0}, {T0}, s{S_HD}')
    a(f's_lshl_b32 s{S_KMO}, {T0}, 12'); a(f's_add_u32 s{S_KMO}, s{S_KMO}, {SM_QKM + 2048}')
    a(f's_lshl_b32 s{S_VMO}, {T0}, 11'); a(f's_add_u32 s{S_VMO}, s{S_VMO}, {SM_VMG}')
    def kmvm():
        for kb in range(8):
            a(f'buffer_load_dwordx4 v[{KMr+4*kb}:{KMr+4*kb+3}], v{VKM}, {FLS}, s{S_KMO} offen offset:{kb*256} sc1')
        for t in range(4):
            a(f'buffer_load_dwordx2 v[{VM+4*t}:{VM+4*t+1}], v{VVM}, {FLS}, s{S_VMO} offen offset:{t*512} sc1')
    kmvm()
    a('s_nop 7')
    def rnd(base, n):
        for r in range(n // 2):
            a(f'v_cvt_pk_bf16_f32 v{T+r}, v{base+2*r}, v{base+2*r+1}')
        for r in range(n // 2):
            a(f'v_lshlrev_b32 v{base+2*r}, 16, v{T+r}')
            a(f'v_and_b32 v{base+2*r+1}, 0xffff0000, v{T+r}')
    rnd(S, 16)
    for r in range(16): a(f'v_mul_f32 v{S+r}, {SCALE}, v{S+r}')
    rnd(S, 16)
    a(f'v_mov_b32 v{T+10}, 0xce6e6b28')
    for r in range(16):
        a(f'v_cndmask_b32 v{S+r}, v{T+10}, v{S+r}, s[{52+2*r}:{53+2*r}]')
    M = T + 11
    a(f'v_max3_f32 v{M}, v{S}, v{S+1}, v{S+2}')
    a(f'v_max3_f32 v{M+1}, v{S+3}, v{S+4}, v{S+5}')
    for r in range(6, 14, 4):
        a(f'v_max3_f32 v{M}, v{M}, v{S+r}, v{S+r+1}')
        a(f'v_max3_f32 v{M+1}, v{M+1}, v{S+r+2}, v{S+r+3}')
    a(f'v_max3_f32 v{M}, v{M}, v{S+14}, v{S+15}')
    a(f'v_max_f32 v{M}, v{M}, v{M+1}')
    kmr = list(range(KMr, KMr + 32)) + [VM + 4*t + q for t in range(4) for q in range(2)]
    def notready():
        a('s_waitcnt vmcnt(0)')
        rc.max_chain(a, T, kmr)
        a(f'v_cmp_eq_u32 vcc, -1, v{T}')
    notready()
    a('s_cbranch_vccz AT_GO')
    a.label('AT_PL')
    kmvm()
    notready()
    budget(a, 'AT_PL', 'AT_GO')
    for kb in range(8):
        c = '0' if kb == 0 else f'v[{SM}:{SM+15}]'
        a(f'v_mfma_f32_32x32x16_bf16 v[{SM}:{SM+15}], v[{KMr+4*kb}:{KMr+4*kb+3}], v[{Q+4*kb}:{Q+4*kb+3}], {c}')
    a('s_nop 7'); a('s_nop 7')
    rnd(SM, 4)
    for r in range(4): a(f'v_mul_f32 v{SM+r}, {SCALE}, v{SM+r}')
    rnd(SM, 4)
    a(f'v_max3_f32 v{M}, v{M}, v{SM}, v{SM+1}')
    a(f'v_max3_f32 v{M}, v{M}, v{SM+2}, v{SM+3}')
    a(f'v_mov_b32 v{M+1}, v{M}')
    a('s_nop 1')
    a(f'v_permlane32_swap_b32 v{M}, v{M+1}')
    a('s_nop 1')
    a(f'v_max_f32 v{M}, v{M}, v{M+1}')
    N = 20
    for r in range(N): a(f'v_sub_f32 v{S+r}, v{S+r}, v{M}')
    for r in range(N): a(f'v_mul_f32 v{S+r}, {LOG2E}, v{S+r}')
    for r in range(N): a(f'v_exp_f32 v{S+r}, v{S+r}')
    a(f'v_add_f32 v{M}, v{S}, v{S+1}')
    a(f'v_add_f32 v{M+1}, v{S+2}, v{S+3}')
    for r in range(4, N, 2):
        a(f'v_add_f32 v{M}, v{M}, v{S+r}')
        a(f'v_add_f32 v{M+1}, v{M+1}, v{S+r+1}')
    a(f'v_add_f32 v{M}, v{M}, v{M+1}')
    a(f'v_mov_b32 v{M+1}, v{M}')
    a('s_nop 1')
    a(f'v_permlane32_swap_b32 v{M}, v{M+1}')
    a('s_nop 1')
    a(f'v_add_f32 v{M}, v{M}, v{M+1}')
    a(f'v_rcp_f32 v{M}, v{M}')
    a('s_nop 0')
    for r in range(N): a(f'v_mul_f32 v{S+r}, v{S+r}, v{M}')
    for r in range(8): a(f'v_cvt_pk_bf16_f32 v{P+r}, v{S+2*r}, v{S+2*r+1}')
    a(f'v_cvt_pk_bf16_f32 v{PM}, v{S+16}, v{S+17}')
    a(f'v_cvt_pk_bf16_f32 v{PM+1}, v{S+18}, v{S+19}')
    a('s_nop 1')
    for t in range(4):
        o = O + 16*t
        a(f'v_mfma_f32_32x32x16_bf16 v[{o}:{o+15}], v[{VT+8*t}:{VT+8*t+3}], v[{P}:{P+3}], 0')
    for t in range(4):
        o = O + 16*t
        a(f'v_mfma_f32_32x32x16_bf16 v[{o}:{o+15}], v[{VT+8*t+4}:{VT+8*t+7}], v[{P+4}:{P+7}], v[{o}:{o+15}]')
    for t in range(4):
        o = O + 16*t
        a(f'v_mfma_f32_32x32x16_bf16 v[{o}:{o+15}], v[{VM+4*t}:{VM+4*t+3}], v[{PM}:{PM+3}], v[{o}:{o+15}]')
    a(f's_add_u32 s42, s{S_FM}, 0x1000')
    a('s_nop 7')
    for t in range(4):
        o = O + 16*t
        if t == 3: a('s_nop 7')
        for r in range(8):
            a(f'v_cvt_pk_bf16_f32 v{R+8*t+r}, v{o+2*r}, v{o+2*r+1}')
        for hlf in range(2):
            i = 2*t + hlf
            so = f's{S_FM}' if i < 4 else 's42'
            a(f'buffer_store_dwordx4 v[{R+8*t+4*hlf}:{R+8*t+4*hlf+3}], v{VA}, s[{SO}:{SO+3}], {so} offen offset:{(i&3)*1024} sc1')
    a(f's_cmp_ge_u32 s{S_SEG}, {nseg - 1}'); a('s_cbranch_scc1 AT_LAST')
    a(f's_add_u32 {T0}, s{S_SEG}, 1'); a(f's_and_b32 {T0}, {T0}, 3')
    a(f's_cmp_lg_u32 {T0}, 0'); a('s_cbranch_scc1 AT_NF')
    a('s_waitcnt vmcnt(0)')
    set_flag(a, VFA, VONE, F_AF)
    kvq_wait(1); offs(1); qkv_loads()
    a('s_branch AT_NX')
    a.label('AT_NF')
    offs(1); qkv_loads()
    a('s_waitcnt vmcnt(24)')
    set_flag(a, VFA, VONE, F_AF)
    a.label('AT_NX')
    a(f's_add_u32 s{S_SEG}, s{S_SEG}, 1')
    a('s_branch AT_TOP')
    a.label('AT_LAST')
    a('s_waitcnt vmcnt(0)')
    set_flag(a, VFA, VONE, F_AF)


def role_red(a, which, nseg=64, ldsb=0):
    N = f'R{which}'
    T0, T1, T2 = f's{S_T0}', f's{S_T1}', f's{S_T2}'
    W = f's{S_WAVE}'
    SP, SX, SH, SO = 4, 8, 12, S_OSRD
    S_PO, S_FM = 40, 41
    VP, VF, VR, VPA, VFA, VONE = 8, 2, 3, 7, 9, 15
    a(f's_load_dwordx2 s[{S_PWS}:{S_PWS+1}], s[0:1], {KA_WS}')
    a(f's_load_dwordx2 s[{S_PW}:{S_PW+1}], s[0:1], {KA_X if which == 1 else KA_OUT}')
    a('v_and_b32 v1, 63, v0')
    a('v_and_b32 v4, 7, v1')
    a('v_bfe_u32 v5, v1, 3, 1')
    a('v_lshrrev_b32 v6, 4, v1')
    a(f's_lshl_b32 {T0}, s29, 3')
    a(f'v_add_u32 v10, {T0}, v4')
    a(f'v_lshl_add_u32 v{VP}, v6, 2, v5'); a(f'v_lshlrev_b32 v{VP}, 9, v{VP}'); a(f'v_lshl_add_u32 v{VP}, v10, 4, v{VP}')
    a(f's_lshl_b32 {T0}, {W}, 15'); a(f'v_add_u32 v{VP}, {T0}, v{VP}')
    a(f'v_lshl_add_u32 v{VF}, v5, 5, v10'); a(f'v_lshlrev_b32 v{VF}, 4, v{VF}'); a(f'v_lshl_add_u32 v{VF}, v6, 10, v{VF}')
    a(f's_lshl_b32 {T0}, {W}, 14'); a(f'v_add_u32 v{VF}, {T0}, v{VF}')
    a(f'v_lshlrev_b32 v{VR}, 11, v10'); a(f'v_lshl_add_u32 v{VR}, v6, 5, v{VR}')
    a(f'v_lshl_add_u32 v{VR}, v5, {3 if which == 1 else 4}, v{VR}')
    a(f's_lshl_b32 {T0}, {W}, 9'); a(f'v_add_u32 v{VR}, {T0}, v{VR}')
    a(f'v_bfe_u32 v{VPA}, v1, 1, 2'); a(f'v_lshlrev_b32 v{VPA}, 3, v{VPA}')
    a(f'v_and_b32 v10, 1, v1'); a(f'v_add_u32 v{VPA}, v{VPA}, v10')
    a(f's_lshl_b32 {T0}, {W}, 1'); a(f'v_add_u32 v{VPA}, {T0}, v{VPA}')
    a(f'v_lshlrev_b32 v{VPA}, 4, v{VPA}'); a(f'v_add_u32 v{VPA}, {F_WF if which == 1 else F_DF}, v{VPA}')
    a(f's_lshl_b32 {T0}, s29, 4'); a(f's_lshl_b32 {T1}, {W}, 2'); a(f's_add_u32 {T0}, {T0}, {T1}'); a(f'v_mov_b32 v{VFA}, {T0}')
    a(f'v_mov_b32 v{VONE}, 1')
    if which == 1:
        a('v_lshlrev_b32 v13, 2, v4'); a(f's_lshl_b32 {T0}, {W}, 5'); a(f'v_add_u32 v14, {T0}, v13')
    else:
        a('v_cmp_eq_u32 s[44:45], 0, v5')
    a('s_waitcnt lgkmcnt(0)')
    a.srd(SP, S_PWS, 32*MB, add=WS_P1 if which == 1 else WS_P2)
    if which == 1:
        a.srd(SX, S_PW, 4*MB); a.srd(SH, S_PWS, 4*MB, add=WS_HB); a.srd(SO, S_PWS, 4*MB, add=WS_HN)
    else:
        a.srd(SX, S_PWS, 4*MB, add=WS_HB); a.srd(SO, S_PW, 4*MB)
    a(f's_mov_b32 s{S_SEG}, s28')
    L, X, F, G, H = 16, 144, 160, 16, 48
    a.label(f'{N}_TOP')
    a(f's_lshl_b32 s{S_FM}, s{S_SEG}, 16')
    a(f's_lshl_b32 s{S_PO}, s{S_SEG}, 17')
    if which == 1:
        for it in range(4):
            for h in range(2):
                r = X + (it*2 + h)*2
                a(f'buffer_load_dwordx2 v[{r}:{r+1}], v{VR}, s[{SX}:{SX+3}], s{S_FM} offen offset:{it*128 + h*16}')
    seg_foff(a)
    poll(a, N + '_P', VPA, 200, 4, 204)
    for ks in range(4):
        for it in range(4):
            a(f's_add_u32 {T2}, s{S_PO}, {ks*(1<<23) + it*8192}')
            for h in range(2):
                r = L + ((ks*4 + it)*2 + h)*4
                a(f'buffer_load_dwordx4 v[{r}:{r+3}], v{VP}, s[{SP}:{SP+3}], {T2} offen offset:{h*1024}')
    nx = 0
    if which == 2:
        for it in range(4):
            a(f's_add_u32 {T2}, s{S_FM}, {it*4096}')
            a(f'buffer_load_dwordx4 v[{X+4*it}:{X+4*it+3}], v{VF}, s[{SX}:{SX+3}], {T2} offen')
        nx = 4
    tasks2.red_sum(a, L, F, nx)
    a('s_waitcnt vmcnt(0)')
    for i in range(16):
        a(f'v_lshlrev_b32 v{G+2*i}, 16, v{X+i}'); a(f'v_and_b32 v{G+2*i+1}, 0xffff0000, v{X+i}')
    for i in range(32): a(f'v_add_f32 v{F+i}, v{F+i}, v{G+i}')
    for i in range(16): a(f'v_cvt_pk_bf16_f32 v{H+i}, v{F+2*i}, v{F+2*i+1}')
    if which == 1:
        for it in range(4):
            a(f's_add_u32 {T2}, s{S_FM}, {it*4096}')
            a(f'buffer_store_dwordx4 v[{H+4*it}:{H+4*it+3}], v{VF}, s[{SH}:{SH+3}], {T2} offen sc1')
        for i in range(16):
            a(f'v_lshlrev_b32 v{F+2*i}, 16, v{H+i}'); a(f'v_and_b32 v{F+2*i+1}, 0xffff0000, v{H+i}')
        A0 = 100
        for c in range(4): a(f'v_add_f32 v{A0+c}, v{F+c}, v{F+4+c}')
        for i in range(8, 32, 4):
            for c in range(4): a(f'v_add_f32 v{A0+c}, v{A0+c}, v{F+i+c}')
        a(f'v_add_f32 v{A0}, v{A0}, v{A0+1}'); a(f'v_add_f32 v{A0+2}, v{A0+2}, v{A0+3}'); a(f'v_add_f32 v{A0}, v{A0}, v{A0+2}')
        reduce_bits345(a, A0, A0 + 4)
        a(f'ds_write_b32 v14, v{A0} offset:{ldsb}')
        a('s_waitcnt lgkmcnt(0)')
        a('s_barrier')
        for w in range(4): a(f'ds_read_b32 v{A0+w}, v13 offset:{ldsb + w*32}')
        a('s_waitcnt lgkmcnt(0)')
        MU = 10
        a(f'v_add_f32 v{A0}, v{A0}, v{A0+1}'); a(f'v_add_f32 v{A0+2}, v{A0+2}, v{A0+3}'); a(f'v_add_f32 v{MU}, v{A0}, v{A0+2}')
        a(f'v_mul_f32 v{MU}, 0x3a800000, v{MU}')
        for c in range(4): a(f'v_mov_b32 v{64+c}, 0')
        for i in range(0, 32, 4):
            for c in range(4): a(f'v_sub_f32 v{68+c}, v{F+i+c}, v{MU}')
            for c in range(4): a(f'v_fmac_f32 v{64+c}, v{68+c}, v{68+c}')
        RS = 11
        a('v_add_f32 v64, v64, v65'); a('v_add_f32 v66, v66, v67'); a(f'v_add_f32 v{RS}, v64, v66')
        reduce_bits345(a, RS, A0 + 4)
        a(f'ds_write_b32 v14, v{RS} offset:{ldsb + 128}')
        a('s_waitcnt lgkmcnt(0)')
        a('s_barrier')
        for w in range(4): a(f'ds_read_b32 v{64+w}, v13 offset:{ldsb + 128 + w*32}')
        a('s_waitcnt lgkmcnt(0)')
        a('v_add_f32 v64, v64, v65'); a('v_add_f32 v66, v66, v67'); a(f'v_add_f32 v{RS}, v64, v66')
        a(f'v_mul_f32 v{RS}, 0x3a800000, v{RS}')
        bf16_round(a, RS, RS)
        a(f'v_add_f32 v{RS}, 0x3727c5ac, v{RS}')
        bf16_round(a, RS, RS)
        a(f'v_sqrt_f32 v{RS}, v{RS}')
        a('s_nop 0')
        bf16_round(a, RS, RS)
        a(f'v_rcp_f32 v{RS}, v{RS}')
        bf16_round(a, MU, MU)
        for i in range(32): a(f'v_sub_f32 v{F+i}, v{F+i}, v{MU}')
        for i in range(16): a(f'v_cvt_pk_bf16_f32 v{G+i}, v{F+2*i}, v{F+2*i+1}')
        for i in range(16):
            a(f'v_lshlrev_b32 v{F+2*i}, 16, v{G+i}'); a(f'v_and_b32 v{F+2*i+1}, 0xffff0000, v{G+i}')
        for i in range(32): a(f'v_mul_f32 v{F+i}, v{F+i}, v{RS}')
        OO = 80
        for i in range(16): a(f'v_cvt_pk_bf16_f32 v{OO+i}, v{F+2*i}, v{F+2*i+1}')
        for it in range(4):
            a(f's_add_u32 {T2}, s{S_FM}, {it*4096}')
            a(f'buffer_store_dwordx4 v[{OO+4*it}:{OO+4*it+3}], v{VF}, s[{SO}:{SO+3}], {T2} offen sc1')
        a('s_waitcnt vmcnt(0)')
        set_flag(a, VFA, VONE, F_RF)
    else:
        S, R, OO = 64, 80, 96
        for it in range(4):
            for c in range(2):
                a(f'v_cndmask_b32 v{S+2*it+c}, v{H+4*it+c}, v{H+4*it+2+c}, s[44:45]')
        a('s_nop 1')
        for i in range(8):
            a(f'v_mov_b32_dpp v{R+i}, v{S+i} row_ror:8 row_mask:0xf bank_mask:0xf')
        for it in range(4):
            for c in range(2):
                a(f'v_cndmask_b32 v{OO+4*it+c}, v{R+2*it+c}, v{H+4*it+c}, s[44:45]')
                a(f'v_cndmask_b32 v{OO+4*it+2+c}, v{H+4*it+2+c}, v{R+2*it+c}, s[44:45]')
        for it in range(4):
            a(f'buffer_store_dwordx4 v[{OO+4*it}:{OO+4*it+3}], v{VR}, s[{SO}:{SO+3}], s{S_FM} offen offset:{it*128}')
    a(f's_add_u32 s{S_SEG}, s{S_SEG}, 2')
    a(f's_cmp_lt_u32 s{S_SEG}, {nseg}'); a(f's_cbranch_scc1 {N}_TOP')
```

```python
import sys; sys.path.insert(0,'gen')
from asmlib import *
import tasks, tasks2, mega, k_recc as rc
from mega import *
from gemm2 import Eng, S_WAVE, S_T0, S_T1, S_T2
from tasks import S_RB, S_CB, S_KS, S_PW, S_PWS, S_OSRD, MB, task_gemm
from k_ln import bf16_round, reduce_bits345

def gen_prep(cfg):
    a = Asm()
    a('s_cmp_ge_u32 s2, 256')
    a('s_cbranch_scc1 PREP_END')
    a(f's_load_dwordx2 s[4:5], s[0:1], {KA_WS}')
    a(f's_load_dwordx2 s[6:7], s[0:1], {KA_MEM0}')
    a(f's_load_dwordx2 s[24:25], s[0:1], {KA_X}')
    a('v_and_b32 v21, 63, v0'); a('v_lshrrev_b32 v22, 6, v0'); a('s_nop 0'); a('v_readfirstlane_b32 s19, v22')
    a('v_and_b32 v24, 7, v21'); a('v_bfe_u32 v25, v21, 3, 1'); a('v_lshrrev_b32 v26, 4, v21')
    a('s_lshr_b32 s30, s2, 2'); a('s_and_b32 s31, s2, 3'); a('s_lshl_b32 s31, s31, 3')
    a('v_add_u32 v27, s31, v24')
    a('v_lshlrev_b32 v23, 11, v27'); a('v_lshl_add_u32 v23, v26, 5, v23'); a('v_lshl_add_u32 v23, v25, 3, v23')
    a('s_lshl_b32 s32, s19, 9'); a('s_lshl_b32 s33, s30, 16'); a('s_add_u32 s32, s32, s33'); a('v_add_u32 v23, s32, v23')
    a('v_lshl_add_u32 v28, v25, 5, v27'); a('v_lshlrev_b32 v28, 4, v28'); a('v_lshl_add_u32 v28, v26, 10, v28')
    a('s_lshl_b32 s32, s19, 14'); a('s_add_u32 s32, s32, s33'); a('v_add_u32 v28, s32, v28')
    a('v_lshlrev_b32 v29, 2, v24'); a('s_lshl_b32 s32, s19, 5'); a('v_add_u32 v30, s32, v29')
    a('s_lshl_b32 s3, s2, 12')
    a('v_lshlrev_b32 v1, 4, v0')
    a('v_add_u32 v1, s3, v1')
    for r in range(4):
        a(f'v_mov_b32 v{4+r}, -1'); a(f'v_mov_b32 v{8+r}, 0')
    a('s_waitcnt lgkmcnt(0)')
    a.srd(36, 24, 4*MB)
    X = 32
    for it in range(4):
        for h in range(2):
            r = X + (it*2 + h)*2
            a(f'buffer_load_dwordx2 v[{r}:{r+1}], v23, s[36:39], 0 offen offset:{it*128 + h*16}')
    a.srd(8, 4, SM_SIZE, add=WS_SM)
    a.srd(12, 6, 8 * 1024 * 2)
    a.srd(20, 4, 64 << 20, add=rc.WS_X)
    a.srd(40, 4, 4*MB, add=WS_XN)
    a(f's_mov_b32 s16, {rc.C_PART}')
    a('buffer_store_dwordx4 v[4:7], v1, s[8:11], s16 offen')
    a('s_lshr_b32 s17, s2, 3'); a(f's_mul_i32 s17, s17, {cfg.NS*32768}')
    a('s_and_b32 s18, s2, 7'); a('s_lshl_b32 s18, s18, 12'); a('s_add_u32 s17, s17, s18')
    a('v_lshlrev_b32 v2, 4, v0')
    for i in range(3):
        a('buffer_store_dwordx4 v[4:7], v2, s[20:23], s17 offen')
        a('s_add_u32 s17, s17, 32768')
    a('v_lshrrev_b32 v3, 11, v1'); a('v_lshlrev_b32 v3, 12, v3'); a('v_and_b32 v12, 2047, v1'); a('v_add_u32 v3, v3, v12')
    a(f's_mov_b32 s16, {SM_QKM + 2048}')
    for i in range(4):
        a('buffer_store_dwordx4 v[4:7], v3, s[8:11], s16 offen'); a(f's_add_u32 s16, s16, {2*MB}')
    a(f's_mov_b32 s16, {SM_VMG}')
    for i in range(4):
        a('buffer_store_dwordx4 v[4:7], v1, s[8:11], s16 offen'); a(f's_add_u32 s16, s16, {MB}')
    nfl = FL_SEG + 65*4096 - FL_KVQ
    a(f'v_cmp_gt_u32 vcc, {nfl}, v1') if nfl <= 64 else (a(f's_mov_b32 s17, {nfl}'), a('v_cmp_gt_u32 vcc, s17, v1'))
    a('s_and_saveexec_b64 s[26:27], vcc')
    a(f's_mov_b32 s16, {FL_KVQ}')
    a('buffer_store_dwordx4 v[8:11], v1, s[8:11], s16 offen')
    a('s_mov_b64 exec, s[26:27]')
    a('s_cmp_eq_u32 s2, 16'); a('s_cbranch_scc0 PREP_N1')
    a(f's_mov_b32 s16, {rc.C_CNT}')
    a('buffer_store_dwordx4 v[8:11], v2, s[8:11], s16 offen')
    a.label('PREP_N1')
    a('s_cmp_eq_u32 s2, 17'); a('s_cbranch_scc0 PREP_N2')
    a(f's_mov_b32 s16, {rc.C_CNT + 4096}')
    a('buffer_store_dwordx4 v[4:7], v2, s[8:11], s16 offen')
    a.label('PREP_N2')
    a('s_cmp_ge_u32 s2, 16'); a('s_cbranch_scc1 PREP_LN')
    a('s_cmp_lt_u32 s2, 4')
    a('s_cbranch_scc1 PREP_M0')
    a(f's_mov_b32 s16, {rc.C_MEMF}')
    a('buffer_store_dwordx4 v[4:7], v1, s[8:11], s16 offen')
    a('s_branch PREP_LN')
    a.label('PREP_M0')
    a('v_lshrrev_b32 v2, 4, v1')
    a('v_and_b32 v3, 7, v2'); a('v_lshlrev_b32 v3, 11, v3')
    a('v_lshrrev_b32 v12, 4, v2'); a('v_lshl_add_u32 v3, v12, 5, v3')
    a('v_bfe_u32 v12, v2, 3, 1'); a('v_lshl_add_u32 v3, v12, 2, v3')
    for t in range(4):
        a(f'buffer_load_dword v{12+t}, v3, s[12:15], 0 offen offset:{t*8}')
    a('s_waitcnt vmcnt(0)')
    for t in range(4):
        a(f'v_min_u32 v{12+t}, -2, v{12+t}')
    a(f's_mov_b32 s16, {rc.C_MEMF}')
    a('buffer_store_dwordx4 v[12:15], v1, s[8:11], s16 offen')
    a.label('PREP_LN')
    F, G, A0, MU, RS = 64, 96, 16, 20, 21
    a('s_waitcnt vmcnt(0)')
    for i in range(16):
        a(f'v_lshlrev_b32 v{F+2*i}, 16, v{X+i}'); a(f'v_and_b32 v{F+2*i+1}, 0xffff0000, v{X+i}')
    for c in range(4): a(f'v_add_f32 v{A0+c}, v{F+c}, v{F+4+c}')
    for i in range(8, 32, 4):
        for c in range(4): a(f'v_add_f32 v{A0+c}, v{A0+c}, v{F+i+c}')
    a(f'v_add_f32 v{A0}, v{A0}, v{A0+1}'); a(f'v_add_f32 v{A0+2}, v{A0+2}, v{A0+3}'); a(f'v_add_f32 v{A0}, v{A0}, v{A0+2}')
    reduce_bits345(a, A0, 31)
    a(f'ds_write_b32 v30, v{A0}')
    a('s_waitcnt lgkmcnt(0)'); a('s_barrier')
    for w in range(4): a(f'ds_read_b32 v{A0+w}, v29 offset:{w*32}')
    a('s_waitcnt lgkmcnt(0)')
    a(f'v_add_f32 v{A0}, v{A0}, v{A0+1}'); a(f'v_add_f32 v{A0+2}, v{A0+2}, v{A0+3}'); a(f'v_add_f32 v{MU}, v{A0}, v{A0+2}')
    a(f'v_mul_f32 v{MU}, 0x3a800000, v{MU}')
    for c in range(4): a(f'v_mov_b32 v{A0+c}, 0')
    for i in range(0, 32, 4):
        for c in range(4): a(f'v_sub_f32 v{G+c}, v{F+i+c}, v{MU}')
        for c in range(4): a(f'v_fmac_f32 v{A0+c}, v{G+c}, v{G+c}')
    a(f'v_add_f32 v{A0}, v{A0}, v{A0+1}'); a(f'v_add_f32 v{A0+2}, v{A0+2}, v{A0+3}'); a(f'v_add_f32 v{RS}, v{A0}, v{A0+2}')
    reduce_bits345(a, RS, 31)
    a(f'ds_write_b32 v30, v{RS} offset:128')
    a('s_waitcnt lgkmcnt(0)'); a('s_barrier')
    for w in range(4): a(f'ds_read_b32 v{A0+w}, v29 offset:{128 + w*32}')
    a('s_waitcnt lgkmcnt(0)')
    a(f'v_add_f32 v{A0}, v{A0}, v{A0+1}'); a(f'v_add_f32 v{A0+2}, v{A0+2}, v{A0+3}'); a(f'v_add_f32 v{RS}, v{A0}, v{A0+2}')
    a(f'v_mul_f32 v{RS}, 0x3a800000, v{RS}')
    bf16_round(a, RS, RS)
    a(f'v_add_f32 v{RS}, 0x3727c5ac, v{RS}')
    bf16_round(a, RS, RS)
    a(f'v_sqrt_f32 v{RS}, v{RS}')
    a('s_nop 0')
    bf16_round(a, RS, RS)
    a(f'v_rcp_f32 v{RS}, v{RS}')
    bf16_round(a, MU, MU)
    for i in range(32): a(f'v_sub_f32 v{F+i}, v{F+i}, v{MU}')
    for i in range(16): a(f'v_cvt_pk_bf16_f32 v{G+i}, v{F+2*i}, v{F+2*i+1}')
    for i in range(16):
        a(f'v_lshlrev_b32 v{F+2*i}, 16, v{G+i}'); a(f'v_and_b32 v{F+2*i+1}, 0xffff0000, v{G+i}')
    for i in range(32): a(f'v_mul_f32 v{F+i}, v{F+i}, v{RS}')
    for i in range(16): a(f'v_cvt_pk_bf16_f32 v{G+i}, v{F+2*i}, v{F+2*i+1}')
    for it in range(4):
        a(f's_mov_b32 s16, {it*4096}')
        a(f'buffer_store_dwordx4 v[{G+4*it}:{G+4*it+3}], v28, s[40:43], s16 offen')
    a.label('PREP_END')
    a('s_endpgm')
    return a.text()


def kvq_loop(a, g, nbg_rounds=12):
    T0, T1, T2 = f's{S_T0}', f's{S_T1}', f's{S_T2}'
    a(f's_mov_b32 s{S_RND}, 0')
    a.label('KQ_TOP')
    a(f's_cmp_lg_u32 s{S_RND}, 0'); a('s_cbranch_scc1 KQ_BG')
    a(f's_and_b32 {T0}, s{S_WID}, 31'); a(f's_and_b32 s{S_RB}, {T0}, 3')
    a(f's_lshr_b32 {T0}, {T0}, 2'); a(f's_lshr_b32 {T1}, s{S_WID}, 5'); a(f's_lshl_b32 {T1}, {T1}, 3'); a(f's_add_u32 s31, {T0}, {T1}')
    a('s_branch KQ_DEC')
    a.label('KQ_BG')
    a(f's_sub_u32 {T0}, s{S_WID}, 160'); a(f's_sub_u32 {T1}, s{S_WID}, 112')
    a(f's_cmp_ge_u32 s{S_WID}, 160'); a(f's_cselect_b32 {T0}, {T0}, {T1}')
    a(f's_sub_u32 {T1}, s{S_RND}, 1')
    a(f's_lshr_b32 {T2}, {T1}, 2'); a(f's_lshl_b32 {T2}, {T2}, 2'); a(f's_add_u32 {T2}, {T2}, 4')
    a(f's_and_b32 s{S_RB}, {T0}, 3'); a(f's_add_u32 s{S_RB}, s{S_RB}, {T2}')
    a(f's_and_b32 {T1}, {T1}, 3'); a(f's_mul_i32 {T1}, {T1}, 12'); a(f's_lshr_b32 {T0}, {T0}, 2'); a(f's_add_u32 s31, {T0}, {T1}')
    a.label('KQ_DEC')
    a(f's_and_b32 s{S_RB}, s{S_RB}, 15')
    a(f's_and_b32 s{S_CB}, s31, 15'); a(f's_mov_b32 s{S_KS}, 0')
    a('s_lshr_b32 s31, s31, 4')
    a(f's_lshl_b32 {T0}, s{S_RB}, 8'); a(f's_lshl_b32 {T1}, s{S_CB}, 4'); a(f's_add_u32 {T0}, {T0}, {T1}')
    a(f's_lshl_b32 {T1}, s31, 2'); a(f's_add_u32 {T0}, {T0}, {T1}'); a(f's_add_u32 s{S_FOFF}, {T0}, {FL_KVQ}')
    a('s_cmp_eq_u32 s31, 1'); a('s_cbranch_scc1 KQ_V')
    a('s_cmp_eq_u32 s31, 2'); a('s_cbranch_scc1 KQ_Q')
    task_gemm(a, g, 'K'); a('s_branch KQ_FIN')
    a.label('KQ_V'); task_gemm(a, g, 'V'); a('s_branch KQ_FIN')
    a.label('KQ_Q'); task_gemm(a, g, 'Q')
    a.label('KQ_FIN')
    a('s_waitcnt vmcnt(0)')
    a('s_barrier')
    a(f's_cmp_lg_u32 s{S_WAVE}, 0'); a('s_cbranch_scc1 KQ_NF')
    a('v_mov_b32 v1, 1')
    a('s_mov_b64 exec, 1')
    a(f'buffer_store_dword v1, off, {FLS}, s{S_FOFF} sc1')
    a('s_mov_b64 exec, -1')
    a.label('KQ_NF')
    a(f's_add_u32 s{S_RND}, s{S_RND}, 1')
    a(f's_cmp_lt_u32 s{S_WID}, 144'); a('s_cbranch_scc1 KQ_END')
    a(f's_cmp_le_u32 s{S_RND}, {nbg_rounds}'); a('s_cbranch_scc1 KQ_TOP')
    a('s_endpgm')
    a.label('KQ_END')


def gen_mega(cfg, dbg=None, prof=False):
    tasks.set_coh(True)
    a = Asm()
    P = 'RC'
    a('s_cmp_ge_u32 s2, 256')
    a('s_cbranch_scc1 MG_EXIT')
    rc.common_setup(a)
    rc.role_dynamic(a, cfg, P, 'MG_WORK', nx=8)
    rc.role_setup(a, cfg)
    a(f's_mov_b32 s{rc.S_NST}, 63')
    rc.const_tables(a)
    rc.stage_weights(a, P)
    rc.near_measure(a, cfg, P)
    rc.x_offsets(a, cfg)
    a('s_waitcnt vmcnt(0) lgkmcnt(0)')
    a('s_barrier')
    a(f's_cmp_eq_u32 s{rc.S_MODE}, 1')
    a(f's_cbranch_scc0 {P}_FB')
    rc.rec_loop(a, cfg, P, '', dbg)
    a('s_endpgm')
    a.label(f'{P}_FB')
    rc.rec_loop(a, cfg, P + 'F', ' sc1', None)
    a('s_endpgm')
    a.label('MG_WORK')
    T0, T1 = 's46', 's47'
    a(f's_sub_u32 {T0}, s{rc.S_J}, 2'); a(f's_lshl_b32 {T0}, {T0}, 5'); a(f's_add_u32 {T0}, {T0}, s{rc.S_H}')
    a(f's_sub_u32 {T1}, s{rc.S_H}, 32'); a(f's_lshl_b32 {T1}, {T1}, 1'); a(f's_add_u32 {T1}, {T1}, s{rc.S_J}')
    a(f's_cmp_eq_u32 s{rc.S_MODE}, 1'); a(f's_cselect_b32 s{S_WID}, {T0}, {T1}')
    a(f's_cmp_ge_u32 s{S_WID}, 192'); a('s_cbranch_scc1 MG_EXIT')
    a(f's_mov_b32 s{S_WAVE}, s{rc.S_WV}')
    a.srd(S_FL, rc.S_WS, SM_SIZE, add=WS_SM)
    a(f's_mov_b32 s{S_BUDW}, 200000')
    g = Eng()
    kvq_loop(a, g)
    W = f's{S_WID}'
    def rng(lo, hi, lab):
        a(f's_cmp_lt_u32 {W}, {hi}'); a(f's_cbranch_scc1 {lab}')
    rng(0, 32, 'MG_WO'); rng(0, 64, 'MG_DN'); rng(0, 92, 'MG_GU0'); rng(0, 96, 'MG_AT0'); rng(0, 124, 'MG_GU1'); rng(0, 128, 'MG_AT1')
    rng(0, 136, 'MG_R1')
    a(f's_bfe_u32 s28, {W}, 0x10002'); a(f's_and_b32 s29, {W}, 3')
    role_red(a, 2); a('s_endpgm')
    a.label('MG_R1')
    a(f's_bfe_u32 s28, {W}, 0x10002'); a(f's_and_b32 s29, {W}, 3')
    role_red(a, 1); a('s_endpgm')
    a.label('MG_WO')
    a(f's_lshr_b32 s28, {W}, 3'); a(f's_and_b32 s29, {W}, 7')
    role_gemm(a, 'WO', prof=prof); a('s_endpgm')
    a.label('MG_DN')
    a(f's_sub_u32 s29, {W}, 32'); a('s_lshr_b32 s28, s29, 3'); a('s_and_b32 s29, s29, 7')
    role_gemm(a, 'DN', prof=prof); a('s_endpgm')
    a.label('MG_GU0')
    a(f's_sub_u32 s29, {W}, 64'); a('s_branch MG_GU')
    a.label('MG_GU1')
    a(f's_sub_u32 s29, {W}, 68')
    a.label('MG_GU')
    a('s_mov_b32 s28, 0')
    role_gemm(a, 'GU', prof=prof); a('s_endpgm')
    a.label('MG_AT0')
    a(f's_sub_u32 s28, {W}, 92'); a('s_branch MG_AT')
    a.label('MG_AT1')
    a(f's_sub_u32 s28, {W}, 120')
    a.label('MG_AT')
    role_att(a)
    a.label('MG_EXIT')
    a('s_endpgm')
    return a.text()


def header():
    src = open('cdna_kernels/' + KNAME[:-7] + '.s.ref').read().split('\n')
    out = []
    for l in src:
        if l.startswith('; Override launch'): break
        out.append(l)
    return '\n'.join(out)

def build(path, hdr='; test', cfg=None, **kw):
    cfg = cfg or rc.Cfg(dynamic=True, RS_PERM=False, EARLY_CLR=True, kvflag=FL_KVQ)
    ks = [('prep_kernel', gen_prep(cfg), 128, 128), ('mega_kernel', gen_mega(cfg, **kw), 512, 256)]
    ls = [('prep_kernel', (256,1,1), (256,1,1), 1024), ('mega_kernel', (256,1,1), (256,1,1), 163840)]
    txt = assemble_file(hdr, ls, ks)
    open(path, 'w').write(txt)
    print('bytes', len(txt), 'lines', txt.count('\n'))
if __name__ == '__main__':
    p = sys.argv[1] if len(sys.argv) > 1 else 'mg.s'
    build(p, header())
    import chk; chk.chk(p)
```

```python
from asmlib import *

WS_X = 0xB000000
C_MEMF = SM_MEMF
C_PART = SM_PART
C_CNT = SM_CNT
CNT_MODE, CNT_FB = 2048, 2176
WS_DBGC = 0x7000000

class Cfg:
    NS = 64
    SG, SP, SH = 4096, 2048, 64
    RS_PERM = True
    dynamic = False
    force_fallback = False
    EARLY_CLR = False
    skip = ()
    kvflag = None
    def __init__(self, **kw):
        for k, v in kw.items(): setattr(self, k, v)

L_WA = 0x00000
L_WB = 0x10000
L_M = 0x20000
L_O = 0x22000
L_C = 0x22800
L_R = 0x23400
L_KV = 0x24000
REC_LDS = 0x28000

V_IDX, V_AGP, V_PTW, V_MFW, V_KDM, V_L16, V_T, V_T2 = 0, 1, 2, 3, 4, 5, 6, 7
AM = 8
AQ0, AQ1, AK0, AK1, AV0, AV1 = 40, 44, 48, 52, 56, 60
SREG = 64
WV_R = 128
WO_R = 192
XS, D0, D1, RX, VA, RV, TT = 44, 40, 48, 52, 60, 62, 56
SEL0, SEL1, KT0, KT1, VT0, VT1, SA, SB, SMM = 24, 28, 32, 36, 8, 12, 16, 20, 24
R0, R1, R2, R3, MM = 32, 36, 40, 44, 48
PB, PMQ, ONES, SUM, O0, O1 = 36, 40, 44, 52, 16, 20
WACC = [24, 28, 32, 36, 40, 44, 48, 52]
OA = 8
PR0, PR1, SELR, RD, NEG = 8, 12, 16, 20, 24

S_SM = 4
S_KV = 8
S_X = 12
S_W = 16
S_STEP, S_WV, S_H, S_J = 20, 21, 22, 23
S_MEMR, S_MEMW, S_PR, S_PR2 = 24, 25, 26, 27
S_PW = 28
S_XW, S_XR, S_XC, S_NEAR = 32, 33, 34, 35
S_KVK, S_KVV, S_QKM, S_VMG = 36, 37, 38, 39
S_LO8 = 40
S_BUD, S_NST, S_M0, S_MEMC = 42, 43, 44, 45
S_T0, S_T1, S_T2, S_T3 = 46, 47, 48, 49
S_PTR = 50
S_WS = 52
S_SWB, S_OWB, S_KVB, S_PRW = 54, 55, 56, 57
S_HI8 = 58
S_XBASE = 60
S_MODE = 61
S_LID = 62
S_SC = 63
S_KVOK, S_KVFB = 96, 97
SOFT_C = 0x3e0293ee


def smf(acc, A, B):
    return f'v_smfmac_f32_16x16x64_bf16 v[{acc}:{acc+3}], v[{A}:{A+3}], {B}, v{V_IDX}'
def wq(pi, t): b = 16*pi + 8*t; return f'a[{b}:{b+7}]'
def wk(pi, t): b = 128 + 16*pi + 8*t; return f'a[{b}:{b+7}]'
def wv(pi, t):
    b = (WV_R + 16*pi + 8*t) if pi < 4 else (SREG + 16*(pi-4) + 8*t)
    return f'v[{b}:{b+7}]'
def v8(r): return f'v[{r}:{r+7}]'
def mf32(d, A, B, C=None):
    c = '0' if C is None else f'v[{C}:{C+3}]'
    return f'v_mfma_f32_16x16x32_bf16 v[{d}:{d+3}], v[{A}:{A+3}], v[{B}:{B+3}], {c}'
def mf16(d, A, B, C):
    return f'v_mfma_f32_16x16x16_bf16 v[{d}:{d+3}], v[{A}:{A+1}], v[{B}:{B+1}], v[{C}:{C+3}]'
def pkadd(d, x, y): return f'v_pk_add_f32 v[{d}:{d+1}], v[{x}:{x+1}], v[{y}:{y+1}]'


def poll_end(a, lab, done):
    a(f's_cbranch_vccz {done}')
    a(f's_cmp_eq_u32 s{S_BUD}, 0')
    a(f's_cbranch_scc1 {done}')
    a(f's_sub_u32 s{S_BUD}, s{S_BUD}, 1')
    a(f's_branch {lab}')
    a.label(done)

def max_chain(a, dst, regs):
    if len(regs) == 2:
        a(f'v_max_u32 v{dst}, v{regs[0]}, v{regs[1]}'); return
    a(f'v_max3_u32 v{dst}, v{regs[0]}, v{regs[1]}, v{regs[2]}')
    i = 3
    while i + 1 < len(regs):
        a(f'v_max3_u32 v{dst}, v{dst}, v{regs[i]}, v{regs[i+1]}')
        i += 2
    if i < len(regs):
        a(f'v_max_u32 v{dst}, v{dst}, v{regs[i]}')


def dbg_dump(a, regs, slot, tmp=V_T):
    a('s_waitcnt vmcnt(0) lgkmcnt(0)')
    a('s_nop 7'); a('s_nop 7')
    a.srd(84, S_WS, 4 << 20, add=WS_DBGC + slot * (4 << 20))
    a(f's_lshl_b32 s88, s{S_H}, 1'); a(f's_add_u32 s88, s88, s{S_J}'); a('s_lshl_b32 s88, s88, 2')
    a(f's_add_u32 s88, s88, s{S_WV}'); a('s_lshl_b32 s88, s88, 14')
    a(f'v_lshrrev_b32 v{tmp}, 2, v{V_L16}')
    for i, r in enumerate(regs):
        a(f'buffer_store_dword v{r}, v{tmp}, s[84:87], s88 offen')
        a('s_add_u32 s88, s88, 256')
    a('s_waitcnt vmcnt(0)')


def role_static(a, exit_label):
    a(f's_and_b32 s{S_J}, s2, 7')
    a(f's_cmp_ge_u32 s{S_J}, 2'); a(f's_cbranch_scc1 {exit_label}')
    a(f's_lshr_b32 s{S_H}, s2, 3')


def role_dynamic(a, cfg, P, exit_label, nx=2):
    SM = f's[{S_SM}:{S_SM+3}]'
    T0, T1, T2, T3 = f's{S_T0}', f's{S_T1}', f's{S_T2}', f's{S_T3}'
    lw, lp, dec, fb, bc = (f'{P}_RD{i}' for i in range(5))
    a(f's_cmp_eq_u32 s{S_WV}, 0')
    a(f's_cbranch_scc0 {lw}')
    a(f's_getreg_b32 {T0}, hwreg(HW_REG_XCC_ID, 0, 4)')
    a(f's_lshl_b32 {T1}, {T0}, 7'); a(f's_add_u32 {T1}, {T1}, {C_CNT}')
    a('v_mov_b32 v8, 1'); a('v_mov_b32 v9, 0')
    a('s_mov_b64 exec, 1')
    a(f'buffer_atomic_add v8, v9, {SM}, {T1} offen sc0 sc1')
    a('s_waitcnt vmcnt(0)')
    a(f'v_readfirstlane_b32 {T2}, v8')
    a('s_mov_b64 exec, 0x1ffff')
    a(f'v_lshlrev_b32 v9, 3, v{V_L16}')
    a(f's_mov_b32 {T1}, {C_CNT}')
    a(f's_mov_b32 {T3}, {1 if cfg.force_fallback else 4000}')
    a.label(lp)
    a(f'buffer_load_dword v10, v9, {SM}, {T1} offen sc1')
    a('s_waitcnt vmcnt(0)')
    a(f'v_readlane_b32 s{S_MODE}, v10, 16')
    a(f's_cmp_lg_u32 s{S_MODE}, 0')
    a(f's_cbranch_scc1 {fb}')
    a('v_cmp_gt_u32 vcc, 32, v10')
    a(f's_and_b32 s64, vcc_lo, {(1 << nx) - 1}')
    if cfg.force_fallback:
        a('s_or_b32 s64, s64, 1')
    a(f's_mov_b32 s{S_MODE}, 1')
    a('s_cmp_eq_u32 s64, 0')
    a(f's_cbranch_scc1 {dec}')
    a(f's_mov_b32 s{S_MODE}, 2')
    a(f's_sub_u32 {T3}, {T3}, 1')
    a(f's_cmp_eq_u32 {T3}, 0')
    a(f's_cbranch_scc0 {lp}')
    a.label(dec)
    a('s_mov_b64 exec, 1')
    a(f'v_mov_b32 v10, s{S_MODE}'); a('v_mov_b32 v11, 0'); a('v_mov_b32 v9, 0')
    a(f's_mov_b32 {T1}, {C_CNT + CNT_MODE}')
    a(f'buffer_atomic_cmpswap v[10:11], v9, {SM}, {T1} offen sc0 sc1')
    a('s_waitcnt vmcnt(0)')
    a(f'v_readfirstlane_b32 {T1}, v10')
    a(f's_cmp_eq_u32 {T1}, 0')
    a(f's_cselect_b32 s{S_MODE}, s{S_MODE}, {T1}')
    a.label(fb)
    a('s_mov_b64 exec, 1')
    a(f's_cmp_eq_u32 s{S_MODE}, 1')
    a(f's_cbranch_scc1 {bc}')
    a('v_mov_b32 v8, 1'); a('v_mov_b32 v9, 0')
    a(f's_mov_b32 {T1}, {C_CNT + CNT_FB}')
    a(f'buffer_atomic_add v8, v9, {SM}, {T1} offen sc0 sc1')
    a('s_waitcnt vmcnt(0)')
    a(f'v_readfirstlane_b32 {T2}, v8')
    a(f's_and_b32 {T0}, {T2}, 1')
    a(f's_lshr_b32 {T1}, {T2}, 1')
    a(f's_mov_b32 {T2}, {T1}')
    a.label(bc)
    a(f's_cmp_lt_u32 {T0}, 2'); a(f's_cselect_b32 {T1}, 4, 0')
    a(f's_cmp_lt_u32 {T2}, 32'); a(f's_cselect_b32 {T1}, {T1}, 0')
    a(f's_or_b32 {T1}, {T1}, s{S_MODE}')
    a(f's_lshl_b32 {T2}, {T2}, 8'); a(f's_or_b32 {T1}, {T1}, {T2}')
    a(f's_lshl_b32 {T0}, {T0}, 24'); a(f's_or_b32 {T1}, {T1}, {T0}')
    a(f'v_mov_b32 v8, {T1}'); a(f'v_mov_b32 v9, {L_R}')
    a('ds_write_b32 v9, v8')
    a('s_mov_b64 exec, -1')
    a('s_waitcnt lgkmcnt(0)')
    a.label(lw)
    a('s_barrier')
    a(f'v_mov_b32 v9, {L_R}')
    a('ds_read_b32 v8, v9')
    a('s_waitcnt lgkmcnt(0)')
    a(f'v_readfirstlane_b32 s{S_LID}, v8')
    a(f's_and_b32 s{S_MODE}, s{S_LID}, 3')
    a(f's_lshr_b32 s{S_J}, s{S_LID}, 24')
    a(f's_bfe_u32 s{S_H}, s{S_LID}, 0x100008')
    a(f's_bitcmp1_b32 s{S_LID}, 2')
    a(f's_cbranch_scc0 {exit_label}')
    a(f's_and_b32 s{S_H}, s{S_H}, 31'); a(f's_and_b32 s{S_J}, s{S_J}, 1')


def common_setup(a):
    a(f's_load_dwordx2 s[{S_WS}:{S_WS+1}], s[0:1], {KA_WS}')
    a('v_lshrrev_b32 v1, 6, v0')
    a(f'v_and_b32 v{V_L16}, 63, v0')
    a(f'v_readfirstlane_b32 s{S_WV}, v1')
    a(f'v_lshlrev_b32 v{V_L16}, 4, v{V_L16}')
    a(f's_mov_b32 s{S_LO8}, 0x00ff00ff'); a(f's_mov_b32 s{S_LO8+1}, 0x00ff00ff')
    a(f's_mov_b32 s{S_HI8}, 0xff00ff00'); a(f's_mov_b32 s{S_HI8+1}, 0xff00ff00')
    a(f's_mov_b32 s{S_BUD}, 400000')
    a(f's_mov_b32 s{S_SC}, 0x{SOFT_C:x}')
    a('s_waitcnt lgkmcnt(0)')
    a.srd(S_SM, S_WS, SM_SIZE, add=WS_SM)
    a.srd(S_KV, S_WS, 32 << 20, add=WS_KF)
    a.srd(S_X, S_WS, 64 << 20, add=WS_X)


def role_setup(a, cfg):
    W, H, J = f's{S_WV}', f's{S_H}', f's{S_J}'
    T0, T1, T2 = f's{S_T0}', f's{S_T1}', f's{S_T2}'
    ln, t1, t2 = 8, 9, 10
    a(f'v_lshrrev_b32 v{ln}, 4, v{V_L16}')
    a(f'v_mov_b32 v{V_IDX}, 0xeeee'); a(f'v_mov_b32 v{t1}, 0x4444')
    a(f'v_cndmask_b32 v{V_IDX}, v{V_IDX}, v{t1}, s[{S_LO8}:{S_LO8+1}]')
    a(f's_lshl_b32 {T0}, {W}, 11')
    a(f'v_add_u32 v{V_AGP}, {T0}, v{V_L16}')
    a(f'v_lshrrev_b32 v{t1}, 5, v{ln}'); a(f'v_lshlrev_b32 v{t1}, 10, v{t1}')
    a(f'v_bfe_u32 v{t2}, v{ln}, 4, 1'); a(f'v_lshl_add_u32 v{t1}, v{t2}, 9, v{t1}')
    a(f'v_bfe_u32 v{t2}, v{ln}, 3, 1'); a(f'v_lshl_add_u32 v{t1}, v{t2}, 8, v{t1}')
    a(f'v_and_b32 v{t2}, 7, v{ln}'); a(f'v_lshl_add_u32 v{t1}, v{t2}, 4, v{t1}')
    a(f'v_add_u32 v{V_KDM}, {T0}, v{t1}')
    a(f's_lshl_b32 {T0}, {W}, 16'); a(f's_mul_i32 {T1}, {H}, {cfg.SH}'); a(f's_add_u32 {T0}, {T0}, {T1}')
    a(f'v_lshrrev_b32 v{t1}, 5, v{ln}'); a(f'v_lshlrev_b32 v{t1}, 13, v{t1}')
    a(f'v_bfe_u32 v{t2}, v{ln}, 4, 1'); a(f'v_mul_u32_u24 v{t2}, {cfg.SG}, v{t2}'); a(f'v_add_u32 v{t1}, v{t1}, v{t2}')
    a(f'v_bfe_u32 v{t2}, v{ln}, 1, 1'); a(f'v_mul_u32_u24 v{t2}, {cfg.SP}, v{t2}'); a(f'v_add_u32 v{t1}, v{t1}, v{t2}')
    a(f'v_bfe_u32 v{t2}, v{ln}, 2, 2'); a(f'v_lshl_add_u32 v{t1}, v{t2}, 4, v{t1}')
    a(f'v_and_b32 v{t2}, 1, v{ln}'); a(f'v_lshl_add_u32 v{t1}, v{t2}, 3, v{t1}')
    a(f'v_add_u32 v{V_PTW}, {T0}, v{t1}')
    a(f's_lshl_b32 {T0}, {H}, 8')
    a(f's_and_b32 {T1}, {W}, 1'); a(f's_lshl_b32 {T1}, {T1}, 7'); a(f's_add_u32 {T0}, {T0}, {T1}')
    a(f's_lshr_b32 {T1}, {W}, 1'); a(f's_lshl_b32 {T1}, {T1}, 6'); a(f's_add_u32 {T0}, {T0}, {T1}')
    a(f'v_and_b32 v{t1}, 3, v{ln}'); a(f'v_lshlrev_b32 v{t1}, 4, v{t1}')
    a(f'v_lshrrev_b32 v{t2}, 4, v{ln}'); a(f'v_lshl_add_u32 v{t1}, v{t2}, 2, v{t1}')
    a(f'v_add_u32 v{t1}, {T0}, v{t1}')
    a(f'v_and_b32 v{t2}, 12, v{ln}')
    a(f'v_cmp_eq_u32 vcc, 0, v{t2}')
    a(f'v_mov_b32 v{V_MFW}, 0x40000000')
    a('s_nop 1')
    a(f'v_cndmask_b32 v{V_MFW}, v{V_MFW}, v{t1}, vcc')
    a(f's_lshl_b32 {T0}, {J}, 13')
    a(f's_add_u32 s{S_MEMR}, {T0}, {C_MEMF}')
    a(f's_add_u32 s{S_MEMW}, s{S_MEMR}, 16384')
    a(f's_lshl_b32 {T0}, {J}, 18'); a(f's_add_u32 {T0}, {T0}, {C_PART}')
    for p in range(4):
        a(f's_add_u32 s{S_PW+p}, {T0}, {p*16384}')
    a(f's_lshl_b32 {T1}, {H}, 13'); a(f's_add_u32 s{S_PR}, {T0}, {T1}')
    a(f's_add_u32 s{S_PR2}, s{S_PR}, {16*cfg.SH}')
    a(f's_lshr_b32 {T0}, {W}, 1'); a(f's_mul_i32 {T0}, {T0}, {cfg.SG}')
    a(f's_and_b32 {T1}, {W}, 1'); a(f's_mul_i32 {T1}, {T1}, {cfg.SP}'); a(f's_add_u32 s{S_PRW}, {T0}, {T1}')
    a(f's_mul_i32 s{S_XBASE}, {H}, {cfg.NS*32768}')
    a(f's_lshl_b32 s{S_KVK}, {H}, 13')
    a(f's_add_u32 s{S_KVV}, s{S_KVK}, {16 << 20}')
    a(f's_lshl_b32 {T0}, {W}, 12'); a(f's_add_u32 s{S_KVB}, {T0}, {L_KV}')
    a(f's_lshl_b32 s{S_QKM}, {H}, 12'); a(f's_add_u32 s{S_QKM}, s{S_QKM}, {SM_QKM + 2048}')
    a(f's_lshl_b32 {T0}, {W}, 9'); a(f's_add_u32 s{S_QKM}, s{S_QKM}, {T0}')
    a(f's_lshl_b32 s{S_VMG}, {H}, 11'); a(f's_add_u32 s{S_VMG}, s{S_VMG}, {SM_VMG}'); a(f's_add_u32 s{S_VMG}, s{S_VMG}, {T0}')
    a(f's_mul_i32 {T0}, {W}, 1536'); a(f's_add_u32 s{S_SWB}, {T0}, {L_M}')
    a(f's_lshr_b32 {T0}, {W}, 1'); a(f's_lshl_b32 {T0}, {T0}, 10')
    a(f's_and_b32 {T1}, {W}, 1'); a(f's_lshl_b32 {T1}, {T1}, 3')
    a(f's_add_u32 {T0}, {T0}, {T1}'); a(f's_add_u32 s{S_OWB}, {T0}, {L_O}')
    a(f's_mov_b32 s{S_STEP}, 0')


def x_offsets(a, cfg):
    T0, T1 = f's{S_T0}', f's{S_T1}'
    a(f's_lshl_b32 {T0}, s{S_NEAR}, 13'); a(f's_add_u32 {T0}, {T0}, s{S_XBASE}')
    a(f's_lshl_b32 {T1}, s{S_WV}, 11'); a(f's_add_u32 {T0}, {T0}, {T1}')
    a(f's_lshl_b32 {T1}, s{S_J}, 14')
    a(f's_add_u32 s{S_XW}, {T0}, {T1}')
    a(f's_xor_b32 s{S_XR}, s{S_XW}, 0x4000')
    a(f's_add_u32 s{S_XC}, s{S_XW}, {(3 % cfg.NS) * 32768}')


def const_tables(a):
    ln, t1, t2, js, c0, one = 8, 9, 10, 11, 12, 13
    R = 16
    a(f'v_lshrrev_b32 v{ln}, 4, v{V_L16}')
    a(f'v_add_u32 v{t2}, {L_C}, v{V_L16}')
    a(f'v_mov_b32 v{c0}, v{t2}')
    def onehot(cond_vcc):
        a(f'v_and_b32 v{t1}, 1, v{js}')
        a(f'v_lshlrev_b32 v{t1}, 4, v{t1}')
        a(f'v_mov_b32 v{one}, 0x3f80')
        a(f'v_lshlrev_b32 v{one}, v{t1}, v{one}')
        a(f'v_lshrrev_b32 v{t1}, 1, v{js}')
        for q in range(4):
            a(f'v_cmp_eq_u32 vcc, {q}, v{t1}')
            a('s_nop 1')
            a(f'v_cndmask_b32 v{R+q}, 0, v{one}, vcc')
    for tp in range(2):
        a(f'v_and_b32 v{js}, 3, v{ln}')
        a(f'v_bfe_u32 v{t1}, v{ln}, 3, 1'); a(f'v_lshl_add_u32 v{js}, v{t1}, 2, v{js}')
        a(f'v_bfe_u32 v{t1}, v{ln}, 2, 1'); a(f'v_bfe_u32 v{t2}, v{ln}, 4, 1')
        a(f'v_xor_b32 v{t1}, v{t1}, v{t2}')
        a(f'v_lshrrev_b32 v{t2}, 5, v{ln}'); a(f'v_xor_b32 v{t2}, {tp}, v{t2}')
        a(f'v_or_b32 v{t1}, v{t1}, v{t2}')
        a(f'v_lshl_add_u32 v{js}, v{t1}, 6, v{js}')
        onehot(None)
        a(f'ds_write_b128 v{c0}, v[{R}:{R+3}] offset:{tp*1024}')
        a('s_waitcnt lgkmcnt(0)')
    a(f'v_and_b32 v{js}, 7, v{ln}')
    onehot(None)
    a(f'ds_write_b128 v{c0}, v[{R}:{R+3}] offset:2048')
    a('s_waitcnt lgkmcnt(0)')


def stage_weights(a, tag):
    W, H, J = f's{S_WV}', f's{S_H}', f's{S_J}'
    T0, T1, T2, T3 = f's{S_T0}', f's{S_T1}', f's{S_T2}', f's{S_T3}'
    LN, t1, t2, t3 = 8, 9, 10, 11
    VD = 12
    TB = [14, 15, 16, 17]
    TC = [18, 19, 20, 21]
    VOF = [24 + f for f in range(4)]
    OB = [32 + n for n in range(8)]
    OC = [40 + n for n in range(8)]
    V_WL = 48
    a(f'v_lshrrev_b32 v{LN}, 4, v{V_L16}')
    a(f'v_lshrrev_b32 v{t1}, 4, v{LN}')
    a(f'v_and_b32 v{t2}, 1, v{t1}')
    a(f'v_lshrrev_b32 v{t3}, 1, v{t1}'); a(f'v_lshl_or_b32 v{t2}, v{t3}, 2, v{t2}')
    a(f'v_and_b32 v{t3}, 15, v{LN}'); a(f'v_xor_b32 v{t2}, v{t2}, v{t3}')
    a(f'v_lshlrev_b32 v{t1}, 13, v{t1}'); a(f'v_lshl_add_u32 v{t1}, v{t2}, 4, v{t1}')
    a(f's_lshl_b32 {T0}, {H}, 8')
    a(f'v_add_u32 v{VD}, {T0}, v{t1}')
    a(f'v_lshrrev_b32 v{t1}, 4, v{LN}'); a(f'v_lshlrev_b32 v{t1}, 3, v{t1}')
    a(f'v_bfe_u32 v{t2}, v{LN}, 2, 2'); a(f'v_add_u32 v{t1}, v{t1}, v{t2}')
    a(f'v_lshlrev_b32 v{t1}, 8, v{t1}')
    a(f'v_and_b32 v{t3}, 1, v{t2}'); a(f'v_lshrrev_b32 v{t2}, 1, v{t2}'); a(f'v_lshl_or_b32 v{t2}, v{t2}, 2, v{t3}')
    a(f'v_bfe_u32 v{t3}, v{LN}, 1, 1'); a(f'v_lshlrev_b32 v{t3}, 1, v{t3}')
    a(f's_lshl_b32 {T0}, {W}, 2'); a(f'v_add_u32 v{t3}, {T0}, v{t3}')
    a(f'v_xor_b32 v{t2}, v{t2}, v{t3}')
    a(f'v_lshl_add_u32 v{t1}, v{t2}, 4, v{t1}')
    a(f'v_and_b32 v{t2}, 1, v{LN}'); a(f'v_lshl_add_u32 v{t1}, v{t2}, 3, v{t1}')
    for x in range(2):
        a(f's_and_b32 {T0}, {W}, 1'); a(f's_xor_b32 {T0}, {T0}, {x}'); a(f's_lshl_b32 {T0}, {T0}, 15')
        a(f'v_add_u32 v{TB[2*x]}, {T0}, v{t1}')
        a(f'v_xor_b32 v{TB[2*x+1]}, 16, v{TB[2*x]}')
        a(f'v_add_u32 v{TC[2*x]}, {L_WB}, v{TB[2*x]}')
        a(f'v_add_u32 v{TC[2*x+1]}, {L_WB}, v{TB[2*x+1]}')
    a(f's_lshl_b32 {T0}, {J}, 10'); a(f'v_add_u32 v{t1}, {T0}, v{V_L16}')
    for f in range(4):
        a(f'v_xor_b32 v{VOF[f]}, {f << 5}, v{t1}')
    a(f'v_bfe_u32 v{t1}, v{LN}, 4, 1'); a(f'v_lshlrev_b32 v{t1}, 5, v{t1}')
    a(f'v_lshrrev_b32 v{t2}, 5, v{LN}'); a(f'v_lshl_add_u32 v{t1}, v{t2}, 2, v{t1}')
    a(f'v_bfe_u32 v{t2}, v{LN}, 2, 2'); a(f'v_add_u32 v{t1}, v{t1}, v{t2}')
    a(f'v_lshlrev_b32 v{t1}, 10, v{t1}')
    a(f'v_lshl_add_u32 v{t1}, v{t2}, 5, v{t1}')
    a(f'v_and_b32 v{t2}, 3, v{LN}'); a(f'v_lshl_add_u32 v{t1}, v{t2}, 3, v{t1}')
    a(f's_lshl_b32 {T0}, {W}, 8'); a(f'v_add_u32 v{t1}, {T0}, v{t1}')
    for n in range(8):
        a(f'v_xor_b32 v{OB[n]}, {n << 5}, v{t1}')
        a(f'v_add_u32 v{OC[n]}, {L_WB}, v{OB[n]}')
    a(f's_lshl_b32 {T0}, {W}, 14'); a(f'v_add_u32 v{V_WL}, {T0}, v{V_L16}')

    def load_ptr(ka):
        a(f's_load_dwordx2 s[{S_PTR}:{S_PTR+1}], s[0:1], {ka}')
        a('s_waitcnt lgkmcnt(0)')
        a.srd(S_W, S_PTR, 8 << 20)

    def dma_qkv(P, region):
        a(f's_lshl_b32 {T0}, {J}, 22'); a(f's_lshl_b32 {T1}, {W}, 19'); a(f's_add_u32 {T0}, {T0}, {T1}')
        a(f's_add_u32 {T0}, {T0}, {P << 21}')
        a(f's_lshl_b32 {T1}, {W}, 14'); a(f's_add_u32 m0, {T1}, {region}')
        for i in range(16):
            a(f'buffer_load_dwordx4 v{VD}, s[{S_W}:{S_W+3}], {T0} offen lds')
            if i < 15:
                a(f's_add_u32 {T0}, {T0}, 32768'); a('s_add_u32 m0, m0, 1024'); a('s_nop 0')

    def dma_wo(cp, region):
        a(f's_lshl_b32 {T0}, {H}, 7'); a(f's_lshl_b32 {T1}, {W}, 4'); a(f's_add_u32 {T0}, {T0}, {T1}')
        a(f's_add_u32 {T0}, {T0}, {64*cp}'); a(f's_lshl_b32 {T0}, {T0}, 11')
        a(f's_lshl_b32 {T1}, {W}, 14'); a(f's_add_u32 m0, {T1}, {region}')
        for i in range(16):
            a(f'buffer_load_dwordx4 v{VOF[i & 3]}, s[{S_W}:{S_W+3}], {T0} offen lds')
            if i < 15:
                a(f's_add_u32 {T0}, {T0}, 2048'); a('s_add_u32 m0, m0, 1024'); a('s_nop 0')

    def read_qkv_range(base_pi, tb, dest):
        n = 0
        for pl in range(4):
            pi = base_pi + pl
            for tau in range(2):
                d = dest(pi, tau)
                for hq in range(2):
                    for q in range(2):
                        r = 4*hq + 2*q
                        a(f'ds_read_b64_tr_b16 {d(r)}, v{tb[2*(pl >> 1) + tau]} offset:{(pl & 1)*16384 + hq*8192 + q*1024}')
                a('s_waitcnt lgkmcnt(8)')

    def read_qkv(P, tb, dest, nm):
        l1, l2 = f'{tag}_ST{nm}A', f'{tag}_ST{nm}B'
        a(f's_lshr_b32 {T0}, {W}, 1'); a(f's_cmp_eq_u32 {T0}, {P}')
        a(f's_cbranch_scc0 {l1}')
        read_qkv_range(0, tb, dest)
        a(f's_branch {l2}')
        a.label(l1)
        read_qkv_range(4, tb, dest)
        a.label(l2)

    def read_wo(ad, dest):
        for nu in range(8):
            for hq in range(2):
                for q in range(2):
                    r = dest + 8*nu + 4*hq + 2*q
                    a(f'ds_read_b64_tr_b16 v[{r}:{r+1}], v{ad[nu]} offset:{hq*16384 + q*8192}')
            a('s_waitcnt lgkmcnt(8)')

    dq = lambda pi, t: (lambda r: f'a[{16*pi+8*t+r}:{16*pi+8*t+r+1}]')
    dk = lambda pi, t: (lambda r: f'a[{128+16*pi+8*t+r}:{128+16*pi+8*t+r+1}]')
    def dv(pi, t):
        b = WV_R + 16*pi + 8*t if pi < 4 else SREG + 16*(pi-4) + 8*t
        return lambda r: f'v[{b+r}:{b+r+1}]'

    pieces = [('q', 0), ('q', 1), ('k', 0), ('k', 1), ('v', 0), ('v', 1), ('o', 0), ('o', 1)]
    ptrs = {'q': KA_WQ, 'k': KA_WK, 'v': KA_WV, 'o': KA_WO}
    def issue(n):
        m, P = pieces[n]
        if P == 0: load_ptr(ptrs[m])
        reg = L_WB if n & 1 else L_WA
        if m == 'o': dma_wo(P, reg)
        else: dma_qkv(P, reg)
    issue(0); issue(1)
    for n in range(8):
        m, P = pieces[n]
        a(f's_waitcnt vmcnt({16 if n < 7 else 0})')
        a('s_barrier')
        tb = TC if n & 1 else TB
        if m == 'q': read_qkv(P, tb, dq, n)
        elif m == 'k': read_qkv(P, tb, dk, n)
        elif m == 'v': read_qkv(P, tb, dv, n)
        elif P == 0: read_wo(OB, WO_R)
        else: read_wo(OC, SREG)
        a('s_waitcnt lgkmcnt(0)')
        a('s_barrier')
        if n + 2 < 8: issue(n + 2)
        if n == 6:
            for i in range(16):
                r = SREG + 4*i
                a(f'ds_write_b128 v{V_WL}, v[{r}:{r+3}] offset:{L_WA + i*1024}')
            a('s_waitcnt lgkmcnt(0)')
        if n == 7:
            a(f'v_add_u32 v{V_WL}, {L_WB}, v{V_WL}')
            for i in range(16):
                r = SREG + 4*i
                a(f'ds_write_b128 v{V_WL}, v[{r}:{r+3}] offset:{i*1024}')
            a('s_waitcnt lgkmcnt(0)')


def kv_dma(cfg):
    KV = f's[{S_KV}:{S_KV+3}]'
    out = []
    out.append([f's_mov_b32 m0, s{S_KVB}', 's_nop 0', f'buffer_load_dwordx4 v{V_KDM}, {KV}, s{S_KVK} offen lds'])
    out.append([f's_add_u32 m0, s{S_KVB}, {1024-128}', 's_nop 0', f'buffer_load_dwordx4 v{V_KDM}, {KV}, s{S_KVK} offen offset:128 lds'])
    out.append([f's_add_u32 m0, s{S_KVB}, 2048', 's_nop 0', f'buffer_load_dwordx4 v{V_KDM}, {KV}, s{S_KVV} offen lds'])
    out.append([f's_add_u32 m0, s{S_KVB}, {3072-128}', 's_nop 0', f'buffer_load_dwordx4 v{V_KDM}, {KV}, s{S_KVV} offen offset:128 lds'])
    return out


def svload():
    return [f'ds_read_b128 v[{SREG+4*i}:{SREG+4*i+3}], v{V_T2} offset:{L_WA + i*1024}' for i in range(16)]

def wl_addr(a, dst, add=0):
    a(f's_lshl_b32 s{S_T0}, s{S_WV}, 14')
    if add: a(f's_add_u32 s{S_T0}, s{S_T0}, {add}')
    a(f'v_add_u32 v{dst}, s{S_T0}, v{V_L16}')


def rec_loop(a, cfg, P, sfl, dbg=None):
    SM = f's[{S_SM}:{S_SM+3}]'
    X = f's[{S_X}:{S_X+3}]'
    LO = f's[{S_LO8}:{S_LO8+1}]'
    HI = f's[{S_HI8}:{S_HI8+1}]'
    dbg = dbg or {}
    L = lambda s: f'{P}_{s}'
    def D(name, regs, tmp=V_T):
        if name in dbg:
            lab = a.newlabel(P + 'DBG')
            a(f's_cmp_lg_u32 s{S_STEP}, {dbg[name][1]}')
            a(f's_cbranch_scc1 {lab}')
            dbg_dump(a, regs, dbg[name][0], tmp)
            a.label(lab)
    prof = dbg.get('prof')
    def ST(i):
        if prof is not None: a(f's_memtime s[{64+2*i}:{65+2*i}]')

    MWr, A1, A2, A3 = AM + 8, AM + 12, AM + 20, AM + 28
    NEG = 24
    def top_prep():
        out = []
        out.append(f'v_add_u32 v{MWr}, {L_M}, v{V_AGP}')
        out.append(f'v_xor_b32 v{A1}, 0x800, v{MWr}')
        out.append(f'v_xor_b32 v{A2}, 0x1000, v{MWr}')
        out.append(f'v_xor_b32 v{A3}, 0x1800, v{MWr}')
        for r in range(40, 64, 2):
            out.append(f'v_mov_b64 v[{r}:{r+1}], 0')
        return out

    wl_addr(a, V_T2)
    sv0 = svload()
    a.ext(sv0[:8]); a('s_waitcnt lgkmcnt(0)'); a.ext(sv0[8:])
    a.ext(top_prep())
    for r in range(4): a(f'v_mov_b32 v{NEG+r}, -1')
    if cfg.kvflag is not None:
        a(f's_lshr_b32 s{S_KVFB}, s{S_H}, 1'); a(f's_lshl_b32 s{S_KVFB}, s{S_KVFB}, 4')
        a(f's_add_u32 s{S_KVFB}, s{S_KVFB}, {cfg.kvflag}')
        a(f's_mov_b32 s{S_KVOK}, 0')
    a.label(L('TOP'))
    if cfg.kvflag is not None:
        a(f's_cmp_eq_u32 s{S_KVOK}, 0'); a(f's_cbranch_scc1 {L("KVW")}')
        a.label(L('KVB'))
        if getattr(cfg, 'tl', False):
            lab = a.newlabel(P + 'TL')
            a(f's_cmp_lg_u32 s{S_STEP}, 0'); a(f's_cbranch_scc1 {lab}')
            a('s_memrealtime s[88:89]'); a('s_waitcnt lgkmcnt(0)'); a('s_mov_b32 s75, s88')
            a.label(lab)
    ST(0)
    a.label(L('PM'))
    a(f'buffer_load_dwordx4 v[{AM}:{AM+3}], v{V_AGP}, {SM}, s{S_MEMR} offen sc1')
    a(f'buffer_load_dwordx4 v[{AM+4}:{AM+7}], v{V_AGP}, {SM}, s{S_MEMR} offen offset:1024 sc1')
    a('s_waitcnt vmcnt(0)')
    max_chain(a, V_T, list(range(AM, AM + 8)))
    a(f'v_cmp_eq_u32 vcc, -1, v{V_T}')
    poll_end(a, L('PM'), L('PM_D'))
    ST(1)
    a(f'ds_write_b128 v{MWr}, v[{AM}:{AM+3}]')
    a(f'ds_write_b128 v{MWr}, v[{AM+4}:{AM+7}] offset:1024')
    def qk(pi):
        A = AM + 4*pi
        return [smf(AQ0, A, wq(pi, 0)), smf(AQ1, A, wq(pi, 1)), smf(AK0, A, wk(pi, 0)), smf(AK1, A, wk(pi, 1))]
    def qk4(pi): a.ext(qk(pi))
    def vv(pi): return [smf(AV0, AM + 4*pi, wv(pi, 0)), smf(AV1, AM + 4*pi, wv(pi, 1))]
    kvd = kv_dma(cfg) if 'kv' not in cfg.skip else [[], [], [], []]
    xcl = [f'buffer_store_dwordx4 v[{NEG}:{NEG+3}], v{V_L16}, {X}, s{S_XC} offen sc1',
           f'buffer_store_dwordx4 v[{NEG}:{NEG+3}], v{V_L16}, {X}, s{S_XC} offen offset:1024 sc1']
    m = qk(0)
    a(m[0]); a.ext(kvd[0]); a(m[1]); a.ext(kvd[1]); a(m[2]); a(xcl[0]); a(m[3]); a(xcl[1])
    a('s_waitcnt lgkmcnt(0)')
    a('s_barrier')
    ST(2)
    for pi in range(2, 8):
        ad = [A1, A2, A3][(pi >> 1) - 1]
        a(f'ds_read_b128 v[{AM+4*pi}:{AM+4*pi+3}], v{ad} offset:{(pi & 1)*1024}')
    m = qk(1)
    a(m[0]); a.ext(kvd[2]); a(m[1]); a.ext(kvd[3]); a(m[2]); a(m[3])
    a.ext(vv(0)); a.ext(vv(1))
    D('AM', list(range(AM, AM + 32)))
    for pi in range(2, 6):
        a(f's_waitcnt lgkmcnt({7 - pi})')
        qk4(pi)
    a('s_waitcnt lgkmcnt(0)')
    for pi in (6, 7):
        a(smf(AQ0, AM + 4*pi, wq(pi, 0))); a(smf(AQ1, AM + 4*pi, wq(pi, 1)))
    a(smf(AK0, AM + 24, wk(6, 0))); a(smf(AK1, AM + 24, wk(6, 1)))
    a(f'v_permlane32_swap_b32 v{AQ0}, v{AQ1}')
    a(f'v_permlane32_swap_b32 v{AQ0+1}, v{AQ1+1}')
    a(f'v_permlane32_swap_b32 v{AQ0+2}, v{AQ1+2}')
    a(smf(AK0, AM + 28, wk(7, 0)))
    a(f'v_permlane32_swap_b32 v{AQ0+3}, v{AQ1+3}')
    a(pkadd(AQ0, AQ0, AQ1))
    a(smf(AK1, AM + 28, wk(7, 1)))
    a(pkadd(AQ0 + 2, AQ0 + 2, AQ1 + 2))
    a('s_nop 0')
    a(f'v_cvt_pk_bf16_f32 v{XS}, v{AQ0}, v{AQ0+1}')
    VS = []
    for pi in [4, 5, 6, 7, 2, 3]: VS += vv(pi)
    a(VS[0])
    a(f'v_cvt_pk_bf16_f32 v{XS+1}, v{AQ0+2}, v{AQ0+3}')
    a('s_nop 1')
    a(VS[1])
    for r in range(4):
        a(f'v_permlane32_swap_b32 v{AK0+r}, v{AK1+r}')
    a(VS[2])
    a(pkadd(AK0, AK0, AK1)); a(pkadd(AK0 + 2, AK0 + 2, AK1 + 2))
    a('s_nop 0')
    a(f'v_cvt_pk_bf16_f32 v{XS+2}, v{AK0}, v{AK0+1}')
    a(f'v_cvt_pk_bf16_f32 v{XS+3}, v{AK0+2}, v{AK0+3}')
    a(VS[3])
    a(f'buffer_store_dwordx4 v[{XS}:{XS+3}], v{V_L16}, {X}, s{S_XW} offen sc1')
    ST(3)
    D('XS', [XS, XS+1, XS+2, XS+3])
    wl_addr(a, V_T2, L_WB)
    wo_ld = [f'ds_read_b128 v[{SREG+4*i}:{SREG+4*i+3}], v{V_T2} offset:{i*1024}' for i in range(16)]
    a(f'v_add_u32 v{V_T}, {L_C}, v{V_L16}')
    a(VS[4]); a(wo_ld[0]); a(wo_ld[1]); a(wo_ld[2])
    a(VS[5]); a(wo_ld[3]); a(wo_ld[4]); a(wo_ld[5])
    a(VS[6]); a(wo_ld[6]); a(wo_ld[7])
    a(VS[7])
    a(f'ds_read_b128 v[{SEL0}:{SEL0+3}], v{V_T}')
    a(f'ds_read_b128 v[{SEL1}:{SEL1+3}], v{V_T} offset:1024')
    a(VS[8]); a(wo_ld[8]); a(wo_ld[9])
    a(VS[9]); a(wo_ld[10]); a(wo_ld[11])
    a(VS[10])
    a('s_waitcnt lgkmcnt(4)')
    a(wo_ld[12]); a(wo_ld[13])
    a(VS[11])
    a(mf32(D0, XS, SEL0))
    a(wo_ld[14]); a(wo_ld[15])
    a(mf32(D1, XS, SEL1))
    a(f'v_lshrrev_b32 v{V_T2}, 1, v{V_L16}')
    a('s_nop 4')
    for r in range(4):
        a(f'v_permlane32_swap_b32 v{AV0+r}, v{AV1+r}')
    a('s_nop 0')
    a(pkadd(AV0, AV0, AV1)); a(pkadd(AV0 + 2, AV0 + 2, AV1 + 2))
    a('s_nop 0')
    a(f'v_cvt_pk_bf16_f32 v{VA}, v{AV0}, v{AV0+1}')
    a(f'v_cvt_pk_bf16_f32 v{VA+1}, v{AV0+2}, v{AV0+3}')
    a('s_nop 1')
    a(f'v_permlane16_swap_b32 v{VA}, v{VA+1}')
    a('s_nop 1')
    a(f'v_permlane32_swap_b32 v{VA}, v{VA+1}')
    a('s_nop 1')
    a(f'buffer_store_dwordx2 v[{VA}:{VA+1}], v{V_T2}, {X}, s{S_XW} offen offset:1024 sc1')
    ST(4)
    a('s_barrier')
    SW, SR, MR, PVA = XS, XS + 1, XS + 2, XS + 3
    a(f'v_mov_b32 v{PVA}, v{V_T2}')
    a(f'v_lshrrev_b32 v{SR}, 8, v{V_L16}'); a(f'v_lshlrev_b32 v{SR}, 7, v{SR}')
    a(f'v_and_b32 v{V_T}, 0x70, v{V_L16}')
    a(f'v_add_u32 v{SR}, v{SR}, v{V_T}')
    a(f'v_add_u32 v{SW}, s{S_SWB}, v{SR}')
    a(f'v_and_b32 v{V_T2}, 0x80, v{V_L16}')
    a(f'v_lshl_add_u32 v{SR}, v{V_T2}, 2, v{SR}')
    a(f'v_add_u32 v{SR}, {L_M}, v{SR}')
    a(f'v_lshrrev_b32 v{MR}, 9, v{V_L16}'); a(f'v_lshl_add_u32 v{MR}, v{MR}, 7, v{V_T}')
    a(f'v_bfe_u32 v{V_T}, v{V_L16}, 8, 1'); a(f'v_lshl_add_u32 v{MR}, v{V_T}, 3, v{MR}')
    a(f'v_bfe_u32 v{V_T}, v{V_L16}, 7, 1'); a(f'v_lshl_add_u32 v{MR}, v{V_T}, 2, v{MR}')
    a(f'v_add_u32 v{MR}, {L_M + 1280}, v{MR}')
    a(f'v_add_u32 v{V_T}, s{S_KVB}, v{V_L16}')
    a('s_waitcnt vmcnt(1)')
    ST(5)
    a.label(L('PQ'))
    a(f'buffer_load_dwordx4 v[{RX}:{RX+3}], v{V_L16}, {X}, s{S_XR} offen sc1')
    if True:
        a(f'ds_read_b128 v[{KT0}:{KT0+3}], v{V_T}')
        a(f'ds_read_b128 v[{KT1}:{KT1+3}], v{V_T} offset:1024')
        a(f'ds_read_b128 v[{VT0}:{VT0+3}], v{V_T} offset:2048')
        a(f'ds_read_b128 v[{VT1}:{VT1+3}], v{V_T} offset:3072')
    a('s_waitcnt vmcnt(0)')
    max_chain(a, V_T2, [RX, RX+1, RX+2, RX+3])
    a(f'v_cmp_eq_u32 vcc, -1, v{V_T2}')
    poll_end(a, L('PQ'), L('PQ_D'))
    ST(6)
    a('s_waitcnt lgkmcnt(0)')
    a(mf32(D0, RX, SEL0, D0))
    a(mf32(D1, RX, SEL1, D1))
    a(f'buffer_load_dwordx2 v[{RV}:{RV+1}], v{PVA}, {X}, s{S_XR} offen offset:1024 sc1')
    a(f's_cmp_eq_u32 s{S_STEP}, s{S_NST}')
    a('s_nop 2')
    a(f'v_cvt_pk_bf16_f32 v{TT}, v{D0}, v{D0+1}')
    a(f'v_cvt_pk_bf16_f32 v{TT+1}, v{D0+2}, v{D0+3}')
    a('s_nop 0')
    a(f'v_cvt_pk_bf16_f32 v{TT+2}, v{D1}, v{D1+1}')
    a(f'v_cvt_pk_bf16_f32 v{TT+3}, v{D1+2}, v{D1+3}')
    a(f's_cbranch_scc1 {L("TAIL")}')
    a('s_nop 0')
    a(mf32(SA, KT0, TT))
    a(mf32(SB, KT1, TT))
    a(mf32(SMM, TT, TT))
    D('T', [TT, TT+1, TT+2, TT+3], V_T2)
    a(f's_mov_b64 exec, {LO}')
    a('s_nop 1')
    a(f'ds_write_b128 v{SW}, v[{SA}:{SA+3}]')
    a('s_nop 1')
    a(f'ds_write_b128 v{SW}, v[{SB}:{SB+3}] offset:512')
    a('s_nop 2')
    a(f'ds_write_b128 v{SW}, v[{SMM}:{SMM+3}] offset:1024')
    a('s_mov_b64 exec, -1')
    a('s_waitcnt lgkmcnt(0)')
    a('s_barrier')
    ST(7)
    a(f'ds_read2st64_b32 v[{MM}:{MM+1}], v{MR} offset0:0 offset1:6')
    a(f'ds_read2st64_b32 v[{MM+2}:{MM+3}], v{MR} offset0:12 offset1:18')
    for w in range(4):
        r = R0 + 4*w
        a(f'ds_read_b128 v[{r}:{r+3}], v{SR} offset:{w*1536}')
    a(f'v_mov_b32 v{V_T}, v{PVA}') if False else None
    for r in range(WACC[0], WACC[0] + 8, 2):
        a(f'v_mov_b64 v[{r}:{r+1}], 0')
    a('s_waitcnt lgkmcnt(4)')
    a(pkadd(MM, MM, MM + 2))
    a('s_waitcnt lgkmcnt(2)')
    a(pkadd(R0, R0, R1)); a(pkadd(R0 + 2, R0 + 2, R1 + 2))
    a(f'v_add_f32 v{MM}, v{MM}, v{MM+1}')
    M, M2 = MM + 2, MM + 3
    HALF = SUM + 2
    a('s_waitcnt lgkmcnt(0)')
    a(pkadd(R2, R2, R3)); a(pkadd(R2 + 2, R2 + 2, R3 + 2))
    a(pkadd(R0, R0, R2)); a(pkadd(R0 + 2, R0 + 2, R2 + 2))
    a(f'v_mov_b32 v{ONES}, 0x3f803f80')
    a(f'v_max3_f32 v{M}, v{R0}, v{R0+1}, v{MM}')
    a(f'v_mov_b32 v{ONES+1}, 0x3f803f80')
    a(f'v_max3_f32 v{M}, v{M}, v{R0+2}, v{R0+3}')
    D('S', [R0, R0+1, R0+2, R0+3, MM], V_T2)
    a(f'v_mov_b32 v{ONES+2}, 0x3f803f80')
    a(f'v_mov_b32 v{ONES+3}, 0x3f803f80')
    a(f'v_max_f32_dpp v{M}, v{M}, v{M} row_ror:8 row_mask:0xf bank_mask:0xf')
    a(f'v_mov_b32 v{PMQ+2}, 0x3f003f00')
    a(f'v_mov_b32 v{M2}, v{M}')
    a(f'v_mov_b32 v{PMQ+3}, 0x3f003f00')
    a('s_nop 0')
    a(f'v_permlane32_swap_b32 v{M}, v{M2}')
    a('s_nop 0')
    a(f'v_max_f32 v{M}, v{M}, v{M2}')
    a(f'v_mov_b32 v{M2}, v{M}')
    a('s_nop 1')
    a(f'v_permlane16_swap_b32 v{M}, v{M2}')
    a('s_nop 0')
    a(f'v_max_f32 v{M}, v{M}, v{M2}')
    a(f'v_mul_f32 v{M}, s{S_SC}, v{M}')
    E = [R0, R0+1, R0+2, R0+3, MM]
    for e in E:
        a(f'v_fma_f32 v{e}, v{e}, s{S_SC}, -v{M}')
    for e in (MM, R0, R0+1, R0+2, R0+3):
        a(f'v_exp_f32 v{e}, v{e}')
    a(f'v_mov_b32_dpp v{M2}, v{MM} row_ror:8 row_mask:0xf bank_mask:0xf')
    a(f'v_cvt_pk_bf16_f32 v{PB}, v{R0}, v{R0+1}')
    a(f'v_cvt_pk_bf16_f32 v{PB+1}, v{R0+2}, v{R0+3}')
    a(f'v_cvt_pk_bf16_f32 v{PMQ}, v{MM}, v{M2}')
    a(f'v_mov_b32_dpp v{PB+2}, v{PB} row_ror:8 row_mask:0xf bank_mask:0xf')
    a(f'v_mov_b32_dpp v{PB+3}, v{PB+1} row_ror:8 row_mask:0xf bank_mask:0xf')
    a(f'v_cvt_pk_bf16_f32 v{PMQ+1}, v{MM}, v{M2}')
    ST(8)
    a('s_waitcnt vmcnt(0)')
    a(mf32(SUM, ONES, PB))
    a(f'v_max_u32 v{V_T2}, v{RV}, v{RV+1}')
    a(f'v_cmp_eq_u32 vcc, -1, v{V_T2}')
    a(mf32(O0, VT0, PB))
    a(f's_cbranch_vccz {L("PV_D")}')
    a(f'v_lshrrev_b32 v{V_T}, 1, v{V_L16}')
    a.label(L('PV'))
    a(f'buffer_load_dwordx2 v[{RV}:{RV+1}], v{V_T}, {X}, s{S_XR} offen offset:1024 sc1')
    a('s_waitcnt vmcnt(0)')
    a(f'v_max_u32 v{V_T2}, v{RV}, v{RV+1}')
    a(f'v_cmp_eq_u32 vcc, -1, v{V_T2}')
    poll_end(a, L('PV'), L('PV_D'))
    a(f'v_swap_b32 v{VA+1}, v{RV}')
    a(mf32(O1, VT1, PB))
    a(mf16(SUM, PMQ + 2, PMQ, SUM))
    a(mf16(O0, VA, PMQ, O0))
    a(mf16(O1, VA + 2, PMQ, O1))
    ST(9)
    a(f'v_rcp_f32 v{V_T}, v{SUM}')
    a(f'v_add_u32 v{V_T2}, s{S_OWB}, v{V_L16}')
    for r in range(WACC[2], WACC[3] + 4, 2):
        pass
    for r in (48, 50):
        a(f'v_mov_b64 v[{r}:{r+1}], 0')
    for r in (32, 34):
        a(f'v_mov_b64 v[{r}:{r+1}], 0')
    a('s_nop 0')
    D('O', [O0+i for i in range(8)] + [SUM], 36)
    for r in (O0, O0 + 2, O1, O1 + 2):
        a(f'v_pk_mul_f32 v[{r}:{r+1}], v[{r}:{r+1}], v[{V_T}:{V_T+1}] op_sel_hi:[1,0]')
    a(f'v_cvt_pk_bf16_f32 v{OA}, v{O0}, v{O0+1}')
    a(f'v_cvt_pk_bf16_f32 v{OA+1}, v{O1}, v{O1+1}')
    a(f'v_cvt_pk_bf16_f32 v{OA+2}, v{O0+2}, v{O0+3}')
    a(f'v_cvt_pk_bf16_f32 v{OA+3}, v{O1+2}, v{O1+3}')
    a(f's_mov_b64 exec, {LO}')
    a(f'ds_write2_b64 v{V_T2}, v[{OA}:{OA+1}], v[{OA+2}:{OA+3}] offset0:0 offset1:16')
    a('s_mov_b64 exec, -1')
    a(f'v_add_u32 v{V_T}, {L_O}, v{V_L16}')
    for r in (36, 38, 40, 42, 44, 46, 52, 54):
        a(f'v_mov_b64 v[{r}:{r+1}], 0')
    a('s_waitcnt lgkmcnt(0)')
    a('s_barrier')
    ST(10)
    a(f'ds_read_b128 v[{OA}:{OA+3}], v{V_T}')
    a(f'ds_read_b128 v[{OA+4}:{OA+7}], v{V_T} offset:1024')
    if 'pub' not in cfg.skip: publish(a, cfg, P, 'A')
    if cfg.kvflag is not None:
        a(f's_add_u32 s{S_T0}, s{S_STEP}, 1'); a(f's_lshr_b32 s{S_T0}, s{S_T0}, 2'); a(f's_lshl_b32 s{S_T0}, s{S_T0}, 8')
        a(f's_add_u32 s{S_T0}, s{S_T0}, s{S_KVFB}')
        a(f'buffer_load_dwordx2 v[56:57], off, {SM}, s{S_T0} sc1')
    def wo0(nu): a(smf(WACC[nu], OA, v8(WO_R + 8*nu)))
    def wo1(nu): a(smf(WACC[nu], OA + 4, v8(SREG + 8*nu)))
    def pack(p):
        t0, t1 = WACC[2*p], WACC[2*p + 1]
        out = []
        for r in range(4): out.append(f'v_permlane32_swap_b32 v{t0+r}, v{t1+r}')
        out.append(pkadd(t0, t0, t1)); out.append(pkadd(t0 + 2, t0 + 2, t1 + 2))
        out.append(f'v_cvt_pk_bf16_f32 v{t1}, v{t0}, v{t0+1}')
        out.append(f'v_cvt_pk_bf16_f32 v{t1+1}, v{t0+2}, v{t0+3}')
        out.append(f'buffer_store_dwordx2 v[{t1}:{t1+1}], v{V_PTW}, {SM}, s{S_PW+p} offen{sfl}')
        return out
    a('s_waitcnt lgkmcnt(1)')
    wo0(0); wo0(1)
    a('s_waitcnt lgkmcnt(0)')
    D('OA', [OA+i for i in range(8)])
    wo1(0); wo1(1)
    wo0(2); wo0(3)
    for p in range(1, 4):
        pk = pack(p - 1)
        a.ext(pk[0:3]); wo1(2*p); a.ext(pk[3:5]); a('s_nop 0'); wo1(2*p + 1); a(pk[5]); a('s_nop 0'); a.ext(pk[6:8])
        if p < 3:
            wo0(2*p + 2); a(pk[8]); wo0(2*p + 3)
        else:
            a(pk[8])
    wl_addr(a, V_T2)
    sv = svload()
    a.ext(sv[0:4])
    a('s_nop 1')
    pk = pack(3)
    a.ext(pk[0:4]); a('s_nop 0'); a.ext(pk[4:6]); a('s_nop 0'); a.ext(pk[6:9])
    ST(11)
    a.ext(sv[4:14])
    PRA = 28
    ln = 29
    a(f'v_lshrrev_b32 v{ln}, 4, v{V_L16}')
    if cfg.RS_PERM:
        a(f'v_lshrrev_b32 v{PRA}, 4, v{ln}'); a(f'v_lshlrev_b32 v{PRA}, 2, v{PRA}')
        a(f'v_and_b32 v{30}, 3, v{ln}'); a(f'v_add_u32 v{PRA}, v{PRA}, v{30}')
        a(f'v_mul_u32_u24 v{PRA}, {cfg.SH}, v{PRA}')
        a(f'v_bfe_u32 v{30}, v{ln}, 2, 2'); a(f'v_lshl_add_u32 v{PRA}, v{30}, 4, v{PRA}')
    else:
        a(f'v_lshrrev_b32 v{PRA}, 2, v{ln}'); a(f'v_mul_u32_u24 v{PRA}, {cfg.SH}, v{PRA}')
        a(f'v_and_b32 v{30}, 3, v{ln}'); a(f'v_lshl_add_u32 v{PRA}, v{30}, 4, v{PRA}')
    a(f'v_add_u32 v{PRA}, s{S_PRW}, v{PRA}')
    a(f'v_add_u32 v{V_T}, {L_C}, v{V_L16}')
    for r in range(4): a(f'v_mov_b32 v{NEG+r}, -1')
    a('s_waitcnt lgkmcnt(8)')
    a.ext(sv[14:16])
    a(f'ds_read_b128 v[{SELR}:{SELR+3}], v{V_T} offset:2048')
    a('s_waitcnt vmcnt(0)')
    ST(12)
    if cfg.kvflag is not None:
        a('v_and_b32 v56, v56, v57')
        a('s_nop 0')
        a(f'v_readfirstlane_b32 s{S_KVOK}, v56')
    a.label(L('PR'))
    a(f'buffer_load_dwordx4 v[{PR0}:{PR0+3}], v{PRA}, {SM}, s{S_PR} offen sc1')
    a(f'buffer_load_dwordx4 v[{PR1}:{PR1+3}], v{PRA}, {SM}, s{S_PR2} offen sc1')
    a('s_waitcnt vmcnt(0)')
    max_chain(a, V_T, list(range(PR0, PR0 + 8)))
    a(f'v_cmp_eq_u32 vcc, -1, v{V_T}')
    poll_end(a, L('PR'), L('PR_D'))
    ST(13)
    a('s_waitcnt lgkmcnt(0)')
    a(mf32(RD, PR0, SELR))
    a(mf32(RD, PR1, SELR, RD))
    a(f'buffer_store_dwordx4 v[{NEG}:{NEG+3}], v{PRA}, {SM}, s{S_PR} offen{sfl}') if cfg.EARLY_CLR else None
    a(f'buffer_store_dwordx4 v[{NEG}:{NEG+3}], v{PRA}, {SM}, s{S_PR2} offen{sfl}') if cfg.EARLY_CLR else None
    a('s_nop 5' if cfg.EARLY_CLR else 's_nop 7')
    if cfg.RS_PERM:
        a(pkadd(RD, RD, RD + 2))
        a('s_nop 0')
        a(f'v_add_f32 v{RD}, v{RD}, v{RD+1}')
    else:
        a(f'v_permlane32_swap_b32 v{RD}, v{RD+2}')
        a(f'v_permlane32_swap_b32 v{RD+1}, v{RD+3}')
        a('s_nop 0')
        a(pkadd(RD, RD, RD + 2))
        a('s_nop 1')
        a(f'v_permlane16_swap_b32 v{RD}, v{RD+1}')
        a('s_nop 0')
        a(f'v_add_f32 v{RD}, v{RD}, v{RD+1}')
    a('s_nop 1')
    a(f'v_mov_b32_dpp v{RD+1}, v{RD} row_shl:4 row_mask:0xf bank_mask:0xf')
    a('s_nop 0')
    a(f'v_cvt_pk_bf16_f32 v{RD}, v{RD}, v{RD+1}')
    a(f'buffer_store_dword v{RD}, v{V_MFW}, {SM}, s{S_MEMW} offen{sfl}')
    ST(14)
    nclr = 1
    if not cfg.EARLY_CLR:
        a(f'buffer_store_dwordx4 v[{NEG}:{NEG+3}], v{PRA}, {SM}, s{S_PR} offen{sfl}')
        a(f'buffer_store_dwordx4 v[{NEG}:{NEG+3}], v{PRA}, {SM}, s{S_PR2} offen{sfl}')
        nclr = 3
    a(f'buffer_store_dword v{NEG}, v{V_MFW}, {SM}, s{S_MEMR} offen{sfl}')
    if prof is not None:
        lab = a.newlabel(P + 'DBG')
        a(f's_cmp_lg_u32 s{S_STEP}, {prof[1]}')
        a(f's_cbranch_scc1 {lab}')
        a('s_waitcnt lgkmcnt(0)')
        a(f's_mov_b32 s94, s{S_BUD}')
        for i in range(16):
            a(f'v_mov_b32 v{8+i}, s{64+2*i}')
        dbg_dump(a, list(range(8, 24)), prof[0])
        for r in range(4): a(f'v_mov_b32 v{NEG+r}, -1')
        a.label(lab)
    T0 = f's{S_T0}'
    for s in (S_MEMR, S_MEMW):
        a(f's_add_u32 {T0}, s{s}, 16384'); a(f's_and_b32 {T0}, {T0}, 0xffff')
        a(f's_and_b32 s{s}, s{s}, 0xffff0000'); a(f's_or_b32 s{s}, s{s}, {T0}')
    for s in [S_PR, S_PR2] + [S_PW + p for p in range(4)]:
        a(f's_xor_b32 s{s}, s{s}, 0x80000')
    msk = cfg.NS * 32768 - 1
    for s in (S_XW, S_XR, S_XC):
        a(f's_add_u32 {T0}, s{s}, 32768'); a(f's_and_b32 {T0}, {T0}, 0x{msk:x}')
        a(f's_add_u32 s{s}, {T0}, s{S_XBASE}')
    a(f's_add_u32 s{S_QKM}, s{S_QKM}, {32*4096}')
    a(f's_add_u32 s{S_VMG}, s{S_VMG}, {32*2048}')
    a(f's_add_u32 s{S_KVK}, s{S_KVK}, {32*8192}')
    a(f's_add_u32 s{S_KVV}, s{S_KVV}, {32*8192}')
    a(f's_add_u32 s{S_STEP}, s{S_STEP}, 1')
    a.ext(top_prep())
    a(f's_waitcnt vmcnt({nclr})')
    a(f's_branch {L("TOP")}')
    if cfg.kvflag is not None:
        a.label(L('KVW'))
        a(f's_lshr_b32 s{S_T0}, s{S_STEP}, 2'); a(f's_lshl_b32 s{S_T0}, s{S_T0}, 8')
        a(f's_add_u32 s{S_T0}, s{S_T0}, s{S_KVFB}')
        a.label(L('KVP'))
        a(f'buffer_load_dwordx2 v[8:9], off, {SM}, s{S_T0} sc1')
        a('s_waitcnt vmcnt(0)')
        a('v_and_b32 v8, v8, v9')
        a('v_cmp_eq_u32 vcc, 0, v8')
        poll_end(a, L('KVP'), L('KVP_D'))
        a(f's_branch {L("KVB")}')

    a.label(L('TAIL'))
    a(f'v_lshrrev_b32 v{V_T}, 1, v{V_L16}')
    a.label(L('TV'))
    a(f'buffer_load_dwordx2 v[{RV}:{RV+1}], v{V_T}, {X}, s{S_XR} offen offset:1024 sc1')
    a('s_waitcnt vmcnt(0)')
    a(f'v_max_u32 v{V_T2}, v{RV}, v{RV+1}')
    a(f'v_cmp_eq_u32 vcc, -1, v{V_T2}')
    poll_end(a, L('TV'), L('TV_D'))
    a(f'v_swap_b32 v{VA+1}, v{RV}')
    publish(a, cfg, P, 'B')
    a('s_waitcnt vmcnt(0)')


def publish(a, cfg, P, tag):
    SM = f's[{S_SM}:{S_SM+3}]'
    HI = f's[{S_HI8}:{S_HI8+1}]'
    l1, l2 = f'{P}_PUB{tag}1', f'{P}_PUB{tag}2'
    a(f's_cmp_eq_u32 s{S_J}, 0')
    a(f's_cbranch_scc0 {l1}')
    ad, ad2 = 62, 63
    a(f'v_lshrrev_b32 v{ad}, 8, v{V_L16}'); a(f'v_lshlrev_b32 v{ad}, 7, v{ad}')
    a(f'v_and_b32 v{ad2}, 0x70, v{V_L16}'); a(f'v_add_u32 v{ad}, v{ad}, v{ad2}')
    a(f's_mov_b64 exec, {HI}')
    a(f'buffer_store_dwordx4 v[{TT}:{TT+3}], v{ad}, {SM}, s{S_QKM} offen sc1')
    a('s_mov_b64 exec, -1')
    a(f's_branch {l2}')
    a.label(l1)
    t0, t1, t2, t3 = 56, 57, 58, 59
    def add2(x, y, dst):
        a(f'v_lshlrev_b32 v{t0}, 16, v{x}'); a(f'v_and_b32 v{t1}, 0xffff0000, v{x}')
        a(f'v_lshlrev_b32 v{t2}, 16, v{y}'); a(f'v_and_b32 v{t3}, 0xffff0000, v{y}')
        a(f'v_pk_add_f32 v[{t0}:{t1}], v[{t0}:{t1}], v[{t2}:{t3}]')
        a(f'v_cvt_pk_bf16_f32 v{dst}, v{t0}, v{t1}')
    add2(60, 61, 60)
    add2(62, 63, 61)
    ad = 62
    a(f'v_lshrrev_b32 v{ad}, 9, v{V_L16}'); a(f'v_lshlrev_b32 v{ad}, 8, v{ad}')
    a(f'v_bfe_u32 v{t0}, v{V_L16}, 8, 1'); a(f'v_lshl_add_u32 v{ad}, v{t0}, 2, v{ad}')
    a(f'v_bfe_u32 v{t0}, v{V_L16}, 7, 1'); a(f'v_lshl_add_u32 v{ad}, v{t0}, 7, v{ad}')
    a(f'v_bfe_u32 v{t0}, v{V_L16}, 4, 3'); a(f'v_lshl_add_u32 v{ad}, v{t0}, 3, v{ad}')
    a(f'buffer_store_dword v60, v{ad}, {SM}, s{S_VMG} offen sc1')
    a(f'buffer_store_dword v61, v{ad}, {SM}, s{S_VMG} offen offset:64 sc1')
    a.label(l2)


def post_v(a, cfg, P):
    X = f's[{S_X}:{S_X+3}]'
    T0 = f's{S_T0}'
    a(f's_add_u32 s{S_KVK}, s{S_KVK}, {32*8192}')
    a(f's_add_u32 s{S_KVV}, s{S_KVV}, {32*8192}')
    if 'kv' not in cfg.skip:
        for g in kv_dma(cfg): a.ext(g)
    for r in range(16, 20): a(f'v_mov_b32 v{r}, -1')
    a(f'v_lshrrev_b32 v20, 1, v{V_L16}')
    a(f'buffer_store_dwordx4 v[16:19], v{V_L16}, {X}, s{S_XC} offen sc1')
    a(f'buffer_store_dwordx2 v[16:17], v20, {X}, s{S_XC} offen offset:1024 sc1')
    msk = cfg.NS * 32768 - 1
    for s in (S_XW, S_XR, S_XC):
        a(f's_add_u32 {T0}, s{s}, 32768'); a(f's_and_b32 {T0}, {T0}, 0x{msk:x}')
        a(f's_add_u32 s{s}, {T0}, s{S_XBASE}')
    a(f's_add_u32 s{S_QKM}, s{S_QKM}, {32*4096}')
    a(f's_add_u32 s{S_VMG}, s{S_VMG}, {32*2048}')


def near_static(a, val):
    a(f's_mov_b32 s{S_NEAR}, {val}')


def near_measure(a, cfg, P):
    SM = f's[{S_SM}:{S_SM+3}]'
    X = f's[{S_X}:{S_X+3}]'
    T0, T1, T2, T3 = f's{S_T0}', f's{S_T1}', f's{S_T2}', f's{S_T3}'
    l1 = f'{P}_NM1'
    a(f's_lshl_b32 {T0}, s{S_WV}, 1'); a(f's_or_b32 {T0}, {T0}, s{S_J}')
    a(f's_cmp_eq_u32 {T0}, 0'); a(f's_cbranch_scc0 {l1}')
    a(f's_add_u32 {T0}, s{S_XBASE}, {(cfg.NS-1)*32768 + 1536}')
    a('v_mov_b32 v8, 0')
    a(f'buffer_load_dword v9, v8, {X}, {T0} offen offset:384 sc1')
    a('s_waitcnt vmcnt(0)')
    a('s_mov_b32 s70, -1'); a('s_mov_b32 s71, -1')
    for i in range(6):
        for b in range(2):
            off = b*8192 + (i % 3)*128 + (i // 3)*2048
            a(f's_add_u32 {T1}, {T0}, {off}')
            a('s_memtime s[64:65]')
            a('s_waitcnt lgkmcnt(0)')
            a(f'buffer_load_dword v9, v8, {X}, {T1} offen sc1')
            a('s_waitcnt vmcnt(0)')
            a('s_memtime s[66:67]')
            a('s_waitcnt lgkmcnt(0)')
            a('s_sub_u32 s66, s66, s64')
            a(f's_min_u32 s{70+b}, s{70+b}, s66')
    a('s_cmp_lt_u32 s71, s70'); a(f's_cselect_b32 {T2}, 1, 0')
    a(f'v_mov_b32 v9, {T2}')
    a(f's_lshl_b32 {T1}, s{S_H}, 7'); a(f's_add_u32 {T1}, {T1}, {C_CNT + 4096}')
    a('v_cmp_eq_u32 vcc, 0, v%d' % V_L16)
    a('s_and_saveexec_b64 s[64:65], vcc')
    a(f'buffer_store_dword v9, v8, {SM}, {T1} offen sc1')
    a('s_mov_b64 exec, s[64:65]')
    a('s_waitcnt vmcnt(0)')
    a.label(l1)
    lp, dn = f'{P}_NM2', f'{P}_NM3'
    a(f's_lshl_b32 {T1}, s{S_H}, 7'); a(f's_add_u32 {T1}, {T1}, {C_CNT + 4096}')
    a('v_mov_b32 v8, 0')
    a.label(lp)
    a(f'buffer_load_dword v9, v8, {SM}, {T1} offen sc1')
    a('s_waitcnt vmcnt(0)')
    a('v_cmp_eq_u32 vcc, -1, v9')
    poll_end(a, lp, dn)
    a(f'v_readfirstlane_b32 s{S_NEAR}, v9')
    a(f's_and_b32 s{S_NEAR}, s{S_NEAR}, 1')


def gen_recc(nsteps=63, dbg=None, cfg=None, P='RC', near=None, sfl=''):
    cfg = cfg or Cfg()
    a = Asm()
    a('s_cmp_ge_u32 s2, 256')
    a(f's_cbranch_scc1 {P}_EXIT')
    if cfg.dynamic:
        common_setup(a)
        role_dynamic(a, cfg, P, f'{P}_EXIT')
    else:
        role_static(a, f'{P}_EXIT')
        common_setup(a)
    role_setup(a, cfg)
    a(f's_mov_b32 s{S_NST}, {nsteps}')
    const_tables(a)
    stage_weights(a, P)
    if near is None: near_measure(a, cfg, P)
    else: near_static(a, near)
    x_offsets(a, cfg)
    a('s_waitcnt vmcnt(0) lgkmcnt(0)')
    a('s_barrier')
    if cfg.dynamic:
        a(f's_cmp_eq_u32 s{S_MODE}, 1')
        a(f's_cbranch_scc0 {P}_FB')
        rec_loop(a, cfg, P, '', dbg)
        a('s_endpgm')
        a.label(f'{P}_FB')
        rec_loop(a, cfg, P + 'F', ' sc1', None)
    else:
        rec_loop(a, cfg, P, sfl, dbg)
    a.label(f'{P}_EXIT')
    a('s_endpgm')
    return a.text()


def gen_prepc(cfg=None):
    cfg = cfg or Cfg()
    a = Asm()
    a('s_cmp_ge_u32 s2, 256')
    a('s_cbranch_scc1 PREP_END')
    a(f's_load_dwordx2 s[4:5], s[0:1], {KA_WS}')
    a(f's_load_dwordx2 s[6:7], s[0:1], {KA_MEM0}')
    a('s_lshl_b32 s3, s2, 12')
    a('v_lshlrev_b32 v1, 4, v0')
    a('v_add_u32 v1, s3, v1')
    for r in range(4):
        a(f'v_mov_b32 v{4+r}, -1'); a(f'v_mov_b32 v{8+r}, 0')
    a('s_waitcnt lgkmcnt(0)')
    a.srd(8, 4, SM_SIZE, add=WS_SM)
    a.srd(12, 6, 8 * 1024 * 2)
    a.srd(20, 4, 64 << 20, add=WS_X)
    a(f's_mov_b32 s16, {C_PART}')
    a('buffer_store_dwordx4 v[4:7], v1, s[8:11], s16 offen')
    a('s_lshr_b32 s17, s2, 3'); a(f's_mul_i32 s17, s17, {cfg.NS*32768}')
    a('s_and_b32 s18, s2, 7'); a('s_lshl_b32 s18, s18, 12'); a('s_add_u32 s17, s17, s18')
    a('v_lshlrev_b32 v2, 4, v0')
    for i in range(3):
        a('buffer_store_dwordx4 v[4:7], v2, s[20:23], s17 offen')
        a('s_add_u32 s17, s17, 32768')
    a('s_cmp_eq_u32 s2, 16'); a('s_cbranch_scc0 PREP_N1')
    a(f's_mov_b32 s16, {C_CNT}')
    a('buffer_store_dwordx4 v[8:11], v2, s[8:11], s16 offen')
    a.label('PREP_N1')
    a('s_cmp_eq_u32 s2, 17'); a('s_cbranch_scc0 PREP_N2')
    a(f's_mov_b32 s16, {C_CNT + 4096}')
    a('buffer_store_dwordx4 v[4:7], v2, s[8:11], s16 offen')
    a.label('PREP_N2')
    a('s_cmp_ge_u32 s2, 16'); a('s_cbranch_scc1 PREP_END')
    a('s_cmp_lt_u32 s2, 4')
    a('s_cbranch_scc1 PREP_M0')
    a(f's_mov_b32 s16, {C_MEMF}')
    a('buffer_store_dwordx4 v[4:7], v1, s[8:11], s16 offen')
    a('s_branch PREP_END')
    a.label('PREP_M0')
    a('v_lshrrev_b32 v2, 4, v1')
    a('v_and_b32 v3, 7, v2'); a('v_lshlrev_b32 v3, 11, v3')
    a('v_lshrrev_b32 v12, 4, v2'); a('v_lshl_add_u32 v3, v12, 5, v3')
    a('v_bfe_u32 v12, v2, 3, 1'); a('v_lshl_add_u32 v3, v12, 2, v3')
    for t in range(4):
        a(f'buffer_load_dword v{4+t}, v3, s[12:15], 0 offen offset:{t*8}')
    a('s_waitcnt vmcnt(0)')
    for t in range(4):
        a(f'v_min_u32 v{4+t}, -2, v{4+t}')
    a(f's_mov_b32 s16, {C_MEMF}')
    a('buffer_store_dwordx4 v[4:7], v1, s[8:11], s16 offen')
    a.label('PREP_END')
    a('s_endpgm')
    return a.text()
```

```python
from asmlib import *
import tasks, tasks2, k_recc as rc
from gemm2 import Eng, S_WAVE, S_T0, S_T1, S_T2
from tasks import S_RB, S_CB, S_KS, S_PW, S_PWS, S_OSRD, MB, task_gemm
from k_ln import bf16_round, reduce_bits345

FL_KVQ = SM_CNT + 0x2000
FL_SEG = SM_CNT + 0x4000
F_AF, F_WF, F_RF, F_GF, F_DF = 0, 512, 1024, 1536, 2560
FL_END = FL_SEG + 64 * 4096

S_WID, S_RND, S_SEG, S_BUDW, S_EARLY, S_FOFF = 90, 91, 92, 93, 94, 95
S_FL = 96
FLS = f's[{S_FL}:{S_FL+3}]'
L_BC = 0x27F00

TL = False
TL_BASE = 0xF000000
def tl_stamp(a, vreg, lane=None):
    if not TL: return
    a('s_memrealtime s[88:89]'); a('s_waitcnt lgkmcnt(0)')
    if lane is None:
        a(f's_mov_b32 m0, s{S_SEG}'); a('s_nop 3'); a(f'v_writelane_b32 v{vreg}, s88, m0')
    else:
        a(f'v_writelane_b32 v{vreg}, s88, {lane}')
def tl_init(a, vregs):
    if not TL: return
    for v in vregs: a(f'v_mov_b32 v{v}, 0')
    a(f'v_writelane_b32 v{vregs[-1]}, s100, 0'); a(f'v_writelane_b32 v{vregs[-1]}, s101, 1')
def tl_dump(a, vregs):
    if not TL: return
    a('s_waitcnt vmcnt(0)')
    a(f's_load_dwordx2 s[40:41], s[0:1], {KA_WS}'); a('s_waitcnt lgkmcnt(0)')
    a.srd(4, 40, 1 << 20, add=TL_BASE)
    a(f's_lshl_b32 s42, s{S_WID}, 2'); a(f's_add_u32 s42, s42, s{S_WAVE}'); a('s_lshl_b32 s42, s42, 10')
    a('v_and_b32 v1, 63, v0'); a('v_lshlrev_b32 v1, 2, v1')
    for i, v in enumerate(vregs):
        a(f'buffer_store_dword v{v}, v1, s[4:7], s42 offen offset:{256*i}')
    a('s_waitcnt vmcnt(0)')

def budget(a, lab, done):
    a(f's_cbranch_vccz {done}')
    a(f's_cmp_eq_u32 s{S_BUDW}, 0')
    a(f's_cbranch_scc1 {done}')
    a(f's_sub_u32 s{S_BUDW}, s{S_BUDW}, 1')
    a(f's_branch {lab}')
    a.label(done)

def minchain(a, dst, regs):
    if len(regs) == 1:
        a(f'v_mov_b32 v{dst}, v{regs[0]}'); return
    if len(regs) == 2:
        a(f'v_min_u32 v{dst}, v{regs[0]}, v{regs[1]}'); return
    a(f'v_min3_u32 v{dst}, v{regs[0]}, v{regs[1]}, v{regs[2]}')
    i = 3
    while i + 1 < len(regs):
        a(f'v_min3_u32 v{dst}, v{dst}, v{regs[i]}, v{regs[i+1]}'); i += 2
    if i < len(regs): a(f'v_min_u32 v{dst}, v{dst}, v{regs[i]}')

def flag_load(a, vaddr, vdst, width):
    sfx = {1: 'dword', 4: 'dwordx4'}[width]
    r = f'v{vdst}' if width == 1 else f'v[{vdst}:{vdst+3}]'
    a(f'buffer_load_{sfx} {r}, v{vaddr}, {FLS}, s{S_FOFF} offen sc1')

def flag_test(a, vdst, width, vt):
    if width == 1:
        a(f'v_cmp_eq_u32 vcc, 0, v{vdst}')
    else:
        minchain(a, vt, list(range(vdst, vdst + 4)))
        a(f'v_cmp_eq_u32 vcc, 0, v{vt}')

def poll(a, name, vaddr, vdst, width, vt):
    lab = a.newlabel(name); done = lab + '_D'
    a.label(lab)
    flag_load(a, vaddr, vdst, width)
    a('s_waitcnt vmcnt(0)')
    flag_test(a, vdst, width, vt)
    budget(a, lab, done)

def seg_foff(a, add=0):
    a(f's_lshl_b32 s{S_FOFF}, s{S_SEG}, 12')
    a(f's_add_u32 s{S_FOFF}, s{S_FOFF}, {FL_SEG + add * 4096}')

def set_flag(a, vaddr, vone, off):
    seg_foff(a)
    a('s_mov_b64 exec, 1')
    a(f'buffer_store_dword v{vone}, v{vaddr}, {FLS}, s{S_FOFF} offen offset:{off} sc1')
    a('s_mov_b64 exec, -1')

def role_gemm(a, kind, nseg=64, prof=False):
    N = kind
    NP = 8
    def ST(i):
        if not prof: return
        a('s_memtime s[56:57]'); a('s_waitcnt lgkmcnt(0)')
        a('s_sub_u32 s59, s56, s58'); a(f's_add_u32 s{60+i}, s{60+i}, s59'); a('s_mov_b32 s58, s56')
    KS_, CB_ = 28, 29
    nk = 56 if kind == 'DN' else 64
    nch = nk // 8
    nd = nk // 4
    SW, SX, SO = 4, 8, 12
    T0, T1, T2 = f's{S_T0}', f's{S_T1}', f's{S_T2}'
    W = f's{S_WAVE}'
    LN, L16, VD, VT_, t1, t2 = 1, 2, 3, 4, 5, 6
    VXR, VPA, VPF, VFA, VONE, VOUT = 7, 8, 12, 16, 17, 18
    XF = 20
    AC0, AC1 = 52, 68
    TMP = 84
    a(f's_load_dwordx2 s[{S_PWS}:{S_PWS+1}], s[0:1], {KA_WS}')
    if kind == 'GU':
        a(f's_load_dwordx2 s[{S_PW}:{S_PW+1}], s[0:1], {KA_WG}')
        a(f's_load_dwordx2 s[40:41], s[0:1], {KA_WU}')
    else:
        a(f's_load_dwordx2 s[{S_PW}:{S_PW+1}], s[0:1], {KA_WO if kind == "WO" else KA_WD}')
    a(f'v_and_b32 v{LN}, 63, v0')
    a(f'v_lshlrev_b32 v{L16}, 4, v{LN}')
    a('s_waitcnt lgkmcnt(0)')
    if kind == 'GU':
        a(f's_cmp_ge_u32 {W}, 2')
        a(f's_cselect_b32 s{S_PW}, s40, s{S_PW}')
        a(f's_cselect_b32 s{S_PW+1}, s41, s{S_PW+1}')
    a.srd(SW, S_PW, (8 if kind == 'WO' else 7) * MB)
    xo, xb = {'WO': (WS_OF, 16*MB), 'GU': (WS_HN, 4*MB), 'DN': (WS_ACT, 14*MB)}[kind]
    a.srd(SX, S_PWS, xb, add=xo)
    oo, ob = {'WO': (WS_P1, 32*MB), 'GU': (WS_ACT, 14*MB), 'DN': (WS_P2, 32*MB)}[kind]
    a.srd(SO, S_PWS, ob, add=oo)
    S_GO, S_M0 = 42, 43
    if kind == 'GU':
        a(f'v_lshrrev_b32 v{t1}, 3, v{LN}'); a(f'v_mul_u32_u24 v{VD}, 7168, v{t1}')
        a(f'v_and_b32 v{t1}, 7, v{LN}'); a(f'v_lshl_add_u32 v{VD}, v{t1}, 4, v{VD}')
        a(f's_lshl_b32 {T0}, s{CB_}, 7')
        a(f's_and_b32 {T1}, {W}, 1'); a(f's_mul_i32 {T1}, {T1}, {64*7168}')
        a(f's_add_u32 s{S_GO}, {T0}, {T1}')
        a(f's_lshl_b32 s{S_M0}, {W}, 13')
        istep, cstep = 8 * 7168, 128 * 7168
        a(f'v_bfe_u32 v{t1}, v{LN}, 2, 2'); a(f'v_lshrrev_b32 v{t2}, 5, v{LN}')
        a(f'v_lshl_add_u32 v{t1}, v{t2}, 2, v{t1}'); a(f'v_lshlrev_b32 v{VT_}, 7, v{t1}')
        a(f'v_bfe_u32 v{t1}, v{LN}, 4, 1'); a(f'v_lshl_add_u32 v{VT_}, v{t1}, 14, v{VT_}')
        a(f'v_and_b32 v{t1}, 3, v{LN}'); a(f'v_lshl_add_u32 v{VT_}, v{t1}, 3, v{VT_}')
        a(f's_lshl_b32 {T0}, {W}, 5'); a(f'v_add_u32 v{VT_}, {T0}, v{VT_}')
        kkoff, h2off = 2048, 1024
    else:
        rows0 = 1024 if kind == 'WO' else 896
        a(f'v_lshrrev_b32 v{t1}, 4, v{LN}'); a(f'v_lshlrev_b32 v{t2}, 2, v{t1}')
        a(f'v_and_b32 v{VD}, 15, v{LN}'); a(f'v_xor_b32 v{VD}, v{VD}, v{t2}'); a(f'v_lshlrev_b32 v{VD}, 4, v{VD}')
        a(f'v_lshl_add_u32 v{VD}, v{t1}, 11, v{VD}')
        a(f's_mul_i32 {T0}, s{KS_}, {rows0 * 2048}'); a(f's_lshl_b32 {T1}, s{CB_}, 8'); a(f's_add_u32 {T0}, {T0}, {T1}')
        a(f's_lshl_b32 {T1}, {W}, 16'); a(f's_add_u32 s{S_GO}, {T0}, {T1}')
        a(f's_lshl_b32 s{S_M0}, {W}, 13')
        istep, cstep = 4 * 2048, 128 * 2048
        a(f'v_bfe_u32 v{t1}, v{LN}, 2, 2')
        a(f'v_lshrrev_b32 v{t2}, 5, v{LN}'); a(f'v_lshl_add_u32 v{t2}, v{t2}, 2, v{t1}'); a(f'v_lshlrev_b32 v{VT_}, 8, v{t2}')
        a(f'v_xor_b32 v{t1}, {W}, v{t1}'); a(f'v_lshl_add_u32 v{VT_}, v{t1}, 6, v{VT_}')
        a(f'v_bfe_u32 v{t1}, v{LN}, 4, 1'); a(f'v_lshl_add_u32 v{VT_}, v{t1}, 5, v{VT_}')
        a(f'v_and_b32 v{t1}, 3, v{LN}'); a(f'v_lshl_add_u32 v{VT_}, v{t1}, 3, v{VT_}')
        kkoff, h2off = 4096, 2048
    def wdma(q):
        a(f's_add_u32 {T0}, s{S_GO}, {q * cstep}')
        a(f's_add_u32 m0, s{S_M0}, {(q & 3) * 32768}')
        for i in range(8):
            a('s_nop 0')
            a(f'buffer_load_dwordx4 v{VD}, s[{SW}:{SW+3}], {T0} offen lds')
            if i < 7:
                a(f's_add_u32 {T0}, {T0}, {istep}'); a('s_add_u32 m0, m0, 1024')
    TLV = [200, 201, 202]
    tl_init(a, TLV)
    for q in range(min(4, nch)): wdma(q)
    for q in range(nch):
        left = min(nch, q + 4) - (q + 1)
        left = min(nch, max(4, q + 4)) - (q + 1)
        a(f's_waitcnt vmcnt({8 * left})')
        a('s_barrier')
        a(f'v_add_u32 v{t1}, {(q & 3) * 32768}, v{VT_}')
        for kk in range(8):
            kb = 8 * q + kk
            a(f'ds_read_b64_tr_b16 a[{4*kb}:{4*kb+1}], v{t1} offset:{kk * kkoff}')
            a(f'ds_read_b64_tr_b16 a[{4*kb+2}:{4*kb+3}], v{t1} offset:{kk * kkoff + h2off}')
            if kk % 4 == 3: a('s_waitcnt lgkmcnt(0)')
        a('s_barrier')
        if q + 4 < nch: wdma(q + 4)
    S_XO, S_XM0, S_OO = 44, 45, 46
    xstride = {'WO': 262144, 'GU': 65536, 'DN': 229376}[kind]
    if kind == 'WO':   a(f's_lshl_b32 s{S_XO}, s{KS_}, 16')
    elif kind == 'DN': a(f's_mul_i32 s{S_XO}, s{KS_}, {56*1024}')
    else:              a(f's_mov_b32 s{S_XO}, 0')
    a(f's_lshl_b32 {T0}, {W}, 10'); a(f's_add_u32 s{S_XO}, s{S_XO}, {T0}')
    a(f's_lshl_b32 s{S_XM0}, {W}, 10')
    if kind == 'GU':
        a(f's_lshl_b32 {T0}, s{CB_}, 2'); a(f's_add_u32 {T0}, {T0}, {W}'); a(f's_lshl_b32 s{S_OO}, {T0}, 10')
        ostride = 229376
    else:
        a(f's_lshl_b32 {T0}, s{KS_}, 23'); a(f's_lshl_b32 {T1}, s{CB_}, 14'); a(f's_add_u32 {T0}, {T0}, {T1}')
        a(f's_lshl_b32 {T1}, {W}, 12'); a(f's_add_u32 s{S_OO}, {T0}, {T1}')
        ostride = 1 << 17
    if kind == 'WO':
        a(f'v_and_b32 v{VPA}, 7, v{LN}'); a(f'v_lshlrev_b32 v{VPA}, 2, v{VPA}')
        a(f's_lshl_b32 {T0}, s{KS_}, 5'); a(f's_add_u32 {T0}, {T0}, {F_AF}'); a(f'v_add_u32 v{VPA}, {T0}, v{VPA}')
        pw = 1
    elif kind == 'GU':
        a(f'v_and_b32 v{VPA}, 3, v{LN}'); a(f'v_lshlrev_b32 v{VPA}, 4, v{VPA}'); a(f'v_add_u32 v{VPA}, {F_RF}, v{VPA}')
        pw = 4
    else:
        a(f'v_min_u32 v{VPA}, 13, v{LN}'); a(f'v_lshlrev_b32 v{VPA}, 4, v{VPA}')
        a(f's_mul_i32 {T0}, s{KS_}, {14*16}'); a(f's_add_u32 {T0}, {T0}, {F_GF}'); a(f'v_add_u32 v{VPA}, {T0}, v{VPA}')
        pw = 4
    if kind == 'GU':
        a(f's_lshl_b32 {T0}, s{CB_}, 4'); fo = F_GF
    else:
        a(f's_lshl_b32 {T0}, s{KS_}, 3'); a(f's_add_u32 {T0}, {T0}, s{CB_}'); a(f's_lshl_b32 {T0}, {T0}, 4')
        fo = F_WF if kind == 'WO' else F_DF
    a(f's_lshl_b32 {T1}, {W}, 2'); a(f's_add_u32 {T0}, {T0}, {T1}'); a(f'v_mov_b32 v{VFA}, {T0}')
    a(f'v_mov_b32 v{VONE}, 1')
    a(f'v_mov_b32 v{VOUT}, {L_BC}')
    a(f's_mov_b32 s{S_SEG}, 0'); a(f's_mov_b32 s{S_EARLY}, 0')

    def xdma(par_sreg_add):
        add = par_sreg_add
        a(f's_add_u32 {T1}, s{S_SEG}, {add}')
        a(f's_mul_i32 {T0}, {T1}, {xstride}'); a(f's_add_u32 {T0}, {T0}, s{S_XO}')
        a(f's_and_b32 {T1}, {T1}, 1'); a(f's_lshl_b32 {T1}, {T1}, 16'); a(f's_add_u32 m0, {T1}, s{S_XM0}')
        for i in range(nd):
            a('s_nop 0')
            a(f'buffer_load_dwordx4 v{L16}, s[{SX}:{SX+3}], {T0} offen lds')
            if i < nd - 1:
                a(f's_add_u32 {T0}, {T0}, 4096'); a('s_add_u32 m0, m0, 4096')

    top, have = f'{N}_TOP', f'{N}_HAVE'
    tl_stamp(a, TLV[2], 2)
    if prof:
        for i in range(NP + 1): a(f's_mov_b32 s{60+i}, 0')
        a('s_memtime s[56:57]'); a('s_waitcnt lgkmcnt(0)'); a('s_mov_b32 s58, s56')
    a.label(top)
    a(f's_cmp_lg_u32 s{S_EARLY}, 0'); a(f's_cbranch_scc1 {have}')
    nw = f'{N}_NW0'
    a(f's_cmp_lg_u32 {W}, 0'); a(f's_cbranch_scc1 {nw}')
    seg_foff(a)
    poll(a, N + '_P', VPA, VPF, pw, t1)
    a.label(nw)
    a('s_barrier')
    xdma(0)
    a.label(have)
    tl_stamp(a, TLV[0])
    ST(0)
    nw2 = f'{N}_NW1'
    a(f's_cmp_lg_u32 {W}, 0'); a(f's_cbranch_scc1 {nw2}')
    seg_foff(a, 1)
    flag_load(a, VPA, VPF, pw)
    a.label(nw2)
    a(f's_and_b32 {T0}, s{S_SEG}, 1'); a(f's_lshl_b32 {T0}, {T0}, 16')
    a(f'v_add_u32 v{VXR}, {T0}, v{L16}')
    nchunk = 4
    per = nk // nchunk
    dper = nd // nchunk if nd % nchunk == 0 else None
    def rd(kb):
        r = XF + 4 * (kb % 8)
        return f'ds_read_b128 v[{r}:{r+3}], v{VXR} offset:{kb * 1024}'
    def mf(kb):
        r = XF + 4 * (kb % 8); ac = AC0 if kb % 2 == 0 else AC1
        c = '0' if kb < 2 else f'v[{ac}:{ac+15}]'
        return f'v_mfma_f32_32x32x16_bf16 v[{ac}:{ac+15}], a[{4*kb}:{4*kb+3}], v[{r}:{r+3}], {c}'
    bounds = [0, 16, 32, 48, nk] if nk == 64 else [0, 16, 32, 44, 56]
    for c in range(nchunk):
        k0, k1 = bounds[c], bounds[c + 1]
        need = (k1 + 3) // 4
        a(f's_waitcnt vmcnt({nd - need})')
        if c == nchunk - 1:
            nw3 = f'{N}_NW2'
            a(f's_cmp_lg_u32 {W}, 0'); a(f's_cbranch_scc1 {nw3}')
            a('s_waitcnt vmcnt(0)')
            flag_test(a, VPF, pw, t1)
            a(f's_cmp_eq_u64 vcc, 0'); a(f's_cselect_b32 {T0}, 1, 0')
            a(f'v_mov_b32 v{t1}, {T0}')
            a(f'ds_write_b32 v{VOUT}, v{t1}')
            a('s_waitcnt lgkmcnt(0)')
            a.label(nw3)
        a('s_barrier')
        if c == 0: ST(1)
        if c == nchunk - 1: ST(2)
        if c == nchunk - 1:
            a(f'ds_read_b32 v{t2}, v{VOUT}')
        D = 6
        ks = list(range(k0, k1))
        for kb in ks[:D]: a(rd(kb))
        for i, kb in enumerate(ks):
            rem = min(len(ks), i + D) - (i + 1)
            a(f's_waitcnt lgkmcnt({rem})')
            a(mf(kb))
            if i + D < len(ks): a(rd(ks[i + D]))
    ST(3)
    a(f'v_readfirstlane_b32 s{S_EARLY}, v{t2}')
    if prof: a(f's_add_u32 s68, s68, s{S_EARLY}')
    a(f's_cmp_ge_u32 s{S_SEG}, {nseg - 1}'); a(f's_cselect_b32 s{S_EARLY}, 0, s{S_EARLY}')
    a(f's_mul_i32 {T2}, s{S_SEG}, {ostride}'); a(f's_add_u32 {T2}, {T2}, s{S_OO}')
    a('s_nop 7'); a('s_nop 7')
    for r in range(16):
        a(f'v_add_f32 v{AC0+r}, v{AC0+r}, v{AC1+r}')
    if kind == 'GU':
        G, U, T = AC0, AC0 + 8, TMP
        for r in range(8):
            a(f'v_cvt_pk_bf16_f32 v{T+r}, v{AC0+2*r}, v{AC0+2*r+1}')
        for r in range(4):
            a(f'v_lshlrev_b32 v{G+2*r}, 16, v{T+r}'); a(f'v_and_b32 v{G+2*r+1}, 0xffff0000, v{T+r}')
        for r in range(8): a(f'v_mul_f32 v{G+r}, 0xbfb8aa3b, v{G+r}')
        for r in range(4):
            a(f'v_lshlrev_b32 v{U+2*r}, 16, v{T+4+r}'); a(f'v_and_b32 v{U+2*r+1}, 0xffff0000, v{T+4+r}')
        for r in range(8): a(f'v_exp_f32 v{G+r}, v{G+r}')
        for r in range(8): a(f'v_add_f32 v{G+r}, 1.0, v{G+r}')
        for r in range(8): a(f'v_rcp_f32 v{G+r}, v{G+r}')
        a('s_nop 0')
        for r in range(4): a(f'v_cvt_pk_bf16_f32 v{T+r}, v{G+2*r}, v{G+2*r+1}')
        for r in range(4):
            a(f'v_lshlrev_b32 v{G+2*r}, 16, v{T+r}'); a(f'v_and_b32 v{G+2*r+1}, 0xffff0000, v{T+r}')
        for r in range(8): a(f'v_mul_f32 v{G+r}, v{G+r}, v{U+r}')
        for r in range(4): a(f'v_cvt_pk_bf16_f32 v{T+r}, v{G+2*r}, v{G+2*r+1}')
        a(f'buffer_store_dwordx4 v[{T}:{T+3}], v{L16}, s[{SO}:{SO+3}], {T2} offen sc1')
    else:
        for q in range(4):
            a(f'buffer_store_dwordx4 v[{AC0+4*q}:{AC0+4*q+3}], v{L16}, s[{SO}:{SO+3}], {T2} offen offset:{q*1024} sc1')
    ST(4)
    late, fin = f'{N}_LATE', f'{N}_FIN'
    a(f's_cmp_eq_u32 s{S_EARLY}, 0'); a(f's_cbranch_scc1 {late}')
    xdma(1)
    a(f's_waitcnt vmcnt({nd})')
    a(f's_branch {fin}')
    a.label(late)
    a('s_waitcnt vmcnt(0)')
    a.label(fin)
    ST(5)
    set_flag(a, VFA, VONE, fo)
    tl_stamp(a, TLV[1])
    a(f's_add_u32 s{S_SEG}, s{S_SEG}, 1')
    a(f's_cmp_lt_u32 s{S_SEG}, {nseg}'); a(f's_cbranch_scc1 {top}')
    tl_dump(a, TLV)
    if prof:
        a('s_waitcnt vmcnt(0)')
        a.srd(4, S_PWS, 1 << 20, add=0xF000000)
        a(f's_lshl_b32 {T0}, s2, 2'); a(f's_add_u32 {T0}, {T0}, {W}'); a(f's_lshl_b32 {T0}, {T0}, 6')
        a('v_mov_b32 v1, 0')
        a('s_mov_b64 exec, 1')
        for i in range(9):
            a(f'v_mov_b32 v2, s{60+i}')
            a(f'buffer_store_dword v2, v1, s[4:7], {T0} offen offset:{4*i}')
        a('s_mov_b64 exec, -1')
        a('s_waitcnt vmcnt(0)')


SCALE = '0x3db504f3'
LOG2E = '0x3fb8aa3b'
def role_att(a, nseg=64, prof=False):
    T0, T1, T2 = f's{S_T0}', f's{S_T1}', f's{S_T2}'
    S_HD, S_FM, S_KMO, S_VMO = 40, 41, 43, 44
    SQ, SK, SV, SO = 4, 8, 12, S_OSRD
    VA, VKM, VVM, VD, VFA, VONE, VKF = 2, 3, 6, 7, 8, 9, 10
    Q, K, KMr, VT, VM = 16, 48, 80, 112, 144
    S, SM = 160, 176
    P, PM = 192, 200
    O = 16
    T = 208
    R = 224
    def ST(i):
        if not prof: return
        a('s_memtime s[84:85]'); a('s_waitcnt lgkmcnt(0)')
        a('s_sub_u32 s87, s84, s86'); a(f's_add_u32 s{100}, s87, 0') if False else None
    a(f's_load_dwordx2 s[{S_PWS}:{S_PWS+1}], s[0:1], {KA_WS}')
    a('v_and_b32 v1, 63, v0')
    a(f's_lshl_b32 {T0}, s28, 2'); a(f's_add_u32 s{S_HD}, {T0}, s{S_WAVE}')
    a(f'v_lshlrev_b32 v{VA}, 4, v1')
    a('v_lshrrev_b32 v4, 5, v1')
    a(f'v_and_b32 v{VKM}, 7, v1'); a(f'v_lshlrev_b32 v{VKM}, 4, v{VKM}'); a(f'v_lshl_add_u32 v{VKM}, v4, 7, v{VKM}')
    a('v_and_b32 v5, 31, v1')
    a(f'v_lshlrev_b32 v{VVM}, 3, v5'); a(f'v_lshl_add_u32 v{VVM}, v4, 8, v{VVM}')
    a(f'v_lshlrev_b32 v{VD}, 2, v4'); a(f'v_sub_u32 v{VD}, v5, v{VD}')
    a(f's_lshl_b32 {T0}, s{S_HD}, 2'); a(f'v_mov_b32 v{VFA}, {T0}')
    a(f'v_mov_b32 v{VONE}, 1')
    a(f's_lshr_b32 {T0}, s{S_HD}, 1'); a(f's_lshl_b32 {T0}, {T0}, 4'); a(f'v_mov_b32 v{VKF}, {T0}')
    a('s_waitcnt lgkmcnt(0)')
    a.srd(SQ, S_PWS, 16*MB, add=WS_QF)
    a.srd(SK, S_PWS, 16*MB, add=WS_KF)
    a.srd(SV, S_PWS, 16*MB, add=WS_VT)
    a.srd(SO, S_PWS, 16*MB, add=WS_OF)
    for r in range(16):
        cr = (r & 3) + 8 * (r >> 2)
        a(f'v_cmp_le_i32 s[{52+2*r}:{53+2*r}], {cr}, v{VD}')
    for t in range(4):
        a(f'v_mov_b32 v{VM+4*t+2}, 0'); a(f'v_mov_b32 v{VM+4*t+3}, 0')
    a(f'v_mov_b32 v{PM+2}, 0'); a(f'v_mov_b32 v{PM+3}, 0')
    a(f's_mov_b32 s{S_SEG}, 0')
    def offs(add):
        a(f's_add_u32 {T0}, s{S_SEG}, {add}'); a(f's_lshl_b32 {T0}, {T0}, 5'); a(f's_add_u32 {T0}, {T0}, s{S_HD}')
        a(f's_lshl_b32 s{S_FM}, {T0}, 13')
    def qkv_loads():
        a(f's_add_u32 s42, s{S_FM}, 0x1000')
        so = lambda i: f's{S_FM}' if i < 4 else 's42'
        for kb in range(8):
            a(f'buffer_load_dwordx4 v[{K+4*kb}:{K+4*kb+3}], v{VA}, s[{SK}:{SK+3}], {so(kb)} offen offset:{(kb&3)*1024}')
            a(f'buffer_load_dwordx4 v[{Q+4*kb}:{Q+4*kb+3}], v{VA}, s[{SQ}:{SQ+3}], {so(kb)} offen offset:{(kb&3)*1024}')
        for i in range(8):
            a(f'buffer_load_dwordx4 v[{VT+4*i}:{VT+4*i+3}], v{VA}, s[{SV}:{SV+3}], {so(i)} offen offset:{(i&3)*1024}')
    def kvq_wait(add):
        lab = a.newlabel('AT_NB')
        a(f's_add_u32 {T0}, s{S_SEG}, {add}'); a(f's_and_b32 {T1}, {T0}, 3')
        a(f's_cmp_lg_u32 {T1}, 0'); a(f's_cbranch_scc1 {lab}')
        a(f's_lshr_b32 {T0}, {T0}, 2'); a(f's_lshl_b32 {T0}, {T0}, 8'); a(f's_add_u32 s{S_FOFF}, {T0}, {FL_KVQ}')
        lp = a.newlabel('AT_KF'); dn = lp + '_D'
        a.label(lp)
        a(f'buffer_load_dwordx4 v[{T}:{T+3}], v{VKF}, {FLS}, s{S_FOFF} offen sc1')
        a('s_waitcnt vmcnt(0)')
        a(f'v_min3_u32 v{T}, v{T}, v{T+1}, v{T+2}')
        a(f'v_cmp_eq_u32 vcc, 0, v{T}')
        budget(a, lp, dn)
        a.label(lab)
    TLV = [12, 13, 14]
    tl_init(a, TLV)
    kvq_wait(0); offs(0); qkv_loads()
    tl_stamp(a, TLV[2], 2)
    a.label('AT_TOP')
    for kb in range(8):
        a(f's_waitcnt vmcnt({8 + 2*(7-kb)})')
        c = '0' if kb == 0 else f'v[{S}:{S+15}]'
        a(f'v_mfma_f32_32x32x16_bf16 v[{S}:{S+15}], v[{K+4*kb}:{K+4*kb+3}], v[{Q+4*kb}:{Q+4*kb+3}], {c}')
    a(f's_lshl_b32 {T0}, s{S_SEG}, 5'); a(f's_add_u32 {T0}, {T0}, s{S_HD}')
    a(f's_lshl_b32 s{S_KMO}, {T0}, 12'); a(f's_add_u32 s{S_KMO}, s{S_KMO}, {SM_QKM + 2048}')
    a(f's_lshl_b32 s{S_VMO}, {T0}, 11'); a(f's_add_u32 s{S_VMO}, s{S_VMO}, {SM_VMG}')
    def kmvm():
        for kb in range(8):
            a(f'buffer_load_dwordx4 v[{KMr+4*kb}:{KMr+4*kb+3}], v{VKM}, {FLS}, s{S_KMO} offen offset:{kb*256} sc1')
        for t in range(4):
            a(f'buffer_load_dwordx2 v[{VM+4*t}:{VM+4*t+1}], v{VVM}, {FLS}, s{S_VMO} offen offset:{t*512} sc1')
    kmvm()
    a('s_nop 7')
    def rnd(base, n):
        for r in range(n // 2):
            a(f'v_cvt_pk_bf16_f32 v{T+r}, v{base+2*r}, v{base+2*r+1}')
        for r in range(n // 2):
            a(f'v_lshlrev_b32 v{base+2*r}, 16, v{T+r}')
            a(f'v_and_b32 v{base+2*r+1}, 0xffff0000, v{T+r}')
    rnd(S, 16)
    for r in range(16): a(f'v_mul_f32 v{S+r}, {SCALE}, v{S+r}')
    rnd(S, 16)
    a(f'v_mov_b32 v{T+10}, 0xce6e6b28')
    for r in range(16):
        a(f'v_cndmask_b32 v{S+r}, v{T+10}, v{S+r}, s[{52+2*r}:{53+2*r}]')
    M = T + 11
    a(f'v_max3_f32 v{M}, v{S}, v{S+1}, v{S+2}')
    a(f'v_max3_f32 v{M+1}, v{S+3}, v{S+4}, v{S+5}')
    for r in range(6, 14, 4):
        a(f'v_max3_f32 v{M}, v{M}, v{S+r}, v{S+r+1}')
        a(f'v_max3_f32 v{M+1}, v{M+1}, v{S+r+2}, v{S+r+3}')
    a(f'v_max3_f32 v{M}, v{M}, v{S+14}, v{S+15}')
    a(f'v_max_f32 v{M}, v{M}, v{M+1}')
    kmr = list(range(KMr, KMr + 32)) + [VM + 4*t + q for t in range(4) for q in range(2)]
    def notready():
        a('s_waitcnt vmcnt(0)')
        rc.max_chain(a, T, kmr)
        a(f'v_cmp_eq_u32 vcc, -1, v{T}')
    notready()
    a('s_cbranch_vccz AT_GO')
    a.label('AT_PL')
    kmvm()
    notready()
    budget(a, 'AT_PL', 'AT_GO')
    tl_stamp(a, TLV[0])
    for kb in range(8):
        c = '0' if kb == 0 else f'v[{SM}:{SM+15}]'
        a(f'v_mfma_f32_32x32x16_bf16 v[{SM}:{SM+15}], v[{KMr+4*kb}:{KMr+4*kb+3}], v[{Q+4*kb}:{Q+4*kb+3}], {c}')
    a('s_nop 7'); a('s_nop 7')
    rnd(SM, 4)
    for r in range(4): a(f'v_mul_f32 v{SM+r}, {SCALE}, v{SM+r}')
    rnd(SM, 4)
    a(f'v_max3_f32 v{M}, v{M}, v{SM}, v{SM+1}')
    a(f'v_max3_f32 v{M}, v{M}, v{SM+2}, v{SM+3}')
    a(f'v_mov_b32 v{M+1}, v{M}')
    a('s_nop 1')
    a(f'v_permlane32_swap_b32 v{M}, v{M+1}')
    a('s_nop 1')
    a(f'v_max_f32 v{M}, v{M}, v{M+1}')
    N = 20
    for r in range(N): a(f'v_sub_f32 v{S+r}, v{S+r}, v{M}')
    for r in range(N): a(f'v_mul_f32 v{S+r}, {LOG2E}, v{S+r}')
    for r in range(N): a(f'v_exp_f32 v{S+r}, v{S+r}')
    a(f'v_add_f32 v{M}, v{S}, v{S+1}')
    a(f'v_add_f32 v{M+1}, v{S+2}, v{S+3}')
    for r in range(4, N, 2):
        a(f'v_add_f32 v{M}, v{M}, v{S+r}')
        a(f'v_add_f32 v{M+1}, v{M+1}, v{S+r+1}')
    a(f'v_add_f32 v{M}, v{M}, v{M+1}')
    a(f'v_mov_b32 v{M+1}, v{M}')
    a('s_nop 1')
    a(f'v_permlane32_swap_b32 v{M}, v{M+1}')
    a('s_nop 1')
    a(f'v_add_f32 v{M}, v{M}, v{M+1}')
    a(f'v_rcp_f32 v{M}, v{M}')
    a('s_nop 0')
    for r in range(N): a(f'v_mul_f32 v{S+r}, v{S+r}, v{M}')
    for r in range(8): a(f'v_cvt_pk_bf16_f32 v{P+r}, v{S+2*r}, v{S+2*r+1}')
    a(f'v_cvt_pk_bf16_f32 v{PM}, v{S+16}, v{S+17}')
    a(f'v_cvt_pk_bf16_f32 v{PM+1}, v{S+18}, v{S+19}')
    a('s_nop 1')
    for t in range(4):
        o = O + 16*t
        a(f'v_mfma_f32_32x32x16_bf16 v[{o}:{o+15}], v[{VT+8*t}:{VT+8*t+3}], v[{P}:{P+3}], 0')
    for t in range(4):
        o = O + 16*t
        a(f'v_mfma_f32_32x32x16_bf16 v[{o}:{o+15}], v[{VT+8*t+4}:{VT+8*t+7}], v[{P+4}:{P+7}], v[{o}:{o+15}]')
    for t in range(4):
        o = O + 16*t
        a(f'v_mfma_f32_32x32x16_bf16 v[{o}:{o+15}], v[{VM+4*t}:{VM+4*t+3}], v[{PM}:{PM+3}], v[{o}:{o+15}]')
    a(f's_add_u32 s42, s{S_FM}, 0x1000')
    a('s_nop 7')
    for t in range(4):
        o = O + 16*t
        if t == 3: a('s_nop 7')
        for r in range(8):
            a(f'v_cvt_pk_bf16_f32 v{R+8*t+r}, v{o+2*r}, v{o+2*r+1}')
        for hlf in range(2):
            i = 2*t + hlf
            so = f's{S_FM}' if i < 4 else 's42'
            a(f'buffer_store_dwordx4 v[{R+8*t+4*hlf}:{R+8*t+4*hlf+3}], v{VA}, s[{SO}:{SO+3}], {so} offen offset:{(i&3)*1024} sc1')
    a(f's_cmp_ge_u32 s{S_SEG}, {nseg - 1}'); a('s_cbranch_scc1 AT_LAST')
    a(f's_add_u32 {T0}, s{S_SEG}, 1'); a(f's_and_b32 {T0}, {T0}, 3')
    a(f's_cmp_lg_u32 {T0}, 0'); a('s_cbranch_scc1 AT_NF')
    a('s_waitcnt vmcnt(0)')
    set_flag(a, VFA, VONE, F_AF)
    kvq_wait(1); offs(1); qkv_loads()
    a('s_branch AT_NX')
    a.label('AT_NF')
    offs(1); qkv_loads()
    a('s_waitcnt vmcnt(24)')
    set_flag(a, VFA, VONE, F_AF)
    a.label('AT_NX')
    tl_stamp(a, TLV[1])
    a(f's_add_u32 s{S_SEG}, s{S_SEG}, 1')
    a('s_branch AT_TOP')
    a.label('AT_LAST')
    a('s_waitcnt vmcnt(0)')
    set_flag(a, VFA, VONE, F_AF)
    tl_stamp(a, TLV[1])
    tl_dump(a, TLV)


def role_red(a, which, nseg=64, ldsb=0):
    N = f'R{which}'
    T0, T1, T2 = f's{S_T0}', f's{S_T1}', f's{S_T2}'
    W = f's{S_WAVE}'
    SP, SX, SH, SO = 4, 8, 12, S_OSRD
    S_PO, S_FM = 40, 41
    VP, VF, VR, VPA, VFA, VONE = 8, 2, 3, 7, 9, 15
    a(f's_load_dwordx2 s[{S_PWS}:{S_PWS+1}], s[0:1], {KA_WS}')
    a(f's_load_dwordx2 s[{S_PW}:{S_PW+1}], s[0:1], {KA_X if which == 1 else KA_OUT}')
    a('v_and_b32 v1, 63, v0')
    a('v_and_b32 v4, 7, v1')
    a('v_bfe_u32 v5, v1, 3, 1')
    a('v_lshrrev_b32 v6, 4, v1')
    a(f's_lshl_b32 {T0}, s29, 3')
    a(f'v_add_u32 v10, {T0}, v4')
    a(f'v_lshl_add_u32 v{VP}, v6, 2, v5'); a(f'v_lshlrev_b32 v{VP}, 9, v{VP}'); a(f'v_lshl_add_u32 v{VP}, v10, 4, v{VP}')
    a(f's_lshl_b32 {T0}, {W}, 15'); a(f'v_add_u32 v{VP}, {T0}, v{VP}')
    a(f'v_lshl_add_u32 v{VF}, v5, 5, v10'); a(f'v_lshlrev_b32 v{VF}, 4, v{VF}'); a(f'v_lshl_add_u32 v{VF}, v6, 10, v{VF}')
    a(f's_lshl_b32 {T0}, {W}, 14'); a(f'v_add_u32 v{VF}, {T0}, v{VF}')
    a(f'v_lshlrev_b32 v{VR}, 11, v10'); a(f'v_lshl_add_u32 v{VR}, v6, 5, v{VR}')
    a(f'v_lshl_add_u32 v{VR}, v5, {3 if which == 1 else 4}, v{VR}')
    a(f's_lshl_b32 {T0}, {W}, 9'); a(f'v_add_u32 v{VR}, {T0}, v{VR}')
    a(f'v_bfe_u32 v{VPA}, v1, 1, 2'); a(f'v_lshlrev_b32 v{VPA}, 3, v{VPA}')
    a(f'v_and_b32 v10, 1, v1'); a(f'v_add_u32 v{VPA}, v{VPA}, v10')
    a(f's_lshl_b32 {T0}, {W}, 1'); a(f'v_add_u32 v{VPA}, {T0}, v{VPA}')
    a(f'v_lshlrev_b32 v{VPA}, 4, v{VPA}'); a(f'v_add_u32 v{VPA}, {F_WF if which == 1 else F_DF}, v{VPA}')
    a(f's_lshl_b32 {T0}, s29, 4'); a(f's_lshl_b32 {T1}, {W}, 2'); a(f's_add_u32 {T0}, {T0}, {T1}'); a(f'v_mov_b32 v{VFA}, {T0}')
    a(f'v_mov_b32 v{VONE}, 1')
    if which == 1:
        a('v_lshlrev_b32 v13, 2, v4'); a(f's_lshl_b32 {T0}, {W}, 5'); a(f'v_add_u32 v14, {T0}, v13')
    else:
        a('v_cmp_eq_u32 s[44:45], 0, v5')
    a('s_waitcnt lgkmcnt(0)')
    a.srd(SP, S_PWS, 32*MB, add=WS_P1 if which == 1 else WS_P2)
    if which == 1:
        a.srd(SX, S_PW, 4*MB); a.srd(SH, S_PWS, 4*MB, add=WS_HB); a.srd(SO, S_PWS, 4*MB, add=WS_HN)
    else:
        a.srd(SX, S_PWS, 4*MB, add=WS_HB); a.srd(SO, S_PW, 4*MB)
    a(f's_mov_b32 s{S_SEG}, s28')
    L, X, F, G, H = 16, 144, 160, 16, 48
    TLV = [210, 211, 212]
    tl_init(a, TLV)
    tl_stamp(a, TLV[2], 2)
    a.label(f'{N}_TOP')
    a(f's_lshl_b32 s{S_FM}, s{S_SEG}, 16')
    a(f's_lshl_b32 s{S_PO}, s{S_SEG}, 17')
    if which == 1:
        for it in range(4):
            for h in range(2):
                r = X + (it*2 + h)*2
                a(f'buffer_load_dwordx2 v[{r}:{r+1}], v{VR}, s[{SX}:{SX+3}], s{S_FM} offen offset:{it*128 + h*16}')
    seg_foff(a)
    poll(a, N + '_P', VPA, 200, 4, 204)
    tl_stamp(a, TLV[0])
    for ks in range(4):
        for it in range(4):
            a(f's_add_u32 {T2}, s{S_PO}, {ks*(1<<23) + it*8192}')
            for h in range(2):
                r = L + ((ks*4 + it)*2 + h)*4
                a(f'buffer_load_dwordx4 v[{r}:{r+3}], v{VP}, s[{SP}:{SP+3}], {T2} offen offset:{h*1024}')
    nx = 0
    if which == 2:
        for it in range(4):
            a(f's_add_u32 {T2}, s{S_FM}, {it*4096}')
            a(f'buffer_load_dwordx4 v[{X+4*it}:{X+4*it+3}], v{VF}, s[{SX}:{SX+3}], {T2} offen')
        nx = 4
    tasks2.red_sum(a, L, F, nx)
    a('s_waitcnt vmcnt(0)')
    for i in range(16):
        a(f'v_lshlrev_b32 v{G+2*i}, 16, v{X+i}'); a(f'v_and_b32 v{G+2*i+1}, 0xffff0000, v{X+i}')
    for i in range(32): a(f'v_add_f32 v{F+i}, v{F+i}, v{G+i}')
    for i in range(16): a(f'v_cvt_pk_bf16_f32 v{H+i}, v{F+2*i}, v{F+2*i+1}')
    if which == 1:
        for it in range(4):
            a(f's_add_u32 {T2}, s{S_FM}, {it*4096}')
            a(f'buffer_store_dwordx4 v[{H+4*it}:{H+4*it+3}], v{VF}, s[{SH}:{SH+3}], {T2} offen sc1')
        for i in range(16):
            a(f'v_lshlrev_b32 v{F+2*i}, 16, v{H+i}'); a(f'v_and_b32 v{F+2*i+1}, 0xffff0000, v{H+i}')
        A0 = 100
        for c in range(4): a(f'v_add_f32 v{A0+c}, v{F+c}, v{F+4+c}')
        for i in range(8, 32, 4):
            for c in range(4): a(f'v_add_f32 v{A0+c}, v{A0+c}, v{F+i+c}')
        a(f'v_add_f32 v{A0}, v{A0}, v{A0+1}'); a(f'v_add_f32 v{A0+2}, v{A0+2}, v{A0+3}'); a(f'v_add_f32 v{A0}, v{A0}, v{A0+2}')
        reduce_bits345(a, A0, A0 + 4)
        a(f'ds_write_b32 v14, v{A0} offset:{ldsb}')
        a('s_waitcnt lgkmcnt(0)')
        a('s_barrier')
        for w in range(4): a(f'ds_read_b32 v{A0+w}, v13 offset:{ldsb + w*32}')
        a('s_waitcnt lgkmcnt(0)')
        MU = 10
        a(f'v_add_f32 v{A0}, v{A0}, v{A0+1}'); a(f'v_add_f32 v{A0+2}, v{A0+2}, v{A0+3}'); a(f'v_add_f32 v{MU}, v{A0}, v{A0+2}')
        a(f'v_mul_f32 v{MU}, 0x3a800000, v{MU}')
        for c in range(4): a(f'v_mov_b32 v{64+c}, 0')
        for i in range(0, 32, 4):
            for c in range(4): a(f'v_sub_f32 v{68+c}, v{F+i+c}, v{MU}')
            for c in range(4): a(f'v_fmac_f32 v{64+c}, v{68+c}, v{68+c}')
        RS = 11
        a('v_add_f32 v64, v64, v65'); a('v_add_f32 v66, v66, v67'); a(f'v_add_f32 v{RS}, v64, v66')
        reduce_bits345(a, RS, A0 + 4)
        a(f'ds_write_b32 v14, v{RS} offset:{ldsb + 128}')
        a('s_waitcnt lgkmcnt(0)')
        a('s_barrier')
        for w in range(4): a(f'ds_read_b32 v{64+w}, v13 offset:{ldsb + 128 + w*32}')
        a('s_waitcnt lgkmcnt(0)')
        a('v_add_f32 v64, v64, v65'); a('v_add_f32 v66, v66, v67'); a(f'v_add_f32 v{RS}, v64, v66')
        a(f'v_mul_f32 v{RS}, 0x3a800000, v{RS}')
        bf16_round(a, RS, RS)
        a(f'v_add_f32 v{RS}, 0x3727c5ac, v{RS}')
        bf16_round(a, RS, RS)
        a(f'v_sqrt_f32 v{RS}, v{RS}')
        a('s_nop 0')
        bf16_round(a, RS, RS)
        a(f'v_rcp_f32 v{RS}, v{RS}')
        bf16_round(a, MU, MU)
        for i in range(32): a(f'v_sub_f32 v{F+i}, v{F+i}, v{MU}')
        for i in range(16): a(f'v_cvt_pk_bf16_f32 v{G+i}, v{F+2*i}, v{F+2*i+1}')
        for i in range(16):
            a(f'v_lshlrev_b32 v{F+2*i}, 16, v{G+i}'); a(f'v_and_b32 v{F+2*i+1}, 0xffff0000, v{G+i}')
        for i in range(32): a(f'v_mul_f32 v{F+i}, v{F+i}, v{RS}')
        OO = 80
        for i in range(16): a(f'v_cvt_pk_bf16_f32 v{OO+i}, v{F+2*i}, v{F+2*i+1}')
        for it in range(4):
            a(f's_add_u32 {T2}, s{S_FM}, {it*4096}')
            a(f'buffer_store_dwordx4 v[{OO+4*it}:{OO+4*it+3}], v{VF}, s[{SO}:{SO+3}], {T2} offen sc1')
        a('s_waitcnt vmcnt(0)')
        set_flag(a, VFA, VONE, F_RF)
    else:
        S, R, OO = 64, 80, 96
        for it in range(4):
            for c in range(2):
                a(f'v_cndmask_b32 v{S+2*it+c}, v{H+4*it+c}, v{H+4*it+2+c}, s[44:45]')
        a('s_nop 1')
        for i in range(8):
            a(f'v_mov_b32_dpp v{R+i}, v{S+i} row_ror:8 row_mask:0xf bank_mask:0xf')
        for it in range(4):
            for c in range(2):
                a(f'v_cndmask_b32 v{OO+4*it+c}, v{R+2*it+c}, v{H+4*it+c}, s[44:45]')
                a(f'v_cndmask_b32 v{OO+4*it+2+c}, v{H+4*it+2+c}, v{R+2*it+c}, s[44:45]')
        for it in range(4):
            a(f'buffer_store_dwordx4 v[{OO+4*it}:{OO+4*it+3}], v{VR}, s[{SO}:{SO+3}], s{S_FM} offen offset:{it*128}')
    if TL and which == 2: a('s_waitcnt vmcnt(0)')
    tl_stamp(a, TLV[1])
    a(f's_add_u32 s{S_SEG}, s{S_SEG}, 2')
    a(f's_cmp_lt_u32 s{S_SEG}, {nseg}'); a(f's_cbranch_scc1 {N}_TOP')
    tl_dump(a, TLV)
```

```python
from asmlib import *
import mega
from mega import *
from mega import tl_stamp, tl_init, tl_dump

S_WM = 87
F_XW, F_XD = 1024, 2560
L_ST = 0x20000

class LQ:
    def __init__(self, a): self.a = a; self.q = []
    def op(self, s, tag=None): self.a(s); self.q.append(tag)
    def wait(self, tag):
        i = max(k for k, t in enumerate(self.q) if t == tag)
        n = len(self.q) - 1 - i
        assert n <= 15
        self.a(f's_waitcnt lgkmcnt({n})')
    def drain(self): self.a('s_waitcnt lgkmcnt(0)'); self.q = []

def mode_store(a, instrs):
    l1, l2 = a.newlabel('MS'), a.newlabel('MS')
    a(f's_cmp_eq_u32 s{S_WM}, 1'); a(f's_cbranch_scc0 {l1}')
    for i in instrs: a(i)
    a(f's_branch {l2}')
    a.label(l1)
    for i in instrs: a(i + ' sc1')
    a.label(l2)

def role_gemmx(a, kind, nseg=64):
    N = kind
    GU = kind == 'GU'
    KS_, CB_ = 28, 29
    nk = 56 if kind == 'DN' else 64
    nch = nk // 8
    nd = nk // 4
    SW, SX, SO = 4, 8, 12
    SR, SRES = 4, S_OSRD
    T0, T1, T2 = f's{S_T0}', f's{S_T1}', f's{S_T2}'
    W = f's{S_WAVE}'
    LN, L16, VD, VT_, t1, t2 = 1, 2, 3, 4, 5, 6
    VPA, VPF, VFA, VONE, VOUT = 8, 12, 16, 17, 18
    VXR = [7, 9, 10, 11]
    XF = 20
    AC0, AC1 = 52, 68
    TMP = 84
    CS = 100
    SA, SB_, QA, QB = 116, 117, 118, 119
    VONES, VSTW, VSTR = 120, 121, 122
    NMU, RSTD = 124, 126
    STT = 128
    VEX, VXF, VXP, VFM, VRM = 136, 137, 138, 139, 140
    RES = 142
    EXL = 144
    a(f's_load_dwordx2 s[{S_PWS}:{S_PWS+1}], s[0:1], {KA_WS}')
    if GU:
        a(f's_load_dwordx2 s[{S_PW}:{S_PW+1}], s[0:1], {KA_WG}')
        a(f's_load_dwordx2 s[40:41], s[0:1], {KA_WU}')
    else:
        a(f's_load_dwordx2 s[{S_PW}:{S_PW+1}], s[0:1], {KA_WO if kind == "WO" else KA_WD}')
        a(f's_load_dwordx2 s[40:41], s[0:1], {KA_X if kind == "WO" else KA_OUT}')
    a(f'v_and_b32 v{LN}, 63, v0')
    a(f'v_lshlrev_b32 v{L16}, 4, v{LN}')
    a('s_waitcnt lgkmcnt(0)')
    if GU:
        a(f's_cmp_ge_u32 {W}, 2')
        a(f's_cselect_b32 s{S_PW}, s40, s{S_PW}')
        a(f's_cselect_b32 s{S_PW+1}, s41, s{S_PW+1}')
    a.srd(SW, S_PW, (8 if kind == 'WO' else 7) * MB)
    xo, xb = {'WO': (WS_OF, 16*MB), 'GU': (WS_HB, 4*MB), 'DN': (WS_ACT, 14*MB)}[kind]
    a.srd(SX, S_PWS, xb, add=xo)
    oo, ob = {'WO': (WS_P1, MB), 'GU': (WS_ACT, 14*MB), 'DN': (WS_P2, MB)}[kind]
    a.srd(SO, S_PWS, ob, add=oo)
    if kind == 'WO':   a.srd(SRES, S_PWS, 4*MB, add=WS_HB)
    elif kind == 'DN': a.srd(SRES, 40, 4*MB)
    S_GO, S_M0 = 42, 43
    if GU:
        a(f'v_lshrrev_b32 v{t1}, 3, v{LN}'); a(f'v_mul_u32_u24 v{VD}, 7168, v{t1}')
        a(f'v_and_b32 v{t1}, 7, v{LN}'); a(f'v_lshl_add_u32 v{VD}, v{t1}, 4, v{VD}')
        a(f's_lshl_b32 {T0}, s{CB_}, 7')
        a(f's_and_b32 {T1}, {W}, 1'); a(f's_mul_i32 {T1}, {T1}, {64*7168}')
        a(f's_add_u32 s{S_GO}, {T0}, {T1}')
        a(f's_lshl_b32 s{S_M0}, {W}, 13')
        istep, cstep = 8 * 7168, 128 * 7168
        a(f'v_bfe_u32 v{t1}, v{LN}, 2, 2'); a(f'v_lshrrev_b32 v{t2}, 5, v{LN}')
        a(f'v_lshl_add_u32 v{t1}, v{t2}, 2, v{t1}'); a(f'v_lshlrev_b32 v{VT_}, 7, v{t1}')
        a(f'v_bfe_u32 v{t1}, v{LN}, 4, 1'); a(f'v_lshl_add_u32 v{VT_}, v{t1}, 14, v{VT_}')
        a(f'v_and_b32 v{t1}, 3, v{LN}'); a(f'v_lshl_add_u32 v{VT_}, v{t1}, 3, v{VT_}')
        a(f's_lshl_b32 {T0}, {W}, 5'); a(f'v_add_u32 v{VT_}, {T0}, v{VT_}')
        kkoff, h2off = 2048, 1024
    else:
        rows0 = 1024 if kind == 'WO' else 896
        a(f'v_lshrrev_b32 v{t1}, 4, v{LN}'); a(f'v_lshlrev_b32 v{t2}, 2, v{t1}')
        a(f'v_and_b32 v{VD}, 15, v{LN}'); a(f'v_xor_b32 v{VD}, v{VD}, v{t2}'); a(f'v_lshlrev_b32 v{VD}, 4, v{VD}')
        a(f'v_lshl_add_u32 v{VD}, v{t1}, 11, v{VD}')
        a(f's_mul_i32 {T0}, s{KS_}, {rows0 * 2048}'); a(f's_lshl_b32 {T1}, s{CB_}, 8'); a(f's_add_u32 {T0}, {T0}, {T1}')
        a(f's_lshl_b32 {T1}, {W}, 16'); a(f's_add_u32 s{S_GO}, {T0}, {T1}')
        a(f's_lshl_b32 s{S_M0}, {W}, 13')
        istep, cstep = 4 * 2048, 128 * 2048
        a(f'v_bfe_u32 v{t1}, v{LN}, 2, 2')
        a(f'v_lshrrev_b32 v{t2}, 5, v{LN}'); a(f'v_lshl_add_u32 v{t2}, v{t2}, 2, v{t1}'); a(f'v_lshlrev_b32 v{VT_}, 8, v{t2}')
        a(f'v_xor_b32 v{t1}, {W}, v{t1}'); a(f'v_lshl_add_u32 v{VT_}, v{t1}, 6, v{VT_}')
        a(f'v_bfe_u32 v{t1}, v{LN}, 4, 1'); a(f'v_lshl_add_u32 v{VT_}, v{t1}, 5, v{VT_}')
        a(f'v_and_b32 v{t1}, 3, v{LN}'); a(f'v_lshl_add_u32 v{VT_}, v{t1}, 3, v{VT_}')
        kkoff, h2off = 4096, 2048
    def wdma(q):
        a(f's_add_u32 {T0}, s{S_GO}, {q * cstep}')
        a(f's_add_u32 m0, s{S_M0}, {(q & 3) * 32768}')
        for i in range(8):
            a('s_nop 0')
            a(f'buffer_load_dwordx4 v{VD}, s[{SW}:{SW+3}], {T0} offen lds')
            if i < 7:
                a(f's_add_u32 {T0}, {T0}, {istep}'); a('s_add_u32 m0, m0, 1024')
    TLV = [200, 201, 202]
    tl_init(a, TLV)
    VTJ = [84, 85, 86, 87]
    if GU:
        for j in range(4):
            a(f's_xor_b32 {T0}, {W}, {j}'); a(f's_lshl_b32 {T0}, {T0}, 11'); a(f'v_add_u32 v{VTJ[j]}, {T0}, v{VT_}')
    for q in range(min(4, nch)): wdma(q)
    for q in range(nch):
        left = min(nch, max(4, q + 4)) - (q + 1)
        a(f's_waitcnt vmcnt({8 * left})')
        a('s_barrier')
        if GU:
            for j in range(4): a(f'v_add_u32 v{88+j}, {(q & 3) * 32768}, v{VTJ[j]}')
        else:
            a(f'v_add_u32 v{t1}, {(q & 3) * 32768}, v{VT_}')
        for kk in range(8):
            kb = 8 * q + kk
            if GU: ad, off = 88 + (kk & 3), (kk & 4) * kkoff
            else:  ad, off = t1, kk * kkoff
            a(f'ds_read_b64_tr_b16 a[{4*kb}:{4*kb+1}], v{ad} offset:{off}')
            a(f'ds_read_b64_tr_b16 a[{4*kb+2}:{4*kb+3}], v{ad} offset:{off + h2off}')
            if kk % 4 == 3: a('s_waitcnt lgkmcnt(0)')
        a('s_barrier')
        if q + 4 < nch: wdma(q + 4)
    S_XO, S_XM0, S_OO = 44, 45, 46
    S_EXL = 47
    xstride = {'WO': 262144, 'GU': 65536, 'DN': 229376}[kind]
    if kind == 'WO':   a(f's_lshl_b32 s{S_XO}, s{KS_}, 16')
    elif kind == 'DN': a(f's_mul_i32 s{S_XO}, s{KS_}, {56*1024}')
    else:              a(f's_mov_b32 s{S_XO}, 0')
    a(f's_lshl_b32 {T0}, {W}, 10'); a(f's_add_u32 s{S_XO}, s{S_XO}, {T0}')
    a(f's_lshl_b32 s{S_XM0}, {W}, 10')
    if GU:
        a(f's_lshl_b32 {T0}, s{CB_}, 2'); a(f's_add_u32 {T0}, {T0}, {W}'); a(f's_lshl_b32 s{S_OO}, {T0}, 10')
        ostride = 229376
        a(f'v_mov_b32 v{VONES}, 0x3f803f80')
        for r in range(4): a(f'v_mov_b32 v{XF+r}, 0x3f803f80')
        a('s_nop 1')
        for kb in range(64):
            c = '0' if kb == 0 else f'v[{CS}:{CS+15}]'
            a(f'v_mfma_f32_32x32x16_bf16 v[{CS}:{CS+15}], a[{4*kb}:{4*kb+3}], v[{XF}:{XF+3}], {c}')
        a(f'v_lshrrev_b32 v{VSTW}, 2, v{L16}')
        a(f'v_and_b32 v{VSTR}, 31, v{LN}'); a(f'v_lshlrev_b32 v{VSTR}, 2, v{VSTR}'); a(f'v_add_u32 v{VSTR}, {L_ST}, v{VSTR}')
        a(f's_lshl_b32 {T0}, {W}, 8'); a(f's_add_u32 {T0}, {T0}, {L_ST}'); a(f'v_add_u32 v{VSTW}, {T0}, v{VSTW}')
    else:
        a(f's_lshl_b32 {T0}, s{CB_}, 2'); a(f's_add_u32 {T1}, {T0}, {W}'); a(f's_lshl_b32 {T1}, {T1}, 2')
        a(f's_add_u32 {T1}, {T1}, s{KS_}'); a(f's_lshl_b32 s{S_OO}, {T1}, 12')
        a(f's_add_u32 {T1}, {T0}, s{KS_}'); a(f's_lshl_b32 s{S_EXL}, {T1}, 14')
        fx = F_XW if kind == 'WO' else F_XD
        a(f's_lshl_b32 {T2}, {T1}, 4'); a(f's_add_u32 {T2}, {T2}, {fx}'); a(f'v_mov_b32 v{VXP}, {T2}')
        a(f's_add_u32 {T1}, {T0}, {W}'); a(f's_lshl_b32 {T1}, {T1}, 4'); a(f's_lshl_b32 {T2}, s{KS_}, 2')
        a(f's_add_u32 {T1}, {T1}, {T2}'); a(f's_add_u32 {T1}, {T1}, {fx}'); a(f'v_mov_b32 v{VXF}, {T1}')
        mm, hh, sp = 84, 85, 86
        a(f'v_and_b32 v{mm}, 15, v{LN}'); a(f's_lshr_b32 {T0}, {W}, 1'); a(f's_lshl_b32 {T0}, {T0}, 4'); a(f'v_add_u32 v{mm}, {T0}, v{mm}')
        a(f'v_bfe_u32 v{hh}, v{LN}, 4, 1'); a(f'v_lshrrev_b32 v{sp}, 5, v{LN}')
        a(f'v_lshl_add_u32 v87, v{hh}, 5, v{mm}'); a(f'v_lshlrev_b32 v87, 4, v87')
        a(f's_and_b32 {T0}, {W}, 1')
        a(f's_lshl_b32 {T1}, {T0}, 11'); a(f'v_lshl_add_u32 v{VEX}, v{sp}, 10, v87'); a(f'v_add_u32 v{VEX}, {T1}, v{VEX}')
        a(f's_lshl_b32 {T1}, s{CB_}, 3'); a(f's_lshl_b32 {T2}, s{KS_}, 1'); a(f's_add_u32 {T1}, {T1}, {T2}'); a(f's_add_u32 {T1}, {T1}, {T0}')
        a(f's_lshl_b32 {T2}, {T1}, 10'); a(f'v_lshl_add_u32 v{VFM}, v{sp}, 3, v87'); a(f'v_add_u32 v{VFM}, {T2}, v{VFM}')
        a(f's_lshl_b32 {T2}, {T1}, 5'); a(f'v_lshlrev_b32 v{VRM}, 11, v{mm}'); a(f'v_lshl_add_u32 v{VRM}, v{sp}, 4, v{VRM}')
        a(f'v_lshl_add_u32 v{VRM}, v{hh}, 3, v{VRM}'); a(f'v_add_u32 v{VRM}, {T2}, v{VRM}')
        if kind == 'WO': a.srd(SR, 40, 4*MB)
        else:            a.srd(SR, S_PWS, 4*MB, add=WS_HB)
    if kind == 'WO':
        a(f'v_and_b32 v{VPA}, 7, v{LN}'); a(f'v_lshlrev_b32 v{VPA}, 2, v{VPA}')
        a(f's_lshl_b32 {T0}, s{KS_}, 5'); a(f's_add_u32 {T0}, {T0}, {F_AF}'); a(f'v_add_u32 v{VPA}, {T0}, v{VPA}')
        pw = 1
    elif GU:
        a(f'v_and_b32 v{VPA}, 31, v{LN}'); a(f'v_lshlrev_b32 v{VPA}, 4, v{VPA}'); a(f'v_add_u32 v{VPA}, {F_WF}, v{VPA}')
        pw = 4
    else:
        a(f'v_min_u32 v{VPA}, 13, v{LN}'); a(f'v_lshlrev_b32 v{VPA}, 4, v{VPA}')
        a(f's_mul_i32 {T0}, s{KS_}, {14*16}'); a(f's_add_u32 {T0}, {T0}, {F_GF}'); a(f'v_add_u32 v{VPA}, {T0}, v{VPA}')
        pw = 4
    if GU:
        a(f's_lshl_b32 {T0}, s{CB_}, 4'); fo = F_GF
    else:
        a(f's_lshl_b32 {T0}, s{KS_}, 3'); a(f's_add_u32 {T0}, {T0}, s{CB_}'); a(f's_lshl_b32 {T0}, {T0}, 4')
        fo = F_WF
    a(f's_lshl_b32 {T1}, {W}, 2'); a(f's_add_u32 {T0}, {T0}, {T1}'); a(f'v_mov_b32 v{VFA}, {T0}')
    a(f'v_mov_b32 v{VONE}, 1')
    a(f'v_mov_b32 v{VOUT}, {L_BC}')
    a(f's_mov_b32 s{S_SEG}, 0'); a(f's_mov_b32 s{S_EARLY}, 0')
    for j in range(4 if GU else 1):
        if GU:
            a(f's_xor_b32 {T0}, {W}, {j}'); a(f's_lshl_b32 {T0}, {T0}, 10'); a(f'v_add_u32 v{VXR[j]}, {T0}, v{L16}')
        else:
            a(f'v_mov_b32 v{VXR[j]}, v{L16}')

    def xdma(add):
        a(f's_add_u32 {T1}, s{S_SEG}, {add}')
        a(f's_mul_i32 {T0}, {T1}, {xstride}'); a(f's_add_u32 {T0}, {T0}, s{S_XO}')
        a(f's_and_b32 {T1}, {T1}, 1'); a(f's_lshl_b32 {T1}, {T1}, 16'); a(f's_add_u32 m0, {T1}, s{S_XM0}')
        for i in range(nd):
            a('s_nop 0')
            a(f'buffer_load_dwordx4 v{L16}, s[{SX}:{SX+3}], {T0} offen lds')
            if i < nd - 1:
                a(f's_add_u32 {T0}, {T0}, 4096'); a('s_add_u32 m0, m0, 4096')

    top, have = f'{N}_TOP', f'{N}_HAVE'
    tl_stamp(a, TLV[2], 2)
    a.label(top)
    a(f's_cmp_lg_u32 s{S_EARLY}, 0'); a(f's_cbranch_scc1 {have}')
    nw = f'{N}_NW0'
    a(f's_cmp_lg_u32 {W}, 0'); a(f's_cbranch_scc1 {nw}')
    seg_foff(a)
    poll(a, N + '_P', VPA, VPF, pw, t1)
    a.label(nw)
    a('s_barrier')
    xdma(0)
    a.label(have)
    tl_stamp(a, TLV[0])
    nw2 = f'{N}_NW1'
    a(f's_cmp_lg_u32 {W}, 0'); a(f's_cbranch_scc1 {nw2}')
    seg_foff(a, 1)
    flag_load(a, VPA, VPF, pw)
    a.label(nw2)
    if GU:
        for r in (SA, SB_, QA, QB): a(f'v_mov_b32 v{r}, 0')
    bounds = [0, 16, 32, 48, nk] if nk == 64 else [0, 16, 32, 44, 56]
    lq = LQ(a)
    pos = 0
    def rd(kb, slot):
        r = XF + 4 * (slot % 8)
        if GU: return f'ds_read_b128 v[{r}:{r+3}], v{VXR[kb & 3]} offset:{(kb & ~3) * 1024}'
        return f'ds_read_b128 v[{r}:{r+3}], v{VXR[0]} offset:{kb * 1024}'
    def mf(kb, slot):
        r = XF + 4 * (slot % 8); ac = AC0 if slot % 2 == 0 else AC1
        c = '0' if slot < 2 else f'v[{ac}:{ac+15}]'
        return f'v_mfma_f32_32x32x16_bf16 v[{ac}:{ac+15}], a[{4*kb}:{4*kb+3}], v[{r}:{r+3}], {c}'
    def stats(slot):
        r = XF + 4 * (slot % 8)
        for i in range(4):
            s, q = (SA, QA) if i % 2 == 0 else (SB_, QB)
            a(f'v_dot2_f32_bf16 v{q}, v{r+i}, v{r+i}, v{q}')
            a(f'v_dot2_f32_bf16 v{s}, v{r+i}, v{VONES}, v{s}')
    for c in range(4):
        k0, k1 = bounds[c], bounds[c + 1]
        need = (k1 + 3) // 4
        a(f's_waitcnt vmcnt({nd - need})')
        last = c == 3
        if last:
            nw3 = f'{N}_NW2'
            a(f's_cmp_lg_u32 {W}, 0'); a(f's_cbranch_scc1 {nw3}')
            a('s_waitcnt vmcnt(0)')
            flag_test(a, VPF, pw, t1)
            a(f's_cmp_eq_u64 vcc, 0'); a(f's_cselect_b32 {T0}, 1, 0')
            a(f'v_mov_b32 v{t1}, {T0}')
            a(f'ds_write_b32 v{VOUT}, v{t1}')
            a('s_waitcnt lgkmcnt(0)')
            a.label(nw3)
        a('s_barrier')
        if last:
            lq.op(f'ds_read_b32 v{t2}, v{VOUT}', 'early')
            if not GU:
                a(f's_lshl_b32 {T2}, s{S_SEG}, 16')
                a(f'buffer_load_dwordx2 v[{RES}:{RES+1}], v{VRM if kind == "WO" else VFM}, s[{SR}:{SR+3}], {T2} offen')
        D = 6
        ks = list(range(k0, k1))
        if GU and last:
            ks = [48, 52, 56, 60] + [k for k in ks if k & 3]
        base = pos
        for i in range(D): lq.op(rd(ks[i], base + i), ('x', base + i))
        for i, kb in enumerate(ks):
            lq.wait(('x', base + i))
            a(mf(kb, base + i))
            if GU and (kb & 3) == 0: stats(base + i)
            if i + D < len(ks): lq.op(rd(ks[i + D], base + i + D), ('x', base + i + D))
            if GU and last:
                if i == 4:
                    a(f'v_add_f32 v{SA}, v{SA}, v{SB_}'); a(f'v_add_f32 v{QA}, v{QA}, v{QB}')
                    a('s_nop 1')
                    a(f'v_permlane32_swap_b32 v{SA}, v{QA}')
                    a('s_nop 1')
                    a(f'v_add_f32 v{SA}, v{SA}, v{QA}')
                    lq.op(f'ds_write_b32 v{VSTW}, v{SA}', 'stw')
                if i == 6:
                    lq.wait('stw')
                    a('s_barrier')
                    for w in range(4):
                        lq.op(f'ds_read2_b32 v[{STT+2*w}:{STT+2*w+1}], v{VSTR} offset0:{64*w} offset1:{64*w+32}', ('st', w))
                if i == 10:
                    lq.wait(('st', 3))
                    a(f'v_pk_add_f32 v[{STT}:{STT+1}], v[{STT}:{STT+1}], v[{STT+2}:{STT+3}]')
                    a(f'v_pk_add_f32 v[{STT+4}:{STT+5}], v[{STT+4}:{STT+5}], v[{STT+6}:{STT+7}]')
                    a('s_nop 0')
                    a(f'v_pk_add_f32 v[{STT}:{STT+1}], v[{STT}:{STT+1}], v[{STT+4}:{STT+5}]')
                    a('s_nop 0')
                    a(f'v_mul_f32 v{NMU}, 0x3a800000, v{STT}')
                    a(f'v_mul_f32 v{RSTD}, 0x3a800000, v{STT+1}')
                    a(f'v_fma_f32 v{RSTD}, -v{NMU}, v{NMU}, v{RSTD}')
                    a(f'v_max_f32 v{RSTD}, 0, v{RSTD}')
                    bf16_round(a, RSTD, RSTD)
                    a(f'v_add_f32 v{RSTD}, 0x3727c5ac, v{RSTD}')
                if i == 11:
                    bf16_round(a, RSTD, RSTD)
                    a(f'v_sqrt_f32 v{RSTD}, v{RSTD}')
                    bf16_round(a, NMU, NMU)
                if i == 12:
                    bf16_round(a, RSTD, RSTD)
                    a(f'v_rcp_f32 v{RSTD}, v{RSTD}')
        pos += len(ks)
        lq.q = []
    a(f'v_readfirstlane_b32 s{S_EARLY}, v{t2}')
    a(f's_cmp_ge_u32 s{S_SEG}, {nseg - 1}'); a(f's_cselect_b32 s{S_EARLY}, 0, s{S_EARLY}')
    late, fin = f'{N}_LATE', f'{N}_FIN'
    if GU:
        a(f's_mul_i32 {T2}, s{S_SEG}, {ostride}'); a(f's_add_u32 {T2}, {T2}, s{S_OO}')
        for j in range(4): a(f'v_xor_b32 v{VXR[j]}, 0x10000, v{VXR[j]}')
        a('s_nop 7'); a('s_nop 4')
        for r in range(0, 16, 2):
            a(f'v_pk_add_f32 v[{AC0+r}:{AC0+r+1}], v[{AC0+r}:{AC0+r+1}], v[{AC1+r}:{AC1+r+1}]')
        for r in range(0, 16, 2):
            a(f'v_pk_fma_f32 v[{AC0+r}:{AC0+r+1}], v[{CS+r}:{CS+r+1}], v[{NMU}:{NMU+1}], v[{AC0+r}:{AC0+r+1}] op_sel_hi:[1,0,1] neg_lo:[0,1,0] neg_hi:[0,1,0]')
        for r in range(0, 16, 2):
            a(f'v_pk_mul_f32 v[{AC0+r}:{AC0+r+1}], v[{AC0+r}:{AC0+r+1}], v[{RSTD}:{RSTD+1}] op_sel_hi:[1,0]')
        G, U, T = AC0, AC0 + 8, TMP
        for r in range(8):
            a(f'v_cvt_pk_bf16_f32 v{T+r}, v{AC0+2*r}, v{AC0+2*r+1}')
        for r in range(4):
            a(f'v_lshlrev_b32 v{G+2*r}, 16, v{T+r}'); a(f'v_and_b32 v{G+2*r+1}, 0xffff0000, v{T+r}')
        for r in range(8): a(f'v_mul_f32 v{G+r}, 0xbfb8aa3b, v{G+r}')
        for r in range(4):
            a(f'v_lshlrev_b32 v{U+2*r}, 16, v{T+4+r}'); a(f'v_and_b32 v{U+2*r+1}, 0xffff0000, v{T+4+r}')
        for r in range(8): a(f'v_exp_f32 v{G+r}, v{G+r}')
        for r in range(8): a(f'v_add_f32 v{G+r}, 1.0, v{G+r}')
        for r in range(8): a(f'v_rcp_f32 v{G+r}, v{G+r}')
        a('s_nop 0')
        for r in range(4): a(f'v_cvt_pk_bf16_f32 v{T+r}, v{G+2*r}, v{G+2*r+1}')
        for r in range(4):
            a(f'v_lshlrev_b32 v{G+2*r}, 16, v{T+r}'); a(f'v_and_b32 v{G+2*r+1}, 0xffff0000, v{T+r}')
        for r in range(8): a(f'v_mul_f32 v{G+r}, v{G+r}, v{U+r}')
        for r in range(4): a(f'v_cvt_pk_bf16_f32 v{T+r}, v{G+2*r}, v{G+2*r+1}')
        a(f'buffer_store_dwordx4 v[{T}:{T+3}], v{L16}, s[{SO}:{SO+3}], {T2} offen sc1')
        a(f's_cmp_eq_u32 s{S_EARLY}, 0'); a(f's_cbranch_scc1 {late}')
        xdma(1)
        a(f's_waitcnt vmcnt({nd})')
        a(f's_branch {fin}')
        a.label(late)
        a('s_waitcnt vmcnt(0)')
        a.label(fin)
        set_flag(a, VFA, VONE, fo)
    else:
        S_SLOT = 48
        a(f's_and_b32 s{S_SLOT}, s{S_SEG}, 1'); a(f's_lshl_b32 s{S_SLOT}, s{S_SLOT}, 19')
        a(f's_add_u32 {T2}, s{S_SLOT}, s{S_OO}')
        a(f'v_xor_b32 v{VXR[0]}, 0x10000, v{VXR[0]}')
        a('s_nop 7'); a('s_nop 4')
        for r in range(0, 16, 2):
            a(f'v_pk_add_f32 v[{AC0+r}:{AC0+r+1}], v[{AC0+r}:{AC0+r+1}], v[{AC1+r}:{AC1+r+1}]')
        mode_store(a, [f'buffer_store_dwordx4 v[{AC0+4*q}:{AC0+4*q+3}], v{L16}, s[{SO}:{SO+3}], {T2} offen offset:{q*1024}' for q in range(4)])
        seg_foff(a)
        a('s_waitcnt vmcnt(0)')
        a('s_mov_b64 exec, 1')
        mode_store(a, [f'buffer_store_dword v{VONE}, v{VXF}, {FLS}, s{S_FOFF} offen'])
        a('s_mov_b64 exec, -1')
        poll(a, N + '_X', VXP, TMP, 4, t1)
        a(f's_add_u32 {T2}, s{S_SLOT}, s{S_EXL}')
        for s in range(4):
            a(f'buffer_load_dwordx4 v[{EXL+4*s}:{EXL+4*s+3}], v{VEX}, s[{SO}:{SO+3}], {T2} offen sc1')
            if s < 3: a(f's_add_u32 {T2}, {T2}, 4096')
        a(f's_cmp_eq_u32 s{S_EARLY}, 0'); a(f's_cbranch_scc1 {late}')
        xdma(1)
        a(f's_waitcnt vmcnt({nd})')
        a(f's_branch {fin}')
        a.label(late)
        a('s_waitcnt vmcnt(0)')
        a.label(fin)
        pk = lambda d, x, y: a(f'v_pk_add_f32 v[{d}:{d+1}], v[{x}:{x+1}], v[{y}:{y+1}]')
        pk(EXL, EXL, EXL + 4); pk(EXL + 2, EXL + 2, EXL + 6); pk(EXL + 8, EXL + 8, EXL + 12); pk(EXL + 10, EXL + 10, EXL + 14)
        pk(EXL, EXL, EXL + 8); pk(EXL + 2, EXL + 2, EXL + 10)
        a(f'v_lshlrev_b32 v{EXL+8}, 16, v{RES}'); a(f'v_and_b32 v{EXL+9}, 0xffff0000, v{RES}')
        a(f'v_cvt_pk_bf16_f32 v{EXL}, v{EXL}, v{EXL+1}'); a(f'v_cvt_pk_bf16_f32 v{EXL+2}, v{EXL+2}, v{EXL+3}')
        a(f'v_lshlrev_b32 v{EXL+10}, 16, v{RES+1}'); a(f'v_and_b32 v{EXL+11}, 0xffff0000, v{RES+1}')
        a(f'v_lshlrev_b32 v{EXL+4}, 16, v{EXL}'); a(f'v_and_b32 v{EXL+5}, 0xffff0000, v{EXL}')
        a(f'v_lshlrev_b32 v{EXL+6}, 16, v{EXL+2}'); a(f'v_and_b32 v{EXL+7}, 0xffff0000, v{EXL+2}')
        pk(EXL + 4, EXL + 4, EXL + 8); pk(EXL + 6, EXL + 6, EXL + 10)
        a(f's_lshl_b32 {T2}, s{S_SEG}, 16')
        a(f'v_cvt_pk_bf16_f32 v{EXL}, v{EXL+4}, v{EXL+5}'); a(f'v_cvt_pk_bf16_f32 v{EXL+1}, v{EXL+6}, v{EXL+7}')
        if kind == 'WO':
            a(f'buffer_store_dwordx2 v[{EXL}:{EXL+1}], v{VFM}, s[{SRES}:{SRES+3}], {T2} offen sc1')
            a('s_waitcnt vmcnt(0)')
            set_flag(a, VFA, VONE, fo)
        else:
            a(f'buffer_store_dwordx2 v[{EXL}:{EXL+1}], v{VRM}, s[{SRES}:{SRES+3}], {T2} offen')
            if mega.TL: a('s_waitcnt vmcnt(0)')
    tl_stamp(a, TLV[1])
    a(f's_add_u32 s{S_SEG}, s{S_SEG}, 1')
    a(f's_cmp_lt_u32 s{S_SEG}, {nseg}'); a(f's_cbranch_scc1 {top}')
    tl_dump(a, TLV)
```

```python
import sys; sys.path.insert(0,'gen')
from asmlib import *
import tasks, tasks2, mega, k_recc as rc
from mega import *
import mega2
from mega2 import role_gemmx, S_WM
from gemm2 import Eng, S_WAVE, S_T0, S_T1, S_T2
from tasks import S_RB, S_CB, S_KS, S_PW, S_PWS, S_OSRD, MB, task_gemm
from k_ln import bf16_round, reduce_bits345

def gen_prep(cfg):
    a = Asm()
    a('s_cmp_ge_u32 s2, 256')
    a('s_cbranch_scc1 PREP_END')
    a(f's_load_dwordx2 s[4:5], s[0:1], {KA_WS}')
    a(f's_load_dwordx2 s[6:7], s[0:1], {KA_MEM0}')
    a(f's_load_dwordx2 s[24:25], s[0:1], {KA_X}')
    a('v_and_b32 v21, 63, v0'); a('v_lshrrev_b32 v22, 6, v0'); a('s_nop 0'); a('v_readfirstlane_b32 s19, v22')
    a('v_and_b32 v24, 7, v21'); a('v_bfe_u32 v25, v21, 3, 1'); a('v_lshrrev_b32 v26, 4, v21')
    a('s_lshr_b32 s30, s2, 2'); a('s_and_b32 s31, s2, 3'); a('s_lshl_b32 s31, s31, 3')
    a('v_add_u32 v27, s31, v24')
    a('v_lshlrev_b32 v23, 11, v27'); a('v_lshl_add_u32 v23, v26, 5, v23'); a('v_lshl_add_u32 v23, v25, 3, v23')
    a('s_lshl_b32 s32, s19, 9'); a('s_lshl_b32 s33, s30, 16'); a('s_add_u32 s32, s32, s33'); a('v_add_u32 v23, s32, v23')
    a('v_lshl_add_u32 v28, v25, 5, v27'); a('v_lshlrev_b32 v28, 4, v28'); a('v_lshl_add_u32 v28, v26, 10, v28')
    a('s_lshl_b32 s32, s19, 14'); a('s_add_u32 s32, s32, s33'); a('v_add_u32 v28, s32, v28')
    a('v_lshlrev_b32 v29, 2, v24'); a('s_lshl_b32 s32, s19, 5'); a('v_add_u32 v30, s32, v29')
    a('s_lshl_b32 s3, s2, 12')
    a('v_lshlrev_b32 v1, 4, v0')
    a('v_add_u32 v1, s3, v1')
    for r in range(4):
        a(f'v_mov_b32 v{4+r}, -1'); a(f'v_mov_b32 v{8+r}, 0')
    a('s_waitcnt lgkmcnt(0)')
    a.srd(36, 24, 4*MB)
    X = 32
    for it in range(4):
        for h in range(2):
            r = X + (it*2 + h)*2
            a(f'buffer_load_dwordx2 v[{r}:{r+1}], v23, s[36:39], 0 offen offset:{it*128 + h*16}')
    a.srd(8, 4, SM_SIZE, add=WS_SM)
    a.srd(12, 6, 8 * 1024 * 2)
    a.srd(20, 4, 64 << 20, add=rc.WS_X)
    a.srd(40, 4, 4*MB, add=WS_XN)
    a(f's_mov_b32 s16, {rc.C_PART}')
    a('buffer_store_dwordx4 v[4:7], v1, s[8:11], s16 offen')
    a('s_lshr_b32 s17, s2, 3'); a(f's_mul_i32 s17, s17, {cfg.NS*32768}')
    a('s_and_b32 s18, s2, 7'); a('s_lshl_b32 s18, s18, 12'); a('s_add_u32 s17, s17, s18')
    a('v_lshlrev_b32 v2, 4, v0')
    for i in range(3):
        a('buffer_store_dwordx4 v[4:7], v2, s[20:23], s17 offen')
        a('s_add_u32 s17, s17, 32768')
    a('v_lshrrev_b32 v3, 11, v1'); a('v_lshlrev_b32 v3, 12, v3'); a('v_and_b32 v12, 2047, v1'); a('v_add_u32 v3, v3, v12')
    a(f's_mov_b32 s16, {SM_QKM + 2048}')
    for i in range(4):
        a('buffer_store_dwordx4 v[4:7], v3, s[8:11], s16 offen'); a(f's_add_u32 s16, s16, {2*MB}')
    a(f's_mov_b32 s16, {SM_VMG}')
    for i in range(4):
        a('buffer_store_dwordx4 v[4:7], v1, s[8:11], s16 offen'); a(f's_add_u32 s16, s16, {MB}')
    nfl = FL_SEG + 65*4096 - FL_KVQ
    a(f'v_cmp_gt_u32 vcc, {nfl}, v1') if nfl <= 64 else (a(f's_mov_b32 s17, {nfl}'), a('v_cmp_gt_u32 vcc, s17, v1'))
    a('s_and_saveexec_b64 s[26:27], vcc')
    a(f's_mov_b32 s16, {FL_KVQ}')
    a('buffer_store_dwordx4 v[8:11], v1, s[8:11], s16 offen')
    a('s_mov_b64 exec, s[26:27]')
    a('s_cmp_eq_u32 s2, 16'); a('s_cbranch_scc0 PREP_N1')
    a(f's_mov_b32 s16, {rc.C_CNT}')
    a('buffer_store_dwordx4 v[8:11], v2, s[8:11], s16 offen')
    a.label('PREP_N1')
    a('s_cmp_eq_u32 s2, 17'); a('s_cbranch_scc0 PREP_N2')
    a(f's_mov_b32 s16, {rc.C_CNT + 4096}')
    a('buffer_store_dwordx4 v[4:7], v2, s[8:11], s16 offen')
    a.label('PREP_N2')
    a('s_cmp_ge_u32 s2, 16'); a('s_cbranch_scc1 PREP_LN')
    a('s_cmp_lt_u32 s2, 4')
    a('s_cbranch_scc1 PREP_M0')
    a(f's_mov_b32 s16, {rc.C_MEMF}')
    a('buffer_store_dwordx4 v[4:7], v1, s[8:11], s16 offen')
    a('s_branch PREP_LN')
    a.label('PREP_M0')
    a('v_lshrrev_b32 v2, 4, v1')
    a('v_and_b32 v3, 7, v2'); a('v_lshlrev_b32 v3, 11, v3')
    a('v_lshrrev_b32 v12, 4, v2'); a('v_lshl_add_u32 v3, v12, 5, v3')
    a('v_bfe_u32 v12, v2, 3, 1'); a('v_lshl_add_u32 v3, v12, 2, v3')
    for t in range(4):
        a(f'buffer_load_dword v{12+t}, v3, s[12:15], 0 offen offset:{t*8}')
    a('s_waitcnt vmcnt(0)')
    for t in range(4):
        a(f'v_min_u32 v{12+t}, -2, v{12+t}')
    a(f's_mov_b32 s16, {rc.C_MEMF}')
    a('buffer_store_dwordx4 v[12:15], v1, s[8:11], s16 offen')
    a.label('PREP_LN')
    F, G, A0, MU, RS = 64, 96, 16, 20, 21
    a('s_waitcnt vmcnt(0)')
    for i in range(16):
        a(f'v_lshlrev_b32 v{F+2*i}, 16, v{X+i}'); a(f'v_and_b32 v{F+2*i+1}, 0xffff0000, v{X+i}')
    for c in range(4): a(f'v_add_f32 v{A0+c}, v{F+c}, v{F+4+c}')
    for i in range(8, 32, 4):
        for c in range(4): a(f'v_add_f32 v{A0+c}, v{A0+c}, v{F+i+c}')
    a(f'v_add_f32 v{A0}, v{A0}, v{A0+1}'); a(f'v_add_f32 v{A0+2}, v{A0+2}, v{A0+3}'); a(f'v_add_f32 v{A0}, v{A0}, v{A0+2}')
    reduce_bits345(a, A0, 31)
    a(f'ds_write_b32 v30, v{A0}')
    a('s_waitcnt lgkmcnt(0)'); a('s_barrier')
    for w in range(4): a(f'ds_read_b32 v{A0+w}, v29 offset:{w*32}')
    a('s_waitcnt lgkmcnt(0)')
    a(f'v_add_f32 v{A0}, v{A0}, v{A0+1}'); a(f'v_add_f32 v{A0+2}, v{A0+2}, v{A0+3}'); a(f'v_add_f32 v{MU}, v{A0}, v{A0+2}')
    a(f'v_mul_f32 v{MU}, 0x3a800000, v{MU}')
    for c in range(4): a(f'v_mov_b32 v{A0+c}, 0')
    for i in range(0, 32, 4):
        for c in range(4): a(f'v_sub_f32 v{G+c}, v{F+i+c}, v{MU}')
        for c in range(4): a(f'v_fmac_f32 v{A0+c}, v{G+c}, v{G+c}')
    a(f'v_add_f32 v{A0}, v{A0}, v{A0+1}'); a(f'v_add_f32 v{A0+2}, v{A0+2}, v{A0+3}'); a(f'v_add_f32 v{RS}, v{A0}, v{A0+2}')
    reduce_bits345(a, RS, 31)
    a(f'ds_write_b32 v30, v{RS} offset:128')
    a('s_waitcnt lgkmcnt(0)'); a('s_barrier')
    for w in range(4): a(f'ds_read_b32 v{A0+w}, v29 offset:{128 + w*32}')
    a('s_waitcnt lgkmcnt(0)')
    a(f'v_add_f32 v{A0}, v{A0}, v{A0+1}'); a(f'v_add_f32 v{A0+2}, v{A0+2}, v{A0+3}'); a(f'v_add_f32 v{RS}, v{A0}, v{A0+2}')
    a(f'v_mul_f32 v{RS}, 0x3a800000, v{RS}')
    bf16_round(a, RS, RS)
    a(f'v_add_f32 v{RS}, 0x3727c5ac, v{RS}')
    bf16_round(a, RS, RS)
    a(f'v_sqrt_f32 v{RS}, v{RS}')
    a('s_nop 0')
    bf16_round(a, RS, RS)
    a(f'v_rcp_f32 v{RS}, v{RS}')
    bf16_round(a, MU, MU)
    for i in range(32): a(f'v_sub_f32 v{F+i}, v{F+i}, v{MU}')
    for i in range(16): a(f'v_cvt_pk_bf16_f32 v{G+i}, v{F+2*i}, v{F+2*i+1}')
    for i in range(16):
        a(f'v_lshlrev_b32 v{F+2*i}, 16, v{G+i}'); a(f'v_and_b32 v{F+2*i+1}, 0xffff0000, v{G+i}')
    for i in range(32): a(f'v_mul_f32 v{F+i}, v{F+i}, v{RS}')
    for i in range(16): a(f'v_cvt_pk_bf16_f32 v{G+i}, v{F+2*i}, v{F+2*i+1}')
    for it in range(4):
        a(f's_mov_b32 s16, {it*4096}')
        a(f'buffer_store_dwordx4 v[{G+4*it}:{G+4*it+3}], v28, s[40:43], s16 offen')
    a.label('PREP_END')
    a('s_endpgm')
    return a.text()


def kvq_loop(a, g, nbg_rounds=9):
    T0, T1, T2 = f's{S_T0}', f's{S_T1}', f's{S_T2}'
    a(f's_mov_b32 s{S_RND}, 0')
    a.label('KQ_TOP')
    a(f's_cmp_lg_u32 s{S_RND}, 0'); a('s_cbranch_scc1 KQ_BG')
    a(f's_and_b32 {T0}, s{S_WID}, 31'); a(f's_and_b32 s{S_RB}, {T0}, 3')
    a(f's_lshr_b32 {T0}, {T0}, 2'); a(f's_lshr_b32 {T1}, s{S_WID}, 5'); a(f's_lshl_b32 {T1}, {T1}, 3'); a(f's_add_u32 s31, {T0}, {T1}')
    a('s_branch KQ_DEC')
    a.label('KQ_BG')
    a(f's_sub_u32 {T0}, s{S_WID}, 64'); a(f's_lshr_b32 {T0}, {T0}, 5'); a(f's_lshl_b32 {T0}, {T0}, 4')
    a(f's_and_b32 {T1}, s{S_WID}, 15'); a(f's_add_u32 {T0}, {T0}, {T1}')
    a(f's_sub_u32 {T1}, s{S_RND}, 1'); a(f's_lshl_b32 {T1}, {T1}, 6'); a(f's_add_u32 {T0}, {T0}, {T1}')
    a(f's_mul_i32 {T1}, {T0}, 683'); a(f's_lshr_b32 {T1}, {T1}, 16')
    a(f's_mul_i32 {T2}, {T1}, 96'); a(f's_sub_u32 {T0}, {T0}, {T2}')
    a(f's_lshl_b32 {T1}, {T1}, 1'); a(f's_add_u32 {T1}, {T1}, 4'); a(f's_and_b32 {T2}, {T0}, 1')
    a(f's_add_u32 s{S_RB}, {T1}, {T2}'); a(f's_lshr_b32 s31, {T0}, 1')
    a.label('KQ_DEC')
    a(f's_and_b32 s{S_RB}, s{S_RB}, 15')
    a(f's_and_b32 s{S_CB}, s31, 15'); a(f's_mov_b32 s{S_KS}, 0')
    a('s_lshr_b32 s31, s31, 4')
    a(f's_lshl_b32 {T0}, s{S_RB}, 8'); a(f's_lshl_b32 {T1}, s{S_CB}, 4'); a(f's_add_u32 {T0}, {T0}, {T1}')
    a(f's_lshl_b32 {T1}, s31, 2'); a(f's_add_u32 {T0}, {T0}, {T1}'); a(f's_add_u32 s{S_FOFF}, {T0}, {FL_KVQ}')
    a('s_cmp_eq_u32 s31, 1'); a('s_cbranch_scc1 KQ_V')
    a('s_cmp_eq_u32 s31, 2'); a('s_cbranch_scc1 KQ_Q')
    task_gemm(a, g, 'K'); a('s_branch KQ_FIN')
    a.label('KQ_V'); task_gemm(a, g, 'V'); a('s_branch KQ_FIN')
    a.label('KQ_Q'); task_gemm(a, g, 'Q')
    a.label('KQ_FIN')
    a('s_waitcnt vmcnt(0)')
    a('s_barrier')
    if mega.TL:
        a('s_memrealtime s[88:89]'); a('s_waitcnt lgkmcnt(0)'); a('s_mov_b32 s101, s88')
    a(f's_cmp_lg_u32 s{S_WAVE}, 0'); a('s_cbranch_scc1 KQ_NF')
    a('v_mov_b32 v1, 1')
    a('s_mov_b64 exec, 1')
    a(f'buffer_store_dword v1, off, {FLS}, s{S_FOFF} sc1')
    a('s_mov_b64 exec, -1')
    a.label('KQ_NF')
    a(f's_add_u32 s{S_RND}, s{S_RND}, 1')
    a(f's_cmp_lt_u32 s{S_WID}, 64'); a('s_cbranch_scc1 KQ_END')
    a(f's_and_b32 {T0}, s{S_WID}, 16'); a(f's_cmp_eq_u32 {T0}, 0'); a('s_cbranch_scc1 KQ_END')
    if mega.TL:
        pass
    a(f's_cmp_le_u32 s{S_RND}, {nbg_rounds}'); a('s_cbranch_scc1 KQ_TOP')
    if mega.TL:
        a('v_mov_b32 v12, 0'); a('v_writelane_b32 v12, s100, 0'); a('v_writelane_b32 v12, s101, 1')
        mega.tl_dump(a, [12, 12, 12])
    a('s_endpgm')
    a.label('KQ_END')


def gen_mega(cfg, dbg=None, prof=False):
    tasks.set_coh(True)
    a = Asm()
    P = 'RC'
    a('s_cmp_ge_u32 s2, 256')
    a('s_cbranch_scc1 MG_EXIT')
    def rstamp(sreg):
        if mega.TL:
            a('s_memrealtime s[88:89]'); a('s_waitcnt lgkmcnt(0)'); a(f's_mov_b32 s{sreg}, s88')
    rstamp(100)
    rc.common_setup(a)
    rc.role_dynamic(a, cfg, P, 'MG_WORK', nx=8)
    rstamp(101)
    rc.role_setup(a, cfg)
    a(f's_mov_b32 s{rc.S_NST}, 63')
    rc.const_tables(a)
    rc.stage_weights(a, P)
    rstamp(72)
    rc.near_measure(a, cfg, P)
    rc.x_offsets(a, cfg)
    a('s_waitcnt vmcnt(0) lgkmcnt(0)')
    a('s_barrier')
    rstamp(73)
    a(f's_cmp_eq_u32 s{rc.S_MODE}, 1')
    a(f's_cbranch_scc0 {P}_FB')
    rc.rec_loop(a, cfg, P, '', dbg)
    if mega.TL:
        rstamp(74)
        a.srd(84, rc.S_WS, 1 << 20, add=mega.TL_BASE + (1 << 20))
        a(f's_lshl_b32 s76, s{rc.S_H}, 1'); a(f's_add_u32 s76, s76, s{rc.S_J}'); a('s_lshl_b32 s76, s76, 2')
        a(f's_add_u32 s76, s76, s{rc.S_WV}'); a('s_lshl_b32 s76, s76, 5')
        a('v_mov_b32 v9, 0'); a('s_mov_b64 exec, 1')
        for i, r in enumerate([100, 101, 72, 73, 74, 75]):
            a(f'v_mov_b32 v8, s{r}'); a(f'buffer_store_dword v8, v9, s[84:87], s76 offen offset:{4*i}')
        a('s_waitcnt vmcnt(0)')
    a('s_endpgm')
    a.label(f'{P}_FB')
    rc.rec_loop(a, cfg, P + 'F', ' sc1', None)
    a('s_endpgm')
    a.label('MG_WORK')
    T0, T1 = 's46', 's47'
    a(f's_sub_u32 {T0}, s{rc.S_J}, 2'); a(f's_lshl_b32 {T0}, {T0}, 5'); a(f's_add_u32 {T0}, {T0}, s{rc.S_H}')
    a(f's_sub_u32 {T1}, s{rc.S_H}, 32'); a(f's_lshl_b32 {T1}, {T1}, 1'); a(f's_add_u32 {T1}, {T1}, s{rc.S_J}')
    a(f's_cmp_eq_u32 s{rc.S_MODE}, 1'); a(f's_cselect_b32 s{S_WID}, {T0}, {T1}')
    a(f's_cmp_ge_u32 s{S_WID}, 192'); a('s_cbranch_scc1 MG_EXIT')
    a(f's_mov_b32 s{S_WAVE}, s{rc.S_WV}')
    a.srd(S_FL, rc.S_WS, SM_SIZE, add=WS_SM)
    a(f's_mov_b32 s{S_BUDW}, 200000')
    a(f's_mov_b32 s{S_WM}, s{rc.S_MODE}')
    g = Eng()
    kvq_loop(a, g)
    W = f's{S_WID}'
    def rng(lo, hi, lab):
        a(f's_cmp_lt_u32 {W}, {hi}'); a(f's_cbranch_scc1 {lab}')
    rng(0, 32, 'MG_WO'); rng(0, 64, 'MG_DN')
    a(f's_sub_u32 s46, {W}, 64'); a('s_lshr_b32 s46, s46, 5'); a(f's_and_b32 s47, {W}, 31')
    a('s_cmp_ge_u32 s47, 14'); a('s_cbranch_scc1 MG_AT')
    a('s_mul_i32 s29, s46, 14'); a('s_add_u32 s29, s29, s47'); a('s_mov_b32 s28, 0')
    role_gemmx(a, 'GU'); a('s_endpgm')
    a.label('MG_WO')
    a(f's_lshr_b32 s28, {W}, 3'); a(f's_and_b32 s29, {W}, 7')
    role_gemmx(a, 'WO'); a('s_endpgm')
    a.label('MG_DN')
    a(f's_sub_u32 s29, {W}, 32'); a('s_lshr_b32 s28, s29, 3'); a('s_and_b32 s29, s29, 7')
    role_gemmx(a, 'DN'); a('s_endpgm')
    a.label('MG_AT')
    a('s_lshl_b32 s28, s46, 1'); a('s_add_u32 s28, s28, s47'); a('s_sub_u32 s28, s28, 14')
    role_att(a)
    a.label('MG_EXIT')
    a('s_endpgm')
    return a.text()


def header():
    src = open('cdna_kernels/' + KNAME[:-7] + '.s.ref').read().split('\n')
    out = []
    for l in src:
        if l.startswith('; Override launch'): break
        out.append(l)
    return '\n'.join(out)

def build(path, hdr='; test', cfg=None, **kw):
    cfg = cfg or rc.Cfg(dynamic=True, RS_PERM=False, EARLY_CLR=True, kvflag=FL_KVQ, tl=mega.TL)
    ks = [('prep_kernel', gen_prep(cfg), 128, 128), ('mega_kernel', gen_mega(cfg, **kw), 512, 256)]
    ls = [('prep_kernel', (256,1,1), (256,1,1), 1024), ('mega_kernel', (256,1,1), (256,1,1), 163840)]
    txt = assemble_file(hdr, ls, ks)
    open(path, 'w').write(txt)
    print('bytes', len(txt), 'lines', txt.count('\n'))
if __name__ == '__main__':
    p = sys.argv[1] if len(sys.argv) > 1 else 'mg.s'
    if len(sys.argv) > 2 and sys.argv[2] == 'tl': mega.TL = True
    build(p, header())
    import chk; chk.chk(p)
```

```python
from asmlib import *
import mega, k_recc as rc
from mega import *
from mega import tl_stamp, tl_init, tl_dump

S_WM = 87
F_XW, F_XD = 1024, 2560
L_ST = 0x20000

class LQ:
    def __init__(self, a): self.a = a; self.q = []
    def op(self, s, tag=None): self.a(s); self.q.append(tag)
    def wait(self, tag):
        i = max(k for k, t in enumerate(self.q) if t == tag)
        n = len(self.q) - 1 - i
        assert n <= 15
        self.a(f's_waitcnt lgkmcnt({n})')
    def drain(self): self.a('s_waitcnt lgkmcnt(0)'); self.q = []

def mode_store(a, instrs):
    l1, l2 = a.newlabel('MS'), a.newlabel('MS')
    a(f's_cmp_eq_u32 s{S_WM}, 1'); a(f's_cbranch_scc0 {l1}')
    for i in instrs: a(i)
    a(f's_branch {l2}')
    a.label(l1)
    for i in instrs: a(i + ' sc1')
    a.label(l2)

PROF = False
def role_gemmx(a, kind, nseg=64):
    N = kind
    prof = PROF
    def ST(i):
        if not prof: return
        a('s_memtime s[56:57]'); a('s_waitcnt lgkmcnt(0)')
        a('s_sub_u32 s59, s56, s58'); a(f's_add_u32 s{60+i}, s{60+i}, s59'); a('s_mov_b32 s58, s56')
    GU = kind == 'GU'
    KS_, CB_ = 28, 29
    nk = 56 if kind == 'DN' else 64
    nch = nk // 8
    nd = nk // 4
    SW, SX, SO = 4, 8, 12
    SR, SRES = 4, S_OSRD
    T0, T1, T2 = f's{S_T0}', f's{S_T1}', f's{S_T2}'
    W = f's{S_WAVE}'
    LN, L16, VD, VT_, t1, t2 = 1, 2, 3, 4, 5, 6
    VPA, VPF, VFA, VONE, VOUT = 8, 12, 16, 17, 18
    VXR = [7, 9, 10, 11]
    XF = 160 if GU else 20
    NR = 12 if GU else 8
    AC0, AC1 = 52, 68
    TMP = 84
    CS = 100
    SA, SB_, QA, QB = 116, 117, 118, 119
    UL, UH = 20, 21
    VNEG = 160
    S_E0 = 49
    VONES, VSTW, VSTR = 120, 121, 122
    NMU, RSTD = 124, 126
    STT = 128
    VEX, VXF, VXP, VFM, VRM = 136, 137, 138, 139, 140
    RES = 142
    EXL = 144
    a(f's_load_dwordx2 s[{S_PWS}:{S_PWS+1}], s[0:1], {KA_WS}')
    if GU:
        a(f's_load_dwordx2 s[{S_PW}:{S_PW+1}], s[0:1], {KA_WG}')
        a(f's_load_dwordx2 s[40:41], s[0:1], {KA_WU}')
    else:
        a(f's_load_dwordx2 s[{S_PW}:{S_PW+1}], s[0:1], {KA_WO if kind == "WO" else KA_WD}')
        a(f's_load_dwordx2 s[40:41], s[0:1], {KA_X if kind == "WO" else KA_OUT}')
    a(f'v_and_b32 v{LN}, 63, v0')
    a(f'v_lshlrev_b32 v{L16}, 4, v{LN}')
    a('s_waitcnt lgkmcnt(0)')
    if GU:
        a(f's_cmp_ge_u32 {W}, 2')
        a(f's_cselect_b32 s{S_PW}, s40, s{S_PW}')
        a(f's_cselect_b32 s{S_PW+1}, s41, s{S_PW+1}')
    a.srd(SW, S_PW, (8 if kind == 'WO' else 7) * MB)
    xo, xb = {'WO': (WS_OF, 16*MB), 'GU': (WS_HB, 4*MB), 'DN': (WS_ACT, 14*MB)}[kind]
    a.srd(SX, S_PWS, xb, add=xo)
    oo, ob = {'WO': (WS_P1, MB), 'GU': (WS_ACT, 14*MB), 'DN': (WS_P2, MB)}[kind]
    a.srd(SO, S_PWS, ob, add=oo)
    if kind == 'WO':   a.srd(SRES, S_PWS, 4*MB, add=WS_HB)
    elif kind == 'DN': a.srd(SRES, 40, 4*MB)
    S_GO, S_M0 = 42, 43
    if GU:
        a(f'v_lshrrev_b32 v{t1}, 3, v{LN}'); a(f'v_mul_u32_u24 v{VD}, 7168, v{t1}')
        a(f'v_and_b32 v{t1}, 7, v{LN}'); a(f'v_lshl_add_u32 v{VD}, v{t1}, 4, v{VD}')
        a(f's_lshl_b32 {T0}, s{CB_}, 7')
        a(f's_and_b32 {T1}, {W}, 1'); a(f's_mul_i32 {T1}, {T1}, {64*7168}')
        a(f's_add_u32 s{S_GO}, {T0}, {T1}')
        a(f's_lshl_b32 s{S_M0}, {W}, 13')
        istep, cstep = 8 * 7168, 128 * 7168
        a(f'v_bfe_u32 v{t1}, v{LN}, 2, 2'); a(f'v_lshrrev_b32 v{t2}, 5, v{LN}')
        a(f'v_lshl_add_u32 v{t1}, v{t2}, 2, v{t1}'); a(f'v_lshlrev_b32 v{VT_}, 7, v{t1}')
        a(f'v_bfe_u32 v{t1}, v{LN}, 4, 1'); a(f'v_lshl_add_u32 v{VT_}, v{t1}, 14, v{VT_}')
        a(f'v_and_b32 v{t1}, 3, v{LN}'); a(f'v_lshl_add_u32 v{VT_}, v{t1}, 3, v{VT_}')
        a(f's_lshl_b32 {T0}, {W}, 5'); a(f'v_add_u32 v{VT_}, {T0}, v{VT_}')
        kkoff, h2off = 2048, 1024
    else:
        rows0 = 1024 if kind == 'WO' else 896
        a(f'v_lshrrev_b32 v{t1}, 4, v{LN}'); a(f'v_lshlrev_b32 v{t2}, 2, v{t1}')
        a(f'v_and_b32 v{VD}, 15, v{LN}'); a(f'v_xor_b32 v{VD}, v{VD}, v{t2}'); a(f'v_lshlrev_b32 v{VD}, 4, v{VD}')
        a(f'v_lshl_add_u32 v{VD}, v{t1}, 11, v{VD}')
        a(f's_mul_i32 {T0}, s{KS_}, {rows0 * 2048}'); a(f's_lshl_b32 {T1}, s{CB_}, 8'); a(f's_add_u32 {T0}, {T0}, {T1}')
        a(f's_lshl_b32 {T1}, {W}, 16'); a(f's_add_u32 s{S_GO}, {T0}, {T1}')
        a(f's_lshl_b32 s{S_M0}, {W}, 13')
        istep, cstep = 4 * 2048, 128 * 2048
        a(f'v_bfe_u32 v{t1}, v{LN}, 2, 2')
        a(f'v_lshrrev_b32 v{t2}, 5, v{LN}'); a(f'v_lshl_add_u32 v{t2}, v{t2}, 2, v{t1}'); a(f'v_lshlrev_b32 v{VT_}, 8, v{t2}')
        a(f'v_xor_b32 v{t1}, {W}, v{t1}'); a(f'v_lshl_add_u32 v{VT_}, v{t1}, 6, v{VT_}')
        a(f'v_bfe_u32 v{t1}, v{LN}, 4, 1'); a(f'v_lshl_add_u32 v{VT_}, v{t1}, 5, v{VT_}')
        a(f'v_and_b32 v{t1}, 3, v{LN}'); a(f'v_lshl_add_u32 v{VT_}, v{t1}, 3, v{VT_}')
        kkoff, h2off = 4096, 2048
    def wdma(q):
        a(f's_add_u32 {T0}, s{S_GO}, {q * cstep}')
        a(f's_add_u32 m0, s{S_M0}, {(q & 3) * 32768}')
        for i in range(8):
            a('s_nop 0')
            a(f'buffer_load_dwordx4 v{VD}, s[{SW}:{SW+3}], {T0} offen lds')
            if i < 7:
                a(f's_add_u32 {T0}, {T0}, {istep}'); a('s_add_u32 m0, m0, 1024')
    TLV = [240, 241, 242]
    tl_init(a, TLV)
    VTJ = [84, 85, 86, 87]
    if GU:
        for j in range(4):
            a(f's_xor_b32 {T0}, {W}, {j}'); a(f's_lshl_b32 {T0}, {T0}, 11'); a(f'v_add_u32 v{VTJ[j]}, {T0}, v{VT_}')
    for q in range(min(4, nch)): wdma(q)
    for q in range(nch):
        left = min(nch, max(4, q + 4)) - (q + 1)
        a(f's_waitcnt vmcnt({8 * left})')
        a('s_barrier')
        if GU:
            for j in range(4): a(f'v_add_u32 v{88+j}, {(q & 3) * 32768}, v{VTJ[j]}')
        else:
            a(f'v_add_u32 v{t1}, {(q & 3) * 32768}, v{VT_}')
        for kk in range(8):
            kb = 8 * q + kk
            if GU: ad, off = 88 + (kk & 3), (kk & 4) * kkoff
            else:  ad, off = t1, kk * kkoff
            a(f'ds_read_b64_tr_b16 a[{4*kb}:{4*kb+1}], v{ad} offset:{off}')
            a(f'ds_read_b64_tr_b16 a[{4*kb+2}:{4*kb+3}], v{ad} offset:{off + h2off}')
            if kk % 4 == 3: a('s_waitcnt lgkmcnt(0)')
        a('s_barrier')
        if q + 4 < nch: wdma(q + 4)
    S_XO, S_XM0, S_OO = 44, 45, 46
    S_EXL = 47
    xstride = {'WO': 262144, 'GU': 65536, 'DN': 229376}[kind]
    if kind == 'WO':   a(f's_lshl_b32 s{S_XO}, s{KS_}, 16')
    elif kind == 'DN': a(f's_mul_i32 s{S_XO}, s{KS_}, {56*1024}')
    else:              a(f's_mov_b32 s{S_XO}, 0')
    a(f's_lshl_b32 {T0}, {W}, 10'); a(f's_add_u32 s{S_XO}, s{S_XO}, {T0}')
    a(f's_lshl_b32 s{S_XM0}, {W}, 10')
    if GU:
        a(f's_lshl_b32 {T0}, s{CB_}, 2'); a(f's_add_u32 {T0}, {T0}, {W}'); a(f's_lshl_b32 s{S_OO}, {T0}, 10')
        ostride = 229376
        a(f'v_mov_b32 v{VONES}, 0x3f803f80')
        for r in range(4): a(f'v_mov_b32 v{XF+r}, 0x3f803f80')
        a('s_nop 1')
        for kb in range(64):
            c = '0' if kb == 0 else f'v[{CS}:{CS+15}]'
            a(f'v_mfma_f32_32x32x16_bf16 v[{CS}:{CS+15}], a[{4*kb}:{4*kb+3}], v[{XF}:{XF+3}], {c}')
        a(f'v_lshrrev_b32 v{VSTW}, 2, v{L16}')
        a(f'v_and_b32 v{VSTR}, 31, v{LN}'); a(f'v_lshlrev_b32 v{VSTR}, 2, v{VSTR}'); a(f'v_add_u32 v{VSTR}, {L_ST}, v{VSTR}')
        a(f's_lshl_b32 {T0}, {W}, 8'); a(f's_add_u32 {T0}, {T0}, {L_ST}'); a(f'v_add_u32 v{VSTW}, {T0}, v{VSTW}')
    else:
        a(f's_lshl_b32 {T0}, s{CB_}, 2'); a(f's_add_u32 {T1}, {T0}, {W}'); a(f's_lshl_b32 {T1}, {T1}, 2')
        a(f's_add_u32 {T1}, {T1}, s{KS_}'); a(f's_lshl_b32 s{S_OO}, {T1}, 12')
        a(f's_add_u32 {T1}, {T0}, s{KS_}'); a(f's_lshl_b32 s{S_EXL}, {T1}, 14')
        fx = F_XW if kind == 'WO' else F_XD
        a(f's_lshl_b32 {T2}, {T1}, 4'); a(f's_add_u32 {T2}, {T2}, {fx}'); a(f'v_mov_b32 v{VXP}, {T2}')
        a(f's_add_u32 {T1}, {T0}, {W}'); a(f's_lshl_b32 {T1}, {T1}, 4'); a(f's_lshl_b32 {T2}, s{KS_}, 2')
        a(f's_add_u32 {T1}, {T1}, {T2}'); a(f's_add_u32 {T1}, {T1}, {fx}'); a(f'v_mov_b32 v{VXF}, {T1}')
        mm, hh, sp = 84, 85, 86
        a(f'v_and_b32 v{mm}, 15, v{LN}'); a(f's_lshr_b32 {T0}, {W}, 1'); a(f's_lshl_b32 {T0}, {T0}, 4'); a(f'v_add_u32 v{mm}, {T0}, v{mm}')
        a(f'v_bfe_u32 v{hh}, v{LN}, 4, 1'); a(f'v_lshrrev_b32 v{sp}, 5, v{LN}')
        a(f'v_lshl_add_u32 v87, v{hh}, 5, v{mm}'); a(f'v_lshlrev_b32 v87, 4, v87')
        a(f's_and_b32 {T0}, {W}, 1')
        a(f's_lshl_b32 {T1}, {T0}, 11'); a(f'v_lshl_add_u32 v{VEX}, v{sp}, 10, v87'); a(f'v_add_u32 v{VEX}, {T1}, v{VEX}')
        a(f's_lshl_b32 {T1}, s{CB_}, 3'); a(f's_lshl_b32 {T2}, s{KS_}, 1'); a(f's_add_u32 {T1}, {T1}, {T2}'); a(f's_add_u32 {T1}, {T1}, {T0}')
        a(f's_lshl_b32 {T2}, {T1}, 10'); a(f'v_lshl_add_u32 v{VFM}, v{sp}, 3, v87'); a(f'v_add_u32 v{VFM}, {T2}, v{VFM}')
        a(f's_lshl_b32 {T2}, {T1}, 5'); a(f'v_lshlrev_b32 v{VRM}, 11, v{mm}'); a(f'v_lshl_add_u32 v{VRM}, v{sp}, 4, v{VRM}')
        a(f'v_lshl_add_u32 v{VRM}, v{hh}, 3, v{VRM}'); a(f'v_add_u32 v{VRM}, {T2}, v{VRM}')
        for r in range(4): a(f'v_mov_b32 v{VNEG+r}, -1')
        if kind == 'WO': a.srd(SR, 40, 4*MB)
        else:            a.srd(SR, S_PWS, 4*MB, add=WS_HB)
    if kind == 'WO':
        a(f'v_and_b32 v{VPA}, 7, v{LN}'); a(f'v_lshlrev_b32 v{VPA}, 2, v{VPA}')
        a(f's_lshl_b32 {T0}, s{KS_}, 5'); a(f's_add_u32 {T0}, {T0}, {F_AF}'); a(f'v_add_u32 v{VPA}, {T0}, v{VPA}')
        pw = 1
    elif GU:
        a(f'v_and_b32 v{VPA}, 31, v{LN}'); a(f'v_lshlrev_b32 v{VPA}, 4, v{VPA}'); a(f'v_add_u32 v{VPA}, {F_WF}, v{VPA}')
        pw = 4
    else:
        a(f'v_min_u32 v{VPA}, 13, v{LN}'); a(f'v_lshlrev_b32 v{VPA}, 4, v{VPA}')
        a(f's_mul_i32 {T0}, s{KS_}, {14*16}'); a(f's_add_u32 {T0}, {T0}, {F_GF}'); a(f'v_add_u32 v{VPA}, {T0}, v{VPA}')
        pw = 4
    if GU:
        a(f's_lshl_b32 {T0}, s{CB_}, 4'); fo = F_GF
    else:
        a(f's_lshl_b32 {T0}, s{KS_}, 3'); a(f's_add_u32 {T0}, {T0}, s{CB_}'); a(f's_lshl_b32 {T0}, {T0}, 4')
        fo = F_WF
    a(f's_lshl_b32 {T1}, {W}, 2'); a(f's_add_u32 {T0}, {T0}, {T1}'); a(f'v_mov_b32 v{VFA}, {T0}')
    a(f'v_mov_b32 v{VONE}, 1')
    a(f'v_mov_b32 v{VOUT}, {L_BC}')
    a(f's_mov_b32 s{S_SEG}, 0'); a(f's_mov_b32 s{S_EARLY}, 0')
    for j in range(4 if GU else 1):
        if GU:
            a(f's_xor_b32 {T0}, {W}, {j}'); a(f's_lshl_b32 {T0}, {T0}, 10'); a(f'v_add_u32 v{VXR[j]}, {T0}, v{L16}')
        else:
            a(f'v_mov_b32 v{VXR[j]}, v{L16}')

    def xdma(add):
        a(f's_add_u32 {T1}, s{S_SEG}, {add}')
        a(f's_mul_i32 {T0}, {T1}, {xstride}'); a(f's_add_u32 {T0}, {T0}, s{S_XO}')
        a(f's_and_b32 {T1}, {T1}, 1'); a(f's_lshl_b32 {T1}, {T1}, 16'); a(f's_add_u32 m0, {T1}, s{S_XM0}')
        for i in range(nd):
            a('s_nop 0')
            a(f'buffer_load_dwordx4 v{L16}, s[{SX}:{SX+3}], {T0} offen lds')
            if i < nd - 1:
                a(f's_add_u32 {T0}, {T0}, 4096'); a('s_add_u32 m0, m0, 4096')

    top, have = f'{N}_TOP', f'{N}_HAVE'
    tl_stamp(a, TLV[2], 2)
    if prof:
        for i in range(12): a(f's_mov_b32 s{60+i}, 0')
        a('s_memtime s[56:57]'); a('s_waitcnt lgkmcnt(0)'); a('s_mov_b32 s58, s56')
    a.label(top)
    a(f's_cmp_lg_u32 s{S_EARLY}, 0'); a(f's_cbranch_scc1 {have}')
    nw = f'{N}_NW0'
    a(f's_cmp_lg_u32 {W}, 0'); a(f's_cbranch_scc1 {nw}')
    seg_foff(a)
    poll(a, N + '_P', VPA, VPF, pw, t1)
    a.label(nw)
    a('s_barrier')
    xdma(0)
    a.label(have)
    tl_stamp(a, TLV[0])
    ST(0)
    nw2 = f'{N}_NW1'
    a(f's_cmp_lg_u32 {W}, 0'); a(f's_cbranch_scc1 {nw2}')
    seg_foff(a, 1)
    flag_load(a, VPA, VPF, pw)
    a.label(nw2)
    if GU:
        for r in (SA, SB_, QA, QB): a(f'v_mov_b32 v{r}, 0')
    bounds = [0, 16, 32, 48, nk] if nk == 64 else [0, 16, 32, 44, 56]
    lq = LQ(a)
    pos = 0
    def rd(kb, slot):
        r = XF + 4 * (slot % NR)
        if GU: return f'ds_read_b128 v[{r}:{r+3}], v{VXR[kb & 3]} offset:{(kb & ~3) * 1024}'
        return f'ds_read_b128 v[{r}:{r+3}], v{VXR[0]} offset:{kb * 1024}'
    def mf(kb, slot):
        r = XF + 4 * (slot % NR); ac = AC0 if slot % 2 == 0 else AC1
        c = '0' if slot < 2 else f'v[{ac}:{ac+15}]'
        return f'v_mfma_f32_32x32x16_bf16 v[{ac}:{ac+15}], a[{4*kb}:{4*kb+3}], v[{r}:{r+3}], {c}'
    def stats(slot, i):
        r = XF + 4 * (slot % NR) + i
        lo, hi = UL + 2 * (i & 1), UH + 2 * (i & 1)
        a(f'v_lshlrev_b32 v{lo}, 16, v{r}'); a(f'v_and_b32 v{hi}, 0xffff0000, v{r}')
        a(f'v_fmac_f32 v{QA}, v{lo}, v{lo}'); a(f'v_add_f32 v{SA}, v{SA}, v{lo}')
        a(f'v_fmac_f32 v{QB}, v{hi}, v{hi}'); a(f'v_add_f32 v{SB_}, v{SB_}, v{hi}')
    for c in range(4):
        k0, k1 = bounds[c], bounds[c + 1]
        need = (k1 + 3) // 4
        a(f's_waitcnt vmcnt({nd - need})')
        last = c == 3
        if last:
            nw3 = f'{N}_NW2'
            a(f's_cmp_lg_u32 {W}, 0'); a(f's_cbranch_scc1 {nw3}')
            a('s_waitcnt vmcnt(0)')
            flag_test(a, VPF, pw, t1)
            a(f's_cmp_eq_u64 vcc, 0'); a(f's_cselect_b32 {T0}, 1, 0')
            a(f'v_mov_b32 v{t1}, {T0}')
            a(f'ds_write_b32 v{VOUT}, v{t1}')
            a('s_waitcnt lgkmcnt(0)')
            a.label(nw3)
        a('s_barrier')
        if c == 0: ST(1)
        if last: ST(2)
        if last:
            lq.op(f'ds_read_b32 v{t2}, v{VOUT}', 'early')
            if not GU:
                a(f's_lshl_b32 {T2}, s{S_SEG}, 16')
                a(f'buffer_load_dwordx2 v[{RES}:{RES+1}], v{VRM if kind == "WO" else VFM}, s[{SR}:{SR+3}], {T2} offen')
        D = 6
        ks = list(range(k0, k1))
        if GU and last:
            ks = [48, 52, 56, 60] + [k for k in ks if k & 3]
        base = pos
        sw = []
        if GU:
            for i, kb in enumerate(ks):
                if (kb & 3) == 0: sw += [(i, base + i, d) for d in range(4)]
        per_gap = 2 if (GU and last) else 1
        for i in range(D): lq.op(rd(ks[i], base + i), ('x', base + i))
        for i, kb in enumerate(ks):
            lq.wait(('x', base + i))
            a(mf(kb, base + i))
            n = 0
            while sw and sw[0][0] <= i and n < per_gap:
                assert i - (sw[0][1] - base) <= NR - D - 1
                stats(sw[0][1], sw[0][2]); sw.pop(0); n += 1
            if i + D < len(ks): lq.op(rd(ks[i + D], base + i + D), ('x', base + i + D))
            if GU and last:
                if i == 8:
                    assert not sw
                    a(f'v_add_f32 v{SA}, v{SA}, v{SB_}'); a(f'v_add_f32 v{QA}, v{QA}, v{QB}')
                    a('s_nop 1')
                    a(f'v_permlane32_swap_b32 v{SA}, v{QA}')
                    a('s_nop 1')
                    a(f'v_add_f32 v{SA}, v{SA}, v{QA}')
                    lq.op(f'ds_write_b32 v{VSTW}, v{SA}', 'stw')
                if i == 9:
                    lq.wait('stw')
                    a('s_barrier')
                    for w in range(4):
                        lq.op(f'ds_read2_b32 v[{STT+2*w}:{STT+2*w+1}], v{VSTR} offset0:{64*w} offset1:{64*w+32}', ('st', w))
                if i == 12:
                    lq.wait(('st', 3))
                    for (d, x, y) in [(0, 0, 2), (1, 1, 3), (4, 4, 6), (5, 5, 7), (0, 0, 4), (1, 1, 5)]:
                        a(f'v_add_f32 v{STT+d}, v{STT+x}, v{STT+y}')
                    a(f'v_mul_f32 v{NMU}, 0x3a800000, v{STT}')
                    a(f'v_mul_f32 v{RSTD}, 0x3a800000, v{STT+1}')
                if i == 13:
                    a(f'v_fma_f32 v{RSTD}, -v{NMU}, v{NMU}, v{RSTD}')
                    a(f'v_max_f32 v{RSTD}, 0, v{RSTD}')
                    bf16_round(a, RSTD, RSTD)
                    a(f'v_add_f32 v{RSTD}, 0x3727c5ac, v{RSTD}')
                    bf16_round(a, RSTD, RSTD)
                if i == 14:
                    a(f'v_sqrt_f32 v{RSTD}, v{RSTD}')
                    bf16_round(a, NMU, NMU)
                    bf16_round(a, RSTD, RSTD)
                    a(f'v_rcp_f32 v{RSTD}, v{RSTD}')
        assert not sw
        pos += len(ks)
        lq.q = []
    ST(3)
    a(f'v_readfirstlane_b32 s{S_EARLY}, v{t2}')
    if prof: a(f's_add_u32 s70, s70, s{S_EARLY}')
    a(f's_cmp_ge_u32 s{S_SEG}, {nseg - 1}'); a(f's_cselect_b32 s{S_EARLY}, 0, s{S_EARLY}')
    late, fin = f'{N}_LATE', f'{N}_FIN'
    if GU:
        a(f's_mul_i32 {T2}, s{S_SEG}, {ostride}'); a(f's_add_u32 {T2}, {T2}, s{S_OO}')
        for j in range(4): a(f'v_xor_b32 v{VXR[j]}, 0x10000, v{VXR[j]}')
        a('s_nop 7'); a('s_nop 4')
        for r in range(0, 16, 2):
            a(f'v_pk_add_f32 v[{AC0+r}:{AC0+r+1}], v[{AC0+r}:{AC0+r+1}], v[{AC1+r}:{AC1+r+1}]')
        for r in range(0, 16, 2):
            a(f'v_pk_fma_f32 v[{AC0+r}:{AC0+r+1}], v[{CS+r}:{CS+r+1}], v[{NMU}:{NMU+1}], v[{AC0+r}:{AC0+r+1}] op_sel_hi:[1,0,1] neg_lo:[0,1,0] neg_hi:[0,1,0]')
        for r in range(0, 16, 2):
            a(f'v_pk_mul_f32 v[{AC0+r}:{AC0+r+1}], v[{AC0+r}:{AC0+r+1}], v[{RSTD}:{RSTD+1}] op_sel_hi:[1,0]')
        G, U, T = AC0, AC0 + 8, TMP
        for r in range(8):
            a(f'v_cvt_pk_bf16_f32 v{T+r}, v{AC0+2*r}, v{AC0+2*r+1}')
        for r in range(4):
            a(f'v_lshlrev_b32 v{G+2*r}, 16, v{T+r}'); a(f'v_and_b32 v{G+2*r+1}, 0xffff0000, v{T+r}')
        for r in range(8): a(f'v_mul_f32 v{G+r}, 0xbfb8aa3b, v{G+r}')
        for r in range(4):
            a(f'v_lshlrev_b32 v{U+2*r}, 16, v{T+4+r}'); a(f'v_and_b32 v{U+2*r+1}, 0xffff0000, v{T+4+r}')
        for r in range(8): a(f'v_exp_f32 v{G+r}, v{G+r}')
        for r in range(8): a(f'v_add_f32 v{G+r}, 1.0, v{G+r}')
        for r in range(8): a(f'v_rcp_f32 v{G+r}, v{G+r}')
        a('s_nop 0')
        for r in range(4): a(f'v_cvt_pk_bf16_f32 v{T+r}, v{G+2*r}, v{G+2*r+1}')
        for r in range(4):
            a(f'v_lshlrev_b32 v{G+2*r}, 16, v{T+r}'); a(f'v_and_b32 v{G+2*r+1}, 0xffff0000, v{T+r}')
        for r in range(8): a(f'v_mul_f32 v{G+r}, v{G+r}, v{U+r}')
        for r in range(4): a(f'v_cvt_pk_bf16_f32 v{T+r}, v{G+2*r}, v{G+2*r+1}')
        a(f'buffer_store_dwordx4 v[{T}:{T+3}], v{L16}, s[{SO}:{SO+3}], {T2} offen sc1')
        a(f's_cmp_eq_u32 s{S_EARLY}, 0'); a(f's_cbranch_scc1 {late}')
        xdma(1)
        a(f's_waitcnt vmcnt({nd})')
        a(f's_branch {fin}')
        a.label(late)
        a('s_waitcnt vmcnt(0)')
        a.label(fin)
        ST(7)
        set_flag(a, VFA, VONE, fo)
    else:
        S_SLOT = 48
        a(f's_and_b32 s{S_SLOT}, s{S_SEG}, 1'); a(f's_lshl_b32 s{S_SLOT}, s{S_SLOT}, 19')
        a(f's_add_u32 {T2}, s{S_SLOT}, s{S_OO}')
        a(f'v_xor_b32 v{VXR[0]}, 0x10000, v{VXR[0]}')
        a('s_nop 7'); a('s_nop 4')
        for r in range(0, 16, 2):
            a(f'v_pk_add_f32 v[{AC0+r}:{AC0+r+1}], v[{AC0+r}:{AC0+r+1}], v[{AC1+r}:{AC1+r+1}]')
        mode_store(a, [f'buffer_store_dwordx4 v[{AC0+4*q}:{AC0+4*q+3}], v{L16}, s[{SO}:{SO+3}], {T2} offen offset:{q*1024}' for q in range(4)])
        ST(4)
        a(f's_add_u32 s{S_E0}, s{S_SLOT}, s{S_EXL}')
        for s_ in range(1, 4): a(f's_add_u32 s{S_E0+s_}, s{S_E0}, {4096*s_}')
        lp = a.newlabel(N + '_X'); dn = lp + '_D'
        a.label(lp)
        for s_ in range(4):
            a(f'buffer_load_dwordx4 v[{EXL+4*s_}:{EXL+4*s_+3}], v{VEX}, s[{SO}:{SO+3}], s{S_E0+s_} offen sc1')
        a('s_waitcnt vmcnt(0)')
        rc.max_chain(a, t1, list(range(EXL, EXL + 16)))
        a(f'v_cmp_eq_u32 vcc, -1, v{t1}')
        budget(a, lp, dn)
        ST(5)
        mode_store(a, [f'buffer_store_dwordx4 v[{VNEG}:{VNEG+3}], v{VEX}, s[{SO}:{SO+3}], s{S_E0+s_} offen' for s_ in range(4)])
        pk = lambda d, x, y: a(f'v_pk_add_f32 v[{d}:{d+1}], v[{x}:{x+1}], v[{y}:{y+1}]')
        pk(EXL, EXL, EXL + 4); pk(EXL + 2, EXL + 2, EXL + 6); pk(EXL + 8, EXL + 8, EXL + 12); pk(EXL + 10, EXL + 10, EXL + 14)
        pk(EXL, EXL, EXL + 8); pk(EXL + 2, EXL + 2, EXL + 10)
        a(f'v_lshlrev_b32 v{EXL+8}, 16, v{RES}'); a(f'v_and_b32 v{EXL+9}, 0xffff0000, v{RES}')
        a(f'v_cvt_pk_bf16_f32 v{EXL}, v{EXL}, v{EXL+1}'); a(f'v_cvt_pk_bf16_f32 v{EXL+2}, v{EXL+2}, v{EXL+3}')
        a(f'v_lshlrev_b32 v{EXL+10}, 16, v{RES+1}'); a(f'v_and_b32 v{EXL+11}, 0xffff0000, v{RES+1}')
        a(f'v_lshlrev_b32 v{EXL+4}, 16, v{EXL}'); a(f'v_and_b32 v{EXL+5}, 0xffff0000, v{EXL}')
        a(f'v_lshlrev_b32 v{EXL+6}, 16, v{EXL+2}'); a(f'v_and_b32 v{EXL+7}, 0xffff0000, v{EXL+2}')
        pk(EXL + 4, EXL + 4, EXL + 8); pk(EXL + 6, EXL + 6, EXL + 10)
        a(f's_lshl_b32 {T2}, s{S_SEG}, 16')
        a(f'v_cvt_pk_bf16_f32 v{EXL}, v{EXL+4}, v{EXL+5}'); a(f'v_cvt_pk_bf16_f32 v{EXL+1}, v{EXL+6}, v{EXL+7}')
        if kind == 'WO':
            a(f'buffer_store_dwordx2 v[{EXL}:{EXL+1}], v{VFM}, s[{SRES}:{SRES+3}], {T2} offen sc1')
        else:
            a(f'buffer_store_dwordx2 v[{EXL}:{EXL+1}], v{VRM}, s[{SRES}:{SRES+3}], {T2} offen')
        ST(6)
        a(f's_cmp_eq_u32 s{S_EARLY}, 0'); a(f's_cbranch_scc1 {late}')
        xdma(1)
        if kind == 'WO': a(f's_waitcnt vmcnt({nd})')
        a(f's_branch {fin}')
        a.label(late)
        if kind == 'WO' or mega.TL: a('s_waitcnt vmcnt(0)')
        a.label(fin)
        ST(7)
        if kind == 'WO': set_flag(a, VFA, VONE, fo)
    tl_stamp(a, TLV[1])
    a(f's_add_u32 s{S_SEG}, s{S_SEG}, 1')
    a(f's_cmp_lt_u32 s{S_SEG}, {nseg}'); a(f's_cbranch_scc1 {top}')
    tl_dump(a, TLV)
    if prof:
        a('s_waitcnt vmcnt(0)')
        a.srd(4, S_PWS, 1 << 20, add=0xF200000)
        a(f's_lshl_b32 {T0}, s{S_WID}, 2'); a(f's_add_u32 {T0}, {T0}, {W}'); a(f's_lshl_b32 {T0}, {T0}, 6')
        a('v_mov_b32 v1, 0')
        a('s_mov_b64 exec, 1')
        for i in range(11):
            a(f'v_mov_b32 v2, s{60+i}')
            a(f'buffer_store_dword v2, v1, s[4:7], {T0} offen offset:{4*i}')
        a('s_mov_b64 exec, -1')
        a('s_waitcnt vmcnt(0)')
```

```python
import sys; sys.path.insert(0,'gen')
from asmlib import *
import tasks, tasks2, mega, k_recc as rc
from mega import *
import mega2
from mega2 import role_gemmx, S_WM
from gemm2 import Eng, S_WAVE, S_T0, S_T1, S_T2
from tasks import S_RB, S_CB, S_KS, S_PW, S_PWS, S_OSRD, MB, task_gemm
from k_ln import bf16_round, reduce_bits345

def gen_prep(cfg):
    a = Asm()
    a('s_cmp_ge_u32 s2, 256')
    a('s_cbranch_scc1 PREP_END')
    a(f's_load_dwordx2 s[4:5], s[0:1], {KA_WS}')
    a(f's_load_dwordx2 s[6:7], s[0:1], {KA_MEM0}')
    a(f's_load_dwordx2 s[24:25], s[0:1], {KA_X}')
    a('v_and_b32 v21, 63, v0'); a('v_lshrrev_b32 v22, 6, v0'); a('s_nop 0'); a('v_readfirstlane_b32 s19, v22')
    a('v_and_b32 v24, 7, v21'); a('v_bfe_u32 v25, v21, 3, 1'); a('v_lshrrev_b32 v26, 4, v21')
    a('s_lshr_b32 s30, s2, 2'); a('s_and_b32 s31, s2, 3'); a('s_lshl_b32 s31, s31, 3')
    a('v_add_u32 v27, s31, v24')
    a('v_lshlrev_b32 v23, 11, v27'); a('v_lshl_add_u32 v23, v26, 5, v23'); a('v_lshl_add_u32 v23, v25, 3, v23')
    a('s_lshl_b32 s32, s19, 9'); a('s_lshl_b32 s33, s30, 16'); a('s_add_u32 s32, s32, s33'); a('v_add_u32 v23, s32, v23')
    a('v_lshl_add_u32 v28, v25, 5, v27'); a('v_lshlrev_b32 v28, 4, v28'); a('v_lshl_add_u32 v28, v26, 10, v28')
    a('s_lshl_b32 s32, s19, 14'); a('s_add_u32 s32, s32, s33'); a('v_add_u32 v28, s32, v28')
    a('v_lshlrev_b32 v29, 2, v24'); a('s_lshl_b32 s32, s19, 5'); a('v_add_u32 v30, s32, v29')
    a('s_lshl_b32 s3, s2, 12')
    a('v_lshlrev_b32 v1, 4, v0')
    a('v_add_u32 v1, s3, v1')
    for r in range(4):
        a(f'v_mov_b32 v{4+r}, -1'); a(f'v_mov_b32 v{8+r}, 0')
    a('s_waitcnt lgkmcnt(0)')
    a.srd(36, 24, 4*MB)
    X = 32
    for it in range(4):
        for h in range(2):
            r = X + (it*2 + h)*2
            a(f'buffer_load_dwordx2 v[{r}:{r+1}], v23, s[36:39], 0 offen offset:{it*128 + h*16}')
    a.srd(8, 4, SM_SIZE, add=WS_SM)
    a.srd(12, 6, 8 * 1024 * 2)
    a.srd(20, 4, 64 << 20, add=rc.WS_X)
    a.srd(40, 4, 4*MB, add=WS_XN)
    a(f's_mov_b32 s16, {rc.C_PART}')
    a('buffer_store_dwordx4 v[4:7], v1, s[8:11], s16 offen')
    a.srd(44, 4, 0x2100000, add=WS_P1)
    a('buffer_store_dwordx4 v[4:7], v1, s[44:47], 0 offen')
    a(f's_mov_b32 s16, {WS_P2 - WS_P1}')
    a('buffer_store_dwordx4 v[4:7], v1, s[44:47], s16 offen')
    a('s_lshr_b32 s17, s2, 3'); a(f's_mul_i32 s17, s17, {cfg.NS*32768}')
    a('s_and_b32 s18, s2, 7'); a('s_lshl_b32 s18, s18, 12'); a('s_add_u32 s17, s17, s18')
    a('v_lshlrev_b32 v2, 4, v0')
    for i in range(3):
        a('buffer_store_dwordx4 v[4:7], v2, s[20:23], s17 offen')
        a('s_add_u32 s17, s17, 32768')
    a('v_lshrrev_b32 v3, 11, v1'); a('v_lshlrev_b32 v3, 12, v3'); a('v_and_b32 v12, 2047, v1'); a('v_add_u32 v3, v3, v12')
    a(f's_mov_b32 s16, {SM_QKM + 2048}')
    for i in range(4):
        a('buffer_store_dwordx4 v[4:7], v3, s[8:11], s16 offen'); a(f's_add_u32 s16, s16, {2*MB}')
    a(f's_mov_b32 s16, {SM_VMG}')
    for i in range(4):
        a('buffer_store_dwordx4 v[4:7], v1, s[8:11], s16 offen'); a(f's_add_u32 s16, s16, {MB}')
    nfl = FL_SEG + 65*4096 - FL_KVQ
    a(f'v_cmp_gt_u32 vcc, {nfl}, v1') if nfl <= 64 else (a(f's_mov_b32 s17, {nfl}'), a('v_cmp_gt_u32 vcc, s17, v1'))
    a('s_and_saveexec_b64 s[26:27], vcc')
    a(f's_mov_b32 s16, {FL_KVQ}')
    a('buffer_store_dwordx4 v[8:11], v1, s[8:11], s16 offen')
    a('s_mov_b64 exec, s[26:27]')
    a('s_cmp_eq_u32 s2, 16'); a('s_cbranch_scc0 PREP_N1')
    a(f's_mov_b32 s16, {rc.C_CNT}')
    a('buffer_store_dwordx4 v[8:11], v2, s[8:11], s16 offen')
    a.label('PREP_N1')
    a('s_cmp_eq_u32 s2, 17'); a('s_cbranch_scc0 PREP_N2')
    a(f's_mov_b32 s16, {rc.C_CNT + 4096}')
    a('buffer_store_dwordx4 v[4:7], v2, s[8:11], s16 offen')
    a.label('PREP_N2')
    a('s_cmp_ge_u32 s2, 16'); a('s_cbranch_scc1 PREP_LN')
    a('s_cmp_lt_u32 s2, 4')
    a('s_cbranch_scc1 PREP_M0')
    a(f's_mov_b32 s16, {rc.C_MEMF}')
    a('buffer_store_dwordx4 v[4:7], v1, s[8:11], s16 offen')
    a('s_branch PREP_LN')
    a.label('PREP_M0')
    a('v_lshrrev_b32 v2, 4, v1')
    a('v_and_b32 v3, 7, v2'); a('v_lshlrev_b32 v3, 11, v3')
    a('v_lshrrev_b32 v12, 4, v2'); a('v_lshl_add_u32 v3, v12, 5, v3')
    a('v_bfe_u32 v12, v2, 3, 1'); a('v_lshl_add_u32 v3, v12, 2, v3')
    for t in range(4):
        a(f'buffer_load_dword v{12+t}, v3, s[12:15], 0 offen offset:{t*8}')
    a('s_waitcnt vmcnt(0)')
    for t in range(4):
        a(f'v_min_u32 v{12+t}, -2, v{12+t}')
    a(f's_mov_b32 s16, {rc.C_MEMF}')
    a('buffer_store_dwordx4 v[12:15], v1, s[8:11], s16 offen')
    a.label('PREP_LN')
    F, G, A0, MU, RS = 64, 96, 16, 20, 21
    a('s_waitcnt vmcnt(0)')
    for i in range(16):
        a(f'v_lshlrev_b32 v{F+2*i}, 16, v{X+i}'); a(f'v_and_b32 v{F+2*i+1}, 0xffff0000, v{X+i}')
    for c in range(4): a(f'v_add_f32 v{A0+c}, v{F+c}, v{F+4+c}')
    for i in range(8, 32, 4):
        for c in range(4): a(f'v_add_f32 v{A0+c}, v{A0+c}, v{F+i+c}')
    a(f'v_add_f32 v{A0}, v{A0}, v{A0+1}'); a(f'v_add_f32 v{A0+2}, v{A0+2}, v{A0+3}'); a(f'v_add_f32 v{A0}, v{A0}, v{A0+2}')
    reduce_bits345(a, A0, 31)
    a(f'ds_write_b32 v30, v{A0}')
    a('s_waitcnt lgkmcnt(0)'); a('s_barrier')
    for w in range(4): a(f'ds_read_b32 v{A0+w}, v29 offset:{w*32}')
    a('s_waitcnt lgkmcnt(0)')
    a(f'v_add_f32 v{A0}, v{A0}, v{A0+1}'); a(f'v_add_f32 v{A0+2}, v{A0+2}, v{A0+3}'); a(f'v_add_f32 v{MU}, v{A0}, v{A0+2}')
    a(f'v_mul_f32 v{MU}, 0x3a800000, v{MU}')
    for c in range(4): a(f'v_mov_b32 v{A0+c}, 0')
    for i in range(0, 32, 4):
        for c in range(4): a(f'v_sub_f32 v{G+c}, v{F+i+c}, v{MU}')
        for c in range(4): a(f'v_fmac_f32 v{A0+c}, v{G+c}, v{G+c}')
    a(f'v_add_f32 v{A0}, v{A0}, v{A0+1}'); a(f'v_add_f32 v{A0+2}, v{A0+2}, v{A0+3}'); a(f'v_add_f32 v{RS}, v{A0}, v{A0+2}')
    reduce_bits345(a, RS, 31)
    a(f'ds_write_b32 v30, v{RS} offset:128')
    a('s_waitcnt lgkmcnt(0)'); a('s_barrier')
    for w in range(4): a(f'ds_read_b32 v{A0+w}, v29 offset:{128 + w*32}')
    a('s_waitcnt lgkmcnt(0)')
    a(f'v_add_f32 v{A0}, v{A0}, v{A0+1}'); a(f'v_add_f32 v{A0+2}, v{A0+2}, v{A0+3}'); a(f'v_add_f32 v{RS}, v{A0}, v{A0+2}')
    a(f'v_mul_f32 v{RS}, 0x3a800000, v{RS}')
    bf16_round(a, RS, RS)
    a(f'v_add_f32 v{RS}, 0x3727c5ac, v{RS}')
    bf16_round(a, RS, RS)
    a(f'v_sqrt_f32 v{RS}, v{RS}')
    a('s_nop 0')
    bf16_round(a, RS, RS)
    a(f'v_rcp_f32 v{RS}, v{RS}')
    bf16_round(a, MU, MU)
    for i in range(32): a(f'v_sub_f32 v{F+i}, v{F+i}, v{MU}')
    for i in range(16): a(f'v_cvt_pk_bf16_f32 v{G+i}, v{F+2*i}, v{F+2*i+1}')
    for i in range(16):
        a(f'v_lshlrev_b32 v{F+2*i}, 16, v{G+i}'); a(f'v_and_b32 v{F+2*i+1}, 0xffff0000, v{G+i}')
    for i in range(32): a(f'v_mul_f32 v{F+i}, v{F+i}, v{RS}')
    for i in range(16): a(f'v_cvt_pk_bf16_f32 v{G+i}, v{F+2*i}, v{F+2*i+1}')
    for it in range(4):
        a(f's_mov_b32 s16, {it*4096}')
        a(f'buffer_store_dwordx4 v[{G+4*it}:{G+4*it+3}], v28, s[40:43], s16 offen')
    a.label('PREP_END')
    a('s_endpgm')
    return a.text()


def kvq_loop(a, g, nbg_rounds=9):
    T0, T1, T2 = f's{S_T0}', f's{S_T1}', f's{S_T2}'
    a(f's_mov_b32 s{S_RND}, 0')
    a.label('KQ_TOP')
    a(f's_cmp_lg_u32 s{S_RND}, 0'); a('s_cbranch_scc1 KQ_BG')
    a(f's_and_b32 {T0}, s{S_WID}, 31'); a(f's_and_b32 s{S_RB}, {T0}, 3')
    a(f's_lshr_b32 {T0}, {T0}, 2'); a(f's_lshr_b32 {T1}, s{S_WID}, 5'); a(f's_lshl_b32 {T1}, {T1}, 3'); a(f's_add_u32 s31, {T0}, {T1}')
    a('s_branch KQ_DEC')
    a.label('KQ_BG')
    a(f's_sub_u32 {T0}, s{S_WID}, 64'); a(f's_lshr_b32 {T0}, {T0}, 5'); a(f's_lshl_b32 {T0}, {T0}, 4')
    a(f's_and_b32 {T1}, s{S_WID}, 15'); a(f's_add_u32 {T0}, {T0}, {T1}')
    a(f's_sub_u32 {T1}, s{S_RND}, 1'); a(f's_lshl_b32 {T1}, {T1}, 6'); a(f's_add_u32 {T0}, {T0}, {T1}')
    a(f's_mul_i32 {T1}, {T0}, 683'); a(f's_lshr_b32 {T1}, {T1}, 16')
    a(f's_mul_i32 {T2}, {T1}, 96'); a(f's_sub_u32 {T0}, {T0}, {T2}')
    a(f's_lshl_b32 {T1}, {T1}, 1'); a(f's_add_u32 {T1}, {T1}, 4'); a(f's_and_b32 {T2}, {T0}, 1')
    a(f's_add_u32 s{S_RB}, {T1}, {T2}'); a(f's_lshr_b32 s31, {T0}, 1')
    a.label('KQ_DEC')
    a(f's_and_b32 s{S_RB}, s{S_RB}, 15')
    a(f's_and_b32 s{S_CB}, s31, 15'); a(f's_mov_b32 s{S_KS}, 0')
    a('s_lshr_b32 s31, s31, 4')
    a(f's_lshl_b32 {T0}, s{S_RB}, 8'); a(f's_lshl_b32 {T1}, s{S_CB}, 4'); a(f's_add_u32 {T0}, {T0}, {T1}')
    a(f's_lshl_b32 {T1}, s31, 2'); a(f's_add_u32 {T0}, {T0}, {T1}'); a(f's_add_u32 s{S_FOFF}, {T0}, {FL_KVQ}')
    a('s_cmp_eq_u32 s31, 1'); a('s_cbranch_scc1 KQ_V')
    a('s_cmp_eq_u32 s31, 2'); a('s_cbranch_scc1 KQ_Q')
    task_gemm(a, g, 'K'); a('s_branch KQ_FIN')
    a.label('KQ_V'); task_gemm(a, g, 'V'); a('s_branch KQ_FIN')
    a.label('KQ_Q'); task_gemm(a, g, 'Q')
    a.label('KQ_FIN')
    a('s_waitcnt vmcnt(0)')
    a('s_barrier')
    if mega.TL:
        a('s_memrealtime s[88:89]'); a('s_waitcnt lgkmcnt(0)'); a('s_mov_b32 s101, s88')
    a(f's_cmp_lg_u32 s{S_WAVE}, 0'); a('s_cbranch_scc1 KQ_NF')
    a('v_mov_b32 v1, 1')
    a('s_mov_b64 exec, 1')
    a(f'buffer_store_dword v1, off, {FLS}, s{S_FOFF} sc1')
    a('s_mov_b64 exec, -1')
    a.label('KQ_NF')
    a(f's_add_u32 s{S_RND}, s{S_RND}, 1')
    a(f's_cmp_lt_u32 s{S_WID}, 64'); a('s_cbranch_scc1 KQ_END')
    a(f's_and_b32 {T0}, s{S_WID}, 16'); a(f's_cmp_eq_u32 {T0}, 0'); a('s_cbranch_scc1 KQ_END')
    if mega.TL:
        pass
    a(f's_cmp_le_u32 s{S_RND}, {nbg_rounds}'); a('s_cbranch_scc1 KQ_TOP')
    if mega.TL:
        a('v_mov_b32 v12, 0'); a('v_writelane_b32 v12, s100, 0'); a('v_writelane_b32 v12, s101, 1')
        mega.tl_dump(a, [12, 12, 12])
    a('s_endpgm')
    a.label('KQ_END')


def gen_mega(cfg, dbg=None, prof=False):
    tasks.set_coh(True)
    a = Asm()
    P = 'RC'
    a('s_cmp_ge_u32 s2, 256')
    a('s_cbranch_scc1 MG_EXIT')
    def rstamp(sreg):
        if mega.TL:
            a('s_memrealtime s[88:89]'); a('s_waitcnt lgkmcnt(0)'); a(f's_mov_b32 s{sreg}, s88')
    rstamp(100)
    rc.common_setup(a)
    rc.role_dynamic(a, cfg, P, 'MG_WORK', nx=8)
    rstamp(101)
    rc.role_setup(a, cfg)
    a(f's_mov_b32 s{rc.S_NST}, 63')
    rc.const_tables(a)
    rc.stage_weights(a, P)
    rstamp(72)
    rc.near_measure(a, cfg, P)
    rc.x_offsets(a, cfg)
    a('s_waitcnt vmcnt(0) lgkmcnt(0)')
    a('s_barrier')
    rstamp(73)
    a(f's_cmp_eq_u32 s{rc.S_MODE}, 1')
    a(f's_cbranch_scc0 {P}_FB')
    rc.rec_loop(a, cfg, P, '', dbg)
    if mega.TL:
        rstamp(74)
        a.srd(84, rc.S_WS, 1 << 20, add=mega.TL_BASE + (1 << 20))
        a(f's_lshl_b32 s76, s{rc.S_H}, 1'); a(f's_add_u32 s76, s76, s{rc.S_J}'); a('s_lshl_b32 s76, s76, 2')
        a(f's_add_u32 s76, s76, s{rc.S_WV}'); a('s_lshl_b32 s76, s76, 5')
        a('v_mov_b32 v9, 0'); a('s_mov_b64 exec, 1')
        for i, r in enumerate([100, 101, 72, 73, 74, 75]):
            a(f'v_mov_b32 v8, s{r}'); a(f'buffer_store_dword v8, v9, s[84:87], s76 offen offset:{4*i}')
        a('s_waitcnt vmcnt(0)')
    a('s_endpgm')
    a.label(f'{P}_FB')
    rc.rec_loop(a, cfg, P + 'F', ' sc1', None)
    a('s_endpgm')
    a.label('MG_WORK')
    T0, T1 = 's46', 's47'
    a(f's_sub_u32 {T0}, s{rc.S_J}, 2'); a(f's_lshl_b32 {T0}, {T0}, 5'); a(f's_add_u32 {T0}, {T0}, s{rc.S_H}')
    a(f's_sub_u32 {T1}, s{rc.S_H}, 32'); a(f's_lshl_b32 {T1}, {T1}, 1'); a(f's_add_u32 {T1}, {T1}, s{rc.S_J}')
    a(f's_cmp_eq_u32 s{rc.S_MODE}, 1'); a(f's_cselect_b32 s{S_WID}, {T0}, {T1}')
    a(f's_cmp_ge_u32 s{S_WID}, 192'); a('s_cbranch_scc1 MG_EXIT')
    a(f's_mov_b32 s{S_WAVE}, s{rc.S_WV}')
    a.srd(S_FL, rc.S_WS, SM_SIZE, add=WS_SM)
    a(f's_mov_b32 s{S_BUDW}, 200000')
    a(f's_mov_b32 s{S_WM}, s{rc.S_MODE}')
    g = Eng()
    kvq_loop(a, g)
    W = f's{S_WID}'
    def rng(lo, hi, lab):
        a(f's_cmp_lt_u32 {W}, {hi}'); a(f's_cbranch_scc1 {lab}')
    rng(0, 32, 'MG_WO'); rng(0, 64, 'MG_DN')
    a(f's_sub_u32 s46, {W}, 64'); a('s_lshr_b32 s46, s46, 5'); a(f's_and_b32 s47, {W}, 31')
    a('s_cmp_ge_u32 s47, 14'); a('s_cbranch_scc1 MG_AT')
    a('s_mul_i32 s29, s46, 14'); a('s_add_u32 s29, s29, s47'); a('s_mov_b32 s28, 0')
    role_gemmx(a, 'GU'); a('s_endpgm')
    a.label('MG_WO')
    a(f's_lshr_b32 s28, {W}, 3'); a(f's_and_b32 s29, {W}, 7')
    role_gemmx(a, 'WO'); a('s_endpgm')
    a.label('MG_DN')
    a(f's_sub_u32 s29, {W}, 32'); a('s_lshr_b32 s28, s29, 3'); a('s_and_b32 s29, s29, 7')
    role_gemmx(a, 'DN'); a('s_endpgm')
    a.label('MG_AT')
    a('s_lshl_b32 s28, s46, 1'); a('s_add_u32 s28, s28, s47'); a('s_sub_u32 s28, s28, 14')
    role_att(a)
    a.label('MG_EXIT')
    a('s_endpgm')
    return a.text()


def header():
    src = open('cdna_kernels/' + KNAME[:-7] + '.s.ref').read().split('\n')
    out = []
    for l in src:
        if l.startswith('; Override launch'): break
        out.append(l)
    return '\n'.join(out)

def build(path, hdr='; test', cfg=None, **kw):
    cfg = cfg or rc.Cfg(dynamic=True, RS_PERM=False, EARLY_CLR=True, kvflag=FL_KVQ, tl=mega.TL)
    ks = [('prep_kernel', gen_prep(cfg), 128, 128), ('mega_kernel', gen_mega(cfg, **kw), 512, 256)]
    ls = [('prep_kernel', (256,1,1), (256,1,1), 1024), ('mega_kernel', (256,1,1), (256,1,1), 163840)]
    txt = assemble_file(hdr, ls, ks)
    open(path, 'w').write(txt)
    print('bytes', len(txt), 'lines', txt.count('\n'))
if __name__ == '__main__':
    p = sys.argv[1] if len(sys.argv) > 1 else 'mg.s'
    if len(sys.argv) > 2 and 'tl' in sys.argv[2:]: mega.TL = True
    if 'prof' in sys.argv[2:]: mega2.PROF = True
    build(p, header())
    import chk; chk.chk(p)
```

```python
import sys; sys.path.insert(0,'gen')
from asmlib import *
import tasks, tasks2, mega, k_recc as rc
from mega import *
import mega2
from mega2 import role_gemmx, S_WM
from gemm2 import Eng, S_WAVE, S_T0, S_T1, S_T2
from tasks import S_RB, S_CB, S_KS, S_PW, S_PWS, S_OSRD, MB, task_gemm
from k_ln import bf16_round, reduce_bits345

def gen_prep(cfg):
    a = Asm()
    a('s_cmp_ge_u32 s2, 256')
    a('s_cbranch_scc1 PREP_END')
    a(f's_load_dwordx2 s[4:5], s[0:1], {KA_WS}')
    a(f's_load_dwordx2 s[6:7], s[0:1], {KA_MEM0}')
    a(f's_load_dwordx2 s[24:25], s[0:1], {KA_X}')
    a('v_and_b32 v21, 63, v0'); a('v_lshrrev_b32 v22, 6, v0'); a('s_nop 0'); a('v_readfirstlane_b32 s19, v22')
    a('v_and_b32 v24, 7, v21'); a('v_bfe_u32 v25, v21, 3, 1'); a('v_lshrrev_b32 v26, 4, v21')
    a('s_lshr_b32 s30, s2, 2'); a('s_and_b32 s31, s2, 3'); a('s_lshl_b32 s31, s31, 3')
    a('v_add_u32 v27, s31, v24')
    a('v_lshlrev_b32 v23, 11, v27'); a('v_lshl_add_u32 v23, v26, 5, v23'); a('v_lshl_add_u32 v23, v25, 3, v23')
    a('s_lshl_b32 s32, s19, 9'); a('s_lshl_b32 s33, s30, 16'); a('s_add_u32 s32, s32, s33'); a('v_add_u32 v23, s32, v23')
    a('v_lshl_add_u32 v28, v25, 5, v27'); a('v_lshlrev_b32 v28, 4, v28'); a('v_lshl_add_u32 v28, v26, 10, v28')
    a('s_lshl_b32 s32, s19, 14'); a('s_add_u32 s32, s32, s33'); a('v_add_u32 v28, s32, v28')
    a('v_lshlrev_b32 v29, 2, v24'); a('s_lshl_b32 s32, s19, 5'); a('v_add_u32 v30, s32, v29')
    a('s_lshl_b32 s3, s2, 12')
    a('v_lshlrev_b32 v1, 4, v0')
    a('v_add_u32 v1, s3, v1')
    for r in range(4):
        a(f'v_mov_b32 v{4+r}, -1'); a(f'v_mov_b32 v{8+r}, 0')
    a('s_waitcnt lgkmcnt(0)')
    a.srd(36, 24, 4*MB)
    X = 32
    for it in range(4):
        for h in range(2):
            r = X + (it*2 + h)*2
            a(f'buffer_load_dwordx2 v[{r}:{r+1}], v23, s[36:39], 0 offen offset:{it*128 + h*16}')
    a.srd(8, 4, SM_SIZE, add=WS_SM)
    a.srd(12, 6, 8 * 1024 * 2)
    a.srd(20, 4, 64 << 20, add=rc.WS_X)
    a.srd(40, 4, 4*MB, add=WS_XN)
    a(f's_mov_b32 s16, {rc.C_PART}')
    a('buffer_store_dwordx4 v[4:7], v1, s[8:11], s16 offen')
    a.srd(44, 4, 0x2100000, add=WS_P1)
    a('buffer_store_dwordx4 v[4:7], v1, s[44:47], 0 offen')
    a(f's_mov_b32 s16, {WS_P2 - WS_P1}')
    a('buffer_store_dwordx4 v[4:7], v1, s[44:47], s16 offen')
    a('s_lshr_b32 s17, s2, 3'); a(f's_mul_i32 s17, s17, {cfg.NS*32768}')
    a('s_and_b32 s18, s2, 7'); a('s_lshl_b32 s18, s18, 12'); a('s_add_u32 s17, s17, s18')
    a('v_lshlrev_b32 v2, 4, v0')
    for i in range(3):
        a('buffer_store_dwordx4 v[4:7], v2, s[20:23], s17 offen')
        a('s_add_u32 s17, s17, 32768')
    a('v_lshrrev_b32 v3, 11, v1'); a('v_lshlrev_b32 v3, 12, v3'); a('v_and_b32 v12, 2047, v1'); a('v_add_u32 v3, v3, v12')
    a(f's_mov_b32 s16, {SM_QKM + 2048}')
    for i in range(4):
        a('buffer_store_dwordx4 v[4:7], v3, s[8:11], s16 offen'); a(f's_add_u32 s16, s16, {2*MB}')
    a(f's_mov_b32 s16, {SM_VMG}')
    for i in range(4):
        a('buffer_store_dwordx4 v[4:7], v1, s[8:11], s16 offen'); a(f's_add_u32 s16, s16, {MB}')
    nfl = FL_SEG + 65*4096 - FL_KVQ
    a(f'v_cmp_gt_u32 vcc, {nfl}, v1') if nfl <= 64 else (a(f's_mov_b32 s17, {nfl}'), a('v_cmp_gt_u32 vcc, s17, v1'))
    a('s_and_saveexec_b64 s[26:27], vcc')
    a(f's_mov_b32 s16, {FL_KVQ}')
    a('buffer_store_dwordx4 v[8:11], v1, s[8:11], s16 offen')
    a('s_mov_b64 exec, s[26:27]')
    a('s_cmp_eq_u32 s2, 16'); a('s_cbranch_scc0 PREP_N1')
    a(f's_mov_b32 s16, {rc.C_CNT}')
    a('buffer_store_dwordx4 v[8:11], v2, s[8:11], s16 offen')
    a.label('PREP_N1')
    a('s_cmp_eq_u32 s2, 17'); a('s_cbranch_scc0 PREP_N2')
    a(f's_mov_b32 s16, {rc.C_CNT + 4096}')
    a('buffer_store_dwordx4 v[4:7], v2, s[8:11], s16 offen')
    a.label('PREP_N2')
    a('s_cmp_ge_u32 s2, 16'); a('s_cbranch_scc1 PREP_LN')
    a('s_cmp_lt_u32 s2, 4')
    a('s_cbranch_scc1 PREP_M0')
    a(f's_mov_b32 s16, {rc.C_MEMF}')
    a('buffer_store_dwordx4 v[4:7], v1, s[8:11], s16 offen')
    a('s_branch PREP_LN')
    a.label('PREP_M0')
    a('v_lshrrev_b32 v2, 4, v1')
    rc.memf0_src(a, cfg, 2, 3, 12)
    for t in range(4):
        a(f'buffer_load_dword v{12+t}, v3, s[12:15], 0 offen offset:{t*8}')
    a('s_waitcnt vmcnt(0)')
    for t in range(4):
        a(f'v_min_u32 v{12+t}, -2, v{12+t}')
    a(f's_mov_b32 s16, {rc.C_MEMF}')
    a('buffer_store_dwordx4 v[12:15], v1, s[8:11], s16 offen')
    a.label('PREP_LN')
    F, G, A0, MU, RS = 64, 96, 16, 20, 21
    a('s_waitcnt vmcnt(0)')
    for i in range(16):
        a(f'v_lshlrev_b32 v{F+2*i}, 16, v{X+i}'); a(f'v_and_b32 v{F+2*i+1}, 0xffff0000, v{X+i}')
    for c in range(4): a(f'v_add_f32 v{A0+c}, v{F+c}, v{F+4+c}')
    for i in range(8, 32, 4):
        for c in range(4): a(f'v_add_f32 v{A0+c}, v{A0+c}, v{F+i+c}')
    a(f'v_add_f32 v{A0}, v{A0}, v{A0+1}'); a(f'v_add_f32 v{A0+2}, v{A0+2}, v{A0+3}'); a(f'v_add_f32 v{A0}, v{A0}, v{A0+2}')
    reduce_bits345(a, A0, 31)
    a(f'ds_write_b32 v30, v{A0}')
    a('s_waitcnt lgkmcnt(0)'); a('s_barrier')
    for w in range(4): a(f'ds_read_b32 v{A0+w}, v29 offset:{w*32}')
    a('s_waitcnt lgkmcnt(0)')
    a(f'v_add_f32 v{A0}, v{A0}, v{A0+1}'); a(f'v_add_f32 v{A0+2}, v{A0+2}, v{A0+3}'); a(f'v_add_f32 v{MU}, v{A0}, v{A0+2}')
    a(f'v_mul_f32 v{MU}, 0x3a800000, v{MU}')
    for c in range(4): a(f'v_mov_b32 v{A0+c}, 0')
    for i in range(0, 32, 4):
        for c in range(4): a(f'v_sub_f32 v{G+c}, v{F+i+c}, v{MU}')
        for c in range(4): a(f'v_fmac_f32 v{A0+c}, v{G+c}, v{G+c}')
    a(f'v_add_f32 v{A0}, v{A0}, v{A0+1}'); a(f'v_add_f32 v{A0+2}, v{A0+2}, v{A0+3}'); a(f'v_add_f32 v{RS}, v{A0}, v{A0+2}')
    reduce_bits345(a, RS, 31)
    a(f'ds_write_b32 v30, v{RS} offset:128')
    a('s_waitcnt lgkmcnt(0)'); a('s_barrier')
    for w in range(4): a(f'ds_read_b32 v{A0+w}, v29 offset:{128 + w*32}')
    a('s_waitcnt lgkmcnt(0)')
    a(f'v_add_f32 v{A0}, v{A0}, v{A0+1}'); a(f'v_add_f32 v{A0+2}, v{A0+2}, v{A0+3}'); a(f'v_add_f32 v{RS}, v{A0}, v{A0+2}')
    a(f'v_mul_f32 v{RS}, 0x3a800000, v{RS}')
    bf16_round(a, RS, RS)
    a(f'v_add_f32 v{RS}, 0x3727c5ac, v{RS}')
    bf16_round(a, RS, RS)
    a(f'v_sqrt_f32 v{RS}, v{RS}')
    a('s_nop 0')
    bf16_round(a, RS, RS)
    a(f'v_rcp_f32 v{RS}, v{RS}')
    bf16_round(a, MU, MU)
    for i in range(32): a(f'v_sub_f32 v{F+i}, v{F+i}, v{MU}')
    for i in range(16): a(f'v_cvt_pk_bf16_f32 v{G+i}, v{F+2*i}, v{F+2*i+1}')
    for i in range(16):
        a(f'v_lshlrev_b32 v{F+2*i}, 16, v{G+i}'); a(f'v_and_b32 v{F+2*i+1}, 0xffff0000, v{G+i}')
    for i in range(32): a(f'v_mul_f32 v{F+i}, v{F+i}, v{RS}')
    for i in range(16): a(f'v_cvt_pk_bf16_f32 v{G+i}, v{F+2*i}, v{F+2*i+1}')
    for it in range(4):
        a(f's_mov_b32 s16, {it*4096}')
        a(f'buffer_store_dwordx4 v[{G+4*it}:{G+4*it+3}], v28, s[40:43], s16 offen')
    a.label('PREP_END')
    a('s_endpgm')
    return a.text()


def kvq_loop(a, g, nbg_rounds=9):
    T0, T1, T2 = f's{S_T0}', f's{S_T1}', f's{S_T2}'
    a(f's_mov_b32 s{S_RND}, 0')
    a.label('KQ_TOP')
    a(f's_cmp_lg_u32 s{S_RND}, 0'); a('s_cbranch_scc1 KQ_BG')
    a(f's_and_b32 {T0}, s{S_WID}, 31'); a(f's_and_b32 s{S_RB}, {T0}, 3')
    a(f's_lshr_b32 {T0}, {T0}, 2'); a(f's_lshr_b32 {T1}, s{S_WID}, 5'); a(f's_lshl_b32 {T1}, {T1}, 3'); a(f's_add_u32 s31, {T0}, {T1}')
    a('s_branch KQ_DEC')
    a.label('KQ_BG')
    a(f's_sub_u32 {T0}, s{S_WID}, 64'); a(f's_lshr_b32 {T0}, {T0}, 5'); a(f's_lshl_b32 {T0}, {T0}, 4')
    a(f's_and_b32 {T1}, s{S_WID}, 15'); a(f's_add_u32 {T0}, {T0}, {T1}')
    a(f's_sub_u32 {T1}, s{S_RND}, 1'); a(f's_lshl_b32 {T1}, {T1}, 6'); a(f's_add_u32 {T0}, {T0}, {T1}')
    a(f's_mul_i32 {T1}, {T0}, 683'); a(f's_lshr_b32 {T1}, {T1}, 16')
    a(f's_mul_i32 {T2}, {T1}, 96'); a(f's_sub_u32 {T0}, {T0}, {T2}')
    a(f's_lshl_b32 {T1}, {T1}, 1'); a(f's_add_u32 {T1}, {T1}, 4'); a(f's_and_b32 {T2}, {T0}, 1')
    a(f's_add_u32 s{S_RB}, {T1}, {T2}'); a(f's_lshr_b32 s31, {T0}, 1')
    a.label('KQ_DEC')
    a(f's_and_b32 s{S_RB}, s{S_RB}, 15')
    a(f's_and_b32 s{S_CB}, s31, 15'); a(f's_mov_b32 s{S_KS}, 0')
    a('s_lshr_b32 s31, s31, 4')
    a(f's_lshl_b32 {T0}, s{S_RB}, 8'); a(f's_lshl_b32 {T1}, s{S_CB}, 4'); a(f's_add_u32 {T0}, {T0}, {T1}')
    a(f's_lshl_b32 {T1}, s31, 2'); a(f's_add_u32 {T0}, {T0}, {T1}'); a(f's_add_u32 s{S_FOFF}, {T0}, {FL_KVQ}')
    a('s_cmp_eq_u32 s31, 1'); a('s_cbranch_scc1 KQ_V')
    a('s_cmp_eq_u32 s31, 2'); a('s_cbranch_scc1 KQ_Q')
    task_gemm(a, g, 'K'); a('s_branch KQ_FIN')
    a.label('KQ_V'); task_gemm(a, g, 'V'); a('s_branch KQ_FIN')
    a.label('KQ_Q'); task_gemm(a, g, 'Q')
    a.label('KQ_FIN')
    a('s_waitcnt vmcnt(0)')
    a('s_barrier')
    if mega.TL:
        a('s_memrealtime s[88:89]'); a('s_waitcnt lgkmcnt(0)'); a('s_mov_b32 s101, s88')
    a(f's_cmp_lg_u32 s{S_WAVE}, 0'); a('s_cbranch_scc1 KQ_NF')
    a('v_mov_b32 v1, 1')
    a('s_mov_b64 exec, 1')
    a(f'buffer_store_dword v1, off, {FLS}, s{S_FOFF} sc1')
    a('s_mov_b64 exec, -1')
    a.label('KQ_NF')
    a(f's_add_u32 s{S_RND}, s{S_RND}, 1')
    a(f's_cmp_lt_u32 s{S_WID}, 64'); a('s_cbranch_scc1 KQ_END')
    a(f's_and_b32 {T0}, s{S_WID}, 16'); a(f's_cmp_eq_u32 {T0}, 0'); a('s_cbranch_scc1 KQ_END')
    if mega.TL:
        pass
    a(f's_cmp_le_u32 s{S_RND}, {nbg_rounds}'); a('s_cbranch_scc1 KQ_TOP')
    if mega.TL:
        a('v_mov_b32 v12, 0'); a('v_writelane_b32 v12, s100, 0'); a('v_writelane_b32 v12, s101, 1')
        mega.tl_dump(a, [12, 12, 12])
    a('s_endpgm')
    a.label('KQ_END')


def gen_mega(cfg, dbg=None, prof=False):
    tasks.set_coh(True)
    a = Asm()
    P = 'RC'
    a('s_cmp_ge_u32 s2, 256')
    a('s_cbranch_scc1 MG_EXIT')
    def rstamp(sreg):
        if mega.TL:
            a('s_memrealtime s[88:89]'); a('s_waitcnt lgkmcnt(0)'); a(f's_mov_b32 s{sreg}, s88')
    rstamp(100)
    rc.common_setup(a)
    rc.role_dynamic(a, cfg, P, 'MG_WORK', nx=8)
    rstamp(101)
    RS, CT, RL = rc.impl(cfg)
    RS(a, cfg)
    a(f's_mov_b32 s{rc.S_NST}, 63')
    CT(a)
    rc.stage_weights(a, P)
    rstamp(72)
    rc.near_measure(a, cfg, P)
    rc.x_offsets(a, cfg)
    a('s_waitcnt vmcnt(0) lgkmcnt(0)')
    a('s_barrier')
    rstamp(73)
    a(f's_cmp_eq_u32 s{rc.S_MODE}, 1')
    a(f's_cbranch_scc0 {P}_FB')
    RL(a, cfg, P, '', dbg)
    if mega.TL:
        rstamp(74)
        a.srd(84, rc.S_WS, 1 << 20, add=mega.TL_BASE + (1 << 20))
        a(f's_lshl_b32 s76, s{rc.S_H}, 1'); a(f's_add_u32 s76, s76, s{rc.S_J}'); a('s_lshl_b32 s76, s76, 2')
        a(f's_add_u32 s76, s76, s{rc.S_WV}'); a('s_lshl_b32 s76, s76, 5')
        a('v_mov_b32 v9, 0'); a('s_mov_b64 exec, 1')
        for i, r in enumerate([100, 101, 72, 73, 74, 75]):
            a(f'v_mov_b32 v8, s{r}'); a(f'buffer_store_dword v8, v9, s[84:87], s76 offen offset:{4*i}')
        a('s_waitcnt vmcnt(0)')
    a('s_endpgm')
    a.label(f'{P}_FB')
    RL(a, cfg, P + 'F', ' sc1', None)
    a('s_endpgm')
    a.label('MG_WORK')
    T0, T1 = 's46', 's47'
    a(f's_sub_u32 {T0}, s{rc.S_J}, 2'); a(f's_lshl_b32 {T0}, {T0}, 5'); a(f's_add_u32 {T0}, {T0}, s{rc.S_H}')
    a(f's_sub_u32 {T1}, s{rc.S_H}, 32'); a(f's_lshl_b32 {T1}, {T1}, 1'); a(f's_add_u32 {T1}, {T1}, s{rc.S_J}')
    a(f's_cmp_eq_u32 s{rc.S_MODE}, 1'); a(f's_cselect_b32 s{S_WID}, {T0}, {T1}')
    a(f's_cmp_ge_u32 s{S_WID}, 192'); a('s_cbranch_scc1 MG_EXIT')
    a(f's_mov_b32 s{S_WAVE}, s{rc.S_WV}')
    a.srd(S_FL, rc.S_WS, SM_SIZE, add=WS_SM)
    a(f's_mov_b32 s{S_BUDW}, 200000')
    a(f's_mov_b32 s{S_WM}, s{rc.S_MODE}')
    g = Eng()
    kvq_loop(a, g)
    W = f's{S_WID}'
    def rng(lo, hi, lab):
        a(f's_cmp_lt_u32 {W}, {hi}'); a(f's_cbranch_scc1 {lab}')
    rng(0, 32, 'MG_WO'); rng(0, 64, 'MG_DN')
    a(f's_sub_u32 s46, {W}, 64'); a('s_lshr_b32 s46, s46, 5'); a(f's_and_b32 s47, {W}, 31')
    a('s_cmp_ge_u32 s47, 14'); a('s_cbranch_scc1 MG_AT')
    a('s_mul_i32 s29, s46, 14'); a('s_add_u32 s29, s29, s47'); a('s_mov_b32 s28, 0')
    role_gemmx(a, 'GU'); a('s_endpgm')
    a.label('MG_WO')
    a(f's_lshr_b32 s28, {W}, 3'); a(f's_and_b32 s29, {W}, 7')
    role_gemmx(a, 'WO'); a('s_endpgm')
    a.label('MG_DN')
    a(f's_sub_u32 s29, {W}, 32'); a('s_lshr_b32 s28, s29, 3'); a('s_and_b32 s29, s29, 7')
    role_gemmx(a, 'DN'); a('s_endpgm')
    a.label('MG_AT')
    a('s_lshl_b32 s28, s46, 1'); a('s_add_u32 s28, s28, s47'); a('s_sub_u32 s28, s28, 14')
    role_att(a)
    a.label('MG_EXIT')
    a('s_endpgm')
    return a.text()


def header():
    src = open('cdna_kernels/' + KNAME[:-7] + '.s.ref').read().split('\n')
    out = []
    for l in src:
        if l.startswith('; Override launch'): break
        out.append(l)
    return '\n'.join(out)

def build(path, hdr='; test', cfg=None, **kw):
    cfg = cfg or rc.Cfg(dynamic=True, RS_PERM=False, EARLY_CLR=True, kvflag=FL_KVQ, tl=mega.TL, NOPK=False)
    ks = [('prep_kernel', gen_prep(cfg), 128, 128), ('mega_kernel', gen_mega(cfg, **kw), 512, 256)]
    ls = [('prep_kernel', (256,1,1), (256,1,1), 1024), ('mega_kernel', (256,1,1), (256,1,1), 163840)]
    txt = assemble_file(hdr, ls, ks)
    open(path, 'w').write(txt)
    print('bytes', len(txt), 'lines', txt.count('\n'))
if __name__ == '__main__':
    p = sys.argv[1] if len(sys.argv) > 1 else 'mg.s'
    if len(sys.argv) > 2 and 'tl' in sys.argv[2:]: mega.TL = True
    if 'prof' in sys.argv[2:]: mega2.PROF = True
    build(p, header())
    import chk; chk.chk(p)
```

```python
from asmlib import *
import k_recc as rc
from k_recc import *

S_PA = 98


class Cfg2(rc.Cfg):
    F = True
    PUBV = True
    PQ_A = 9
    PQ_B = 0
    AG_B = 0
    RV_LATE = False
    PIPE_AG = True
    PIPE_PR = True
    PIPE_PQ = True


def role_setup2(a, cfg):
    rc.role_setup(a, cfg)
    W, H, J = f's{S_WV}', f's{S_H}', f's{S_J}'
    T0, T1 = f's{S_T0}', f's{S_T1}'
    ln, t1, t2 = 8, 9, 10
    a(f'v_lshrrev_b32 v{ln}, 4, v{V_L16}')
    a(f'v_and_b32 v{t1}, 1, v{ln}')
    a(f'v_cmp_eq_u32 vcc, 0, v{t1}')
    a(f'v_mov_b32 v{V_IDX}, 0xeeee'); a(f'v_mov_b32 v{t1}, 0x4444')
    a(f'v_cndmask_b32 v{V_IDX}, v{V_IDX}, v{t1}, vcc')
    a(f's_lshr_b32 {T0}, {H}, 1'); a(f's_lshl_b32 {T0}, {T0}, 9')
    a(f's_and_b32 {T1}, {H}, 1'); a(f's_lshl_b32 {T1}, {T1}, 7'); a(f's_add_u32 {T0}, {T0}, {T1}')
    a(f's_lshr_b32 {T1}, {W}, 1'); a(f's_lshl_b32 {T1}, {T1}, 6'); a(f's_add_u32 {T0}, {T0}, {T1}')
    a(f's_and_b32 {T1}, {W}, 1'); a(f's_lshl_b32 {T1}, {T1}, 4'); a(f's_add_u32 {T0}, {T0}, {T1}')
    a(f'v_bfe_u32 v{t1}, v{ln}, 1, 1'); a(f'v_lshlrev_b32 v{t1}, 8, v{t1}')
    a(f'v_and_b32 v{t2}, 1, v{ln}'); a(f'v_lshl_add_u32 v{t1}, v{t2}, 5, v{t1}')
    a(f'v_lshrrev_b32 v{t2}, 4, v{ln}'); a(f'v_lshl_add_u32 v{t1}, v{t2}, 2, v{t1}')
    a(f'v_add_u32 v{t1}, {T0}, v{t1}')
    a(f'v_and_b32 v{t2}, 12, v{ln}')
    a(f'v_cmp_eq_u32 vcc, 0, v{t2}')
    a(f'v_mov_b32 v{V_MFW}, 0x40000000')
    a('s_nop 1')
    a(f'v_cndmask_b32 v{V_MFW}, v{V_MFW}, v{t1}, vcc')


def const_tables2(a):
    ln, t1, t2, js, c0, one = 8, 9, 10, 11, 12, 13
    R = 16
    a(f'v_lshrrev_b32 v{ln}, 4, v{V_L16}')
    a(f'v_add_u32 v{c0}, {L_C}, v{V_L16}')
    def onehot():
        a(f'v_and_b32 v{t1}, 1, v{js}')
        a(f'v_lshlrev_b32 v{t1}, 4, v{t1}')
        a(f'v_mov_b32 v{one}, 0x3f80')
        a(f'v_lshlrev_b32 v{one}, v{t1}, v{one}')
        a(f'v_lshrrev_b32 v{t1}, 1, v{js}')
        for q in range(4):
            a(f'v_cmp_eq_u32 vcc, {q}, v{t1}')
            a('s_nop 1')
            a(f'v_cndmask_b32 v{R+q}, 0, v{one}, vcc')
    for tp in range(2):
        a(f'v_and_b32 v{js}, 1, v{ln}')
        a(f'v_bfe_u32 v{t1}, v{ln}, 3, 1'); a(f'v_lshl_add_u32 v{js}, v{t1}, 2, v{js}')
        if tp: a(f'v_add_u32 v{js}, 2, v{js}')
        a(f'v_bfe_u32 v{t1}, v{ln}, 1, 2'); a(f'v_lshrrev_b32 v{t2}, 4, v{ln}')
        a(f'v_xor_b32 v{t1}, v{t1}, v{t2}')
        a(f'v_lshl_add_u32 v{js}, v{t1}, 6, v{js}')
        onehot()
        a(f'ds_write_b128 v{c0}, v[{R}:{R+3}] offset:{tp*1024}')
        a('s_waitcnt lgkmcnt(0)')
    a(f'v_and_b32 v{js}, 7, v{ln}')
    onehot()
    a(f'ds_write_b128 v{c0}, v[{R}:{R+3}] offset:2048')
    a('s_waitcnt lgkmcnt(0)')


def add(d, x, y): return f'v_add_f32 v{d}, v{x}, v{y}'
def cvt(d, x, y): return f'v_cvt_pk_bf16_f32 v{d}, v{x}, v{y}'
def pka(d, x, y): return f'v_pk_add_f32 v[{d}:{d+1}], v[{x}:{x+1}], v[{y}:{y+1}]'


def rec_loop2(a, cfg, P, sfl, dbg=None):
    SM = f's[{S_SM}:{S_SM+3}]'
    X = f's[{S_X}:{S_X+3}]'
    LO = f's[{S_LO8}:{S_LO8+1}]'
    HI = f's[{S_HI8}:{S_HI8+1}]'
    T0 = f's{S_T0}'
    dbg = dbg or {}
    L = lambda s: f'{P}_{s}'
    def D(name, regs, tmp=V_T):
        if name in dbg:
            lab = a.newlabel(P + 'DBG')
            a(f's_cmp_lg_u32 s{S_STEP}, {dbg[name][1]}')
            a(f's_cbranch_scc1 {lab}')
            dbg_dump(a, regs, dbg[name][0], tmp)
            a.label(lab)
    prof = dbg.get('prof')
    stamps = getattr(cfg, 'stamps', None) or list(range(15))
    def ST(i):
        if prof is not None and i in stamps:
            k = stamps.index(i)
            if getattr(cfg, 'RT', False):
                if i == 0:
                    k14 = stamps.index(14)
                    a('s_waitcnt lgkmcnt(0)')
                    a(f's_mov_b64 s[{64+2*14}:{65+2*14}], s[{64+2*k14}:{65+2*k14}]')
                a(f's_memrealtime s[{64+2*k}:{65+2*k}]')
            else:
                a(f's_memtime s[{64+2*k}:{65+2*k}]')
    kvf = cfg.kvflag is not None
    MWr, A1, A2, A3 = AM + 8, AM + 12, AM + 20, AM + 28
    NEG = 24
    NEG2 = 60
    FLG = 32

    def check(regs, tmp):
        max_chain(a, tmp, regs)
        a(f'v_cmp_eq_u32 vcc, -1, v{tmp}')

    def ag_issue(so):
        a(f'buffer_load_dwordx4 v[{AM}:{AM+3}], v{V_AGP}, {SM}, s{so} offen sc1')
        a(f'buffer_load_dwordx4 v[{AM+4}:{AM+7}], v{V_AGP}, {SM}, s{so} offen offset:1024 sc1')

    def top_prep():
        out = []
        out.append(f'v_add_u32 v{MWr}, {L_M}, v{V_AGP}')
        out.append(f'v_xor_b32 v{A1}, 0x800, v{MWr}')
        out.append(f'v_xor_b32 v{A2}, 0x1000, v{MWr}')
        out.append(f'v_xor_b32 v{A3}, 0x1800, v{MWr}')
        for r in range(NEG, NEG + 4): out.append(f'v_mov_b32 v{r}, -1')
        for r in range(40, 64, 2):
            out.append(f'v_mov_b64 v[{r}:{r+1}], 0')
        return out

    def flag_issue():
        a(f's_add_u32 {T0}, s{S_STEP}, 1'); a(f's_lshr_b32 {T0}, {T0}, 2'); a(f's_lshl_b32 {T0}, {T0}, 8')
        a(f's_add_u32 {T0}, {T0}, s{S_KVFB}')
        a(f'buffer_load_dwordx2 v[{FLG}:{FLG+1}], off, {SM}, {T0} sc1')

    def kv_issue():
        for g in kv_dma(cfg): a.ext(g)
        a(f's_add_u32 s{S_KVK}, s{S_KVK}, {32*8192}')
        a(f's_add_u32 s{S_KVV}, s{S_KVV}, {32*8192}')

    wl_addr(a, V_T2)
    sv0 = svload()
    a.ext(sv0[:8]); a('s_waitcnt lgkmcnt(0)'); a.ext(sv0[8:])
    if kvf:
        a(f's_lshr_b32 s{S_KVFB}, s{S_H}, 1'); a(f's_lshl_b32 s{S_KVFB}, s{S_KVFB}, 4')
        a(f's_add_u32 s{S_KVFB}, s{S_KVFB}, {cfg.kvflag}')
        a(f's_mov_b32 s{S_KVOK}, 0')
        flag_issue()
    else:
        kv_issue()
    ag_issue(S_MEMR)
    a.ext(top_prep())
    a.label(L('TOP'))
    if kvf:
        a(f's_cmp_eq_u32 s{S_KVOK}, 0'); a(f's_cbranch_scc1 {L("KVW")}')
        a.label(L('KVB'))
        if getattr(cfg, 'tl', False):
            lab = a.newlabel(P + 'TL')
            a(f's_cmp_lg_u32 s{S_STEP}, 0'); a(f's_cbranch_scc1 {lab}')
            a('s_memrealtime s[88:89]'); a('s_waitcnt lgkmcnt(0)'); a('s_mov_b32 s75, s88')
            a.label(lab)
    ST(0)
    a.label(L('PM'))
    if cfg.PIPE_AG:
        ag_issue(S_MEMR)
        a('s_waitcnt vmcnt(2)')
    else:
        a('s_waitcnt vmcnt(0)')
    check(list(range(AM, AM + 8)), V_T)
    if cfg.PIPE_AG:
        poll_end(a, L('PM'), L('PM_D'))
    else:
        a(f's_cbranch_vccz {L("PM_D")}')
        a.label(L('PM2'))
        ag_issue(S_MEMR)
        a('s_waitcnt vmcnt(0)')
        check(list(range(AM, AM + 8)), V_T)
        poll_end(a, L('PM2'), L('PM_D'))
    ST(1)
    a(f'ds_write_b128 v{MWr}, v[{AM}:{AM+3}]')
    a(f'ds_write_b128 v{MWr}, v[{AM+4}:{AM+7}] offset:1024')
    def qk(pi):
        A = AM + 4*pi
        return [smf(AQ0, A, wq(pi, 0)), smf(AQ1, A, wq(pi, 1)), smf(AK0, A, wk(pi, 0)), smf(AK1, A, wk(pi, 1))]
    def vv(pi): return [smf(AV0, AM + 4*pi, wv(pi, 0)), smf(AV1, AM + 4*pi, wv(pi, 1))]
    xcl = [f'buffer_store_dwordx4 v[{NEG}:{NEG+3}], v{V_L16}, {X}, s{S_XC} offen sc1',
           f'buffer_store_dwordx4 v[{NEG}:{NEG+3}], v{V_L16}, {X}, s{S_XC} offen offset:1024 sc1']
    m = qk(0)
    a(m[0]); a(xcl[0]); a(m[1]); a(xcl[1])
    if kvf: a(f'v_and_b32 v{FLG}, v{FLG}, v{FLG+1}')
    a(m[2]); a(m[3])
    if kvf: a(f'v_readfirstlane_b32 s{S_KVOK}, v{FLG}')
    a('s_waitcnt lgkmcnt(0)')
    a('s_barrier')
    ST(2)
    for pi in range(2, 8):
        ad = [A1, A2, A3][(pi >> 1) - 1]
        a(f'ds_read_b128 v[{AM+4*pi}:{AM+4*pi+3}], v{ad} offset:{(pi & 1)*1024}')
    a.ext(qk(1))
    a.ext(vv(0))
    D('AM', list(range(AM, AM + 32)))
    noprof = prof is None
    for pi in range(2, 6):
        a(f's_waitcnt lgkmcnt({7 - pi})')
        a.ext(qk(pi))
    a('s_waitcnt lgkmcnt(1)')
    a(smf(AQ0, AM + 24, wq(6, 0))); a(smf(AQ1, AM + 24, wq(6, 1)))
    a('s_waitcnt lgkmcnt(0)')
    a(smf(AQ0, AM + 28, wq(7, 0))); a(smf(AQ1, AM + 28, wq(7, 1)))
    a(smf(AK0, AM + 24, wk(6, 0)))
    a(add(40, 40, 41))
    a(smf(AK1, AM + 24, wk(6, 1)))
    a(add(42, 42, 43)); a(add(44, 44, 45))
    a(smf(AK0, AM + 28, wk(7, 0)))
    a(add(46, 46, 47)); a(cvt(45, 44, 46))
    a(smf(AK1, AM + 28, wk(7, 1)))
    a(cvt(44, 40, 42))
    a('s_nop 2')
    a(add(48, 48, 49)); a(add(50, 50, 51))
    a('s_nop 1')
    a(add(52, 52, 53)); a(add(54, 54, 55))
    a(cvt(46, 48, 50)); a(cvt(47, 52, 54))
    a(f'buffer_store_dwordx4 v[{XS}:{XS+3}], v{V_L16}, {X}, s{S_XW} offen sc1')
    ST(3)
    D('XS', [XS, XS+1, XS+2, XS+3])
    VS = []
    for pi in [4, 5, 6, 7, 1, 2, 3]: VS += vv(pi)
    wl_addr(a, V_T2, L_WB)
    wo_ld = [f'ds_read_b128 v[{SREG+4*i}:{SREG+4*i+3}], v{V_T2} offset:{i*1024}' for i in range(16)]
    a(f'v_add_u32 v{V_T}, {L_C}, v{V_L16}')
    pq = f'buffer_load_dwordx4 v[{RX}:{RX+3}], v{V_L16}, {X}, s{S_XR} offen sc1'
    fill = {2: wo_ld[0:2], 3: wo_ld[2:4],
            4: [f'ds_read_b128 v[{SEL0}:{SEL0+3}], v{V_T}', f'ds_read_b128 v[{SEL1}:{SEL1+3}], v{V_T} offset:1024'],
            5: wo_ld[4:6], 6: wo_ld[6:8], 7: wo_ld[8:10],
            8: wo_ld[10:12], 9: wo_ld[12:14], 10: wo_ld[14:16]}
    for i, mm in enumerate(VS):
        a(mm)
        a.ext(fill.get(i, []))
        if i == 8:
            a(f'v_add_u32 v{V_T}, s{S_KVB}, v{V_L16}')
        if i == 9:
            a(f'ds_read_b128 v[{KT0}:{KT0+3}], v{V_T}')
            a(f'ds_read_b128 v[{KT1}:{KT1+3}], v{V_T} offset:1024')
        if i + 1 == cfg.PQ_A and cfg.PIPE_PQ:
            a(pq)
    a('s_waitcnt lgkmcnt(14)')
    a(mf32(D0, XS, SEL0))
    a(mf32(D1, XS, SEL1))
    a(f'v_lshrrev_b32 v{V_T2}, 1, v{V_L16}')
    a(add(56, 56, 57)); a(add(58, 58, 59))
    a(add(60, 60, 61)); a(add(62, 62, 63))
    a(cvt(61, 60, 62)); a(cvt(60, 56, 58))
    a(f'buffer_store_dwordx2 v[{VA}:{VA+1}], v{V_T2}, {X}, s{S_XW} offen offset:1024 sc1')
    ST(4)
    n_after = 2 + 1 + (1 if cfg.PIPE_PQ else 0) + 1
    a(f's_waitcnt vmcnt({n_after})')
    a(f'ds_read_b128 v[{VT0}:{VT0+3}], v{V_T} offset:2048')
    a(f'ds_read_b128 v[{VT1}:{VT1+3}], v{V_T} offset:3072')
    SW, SR, MR, PVA = XS, XS + 1, XS + 2, XS + 3
    a(f'v_mov_b32 v{PVA}, v{V_T2}')
    a(f'v_lshrrev_b32 v{SR}, 8, v{V_L16}'); a(f'v_lshlrev_b32 v{SR}, 7, v{SR}')
    a(f'v_and_b32 v{V_T}, 0x70, v{V_L16}')
    a(f'v_add_u32 v{SR}, v{SR}, v{V_T}')
    a(f'v_add_u32 v{SW}, s{S_SWB}, v{SR}')
    a(f'v_and_b32 v{V_T2}, 0x80, v{V_L16}')
    a(f'v_lshl_add_u32 v{SR}, v{V_T2}, 2, v{SR}')
    a(f'v_add_u32 v{SR}, {L_M}, v{SR}')
    a(f'v_lshrrev_b32 v{MR}, 9, v{V_L16}'); a(f'v_lshl_add_u32 v{MR}, v{MR}, 7, v{V_T}')
    a(f'v_bfe_u32 v{V_T}, v{V_L16}, 8, 1'); a(f'v_lshl_add_u32 v{MR}, v{V_T}, 3, v{MR}')
    a(f'v_bfe_u32 v{V_T}, v{V_L16}, 7, 1'); a(f'v_lshl_add_u32 v{MR}, v{V_T}, 2, v{MR}')
    a(f'v_add_u32 v{MR}, {L_M + 1280}, v{MR}')
    if cfg.PIPE_PQ: a(pq)
    a('s_barrier')
    ST(5)
    if cfg.PIPE_PQ:
        a('s_waitcnt vmcnt(2)')
        check([RX, RX+1, RX+2, RX+3], V_T2)
        a(f's_cbranch_vccz {L("PQ_D")}')
        a.label(L('PQ'))
        a(pq)
        a('s_waitcnt vmcnt(1)')
        check([RX, RX+1, RX+2, RX+3], V_T2)
        poll_end(a, L('PQ'), L('PQ_D'))
    else:
        a.label(L('PQ'))
        a(pq)
        a('s_waitcnt vmcnt(0)')
        check([RX, RX+1, RX+2, RX+3], V_T2)
        poll_end(a, L('PQ'), L('PQ_D'))
    ST(6)
    a('s_waitcnt lgkmcnt(0)')
    a(mf32(D0, RX, SEL0, D0))
    a(mf32(D1, RX, SEL1, D1))
    rvl = f'buffer_load_dwordx2 v[{RV}:{RV+1}], v{PVA}, {X}, s{S_XR} offen offset:1024 sc1'
    if not cfg.RV_LATE: a(rvl)
    a(f's_cmp_eq_u32 s{S_STEP}, s{S_NST}')
    a('s_nop 2')
    a(cvt(TT, D0, D0 + 1)); a(cvt(TT + 1, D0 + 2, D0 + 3))
    a('s_nop 0')
    a(cvt(TT + 2, D1, D1 + 1)); a(cvt(TT + 3, D1 + 2, D1 + 3))
    a(f's_cbranch_scc1 {L("TAIL")}')
    a('s_nop 0')
    a(mf32(SA, KT0, TT))
    a(mf32(SB, KT1, TT))
    a(mf32(SMM, TT, TT))
    D('T', [TT, TT+1, TT+2, TT+3], V_T2)
    if cfg.RV_LATE: a(rvl)
    if kvf:
        a(f's_cmp_eq_u32 s{S_KVOK}, 0'); a(f's_cbranch_scc1 {L("NKV")}')
    kvd = kv_dma(cfg)
    a.ext(kvd[0])
    a(f's_mov_b64 exec, {LO}')
    a(f'ds_write_b128 v{SW}, v[{SA}:{SA+3}]')
    a('s_mov_b64 exec, -1')
    a.ext(kvd[1])
    a(f's_mov_b64 exec, {LO}')
    a(f'ds_write_b128 v{SW}, v[{SB}:{SB+3}] offset:512')
    a('s_mov_b64 exec, -1')
    a.ext(kvd[2])
    a(f's_mov_b64 exec, {LO}')
    a(f'ds_write_b128 v{SW}, v[{SMM}:{SMM+3}] offset:1024')
    a('s_mov_b64 exec, -1')
    a.ext(kvd[3])
    a(f's_add_u32 s{S_KVK}, s{S_KVK}, {32*8192}')
    a(f's_add_u32 s{S_KVV}, s{S_KVV}, {32*8192}')
    NKVD = 4
    if kvf:
        a(f's_branch {L("NKV2")}')
        a.label(L('NKV'))
        a(f's_mov_b64 exec, {LO}')
        a('s_nop 1')
        a(f'ds_write_b128 v{SW}, v[{SA}:{SA+3}]')
        a('s_nop 1')
        a(f'ds_write_b128 v{SW}, v[{SB}:{SB+3}] offset:512')
        a('s_nop 2')
        a(f'ds_write_b128 v{SW}, v[{SMM}:{SMM+3}] offset:1024')
        a('s_mov_b64 exec, -1')
        a('s_waitcnt vmcnt(0)')
        a.label(L('NKV2'))
    a('s_waitcnt lgkmcnt(0)')
    a('s_barrier')
    ST(7)
    a(f'ds_read2st64_b32 v[{MM}:{MM+1}], v{MR} offset0:0 offset1:6')
    a(f'ds_read2st64_b32 v[{MM+2}:{MM+3}], v{MR} offset0:12 offset1:18')
    for w in range(4):
        r = R0 + 4*w
        a(f'ds_read_b128 v[{r}:{r+3}], v{SR} offset:{w*1536}')
    OWA, PUA = 28, 29
    a(f'v_and_b32 v{OWA}, 0xf0, v{V_L16}'); a(f'v_and_b32 v{V_T}, 0x300, v{V_L16}')
    a(f'v_lshl_add_u32 v{OWA}, v{OWA}, 1, v{V_T}'); a(f'v_add_u32 v{OWA}, s{S_OWB}, v{OWA}')
    a(f'v_lshrrev_b32 v{PUA}, 8, v{V_L16}'); a(f'v_lshlrev_b32 v{PUA}, 7, v{PUA}')
    a(f'v_and_b32 v{V_T}, 0x70, v{V_L16}'); a(f'v_add_u32 v{PUA}, v{PUA}, v{V_T}')
    a('s_waitcnt lgkmcnt(4)')
    a(pka(MM, MM, MM + 2))
    a('s_waitcnt lgkmcnt(2)')
    a(pka(R0, R0, R1)); a(pka(R0 + 2, R0 + 2, R1 + 2))
    a(f'v_add_f32 v{MM}, v{MM}, v{MM+1}')
    M, M2 = MM + 2, MM + 3
    a('s_waitcnt lgkmcnt(0)')
    a(pka(R2, R2, R3)); a(pka(R2 + 2, R2 + 2, R3 + 2))
    a(pka(R0, R0, R2)); a(pka(R0 + 2, R0 + 2, R2 + 2))
    a(f'v_mov_b32 v{ONES}, 0x3f803f80')
    a(f'v_max3_f32 v{M}, v{R0}, v{R0+1}, v{MM}')
    a(f'v_mov_b32 v{ONES+1}, 0x3f803f80')
    a(f'v_max3_f32 v{M}, v{M}, v{R0+2}, v{R0+3}')
    D('S', [R0, R0+1, R0+2, R0+3, MM], V_T2)
    a(f'v_mov_b32 v{ONES+2}, 0x3f803f80')
    a(f'v_mov_b32 v{ONES+3}, 0x3f803f80')
    a(f'v_max_f32_dpp v{M}, v{M}, v{M} row_ror:8 row_mask:0xf bank_mask:0xf')
    a(f'v_mov_b32 v{PMQ+2}, 0x3f003f00')
    a(f'v_mov_b32 v{M2}, v{M}')
    a(f'v_mov_b32 v{PMQ+3}, 0x3f003f00')
    a('s_nop 0')
    a(f'v_permlane32_swap_b32 v{M}, v{M2}')
    a('s_nop 0')
    a(f'v_max_f32 v{M}, v{M}, v{M2}')
    a(f'v_mov_b32 v{M2}, v{M}')
    a('s_nop 1')
    a(f'v_permlane16_swap_b32 v{M}, v{M2}')
    a('s_nop 0')
    a(f'v_max_f32 v{M}, v{M}, v{M2}')
    a(f'v_mul_f32 v{M}, s{S_SC}, v{M}')
    E = [R0, R0+1, R0+2, R0+3, MM]
    for e in E:
        a(f'v_fma_f32 v{e}, v{e}, s{S_SC}, -v{M}')
    for e in (MM, R0, R0+1, R0+2, R0+3):
        a(f'v_exp_f32 v{e}, v{e}')
    a(f'v_mov_b32_dpp v{M2}, v{MM} row_ror:8 row_mask:0xf bank_mask:0xf')
    a(cvt(PB, R0, R0 + 1)); a(cvt(PB + 1, R0 + 2, R0 + 3))
    a(cvt(PMQ, MM, M2))
    a(f'v_mov_b32_dpp v{PB+2}, v{PB} row_ror:8 row_mask:0xf bank_mask:0xf')
    a(f'v_mov_b32_dpp v{PB+3}, v{PB+1} row_ror:8 row_mask:0xf bank_mask:0xf')
    a(cvt(PMQ + 1, MM, M2))
    ST(8)
    a(f's_waitcnt vmcnt({NKVD})')
    a(mf32(SUM, ONES, PB))
    a(f'v_max_u32 v{V_T2}, v{RV}, v{RV+1}')
    a(f'v_cmp_eq_u32 vcc, -1, v{V_T2}')
    a(mf32(O0, VT0, PB))
    a(f's_cbranch_vccz {L("PV_D")}')
    a(f'v_lshrrev_b32 v{V_T}, 1, v{V_L16}')
    a.label(L('PV'))
    a(f'buffer_load_dwordx2 v[{RV}:{RV+1}], v{V_T}, {X}, s{S_XR} offen offset:1024 sc1')
    a('s_waitcnt vmcnt(0)')
    a(f'v_max_u32 v{V_T2}, v{RV}, v{RV+1}')
    a(f'v_cmp_eq_u32 vcc, -1, v{V_T2}')
    poll_end(a, L('PV'), L('PV_D'))
    a(f'v_swap_b32 v{VA+1}, v{RV}')
    a(mf32(O1, VT1, PB))
    a(mf16(SUM, PMQ + 2, PMQ, SUM))
    a(mf16(O0, VA, PMQ, O0))
    a(mf16(O1, VA + 2, PMQ, O1))
    ST(9)
    a('s_nop 1')
    a(f'v_rcp_f32 v{V_T}, v{SUM}')
    a('s_nop 2')
    D('O', [O0+i for i in range(8)] + [SUM], 36)
    for r in (O0, O0 + 2, O1, O1 + 2):
        a(f'v_pk_mul_f32 v[{r}:{r+1}], v[{r}:{r+1}], v[{V_T}:{V_T+1}] op_sel_hi:[1,0]')
    a(cvt(OA, O0, O0 + 1)); a(cvt(OA + 1, O1, O1 + 1))
    a(cvt(OA + 2, O0 + 2, O0 + 3)); a(cvt(OA + 3, O1 + 2, O1 + 3))
    a(f's_mov_b64 exec, {LO}')
    a(f'ds_write2_b64 v{OWA}, v[{OA}:{OA+1}], v[{OA+2}:{OA+3}] offset0:0 offset1:2')
    a('s_mov_b64 exec, -1')
    a(f'v_add_u32 v{V_T}, {L_O}, v{V_L16}')
    for r in (24, 26, 30, 32, 34, 36, 38, 40):
        a(f'v_mov_b64 v[{r}:{r+1}], 0')
    a('s_waitcnt lgkmcnt(0)')
    a('s_barrier')
    ST(10)
    a(f'ds_read_b128 v[{OA}:{OA+3}], v{V_T}')
    a(f'ds_read_b128 v[{OA+4}:{OA+7}], v{V_T} offset:1024')
    if 'pub' not in cfg.skip:
        if cfg.PUBV:
            publish(a, cfg, P, 'A')
        else:
            lab = a.newlabel(P + 'PUB')
            a(f's_cmp_eq_u32 s{S_J}, 0'); a(f's_cbranch_scc0 {lab}')
            a(f's_mov_b64 exec, {HI}')
            a(f'buffer_store_dwordx4 v[{TT}:{TT+3}], v{PUA}, {SM}, s{S_QKM} offen sc1')
            a('s_mov_b64 exec, -1')
            a.label(lab)
    for r in (28, 42, 44, 46, 48, 50, 52, 54):
        a(f'v_mov_b64 v[{r}:{r+1}], 0')
    PRA = V_T2
    a(f'v_lshrrev_b32 v{PRA}, 6, v{V_L16}'); a(f'v_mul_u32_u24 v{PRA}, {cfg.SH}, v{PRA}')
    a(f'v_and_b32 v{V_T}, 0x30, v{V_L16}'); a(f'v_add3_u32 v{PRA}, v{PRA}, v{V_T}, s{S_PRW}')
    def wo0(nu): return smf(WACC[nu], OA, v8(WO_R + 8*nu))
    def wo1(nu): return smf(WACC[nu], OA + 4, v8(SREG + 8*nu))
    def pack(p):
        t0, t1 = WACC[2*p], WACC[2*p + 1]
        return [add(t0, t0, t0 + 1), add(t0 + 2, t0 + 2, t0 + 3), add(t1, t1, t1 + 1), add(t1 + 2, t1 + 2, t1 + 3),
                cvt(t1 + 1, t1, t1 + 2), cvt(t1, t0, t0 + 2),
                f'buffer_store_dwordx2 v[{t1}:{t1+1}], v{V_PTW}, {SM}, s{S_PW+p} offen{sfl}']
    a('s_waitcnt lgkmcnt(1)')
    a(wo0(0)); a(wo0(1))
    a('s_waitcnt lgkmcnt(0)')
    D('OA', [OA+i for i in range(8)])
    a(wo1(0)); a(wo1(1))
    SVA = 58
    for p in range(1, 4):
        pk = pack(p - 1)
        a(wo0(2*p))
        if p == 1:
            for r in range(NEG2, NEG2 + 4, 4): pass
            a(f'v_mov_b32 v{NEG2}, -1')
        a(wo0(2*p + 1)); a(pk[0]); a(pk[1])
        a(wo1(2*p)); a(pk[2]); a(pk[3])
        a(wo1(2*p + 1)); a(pk[4]); a(pk[5]); a(pk[6])
    ST(11)
    a(f's_lshl_b32 {T0}, s{S_WV}, 14')
    a(f'v_add_u32 v{SVA}, {T0}, v{V_L16}')
    sv = [f'ds_read_b128 v[{SREG+4*i}:{SREG+4*i+3}], v{SVA} offset:{L_WA + i*1024}' for i in range(16)]
    a(f'v_add_u32 v{V_T}, {L_C}, v{V_L16}')
    a(f'ds_read_b128 v[{SELR}:{SELR+3}], v{V_T} offset:2048')
    for r in range(NEG2 + 1, NEG2 + 4): a(f'v_mov_b32 v{r}, -1')
    pk = pack(3)
    a.ext(pk)
    def pr_issue():
        a(f'buffer_load_dwordx4 v[{PR0}:{PR0+3}], v{PRA}, {SM}, s{S_PR} offen sc1')
        a(f'buffer_load_dwordx4 v[{PR1}:{PR1+3}], v{PRA}, {SM}, s{S_PR2} offen sc1')
    if cfg.PIPE_PR: pr_issue()
    a.ext(sv[0:14])
    a('s_waitcnt lgkmcnt(8)')
    a.ext(sv[14:16])
    ST(12)
    a.label(L('PR'))
    pr_issue()
    a('s_waitcnt vmcnt(2)' if cfg.PIPE_PR else 's_waitcnt vmcnt(0)')
    check(list(range(PR0, PR0 + 8)), V_T)
    poll_end(a, L('PR'), L('PR_D'))
    ST(13)
    a('s_waitcnt lgkmcnt(0)')
    a(mf32(RD, PR0, SELR))
    a(mf32(RD, PR1, SELR, RD))
    a(f'buffer_store_dwordx4 v[{NEG2}:{NEG2+3}], v{PRA}, {SM}, s{S_PR} offen{sfl}')
    a(f'buffer_store_dwordx4 v[{NEG2}:{NEG2+3}], v{PRA}, {SM}, s{S_PR2} offen{sfl}')
    a('s_nop 5')
    a(f'v_permlane32_swap_b32 v{RD}, v{RD+2}')
    a(f'v_permlane32_swap_b32 v{RD+1}, v{RD+3}')
    a('s_nop 0')
    a(pka(RD, RD, RD + 2))
    a('s_nop 1')
    a(f'v_permlane16_swap_b32 v{RD}, v{RD+1}')
    a('s_nop 0')
    a(f'v_add_f32 v{RD}, v{RD}, v{RD+1}')
    a('s_nop 1')
    a(f'v_mov_b32_dpp v{RD+1}, v{RD} row_shl:4 row_mask:0xf bank_mask:0xf')
    a('s_nop 0')
    a(cvt(RD, RD, RD + 1))
    a(f'buffer_store_dword v{RD}, v{V_MFW}, {SM}, s{S_MEMW} offen{sfl}')
    ST(14)
    a(f'buffer_store_dword v{NEG2}, v{V_MFW}, {SM}, s{S_MEMR} offen{sfl}')
    if prof is not None:
        lab = a.newlabel(P + 'DBG')
        a(f's_cmp_lg_u32 s{S_STEP}, {prof[1]}')
        a(f's_cbranch_scc1 {lab}')
        a('s_waitcnt vmcnt(0) lgkmcnt(0)')
        a(f's_mov_b32 s94, s{S_BUD}')
        for i in range(16):
            a(f'v_mov_b32 v{8+i}, s{64+2*i}')
        dbg_dump(a, list(range(8, 24)), prof[0], tmp=V_T)
        a.label(lab)
    a(f's_add_u32 s{S_STEP}, s{S_STEP}, 1')
    if kvf: flag_issue()
    if cfg.PIPE_AG: ag_issue(S_MEMW)
    for s in (S_MEMR, S_MEMW):
        a(f's_add_u32 {T0}, s{s}, 16384'); a(f's_and_b32 {T0}, {T0}, 0xffff')
        a(f's_and_b32 s{s}, s{s}, 0xffff0000'); a(f's_or_b32 s{s}, s{s}, {T0}')
    for s in [S_PR, S_PR2] + [S_PW + p for p in range(4)]:
        a(f's_xor_b32 s{s}, s{s}, 0x80000')
    msk = cfg.NS * 32768 - 1
    for s in (S_XW, S_XR, S_XC):
        a(f's_add_u32 {T0}, s{s}, 32768'); a(f's_and_b32 {T0}, {T0}, 0x{msk:x}')
        a(f's_add_u32 s{s}, {T0}, s{S_XBASE}')
    a(f's_add_u32 s{S_QKM}, s{S_QKM}, {32*4096}')
    a(f's_add_u32 s{S_VMG}, s{S_VMG}, {32*2048}')
    a.ext(top_prep())
    if not cfg.PIPE_AG:
        a('s_waitcnt vmcnt(1)' if not kvf else 's_waitcnt vmcnt(2)')
        ag_issue(S_MEMR)
    a(f's_branch {L("TOP")}')
    if kvf:
        a.label(L('KVW'))
        a(f's_lshr_b32 {T0}, s{S_STEP}, 2'); a(f's_lshl_b32 {T0}, {T0}, 8')
        a(f's_add_u32 {T0}, {T0}, s{S_KVFB}')
        a.label(L('KVP'))
        a(f'buffer_load_dwordx2 v[36:37], off, {SM}, {T0} sc1')
        a('s_waitcnt vmcnt(0)')
        a('v_and_b32 v36, v36, v37')
        a('v_cmp_eq_u32 vcc, 0, v36')
        poll_end(a, L('KVP'), L('KVP_D'))
        kv_issue()
        a(f'v_xor_b32 v{A3}, 0x1800, v{MWr}')
        if not cfg.PIPE_AG: ag_issue(S_MEMR)
        a(f's_branch {L("KVB")}')

    a.label(L('TAIL'))
    if cfg.PUBV:
        a(f'v_lshrrev_b32 v{V_T}, 1, v{V_L16}')
        a.label(L('TV'))
        a(f'buffer_load_dwordx2 v[{RV}:{RV+1}], v{V_T}, {X}, s{S_XR} offen offset:1024 sc1')
        a('s_waitcnt vmcnt(0)')
        a(f'v_max_u32 v{V_T2}, v{RV}, v{RV+1}')
        a(f'v_cmp_eq_u32 vcc, -1, v{V_T2}')
        poll_end(a, L('TV'), L('TV_D'))
        a(f'v_swap_b32 v{VA+1}, v{RV}')
        publish(a, cfg, P, 'B')
    else:
        lab = a.newlabel(P + 'PUB')
        a(f's_cmp_eq_u32 s{S_J}, 0'); a(f's_cbranch_scc0 {lab}')
        PUA = 29
        a(f'v_lshrrev_b32 v{PUA}, 8, v{V_L16}'); a(f'v_lshlrev_b32 v{PUA}, 7, v{PUA}')
        a(f'v_and_b32 v{V_T}, 0x70, v{V_L16}'); a(f'v_add_u32 v{PUA}, v{PUA}, v{V_T}')
        a(f's_mov_b64 exec, {HI}')
        a(f'buffer_store_dwordx4 v[{TT}:{TT+3}], v{PUA}, {SM}, s{S_QKM} offen sc1')
        a('s_mov_b64 exec, -1')
        a.label(lab)
    a('s_waitcnt vmcnt(0)')
```

```python
from asmlib import *

WS_X = 0xB000000
C_MEMF = SM_MEMF
C_PART = SM_PART
C_CNT = SM_CNT
CNT_MODE, CNT_FB = 2048, 2176
WS_DBGC = 0x7000000

class Cfg:
    NS = 64
    SG, SP, SH = 4096, 2048, 64
    RS_PERM = True
    dynamic = False
    force_fallback = False
    EARLY_CLR = False
    skip = ()
    kvflag = None
    NOPK = False
    PR_NOACK = False
    AG_NOACK = False
    PQ_EARLY = False
    def __init__(self, **kw):
        for k, v in kw.items(): setattr(self, k, v)

L_WA = 0x00000
L_WB = 0x10000
L_M = 0x20000
L_O = 0x22000
L_C = 0x22800
L_R = 0x23400
L_KV = 0x24000
REC_LDS = 0x28000

V_IDX, V_AGP, V_PTW, V_MFW, V_KDM, V_L16, V_T, V_T2 = 0, 1, 2, 3, 4, 5, 6, 7
AM = 8
AQ0, AQ1, AK0, AK1, AV0, AV1 = 40, 44, 48, 52, 56, 60
SREG = 64
WV_R = 128
WO_R = 192
XS, D0, D1, RX, VA, RV, TT = 44, 40, 48, 52, 60, 62, 56
SEL0, SEL1, KT0, KT1, VT0, VT1, SA, SB, SMM = 24, 28, 32, 36, 8, 12, 16, 20, 24
R0, R1, R2, R3, MM = 32, 36, 40, 44, 48
PB, PMQ, ONES, SUM, O0, O1 = 36, 40, 44, 52, 16, 20
WACC = [24, 28, 32, 36, 40, 44, 48, 52]
OA = 8
PR0, PR1, SELR, RD, NEG = 8, 12, 16, 20, 24

S_SM = 4
S_KV = 8
S_X = 12
S_W = 16
S_STEP, S_WV, S_H, S_J = 20, 21, 22, 23
S_MEMR, S_MEMW, S_PR, S_PR2 = 24, 25, 26, 27
S_PW = 28
S_XW, S_XR, S_XC, S_NEAR = 32, 33, 34, 35
S_KVK, S_KVV, S_QKM, S_VMG = 36, 37, 38, 39
S_LO8 = 40
S_BUD, S_NST, S_M0, S_MEMC = 42, 43, 44, 45
S_T0, S_T1, S_T2, S_T3 = 46, 47, 48, 49
S_PTR = 50
S_WS = 52
S_SWB, S_OWB, S_KVB, S_PRW = 54, 55, 56, 57
S_HI8 = 58
S_XBASE = 60
S_MODE = 61
S_LID = 62
S_SC = 63
S_KVOK, S_KVFB = 96, 97
SOFT_C = 0x3e0293ee


def smf(acc, A, B):
    return f'v_smfmac_f32_16x16x64_bf16 v[{acc}:{acc+3}], v[{A}:{A+3}], {B}, v{V_IDX}'
def wq(pi, t): b = 16*pi + 8*t; return f'a[{b}:{b+7}]'
def wk(pi, t): b = 128 + 16*pi + 8*t; return f'a[{b}:{b+7}]'
def wv(pi, t):
    b = (WV_R + 16*pi + 8*t) if pi < 4 else (SREG + 16*(pi-4) + 8*t)
    return f'v[{b}:{b+7}]'
def v8(r): return f'v[{r}:{r+7}]'
def mf32(d, A, B, C=None):
    c = '0' if C is None else f'v[{C}:{C+3}]'
    return f'v_mfma_f32_16x16x32_bf16 v[{d}:{d+3}], v[{A}:{A+3}], v[{B}:{B+3}], {c}'
def mf16(d, A, B, C):
    return f'v_mfma_f32_16x16x16_bf16 v[{d}:{d+3}], v[{A}:{A+1}], v[{B}:{B+1}], v[{C}:{C+3}]'
NOPK = False
def pkadd(d, x, y):
    if NOPK: return f'v_add_f32 v{d}, v{x}, v{y}\n    v_add_f32 v{d+1}, v{x+1}, v{y+1}'
    return f'v_pk_add_f32 v[{d}:{d+1}], v[{x}:{x+1}], v[{y}:{y+1}]'


def poll_end(a, lab, done):
    a(f's_cbranch_vccz {done}')
    a(f's_cmp_eq_u32 s{S_BUD}, 0')
    a(f's_cbranch_scc1 {done}')
    a(f's_sub_u32 s{S_BUD}, s{S_BUD}, 1')
    a(f's_branch {lab}')
    a.label(done)

def max_chain(a, dst, regs):
    if len(regs) == 2:
        a(f'v_max_u32 v{dst}, v{regs[0]}, v{regs[1]}'); return
    a(f'v_max3_u32 v{dst}, v{regs[0]}, v{regs[1]}, v{regs[2]}')
    i = 3
    while i + 1 < len(regs):
        a(f'v_max3_u32 v{dst}, v{dst}, v{regs[i]}, v{regs[i+1]}')
        i += 2
    if i < len(regs):
        a(f'v_max_u32 v{dst}, v{dst}, v{regs[i]}')


def dbg_dump(a, regs, slot, tmp=V_T):
    a('s_waitcnt vmcnt(0) lgkmcnt(0)')
    a('s_nop 7'); a('s_nop 7')
    a.srd(84, S_WS, 4 << 20, add=WS_DBGC + slot * (4 << 20))
    a(f's_lshl_b32 s88, s{S_H}, 1'); a(f's_add_u32 s88, s88, s{S_J}'); a('s_lshl_b32 s88, s88, 2')
    a(f's_add_u32 s88, s88, s{S_WV}'); a('s_lshl_b32 s88, s88, 14')
    a(f'v_lshrrev_b32 v{tmp}, 2, v{V_L16}')
    for i, r in enumerate(regs):
        a(f'buffer_store_dword v{r}, v{tmp}, s[84:87], s88 offen')
        a('s_add_u32 s88, s88, 256')
    a('s_waitcnt vmcnt(0)')


def role_static(a, exit_label):
    a(f's_and_b32 s{S_J}, s2, 7')
    a(f's_cmp_ge_u32 s{S_J}, 2'); a(f's_cbranch_scc1 {exit_label}')
    a(f's_lshr_b32 s{S_H}, s2, 3')


def role_dynamic(a, cfg, P, exit_label, nx=2):
    SM = f's[{S_SM}:{S_SM+3}]'
    T0, T1, T2, T3 = f's{S_T0}', f's{S_T1}', f's{S_T2}', f's{S_T3}'
    lw, lp, dec, fb, bc = (f'{P}_RD{i}' for i in range(5))
    a(f's_cmp_eq_u32 s{S_WV}, 0')
    a(f's_cbranch_scc0 {lw}')
    a(f's_getreg_b32 {T0}, hwreg(HW_REG_XCC_ID, 0, 4)')
    a(f's_lshl_b32 {T1}, {T0}, 7'); a(f's_add_u32 {T1}, {T1}, {C_CNT}')
    a('v_mov_b32 v8, 1'); a('v_mov_b32 v9, 0')
    a('s_mov_b64 exec, 1')
    a(f'buffer_atomic_add v8, v9, {SM}, {T1} offen sc0 sc1')
    a('s_waitcnt vmcnt(0)')
    a(f'v_readfirstlane_b32 {T2}, v8')
    a('s_mov_b64 exec, 0x1ffff')
    a(f'v_lshlrev_b32 v9, 3, v{V_L16}')
    a(f's_mov_b32 {T1}, {C_CNT}')
    a(f's_mov_b32 {T3}, {1 if cfg.force_fallback else 4000}')
    a.label(lp)
    a(f'buffer_load_dword v10, v9, {SM}, {T1} offen sc1')
    a('s_waitcnt vmcnt(0)')
    a(f'v_readlane_b32 s{S_MODE}, v10, 16')
    a(f's_cmp_lg_u32 s{S_MODE}, 0')
    a(f's_cbranch_scc1 {fb}')
    a('v_cmp_gt_u32 vcc, 32, v10')
    a(f's_and_b32 s64, vcc_lo, {(1 << nx) - 1}')
    if cfg.force_fallback:
        a('s_or_b32 s64, s64, 1')
    a(f's_mov_b32 s{S_MODE}, 1')
    a('s_cmp_eq_u32 s64, 0')
    a(f's_cbranch_scc1 {dec}')
    a(f's_mov_b32 s{S_MODE}, 2')
    a(f's_sub_u32 {T3}, {T3}, 1')
    a(f's_cmp_eq_u32 {T3}, 0')
    a(f's_cbranch_scc0 {lp}')
    a.label(dec)
    a('s_mov_b64 exec, 1')
    a(f'v_mov_b32 v10, s{S_MODE}'); a('v_mov_b32 v11, 0'); a('v_mov_b32 v9, 0')
    a(f's_mov_b32 {T1}, {C_CNT + CNT_MODE}')
    a(f'buffer_atomic_cmpswap v[10:11], v9, {SM}, {T1} offen sc0 sc1')
    a('s_waitcnt vmcnt(0)')
    a(f'v_readfirstlane_b32 {T1}, v10')
    a(f's_cmp_eq_u32 {T1}, 0')
    a(f's_cselect_b32 s{S_MODE}, s{S_MODE}, {T1}')
    a.label(fb)
    a('s_mov_b64 exec, 1')
    a(f's_cmp_eq_u32 s{S_MODE}, 1')
    a(f's_cbranch_scc1 {bc}')
    a('v_mov_b32 v8, 1'); a('v_mov_b32 v9, 0')
    a(f's_mov_b32 {T1}, {C_CNT + CNT_FB}')
    a(f'buffer_atomic_add v8, v9, {SM}, {T1} offen sc0 sc1')
    a('s_waitcnt vmcnt(0)')
    a(f'v_readfirstlane_b32 {T2}, v8')
    a(f's_and_b32 {T0}, {T2}, 1')
    a(f's_lshr_b32 {T1}, {T2}, 1')
    a(f's_mov_b32 {T2}, {T1}')
    a.label(bc)
    a(f's_cmp_lt_u32 {T0}, 2'); a(f's_cselect_b32 {T1}, 4, 0')
    a(f's_cmp_lt_u32 {T2}, 32'); a(f's_cselect_b32 {T1}, {T1}, 0')
    a(f's_or_b32 {T1}, {T1}, s{S_MODE}')
    a(f's_lshl_b32 {T2}, {T2}, 8'); a(f's_or_b32 {T1}, {T1}, {T2}')
    a(f's_lshl_b32 {T0}, {T0}, 24'); a(f's_or_b32 {T1}, {T1}, {T0}')
    a(f'v_mov_b32 v8, {T1}'); a(f'v_mov_b32 v9, {L_R}')
    a('ds_write_b32 v9, v8')
    a('s_mov_b64 exec, -1')
    a('s_waitcnt lgkmcnt(0)')
    a.label(lw)
    a('s_barrier')
    a(f'v_mov_b32 v9, {L_R}')
    a('ds_read_b32 v8, v9')
    a('s_waitcnt lgkmcnt(0)')
    a(f'v_readfirstlane_b32 s{S_LID}, v8')
    a(f's_and_b32 s{S_MODE}, s{S_LID}, 3')
    a(f's_lshr_b32 s{S_J}, s{S_LID}, 24')
    a(f's_bfe_u32 s{S_H}, s{S_LID}, 0x100008')
    a(f's_bitcmp1_b32 s{S_LID}, 2')
    a(f's_cbranch_scc0 {exit_label}')
    a(f's_and_b32 s{S_H}, s{S_H}, 31'); a(f's_and_b32 s{S_J}, s{S_J}, 1')


def common_setup(a):
    a(f's_load_dwordx2 s[{S_WS}:{S_WS+1}], s[0:1], {KA_WS}')
    a('v_lshrrev_b32 v1, 6, v0')
    a(f'v_and_b32 v{V_L16}, 63, v0')
    a(f'v_readfirstlane_b32 s{S_WV}, v1')
    a(f'v_lshlrev_b32 v{V_L16}, 4, v{V_L16}')
    a(f's_mov_b32 s{S_LO8}, 0x00ff00ff'); a(f's_mov_b32 s{S_LO8+1}, 0x00ff00ff')
    a(f's_mov_b32 s{S_HI8}, 0xff00ff00'); a(f's_mov_b32 s{S_HI8+1}, 0xff00ff00')
    a(f's_mov_b32 s{S_BUD}, 400000')
    a(f's_mov_b32 s{S_SC}, 0x{SOFT_C:x}')
    a('s_waitcnt lgkmcnt(0)')
    a.srd(S_SM, S_WS, SM_SIZE, add=WS_SM)
    a.srd(S_KV, S_WS, 32 << 20, add=WS_KF)
    a.srd(S_X, S_WS, 64 << 20, add=WS_X)


def role_setup(a, cfg):
    W, H, J = f's{S_WV}', f's{S_H}', f's{S_J}'
    T0, T1, T2 = f's{S_T0}', f's{S_T1}', f's{S_T2}'
    ln, t1, t2 = 8, 9, 10
    a(f'v_lshrrev_b32 v{ln}, 4, v{V_L16}')
    a(f'v_mov_b32 v{V_IDX}, 0xeeee'); a(f'v_mov_b32 v{t1}, 0x4444')
    a(f'v_cndmask_b32 v{V_IDX}, v{V_IDX}, v{t1}, s[{S_LO8}:{S_LO8+1}]')
    a(f's_lshl_b32 {T0}, {W}, 11')
    a(f'v_add_u32 v{V_AGP}, {T0}, v{V_L16}')
    a(f'v_lshrrev_b32 v{t1}, 5, v{ln}'); a(f'v_lshlrev_b32 v{t1}, 10, v{t1}')
    a(f'v_bfe_u32 v{t2}, v{ln}, 4, 1'); a(f'v_lshl_add_u32 v{t1}, v{t2}, 9, v{t1}')
    a(f'v_bfe_u32 v{t2}, v{ln}, 3, 1'); a(f'v_lshl_add_u32 v{t1}, v{t2}, 8, v{t1}')
    a(f'v_and_b32 v{t2}, 7, v{ln}'); a(f'v_lshl_add_u32 v{t1}, v{t2}, 4, v{t1}')
    a(f'v_add_u32 v{V_KDM}, {T0}, v{t1}')
    a(f's_lshl_b32 {T0}, {W}, 16'); a(f's_mul_i32 {T1}, {H}, {cfg.SH}'); a(f's_add_u32 {T0}, {T0}, {T1}')
    a(f'v_lshrrev_b32 v{t1}, 5, v{ln}'); a(f'v_lshlrev_b32 v{t1}, 13, v{t1}')
    a(f'v_bfe_u32 v{t2}, v{ln}, 4, 1'); a(f'v_mul_u32_u24 v{t2}, {cfg.SG}, v{t2}'); a(f'v_add_u32 v{t1}, v{t1}, v{t2}')
    a(f'v_bfe_u32 v{t2}, v{ln}, 1, 1'); a(f'v_mul_u32_u24 v{t2}, {cfg.SP}, v{t2}'); a(f'v_add_u32 v{t1}, v{t1}, v{t2}')
    a(f'v_bfe_u32 v{t2}, v{ln}, 2, 2'); a(f'v_lshl_add_u32 v{t1}, v{t2}, 4, v{t1}')
    a(f'v_and_b32 v{t2}, 1, v{ln}'); a(f'v_lshl_add_u32 v{t1}, v{t2}, 3, v{t1}')
    a(f'v_add_u32 v{V_PTW}, {T0}, v{t1}')
    a(f's_lshl_b32 {T0}, {H}, 8')
    a(f's_and_b32 {T1}, {W}, 1'); a(f's_lshl_b32 {T1}, {T1}, 7'); a(f's_add_u32 {T0}, {T0}, {T1}')
    a(f's_lshr_b32 {T1}, {W}, 1'); a(f's_lshl_b32 {T1}, {T1}, 6'); a(f's_add_u32 {T0}, {T0}, {T1}')
    a(f'v_and_b32 v{t1}, 3, v{ln}'); a(f'v_lshlrev_b32 v{t1}, 4, v{t1}')
    a(f'v_lshrrev_b32 v{t2}, 4, v{ln}'); a(f'v_lshl_add_u32 v{t1}, v{t2}, 2, v{t1}')
    a(f'v_add_u32 v{t1}, {T0}, v{t1}')
    a(f'v_and_b32 v{t2}, 12, v{ln}')
    a(f'v_cmp_eq_u32 vcc, 0, v{t2}')
    a(f'v_mov_b32 v{V_MFW}, 0x40000000')
    a('s_nop 1')
    a(f'v_cndmask_b32 v{V_MFW}, v{V_MFW}, v{t1}, vcc')
    a(f's_lshl_b32 {T0}, {J}, 13')
    a(f's_add_u32 s{S_MEMR}, {T0}, {C_MEMF}')
    a(f's_add_u32 s{S_MEMW}, s{S_MEMR}, 16384')
    a(f's_lshl_b32 {T0}, {J}, 18'); a(f's_add_u32 {T0}, {T0}, {C_PART}')
    for p in range(4):
        a(f's_add_u32 s{S_PW+p}, {T0}, {p*16384}')
    a(f's_lshl_b32 {T1}, {H}, 13'); a(f's_add_u32 s{S_PR}, {T0}, {T1}')
    a(f's_add_u32 s{S_PR2}, s{S_PR}, {16*cfg.SH}')
    a(f's_lshr_b32 {T0}, {W}, 1'); a(f's_mul_i32 {T0}, {T0}, {cfg.SG}')
    a(f's_and_b32 {T1}, {W}, 1'); a(f's_mul_i32 {T1}, {T1}, {cfg.SP}'); a(f's_add_u32 s{S_PRW}, {T0}, {T1}')
    a(f's_mul_i32 s{S_XBASE}, {H}, {cfg.NS*32768}')
    a(f's_lshl_b32 s{S_KVK}, {H}, 13')
    a(f's_add_u32 s{S_KVV}, s{S_KVK}, {16 << 20}')
    a(f's_lshl_b32 {T0}, {W}, 12'); a(f's_add_u32 s{S_KVB}, {T0}, {L_KV}')
    a(f's_lshl_b32 s{S_QKM}, {H}, 12'); a(f's_add_u32 s{S_QKM}, s{S_QKM}, {SM_QKM + 2048}')
    a(f's_lshl_b32 {T0}, {W}, 9'); a(f's_add_u32 s{S_QKM}, s{S_QKM}, {T0}')
    a(f's_lshl_b32 s{S_VMG}, {H}, 11'); a(f's_add_u32 s{S_VMG}, s{S_VMG}, {SM_VMG}'); a(f's_add_u32 s{S_VMG}, s{S_VMG}, {T0}')
    a(f's_mul_i32 {T0}, {W}, 1536'); a(f's_add_u32 s{S_SWB}, {T0}, {L_M}')
    a(f's_lshr_b32 {T0}, {W}, 1'); a(f's_lshl_b32 {T0}, {T0}, 10')
    a(f's_and_b32 {T1}, {W}, 1'); a(f's_lshl_b32 {T1}, {T1}, 3')
    a(f's_add_u32 {T0}, {T0}, {T1}'); a(f's_add_u32 s{S_OWB}, {T0}, {L_O}')
    a(f's_mov_b32 s{S_STEP}, 0')


def x_offsets(a, cfg):
    T0, T1 = f's{S_T0}', f's{S_T1}'
    a(f's_lshl_b32 {T0}, s{S_NEAR}, 13'); a(f's_add_u32 {T0}, {T0}, s{S_XBASE}')
    a(f's_lshl_b32 {T1}, s{S_WV}, 11'); a(f's_add_u32 {T0}, {T0}, {T1}')
    a(f's_lshl_b32 {T1}, s{S_J}, 14')
    a(f's_add_u32 s{S_XW}, {T0}, {T1}')
    a(f's_xor_b32 s{S_XR}, s{S_XW}, 0x4000')
    a(f's_add_u32 s{S_XC}, s{S_XW}, {(3 % cfg.NS) * 32768}')


def const_tables(a):
    ln, t1, t2, js, c0, one = 8, 9, 10, 11, 12, 13
    R = 16
    a(f'v_lshrrev_b32 v{ln}, 4, v{V_L16}')
    a(f'v_add_u32 v{t2}, {L_C}, v{V_L16}')
    a(f'v_mov_b32 v{c0}, v{t2}')
    def onehot(cond_vcc):
        a(f'v_and_b32 v{t1}, 1, v{js}')
        a(f'v_lshlrev_b32 v{t1}, 4, v{t1}')
        a(f'v_mov_b32 v{one}, 0x3f80')
        a(f'v_lshlrev_b32 v{one}, v{t1}, v{one}')
        a(f'v_lshrrev_b32 v{t1}, 1, v{js}')
        for q in range(4):
            a(f'v_cmp_eq_u32 vcc, {q}, v{t1}')
            a('s_nop 1')
            a(f'v_cndmask_b32 v{R+q}, 0, v{one}, vcc')
    for tp in range(2):
        a(f'v_and_b32 v{js}, 3, v{ln}')
        a(f'v_bfe_u32 v{t1}, v{ln}, 3, 1'); a(f'v_lshl_add_u32 v{js}, v{t1}, 2, v{js}')
        a(f'v_bfe_u32 v{t1}, v{ln}, 2, 1'); a(f'v_bfe_u32 v{t2}, v{ln}, 4, 1')
        a(f'v_xor_b32 v{t1}, v{t1}, v{t2}')
        a(f'v_lshrrev_b32 v{t2}, 5, v{ln}'); a(f'v_xor_b32 v{t2}, {tp}, v{t2}')
        a(f'v_or_b32 v{t1}, v{t1}, v{t2}')
        a(f'v_lshl_add_u32 v{js}, v{t1}, 6, v{js}')
        onehot(None)
        a(f'ds_write_b128 v{c0}, v[{R}:{R+3}] offset:{tp*1024}')
        a('s_waitcnt lgkmcnt(0)')
    a(f'v_and_b32 v{js}, 7, v{ln}')
    onehot(None)
    a(f'ds_write_b128 v{c0}, v[{R}:{R+3}] offset:2048')
    a('s_waitcnt lgkmcnt(0)')


def stage_weights(a, tag):
    W, H, J = f's{S_WV}', f's{S_H}', f's{S_J}'
    T0, T1, T2, T3 = f's{S_T0}', f's{S_T1}', f's{S_T2}', f's{S_T3}'
    LN, t1, t2, t3 = 8, 9, 10, 11
    VD = 12
    TB = [14, 15, 16, 17]
    TC = [18, 19, 20, 21]
    VOF = [24 + f for f in range(4)]
    OB = [32 + n for n in range(8)]
    OC = [40 + n for n in range(8)]
    V_WL = 48
    a(f'v_lshrrev_b32 v{LN}, 4, v{V_L16}')
    a(f'v_lshrrev_b32 v{t1}, 4, v{LN}')
    a(f'v_and_b32 v{t2}, 1, v{t1}')
    a(f'v_lshrrev_b32 v{t3}, 1, v{t1}'); a(f'v_lshl_or_b32 v{t2}, v{t3}, 2, v{t2}')
    a(f'v_and_b32 v{t3}, 15, v{LN}'); a(f'v_xor_b32 v{t2}, v{t2}, v{t3}')
    a(f'v_lshlrev_b32 v{t1}, 13, v{t1}'); a(f'v_lshl_add_u32 v{t1}, v{t2}, 4, v{t1}')
    a(f's_lshl_b32 {T0}, {H}, 8')
    a(f'v_add_u32 v{VD}, {T0}, v{t1}')
    a(f'v_lshrrev_b32 v{t1}, 4, v{LN}'); a(f'v_lshlrev_b32 v{t1}, 3, v{t1}')
    a(f'v_bfe_u32 v{t2}, v{LN}, 2, 2'); a(f'v_add_u32 v{t1}, v{t1}, v{t2}')
    a(f'v_lshlrev_b32 v{t1}, 8, v{t1}')
    a(f'v_and_b32 v{t3}, 1, v{t2}'); a(f'v_lshrrev_b32 v{t2}, 1, v{t2}'); a(f'v_lshl_or_b32 v{t2}, v{t2}, 2, v{t3}')
    a(f'v_bfe_u32 v{t3}, v{LN}, 1, 1'); a(f'v_lshlrev_b32 v{t3}, 1, v{t3}')
    a(f's_lshl_b32 {T0}, {W}, 2'); a(f'v_add_u32 v{t3}, {T0}, v{t3}')
    a(f'v_xor_b32 v{t2}, v{t2}, v{t3}')
    a(f'v_lshl_add_u32 v{t1}, v{t2}, 4, v{t1}')
    a(f'v_and_b32 v{t2}, 1, v{LN}'); a(f'v_lshl_add_u32 v{t1}, v{t2}, 3, v{t1}')
    for x in range(2):
        a(f's_and_b32 {T0}, {W}, 1'); a(f's_xor_b32 {T0}, {T0}, {x}'); a(f's_lshl_b32 {T0}, {T0}, 15')
        a(f'v_add_u32 v{TB[2*x]}, {T0}, v{t1}')
        a(f'v_xor_b32 v{TB[2*x+1]}, 16, v{TB[2*x]}')
        a(f'v_add_u32 v{TC[2*x]}, {L_WB}, v{TB[2*x]}')
        a(f'v_add_u32 v{TC[2*x+1]}, {L_WB}, v{TB[2*x+1]}')
    a(f's_lshl_b32 {T0}, {J}, 10'); a(f'v_add_u32 v{t1}, {T0}, v{V_L16}')
    for f in range(4):
        a(f'v_xor_b32 v{VOF[f]}, {f << 5}, v{t1}')
    a(f'v_bfe_u32 v{t1}, v{LN}, 4, 1'); a(f'v_lshlrev_b32 v{t1}, 5, v{t1}')
    a(f'v_lshrrev_b32 v{t2}, 5, v{LN}'); a(f'v_lshl_add_u32 v{t1}, v{t2}, 2, v{t1}')
    a(f'v_bfe_u32 v{t2}, v{LN}, 2, 2'); a(f'v_add_u32 v{t1}, v{t1}, v{t2}')
    a(f'v_lshlrev_b32 v{t1}, 10, v{t1}')
    a(f'v_lshl_add_u32 v{t1}, v{t2}, 5, v{t1}')
    a(f'v_and_b32 v{t2}, 3, v{LN}'); a(f'v_lshl_add_u32 v{t1}, v{t2}, 3, v{t1}')
    a(f's_lshl_b32 {T0}, {W}, 8'); a(f'v_add_u32 v{t1}, {T0}, v{t1}')
    for n in range(8):
        a(f'v_xor_b32 v{OB[n]}, {n << 5}, v{t1}')
        a(f'v_add_u32 v{OC[n]}, {L_WB}, v{OB[n]}')
    a(f's_lshl_b32 {T0}, {W}, 14'); a(f'v_add_u32 v{V_WL}, {T0}, v{V_L16}')

    def load_ptr(ka):
        a(f's_load_dwordx2 s[{S_PTR}:{S_PTR+1}], s[0:1], {ka}')
        a('s_waitcnt lgkmcnt(0)')
        a.srd(S_W, S_PTR, 8 << 20)

    def dma_qkv(P, region):
        a(f's_lshl_b32 {T0}, {J}, 22'); a(f's_lshl_b32 {T1}, {W}, 19'); a(f's_add_u32 {T0}, {T0}, {T1}')
        a(f's_add_u32 {T0}, {T0}, {P << 21}')
        a(f's_lshl_b32 {T1}, {W}, 14'); a(f's_add_u32 m0, {T1}, {region}')
        for i in range(16):
            a(f'buffer_load_dwordx4 v{VD}, s[{S_W}:{S_W+3}], {T0} offen lds')
            if i < 15:
                a(f's_add_u32 {T0}, {T0}, 32768'); a('s_add_u32 m0, m0, 1024'); a('s_nop 0')

    def dma_wo(cp, region):
        a(f's_lshl_b32 {T0}, {H}, 7'); a(f's_lshl_b32 {T1}, {W}, 4'); a(f's_add_u32 {T0}, {T0}, {T1}')
        a(f's_add_u32 {T0}, {T0}, {64*cp}'); a(f's_lshl_b32 {T0}, {T0}, 11')
        a(f's_lshl_b32 {T1}, {W}, 14'); a(f's_add_u32 m0, {T1}, {region}')
        for i in range(16):
            a(f'buffer_load_dwordx4 v{VOF[i & 3]}, s[{S_W}:{S_W+3}], {T0} offen lds')
            if i < 15:
                a(f's_add_u32 {T0}, {T0}, 2048'); a('s_add_u32 m0, m0, 1024'); a('s_nop 0')

    def read_qkv_range(base_pi, tb, dest):
        n = 0
        for pl in range(4):
            pi = base_pi + pl
            for tau in range(2):
                d = dest(pi, tau)
                for hq in range(2):
                    for q in range(2):
                        r = 4*hq + 2*q
                        a(f'ds_read_b64_tr_b16 {d(r)}, v{tb[2*(pl >> 1) + tau]} offset:{(pl & 1)*16384 + hq*8192 + q*1024}')
                a('s_waitcnt lgkmcnt(8)')

    def read_qkv(P, tb, dest, nm):
        l1, l2 = f'{tag}_ST{nm}A', f'{tag}_ST{nm}B'
        a(f's_lshr_b32 {T0}, {W}, 1'); a(f's_cmp_eq_u32 {T0}, {P}')
        a(f's_cbranch_scc0 {l1}')
        read_qkv_range(0, tb, dest)
        a(f's_branch {l2}')
        a.label(l1)
        read_qkv_range(4, tb, dest)
        a.label(l2)

    def read_wo(ad, dest):
        for nu in range(8):
            for hq in range(2):
                for q in range(2):
                    r = dest + 8*nu + 4*hq + 2*q
                    a(f'ds_read_b64_tr_b16 v[{r}:{r+1}], v{ad[nu]} offset:{hq*16384 + q*8192}')
            a('s_waitcnt lgkmcnt(8)')

    dq = lambda pi, t: (lambda r: f'a[{16*pi+8*t+r}:{16*pi+8*t+r+1}]')
    dk = lambda pi, t: (lambda r: f'a[{128+16*pi+8*t+r}:{128+16*pi+8*t+r+1}]')
    def dv(pi, t):
        b = WV_R + 16*pi + 8*t if pi < 4 else SREG + 16*(pi-4) + 8*t
        return lambda r: f'v[{b+r}:{b+r+1}]'

    pieces = [('q', 0), ('q', 1), ('k', 0), ('k', 1), ('v', 0), ('v', 1), ('o', 0), ('o', 1)]
    ptrs = {'q': KA_WQ, 'k': KA_WK, 'v': KA_WV, 'o': KA_WO}
    def issue(n):
        m, P = pieces[n]
        if P == 0: load_ptr(ptrs[m])
        reg = L_WB if n & 1 else L_WA
        if m == 'o': dma_wo(P, reg)
        else: dma_qkv(P, reg)
    issue(0); issue(1)
    for n in range(8):
        m, P = pieces[n]
        a(f's_waitcnt vmcnt({16 if n < 7 else 0})')
        a('s_barrier')
        tb = TC if n & 1 else TB
        if m == 'q': read_qkv(P, tb, dq, n)
        elif m == 'k': read_qkv(P, tb, dk, n)
        elif m == 'v': read_qkv(P, tb, dv, n)
        elif P == 0: read_wo(OB, WO_R)
        else: read_wo(OC, SREG)
        a('s_waitcnt lgkmcnt(0)')
        a('s_barrier')
        if n + 2 < 8: issue(n + 2)
        if n == 6:
            for i in range(16):
                r = SREG + 4*i
                a(f'ds_write_b128 v{V_WL}, v[{r}:{r+3}] offset:{L_WA + i*1024}')
            a('s_waitcnt lgkmcnt(0)')
        if n == 7:
            a(f'v_add_u32 v{V_WL}, {L_WB}, v{V_WL}')
            for i in range(16):
                r = SREG + 4*i
                a(f'ds_write_b128 v{V_WL}, v[{r}:{r+3}] offset:{i*1024}')
            a('s_waitcnt lgkmcnt(0)')


def kv_dma(cfg):
    KV = f's[{S_KV}:{S_KV+3}]'
    out = []
    out.append([f's_mov_b32 m0, s{S_KVB}', 's_nop 0', f'buffer_load_dwordx4 v{V_KDM}, {KV}, s{S_KVK} offen lds'])
    out.append([f's_add_u32 m0, s{S_KVB}, {1024-128}', 's_nop 0', f'buffer_load_dwordx4 v{V_KDM}, {KV}, s{S_KVK} offen offset:128 lds'])
    out.append([f's_add_u32 m0, s{S_KVB}, 2048', 's_nop 0', f'buffer_load_dwordx4 v{V_KDM}, {KV}, s{S_KVV} offen lds'])
    out.append([f's_add_u32 m0, s{S_KVB}, {3072-128}', 's_nop 0', f'buffer_load_dwordx4 v{V_KDM}, {KV}, s{S_KVV} offen offset:128 lds'])
    return out


def svload():
    return [f'ds_read_b128 v[{SREG+4*i}:{SREG+4*i+3}], v{V_T2} offset:{L_WA + i*1024}' for i in range(16)]

def wl_addr(a, dst, add=0):
    a(f's_lshl_b32 s{S_T0}, s{S_WV}, 14')
    if add: a(f's_add_u32 s{S_T0}, s{S_T0}, {add}')
    a(f'v_add_u32 v{dst}, s{S_T0}, v{V_L16}')


def rec_loop(a, cfg, P, sfl, dbg=None):
    SM = f's[{S_SM}:{S_SM+3}]'
    X = f's[{S_X}:{S_X+3}]'
    LO = f's[{S_LO8}:{S_LO8+1}]'
    HI = f's[{S_HI8}:{S_HI8+1}]'
    dbg = dbg or {}
    L = lambda s: f'{P}_{s}'
    def D(name, regs, tmp=V_T):
        if name in dbg:
            lab = a.newlabel(P + 'DBG')
            a(f's_cmp_lg_u32 s{S_STEP}, {dbg[name][1]}')
            a(f's_cbranch_scc1 {lab}')
            dbg_dump(a, regs, dbg[name][0], tmp)
            a.label(lab)
    prof = dbg.get('prof')
    global NOPK
    NOPK = cfg.NOPK
    stamps = getattr(cfg, 'stamps', None) or list(range(15))
    def ST(i):
        if prof is not None and i in stamps:
            k = stamps.index(i)
            if getattr(cfg, 'RT', False):
                if i == 14:
                    a(f's_mov_b64 s[94:95], s[{64+2*k}:{65+2*k}]') if False else None
                if i == 0:
                    k14 = stamps.index(14)
                    a('s_waitcnt lgkmcnt(0)')
                    a(f's_mov_b64 s[{64+2*14}:{65+2*14}], s[{64+2*k14}:{65+2*k14}]')
                a(f's_memrealtime s[{64+2*k}:{65+2*k}]')
            else:
                a(f's_memtime s[{64+2*k}:{65+2*k}]')

    MWr, A1, A2, A3 = AM + 8, AM + 12, AM + 20, AM + 28
    NEG = 24
    def top_prep():
        out = []
        out.append(f'v_add_u32 v{MWr}, {L_M}, v{V_AGP}')
        out.append(f'v_xor_b32 v{A1}, 0x800, v{MWr}')
        out.append(f'v_xor_b32 v{A2}, 0x1000, v{MWr}')
        out.append(f'v_xor_b32 v{A3}, 0x1800, v{MWr}')
        for r in range(40, 64, 2):
            out.append(f'v_mov_b64 v[{r}:{r+1}], 0')
        return out

    wl_addr(a, V_T2)
    sv0 = svload()
    a.ext(sv0[:8]); a('s_waitcnt lgkmcnt(0)'); a.ext(sv0[8:])
    a.ext(top_prep())
    for r in range(4): a(f'v_mov_b32 v{NEG+r}, -1')
    if cfg.kvflag is not None:
        a(f's_lshr_b32 s{S_KVFB}, s{S_H}, 1'); a(f's_lshl_b32 s{S_KVFB}, s{S_KVFB}, 4')
        a(f's_add_u32 s{S_KVFB}, s{S_KVFB}, {cfg.kvflag}')
        a(f's_mov_b32 s{S_KVOK}, 0')
    a.label(L('TOP'))
    if cfg.kvflag is not None:
        a(f's_cmp_eq_u32 s{S_KVOK}, 0'); a(f's_cbranch_scc1 {L("KVW")}')
        a.label(L('KVB'))
        if getattr(cfg, 'tl', False):
            lab = a.newlabel(P + 'TL')
            a(f's_cmp_lg_u32 s{S_STEP}, 0'); a(f's_cbranch_scc1 {lab}')
            a('s_memrealtime s[88:89]'); a('s_waitcnt lgkmcnt(0)'); a('s_mov_b32 s75, s88')
            a.label(lab)
    ST(0)
    a.label(L('PM'))
    a(f'buffer_load_dwordx4 v[{AM}:{AM+3}], v{V_AGP}, {SM}, s{S_MEMR} offen sc1')
    a(f'buffer_load_dwordx4 v[{AM+4}:{AM+7}], v{V_AGP}, {SM}, s{S_MEMR} offen offset:1024 sc1')
    a('s_waitcnt vmcnt(0)')
    max_chain(a, V_T, list(range(AM, AM + 8)))
    a(f'v_cmp_eq_u32 vcc, -1, v{V_T}')
    poll_end(a, L('PM'), L('PM_D'))
    ST(1)
    a(f'ds_write_b128 v{MWr}, v[{AM}:{AM+3}]')
    a(f'ds_write_b128 v{MWr}, v[{AM+4}:{AM+7}] offset:1024')
    def qk(pi):
        A = AM + 4*pi
        return [smf(AQ0, A, wq(pi, 0)), smf(AQ1, A, wq(pi, 1)), smf(AK0, A, wk(pi, 0)), smf(AK1, A, wk(pi, 1))]
    def qk4(pi): a.ext(qk(pi))
    def vv(pi): return [smf(AV0, AM + 4*pi, wv(pi, 0)), smf(AV1, AM + 4*pi, wv(pi, 1))]
    kvd = kv_dma(cfg) if 'kv' not in cfg.skip else [[], [], [], []]
    xcl = [f'buffer_store_dwordx4 v[{NEG}:{NEG+3}], v{V_L16}, {X}, s{S_XC} offen sc1',
           f'buffer_store_dwordx4 v[{NEG}:{NEG+3}], v{V_L16}, {X}, s{S_XC} offen offset:1024 sc1']
    m = qk(0)
    a(m[0]); a.ext(kvd[0]); a(m[1]); a.ext(kvd[1]); a(m[2]); a(xcl[0]); a(m[3]); a(xcl[1])
    a('s_waitcnt lgkmcnt(0)')
    a('s_barrier')
    ST(2)
    for pi in range(2, 8):
        ad = [A1, A2, A3][(pi >> 1) - 1]
        a(f'ds_read_b128 v[{AM+4*pi}:{AM+4*pi+3}], v{ad} offset:{(pi & 1)*1024}')
    m = qk(1)
    a(m[0]); a.ext(kvd[2]); a(m[1]); a.ext(kvd[3]); a(m[2]); a(m[3])
    a.ext(vv(0)); a.ext(vv(1))
    D('AM', list(range(AM, AM + 32)))
    fine = prof is not None and 'q0' in stamps
    ST('q0')
    for pi in range(2, 6):
        a(f's_waitcnt lgkmcnt({0 if fine else 7 - pi})')
        ST(f'q{pi}w')
        qk4(pi)
    a('s_waitcnt lgkmcnt(0)')
    ST('q6')
    for pi in (6, 7):
        a(smf(AQ0, AM + 4*pi, wq(pi, 0))); a(smf(AQ1, AM + 4*pi, wq(pi, 1)))
    a(smf(AK0, AM + 24, wk(6, 0))); a(smf(AK1, AM + 24, wk(6, 1)))
    ST('q7')
    a(f'v_permlane32_swap_b32 v{AQ0}, v{AQ1}')
    a(f'v_permlane32_swap_b32 v{AQ0+1}, v{AQ1+1}')
    a(f'v_permlane32_swap_b32 v{AQ0+2}, v{AQ1+2}')
    a(smf(AK0, AM + 28, wk(7, 0)))
    a(f'v_permlane32_swap_b32 v{AQ0+3}, v{AQ1+3}')
    a(pkadd(AQ0, AQ0, AQ1))
    a(smf(AK1, AM + 28, wk(7, 1)))
    a(pkadd(AQ0 + 2, AQ0 + 2, AQ1 + 2))
    a('s_nop 0')
    a(f'v_cvt_pk_bf16_f32 v{XS}, v{AQ0}, v{AQ0+1}')
    VS = []
    for pi in [4, 5, 6, 7, 2, 3]: VS += vv(pi)
    a(VS[0])
    a(f'v_cvt_pk_bf16_f32 v{XS+1}, v{AQ0+2}, v{AQ0+3}')
    a('s_nop 1')
    a(VS[1])
    ST('q8')
    for r in range(4):
        a(f'v_permlane32_swap_b32 v{AK0+r}, v{AK1+r}')
    a(VS[2])
    a(pkadd(AK0, AK0, AK1)); a(pkadd(AK0 + 2, AK0 + 2, AK1 + 2))
    a('s_nop 0')
    a(f'v_cvt_pk_bf16_f32 v{XS+2}, v{AK0}, v{AK0+1}')
    a(f'v_cvt_pk_bf16_f32 v{XS+3}, v{AK0+2}, v{AK0+3}')
    a(VS[3])
    a(f'buffer_store_dwordx4 v[{XS}:{XS+3}], v{V_L16}, {X}, s{S_XW} offen sc1')
    if cfg.PQ_EARLY:
        a(f'buffer_load_dwordx4 v[{RX}:{RX+3}], v{V_L16}, {X}, s{S_XR} offen sc1')
    ST(3)
    D('XS', [XS, XS+1, XS+2, XS+3])
    wl_addr(a, V_T2, L_WB)
    wo_ld = [f'ds_read_b128 v[{SREG+4*i}:{SREG+4*i+3}], v{V_T2} offset:{i*1024}' for i in range(16)]
    a(f'v_add_u32 v{V_T}, {L_C}, v{V_L16}')
    a(VS[4]); a(wo_ld[0]); a(wo_ld[1]); a(wo_ld[2])
    a(VS[5]); a(wo_ld[3]); a(wo_ld[4]); a(wo_ld[5])
    a(VS[6]); a(wo_ld[6]); a(wo_ld[7])
    a(VS[7])
    a(f'ds_read_b128 v[{SEL0}:{SEL0+3}], v{V_T}')
    a(f'ds_read_b128 v[{SEL1}:{SEL1+3}], v{V_T} offset:1024')
    a(VS[8]); a(wo_ld[8]); a(wo_ld[9])
    a(VS[9]); a(wo_ld[10]); a(wo_ld[11])
    a(VS[10])
    a('s_waitcnt lgkmcnt(4)')
    a(wo_ld[12]); a(wo_ld[13])
    a(VS[11])
    a(mf32(D0, XS, SEL0))
    a(wo_ld[14]); a(wo_ld[15])
    a(mf32(D1, XS, SEL1))
    a(f'v_lshrrev_b32 v{V_T2}, 1, v{V_L16}')
    a('s_nop 4')
    for r in range(4):
        a(f'v_permlane32_swap_b32 v{AV0+r}, v{AV1+r}')
    a('s_nop 0')
    a(pkadd(AV0, AV0, AV1)); a(pkadd(AV0 + 2, AV0 + 2, AV1 + 2))
    a('s_nop 0')
    a(f'v_cvt_pk_bf16_f32 v{VA}, v{AV0}, v{AV0+1}')
    a(f'v_cvt_pk_bf16_f32 v{VA+1}, v{AV0+2}, v{AV0+3}')
    a('s_nop 1')
    a(f'v_permlane16_swap_b32 v{VA}, v{VA+1}')
    a('s_nop 1')
    a(f'v_permlane32_swap_b32 v{VA}, v{VA+1}')
    a('s_nop 1')
    a(f'buffer_store_dwordx2 v[{VA}:{VA+1}], v{V_T2}, {X}, s{S_XW} offen offset:1024 sc1')
    ST(4)
    a('s_barrier')
    SW, SR, MR, PVA = XS, XS + 1, XS + 2, XS + 3
    a(f'v_mov_b32 v{PVA}, v{V_T2}')
    a(f'v_lshrrev_b32 v{SR}, 8, v{V_L16}'); a(f'v_lshlrev_b32 v{SR}, 7, v{SR}')
    a(f'v_and_b32 v{V_T}, 0x70, v{V_L16}')
    a(f'v_add_u32 v{SR}, v{SR}, v{V_T}')
    a(f'v_add_u32 v{SW}, s{S_SWB}, v{SR}')
    a(f'v_and_b32 v{V_T2}, 0x80, v{V_L16}')
    a(f'v_lshl_add_u32 v{SR}, v{V_T2}, 2, v{SR}')
    a(f'v_add_u32 v{SR}, {L_M}, v{SR}')
    a(f'v_lshrrev_b32 v{MR}, 9, v{V_L16}'); a(f'v_lshl_add_u32 v{MR}, v{MR}, 7, v{V_T}')
    a(f'v_bfe_u32 v{V_T}, v{V_L16}, 8, 1'); a(f'v_lshl_add_u32 v{MR}, v{V_T}, 3, v{MR}')
    a(f'v_bfe_u32 v{V_T}, v{V_L16}, 7, 1'); a(f'v_lshl_add_u32 v{MR}, v{V_T}, 2, v{MR}')
    a(f'v_add_u32 v{MR}, {L_M + 1280}, v{MR}')
    a(f'v_add_u32 v{V_T}, s{S_KVB}, v{V_L16}')
    a('s_waitcnt vmcnt(1)')
    ST(5)
    if cfg.PQ_EARLY:
        a(f'ds_read_b128 v[{KT0}:{KT0+3}], v{V_T}')
        a(f'ds_read_b128 v[{KT1}:{KT1+3}], v{V_T} offset:1024')
        a(f'ds_read_b128 v[{VT0}:{VT0+3}], v{V_T} offset:2048')
        a(f'ds_read_b128 v[{VT1}:{VT1+3}], v{V_T} offset:3072')
        max_chain(a, V_T2, [RX, RX+1, RX+2, RX+3])
        a(f'v_cmp_eq_u32 vcc, -1, v{V_T2}')
        a(f's_cbranch_vccz {L("PQ_D")}')
    a.label(L('PQ'))
    a(f'buffer_load_dwordx4 v[{RX}:{RX+3}], v{V_L16}, {X}, s{S_XR} offen sc1')
    if not cfg.PQ_EARLY:
        a(f'ds_read_b128 v[{KT0}:{KT0+3}], v{V_T}')
        a(f'ds_read_b128 v[{KT1}:{KT1+3}], v{V_T} offset:1024')
        a(f'ds_read_b128 v[{VT0}:{VT0+3}], v{V_T} offset:2048')
        a(f'ds_read_b128 v[{VT1}:{VT1+3}], v{V_T} offset:3072')
    a('s_waitcnt vmcnt(0)')
    max_chain(a, V_T2, [RX, RX+1, RX+2, RX+3])
    a(f'v_cmp_eq_u32 vcc, -1, v{V_T2}')
    poll_end(a, L('PQ'), L('PQ_D'))
    ST(6)
    a('s_waitcnt lgkmcnt(0)')
    a(mf32(D0, RX, SEL0, D0))
    a(mf32(D1, RX, SEL1, D1))
    a(f'buffer_load_dwordx2 v[{RV}:{RV+1}], v{PVA}, {X}, s{S_XR} offen offset:1024 sc1')
    a(f's_cmp_eq_u32 s{S_STEP}, s{S_NST}')
    a('s_nop 2')
    a(f'v_cvt_pk_bf16_f32 v{TT}, v{D0}, v{D0+1}')
    a(f'v_cvt_pk_bf16_f32 v{TT+1}, v{D0+2}, v{D0+3}')
    a('s_nop 0')
    a(f'v_cvt_pk_bf16_f32 v{TT+2}, v{D1}, v{D1+1}')
    a(f'v_cvt_pk_bf16_f32 v{TT+3}, v{D1+2}, v{D1+3}')
    a(f's_cbranch_scc1 {L("TAIL")}')
    a('s_nop 0')
    a(mf32(SA, KT0, TT))
    a(mf32(SB, KT1, TT))
    a(mf32(SMM, TT, TT))
    D('T', [TT, TT+1, TT+2, TT+3], V_T2)
    a(f's_mov_b64 exec, {LO}')
    a('s_nop 1')
    a(f'ds_write_b128 v{SW}, v[{SA}:{SA+3}]')
    a('s_nop 1')
    a(f'ds_write_b128 v{SW}, v[{SB}:{SB+3}] offset:512')
    a('s_nop 2')
    a(f'ds_write_b128 v{SW}, v[{SMM}:{SMM+3}] offset:1024')
    a('s_mov_b64 exec, -1')
    a('s_waitcnt lgkmcnt(0)')
    a('s_barrier')
    ST(7)
    a(f'ds_read2st64_b32 v[{MM}:{MM+1}], v{MR} offset0:0 offset1:6')
    a(f'ds_read2st64_b32 v[{MM+2}:{MM+3}], v{MR} offset0:12 offset1:18')
    for w in range(4):
        r = R0 + 4*w
        a(f'ds_read_b128 v[{r}:{r+3}], v{SR} offset:{w*1536}')
    a(f'v_mov_b32 v{V_T}, v{PVA}') if False else None
    for r in range(WACC[0], WACC[0] + 8, 2):
        a(f'v_mov_b64 v[{r}:{r+1}], 0')
    a('s_waitcnt lgkmcnt(4)')
    a(pkadd(MM, MM, MM + 2))
    a('s_waitcnt lgkmcnt(2)')
    a(pkadd(R0, R0, R1)); a(pkadd(R0 + 2, R0 + 2, R1 + 2))
    a(f'v_add_f32 v{MM}, v{MM}, v{MM+1}')
    M, M2 = MM + 2, MM + 3
    HALF = SUM + 2
    a('s_waitcnt lgkmcnt(0)')
    a(pkadd(R2, R2, R3)); a(pkadd(R2 + 2, R2 + 2, R3 + 2))
    a(pkadd(R0, R0, R2)); a(pkadd(R0 + 2, R0 + 2, R2 + 2))
    a(f'v_mov_b32 v{ONES}, 0x3f803f80')
    a(f'v_max3_f32 v{M}, v{R0}, v{R0+1}, v{MM}')
    a(f'v_mov_b32 v{ONES+1}, 0x3f803f80')
    a(f'v_max3_f32 v{M}, v{M}, v{R0+2}, v{R0+3}')
    D('S', [R0, R0+1, R0+2, R0+3, MM], V_T2)
    a(f'v_mov_b32 v{ONES+2}, 0x3f803f80')
    a(f'v_mov_b32 v{ONES+3}, 0x3f803f80')
    a(f'v_max_f32_dpp v{M}, v{M}, v{M} row_ror:8 row_mask:0xf bank_mask:0xf')
    a(f'v_mov_b32 v{PMQ+2}, 0x3f003f00')
    a(f'v_mov_b32 v{M2}, v{M}')
    a(f'v_mov_b32 v{PMQ+3}, 0x3f003f00')
    a('s_nop 0')
    a(f'v_permlane32_swap_b32 v{M}, v{M2}')
    a('s_nop 0')
    a(f'v_max_f32 v{M}, v{M}, v{M2}')
    a(f'v_mov_b32 v{M2}, v{M}')
    a('s_nop 1')
    a(f'v_permlane16_swap_b32 v{M}, v{M2}')
    a('s_nop 0')
    a(f'v_max_f32 v{M}, v{M}, v{M2}')
    a(f'v_mul_f32 v{M}, s{S_SC}, v{M}')
    E = [R0, R0+1, R0+2, R0+3, MM]
    for e in E:
        a(f'v_fma_f32 v{e}, v{e}, s{S_SC}, -v{M}')
    for e in (MM, R0, R0+1, R0+2, R0+3):
        a(f'v_exp_f32 v{e}, v{e}')
    a(f'v_mov_b32_dpp v{M2}, v{MM} row_ror:8 row_mask:0xf bank_mask:0xf')
    a(f'v_cvt_pk_bf16_f32 v{PB}, v{R0}, v{R0+1}')
    a(f'v_cvt_pk_bf16_f32 v{PB+1}, v{R0+2}, v{R0+3}')
    a(f'v_cvt_pk_bf16_f32 v{PMQ}, v{MM}, v{M2}')
    a(f'v_mov_b32_dpp v{PB+2}, v{PB} row_ror:8 row_mask:0xf bank_mask:0xf')
    a(f'v_mov_b32_dpp v{PB+3}, v{PB+1} row_ror:8 row_mask:0xf bank_mask:0xf')
    a(f'v_cvt_pk_bf16_f32 v{PMQ+1}, v{MM}, v{M2}')
    ST(8)
    a('s_waitcnt vmcnt(0)')
    a(mf32(SUM, ONES, PB))
    a(f'v_max_u32 v{V_T2}, v{RV}, v{RV+1}')
    a(f'v_cmp_eq_u32 vcc, -1, v{V_T2}')
    a(mf32(O0, VT0, PB))
    a(f's_cbranch_vccz {L("PV_D")}')
    a(f'v_lshrrev_b32 v{V_T}, 1, v{V_L16}')
    a.label(L('PV'))
    a(f'buffer_load_dwordx2 v[{RV}:{RV+1}], v{V_T}, {X}, s{S_XR} offen offset:1024 sc1')
    a('s_waitcnt vmcnt(0)')
    a(f'v_max_u32 v{V_T2}, v{RV}, v{RV+1}')
    a(f'v_cmp_eq_u32 vcc, -1, v{V_T2}')
    poll_end(a, L('PV'), L('PV_D'))
    a(f'v_swap_b32 v{VA+1}, v{RV}')
    a(mf32(O1, VT1, PB))
    a(mf16(SUM, PMQ + 2, PMQ, SUM))
    a(mf16(O0, VA, PMQ, O0))
    a(mf16(O1, VA + 2, PMQ, O1))
    ST(9)
    a(f'v_rcp_f32 v{V_T}, v{SUM}')
    a(f'v_add_u32 v{V_T2}, s{S_OWB}, v{V_L16}')
    for r in range(WACC[2], WACC[3] + 4, 2):
        pass
    for r in (48, 50):
        a(f'v_mov_b64 v[{r}:{r+1}], 0')
    for r in (32, 34):
        a(f'v_mov_b64 v[{r}:{r+1}], 0')
    a('s_nop 0')
    D('O', [O0+i for i in range(8)] + [SUM], 36)
    for r in (O0, O0 + 2, O1, O1 + 2):
        a(f'v_pk_mul_f32 v[{r}:{r+1}], v[{r}:{r+1}], v[{V_T}:{V_T+1}] op_sel_hi:[1,0]')
    a(f'v_cvt_pk_bf16_f32 v{OA}, v{O0}, v{O0+1}')
    a(f'v_cvt_pk_bf16_f32 v{OA+1}, v{O1}, v{O1+1}')
    a(f'v_cvt_pk_bf16_f32 v{OA+2}, v{O0+2}, v{O0+3}')
    a(f'v_cvt_pk_bf16_f32 v{OA+3}, v{O1+2}, v{O1+3}')
    a(f's_mov_b64 exec, {LO}')
    a(f'ds_write2_b64 v{V_T2}, v[{OA}:{OA+1}], v[{OA+2}:{OA+3}] offset0:0 offset1:16')
    a('s_mov_b64 exec, -1')
    a(f'v_add_u32 v{V_T}, {L_O}, v{V_L16}')
    for r in (36, 38, 40, 42, 44, 46, 52, 54):
        a(f'v_mov_b64 v[{r}:{r+1}], 0')
    a('s_waitcnt lgkmcnt(0)')
    a('s_barrier')
    ST(10)
    a(f'ds_read_b128 v[{OA}:{OA+3}], v{V_T}')
    a(f'ds_read_b128 v[{OA+4}:{OA+7}], v{V_T} offset:1024')
    if 'pub' not in cfg.skip: publish(a, cfg, P, 'A')
    if cfg.kvflag is not None:
        a(f's_add_u32 s{S_T0}, s{S_STEP}, 1'); a(f's_lshr_b32 s{S_T0}, s{S_T0}, 2'); a(f's_lshl_b32 s{S_T0}, s{S_T0}, 8')
        a(f's_add_u32 s{S_T0}, s{S_T0}, s{S_KVFB}')
        a(f'buffer_load_dwordx2 v[56:57], off, {SM}, s{S_T0} sc1')
    def wo0(nu): a(smf(WACC[nu], OA, v8(WO_R + 8*nu)))
    def wo1(nu): a(smf(WACC[nu], OA + 4, v8(SREG + 8*nu)))
    def pack(p):
        t0, t1 = WACC[2*p], WACC[2*p + 1]
        out = []
        for r in range(4): out.append(f'v_permlane32_swap_b32 v{t0+r}, v{t1+r}')
        out.append(pkadd(t0, t0, t1)); out.append(pkadd(t0 + 2, t0 + 2, t1 + 2))
        out.append(f'v_cvt_pk_bf16_f32 v{t1}, v{t0}, v{t0+1}')
        out.append(f'v_cvt_pk_bf16_f32 v{t1+1}, v{t0+2}, v{t0+3}')
        out.append(f'buffer_store_dwordx2 v[{t1}:{t1+1}], v{V_PTW}, {SM}, s{S_PW+p} offen{sfl}')
        return out
    ST('w0')
    a('s_waitcnt lgkmcnt(1)' if not (prof is not None and 'w0' in stamps) else 's_waitcnt lgkmcnt(0)')
    ST('w1')
    wo0(0); wo0(1)
    a('s_waitcnt lgkmcnt(0)')
    D('OA', [OA+i for i in range(8)])
    wo1(0); wo1(1)
    wo0(2); wo0(3)
    for p in range(1, 4):
        ST(f'w{p+1}')
        pk = pack(p - 1)
        a.ext(pk[0:3]); wo1(2*p); a.ext(pk[3:5]); a('s_nop 0'); wo1(2*p + 1); a(pk[5]); a('s_nop 0'); a.ext(pk[6:8])
        if p < 3:
            wo0(2*p + 2); a(pk[8]); wo0(2*p + 3)
        else:
            a(pk[8])
    ST('w5')
    wl_addr(a, V_T2)
    sv = svload()
    a.ext(sv[0:4])
    a('s_nop 1')
    pk = pack(3)
    a.ext(pk[0:4]); a('s_nop 0'); a.ext(pk[4:6]); a('s_nop 0'); a.ext(pk[6:9])
    ST(11)
    a.ext(sv[4:14])
    PRA = 28
    ln = 29
    a(f'v_lshrrev_b32 v{ln}, 4, v{V_L16}')
    if cfg.RS_PERM:
        a(f'v_lshrrev_b32 v{PRA}, 4, v{ln}'); a(f'v_lshlrev_b32 v{PRA}, 2, v{PRA}')
        a(f'v_and_b32 v{30}, 3, v{ln}'); a(f'v_add_u32 v{PRA}, v{PRA}, v{30}')
        a(f'v_mul_u32_u24 v{PRA}, {cfg.SH}, v{PRA}')
        a(f'v_bfe_u32 v{30}, v{ln}, 2, 2'); a(f'v_lshl_add_u32 v{PRA}, v{30}, 4, v{PRA}')
    else:
        a(f'v_lshrrev_b32 v{PRA}, 2, v{ln}'); a(f'v_mul_u32_u24 v{PRA}, {cfg.SH}, v{PRA}')
        a(f'v_and_b32 v{30}, 3, v{ln}'); a(f'v_lshl_add_u32 v{PRA}, v{30}, 4, v{PRA}')
    a(f'v_add_u32 v{PRA}, s{S_PRW}, v{PRA}')
    a(f'v_add_u32 v{V_T}, {L_C}, v{V_L16}')
    for r in range(4): a(f'v_mov_b32 v{NEG+r}, -1')
    a('s_waitcnt lgkmcnt(8)')
    a.ext(sv[14:16])
    a(f'ds_read_b128 v[{SELR}:{SELR+3}], v{V_T} offset:2048')
    if not cfg.PR_NOACK: a('s_waitcnt vmcnt(0)')
    ST(12)
    if cfg.kvflag is not None and not cfg.PR_NOACK:
        a('v_and_b32 v56, v56, v57')
        a('s_nop 0')
        a(f'v_readfirstlane_b32 s{S_KVOK}, v56')
    a.label(L('PR'))
    a(f'buffer_load_dwordx4 v[{PR0}:{PR0+3}], v{PRA}, {SM}, s{S_PR} offen sc1')
    a(f'buffer_load_dwordx4 v[{PR1}:{PR1+3}], v{PRA}, {SM}, s{S_PR2} offen sc1')
    a('s_waitcnt vmcnt(0)')
    max_chain(a, V_T, list(range(PR0, PR0 + 8)))
    a(f'v_cmp_eq_u32 vcc, -1, v{V_T}')
    poll_end(a, L('PR'), L('PR_D'))
    ST(13)
    if cfg.kvflag is not None and cfg.PR_NOACK:
        a('v_and_b32 v56, v56, v57')
        a('s_nop 0')
        a(f'v_readfirstlane_b32 s{S_KVOK}, v56')
    a('s_waitcnt lgkmcnt(0)')
    a(mf32(RD, PR0, SELR))
    a(mf32(RD, PR1, SELR, RD))
    a(f'buffer_store_dwordx4 v[{NEG}:{NEG+3}], v{PRA}, {SM}, s{S_PR} offen{sfl}') if cfg.EARLY_CLR else None
    a(f'buffer_store_dwordx4 v[{NEG}:{NEG+3}], v{PRA}, {SM}, s{S_PR2} offen{sfl}') if cfg.EARLY_CLR else None
    a('s_nop 5' if cfg.EARLY_CLR else 's_nop 7')
    if cfg.RS_PERM:
        a(pkadd(RD, RD, RD + 2))
        a('s_nop 0')
        a(f'v_add_f32 v{RD}, v{RD}, v{RD+1}')
    else:
        a(f'v_permlane32_swap_b32 v{RD}, v{RD+2}')
        a(f'v_permlane32_swap_b32 v{RD+1}, v{RD+3}')
        a('s_nop 0')
        a(pkadd(RD, RD, RD + 2))
        a('s_nop 1')
        a(f'v_permlane16_swap_b32 v{RD}, v{RD+1}')
        a('s_nop 0')
        a(f'v_add_f32 v{RD}, v{RD}, v{RD+1}')
    a('s_nop 1')
    a(f'v_mov_b32_dpp v{RD+1}, v{RD} row_shl:4 row_mask:0xf bank_mask:0xf')
    a('s_nop 0')
    a(f'v_cvt_pk_bf16_f32 v{RD}, v{RD}, v{RD+1}')
    a(f'buffer_store_dword v{RD}, v{V_MFW}, {SM}, s{S_MEMW} offen{sfl}')
    ST(14)
    nclr = 1
    if not cfg.EARLY_CLR:
        a(f'buffer_store_dwordx4 v[{NEG}:{NEG+3}], v{PRA}, {SM}, s{S_PR} offen{sfl}')
        a(f'buffer_store_dwordx4 v[{NEG}:{NEG+3}], v{PRA}, {SM}, s{S_PR2} offen{sfl}')
        nclr = 3
    a(f'buffer_store_dword v{NEG}, v{V_MFW}, {SM}, s{S_MEMR} offen{sfl}')
    if prof is not None:
        lab = a.newlabel(P + 'DBG')
        a(f's_cmp_lg_u32 s{S_STEP}, {prof[1]}')
        a(f's_cbranch_scc1 {lab}')
        a('s_waitcnt lgkmcnt(0)')
        a(f's_mov_b32 s94, s{S_BUD}')
        for i in range(16):
            a(f'v_mov_b32 v{8+i}, s{64+2*i}')
        dbg_dump(a, list(range(8, 24)), prof[0])
        for r in range(4): a(f'v_mov_b32 v{NEG+r}, -1')
        a.label(lab)
    T0 = f's{S_T0}'
    for s in (S_MEMR, S_MEMW):
        a(f's_add_u32 {T0}, s{s}, 16384'); a(f's_and_b32 {T0}, {T0}, 0xffff')
        a(f's_and_b32 s{s}, s{s}, 0xffff0000'); a(f's_or_b32 s{s}, s{s}, {T0}')
    for s in [S_PR, S_PR2] + [S_PW + p for p in range(4)]:
        a(f's_xor_b32 s{s}, s{s}, 0x80000')
    msk = cfg.NS * 32768 - 1
    for s in (S_XW, S_XR, S_XC):
        a(f's_add_u32 {T0}, s{s}, 32768'); a(f's_and_b32 {T0}, {T0}, 0x{msk:x}')
        a(f's_add_u32 s{s}, {T0}, s{S_XBASE}')
    a(f's_add_u32 s{S_QKM}, s{S_QKM}, {32*4096}')
    a(f's_add_u32 s{S_VMG}, s{S_VMG}, {32*2048}')
    a(f's_add_u32 s{S_KVK}, s{S_KVK}, {32*8192}')
    a(f's_add_u32 s{S_KVV}, s{S_KVV}, {32*8192}')
    a(f's_add_u32 s{S_STEP}, s{S_STEP}, 1')
    a.ext(top_prep())
    if not cfg.AG_NOACK: a(f's_waitcnt vmcnt({nclr})')
    a(f's_branch {L("TOP")}')
    if cfg.kvflag is not None:
        a.label(L('KVW'))
        a(f's_lshr_b32 s{S_T0}, s{S_STEP}, 2'); a(f's_lshl_b32 s{S_T0}, s{S_T0}, 8')
        a(f's_add_u32 s{S_T0}, s{S_T0}, s{S_KVFB}')
        a.label(L('KVP'))
        a(f'buffer_load_dwordx2 v[8:9], off, {SM}, s{S_T0} sc1')
        a('s_waitcnt vmcnt(0)')
        a('v_and_b32 v8, v8, v9')
        a('v_cmp_eq_u32 vcc, 0, v8')
        poll_end(a, L('KVP'), L('KVP_D'))
        a(f's_branch {L("KVB")}')

    a.label(L('TAIL'))
    a(f'v_lshrrev_b32 v{V_T}, 1, v{V_L16}')
    a.label(L('TV'))
    a(f'buffer_load_dwordx2 v[{RV}:{RV+1}], v{V_T}, {X}, s{S_XR} offen offset:1024 sc1')
    a('s_waitcnt vmcnt(0)')
    a(f'v_max_u32 v{V_T2}, v{RV}, v{RV+1}')
    a(f'v_cmp_eq_u32 vcc, -1, v{V_T2}')
    poll_end(a, L('TV'), L('TV_D'))
    a(f'v_swap_b32 v{VA+1}, v{RV}')
    publish(a, cfg, P, 'B')
    a('s_waitcnt vmcnt(0)')


def publish(a, cfg, P, tag):
    SM = f's[{S_SM}:{S_SM+3}]'
    HI = f's[{S_HI8}:{S_HI8+1}]'
    l1, l2 = f'{P}_PUB{tag}1', f'{P}_PUB{tag}2'
    a(f's_cmp_eq_u32 s{S_J}, 0')
    a(f's_cbranch_scc0 {l1}')
    ad, ad2 = 62, 63
    a(f'v_lshrrev_b32 v{ad}, 8, v{V_L16}'); a(f'v_lshlrev_b32 v{ad}, 7, v{ad}')
    a(f'v_and_b32 v{ad2}, 0x70, v{V_L16}'); a(f'v_add_u32 v{ad}, v{ad}, v{ad2}')
    a(f's_mov_b64 exec, {HI}')
    a(f'buffer_store_dwordx4 v[{TT}:{TT+3}], v{ad}, {SM}, s{S_QKM} offen sc1')
    a('s_mov_b64 exec, -1')
    a(f's_branch {l2}')
    a.label(l1)
    t0, t1, t2, t3 = 56, 57, 58, 59
    def add2(x, y, dst):
        a(f'v_lshlrev_b32 v{t0}, 16, v{x}'); a(f'v_and_b32 v{t1}, 0xffff0000, v{x}')
        a(f'v_lshlrev_b32 v{t2}, 16, v{y}'); a(f'v_and_b32 v{t3}, 0xffff0000, v{y}')
        a(f'v_pk_add_f32 v[{t0}:{t1}], v[{t0}:{t1}], v[{t2}:{t3}]')
        a(f'v_cvt_pk_bf16_f32 v{dst}, v{t0}, v{t1}')
    add2(60, 61, 60)
    add2(62, 63, 61)
    ad = 62
    a(f'v_lshrrev_b32 v{ad}, 9, v{V_L16}'); a(f'v_lshlrev_b32 v{ad}, 8, v{ad}')
    a(f'v_bfe_u32 v{t0}, v{V_L16}, 8, 1'); a(f'v_lshl_add_u32 v{ad}, v{t0}, 2, v{ad}')
    a(f'v_bfe_u32 v{t0}, v{V_L16}, 7, 1'); a(f'v_lshl_add_u32 v{ad}, v{t0}, 7, v{ad}')
    a(f'v_bfe_u32 v{t0}, v{V_L16}, 4, 3'); a(f'v_lshl_add_u32 v{ad}, v{t0}, 3, v{ad}')
    a(f'buffer_store_dword v60, v{ad}, {SM}, s{S_VMG} offen sc1')
    a(f'buffer_store_dword v61, v{ad}, {SM}, s{S_VMG} offen offset:64 sc1')
    a.label(l2)


def post_v(a, cfg, P):
    X = f's[{S_X}:{S_X+3}]'
    T0 = f's{S_T0}'
    a(f's_add_u32 s{S_KVK}, s{S_KVK}, {32*8192}')
    a(f's_add_u32 s{S_KVV}, s{S_KVV}, {32*8192}')
    if 'kv' not in cfg.skip:
        for g in kv_dma(cfg): a.ext(g)
    for r in range(16, 20): a(f'v_mov_b32 v{r}, -1')
    a(f'v_lshrrev_b32 v20, 1, v{V_L16}')
    a(f'buffer_store_dwordx4 v[16:19], v{V_L16}, {X}, s{S_XC} offen sc1')
    a(f'buffer_store_dwordx2 v[16:17], v20, {X}, s{S_XC} offen offset:1024 sc1')
    msk = cfg.NS * 32768 - 1
    for s in (S_XW, S_XR, S_XC):
        a(f's_add_u32 {T0}, s{s}, 32768'); a(f's_and_b32 {T0}, {T0}, 0x{msk:x}')
        a(f's_add_u32 s{s}, {T0}, s{S_XBASE}')
    a(f's_add_u32 s{S_QKM}, s{S_QKM}, {32*4096}')
    a(f's_add_u32 s{S_VMG}, s{S_VMG}, {32*2048}')


def near_static(a, val):
    a(f's_mov_b32 s{S_NEAR}, {val}')


def near_measure(a, cfg, P):
    SM = f's[{S_SM}:{S_SM+3}]'
    X = f's[{S_X}:{S_X+3}]'
    T0, T1, T2, T3 = f's{S_T0}', f's{S_T1}', f's{S_T2}', f's{S_T3}'
    l1 = f'{P}_NM1'
    a(f's_lshl_b32 {T0}, s{S_WV}, 1'); a(f's_or_b32 {T0}, {T0}, s{S_J}')
    a(f's_cmp_eq_u32 {T0}, 0'); a(f's_cbranch_scc0 {l1}')
    a(f's_add_u32 {T0}, s{S_XBASE}, {(cfg.NS-1)*32768 + 1536}')
    a('v_mov_b32 v8, 0')
    a(f'buffer_load_dword v9, v8, {X}, {T0} offen offset:384 sc1')
    a('s_waitcnt vmcnt(0)')
    a('s_mov_b32 s70, -1'); a('s_mov_b32 s71, -1')
    for i in range(6):
        for b in range(2):
            off = b*8192 + (i % 3)*128 + (i // 3)*2048
            a(f's_add_u32 {T1}, {T0}, {off}')
            a('s_memtime s[64:65]')
            a('s_waitcnt lgkmcnt(0)')
            a(f'buffer_load_dword v9, v8, {X}, {T1} offen sc1')
            a('s_waitcnt vmcnt(0)')
            a('s_memtime s[66:67]')
            a('s_waitcnt lgkmcnt(0)')
            a('s_sub_u32 s66, s66, s64')
            a(f's_min_u32 s{70+b}, s{70+b}, s66')
    a('s_cmp_lt_u32 s71, s70'); a(f's_cselect_b32 {T2}, 1, 0')
    a(f'v_mov_b32 v9, {T2}')
    a(f's_lshl_b32 {T1}, s{S_H}, 7'); a(f's_add_u32 {T1}, {T1}, {C_CNT + 4096}')
    a('v_cmp_eq_u32 vcc, 0, v%d' % V_L16)
    a('s_and_saveexec_b64 s[64:65], vcc')
    a(f'buffer_store_dword v9, v8, {SM}, {T1} offen sc1')
    a('s_mov_b64 exec, s[64:65]')
    a('s_waitcnt vmcnt(0)')
    a.label(l1)
    lp, dn = f'{P}_NM2', f'{P}_NM3'
    a(f's_lshl_b32 {T1}, s{S_H}, 7'); a(f's_add_u32 {T1}, {T1}, {C_CNT + 4096}')
    a('v_mov_b32 v8, 0')
    a.label(lp)
    a(f'buffer_load_dword v9, v8, {SM}, {T1} offen sc1')
    a('s_waitcnt vmcnt(0)')
    a('v_cmp_eq_u32 vcc, -1, v9')
    poll_end(a, lp, dn)
    a(f'v_readfirstlane_b32 s{S_NEAR}, v9')
    a(f's_and_b32 s{S_NEAR}, s{S_NEAR}, 1')


def impl(cfg):
    if getattr(cfg, 'F', False):
        import k_rec2
        return k_rec2.role_setup2, k_rec2.const_tables2, k_rec2.rec_loop2
    return role_setup, const_tables, rec_loop

def memf0_src(a, cfg, G, dst, tmp):
    if getattr(cfg, 'F', False):
        a(f'v_bfe_u32 v{dst}, v{G}, 1, 3'); a(f'v_lshlrev_b32 v{dst}, 11, v{dst}')
        a(f'v_lshrrev_b32 v{tmp}, 4, v{G}'); a(f'v_lshl_add_u32 v{dst}, v{tmp}, 5, v{dst}')
        a(f'v_and_b32 v{tmp}, 1, v{G}'); a(f'v_lshl_add_u32 v{dst}, v{tmp}, 2, v{dst}')
    else:
        a(f'v_and_b32 v{dst}, 7, v{G}'); a(f'v_lshlrev_b32 v{dst}, 11, v{dst}')
        a(f'v_lshrrev_b32 v{tmp}, 4, v{G}'); a(f'v_lshl_add_u32 v{dst}, v{tmp}, 5, v{dst}')
        a(f'v_bfe_u32 v{tmp}, v{G}, 3, 1'); a(f'v_lshl_add_u32 v{dst}, v{tmp}, 2, v{dst}')

def gen_recc(nsteps=63, dbg=None, cfg=None, P='RC', near=None, sfl=''):
    cfg = cfg or Cfg()
    a = Asm()
    a('s_cmp_ge_u32 s2, 256')
    a(f's_cbranch_scc1 {P}_EXIT')
    if cfg.dynamic:
        common_setup(a)
        role_dynamic(a, cfg, P, f'{P}_EXIT')
    else:
        role_static(a, f'{P}_EXIT')
        common_setup(a)
    RS, CT, RL = impl(cfg)
    RS(a, cfg)
    a(f's_mov_b32 s{S_NST}, {nsteps}')
    CT(a)
    stage_weights(a, P)
    if near is None: near_measure(a, cfg, P)
    else: near_static(a, near)
    x_offsets(a, cfg)
    a('s_waitcnt vmcnt(0) lgkmcnt(0)')
    a('s_barrier')
    if cfg.dynamic:
        a(f's_cmp_eq_u32 s{S_MODE}, 1')
        a(f's_cbranch_scc0 {P}_FB')
        RL(a, cfg, P, '', dbg)
        a('s_endpgm')
        a.label(f'{P}_FB')
        RL(a, cfg, P + 'F', ' sc1', None)
    else:
        RL(a, cfg, P, sfl, dbg)
    a.label(f'{P}_EXIT')
    a('s_endpgm')
    return a.text()


def gen_prepc(cfg=None):
    cfg = cfg or Cfg()
    a = Asm()
    a('s_cmp_ge_u32 s2, 256')
    a('s_cbranch_scc1 PREP_END')
    a(f's_load_dwordx2 s[4:5], s[0:1], {KA_WS}')
    a(f's_load_dwordx2 s[6:7], s[0:1], {KA_MEM0}')
    a('s_lshl_b32 s3, s2, 12')
    a('v_lshlrev_b32 v1, 4, v0')
    a('v_add_u32 v1, s3, v1')
    for r in range(4):
        a(f'v_mov_b32 v{4+r}, -1'); a(f'v_mov_b32 v{8+r}, 0')
    a('s_waitcnt lgkmcnt(0)')
    a.srd(8, 4, SM_SIZE, add=WS_SM)
    a.srd(12, 6, 8 * 1024 * 2)
    a.srd(20, 4, 64 << 20, add=WS_X)
    a(f's_mov_b32 s16, {C_PART}')
    a('buffer_store_dwordx4 v[4:7], v1, s[8:11], s16 offen')
    a('s_lshr_b32 s17, s2, 3'); a(f's_mul_i32 s17, s17, {cfg.NS*32768}')
    a('s_and_b32 s18, s2, 7'); a('s_lshl_b32 s18, s18, 12'); a('s_add_u32 s17, s17, s18')
    a('v_lshlrev_b32 v2, 4, v0')
    for i in range(3):
        a('buffer_store_dwordx4 v[4:7], v2, s[20:23], s17 offen')
        a('s_add_u32 s17, s17, 32768')
    a('s_cmp_eq_u32 s2, 16'); a('s_cbranch_scc0 PREP_N1')
    a(f's_mov_b32 s16, {C_CNT}')
    a('buffer_store_dwordx4 v[8:11], v2, s[8:11], s16 offen')
    a.label('PREP_N1')
    a('s_cmp_eq_u32 s2, 17'); a('s_cbranch_scc0 PREP_N2')
    a(f's_mov_b32 s16, {C_CNT + 4096}')
    a('buffer_store_dwordx4 v[4:7], v2, s[8:11], s16 offen')
    a.label('PREP_N2')
    a('s_cmp_ge_u32 s2, 16'); a('s_cbranch_scc1 PREP_END')
    a('s_cmp_lt_u32 s2, 4')
    a('s_cbranch_scc1 PREP_M0')
    a(f's_mov_b32 s16, {C_MEMF}')
    a('buffer_store_dwordx4 v[4:7], v1, s[8:11], s16 offen')
    a('s_branch PREP_END')
    a.label('PREP_M0')
    a('v_lshrrev_b32 v2, 4, v1')
    memf0_src(a, cfg, 2, 3, 12)
    for t in range(4):
        a(f'buffer_load_dword v{4+t}, v3, s[12:15], 0 offen offset:{t*8}')
    a('s_waitcnt vmcnt(0)')
    for t in range(4):
        a(f'v_min_u32 v{4+t}, -2, v{4+t}')
    a(f's_mov_b32 s16, {C_MEMF}')
    a('buffer_store_dwordx4 v[4:7], v1, s[8:11], s16 offen')
    a.label('PREP_END')
    a('s_endpgm')
    return a.text()
```

```python
import sys; sys.path.insert(0,'gen')
import build_mega2 as b, k_recc as rc, mega, k_rec2
from mega import FL_KVQ
p = sys.argv[1]; step = int(sys.argv[2])
kw = eval(sys.argv[3]) if len(sys.argv) > 3 else {}
C = rc.Cfg if 'old' in sys.argv[4:] else k_rec2.Cfg2
cfg = C(dynamic=True, RS_PERM=False, EARLY_CLR=True, kvflag=FL_KVQ, tl=False, **kw)
if step < 0: b.build(p, b.header(), cfg=cfg)
else: b.build(p, b.header(), cfg=cfg, dbg={'prof': (6, step)})
import chk; chk.chk(p)
```

```python
from asmlib import *
import mega, k_recc as rc
from mega import *
from mega import tl_stamp, tl_init, tl_dump

S_WM = 87
F_XW, F_XD = 1024, 2560
L_ST = 0x20000

class LQ:
    def __init__(self, a): self.a = a; self.q = []
    def op(self, s, tag=None): self.a(s); self.q.append(tag)
    def wait(self, tag):
        i = max(k for k, t in enumerate(self.q) if t == tag)
        n = len(self.q) - 1 - i
        assert n <= 15
        self.a(f's_waitcnt lgkmcnt({n})')
    def drain(self): self.a('s_waitcnt lgkmcnt(0)'); self.q = []

def mode_store(a, instrs):
    l1, l2 = a.newlabel('MS'), a.newlabel('MS')
    a(f's_cmp_eq_u32 s{S_WM}, 1'); a(f's_cbranch_scc0 {l1}')
    for i in instrs: a(i)
    a(f's_branch {l2}')
    a.label(l1)
    for i in instrs: a(i + ' sc1')
    a.label(l2)

PROF = False
PIPE = True
def role_gemmx(a, kind, nseg=64):
    N = kind
    prof = PROF
    def ST(i):
        if not prof: return
        a('s_memtime s[56:57]'); a('s_waitcnt lgkmcnt(0)')
        a('s_sub_u32 s59, s56, s58'); a(f's_add_u32 s{60+i}, s{60+i}, s59'); a('s_mov_b32 s58, s56')
    GU = kind == 'GU'
    KS_, CB_ = 28, 29
    nk = 56 if kind == 'DN' else 64
    nch = nk // 8
    nd = nk // 4
    SW, SX, SO = 4, 8, 12
    SR, SRES = 4, S_OSRD
    T0, T1, T2 = f's{S_T0}', f's{S_T1}', f's{S_T2}'
    W = f's{S_WAVE}'
    LN, L16, VD, VT_, t1, t2 = 1, 2, 3, 4, 5, 6
    VPA, VPF, VFA, VONE, VOUT = 8, 12, 16, 17, 18
    VXR = [7, 9, 10, 11]
    XF = 160 if GU else 20
    NR = 12 if GU else 8
    AC0, AC1 = 52, 68
    TMP = 84
    CS = 100
    SA, SB_, QA, QB = 116, 117, 118, 119
    UL, UH = 20, 21
    VNEG = 160
    S_E0 = 49
    VONES, VSTW, VSTR = 120, 121, 122
    NMU, RSTD = 124, 126
    STT = 128
    VEX, VXF, VXP, VFM, VRM = 136, 137, 138, 139, 140
    RES = 142
    EXL = 144
    a(f's_load_dwordx2 s[{S_PWS}:{S_PWS+1}], s[0:1], {KA_WS}')
    if GU:
        a(f's_load_dwordx2 s[{S_PW}:{S_PW+1}], s[0:1], {KA_WG}')
        a(f's_load_dwordx2 s[40:41], s[0:1], {KA_WU}')
    else:
        a(f's_load_dwordx2 s[{S_PW}:{S_PW+1}], s[0:1], {KA_WO if kind == "WO" else KA_WD}')
        a(f's_load_dwordx2 s[40:41], s[0:1], {KA_X if kind == "WO" else KA_OUT}')
    a(f'v_and_b32 v{LN}, 63, v0')
    a(f'v_lshlrev_b32 v{L16}, 4, v{LN}')
    a('s_waitcnt lgkmcnt(0)')
    if GU:
        a(f's_cmp_ge_u32 {W}, 2')
        a(f's_cselect_b32 s{S_PW}, s40, s{S_PW}')
        a(f's_cselect_b32 s{S_PW+1}, s41, s{S_PW+1}')
    a.srd(SW, S_PW, (8 if kind == 'WO' else 7) * MB)
    xo, xb = {'WO': (WS_OF, 16*MB), 'GU': (WS_HB, 4*MB), 'DN': (WS_ACT, 14*MB)}[kind]
    a.srd(SX, S_PWS, xb, add=xo)
    oo, ob = {'WO': (WS_P1, MB), 'GU': (WS_ACT, 14*MB), 'DN': (WS_P2, MB)}[kind]
    a.srd(SO, S_PWS, ob, add=oo)
    if kind == 'WO':   a.srd(SRES, S_PWS, 4*MB, add=WS_HB)
    elif kind == 'DN': a.srd(SRES, 40, 4*MB)
    S_GO, S_M0 = 42, 43
    if GU:
        a(f'v_lshrrev_b32 v{t1}, 3, v{LN}'); a(f'v_mul_u32_u24 v{VD}, 7168, v{t1}')
        a(f'v_and_b32 v{t1}, 7, v{LN}'); a(f'v_lshl_add_u32 v{VD}, v{t1}, 4, v{VD}')
        a(f's_lshl_b32 {T0}, s{CB_}, 7')
        a(f's_and_b32 {T1}, {W}, 1'); a(f's_mul_i32 {T1}, {T1}, {64*7168}')
        a(f's_add_u32 s{S_GO}, {T0}, {T1}')
        a(f's_lshl_b32 s{S_M0}, {W}, 13')
        istep, cstep = 8 * 7168, 128 * 7168
        a(f'v_bfe_u32 v{t1}, v{LN}, 2, 2'); a(f'v_lshrrev_b32 v{t2}, 5, v{LN}')
        a(f'v_lshl_add_u32 v{t1}, v{t2}, 2, v{t1}'); a(f'v_lshlrev_b32 v{VT_}, 7, v{t1}')
        a(f'v_bfe_u32 v{t1}, v{LN}, 4, 1'); a(f'v_lshl_add_u32 v{VT_}, v{t1}, 14, v{VT_}')
        a(f'v_and_b32 v{t1}, 3, v{LN}'); a(f'v_lshl_add_u32 v{VT_}, v{t1}, 3, v{VT_}')
        a(f's_lshl_b32 {T0}, {W}, 5'); a(f'v_add_u32 v{VT_}, {T0}, v{VT_}')
        kkoff, h2off = 2048, 1024
    else:
        rows0 = 1024 if kind == 'WO' else 896
        a(f'v_lshrrev_b32 v{t1}, 4, v{LN}'); a(f'v_lshlrev_b32 v{t2}, 2, v{t1}')
        a(f'v_and_b32 v{VD}, 15, v{LN}'); a(f'v_xor_b32 v{VD}, v{VD}, v{t2}'); a(f'v_lshlrev_b32 v{VD}, 4, v{VD}')
        a(f'v_lshl_add_u32 v{VD}, v{t1}, 11, v{VD}')
        a(f's_mul_i32 {T0}, s{KS_}, {rows0 * 2048}'); a(f's_lshl_b32 {T1}, s{CB_}, 8'); a(f's_add_u32 {T0}, {T0}, {T1}')
        a(f's_lshl_b32 {T1}, {W}, 16'); a(f's_add_u32 s{S_GO}, {T0}, {T1}')
        a(f's_lshl_b32 s{S_M0}, {W}, 13')
        istep, cstep = 4 * 2048, 128 * 2048
        a(f'v_bfe_u32 v{t1}, v{LN}, 2, 2')
        a(f'v_lshrrev_b32 v{t2}, 5, v{LN}'); a(f'v_lshl_add_u32 v{t2}, v{t2}, 2, v{t1}'); a(f'v_lshlrev_b32 v{VT_}, 8, v{t2}')
        a(f'v_xor_b32 v{t1}, {W}, v{t1}'); a(f'v_lshl_add_u32 v{VT_}, v{t1}, 6, v{VT_}')
        a(f'v_bfe_u32 v{t1}, v{LN}, 4, 1'); a(f'v_lshl_add_u32 v{VT_}, v{t1}, 5, v{VT_}')
        a(f'v_and_b32 v{t1}, 3, v{LN}'); a(f'v_lshl_add_u32 v{VT_}, v{t1}, 3, v{VT_}')
        kkoff, h2off = 4096, 2048
    def wdma(q):
        a(f's_add_u32 {T0}, s{S_GO}, {q * cstep}')
        a(f's_add_u32 m0, s{S_M0}, {(q & 3) * 32768}')
        for i in range(8):
            a('s_nop 0')
            a(f'buffer_load_dwordx4 v{VD}, s[{SW}:{SW+3}], {T0} offen lds')
            if i < 7:
                a(f's_add_u32 {T0}, {T0}, {istep}'); a('s_add_u32 m0, m0, 1024')
    TLV = [240, 241, 242]
    tl_init(a, TLV)
    VTJ = [84, 85, 86, 87]
    if GU:
        for j in range(4):
            a(f's_xor_b32 {T0}, {W}, {j}'); a(f's_lshl_b32 {T0}, {T0}, 11'); a(f'v_add_u32 v{VTJ[j]}, {T0}, v{VT_}')
    for q in range(min(4, nch)): wdma(q)
    for q in range(nch):
        left = min(nch, max(4, q + 4)) - (q + 1)
        a(f's_waitcnt vmcnt({8 * left})')
        a('s_barrier')
        if GU:
            for j in range(4): a(f'v_add_u32 v{88+j}, {(q & 3) * 32768}, v{VTJ[j]}')
        else:
            a(f'v_add_u32 v{t1}, {(q & 3) * 32768}, v{VT_}')
        for kk in range(8):
            kb = 8 * q + kk
            if GU: ad, off = 88 + (kk & 3), (kk & 4) * kkoff
            else:  ad, off = t1, kk * kkoff
            a(f'ds_read_b64_tr_b16 a[{4*kb}:{4*kb+1}], v{ad} offset:{off}')
            a(f'ds_read_b64_tr_b16 a[{4*kb+2}:{4*kb+3}], v{ad} offset:{off + h2off}')
            if kk % 4 == 3: a('s_waitcnt lgkmcnt(0)')
        a('s_barrier')
        if q + 4 < nch: wdma(q + 4)
    S_XO, S_XM0, S_OO = 44, 45, 46
    S_EXL = 47
    xstride = {'WO': 262144, 'GU': 65536, 'DN': 229376}[kind]
    if kind == 'WO':   a(f's_lshl_b32 s{S_XO}, s{KS_}, 16')
    elif kind == 'DN': a(f's_mul_i32 s{S_XO}, s{KS_}, {56*1024}')
    else:              a(f's_mov_b32 s{S_XO}, 0')
    a(f's_lshl_b32 {T0}, {W}, 10'); a(f's_add_u32 s{S_XO}, s{S_XO}, {T0}')
    a(f's_lshl_b32 s{S_XM0}, {W}, 10')
    if GU:
        a(f's_lshl_b32 {T0}, s{CB_}, 2'); a(f's_add_u32 {T0}, {T0}, {W}'); a(f's_lshl_b32 s{S_OO}, {T0}, 10')
        ostride = 229376
        a(f'v_mov_b32 v{VONES}, 0x3f803f80')
        for r in range(4): a(f'v_mov_b32 v{XF+r}, 0x3f803f80')
        a('s_nop 1')
        for kb in range(64):
            c = '0' if kb == 0 else f'v[{CS}:{CS+15}]'
            a(f'v_mfma_f32_32x32x16_bf16 v[{CS}:{CS+15}], a[{4*kb}:{4*kb+3}], v[{XF}:{XF+3}], {c}')
        a(f'v_lshrrev_b32 v{VSTW}, 2, v{L16}')
        a(f'v_and_b32 v{VSTR}, 31, v{LN}'); a(f'v_lshlrev_b32 v{VSTR}, 2, v{VSTR}'); a(f'v_add_u32 v{VSTR}, {L_ST}, v{VSTR}')
        a(f's_lshl_b32 {T0}, {W}, 8'); a(f's_add_u32 {T0}, {T0}, {L_ST}'); a(f'v_add_u32 v{VSTW}, {T0}, v{VSTW}')
    else:
        a(f's_lshl_b32 {T0}, s{CB_}, 2'); a(f's_add_u32 {T1}, {T0}, {W}'); a(f's_lshl_b32 {T1}, {T1}, 2')
        a(f's_add_u32 {T1}, {T1}, s{KS_}'); a(f's_lshl_b32 s{S_OO}, {T1}, 12')
        a(f's_add_u32 {T1}, {T0}, s{KS_}'); a(f's_lshl_b32 s{S_EXL}, {T1}, 14')
        fx = F_XW if kind == 'WO' else F_XD
        a(f's_lshl_b32 {T2}, {T1}, 4'); a(f's_add_u32 {T2}, {T2}, {fx}'); a(f'v_mov_b32 v{VXP}, {T2}')
        a(f's_add_u32 {T1}, {T0}, {W}'); a(f's_lshl_b32 {T1}, {T1}, 4'); a(f's_lshl_b32 {T2}, s{KS_}, 2')
        a(f's_add_u32 {T1}, {T1}, {T2}'); a(f's_add_u32 {T1}, {T1}, {fx}'); a(f'v_mov_b32 v{VXF}, {T1}')
        mm, hh, sp = 84, 85, 86
        a(f'v_and_b32 v{mm}, 15, v{LN}'); a(f's_lshr_b32 {T0}, {W}, 1'); a(f's_lshl_b32 {T0}, {T0}, 4'); a(f'v_add_u32 v{mm}, {T0}, v{mm}')
        a(f'v_bfe_u32 v{hh}, v{LN}, 4, 1'); a(f'v_lshrrev_b32 v{sp}, 5, v{LN}')
        a(f'v_lshl_add_u32 v87, v{hh}, 5, v{mm}'); a(f'v_lshlrev_b32 v87, 4, v87')
        a(f's_and_b32 {T0}, {W}, 1')
        a(f's_lshl_b32 {T1}, {T0}, 11'); a(f'v_lshl_add_u32 v{VEX}, v{sp}, 10, v87'); a(f'v_add_u32 v{VEX}, {T1}, v{VEX}')
        a(f's_lshl_b32 {T1}, s{CB_}, 3'); a(f's_lshl_b32 {T2}, s{KS_}, 1'); a(f's_add_u32 {T1}, {T1}, {T2}'); a(f's_add_u32 {T1}, {T1}, {T0}')
        a(f's_lshl_b32 {T2}, {T1}, 10'); a(f'v_lshl_add_u32 v{VFM}, v{sp}, 3, v87'); a(f'v_add_u32 v{VFM}, {T2}, v{VFM}')
        a(f's_lshl_b32 {T2}, {T1}, 5'); a(f'v_lshlrev_b32 v{VRM}, 11, v{mm}'); a(f'v_lshl_add_u32 v{VRM}, v{sp}, 4, v{VRM}')
        a(f'v_lshl_add_u32 v{VRM}, v{hh}, 3, v{VRM}'); a(f'v_add_u32 v{VRM}, {T2}, v{VRM}')
        for r in range(4): a(f'v_mov_b32 v{VNEG+r}, -1')
        if kind == 'WO': a.srd(SR, 40, 4*MB)
        else:            a.srd(SR, S_PWS, 4*MB, add=WS_HB)
    if kind == 'WO':
        a(f'v_and_b32 v{VPA}, 7, v{LN}'); a(f'v_lshlrev_b32 v{VPA}, 2, v{VPA}')
        a(f's_lshl_b32 {T0}, s{KS_}, 5'); a(f's_add_u32 {T0}, {T0}, {F_AF}'); a(f'v_add_u32 v{VPA}, {T0}, v{VPA}')
        pw = 1
    elif GU:
        a(f'v_and_b32 v{VPA}, 31, v{LN}'); a(f'v_lshlrev_b32 v{VPA}, 4, v{VPA}'); a(f'v_add_u32 v{VPA}, {F_WF}, v{VPA}')
        pw = 4
    else:
        a(f'v_min_u32 v{VPA}, 13, v{LN}'); a(f'v_lshlrev_b32 v{VPA}, 4, v{VPA}')
        a(f's_mul_i32 {T0}, s{KS_}, {14*16}'); a(f's_add_u32 {T0}, {T0}, {F_GF}'); a(f'v_add_u32 v{VPA}, {T0}, v{VPA}')
        pw = 4
    if GU:
        a(f's_lshl_b32 {T0}, s{CB_}, 4'); fo = F_GF
    else:
        a(f's_lshl_b32 {T0}, s{KS_}, 3'); a(f's_add_u32 {T0}, {T0}, s{CB_}'); a(f's_lshl_b32 {T0}, {T0}, 4')
        fo = F_WF
    a(f's_lshl_b32 {T1}, {W}, 2'); a(f's_add_u32 {T0}, {T0}, {T1}'); a(f'v_mov_b32 v{VFA}, {T0}')
    a(f'v_mov_b32 v{VONE}, 1')
    a(f'v_mov_b32 v{VOUT}, {L_BC}')
    a(f's_mov_b32 s{S_SEG}, 0'); a(f's_mov_b32 s{S_EARLY}, 0')
    for j in range(4 if GU else 1):
        if GU:
            a(f's_xor_b32 {T0}, {W}, {j}'); a(f's_lshl_b32 {T0}, {T0}, 10'); a(f'v_add_u32 v{VXR[j]}, {T0}, v{L16}')
        else:
            a(f'v_mov_b32 v{VXR[j]}, v{L16}')

    def xdma(add):
        a(f's_add_u32 {T1}, s{S_SEG}, {add}')
        a(f's_mul_i32 {T0}, {T1}, {xstride}'); a(f's_add_u32 {T0}, {T0}, s{S_XO}')
        a(f's_and_b32 {T1}, {T1}, 1'); a(f's_lshl_b32 {T1}, {T1}, 16'); a(f's_add_u32 m0, {T1}, s{S_XM0}')
        for i in range(nd):
            a('s_nop 0')
            a(f'buffer_load_dwordx4 v{L16}, s[{SX}:{SX+3}], {T0} offen lds')
            if i < nd - 1:
                a(f's_add_u32 {T0}, {T0}, 4096'); a('s_add_u32 m0, m0, 4096')

    def pipe_loop():
        top, have = f'{N}_TOP', f'{N}_HAVE'
        S_DA, S_SLOT = 53, 48
        E = f's{S_EARLY}'
        nxs = 1 if GU else 4
        bounds = [0, 16, 32, 48, nk] if nk == 64 else [0, 16, 32, 44, 56]
        D = 6
        def done_stamp(prev):
            if not mega.TL: return
            a('s_memrealtime s[88:89]'); a('s_waitcnt lgkmcnt(0)')
            a(f's_sub_u32 m0, s{S_SEG}, {1 if prev else 0}'); a('s_nop 3'); a(f'v_writelane_b32 v{TLV[1]}, s88, m0')
        def flag(prev):
            seg_foff(a, -1 if prev else 0)
            a('s_mov_b64 exec, 1')
            a(f'buffer_store_dword v{VONE}, v{VFA}, {FLS}, s{S_FOFF} offen offset:{fo} sc1')
            a('s_mov_b64 exec, -1')
        def rd(kb, slot):
            r = XF + 4 * (slot % NR)
            if GU: return f'ds_read_b128 v[{r}:{r+3}], v{VXR[kb & 3]} offset:{(kb & ~3) * 1024}'
            return f'ds_read_b128 v[{r}:{r+3}], v{VXR[0]} offset:{kb * 1024}'
        def mf(kb, slot):
            r = XF + 4 * (slot % NR); ac = AC0 if slot % 2 == 0 else AC1
            c = '0' if slot < 2 else f'v[{ac}:{ac+15}]'
            return f'v_mfma_f32_32x32x16_bf16 v[{ac}:{ac+15}], a[{4*kb}:{4*kb+3}], v[{r}:{r+3}], {c}'
        def stats(slot, i):
            r = XF + 4 * (slot % NR) + i
            lo, hi = UL + 2 * (i & 1), UH + 2 * (i & 1)
            a(f'v_lshlrev_b32 v{lo}, 16, v{r}'); a(f'v_and_b32 v{hi}, 0xffff0000, v{r}')
            a(f'v_fmac_f32 v{QA}, v{lo}, v{lo}'); a(f'v_add_f32 v{SA}, v{SA}, v{lo}')
            a(f'v_fmac_f32 v{QB}, v{hi}, v{hi}'); a(f'v_add_f32 v{SB_}, v{SB_}, v{hi}')
        def dma_groups(add):
            g0 = [f's_add_u32 s{S_DA+1}, s{S_SEG}, {add}', f's_mul_i32 s{S_DA}, s{S_DA+1}, {xstride}',
                  f's_add_u32 s{S_DA}, s{S_DA}, s{S_XO}', f's_and_b32 s{S_DA+1}, s{S_DA+1}, 1',
                  f's_lshl_b32 s{S_DA+1}, s{S_DA+1}, 16', f's_add_u32 m0, s{S_DA+1}, s{S_XM0}']
            gs = []
            for i in range(nd):
                g = ['s_nop 0', f'buffer_load_dwordx4 v{L16}, s[{SX}:{SX+3}], s{S_DA} offen lds']
                if i < nd - 1: g += [f's_add_u32 s{S_DA}, s{S_DA}, 4096', 's_add_u32 m0, m0, 4096']
                gs.append(g)
            gs[0] = g0 + gs[0]
            return gs
        def order(c):
            ks = list(range(bounds[c], bounds[c + 1]))
            if GU and c == 3: ks = [48, 52, 56, 60] + [k for k in ks if k & 3]
            return ks
        def pro(c, lq, base):
            ks = order(c)
            for i in range(D): lq.op(rd(ks[i], base + i), ('x', base + i))
        def body(c, lq, base, dma=None):
            ks = order(c); last = c == 3
            sw = []
            if GU:
                for i, kb in enumerate(ks):
                    if (kb & 3) == 0: sw += [(i, base + i, d) for d in range(4)]
            per_gap = 2 if (GU and last) else 1
            dma = list(dma or [])
            for i, kb in enumerate(ks):
                lq.wait(('x', base + i))
                a(mf(kb, base + i))
                if dma:
                    k = -(-len(dma) // (len(ks) - i))
                    for _ in range(k): a.ext(dma.pop(0))
                n = 0
                while sw and sw[0][0] <= i and n < per_gap:
                    assert i - (sw[0][1] - base) <= NR - D - 1
                    stats(sw[0][1], sw[0][2]); sw.pop(0); n += 1
                if i + D < len(ks): lq.op(rd(ks[i + D], base + i + D), ('x', base + i + D))
                if GU and last:
                    if i == 8:
                        assert not sw
                        a(f'v_add_f32 v{SA}, v{SA}, v{SB_}'); a(f'v_add_f32 v{QA}, v{QA}, v{QB}')
                        a('s_nop 1')
                        a(f'v_permlane32_swap_b32 v{SA}, v{QA}')
                        a('s_nop 1')
                        a(f'v_add_f32 v{SA}, v{SA}, v{QA}')
                        lq.op(f'ds_write_b32 v{VSTW}, v{SA}', 'stw')
                    if i == 9:
                        lq.wait('stw')
                        a('s_barrier')
                        for w in range(4):
                            lq.op(f'ds_read2_b32 v[{STT+2*w}:{STT+2*w+1}], v{VSTR} offset0:{64*w} offset1:{64*w+32}', ('st', w))
                    if i == 12:
                        lq.wait(('st', 3))
                        for (d, x, y) in [(0, 0, 2), (1, 1, 3), (4, 4, 6), (5, 5, 7), (0, 0, 4), (1, 1, 5)]:
                            a(f'v_add_f32 v{STT+d}, v{STT+x}, v{STT+y}')
                        a(f'v_mul_f32 v{NMU}, 0x3a800000, v{STT}')
                        a(f'v_mul_f32 v{RSTD}, 0x3a800000, v{STT+1}')
                    if i == 13:
                        a(f'v_fma_f32 v{RSTD}, -v{NMU}, v{NMU}, v{RSTD}')
                        a(f'v_max_f32 v{RSTD}, 0, v{RSTD}')
                        bf16_round(a, RSTD, RSTD)
                        a(f'v_add_f32 v{RSTD}, 0x3727c5ac, v{RSTD}')
                        bf16_round(a, RSTD, RSTD)
                    if i == 14:
                        a(f'v_sqrt_f32 v{RSTD}, v{RSTD}')
                        bf16_round(a, NMU, NMU)
                        bf16_round(a, RSTD, RSTD)
                        a(f'v_rcp_f32 v{RSTD}, v{RSTD}')
            assert not sw and not dma
        def ex_loads():
            for s_ in range(4):
                a(f'buffer_load_dwordx4 v[{EXL+4*s_}:{EXL+4*s_+3}], v{VEX}, s[{SO}:{SO+3}], s{S_E0+s_} offen sc1')
        def ex_finish(prev):
            lp = a.newlabel(N + '_X'); dn = lp + '_D'
            a.label(lp)
            a('s_waitcnt vmcnt(0)')
            rc.max_chain(a, t1, list(range(EXL, EXL + 16)))
            a(f'v_cmp_eq_u32 vcc, -1, v{t1}')
            a(f's_cbranch_vccz {dn}')
            a(f's_cmp_eq_u32 s{S_BUDW}, 0'); a(f's_cbranch_scc1 {dn}')
            a(f's_sub_u32 s{S_BUDW}, s{S_BUDW}, 1')
            ex_loads()
            a(f's_branch {lp}')
            a.label(dn)
            pk = lambda d, x, y: a(f'v_pk_add_f32 v[{d}:{d+1}], v[{x}:{x+1}], v[{y}:{y+1}]')
            pk(EXL, EXL, EXL + 4); pk(EXL + 2, EXL + 2, EXL + 6); pk(EXL + 8, EXL + 8, EXL + 12); pk(EXL + 10, EXL + 10, EXL + 14)
            pk(EXL, EXL, EXL + 8); pk(EXL + 2, EXL + 2, EXL + 10)
            a(f'v_lshlrev_b32 v{EXL+8}, 16, v{RES}'); a(f'v_and_b32 v{EXL+9}, 0xffff0000, v{RES}')
            a(f'v_cvt_pk_bf16_f32 v{EXL}, v{EXL}, v{EXL+1}'); a(f'v_cvt_pk_bf16_f32 v{EXL+2}, v{EXL+2}, v{EXL+3}')
            a(f'v_lshlrev_b32 v{EXL+10}, 16, v{RES+1}'); a(f'v_and_b32 v{EXL+11}, 0xffff0000, v{RES+1}')
            a(f'v_lshlrev_b32 v{EXL+4}, 16, v{EXL}'); a(f'v_and_b32 v{EXL+5}, 0xffff0000, v{EXL}')
            a(f'v_lshlrev_b32 v{EXL+6}, 16, v{EXL+2}'); a(f'v_and_b32 v{EXL+7}, 0xffff0000, v{EXL+2}')
            pk(EXL + 4, EXL + 4, EXL + 8); pk(EXL + 6, EXL + 6, EXL + 10)
            a(f's_lshl_b32 {T2}, s{S_SEG}, 16')
            if prev: a(f's_sub_u32 {T2}, {T2}, 65536')
            a(f'v_cvt_pk_bf16_f32 v{EXL}, v{EXL+4}, v{EXL+5}'); a(f'v_cvt_pk_bf16_f32 v{EXL+1}, v{EXL+6}, v{EXL+7}')
            if kind == 'WO':
                a(f'buffer_store_dwordx2 v[{EXL}:{EXL+1}], v{VFM}, s[{SRES}:{SRES+3}], {T2} offen sc1')
            else:
                a(f'buffer_store_dwordx2 v[{EXL}:{EXL+1}], v{VRM}, s[{SRES}:{SRES+3}], {T2} offen')
            mode_store(a, [f'buffer_store_dwordx4 v[{VNEG}:{VNEG+3}], v{VEX}, s[{SO}:{SO+3}], s{S_E0+s_} offen' for s_ in range(4)])

        tl_stamp(a, TLV[2], 2)
        if prof:
            for i in range(12): a(f's_mov_b32 s{60+i}, 0')
            a('s_memtime s[56:57]'); a('s_waitcnt lgkmcnt(0)'); a('s_mov_b32 s58, s56')
        a.label(top)
        a(f's_cmp_lg_u32 {E}, 0'); a(f's_cbranch_scc1 {have}')
        nw = f'{N}_NW0'
        a(f's_cmp_lg_u32 {W}, 0'); a(f's_cbranch_scc1 {nw}')
        seg_foff(a)
        poll(a, N + '_P', VPA, VPF, pw, t1)
        a.label(nw)
        a('s_barrier')
        xdma(0)
        a.label(have)
        tl_stamp(a, TLV[0])
        ST(0)
        if GU:
            for r in (SA, SB_, QA, QB): a(f'v_mov_b32 v{r}, 0')
        lq = LQ(a)
        pos = 0
        for c in range(4):
            need = (bounds[c + 1] + 3) // 4
            if c < 3:
                ln_, lj = a.newlabel(N + '_NP'), a.newlabel(N + '_PJ')
                a(f's_cmp_eq_u32 {E}, 0'); a(f's_cbranch_scc1 {ln_}')
                if c < 2:
                    a(f's_waitcnt vmcnt({nd - need + nxs})')
                    if c == 1 and not GU: ex_loads()
                elif GU:
                    a('s_waitcnt vmcnt(0)')
                    flag(True); done_stamp(True)
                else:
                    ex_finish(True)
                a(f's_branch {lj}')
                a.label(ln_)
                a(f's_waitcnt vmcnt({nd - need})')
                a.label(lj)
                if c == 2:
                    nw2 = f'{N}_NW1'
                    a(f's_cmp_lg_u32 {W}, 0'); a(f's_cbranch_scc1 {nw2}')
                    seg_foff(a, 1)
                    flag_load(a, VPA, VPF, pw)
                    a.label(nw2)
            else:
                a('s_waitcnt vmcnt(0)')
                if kind == 'WO' or (kind == 'DN' and mega.TL):
                    l0 = a.newlabel(N + '_NF')
                    a(f's_cmp_eq_u32 {E}, 0'); a(f's_cbranch_scc1 {l0}')
                    if kind == 'WO': flag(True)
                    done_stamp(True)
                    a.label(l0)
                nw3 = f'{N}_NW2'
                a(f's_cmp_lg_u32 {W}, 0'); a(f's_cbranch_scc1 {nw3}')
                flag_test(a, VPF, pw, t1)
                a(f's_cmp_eq_u64 vcc, 0'); a(f's_cselect_b32 {T0}, 1, 0')
                a(f'v_mov_b32 v{t1}, {T0}')
                a(f'ds_write_b32 v{VOUT}, v{t1}')
                a('s_waitcnt lgkmcnt(0)')
                a.label(nw3)
            a('s_barrier')
            if c == 0: ST(1)
            if c == 3: ST(2)
            if c < 3:
                pro(c, lq, pos)
                body(c, lq, pos)
            else:
                lq.op(f'ds_read_b32 v{t2}, v{VOUT}', 'early')
                if not GU:
                    a(f's_lshl_b32 {T2}, s{S_SEG}, 16')
                    a(f'buffer_load_dwordx2 v[{RES}:{RES+1}], v{VRM if kind == "WO" else VFM}, s[{SR}:{SR+3}], {T2} offen')
                pro(c, lq, pos)
                lq.wait('early')
                a(f'v_readfirstlane_b32 {E}, v{t2}')
                if prof: a(f's_add_u32 s70, s70, {E}')
                a(f's_cmp_ge_u32 s{S_SEG}, {nseg - 1}'); a(f's_cselect_b32 {E}, 0, {E}')
                lb, lj = f'{N}_LB', f'{N}_LJ'
                a(f's_cmp_eq_u32 {E}, 0'); a(f's_cbranch_scc1 {lb}')
                lqa = LQ(a); lqa.q = list(lq.q)
                body(c, lqa, pos, dma_groups(1))
                a(f's_branch {lj}')
                a.label(lb)
                body(c, lq, pos)
                a.label(lj)
            pos += len(order(c))
            lq.q = []
        ST(3)
        fin = f'{N}_FIN'
        if GU:
            a(f's_mul_i32 {T2}, s{S_SEG}, {ostride}'); a(f's_add_u32 {T2}, {T2}, s{S_OO}')
            for j in range(4): a(f'v_xor_b32 v{VXR[j]}, 0x10000, v{VXR[j]}')
            a('s_nop 7'); a('s_nop 4')
            for r in range(0, 16, 2):
                a(f'v_pk_add_f32 v[{AC0+r}:{AC0+r+1}], v[{AC0+r}:{AC0+r+1}], v[{AC1+r}:{AC1+r+1}]')
            for r in range(0, 16, 2):
                a(f'v_pk_fma_f32 v[{AC0+r}:{AC0+r+1}], v[{CS+r}:{CS+r+1}], v[{NMU}:{NMU+1}], v[{AC0+r}:{AC0+r+1}] op_sel_hi:[1,0,1] neg_lo:[0,1,0] neg_hi:[0,1,0]')
            for r in range(0, 16, 2):
                a(f'v_pk_mul_f32 v[{AC0+r}:{AC0+r+1}], v[{AC0+r}:{AC0+r+1}], v[{RSTD}:{RSTD+1}] op_sel_hi:[1,0]')
            G, U, T = AC0, AC0 + 8, TMP
            for r in range(8):
                a(f'v_cvt_pk_bf16_f32 v{T+r}, v{AC0+2*r}, v{AC0+2*r+1}')
            for r in range(4):
                a(f'v_lshlrev_b32 v{G+2*r}, 16, v{T+r}'); a(f'v_and_b32 v{G+2*r+1}, 0xffff0000, v{T+r}')
            for r in range(8): a(f'v_mul_f32 v{G+r}, 0xbfb8aa3b, v{G+r}')
            for r in range(4):
                a(f'v_lshlrev_b32 v{U+2*r}, 16, v{T+4+r}'); a(f'v_and_b32 v{U+2*r+1}, 0xffff0000, v{T+4+r}')
            for r in range(8): a(f'v_exp_f32 v{G+r}, v{G+r}')
            for r in range(8): a(f'v_add_f32 v{G+r}, 1.0, v{G+r}')
            for r in range(8): a(f'v_rcp_f32 v{G+r}, v{G+r}')
            a('s_nop 0')
            for r in range(4): a(f'v_cvt_pk_bf16_f32 v{T+r}, v{G+2*r}, v{G+2*r+1}')
            for r in range(4):
                a(f'v_lshlrev_b32 v{G+2*r}, 16, v{T+r}'); a(f'v_and_b32 v{G+2*r+1}, 0xffff0000, v{T+r}')
            for r in range(8): a(f'v_mul_f32 v{G+r}, v{G+r}, v{U+r}')
            for r in range(4): a(f'v_cvt_pk_bf16_f32 v{T+r}, v{G+2*r}, v{G+2*r+1}')
            a(f'buffer_store_dwordx4 v[{T}:{T+3}], v{L16}, s[{SO}:{SO+3}], {T2} offen sc1')
            ST(4)
            a(f's_cmp_lg_u32 {E}, 0'); a(f's_cbranch_scc1 {fin}')
            a('s_waitcnt vmcnt(0)')
            flag(False); done_stamp(False)
            a.label(fin)
        else:
            a(f's_and_b32 s{S_SLOT}, s{S_SEG}, 1'); a(f's_lshl_b32 s{S_SLOT}, s{S_SLOT}, 19')
            a(f's_add_u32 {T2}, s{S_SLOT}, s{S_OO}')
            a(f'v_xor_b32 v{VXR[0]}, 0x10000, v{VXR[0]}')
            a('s_nop 7'); a('s_nop 4')
            for r in range(0, 16, 2):
                a(f'v_pk_add_f32 v[{AC0+r}:{AC0+r+1}], v[{AC0+r}:{AC0+r+1}], v[{AC1+r}:{AC1+r+1}]')
            mode_store(a, [f'buffer_store_dwordx4 v[{AC0+4*q}:{AC0+4*q+3}], v{L16}, s[{SO}:{SO+3}], {T2} offen offset:{q*1024}' for q in range(4)])
            a(f's_add_u32 s{S_E0}, s{S_SLOT}, s{S_EXL}')
            for s_ in range(1, 4): a(f's_add_u32 s{S_E0+s_}, s{S_E0}, {4096*s_}')
            ST(4)
            a(f's_cmp_lg_u32 {E}, 0'); a(f's_cbranch_scc1 {fin}')
            ex_loads()
            ex_finish(False)
            ST(6)
            if kind == 'WO' or mega.TL: a('s_waitcnt vmcnt(0)')
            if kind == 'WO': flag(False)
            done_stamp(False)
            a.label(fin)
        ST(7)
        a(f's_add_u32 s{S_SEG}, s{S_SEG}, 1')
        a(f's_cmp_lt_u32 s{S_SEG}, {nseg}'); a(f's_cbranch_scc1 {top}')

    if PIPE:
        pipe_loop()
    else:
        top, have = f'{N}_TOP', f'{N}_HAVE'
        tl_stamp(a, TLV[2], 2)
        if prof:
            for i in range(12): a(f's_mov_b32 s{60+i}, 0')
            a('s_memtime s[56:57]'); a('s_waitcnt lgkmcnt(0)'); a('s_mov_b32 s58, s56')
        a.label(top)
        a(f's_cmp_lg_u32 s{S_EARLY}, 0'); a(f's_cbranch_scc1 {have}')
        nw = f'{N}_NW0'
        a(f's_cmp_lg_u32 {W}, 0'); a(f's_cbranch_scc1 {nw}')
        seg_foff(a)
        poll(a, N + '_P', VPA, VPF, pw, t1)
        a.label(nw)
        a('s_barrier')
        xdma(0)
        a.label(have)
        tl_stamp(a, TLV[0])
        ST(0)
        nw2 = f'{N}_NW1'
        a(f's_cmp_lg_u32 {W}, 0'); a(f's_cbranch_scc1 {nw2}')
        seg_foff(a, 1)
        flag_load(a, VPA, VPF, pw)
        a.label(nw2)
        if GU:
            for r in (SA, SB_, QA, QB): a(f'v_mov_b32 v{r}, 0')
        bounds = [0, 16, 32, 48, nk] if nk == 64 else [0, 16, 32, 44, 56]
        lq = LQ(a)
        pos = 0
        def rd(kb, slot):
            r = XF + 4 * (slot % NR)
            if GU: return f'ds_read_b128 v[{r}:{r+3}], v{VXR[kb & 3]} offset:{(kb & ~3) * 1024}'
            return f'ds_read_b128 v[{r}:{r+3}], v{VXR[0]} offset:{kb * 1024}'
        def mf(kb, slot):
            r = XF + 4 * (slot % NR); ac = AC0 if slot % 2 == 0 else AC1
            c = '0' if slot < 2 else f'v[{ac}:{ac+15}]'
            return f'v_mfma_f32_32x32x16_bf16 v[{ac}:{ac+15}], a[{4*kb}:{4*kb+3}], v[{r}:{r+3}], {c}'
        def stats(slot, i):
            r = XF + 4 * (slot % NR) + i
            lo, hi = UL + 2 * (i & 1), UH + 2 * (i & 1)
            a(f'v_lshlrev_b32 v{lo}, 16, v{r}'); a(f'v_and_b32 v{hi}, 0xffff0000, v{r}')
            a(f'v_fmac_f32 v{QA}, v{lo}, v{lo}'); a(f'v_add_f32 v{SA}, v{SA}, v{lo}')
            a(f'v_fmac_f32 v{QB}, v{hi}, v{hi}'); a(f'v_add_f32 v{SB_}, v{SB_}, v{hi}')
        for c in range(4):
            k0, k1 = bounds[c], bounds[c + 1]
            need = (k1 + 3) // 4
            a(f's_waitcnt vmcnt({nd - need})')
            last = c == 3
            if last:
                nw3 = f'{N}_NW2'
                a(f's_cmp_lg_u32 {W}, 0'); a(f's_cbranch_scc1 {nw3}')
                a('s_waitcnt vmcnt(0)')
                flag_test(a, VPF, pw, t1)
                a(f's_cmp_eq_u64 vcc, 0'); a(f's_cselect_b32 {T0}, 1, 0')
                a(f'v_mov_b32 v{t1}, {T0}')
                a(f'ds_write_b32 v{VOUT}, v{t1}')
                a('s_waitcnt lgkmcnt(0)')
                a.label(nw3)
            a('s_barrier')
            if c == 0: ST(1)
            if last: ST(2)
            if last:
                lq.op(f'ds_read_b32 v{t2}, v{VOUT}', 'early')
                if not GU:
                    a(f's_lshl_b32 {T2}, s{S_SEG}, 16')
                    a(f'buffer_load_dwordx2 v[{RES}:{RES+1}], v{VRM if kind == "WO" else VFM}, s[{SR}:{SR+3}], {T2} offen')
            D = 6
            ks = list(range(k0, k1))
            if GU and last:
                ks = [48, 52, 56, 60] + [k for k in ks if k & 3]
            base = pos
            sw = []
            if GU:
                for i, kb in enumerate(ks):
                    if (kb & 3) == 0: sw += [(i, base + i, d) for d in range(4)]
            per_gap = 2 if (GU and last) else 1
            for i in range(D): lq.op(rd(ks[i], base + i), ('x', base + i))
            for i, kb in enumerate(ks):
                lq.wait(('x', base + i))
                a(mf(kb, base + i))
                n = 0
                while sw and sw[0][0] <= i and n < per_gap:
                    assert i - (sw[0][1] - base) <= NR - D - 1
                    stats(sw[0][1], sw[0][2]); sw.pop(0); n += 1
                if i + D < len(ks): lq.op(rd(ks[i + D], base + i + D), ('x', base + i + D))
                if GU and last:
                    if i == 8:
                        assert not sw
                        a(f'v_add_f32 v{SA}, v{SA}, v{SB_}'); a(f'v_add_f32 v{QA}, v{QA}, v{QB}')
                        a('s_nop 1')
                        a(f'v_permlane32_swap_b32 v{SA}, v{QA}')
                        a('s_nop 1')
                        a(f'v_add_f32 v{SA}, v{SA}, v{QA}')
                        lq.op(f'ds_write_b32 v{VSTW}, v{SA}', 'stw')
                    if i == 9:
                        lq.wait('stw')
                        a('s_barrier')
                        for w in range(4):
                            lq.op(f'ds_read2_b32 v[{STT+2*w}:{STT+2*w+1}], v{VSTR} offset0:{64*w} offset1:{64*w+32}', ('st', w))
                    if i == 12:
                        lq.wait(('st', 3))
                        for (d, x, y) in [(0, 0, 2), (1, 1, 3), (4, 4, 6), (5, 5, 7), (0, 0, 4), (1, 1, 5)]:
                            a(f'v_add_f32 v{STT+d}, v{STT+x}, v{STT+y}')
                        a(f'v_mul_f32 v{NMU}, 0x3a800000, v{STT}')
                        a(f'v_mul_f32 v{RSTD}, 0x3a800000, v{STT+1}')
                    if i == 13:
                        a(f'v_fma_f32 v{RSTD}, -v{NMU}, v{NMU}, v{RSTD}')
                        a(f'v_max_f32 v{RSTD}, 0, v{RSTD}')
                        bf16_round(a, RSTD, RSTD)
                        a(f'v_add_f32 v{RSTD}, 0x3727c5ac, v{RSTD}')
                        bf16_round(a, RSTD, RSTD)
                    if i == 14:
                        a(f'v_sqrt_f32 v{RSTD}, v{RSTD}')
                        bf16_round(a, NMU, NMU)
                        bf16_round(a, RSTD, RSTD)
                        a(f'v_rcp_f32 v{RSTD}, v{RSTD}')
            assert not sw
            pos += len(ks)
            lq.q = []
        ST(3)
        a(f'v_readfirstlane_b32 s{S_EARLY}, v{t2}')
        if prof: a(f's_add_u32 s70, s70, s{S_EARLY}')
        a(f's_cmp_ge_u32 s{S_SEG}, {nseg - 1}'); a(f's_cselect_b32 s{S_EARLY}, 0, s{S_EARLY}')
        late, fin = f'{N}_LATE', f'{N}_FIN'
        if GU:
            a(f's_mul_i32 {T2}, s{S_SEG}, {ostride}'); a(f's_add_u32 {T2}, {T2}, s{S_OO}')
            for j in range(4): a(f'v_xor_b32 v{VXR[j]}, 0x10000, v{VXR[j]}')
            a('s_nop 7'); a('s_nop 4')
            for r in range(0, 16, 2):
                a(f'v_pk_add_f32 v[{AC0+r}:{AC0+r+1}], v[{AC0+r}:{AC0+r+1}], v[{AC1+r}:{AC1+r+1}]')
            for r in range(0, 16, 2):
                a(f'v_pk_fma_f32 v[{AC0+r}:{AC0+r+1}], v[{CS+r}:{CS+r+1}], v[{NMU}:{NMU+1}], v[{AC0+r}:{AC0+r+1}] op_sel_hi:[1,0,1] neg_lo:[0,1,0] neg_hi:[0,1,0]')
            for r in range(0, 16, 2):
                a(f'v_pk_mul_f32 v[{AC0+r}:{AC0+r+1}], v[{AC0+r}:{AC0+r+1}], v[{RSTD}:{RSTD+1}] op_sel_hi:[1,0]')
            G, U, T = AC0, AC0 + 8, TMP
            for r in range(8):
                a(f'v_cvt_pk_bf16_f32 v{T+r}, v{AC0+2*r}, v{AC0+2*r+1}')
            for r in range(4):
                a(f'v_lshlrev_b32 v{G+2*r}, 16, v{T+r}'); a(f'v_and_b32 v{G+2*r+1}, 0xffff0000, v{T+r}')
            for r in range(8): a(f'v_mul_f32 v{G+r}, 0xbfb8aa3b, v{G+r}')
            for r in range(4):
                a(f'v_lshlrev_b32 v{U+2*r}, 16, v{T+4+r}'); a(f'v_and_b32 v{U+2*r+1}, 0xffff0000, v{T+4+r}')
            for r in range(8): a(f'v_exp_f32 v{G+r}, v{G+r}')
            for r in range(8): a(f'v_add_f32 v{G+r}, 1.0, v{G+r}')
            for r in range(8): a(f'v_rcp_f32 v{G+r}, v{G+r}')
            a('s_nop 0')
            for r in range(4): a(f'v_cvt_pk_bf16_f32 v{T+r}, v{G+2*r}, v{G+2*r+1}')
            for r in range(4):
                a(f'v_lshlrev_b32 v{G+2*r}, 16, v{T+r}'); a(f'v_and_b32 v{G+2*r+1}, 0xffff0000, v{T+r}')
            for r in range(8): a(f'v_mul_f32 v{G+r}, v{G+r}, v{U+r}')
            for r in range(4): a(f'v_cvt_pk_bf16_f32 v{T+r}, v{G+2*r}, v{G+2*r+1}')
            a(f'buffer_store_dwordx4 v[{T}:{T+3}], v{L16}, s[{SO}:{SO+3}], {T2} offen sc1')
            a(f's_cmp_eq_u32 s{S_EARLY}, 0'); a(f's_cbranch_scc1 {late}')
            xdma(1)
            a(f's_waitcnt vmcnt({nd})')
            a(f's_branch {fin}')
            a.label(late)
            a('s_waitcnt vmcnt(0)')
            a.label(fin)
            ST(7)
            set_flag(a, VFA, VONE, fo)
        else:
            S_SLOT = 48
            a(f's_and_b32 s{S_SLOT}, s{S_SEG}, 1'); a(f's_lshl_b32 s{S_SLOT}, s{S_SLOT}, 19')
            a(f's_add_u32 {T2}, s{S_SLOT}, s{S_OO}')
            a(f'v_xor_b32 v{VXR[0]}, 0x10000, v{VXR[0]}')
            a('s_nop 7'); a('s_nop 4')
            for r in range(0, 16, 2):
                a(f'v_pk_add_f32 v[{AC0+r}:{AC0+r+1}], v[{AC0+r}:{AC0+r+1}], v[{AC1+r}:{AC1+r+1}]')
            mode_store(a, [f'buffer_store_dwordx4 v[{AC0+4*q}:{AC0+4*q+3}], v{L16}, s[{SO}:{SO+3}], {T2} offen offset:{q*1024}' for q in range(4)])
            ST(4)
            a(f's_add_u32 s{S_E0}, s{S_SLOT}, s{S_EXL}')
            for s_ in range(1, 4): a(f's_add_u32 s{S_E0+s_}, s{S_E0}, {4096*s_}')
            lp = a.newlabel(N + '_X'); dn = lp + '_D'
            a.label(lp)
            for s_ in range(4):
                a(f'buffer_load_dwordx4 v[{EXL+4*s_}:{EXL+4*s_+3}], v{VEX}, s[{SO}:{SO+3}], s{S_E0+s_} offen sc1')
            a('s_waitcnt vmcnt(0)')
            rc.max_chain(a, t1, list(range(EXL, EXL + 16)))
            a(f'v_cmp_eq_u32 vcc, -1, v{t1}')
            budget(a, lp, dn)
            ST(5)
            mode_store(a, [f'buffer_store_dwordx4 v[{VNEG}:{VNEG+3}], v{VEX}, s[{SO}:{SO+3}], s{S_E0+s_} offen' for s_ in range(4)])
            pk = lambda d, x, y: a(f'v_pk_add_f32 v[{d}:{d+1}], v[{x}:{x+1}], v[{y}:{y+1}]')
            pk(EXL, EXL, EXL + 4); pk(EXL + 2, EXL + 2, EXL + 6); pk(EXL + 8, EXL + 8, EXL + 12); pk(EXL + 10, EXL + 10, EXL + 14)
            pk(EXL, EXL, EXL + 8); pk(EXL + 2, EXL + 2, EXL + 10)
            a(f'v_lshlrev_b32 v{EXL+8}, 16, v{RES}'); a(f'v_and_b32 v{EXL+9}, 0xffff0000, v{RES}')
            a(f'v_cvt_pk_bf16_f32 v{EXL}, v{EXL}, v{EXL+1}'); a(f'v_cvt_pk_bf16_f32 v{EXL+2}, v{EXL+2}, v{EXL+3}')
            a(f'v_lshlrev_b32 v{EXL+10}, 16, v{RES+1}'); a(f'v_and_b32 v{EXL+11}, 0xffff0000, v{RES+1}')
            a(f'v_lshlrev_b32 v{EXL+4}, 16, v{EXL}'); a(f'v_and_b32 v{EXL+5}, 0xffff0000, v{EXL}')
            a(f'v_lshlrev_b32 v{EXL+6}, 16, v{EXL+2}'); a(f'v_and_b32 v{EXL+7}, 0xffff0000, v{EXL+2}')
            pk(EXL + 4, EXL + 4, EXL + 8); pk(EXL + 6, EXL + 6, EXL + 10)
            a(f's_lshl_b32 {T2}, s{S_SEG}, 16')
            a(f'v_cvt_pk_bf16_f32 v{EXL}, v{EXL+4}, v{EXL+5}'); a(f'v_cvt_pk_bf16_f32 v{EXL+1}, v{EXL+6}, v{EXL+7}')
            if kind == 'WO':
                a(f'buffer_store_dwordx2 v[{EXL}:{EXL+1}], v{VFM}, s[{SRES}:{SRES+3}], {T2} offen sc1')
            else:
                a(f'buffer_store_dwordx2 v[{EXL}:{EXL+1}], v{VRM}, s[{SRES}:{SRES+3}], {T2} offen')
            ST(6)
            a(f's_cmp_eq_u32 s{S_EARLY}, 0'); a(f's_cbranch_scc1 {late}')
            xdma(1)
            if kind == 'WO': a(f's_waitcnt vmcnt({nd})')
            a(f's_branch {fin}')
            a.label(late)
            if kind == 'WO' or mega.TL: a('s_waitcnt vmcnt(0)')
            a.label(fin)
            ST(7)
            if kind == 'WO': set_flag(a, VFA, VONE, fo)
        tl_stamp(a, TLV[1])
        a(f's_add_u32 s{S_SEG}, s{S_SEG}, 1')
        a(f's_cmp_lt_u32 s{S_SEG}, {nseg}'); a(f's_cbranch_scc1 {top}')
    tl_dump(a, TLV)
    if prof:
        a('s_waitcnt vmcnt(0)')
        a.srd(4, S_PWS, 1 << 20, add=0xF200000)
        a(f's_lshl_b32 {T0}, s{S_WID}, 2'); a(f's_add_u32 {T0}, {T0}, {W}'); a(f's_lshl_b32 {T0}, {T0}, 6')
        a('v_mov_b32 v1, 0')
        a('s_mov_b64 exec, 1')
        for i in range(11):
            a(f'v_mov_b32 v2, s{60+i}')
            a(f'buffer_store_dword v2, v1, s[4:7], {T0} offen offset:{4*i}')
        a('s_mov_b64 exec, -1')
        a('s_waitcnt vmcnt(0)')
```

```python
import sys; sys.path.insert(0,'gen')
from asmlib import *
import tasks, tasks2, mega, k_recc as rc
from mega import *
import mega2
from mega2 import role_gemmx, S_WM
from gemm2 import Eng, S_WAVE, S_T0, S_T1, S_T2
from tasks import S_RB, S_CB, S_KS, S_PW, S_PWS, S_OSRD, MB, task_gemm
from k_ln import bf16_round, reduce_bits345

def gen_prep(cfg):
    a = Asm()
    a('s_cmp_ge_u32 s2, 256')
    a('s_cbranch_scc1 PREP_END')
    a(f's_load_dwordx2 s[4:5], s[0:1], {KA_WS}')
    a(f's_load_dwordx2 s[6:7], s[0:1], {KA_MEM0}')
    a(f's_load_dwordx2 s[24:25], s[0:1], {KA_X}')
    a('v_and_b32 v21, 63, v0'); a('v_lshrrev_b32 v22, 6, v0'); a('s_nop 0'); a('v_readfirstlane_b32 s19, v22')
    a('v_and_b32 v24, 7, v21'); a('v_bfe_u32 v25, v21, 3, 1'); a('v_lshrrev_b32 v26, 4, v21')
    a('s_lshr_b32 s30, s2, 2'); a('s_and_b32 s31, s2, 3'); a('s_lshl_b32 s31, s31, 3')
    a('v_add_u32 v27, s31, v24')
    a('v_lshlrev_b32 v23, 11, v27'); a('v_lshl_add_u32 v23, v26, 5, v23'); a('v_lshl_add_u32 v23, v25, 3, v23')
    a('s_lshl_b32 s32, s19, 9'); a('s_lshl_b32 s33, s30, 16'); a('s_add_u32 s32, s32, s33'); a('v_add_u32 v23, s32, v23')
    a('v_lshl_add_u32 v28, v25, 5, v27'); a('v_lshlrev_b32 v28, 4, v28'); a('v_lshl_add_u32 v28, v26, 10, v28')
    a('s_lshl_b32 s32, s19, 14'); a('s_add_u32 s32, s32, s33'); a('v_add_u32 v28, s32, v28')
    a('v_lshlrev_b32 v29, 2, v24'); a('s_lshl_b32 s32, s19, 5'); a('v_add_u32 v30, s32, v29')
    a('s_lshl_b32 s3, s2, 12')
    a('v_lshlrev_b32 v1, 4, v0')
    a('v_add_u32 v1, s3, v1')
    for r in range(4):
        a(f'v_mov_b32 v{4+r}, -1'); a(f'v_mov_b32 v{8+r}, 0')
    a('s_waitcnt lgkmcnt(0)')
    a.srd(36, 24, 4*MB)
    X = 32
    for it in range(4):
        for h in range(2):
            r = X + (it*2 + h)*2
            a(f'buffer_load_dwordx2 v[{r}:{r+1}], v23, s[36:39], 0 offen offset:{it*128 + h*16}')
    a.srd(8, 4, SM_SIZE, add=WS_SM)
    a.srd(12, 6, 8 * 1024 * 2)
    a.srd(20, 4, 64 << 20, add=rc.WS_X)
    a.srd(40, 4, 4*MB, add=WS_XN)
    a(f's_mov_b32 s16, {rc.C_PART}')
    a('buffer_store_dwordx4 v[4:7], v1, s[8:11], s16 offen')
    a.srd(44, 4, 0x2100000, add=WS_P1)
    a('buffer_store_dwordx4 v[4:7], v1, s[44:47], 0 offen')
    a(f's_mov_b32 s16, {WS_P2 - WS_P1}')
    a('buffer_store_dwordx4 v[4:7], v1, s[44:47], s16 offen')
    a('s_lshr_b32 s17, s2, 3'); a(f's_mul_i32 s17, s17, {cfg.NS*32768}')
    a('s_and_b32 s18, s2, 7'); a('s_lshl_b32 s18, s18, 12'); a('s_add_u32 s17, s17, s18')
    a('v_lshlrev_b32 v2, 4, v0')
    for i in range(3):
        a('buffer_store_dwordx4 v[4:7], v2, s[20:23], s17 offen')
        a('s_add_u32 s17, s17, 32768')
    a('v_lshrrev_b32 v3, 11, v1'); a('v_lshlrev_b32 v3, 12, v3'); a('v_and_b32 v12, 2047, v1'); a('v_add_u32 v3, v3, v12')
    a(f's_mov_b32 s16, {SM_QKM + 2048}')
    for i in range(4):
        a('buffer_store_dwordx4 v[4:7], v3, s[8:11], s16 offen'); a(f's_add_u32 s16, s16, {2*MB}')
    a(f's_mov_b32 s16, {SM_VMG}')
    for i in range(4):
        a('buffer_store_dwordx4 v[4:7], v1, s[8:11], s16 offen'); a(f's_add_u32 s16, s16, {MB}')
    nfl = FL_SEG + 65*4096 - FL_KVQ
    a(f'v_cmp_gt_u32 vcc, {nfl}, v1') if nfl <= 64 else (a(f's_mov_b32 s17, {nfl}'), a('v_cmp_gt_u32 vcc, s17, v1'))
    a('s_and_saveexec_b64 s[26:27], vcc')
    a(f's_mov_b32 s16, {FL_KVQ}')
    a('buffer_store_dwordx4 v[8:11], v1, s[8:11], s16 offen')
    a('s_mov_b64 exec, s[26:27]')
    a('s_cmp_eq_u32 s2, 16'); a('s_cbranch_scc0 PREP_N1')
    a(f's_mov_b32 s16, {rc.C_CNT}')
    a('buffer_store_dwordx4 v[8:11], v2, s[8:11], s16 offen')
    a.label('PREP_N1')
    a('s_cmp_eq_u32 s2, 17'); a('s_cbranch_scc0 PREP_N2')
    a(f's_mov_b32 s16, {rc.C_CNT + 4096}')
    a('buffer_store_dwordx4 v[4:7], v2, s[8:11], s16 offen')
    a.label('PREP_N2')
    a('s_cmp_ge_u32 s2, 16'); a('s_cbranch_scc1 PREP_LN')
    a('s_cmp_lt_u32 s2, 4')
    a('s_cbranch_scc1 PREP_M0')
    a(f's_mov_b32 s16, {rc.C_MEMF}')
    a('buffer_store_dwordx4 v[4:7], v1, s[8:11], s16 offen')
    a('s_branch PREP_LN')
    a.label('PREP_M0')
    a('v_lshrrev_b32 v2, 4, v1')
    rc.memf0_src(a, cfg, 2, 3, 12)
    for t in range(4):
        a(f'buffer_load_dword v{12+t}, v3, s[12:15], 0 offen offset:{t*8}')
    a('s_waitcnt vmcnt(0)')
    for t in range(4):
        a(f'v_min_u32 v{12+t}, -2, v{12+t}')
    a(f's_mov_b32 s16, {rc.C_MEMF}')
    a('buffer_store_dwordx4 v[12:15], v1, s[8:11], s16 offen')
    a.label('PREP_LN')
    F, G, A0, MU, RS = 64, 96, 16, 20, 21
    a('s_waitcnt vmcnt(0)')
    for i in range(16):
        a(f'v_lshlrev_b32 v{F+2*i}, 16, v{X+i}'); a(f'v_and_b32 v{F+2*i+1}, 0xffff0000, v{X+i}')
    for c in range(4): a(f'v_add_f32 v{A0+c}, v{F+c}, v{F+4+c}')
    for i in range(8, 32, 4):
        for c in range(4): a(f'v_add_f32 v{A0+c}, v{A0+c}, v{F+i+c}')
    a(f'v_add_f32 v{A0}, v{A0}, v{A0+1}'); a(f'v_add_f32 v{A0+2}, v{A0+2}, v{A0+3}'); a(f'v_add_f32 v{A0}, v{A0}, v{A0+2}')
    reduce_bits345(a, A0, 31)
    a(f'ds_write_b32 v30, v{A0}')
    a('s_waitcnt lgkmcnt(0)'); a('s_barrier')
    for w in range(4): a(f'ds_read_b32 v{A0+w}, v29 offset:{w*32}')
    a('s_waitcnt lgkmcnt(0)')
    a(f'v_add_f32 v{A0}, v{A0}, v{A0+1}'); a(f'v_add_f32 v{A0+2}, v{A0+2}, v{A0+3}'); a(f'v_add_f32 v{MU}, v{A0}, v{A0+2}')
    a(f'v_mul_f32 v{MU}, 0x3a800000, v{MU}')
    for c in range(4): a(f'v_mov_b32 v{A0+c}, 0')
    for i in range(0, 32, 4):
        for c in range(4): a(f'v_sub_f32 v{G+c}, v{F+i+c}, v{MU}')
        for c in range(4): a(f'v_fmac_f32 v{A0+c}, v{G+c}, v{G+c}')
    a(f'v_add_f32 v{A0}, v{A0}, v{A0+1}'); a(f'v_add_f32 v{A0+2}, v{A0+2}, v{A0+3}'); a(f'v_add_f32 v{RS}, v{A0}, v{A0+2}')
    reduce_bits345(a, RS, 31)
    a(f'ds_write_b32 v30, v{RS} offset:128')
    a('s_waitcnt lgkmcnt(0)'); a('s_barrier')
    for w in range(4): a(f'ds_read_b32 v{A0+w}, v29 offset:{128 + w*32}')
    a('s_waitcnt lgkmcnt(0)')
    a(f'v_add_f32 v{A0}, v{A0}, v{A0+1}'); a(f'v_add_f32 v{A0+2}, v{A0+2}, v{A0+3}'); a(f'v_add_f32 v{RS}, v{A0}, v{A0+2}')
    a(f'v_mul_f32 v{RS}, 0x3a800000, v{RS}')
    bf16_round(a, RS, RS)
    a(f'v_add_f32 v{RS}, 0x3727c5ac, v{RS}')
    bf16_round(a, RS, RS)
    a(f'v_sqrt_f32 v{RS}, v{RS}')
    a('s_nop 0')
    bf16_round(a, RS, RS)
    a(f'v_rcp_f32 v{RS}, v{RS}')
    bf16_round(a, MU, MU)
    for i in range(32): a(f'v_sub_f32 v{F+i}, v{F+i}, v{MU}')
    for i in range(16): a(f'v_cvt_pk_bf16_f32 v{G+i}, v{F+2*i}, v{F+2*i+1}')
    for i in range(16):
        a(f'v_lshlrev_b32 v{F+2*i}, 16, v{G+i}'); a(f'v_and_b32 v{F+2*i+1}, 0xffff0000, v{G+i}')
    for i in range(32): a(f'v_mul_f32 v{F+i}, v{F+i}, v{RS}')
    for i in range(16): a(f'v_cvt_pk_bf16_f32 v{G+i}, v{F+2*i}, v{F+2*i+1}')
    for it in range(4):
        a(f's_mov_b32 s16, {it*4096}')
        a(f'buffer_store_dwordx4 v[{G+4*it}:{G+4*it+3}], v28, s[40:43], s16 offen')
    a.label('PREP_END')
    a('s_endpgm')
    return a.text()


def kvq_loop(a, g, nbg_rounds=9):
    T0, T1, T2 = f's{S_T0}', f's{S_T1}', f's{S_T2}'
    a(f's_mov_b32 s{S_RND}, 0')
    a.label('KQ_TOP')
    a(f's_cmp_lg_u32 s{S_RND}, 0'); a('s_cbranch_scc1 KQ_BG')
    a(f's_and_b32 {T0}, s{S_WID}, 31'); a(f's_and_b32 s{S_RB}, {T0}, 3')
    a(f's_lshr_b32 {T0}, {T0}, 2'); a(f's_lshr_b32 {T1}, s{S_WID}, 5'); a(f's_lshl_b32 {T1}, {T1}, 3'); a(f's_add_u32 s31, {T0}, {T1}')
    a('s_branch KQ_DEC')
    a.label('KQ_BG')
    a(f's_sub_u32 {T0}, s{S_WID}, 64'); a(f's_lshr_b32 {T0}, {T0}, 5'); a(f's_lshl_b32 {T0}, {T0}, 4')
    a(f's_and_b32 {T1}, s{S_WID}, 15'); a(f's_add_u32 {T0}, {T0}, {T1}')
    a(f's_sub_u32 {T1}, s{S_RND}, 1'); a(f's_lshl_b32 {T1}, {T1}, 6'); a(f's_add_u32 {T0}, {T0}, {T1}')
    a(f's_mul_i32 {T1}, {T0}, 683'); a(f's_lshr_b32 {T1}, {T1}, 16')
    a(f's_mul_i32 {T2}, {T1}, 96'); a(f's_sub_u32 {T0}, {T0}, {T2}')
    a(f's_lshl_b32 {T1}, {T1}, 1'); a(f's_add_u32 {T1}, {T1}, 4'); a(f's_and_b32 {T2}, {T0}, 1')
    a(f's_add_u32 s{S_RB}, {T1}, {T2}'); a(f's_lshr_b32 s31, {T0}, 1')
    a.label('KQ_DEC')
    a(f's_and_b32 s{S_RB}, s{S_RB}, 15')
    a(f's_and_b32 s{S_CB}, s31, 15'); a(f's_mov_b32 s{S_KS}, 0')
    a('s_lshr_b32 s31, s31, 4')
    a(f's_lshl_b32 {T0}, s{S_RB}, 8'); a(f's_lshl_b32 {T1}, s{S_CB}, 4'); a(f's_add_u32 {T0}, {T0}, {T1}')
    a(f's_lshl_b32 {T1}, s31, 2'); a(f's_add_u32 {T0}, {T0}, {T1}'); a(f's_add_u32 s{S_FOFF}, {T0}, {FL_KVQ}')
    a('s_cmp_eq_u32 s31, 1'); a('s_cbranch_scc1 KQ_V')
    a('s_cmp_eq_u32 s31, 2'); a('s_cbranch_scc1 KQ_Q')
    task_gemm(a, g, 'K'); a('s_branch KQ_FIN')
    a.label('KQ_V'); task_gemm(a, g, 'V'); a('s_branch KQ_FIN')
    a.label('KQ_Q'); task_gemm(a, g, 'Q')
    a.label('KQ_FIN')
    a('s_waitcnt vmcnt(0)')
    a('s_barrier')
    if mega.TL:
        a('s_memrealtime s[88:89]'); a('s_waitcnt lgkmcnt(0)'); a('s_mov_b32 s101, s88')
    a(f's_cmp_lg_u32 s{S_WAVE}, 0'); a('s_cbranch_scc1 KQ_NF')
    a('v_mov_b32 v1, 1')
    a('s_mov_b64 exec, 1')
    a(f'buffer_store_dword v1, off, {FLS}, s{S_FOFF} sc1')
    a('s_mov_b64 exec, -1')
    a.label('KQ_NF')
    a(f's_add_u32 s{S_RND}, s{S_RND}, 1')
    a(f's_cmp_lt_u32 s{S_WID}, 64'); a('s_cbranch_scc1 KQ_END')
    a(f's_and_b32 {T0}, s{S_WID}, 16'); a(f's_cmp_eq_u32 {T0}, 0'); a('s_cbranch_scc1 KQ_END')
    if mega.TL:
        pass
    a(f's_cmp_le_u32 s{S_RND}, {nbg_rounds}'); a('s_cbranch_scc1 KQ_TOP')
    if mega.TL:
        a('v_mov_b32 v12, 0'); a('v_writelane_b32 v12, s100, 0'); a('v_writelane_b32 v12, s101, 1')
        mega.tl_dump(a, [12, 12, 12])
    a('s_endpgm')
    a.label('KQ_END')


def gen_mega(cfg, dbg=None, prof=False):
    tasks.set_coh(True)
    a = Asm()
    P = 'RC'
    a('s_cmp_ge_u32 s2, 256')
    a('s_cbranch_scc1 MG_EXIT')
    def rstamp(sreg):
        if mega.TL:
            a('s_memrealtime s[88:89]'); a('s_waitcnt lgkmcnt(0)'); a(f's_mov_b32 s{sreg}, s88')
    rstamp(100)
    rc.common_setup(a)
    rc.role_dynamic(a, cfg, P, 'MG_WORK', nx=8)
    rstamp(101)
    RS, CT, RL = rc.impl(cfg)
    RS(a, cfg)
    a(f's_mov_b32 s{rc.S_NST}, 63')
    CT(a)
    rc.stage_weights(a, P)
    rstamp(72)
    rc.near_measure(a, cfg, P)
    rc.x_offsets(a, cfg)
    a('s_waitcnt vmcnt(0) lgkmcnt(0)')
    a('s_barrier')
    rstamp(73)
    a(f's_cmp_eq_u32 s{rc.S_MODE}, 1')
    a(f's_cbranch_scc0 {P}_FB')
    RL(a, cfg, P, '', dbg)
    if mega.TL:
        rstamp(74)
        a.srd(84, rc.S_WS, 1 << 20, add=mega.TL_BASE + (1 << 20))
        a(f's_lshl_b32 s76, s{rc.S_H}, 1'); a(f's_add_u32 s76, s76, s{rc.S_J}'); a('s_lshl_b32 s76, s76, 2')
        a(f's_add_u32 s76, s76, s{rc.S_WV}'); a('s_lshl_b32 s76, s76, 5')
        a('v_mov_b32 v9, 0'); a('s_mov_b64 exec, 1')
        for i, r in enumerate([100, 101, 72, 73, 74, 75]):
            a(f'v_mov_b32 v8, s{r}'); a(f'buffer_store_dword v8, v9, s[84:87], s76 offen offset:{4*i}')
        a('s_waitcnt vmcnt(0)')
    a('s_endpgm')
    a.label(f'{P}_FB')
    RL(a, cfg, P + 'F', ' sc1', None)
    a('s_endpgm')
    a.label('MG_WORK')
    T0, T1 = 's46', 's47'
    a(f's_sub_u32 {T0}, s{rc.S_J}, 2'); a(f's_lshl_b32 {T0}, {T0}, 5'); a(f's_add_u32 {T0}, {T0}, s{rc.S_H}')
    a(f's_sub_u32 {T1}, s{rc.S_H}, 32'); a(f's_lshl_b32 {T1}, {T1}, 1'); a(f's_add_u32 {T1}, {T1}, s{rc.S_J}')
    a(f's_cmp_eq_u32 s{rc.S_MODE}, 1'); a(f's_cselect_b32 s{S_WID}, {T0}, {T1}')
    a(f's_cmp_ge_u32 s{S_WID}, 192'); a('s_cbranch_scc1 MG_EXIT')
    a(f's_mov_b32 s{S_WAVE}, s{rc.S_WV}')
    a.srd(S_FL, rc.S_WS, SM_SIZE, add=WS_SM)
    a(f's_mov_b32 s{S_BUDW}, 200000')
    a(f's_mov_b32 s{S_WM}, s{rc.S_MODE}')
    g = Eng()
    kvq_loop(a, g)
    W = f's{S_WID}'
    def rng(lo, hi, lab):
        a(f's_cmp_lt_u32 {W}, {hi}'); a(f's_cbranch_scc1 {lab}')
    rng(0, 32, 'MG_WO'); rng(0, 64, 'MG_DN')
    a(f's_sub_u32 s46, {W}, 64'); a('s_lshr_b32 s46, s46, 5'); a(f's_and_b32 s47, {W}, 31')
    a('s_cmp_ge_u32 s47, 14'); a('s_cbranch_scc1 MG_AT')
    a('s_mul_i32 s29, s46, 14'); a('s_add_u32 s29, s29, s47'); a('s_mov_b32 s28, 0')
    role_gemmx(a, 'GU'); a('s_endpgm')
    a.label('MG_WO')
    a(f's_lshr_b32 s28, {W}, 3'); a(f's_and_b32 s29, {W}, 7')
    role_gemmx(a, 'WO'); a('s_endpgm')
    a.label('MG_DN')
    a(f's_sub_u32 s29, {W}, 32'); a('s_lshr_b32 s28, s29, 3'); a('s_and_b32 s29, s29, 7')
    role_gemmx(a, 'DN'); a('s_endpgm')
    a.label('MG_AT')
    a('s_lshl_b32 s28, s46, 1'); a('s_add_u32 s28, s28, s47'); a('s_sub_u32 s28, s28, 14')
    role_att(a)
    a.label('MG_EXIT')
    a('s_endpgm')
    return a.text()


def header():
    src = open('cdna_kernels/' + KNAME[:-7] + '.s.ref').read().split('\n')
    out = []
    for l in src:
        if l.startswith('; Override launch'): break
        out.append(l)
    return '\n'.join(out)

OLD = False
def build(path, hdr='; test', cfg=None, **kw):
    import k_rec2
    C = rc.Cfg if OLD else k_rec2.Cfg2
    cfg = cfg or C(dynamic=True, RS_PERM=False, EARLY_CLR=True, kvflag=FL_KVQ, tl=mega.TL, NOPK=False)
    ks = [('prep_kernel', gen_prep(cfg), 128, 128), ('mega_kernel', gen_mega(cfg, **kw), 512, 256)]
    ls = [('prep_kernel', (256,1,1), (256,1,1), 1024), ('mega_kernel', (256,1,1), (256,1,1), 163840)]
    txt = assemble_file(hdr, ls, ks)
    open(path, 'w').write(txt)
    print('bytes', len(txt), 'lines', txt.count('\n'))
if __name__ == '__main__':
    p = sys.argv[1] if len(sys.argv) > 1 else 'mg.s'
    if len(sys.argv) > 2 and 'tl' in sys.argv[2:]: mega.TL = True
    if 'prof' in sys.argv[2:]: mega2.PROF = True
    if 'old' in sys.argv[2:]: OLD = True
    build(p, header())
    import chk; chk.chk(p)
```

```python
import sys; sys.path.insert(0,'gen')
from asmlib import *
import tasks, tasks2, mega, k_recc as rc
from mega import *
import mega2
from mega2 import role_gemmx, S_WM
from gemm2 import Eng, S_WAVE, S_T0, S_T1, S_T2
from tasks import S_RB, S_CB, S_KS, S_PW, S_PWS, S_OSRD, MB, task_gemm
from k_ln import bf16_round, reduce_bits345

def gen_prep(cfg):
    a = Asm()
    a('s_cmp_ge_u32 s2, 256')
    a('s_cbranch_scc1 PREP_END')
    a(f's_load_dwordx2 s[4:5], s[0:1], {KA_WS}')
    a(f's_load_dwordx2 s[6:7], s[0:1], {KA_MEM0}')
    a(f's_load_dwordx2 s[24:25], s[0:1], {KA_X}')
    a('v_and_b32 v21, 63, v0'); a('v_lshrrev_b32 v22, 6, v0'); a('s_nop 0'); a('v_readfirstlane_b32 s19, v22')
    a('v_and_b32 v24, 7, v21'); a('v_bfe_u32 v25, v21, 3, 1'); a('v_lshrrev_b32 v26, 4, v21')
    a('s_lshr_b32 s30, s2, 2'); a('s_and_b32 s31, s2, 3'); a('s_lshl_b32 s31, s31, 3')
    a('v_add_u32 v27, s31, v24')
    a('v_lshlrev_b32 v23, 11, v27'); a('v_lshl_add_u32 v23, v26, 5, v23'); a('v_lshl_add_u32 v23, v25, 3, v23')
    a('s_lshl_b32 s32, s19, 9'); a('s_lshl_b32 s33, s30, 16'); a('s_add_u32 s32, s32, s33'); a('v_add_u32 v23, s32, v23')
    a('v_lshl_add_u32 v28, v25, 5, v27'); a('v_lshlrev_b32 v28, 4, v28'); a('v_lshl_add_u32 v28, v26, 10, v28')
    a('s_lshl_b32 s32, s19, 14'); a('s_add_u32 s32, s32, s33'); a('v_add_u32 v28, s32, v28')
    a('v_lshlrev_b32 v29, 2, v24'); a('s_lshl_b32 s32, s19, 5'); a('v_add_u32 v30, s32, v29')
    a('s_lshl_b32 s3, s2, 12')
    a('v_lshlrev_b32 v1, 4, v0')
    a('v_add_u32 v1, s3, v1')
    for r in range(4):
        a(f'v_mov_b32 v{4+r}, -1'); a(f'v_mov_b32 v{8+r}, 0')
    a('s_waitcnt lgkmcnt(0)')
    a.srd(36, 24, 4*MB)
    X = 32
    for it in range(4):
        for h in range(2):
            r = X + (it*2 + h)*2
            a(f'buffer_load_dwordx2 v[{r}:{r+1}], v23, s[36:39], 0 offen offset:{it*128 + h*16}')
    a.srd(8, 4, SM_SIZE, add=WS_SM)
    a.srd(12, 6, 8 * 1024 * 2)
    a.srd(20, 4, 64 << 20, add=rc.WS_X)
    a.srd(40, 4, 4*MB, add=WS_XN)
    a(f's_mov_b32 s16, {rc.C_PART}')
    a('buffer_store_dwordx4 v[4:7], v1, s[8:11], s16 offen')
    a.srd(44, 4, 0x2100000, add=WS_P1)
    a('buffer_store_dwordx4 v[4:7], v1, s[44:47], 0 offen')
    a(f's_mov_b32 s16, {WS_P2 - WS_P1}')
    a('buffer_store_dwordx4 v[4:7], v1, s[44:47], s16 offen')
    a('s_lshr_b32 s17, s2, 3'); a(f's_mul_i32 s17, s17, {cfg.NS*32768}')
    a('s_and_b32 s18, s2, 7'); a('s_lshl_b32 s18, s18, 12'); a('s_add_u32 s17, s17, s18')
    a('v_lshlrev_b32 v2, 4, v0')
    for i in range(3):
        a('buffer_store_dwordx4 v[4:7], v2, s[20:23], s17 offen')
        a('s_add_u32 s17, s17, 32768')
    a('v_lshrrev_b32 v3, 11, v1'); a('v_lshlrev_b32 v3, 12, v3'); a('v_and_b32 v12, 2047, v1'); a('v_add_u32 v3, v3, v12')
    a(f's_mov_b32 s16, {SM_QKM + 2048}')
    for i in range(4):
        a('buffer_store_dwordx4 v[4:7], v3, s[8:11], s16 offen'); a(f's_add_u32 s16, s16, {2*MB}')
    a(f's_mov_b32 s16, {SM_VMG}')
    for i in range(4):
        a('buffer_store_dwordx4 v[4:7], v1, s[8:11], s16 offen'); a(f's_add_u32 s16, s16, {MB}')
    nfl = FL_SEG + 65*4096 - FL_KVQ
    a(f'v_cmp_gt_u32 vcc, {nfl}, v1') if nfl <= 64 else (a(f's_mov_b32 s17, {nfl}'), a('v_cmp_gt_u32 vcc, s17, v1'))
    a('s_and_saveexec_b64 s[26:27], vcc')
    a(f's_mov_b32 s16, {FL_KVQ}')
    a('buffer_store_dwordx4 v[8:11], v1, s[8:11], s16 offen')
    a('s_mov_b64 exec, s[26:27]')
    a('s_cmp_eq_u32 s2, 16'); a('s_cbranch_scc0 PREP_N1')
    a(f's_mov_b32 s16, {rc.C_CNT}')
    a('buffer_store_dwordx4 v[8:11], v2, s[8:11], s16 offen')
    a.label('PREP_N1')
    a('s_cmp_eq_u32 s2, 17'); a('s_cbranch_scc0 PREP_N2')
    a(f's_mov_b32 s16, {rc.C_CNT + 4096}')
    a('buffer_store_dwordx4 v[4:7], v2, s[8:11], s16 offen')
    a.label('PREP_N2')
    a('s_cmp_ge_u32 s2, 16'); a('s_cbranch_scc1 PREP_LN')
    a('s_cmp_lt_u32 s2, 4')
    a('s_cbranch_scc1 PREP_M0')
    a(f's_mov_b32 s16, {rc.C_MEMF}')
    a('buffer_store_dwordx4 v[4:7], v1, s[8:11], s16 offen')
    a('s_branch PREP_LN')
    a.label('PREP_M0')
    a('v_lshrrev_b32 v2, 4, v1')
    rc.memf0_src(a, cfg, 2, 3, 12)
    for t in range(4):
        a(f'buffer_load_dword v{12+t}, v3, s[12:15], 0 offen offset:{t*8}')
    a('s_waitcnt vmcnt(0)')
    for t in range(4):
        a(f'v_min_u32 v{12+t}, -2, v{12+t}')
    a(f's_mov_b32 s16, {rc.C_MEMF}')
    a('buffer_store_dwordx4 v[12:15], v1, s[8:11], s16 offen')
    a.label('PREP_LN')
    F, G, A0, MU, RS = 64, 96, 16, 20, 21
    a('s_waitcnt vmcnt(0)')
    for i in range(16):
        a(f'v_lshlrev_b32 v{F+2*i}, 16, v{X+i}'); a(f'v_and_b32 v{F+2*i+1}, 0xffff0000, v{X+i}')
    for c in range(4): a(f'v_add_f32 v{A0+c}, v{F+c}, v{F+4+c}')
    for i in range(8, 32, 4):
        for c in range(4): a(f'v_add_f32 v{A0+c}, v{A0+c}, v{F+i+c}')
    a(f'v_add_f32 v{A0}, v{A0}, v{A0+1}'); a(f'v_add_f32 v{A0+2}, v{A0+2}, v{A0+3}'); a(f'v_add_f32 v{A0}, v{A0}, v{A0+2}')
    reduce_bits345(a, A0, 31)
    a(f'ds_write_b32 v30, v{A0}')
    a('s_waitcnt lgkmcnt(0)'); a('s_barrier')
    for w in range(4): a(f'ds_read_b32 v{A0+w}, v29 offset:{w*32}')
    a('s_waitcnt lgkmcnt(0)')
    a(f'v_add_f32 v{A0}, v{A0}, v{A0+1}'); a(f'v_add_f32 v{A0+2}, v{A0+2}, v{A0+3}'); a(f'v_add_f32 v{MU}, v{A0}, v{A0+2}')
    a(f'v_mul_f32 v{MU}, 0x3a800000, v{MU}')
    for c in range(4): a(f'v_mov_b32 v{A0+c}, 0')
    for i in range(0, 32, 4):
        for c in range(4): a(f'v_sub_f32 v{G+c}, v{F+i+c}, v{MU}')
        for c in range(4): a(f'v_fmac_f32 v{A0+c}, v{G+c}, v{G+c}')
    a(f'v_add_f32 v{A0}, v{A0}, v{A0+1}'); a(f'v_add_f32 v{A0+2}, v{A0+2}, v{A0+3}'); a(f'v_add_f32 v{RS}, v{A0}, v{A0+2}')
    reduce_bits345(a, RS, 31)
    a(f'ds_write_b32 v30, v{RS} offset:128')
    a('s_waitcnt lgkmcnt(0)'); a('s_barrier')
    for w in range(4): a(f'ds_read_b32 v{A0+w}, v29 offset:{128 + w*32}')
    a('s_waitcnt lgkmcnt(0)')
    a(f'v_add_f32 v{A0}, v{A0}, v{A0+1}'); a(f'v_add_f32 v{A0+2}, v{A0+2}, v{A0+3}'); a(f'v_add_f32 v{RS}, v{A0}, v{A0+2}')
    a(f'v_mul_f32 v{RS}, 0x3a800000, v{RS}')
    bf16_round(a, RS, RS)
    a(f'v_add_f32 v{RS}, 0x3727c5ac, v{RS}')
    bf16_round(a, RS, RS)
    a(f'v_sqrt_f32 v{RS}, v{RS}')
    a('s_nop 0')
    bf16_round(a, RS, RS)
    a(f'v_rcp_f32 v{RS}, v{RS}')
    bf16_round(a, MU, MU)
    for i in range(32): a(f'v_sub_f32 v{F+i}, v{F+i}, v{MU}')
    for i in range(16): a(f'v_cvt_pk_bf16_f32 v{G+i}, v{F+2*i}, v{F+2*i+1}')
    for i in range(16):
        a(f'v_lshlrev_b32 v{F+2*i}, 16, v{G+i}'); a(f'v_and_b32 v{F+2*i+1}, 0xffff0000, v{G+i}')
    for i in range(32): a(f'v_mul_f32 v{F+i}, v{F+i}, v{RS}')
    for i in range(16): a(f'v_cvt_pk_bf16_f32 v{G+i}, v{F+2*i}, v{F+2*i+1}')
    for it in range(4):
        a(f's_mov_b32 s16, {it*4096}')
        a(f'buffer_store_dwordx4 v[{G+4*it}:{G+4*it+3}], v28, s[40:43], s16 offen')
    a.label('PREP_END')
    a('s_endpgm')
    return a.text()


def kvq_loop(a, g, nbg_rounds=9):
    T0, T1, T2 = f's{S_T0}', f's{S_T1}', f's{S_T2}'
    a(f's_mov_b32 s{S_RND}, 0')
    a.label('KQ_TOP')
    a(f's_cmp_lg_u32 s{S_RND}, 0'); a('s_cbranch_scc1 KQ_BG')
    a(f's_and_b32 {T0}, s{S_WID}, 31'); a(f's_and_b32 s{S_RB}, {T0}, 3')
    a(f's_lshr_b32 {T0}, {T0}, 2'); a(f's_lshr_b32 {T1}, s{S_WID}, 5'); a(f's_lshl_b32 {T1}, {T1}, 3'); a(f's_add_u32 s31, {T0}, {T1}')
    a('s_branch KQ_DEC')
    a.label('KQ_BG')
    a(f's_sub_u32 {T0}, s{S_WID}, 64'); a(f's_lshr_b32 {T0}, {T0}, 5'); a(f's_lshl_b32 {T0}, {T0}, 4')
    a(f's_and_b32 {T1}, s{S_WID}, 15'); a(f's_add_u32 {T0}, {T0}, {T1}')
    a(f's_sub_u32 {T1}, s{S_RND}, 1'); a(f's_lshl_b32 {T1}, {T1}, 6'); a(f's_add_u32 {T0}, {T0}, {T1}')
    a(f's_mul_i32 {T1}, {T0}, 683'); a(f's_lshr_b32 {T1}, {T1}, 16')
    a(f's_mul_i32 {T2}, {T1}, 96'); a(f's_sub_u32 {T0}, {T0}, {T2}')
    a(f's_lshl_b32 {T1}, {T1}, 1'); a(f's_add_u32 {T1}, {T1}, 4'); a(f's_and_b32 {T2}, {T0}, 1')
    a(f's_add_u32 s{S_RB}, {T1}, {T2}'); a(f's_lshr_b32 s31, {T0}, 1')
    a.label('KQ_DEC')
    a(f's_and_b32 s{S_RB}, s{S_RB}, 15')
    a(f's_and_b32 s{S_CB}, s31, 15'); a(f's_mov_b32 s{S_KS}, 0')
    a('s_lshr_b32 s31, s31, 4')
    a(f's_lshl_b32 {T0}, s{S_RB}, 8'); a(f's_lshl_b32 {T1}, s{S_CB}, 4'); a(f's_add_u32 {T0}, {T0}, {T1}')
    a(f's_lshl_b32 {T1}, s31, 2'); a(f's_add_u32 {T0}, {T0}, {T1}'); a(f's_add_u32 s{S_FOFF}, {T0}, {FL_KVQ}')
    a('s_cmp_eq_u32 s31, 1'); a('s_cbranch_scc1 KQ_V')
    a('s_cmp_eq_u32 s31, 2'); a('s_cbranch_scc1 KQ_Q')
    task_gemm(a, g, 'K'); a('s_branch KQ_FIN')
    a.label('KQ_V'); task_gemm(a, g, 'V'); a('s_branch KQ_FIN')
    a.label('KQ_Q'); task_gemm(a, g, 'Q')
    a.label('KQ_FIN')
    a('s_waitcnt vmcnt(0)')
    a('s_barrier')
    if mega.TL:
        a('s_memrealtime s[88:89]'); a('s_waitcnt lgkmcnt(0)'); a('s_mov_b32 s101, s88')
    a(f's_cmp_lg_u32 s{S_WAVE}, 0'); a('s_cbranch_scc1 KQ_NF')
    a('v_mov_b32 v1, 1')
    a('s_mov_b64 exec, 1')
    a(f'buffer_store_dword v1, off, {FLS}, s{S_FOFF} sc1')
    a('s_mov_b64 exec, -1')
    a.label('KQ_NF')
    a(f's_add_u32 s{S_RND}, s{S_RND}, 1')
    a(f's_cmp_lt_u32 s{S_WID}, 64'); a('s_cbranch_scc1 KQ_END')
    a(f's_and_b32 {T0}, s{S_WID}, 16'); a(f's_cmp_eq_u32 {T0}, 0'); a('s_cbranch_scc1 KQ_END')
    if mega.TL:
        pass
    a(f's_cmp_le_u32 s{S_RND}, {nbg_rounds}'); a('s_cbranch_scc1 KQ_TOP')
    if mega.TL:
        a('v_mov_b32 v12, 0'); a('v_writelane_b32 v12, s100, 0'); a('v_writelane_b32 v12, s101, 1')
        mega.tl_dump(a, [12, 12, 12])
    a('s_endpgm')
    a.label('KQ_END')


EXP_START = None
def gen_mega(cfg, dbg=None, prof=False):
    tasks.set_coh(True)
    a = Asm()
    P = 'RC'
    a('s_cmp_ge_u32 s2, 256')
    a('s_cbranch_scc1 MG_EXIT')
    def rstamp(sreg):
        if mega.TL:
            a('s_memrealtime s[88:89]'); a('s_waitcnt lgkmcnt(0)'); a(f's_mov_b32 s{sreg}, s88')
    rstamp(100)
    rc.common_setup(a)
    rc.role_dynamic(a, cfg, P, 'MG_WORK', nx=8)
    rstamp(101)
    RS, CT, RL = rc.impl(cfg)
    RS(a, cfg)
    a(f's_mov_b32 s{rc.S_NST}, 63')
    CT(a)
    rc.stage_weights(a, P)
    rstamp(72)
    rc.near_measure(a, cfg, P)
    rc.x_offsets(a, cfg)
    a('s_waitcnt vmcnt(0) lgkmcnt(0)')
    a('s_barrier')
    rstamp(73)
    a(f's_cmp_eq_u32 s{rc.S_MODE}, 1')
    a(f's_cbranch_scc0 {P}_FB')
    if not EXP_START: RL(a, cfg, P, '', dbg)
    if mega.TL:
        rstamp(74)
        a.srd(84, rc.S_WS, 1 << 20, add=mega.TL_BASE + (1 << 20))
        a(f's_lshl_b32 s76, s{rc.S_H}, 1'); a(f's_add_u32 s76, s76, s{rc.S_J}'); a('s_lshl_b32 s76, s76, 2')
        a(f's_add_u32 s76, s76, s{rc.S_WV}'); a('s_lshl_b32 s76, s76, 5')
        a('v_mov_b32 v9, 0'); a('s_mov_b64 exec, 1')
        for i, r in enumerate([100, 101, 72, 73, 74, 75]):
            a(f'v_mov_b32 v8, s{r}'); a(f'buffer_store_dword v8, v9, s[84:87], s76 offen offset:{4*i}')
        a('s_waitcnt vmcnt(0)')
    a('s_endpgm')
    a.label(f'{P}_FB')
    RL(a, cfg, P + 'F', ' sc1', None)
    a('s_endpgm')
    a.label('MG_WORK')
    if EXP_START == 'now': a('s_endpgm')
    T0, T1 = 's46', 's47'
    a(f's_sub_u32 {T0}, s{rc.S_J}, 2'); a(f's_lshl_b32 {T0}, {T0}, 5'); a(f's_add_u32 {T0}, {T0}, s{rc.S_H}')
    a(f's_sub_u32 {T1}, s{rc.S_H}, 32'); a(f's_lshl_b32 {T1}, {T1}, 1'); a(f's_add_u32 {T1}, {T1}, s{rc.S_J}')
    a(f's_cmp_eq_u32 s{rc.S_MODE}, 1'); a(f's_cselect_b32 s{S_WID}, {T0}, {T1}')
    a(f's_cmp_ge_u32 s{S_WID}, 192'); a('s_cbranch_scc1 MG_EXIT')
    a(f's_mov_b32 s{S_WAVE}, s{rc.S_WV}')
    a.srd(S_FL, rc.S_WS, SM_SIZE, add=WS_SM)
    a(f's_mov_b32 s{S_BUDW}, 200000')
    a(f's_mov_b32 s{S_WM}, s{rc.S_MODE}')
    g = Eng()
    kvq_loop(a, g)
    W = f's{S_WID}'
    def rng(lo, hi, lab):
        a(f's_cmp_lt_u32 {W}, {hi}'); a(f's_cbranch_scc1 {lab}')
    rng(0, 32, 'MG_WO'); rng(0, 64, 'MG_DN')
    a(f's_sub_u32 s46, {W}, 64'); a('s_lshr_b32 s46, s46, 5'); a(f's_and_b32 s47, {W}, 31')
    a('s_cmp_ge_u32 s47, 14'); a('s_cbranch_scc1 MG_AT')
    a('s_mul_i32 s29, s46, 14'); a('s_add_u32 s29, s29, s47'); a('s_mov_b32 s28, 0')
    role_gemmx(a, 'GU'); a('s_endpgm')
    a.label('MG_WO')
    a(f's_lshr_b32 s28, {W}, 3'); a(f's_and_b32 s29, {W}, 7')
    role_gemmx(a, 'WO'); a('s_endpgm')
    a.label('MG_DN')
    a(f's_sub_u32 s29, {W}, 32'); a('s_lshr_b32 s28, s29, 3'); a('s_and_b32 s29, s29, 7')
    role_gemmx(a, 'DN'); a('s_endpgm')
    a.label('MG_AT')
    a('s_lshl_b32 s28, s46, 1'); a('s_add_u32 s28, s28, s47'); a('s_sub_u32 s28, s28, 14')
    role_att(a)
    a.label('MG_EXIT')
    a('s_endpgm')
    return a.text()


def header():
    src = open('cdna_kernels/' + KNAME[:-7] + '.s.ref').read().split('\n')
    out = []
    for l in src:
        if l.startswith('; Override launch'): break
        out.append(l)
    return '\n'.join(out)

OLD = False
def build(path, hdr='; test', cfg=None, **kw):
    import k_rec2
    C = rc.Cfg if OLD else k_rec2.Cfg2
    cfg = cfg or C(dynamic=True, RS_PERM=False, EARLY_CLR=True, kvflag=FL_KVQ, tl=mega.TL, NOPK=False)
    ks = [('prep_kernel', gen_prep(cfg), 128, 128), ('mega_kernel', gen_mega(cfg, **kw), 512, 256)]
    ls = [('prep_kernel', (256,1,1), (256,1,1), 1024), ('mega_kernel', (256,1,1), (256,1,1), 163840)]
    txt = assemble_file(hdr, ls, ks)
    open(path, 'w').write(txt)
    print('bytes', len(txt), 'lines', txt.count('\n'))
if __name__ == '__main__':
    p = sys.argv[1] if len(sys.argv) > 1 else 'mg.s'
    if len(sys.argv) > 2 and 'tl' in sys.argv[2:]: mega.TL = True
    if 'prof' in sys.argv[2:]: mega2.PROF = True
    if 'old' in sys.argv[2:]: OLD = True
    if 'now' in sys.argv[2:]: EXP_START = 'now'
    build(p, header())
    import chk; chk.chk(p)
```

```python
from asmlib import *

WS_X = 0xB000000
C_MEMF = SM_MEMF
C_PART = SM_PART
C_CNT = SM_CNT
CNT_MODE, CNT_FB = 2048, 2176
WS_DBGC = 0x7000000

class Cfg:
    NS = 64
    SG, SP, SH = 4096, 2048, 64
    RS_PERM = True
    dynamic = False
    force_fallback = False
    EARLY_CLR = False
    skip = ()
    kvflag = None
    NOPK = False
    PR_NOACK = False
    AG_NOACK = False
    PQ_EARLY = False
    def __init__(self, **kw):
        for k, v in kw.items(): setattr(self, k, v)

L_WA = 0x00000
L_WB = 0x10000
L_M = 0x20000
L_O = 0x22000
L_C = 0x22800
L_R = 0x23400
L_KV = 0x24000
REC_LDS = 0x28000

V_IDX, V_AGP, V_PTW, V_MFW, V_KDM, V_L16, V_T, V_T2 = 0, 1, 2, 3, 4, 5, 6, 7
AM = 8
AQ0, AQ1, AK0, AK1, AV0, AV1 = 40, 44, 48, 52, 56, 60
SREG = 64
WV_R = 128
WO_R = 192
XS, D0, D1, RX, VA, RV, TT = 44, 40, 48, 52, 60, 62, 56
SEL0, SEL1, KT0, KT1, VT0, VT1, SA, SB, SMM = 24, 28, 32, 36, 8, 12, 16, 20, 24
R0, R1, R2, R3, MM = 32, 36, 40, 44, 48
PB, PMQ, ONES, SUM, O0, O1 = 36, 40, 44, 52, 16, 20
WACC = [24, 28, 32, 36, 40, 44, 48, 52]
OA = 8
PR0, PR1, SELR, RD, NEG = 8, 12, 16, 20, 24

S_SM = 4
S_KV = 8
S_X = 12
S_W = 16
S_STEP, S_WV, S_H, S_J = 20, 21, 22, 23
S_MEMR, S_MEMW, S_PR, S_PR2 = 24, 25, 26, 27
S_PW = 28
S_XW, S_XR, S_XC, S_NEAR = 32, 33, 34, 35
S_KVK, S_KVV, S_QKM, S_VMG = 36, 37, 38, 39
S_LO8 = 40
S_BUD, S_NST, S_M0, S_MEMC = 42, 43, 44, 45
S_T0, S_T1, S_T2, S_T3 = 46, 47, 48, 49
S_PTR = 50
S_WS = 52
S_SWB, S_OWB, S_KVB, S_PRW = 54, 55, 56, 57
S_HI8 = 58
S_XBASE = 60
S_MODE = 61
S_LID = 62
S_SC = 63
S_KVOK, S_KVFB = 96, 97
SOFT_C = 0x3e0293ee


def smf(acc, A, B):
    return f'v_smfmac_f32_16x16x64_bf16 v[{acc}:{acc+3}], v[{A}:{A+3}], {B}, v{V_IDX}'
def wq(pi, t): b = 16*pi + 8*t; return f'a[{b}:{b+7}]'
def wk(pi, t): b = 128 + 16*pi + 8*t; return f'a[{b}:{b+7}]'
def wv(pi, t):
    b = (WV_R + 16*pi + 8*t) if pi < 4 else (SREG + 16*(pi-4) + 8*t)
    return f'v[{b}:{b+7}]'
def v8(r): return f'v[{r}:{r+7}]'
def mf32(d, A, B, C=None):
    c = '0' if C is None else f'v[{C}:{C+3}]'
    return f'v_mfma_f32_16x16x32_bf16 v[{d}:{d+3}], v[{A}:{A+3}], v[{B}:{B+3}], {c}'
def mf16(d, A, B, C):
    return f'v_mfma_f32_16x16x16_bf16 v[{d}:{d+3}], v[{A}:{A+1}], v[{B}:{B+1}], v[{C}:{C+3}]'
NOPK = False
def pkadd(d, x, y):
    if NOPK: return f'v_add_f32 v{d}, v{x}, v{y}\n    v_add_f32 v{d+1}, v{x+1}, v{y+1}'
    return f'v_pk_add_f32 v[{d}:{d+1}], v[{x}:{x+1}], v[{y}:{y+1}]'


def poll_end(a, lab, done):
    a(f's_cbranch_vccz {done}')
    a(f's_cmp_eq_u32 s{S_BUD}, 0')
    a(f's_cbranch_scc1 {done}')
    a(f's_sub_u32 s{S_BUD}, s{S_BUD}, 1')
    a(f's_branch {lab}')
    a.label(done)

def max_chain(a, dst, regs):
    if len(regs) == 2:
        a(f'v_max_u32 v{dst}, v{regs[0]}, v{regs[1]}'); return
    a(f'v_max3_u32 v{dst}, v{regs[0]}, v{regs[1]}, v{regs[2]}')
    i = 3
    while i + 1 < len(regs):
        a(f'v_max3_u32 v{dst}, v{dst}, v{regs[i]}, v{regs[i+1]}')
        i += 2
    if i < len(regs):
        a(f'v_max_u32 v{dst}, v{dst}, v{regs[i]}')


def dbg_dump(a, regs, slot, tmp=V_T):
    a('s_waitcnt vmcnt(0) lgkmcnt(0)')
    a('s_nop 7'); a('s_nop 7')
    a.srd(84, S_WS, 4 << 20, add=WS_DBGC + slot * (4 << 20))
    a(f's_lshl_b32 s88, s{S_H}, 1'); a(f's_add_u32 s88, s88, s{S_J}'); a('s_lshl_b32 s88, s88, 2')
    a(f's_add_u32 s88, s88, s{S_WV}'); a('s_lshl_b32 s88, s88, 14')
    a(f'v_lshrrev_b32 v{tmp}, 2, v{V_L16}')
    for i, r in enumerate(regs):
        a(f'buffer_store_dword v{r}, v{tmp}, s[84:87], s88 offen')
        a('s_add_u32 s88, s88, 256')
    a('s_waitcnt vmcnt(0)')


def role_static(a, exit_label):
    a(f's_and_b32 s{S_J}, s2, 7')
    a(f's_cmp_ge_u32 s{S_J}, 2'); a(f's_cbranch_scc1 {exit_label}')
    a(f's_lshr_b32 s{S_H}, s2, 3')


def role_dynamic(a, cfg, P, exit_label, nx=2):
    SM = f's[{S_SM}:{S_SM+3}]'
    T0, T1, T2, T3 = f's{S_T0}', f's{S_T1}', f's{S_T2}', f's{S_T3}'
    lw, lp, dec, fb, bc = (f'{P}_RD{i}' for i in range(5))
    a(f's_cmp_eq_u32 s{S_WV}, 0')
    a(f's_cbranch_scc0 {lw}')
    a(f's_getreg_b32 {T0}, hwreg(HW_REG_XCC_ID, 0, 4)')
    a(f's_lshl_b32 {T1}, {T0}, 7'); a(f's_add_u32 {T1}, {T1}, {C_CNT}')
    a('v_mov_b32 v8, 1'); a('v_mov_b32 v9, 0')
    a('s_mov_b64 exec, 1')
    a(f'buffer_atomic_add v8, v9, {SM}, {T1} offen sc0 sc1')
    a('s_waitcnt vmcnt(0)')
    a(f'v_readfirstlane_b32 {T2}, v8')
    a('s_mov_b64 exec, 0x1ffff')
    a(f'v_lshlrev_b32 v9, 3, v{V_L16}')
    a(f's_mov_b32 {T1}, {C_CNT}')
    a(f's_mov_b32 {T3}, {1 if cfg.force_fallback else 4000}')
    a.label(lp)
    a(f'buffer_load_dword v10, v9, {SM}, {T1} offen sc1')
    a('s_waitcnt vmcnt(0)')
    a(f'v_readlane_b32 s{S_MODE}, v10, 16')
    a(f's_cmp_lg_u32 s{S_MODE}, 0')
    a(f's_cbranch_scc1 {fb}')
    a('v_cmp_gt_u32 vcc, 32, v10')
    a(f's_and_b32 s64, vcc_lo, {(1 << nx) - 1}')
    if cfg.force_fallback:
        a('s_or_b32 s64, s64, 1')
    a(f's_mov_b32 s{S_MODE}, 1')
    a('s_cmp_eq_u32 s64, 0')
    a(f's_cbranch_scc1 {dec}')
    a(f's_mov_b32 s{S_MODE}, 2')
    a(f's_sub_u32 {T3}, {T3}, 1')
    a(f's_cmp_eq_u32 {T3}, 0')
    a(f's_cbranch_scc0 {lp}')
    a.label(dec)
    a('s_mov_b64 exec, 1')
    a(f'v_mov_b32 v10, s{S_MODE}'); a('v_mov_b32 v11, 0'); a('v_mov_b32 v9, 0')
    a(f's_mov_b32 {T1}, {C_CNT + CNT_MODE}')
    a(f'buffer_atomic_cmpswap v[10:11], v9, {SM}, {T1} offen sc0 sc1')
    a('s_waitcnt vmcnt(0)')
    a(f'v_readfirstlane_b32 {T1}, v10')
    a(f's_cmp_eq_u32 {T1}, 0')
    a(f's_cselect_b32 s{S_MODE}, s{S_MODE}, {T1}')
    a.label(fb)
    a('s_mov_b64 exec, 1')
    a(f's_cmp_eq_u32 s{S_MODE}, 1')
    a(f's_cbranch_scc1 {bc}')
    a('v_mov_b32 v8, 1'); a('v_mov_b32 v9, 0')
    a(f's_mov_b32 {T1}, {C_CNT + CNT_FB}')
    a(f'buffer_atomic_add v8, v9, {SM}, {T1} offen sc0 sc1')
    a('s_waitcnt vmcnt(0)')
    a(f'v_readfirstlane_b32 {T2}, v8')
    a(f's_and_b32 {T0}, {T2}, 1')
    a(f's_lshr_b32 {T1}, {T2}, 1')
    a(f's_mov_b32 {T2}, {T1}')
    a.label(bc)
    a(f's_cmp_lt_u32 {T0}, 2'); a(f's_cselect_b32 {T1}, 4, 0')
    a(f's_cmp_lt_u32 {T2}, 32'); a(f's_cselect_b32 {T1}, {T1}, 0')
    a(f's_or_b32 {T1}, {T1}, s{S_MODE}')
    a(f's_lshl_b32 {T2}, {T2}, 8'); a(f's_or_b32 {T1}, {T1}, {T2}')
    a(f's_lshl_b32 {T0}, {T0}, 24'); a(f's_or_b32 {T1}, {T1}, {T0}')
    a(f'v_mov_b32 v8, {T1}'); a(f'v_mov_b32 v9, {L_R}')
    a('ds_write_b32 v9, v8')
    a('s_mov_b64 exec, -1')
    a('s_waitcnt lgkmcnt(0)')
    a.label(lw)
    a('s_barrier')
    a(f'v_mov_b32 v9, {L_R}')
    a('ds_read_b32 v8, v9')
    a('s_waitcnt lgkmcnt(0)')
    a(f'v_readfirstlane_b32 s{S_LID}, v8')
    a(f's_and_b32 s{S_MODE}, s{S_LID}, 3')
    a(f's_lshr_b32 s{S_J}, s{S_LID}, 24')
    a(f's_bfe_u32 s{S_H}, s{S_LID}, 0x100008')
    a(f's_bitcmp1_b32 s{S_LID}, 2')
    a(f's_cbranch_scc0 {exit_label}')
    a(f's_and_b32 s{S_H}, s{S_H}, 31'); a(f's_and_b32 s{S_J}, s{S_J}, 1')


def common_setup(a):
    a(f's_load_dwordx2 s[{S_WS}:{S_WS+1}], s[0:1], {KA_WS}')
    a('v_lshrrev_b32 v1, 6, v0')
    a(f'v_and_b32 v{V_L16}, 63, v0')
    a(f'v_readfirstlane_b32 s{S_WV}, v1')
    a(f'v_lshlrev_b32 v{V_L16}, 4, v{V_L16}')
    a(f's_mov_b32 s{S_LO8}, 0x00ff00ff'); a(f's_mov_b32 s{S_LO8+1}, 0x00ff00ff')
    a(f's_mov_b32 s{S_HI8}, 0xff00ff00'); a(f's_mov_b32 s{S_HI8+1}, 0xff00ff00')
    a(f's_mov_b32 s{S_BUD}, 400000')
    a(f's_mov_b32 s{S_SC}, 0x{SOFT_C:x}')
    a('s_waitcnt lgkmcnt(0)')
    a.srd(S_SM, S_WS, SM_SIZE, add=WS_SM)
    a.srd(S_KV, S_WS, 32 << 20, add=WS_KF)
    a.srd(S_X, S_WS, 64 << 20, add=WS_X)


def role_setup(a, cfg):
    W, H, J = f's{S_WV}', f's{S_H}', f's{S_J}'
    T0, T1, T2 = f's{S_T0}', f's{S_T1}', f's{S_T2}'
    ln, t1, t2 = 8, 9, 10
    a(f'v_lshrrev_b32 v{ln}, 4, v{V_L16}')
    a(f'v_mov_b32 v{V_IDX}, 0xeeee'); a(f'v_mov_b32 v{t1}, 0x4444')
    a(f'v_cndmask_b32 v{V_IDX}, v{V_IDX}, v{t1}, s[{S_LO8}:{S_LO8+1}]')
    a(f's_lshl_b32 {T0}, {W}, 11')
    a(f'v_add_u32 v{V_AGP}, {T0}, v{V_L16}')
    a(f'v_lshrrev_b32 v{t1}, 5, v{ln}'); a(f'v_lshlrev_b32 v{t1}, 10, v{t1}')
    a(f'v_bfe_u32 v{t2}, v{ln}, 4, 1'); a(f'v_lshl_add_u32 v{t1}, v{t2}, 9, v{t1}')
    a(f'v_bfe_u32 v{t2}, v{ln}, 3, 1'); a(f'v_lshl_add_u32 v{t1}, v{t2}, 8, v{t1}')
    a(f'v_and_b32 v{t2}, 7, v{ln}'); a(f'v_lshl_add_u32 v{t1}, v{t2}, 4, v{t1}')
    a(f'v_add_u32 v{V_KDM}, {T0}, v{t1}')
    a(f's_lshl_b32 {T0}, {W}, 16'); a(f's_mul_i32 {T1}, {H}, {cfg.SH}'); a(f's_add_u32 {T0}, {T0}, {T1}')
    a(f'v_lshrrev_b32 v{t1}, 5, v{ln}'); a(f'v_lshlrev_b32 v{t1}, 13, v{t1}')
    a(f'v_bfe_u32 v{t2}, v{ln}, 4, 1'); a(f'v_mul_u32_u24 v{t2}, {cfg.SG}, v{t2}'); a(f'v_add_u32 v{t1}, v{t1}, v{t2}')
    a(f'v_bfe_u32 v{t2}, v{ln}, 1, 1'); a(f'v_mul_u32_u24 v{t2}, {cfg.SP}, v{t2}'); a(f'v_add_u32 v{t1}, v{t1}, v{t2}')
    a(f'v_bfe_u32 v{t2}, v{ln}, 2, 2'); a(f'v_lshl_add_u32 v{t1}, v{t2}, 4, v{t1}')
    a(f'v_and_b32 v{t2}, 1, v{ln}'); a(f'v_lshl_add_u32 v{t1}, v{t2}, 3, v{t1}')
    a(f'v_add_u32 v{V_PTW}, {T0}, v{t1}')
    a(f's_lshl_b32 {T0}, {H}, 8')
    a(f's_and_b32 {T1}, {W}, 1'); a(f's_lshl_b32 {T1}, {T1}, 7'); a(f's_add_u32 {T0}, {T0}, {T1}')
    a(f's_lshr_b32 {T1}, {W}, 1'); a(f's_lshl_b32 {T1}, {T1}, 6'); a(f's_add_u32 {T0}, {T0}, {T1}')
    a(f'v_and_b32 v{t1}, 3, v{ln}'); a(f'v_lshlrev_b32 v{t1}, 4, v{t1}')
    a(f'v_lshrrev_b32 v{t2}, 4, v{ln}'); a(f'v_lshl_add_u32 v{t1}, v{t2}, 2, v{t1}')
    a(f'v_add_u32 v{t1}, {T0}, v{t1}')
    a(f'v_and_b32 v{t2}, 12, v{ln}')
    a(f'v_cmp_eq_u32 vcc, 0, v{t2}')
    a(f'v_mov_b32 v{V_MFW}, 0x40000000')
    a('s_nop 1')
    a(f'v_cndmask_b32 v{V_MFW}, v{V_MFW}, v{t1}, vcc')
    a(f's_lshl_b32 {T0}, {J}, 13')
    a(f's_add_u32 s{S_MEMR}, {T0}, {C_MEMF}')
    a(f's_add_u32 s{S_MEMW}, s{S_MEMR}, 16384')
    a(f's_lshl_b32 {T0}, {J}, 18'); a(f's_add_u32 {T0}, {T0}, {C_PART}')
    for p in range(4):
        a(f's_add_u32 s{S_PW+p}, {T0}, {p*16384}')
    a(f's_lshl_b32 {T1}, {H}, 13'); a(f's_add_u32 s{S_PR}, {T0}, {T1}')
    a(f's_add_u32 s{S_PR2}, s{S_PR}, {16*cfg.SH}')
    a(f's_lshr_b32 {T0}, {W}, 1'); a(f's_mul_i32 {T0}, {T0}, {cfg.SG}')
    a(f's_and_b32 {T1}, {W}, 1'); a(f's_mul_i32 {T1}, {T1}, {cfg.SP}'); a(f's_add_u32 s{S_PRW}, {T0}, {T1}')
    a(f's_mul_i32 s{S_XBASE}, {H}, {cfg.NS*32768}')
    a(f's_lshl_b32 s{S_KVK}, {H}, 13')
    a(f's_add_u32 s{S_KVV}, s{S_KVK}, {16 << 20}')
    a(f's_lshl_b32 {T0}, {W}, 12'); a(f's_add_u32 s{S_KVB}, {T0}, {L_KV}')
    a(f's_lshl_b32 s{S_QKM}, {H}, 12'); a(f's_add_u32 s{S_QKM}, s{S_QKM}, {SM_QKM + 2048}')
    a(f's_lshl_b32 {T0}, {W}, 9'); a(f's_add_u32 s{S_QKM}, s{S_QKM}, {T0}')
    a(f's_lshl_b32 s{S_VMG}, {H}, 11'); a(f's_add_u32 s{S_VMG}, s{S_VMG}, {SM_VMG}'); a(f's_add_u32 s{S_VMG}, s{S_VMG}, {T0}')
    a(f's_mul_i32 {T0}, {W}, 1536'); a(f's_add_u32 s{S_SWB}, {T0}, {L_M}')
    a(f's_lshr_b32 {T0}, {W}, 1'); a(f's_lshl_b32 {T0}, {T0}, 10')
    a(f's_and_b32 {T1}, {W}, 1'); a(f's_lshl_b32 {T1}, {T1}, 3')
    a(f's_add_u32 {T0}, {T0}, {T1}'); a(f's_add_u32 s{S_OWB}, {T0}, {L_O}')
    a(f's_mov_b32 s{S_STEP}, 0')


def x_offsets(a, cfg):
    T0, T1 = f's{S_T0}', f's{S_T1}'
    a(f's_lshl_b32 {T0}, s{S_NEAR}, 13'); a(f's_add_u32 {T0}, {T0}, s{S_XBASE}')
    a(f's_lshl_b32 {T1}, s{S_WV}, 11'); a(f's_add_u32 {T0}, {T0}, {T1}')
    a(f's_lshl_b32 {T1}, s{S_J}, 14')
    a(f's_add_u32 s{S_XW}, {T0}, {T1}')
    a(f's_xor_b32 s{S_XR}, s{S_XW}, 0x4000')
    a(f's_add_u32 s{S_XC}, s{S_XW}, {(3 % cfg.NS) * 32768}')


def const_tables(a):
    ln, t1, t2, js, c0, one = 8, 9, 10, 11, 12, 13
    R = 16
    a(f'v_lshrrev_b32 v{ln}, 4, v{V_L16}')
    a(f'v_add_u32 v{t2}, {L_C}, v{V_L16}')
    a(f'v_mov_b32 v{c0}, v{t2}')
    def onehot(cond_vcc):
        a(f'v_and_b32 v{t1}, 1, v{js}')
        a(f'v_lshlrev_b32 v{t1}, 4, v{t1}')
        a(f'v_mov_b32 v{one}, 0x3f80')
        a(f'v_lshlrev_b32 v{one}, v{t1}, v{one}')
        a(f'v_lshrrev_b32 v{t1}, 1, v{js}')
        for q in range(4):
            a(f'v_cmp_eq_u32 vcc, {q}, v{t1}')
            a('s_nop 1')
            a(f'v_cndmask_b32 v{R+q}, 0, v{one}, vcc')
    for tp in range(2):
        a(f'v_and_b32 v{js}, 3, v{ln}')
        a(f'v_bfe_u32 v{t1}, v{ln}, 3, 1'); a(f'v_lshl_add_u32 v{js}, v{t1}, 2, v{js}')
        a(f'v_bfe_u32 v{t1}, v{ln}, 2, 1'); a(f'v_bfe_u32 v{t2}, v{ln}, 4, 1')
        a(f'v_xor_b32 v{t1}, v{t1}, v{t2}')
        a(f'v_lshrrev_b32 v{t2}, 5, v{ln}'); a(f'v_xor_b32 v{t2}, {tp}, v{t2}')
        a(f'v_or_b32 v{t1}, v{t1}, v{t2}')
        a(f'v_lshl_add_u32 v{js}, v{t1}, 6, v{js}')
        onehot(None)
        a(f'ds_write_b128 v{c0}, v[{R}:{R+3}] offset:{tp*1024}')
        a('s_waitcnt lgkmcnt(0)')
    a(f'v_and_b32 v{js}, 7, v{ln}')
    onehot(None)
    a(f'ds_write_b128 v{c0}, v[{R}:{R+3}] offset:2048')
    a('s_waitcnt lgkmcnt(0)')


EXP_LIN = False
EXP_FL = ''
EXP_REG = False
EXP_STAMP = False
def stage_weights(a, tag):
    W, H, J = f's{S_WV}', f's{S_H}', f's{S_J}'
    T0, T1, T2, T3 = f's{S_T0}', f's{S_T1}', f's{S_T2}', f's{S_T3}'
    LN, t1, t2, t3 = 8, 9, 10, 11
    VD = 12
    TB = [14, 15, 16, 17]
    TC = [18, 19, 20, 21]
    VOF = [24 + f for f in range(4)]
    OB = [32 + n for n in range(8)]
    OC = [40 + n for n in range(8)]
    V_WL = 48
    a(f'v_lshrrev_b32 v{LN}, 4, v{V_L16}')
    a(f'v_lshrrev_b32 v{t1}, 4, v{LN}')
    a(f'v_and_b32 v{t2}, 1, v{t1}')
    a(f'v_lshrrev_b32 v{t3}, 1, v{t1}'); a(f'v_lshl_or_b32 v{t2}, v{t3}, 2, v{t2}')
    a(f'v_and_b32 v{t3}, 15, v{LN}'); a(f'v_xor_b32 v{t2}, v{t2}, v{t3}')
    a(f'v_lshlrev_b32 v{t1}, 13, v{t1}'); a(f'v_lshl_add_u32 v{t1}, v{t2}, 4, v{t1}')
    a(f's_lshl_b32 {T0}, {H}, 8')
    a(f'v_add_u32 v{VD}, {T0}, v{t1}')
    a(f'v_lshrrev_b32 v{t1}, 4, v{LN}'); a(f'v_lshlrev_b32 v{t1}, 3, v{t1}')
    a(f'v_bfe_u32 v{t2}, v{LN}, 2, 2'); a(f'v_add_u32 v{t1}, v{t1}, v{t2}')
    a(f'v_lshlrev_b32 v{t1}, 8, v{t1}')
    a(f'v_and_b32 v{t3}, 1, v{t2}'); a(f'v_lshrrev_b32 v{t2}, 1, v{t2}'); a(f'v_lshl_or_b32 v{t2}, v{t2}, 2, v{t3}')
    a(f'v_bfe_u32 v{t3}, v{LN}, 1, 1'); a(f'v_lshlrev_b32 v{t3}, 1, v{t3}')
    a(f's_lshl_b32 {T0}, {W}, 2'); a(f'v_add_u32 v{t3}, {T0}, v{t3}')
    a(f'v_xor_b32 v{t2}, v{t2}, v{t3}')
    a(f'v_lshl_add_u32 v{t1}, v{t2}, 4, v{t1}')
    a(f'v_and_b32 v{t2}, 1, v{LN}'); a(f'v_lshl_add_u32 v{t1}, v{t2}, 3, v{t1}')
    for x in range(2):
        a(f's_and_b32 {T0}, {W}, 1'); a(f's_xor_b32 {T0}, {T0}, {x}'); a(f's_lshl_b32 {T0}, {T0}, 15')
        a(f'v_add_u32 v{TB[2*x]}, {T0}, v{t1}')
        a(f'v_xor_b32 v{TB[2*x+1]}, 16, v{TB[2*x]}')
        a(f'v_add_u32 v{TC[2*x]}, {L_WB}, v{TB[2*x]}')
        a(f'v_add_u32 v{TC[2*x+1]}, {L_WB}, v{TB[2*x+1]}')
    a(f's_lshl_b32 {T0}, {J}, 10'); a(f'v_add_u32 v{t1}, {T0}, v{V_L16}')
    for f in range(4):
        a(f'v_xor_b32 v{VOF[f]}, {f << 5}, v{t1}')
    a(f'v_bfe_u32 v{t1}, v{LN}, 4, 1'); a(f'v_lshlrev_b32 v{t1}, 5, v{t1}')
    a(f'v_lshrrev_b32 v{t2}, 5, v{LN}'); a(f'v_lshl_add_u32 v{t1}, v{t2}, 2, v{t1}')
    a(f'v_bfe_u32 v{t2}, v{LN}, 2, 2'); a(f'v_add_u32 v{t1}, v{t1}, v{t2}')
    a(f'v_lshlrev_b32 v{t1}, 10, v{t1}')
    a(f'v_lshl_add_u32 v{t1}, v{t2}, 5, v{t1}')
    a(f'v_and_b32 v{t2}, 3, v{LN}'); a(f'v_lshl_add_u32 v{t1}, v{t2}, 3, v{t1}')
    a(f's_lshl_b32 {T0}, {W}, 8'); a(f'v_add_u32 v{t1}, {T0}, v{t1}')
    for n in range(8):
        a(f'v_xor_b32 v{OB[n]}, {n << 5}, v{t1}')
        a(f'v_add_u32 v{OC[n]}, {L_WB}, v{OB[n]}')
    a(f's_lshl_b32 {T0}, {W}, 14'); a(f'v_add_u32 v{V_WL}, {T0}, v{V_L16}')

    def load_ptr(ka):
        a(f's_load_dwordx2 s[{S_PTR}:{S_PTR+1}], s[0:1], {ka}')
        a('s_waitcnt lgkmcnt(0)')
        a.srd(S_W, S_PTR, 8 << 20)

    def dma_qkv(P, region):
        if EXP_LIN:
            a(f's_lshl_b32 {T0}, {H}, 1'); a(f's_add_u32 {T0}, {T0}, {J}'); a(f's_lshl_b32 {T0}, {T0}, 17')
            a(f's_lshl_b32 {T1}, {W}, 14'); a(f's_add_u32 {T0}, {T0}, {T1}'); a(f's_add_u32 {T0}, {T0}, {P << 16}')
            a(f's_add_u32 m0, {T1}, {region}')
            for i in range(16):
                a(f'buffer_load_dwordx4 v{V_L16}, s[{S_W}:{S_W+3}], {T0} offen lds')
                if i < 15:
                    a(f's_add_u32 {T0}, {T0}, 1024'); a('s_add_u32 m0, m0, 1024'); a('s_nop 0')
            return
        a(f's_lshl_b32 {T0}, {J}, 22'); a(f's_lshl_b32 {T1}, {W}, 19'); a(f's_add_u32 {T0}, {T0}, {T1}')
        a(f's_add_u32 {T0}, {T0}, {P << 21}')
        a(f's_lshl_b32 {T1}, {W}, 14'); a(f's_add_u32 m0, {T1}, {region}')
        for i in range(16):
            if EXP_REG: a(f'buffer_load_dwordx4 v[{128 + (P*16 + i)*4 % 128}:{131 + (P*16 + i)*4 % 128}], v{VD}, s[{S_W}:{S_W+3}], {T0} offen{EXP_FL}')
            else: a(f'buffer_load_dwordx4 v{VD}, s[{S_W}:{S_W+3}], {T0} offen{EXP_FL} lds')
            if i < 15:
                a(f's_add_u32 {T0}, {T0}, 32768'); a('s_add_u32 m0, m0, 1024'); a('s_nop 0')

    def dma_wo(cp, region):
        a(f's_lshl_b32 {T0}, {H}, 7'); a(f's_lshl_b32 {T1}, {W}, 4'); a(f's_add_u32 {T0}, {T0}, {T1}')
        a(f's_add_u32 {T0}, {T0}, {64*cp}'); a(f's_lshl_b32 {T0}, {T0}, 11')
        a(f's_lshl_b32 {T1}, {W}, 14'); a(f's_add_u32 m0, {T1}, {region}')
        for i in range(16):
            a(f'buffer_load_dwordx4 v{VOF[i & 3]}, s[{S_W}:{S_W+3}], {T0} offen{EXP_FL} lds')
            if i < 15:
                a(f's_add_u32 {T0}, {T0}, 2048'); a('s_add_u32 m0, m0, 1024'); a('s_nop 0')

    def read_qkv_range(base_pi, tb, dest):
        n = 0
        for pl in range(4):
            pi = base_pi + pl
            for tau in range(2):
                d = dest(pi, tau)
                for hq in range(2):
                    for q in range(2):
                        r = 4*hq + 2*q
                        a(f'ds_read_b64_tr_b16 {d(r)}, v{tb[2*(pl >> 1) + tau]} offset:{(pl & 1)*16384 + hq*8192 + q*1024}')
                a('s_waitcnt lgkmcnt(8)')

    def read_qkv(P, tb, dest, nm):
        l1, l2 = f'{tag}_ST{nm}A', f'{tag}_ST{nm}B'
        a(f's_lshr_b32 {T0}, {W}, 1'); a(f's_cmp_eq_u32 {T0}, {P}')
        a(f's_cbranch_scc0 {l1}')
        read_qkv_range(0, tb, dest)
        a(f's_branch {l2}')
        a.label(l1)
        read_qkv_range(4, tb, dest)
        a.label(l2)

    def read_wo(ad, dest):
        for nu in range(8):
            for hq in range(2):
                for q in range(2):
                    r = dest + 8*nu + 4*hq + 2*q
                    a(f'ds_read_b64_tr_b16 v[{r}:{r+1}], v{ad[nu]} offset:{hq*16384 + q*8192}')
            a('s_waitcnt lgkmcnt(8)')

    dq = lambda pi, t: (lambda r: f'a[{16*pi+8*t+r}:{16*pi+8*t+r+1}]')
    dk = lambda pi, t: (lambda r: f'a[{128+16*pi+8*t+r}:{128+16*pi+8*t+r+1}]')
    def dv(pi, t):
        b = WV_R + 16*pi + 8*t if pi < 4 else SREG + 16*(pi-4) + 8*t
        return lambda r: f'v[{b+r}:{b+r+1}]'

    pieces = [('q', 0), ('q', 1), ('k', 0), ('k', 1), ('v', 0), ('v', 1), ('o', 0), ('o', 1)]
    ptrs = {'q': KA_WQ, 'k': KA_WK, 'v': KA_WV, 'o': KA_WO}
    def issue(n):
        m, P = pieces[n]
        if P == 0: load_ptr(ptrs[m])
        reg = L_WB if n & 1 else L_WA
        if m == 'o': dma_wo(P, reg)
        else: dma_qkv(P, reg)
    def xs(i):
        if EXP_STAMP:
            a('s_memrealtime s[88:89]'); a('s_waitcnt lgkmcnt(0)'); a(f'v_writelane_b32 v60, s88, {i}')
    xs(2)
    issue(0); issue(1)
    xs(3)
    for n in range(8):
        m, P = pieces[n]
        a(f's_waitcnt vmcnt({16 if n < 7 else 0})')
        xs(4 + 2*n)
        a('s_barrier')
        tb = TC if n & 1 else TB
        if m == 'q': read_qkv(P, tb, dq, n)
        elif m == 'k': read_qkv(P, tb, dk, n)
        elif m == 'v': read_qkv(P, tb, dv, n)
        elif P == 0: read_wo(OB, WO_R)
        else: read_wo(OC, SREG)
        a('s_waitcnt lgkmcnt(0)')
        xs(5 + 2*n)
        a('s_barrier')
        if n + 2 < 8: issue(n + 2)
        if n == 6:
            for i in range(16):
                r = SREG + 4*i
                a(f'ds_write_b128 v{V_WL}, v[{r}:{r+3}] offset:{L_WA + i*1024}')
            a('s_waitcnt lgkmcnt(0)')
        if n == 7:
            a(f'v_add_u32 v{V_WL}, {L_WB}, v{V_WL}')
            for i in range(16):
                r = SREG + 4*i
                a(f'ds_write_b128 v{V_WL}, v[{r}:{r+3}] offset:{i*1024}')
            a('s_waitcnt lgkmcnt(0)')


def kv_dma(cfg):
    KV = f's[{S_KV}:{S_KV+3}]'
    out = []
    out.append([f's_mov_b32 m0, s{S_KVB}', 's_nop 0', f'buffer_load_dwordx4 v{V_KDM}, {KV}, s{S_KVK} offen lds'])
    out.append([f's_add_u32 m0, s{S_KVB}, {1024-128}', 's_nop 0', f'buffer_load_dwordx4 v{V_KDM}, {KV}, s{S_KVK} offen offset:128 lds'])
    out.append([f's_add_u32 m0, s{S_KVB}, 2048', 's_nop 0', f'buffer_load_dwordx4 v{V_KDM}, {KV}, s{S_KVV} offen lds'])
    out.append([f's_add_u32 m0, s{S_KVB}, {3072-128}', 's_nop 0', f'buffer_load_dwordx4 v{V_KDM}, {KV}, s{S_KVV} offen offset:128 lds'])
    return out


def svload():
    return [f'ds_read_b128 v[{SREG+4*i}:{SREG+4*i+3}], v{V_T2} offset:{L_WA + i*1024}' for i in range(16)]

def wl_addr(a, dst, add=0):
    a(f's_lshl_b32 s{S_T0}, s{S_WV}, 14')
    if add: a(f's_add_u32 s{S_T0}, s{S_T0}, {add}')
    a(f'v_add_u32 v{dst}, s{S_T0}, v{V_L16}')


def rec_loop(a, cfg, P, sfl, dbg=None):
    SM = f's[{S_SM}:{S_SM+3}]'
    X = f's[{S_X}:{S_X+3}]'
    LO = f's[{S_LO8}:{S_LO8+1}]'
    HI = f's[{S_HI8}:{S_HI8+1}]'
    dbg = dbg or {}
    L = lambda s: f'{P}_{s}'
    def D(name, regs, tmp=V_T):
        if name in dbg:
            lab = a.newlabel(P + 'DBG')
            a(f's_cmp_lg_u32 s{S_STEP}, {dbg[name][1]}')
            a(f's_cbranch_scc1 {lab}')
            dbg_dump(a, regs, dbg[name][0], tmp)
            a.label(lab)
    prof = dbg.get('prof')
    global NOPK
    NOPK = cfg.NOPK
    stamps = getattr(cfg, 'stamps', None) or list(range(15))
    def ST(i):
        if prof is not None and i in stamps:
            k = stamps.index(i)
            if getattr(cfg, 'RT', False):
                if i == 14:
                    a(f's_mov_b64 s[94:95], s[{64+2*k}:{65+2*k}]') if False else None
                if i == 0:
                    k14 = stamps.index(14)
                    a('s_waitcnt lgkmcnt(0)')
                    a(f's_mov_b64 s[{64+2*14}:{65+2*14}], s[{64+2*k14}:{65+2*k14}]')
                a(f's_memrealtime s[{64+2*k}:{65+2*k}]')
            else:
                a(f's_memtime s[{64+2*k}:{65+2*k}]')

    MWr, A1, A2, A3 = AM + 8, AM + 12, AM + 20, AM + 28
    NEG = 24
    def top_prep():
        out = []
        out.append(f'v_add_u32 v{MWr}, {L_M}, v{V_AGP}')
        out.append(f'v_xor_b32 v{A1}, 0x800, v{MWr}')
        out.append(f'v_xor_b32 v{A2}, 0x1000, v{MWr}')
        out.append(f'v_xor_b32 v{A3}, 0x1800, v{MWr}')
        for r in range(40, 64, 2):
            out.append(f'v_mov_b64 v[{r}:{r+1}], 0')
        return out

    wl_addr(a, V_T2)
    sv0 = svload()
    a.ext(sv0[:8]); a('s_waitcnt lgkmcnt(0)'); a.ext(sv0[8:])
    a.ext(top_prep())
    for r in range(4): a(f'v_mov_b32 v{NEG+r}, -1')
    if cfg.kvflag is not None:
        a(f's_lshr_b32 s{S_KVFB}, s{S_H}, 1'); a(f's_lshl_b32 s{S_KVFB}, s{S_KVFB}, 4')
        a(f's_add_u32 s{S_KVFB}, s{S_KVFB}, {cfg.kvflag}')
        a(f's_mov_b32 s{S_KVOK}, 0')
    a.label(L('TOP'))
    if cfg.kvflag is not None:
        a(f's_cmp_eq_u32 s{S_KVOK}, 0'); a(f's_cbranch_scc1 {L("KVW")}')
        a.label(L('KVB'))
        if getattr(cfg, 'tl', False):
            lab = a.newlabel(P + 'TL')
            a(f's_cmp_lg_u32 s{S_STEP}, 0'); a(f's_cbranch_scc1 {lab}')
            a('s_memrealtime s[88:89]'); a('s_waitcnt lgkmcnt(0)'); a('s_mov_b32 s75, s88')
            a.label(lab)
    ST(0)
    a.label(L('PM'))
    a(f'buffer_load_dwordx4 v[{AM}:{AM+3}], v{V_AGP}, {SM}, s{S_MEMR} offen sc1')
    a(f'buffer_load_dwordx4 v[{AM+4}:{AM+7}], v{V_AGP}, {SM}, s{S_MEMR} offen offset:1024 sc1')
    a('s_waitcnt vmcnt(0)')
    max_chain(a, V_T, list(range(AM, AM + 8)))
    a(f'v_cmp_eq_u32 vcc, -1, v{V_T}')
    poll_end(a, L('PM'), L('PM_D'))
    ST(1)
    a(f'ds_write_b128 v{MWr}, v[{AM}:{AM+3}]')
    a(f'ds_write_b128 v{MWr}, v[{AM+4}:{AM+7}] offset:1024')
    def qk(pi):
        A = AM + 4*pi
        return [smf(AQ0, A, wq(pi, 0)), smf(AQ1, A, wq(pi, 1)), smf(AK0, A, wk(pi, 0)), smf(AK1, A, wk(pi, 1))]
    def qk4(pi): a.ext(qk(pi))
    def vv(pi): return [smf(AV0, AM + 4*pi, wv(pi, 0)), smf(AV1, AM + 4*pi, wv(pi, 1))]
    kvd = kv_dma(cfg) if 'kv' not in cfg.skip else [[], [], [], []]
    xcl = [f'buffer_store_dwordx4 v[{NEG}:{NEG+3}], v{V_L16}, {X}, s{S_XC} offen sc1',
           f'buffer_store_dwordx4 v[{NEG}:{NEG+3}], v{V_L16}, {X}, s{S_XC} offen offset:1024 sc1']
    m = qk(0)
    a(m[0]); a.ext(kvd[0]); a(m[1]); a.ext(kvd[1]); a(m[2]); a(xcl[0]); a(m[3]); a(xcl[1])
    a('s_waitcnt lgkmcnt(0)')
    a('s_barrier')
    ST(2)
    for pi in range(2, 8):
        ad = [A1, A2, A3][(pi >> 1) - 1]
        a(f'ds_read_b128 v[{AM+4*pi}:{AM+4*pi+3}], v{ad} offset:{(pi & 1)*1024}')
    m = qk(1)
    a(m[0]); a.ext(kvd[2]); a(m[1]); a.ext(kvd[3]); a(m[2]); a(m[3])
    a.ext(vv(0)); a.ext(vv(1))
    D('AM', list(range(AM, AM + 32)))
    fine = prof is not None and 'q0' in stamps
    ST('q0')
    for pi in range(2, 6):
        a(f's_waitcnt lgkmcnt({0 if fine else 7 - pi})')
        ST(f'q{pi}w')
        qk4(pi)
    a('s_waitcnt lgkmcnt(0)')
    ST('q6')
    for pi in (6, 7):
        a(smf(AQ0, AM + 4*pi, wq(pi, 0))); a(smf(AQ1, AM + 4*pi, wq(pi, 1)))
    a(smf(AK0, AM + 24, wk(6, 0))); a(smf(AK1, AM + 24, wk(6, 1)))
    ST('q7')
    a(f'v_permlane32_swap_b32 v{AQ0}, v{AQ1}')
    a(f'v_permlane32_swap_b32 v{AQ0+1}, v{AQ1+1}')
    a(f'v_permlane32_swap_b32 v{AQ0+2}, v{AQ1+2}')
    a(smf(AK0, AM + 28, wk(7, 0)))
    a(f'v_permlane32_swap_b32 v{AQ0+3}, v{AQ1+3}')
    a(pkadd(AQ0, AQ0, AQ1))
    a(smf(AK1, AM + 28, wk(7, 1)))
    a(pkadd(AQ0 + 2, AQ0 + 2, AQ1 + 2))
    a('s_nop 0')
    a(f'v_cvt_pk_bf16_f32 v{XS}, v{AQ0}, v{AQ0+1}')
    VS = []
    for pi in [4, 5, 6, 7, 2, 3]: VS += vv(pi)
    a(VS[0])
    a(f'v_cvt_pk_bf16_f32 v{XS+1}, v{AQ0+2}, v{AQ0+3}')
    a('s_nop 1')
    a(VS[1])
    ST('q8')
    for r in range(4):
        a(f'v_permlane32_swap_b32 v{AK0+r}, v{AK1+r}')
    a(VS[2])
    a(pkadd(AK0, AK0, AK1)); a(pkadd(AK0 + 2, AK0 + 2, AK1 + 2))
    a('s_nop 0')
    a(f'v_cvt_pk_bf16_f32 v{XS+2}, v{AK0}, v{AK0+1}')
    a(f'v_cvt_pk_bf16_f32 v{XS+3}, v{AK0+2}, v{AK0+3}')
    a(VS[3])
    a(f'buffer_store_dwordx4 v[{XS}:{XS+3}], v{V_L16}, {X}, s{S_XW} offen sc1')
    if cfg.PQ_EARLY:
        a(f'buffer_load_dwordx4 v[{RX}:{RX+3}], v{V_L16}, {X}, s{S_XR} offen sc1')
    ST(3)
    D('XS', [XS, XS+1, XS+2, XS+3])
    wl_addr(a, V_T2, L_WB)
    wo_ld = [f'ds_read_b128 v[{SREG+4*i}:{SREG+4*i+3}], v{V_T2} offset:{i*1024}' for i in range(16)]
    a(f'v_add_u32 v{V_T}, {L_C}, v{V_L16}')
    a(VS[4]); a(wo_ld[0]); a(wo_ld[1]); a(wo_ld[2])
    a(VS[5]); a(wo_ld[3]); a(wo_ld[4]); a(wo_ld[5])
    a(VS[6]); a(wo_ld[6]); a(wo_ld[7])
    a(VS[7])
    a(f'ds_read_b128 v[{SEL0}:{SEL0+3}], v{V_T}')
    a(f'ds_read_b128 v[{SEL1}:{SEL1+3}], v{V_T} offset:1024')
    a(VS[8]); a(wo_ld[8]); a(wo_ld[9])
    a(VS[9]); a(wo_ld[10]); a(wo_ld[11])
    a(VS[10])
    a('s_waitcnt lgkmcnt(4)')
    a(wo_ld[12]); a(wo_ld[13])
    a(VS[11])
    a(mf32(D0, XS, SEL0))
    a(wo_ld[14]); a(wo_ld[15])
    a(mf32(D1, XS, SEL1))
    a(f'v_lshrrev_b32 v{V_T2}, 1, v{V_L16}')
    a('s_nop 4')
    for r in range(4):
        a(f'v_permlane32_swap_b32 v{AV0+r}, v{AV1+r}')
    a('s_nop 0')
    a(pkadd(AV0, AV0, AV1)); a(pkadd(AV0 + 2, AV0 + 2, AV1 + 2))
    a('s_nop 0')
    a(f'v_cvt_pk_bf16_f32 v{VA}, v{AV0}, v{AV0+1}')
    a(f'v_cvt_pk_bf16_f32 v{VA+1}, v{AV0+2}, v{AV0+3}')
    a('s_nop 1')
    a(f'v_permlane16_swap_b32 v{VA}, v{VA+1}')
    a('s_nop 1')
    a(f'v_permlane32_swap_b32 v{VA}, v{VA+1}')
    a('s_nop 1')
    a(f'buffer_store_dwordx2 v[{VA}:{VA+1}], v{V_T2}, {X}, s{S_XW} offen offset:1024 sc1')
    ST(4)
    a('s_barrier')
    SW, SR, MR, PVA = XS, XS + 1, XS + 2, XS + 3
    a(f'v_mov_b32 v{PVA}, v{V_T2}')
    a(f'v_lshrrev_b32 v{SR}, 8, v{V_L16}'); a(f'v_lshlrev_b32 v{SR}, 7, v{SR}')
    a(f'v_and_b32 v{V_T}, 0x70, v{V_L16}')
    a(f'v_add_u32 v{SR}, v{SR}, v{V_T}')
    a(f'v_add_u32 v{SW}, s{S_SWB}, v{SR}')
    a(f'v_and_b32 v{V_T2}, 0x80, v{V_L16}')
    a(f'v_lshl_add_u32 v{SR}, v{V_T2}, 2, v{SR}')
    a(f'v_add_u32 v{SR}, {L_M}, v{SR}')
    a(f'v_lshrrev_b32 v{MR}, 9, v{V_L16}'); a(f'v_lshl_add_u32 v{MR}, v{MR}, 7, v{V_T}')
    a(f'v_bfe_u32 v{V_T}, v{V_L16}, 8, 1'); a(f'v_lshl_add_u32 v{MR}, v{V_T}, 3, v{MR}')
    a(f'v_bfe_u32 v{V_T}, v{V_L16}, 7, 1'); a(f'v_lshl_add_u32 v{MR}, v{V_T}, 2, v{MR}')
    a(f'v_add_u32 v{MR}, {L_M + 1280}, v{MR}')
    a(f'v_add_u32 v{V_T}, s{S_KVB}, v{V_L16}')
    a('s_waitcnt vmcnt(1)')
    ST(5)
    if cfg.PQ_EARLY:
        a(f'ds_read_b128 v[{KT0}:{KT0+3}], v{V_T}')
        a(f'ds_read_b128 v[{KT1}:{KT1+3}], v{V_T} offset:1024')
        a(f'ds_read_b128 v[{VT0}:{VT0+3}], v{V_T} offset:2048')
        a(f'ds_read_b128 v[{VT1}:{VT1+3}], v{V_T} offset:3072')
        max_chain(a, V_T2, [RX, RX+1, RX+2, RX+3])
        a(f'v_cmp_eq_u32 vcc, -1, v{V_T2}')
        a(f's_cbranch_vccz {L("PQ_D")}')
    a.label(L('PQ'))
    a(f'buffer_load_dwordx4 v[{RX}:{RX+3}], v{V_L16}, {X}, s{S_XR} offen sc1')
    if not cfg.PQ_EARLY:
        a(f'ds_read_b128 v[{KT0}:{KT0+3}], v{V_T}')
        a(f'ds_read_b128 v[{KT1}:{KT1+3}], v{V_T} offset:1024')
        a(f'ds_read_b128 v[{VT0}:{VT0+3}], v{V_T} offset:2048')
        a(f'ds_read_b128 v[{VT1}:{VT1+3}], v{V_T} offset:3072')
    a('s_waitcnt vmcnt(0)')
    max_chain(a, V_T2, [RX, RX+1, RX+2, RX+3])
    a(f'v_cmp_eq_u32 vcc, -1, v{V_T2}')
    poll_end(a, L('PQ'), L('PQ_D'))
    ST(6)
    a('s_waitcnt lgkmcnt(0)')
    a(mf32(D0, RX, SEL0, D0))
    a(mf32(D1, RX, SEL1, D1))
    a(f'buffer_load_dwordx2 v[{RV}:{RV+1}], v{PVA}, {X}, s{S_XR} offen offset:1024 sc1')
    a(f's_cmp_eq_u32 s{S_STEP}, s{S_NST}')
    a('s_nop 2')
    a(f'v_cvt_pk_bf16_f32 v{TT}, v{D0}, v{D0+1}')
    a(f'v_cvt_pk_bf16_f32 v{TT+1}, v{D0+2}, v{D0+3}')
    a('s_nop 0')
    a(f'v_cvt_pk_bf16_f32 v{TT+2}, v{D1}, v{D1+1}')
    a(f'v_cvt_pk_bf16_f32 v{TT+3}, v{D1+2}, v{D1+3}')
    a(f's_cbranch_scc1 {L("TAIL")}')
    a('s_nop 0')
    a(mf32(SA, KT0, TT))
    a(mf32(SB, KT1, TT))
    a(mf32(SMM, TT, TT))
    D('T', [TT, TT+1, TT+2, TT+3], V_T2)
    a(f's_mov_b64 exec, {LO}')
    a('s_nop 1')
    a(f'ds_write_b128 v{SW}, v[{SA}:{SA+3}]')
    a('s_nop 1')
    a(f'ds_write_b128 v{SW}, v[{SB}:{SB+3}] offset:512')
    a('s_nop 2')
    a(f'ds_write_b128 v{SW}, v[{SMM}:{SMM+3}] offset:1024')
    a('s_mov_b64 exec, -1')
    a('s_waitcnt lgkmcnt(0)')
    a('s_barrier')
    ST(7)
    a(f'ds_read2st64_b32 v[{MM}:{MM+1}], v{MR} offset0:0 offset1:6')
    a(f'ds_read2st64_b32 v[{MM+2}:{MM+3}], v{MR} offset0:12 offset1:18')
    for w in range(4):
        r = R0 + 4*w
        a(f'ds_read_b128 v[{r}:{r+3}], v{SR} offset:{w*1536}')
    a(f'v_mov_b32 v{V_T}, v{PVA}') if False else None
    for r in range(WACC[0], WACC[0] + 8, 2):
        a(f'v_mov_b64 v[{r}:{r+1}], 0')
    a('s_waitcnt lgkmcnt(4)')
    a(pkadd(MM, MM, MM + 2))
    a('s_waitcnt lgkmcnt(2)')
    a(pkadd(R0, R0, R1)); a(pkadd(R0 + 2, R0 + 2, R1 + 2))
    a(f'v_add_f32 v{MM}, v{MM}, v{MM+1}')
    M, M2 = MM + 2, MM + 3
    HALF = SUM + 2
    a('s_waitcnt lgkmcnt(0)')
    a(pkadd(R2, R2, R3)); a(pkadd(R2 + 2, R2 + 2, R3 + 2))
    a(pkadd(R0, R0, R2)); a(pkadd(R0 + 2, R0 + 2, R2 + 2))
    a(f'v_mov_b32 v{ONES}, 0x3f803f80')
    a(f'v_max3_f32 v{M}, v{R0}, v{R0+1}, v{MM}')
    a(f'v_mov_b32 v{ONES+1}, 0x3f803f80')
    a(f'v_max3_f32 v{M}, v{M}, v{R0+2}, v{R0+3}')
    D('S', [R0, R0+1, R0+2, R0+3, MM], V_T2)
    a(f'v_mov_b32 v{ONES+2}, 0x3f803f80')
    a(f'v_mov_b32 v{ONES+3}, 0x3f803f80')
    a(f'v_max_f32_dpp v{M}, v{M}, v{M} row_ror:8 row_mask:0xf bank_mask:0xf')
    a(f'v_mov_b32 v{PMQ+2}, 0x3f003f00')
    a(f'v_mov_b32 v{M2}, v{M}')
    a(f'v_mov_b32 v{PMQ+3}, 0x3f003f00')
    a('s_nop 0')
    a(f'v_permlane32_swap_b32 v{M}, v{M2}')
    a('s_nop 0')
    a(f'v_max_f32 v{M}, v{M}, v{M2}')
    a(f'v_mov_b32 v{M2}, v{M}')
    a('s_nop 1')
    a(f'v_permlane16_swap_b32 v{M}, v{M2}')
    a('s_nop 0')
    a(f'v_max_f32 v{M}, v{M}, v{M2}')
    a(f'v_mul_f32 v{M}, s{S_SC}, v{M}')
    E = [R0, R0+1, R0+2, R0+3, MM]
    for e in E:
        a(f'v_fma_f32 v{e}, v{e}, s{S_SC}, -v{M}')
    for e in (MM, R0, R0+1, R0+2, R0+3):
        a(f'v_exp_f32 v{e}, v{e}')
    a(f'v_mov_b32_dpp v{M2}, v{MM} row_ror:8 row_mask:0xf bank_mask:0xf')
    a(f'v_cvt_pk_bf16_f32 v{PB}, v{R0}, v{R0+1}')
    a(f'v_cvt_pk_bf16_f32 v{PB+1}, v{R0+2}, v{R0+3}')
    a(f'v_cvt_pk_bf16_f32 v{PMQ}, v{MM}, v{M2}')
    a(f'v_mov_b32_dpp v{PB+2}, v{PB} row_ror:8 row_mask:0xf bank_mask:0xf')
    a(f'v_mov_b32_dpp v{PB+3}, v{PB+1} row_ror:8 row_mask:0xf bank_mask:0xf')
    a(f'v_cvt_pk_bf16_f32 v{PMQ+1}, v{MM}, v{M2}')
    ST(8)
    a('s_waitcnt vmcnt(0)')
    a(mf32(SUM, ONES, PB))
    a(f'v_max_u32 v{V_T2}, v{RV}, v{RV+1}')
    a(f'v_cmp_eq_u32 vcc, -1, v{V_T2}')
    a(mf32(O0, VT0, PB))
    a(f's_cbranch_vccz {L("PV_D")}')
    a(f'v_lshrrev_b32 v{V_T}, 1, v{V_L16}')
    a.label(L('PV'))
    a(f'buffer_load_dwordx2 v[{RV}:{RV+1}], v{V_T}, {X}, s{S_XR} offen offset:1024 sc1')
    a('s_waitcnt vmcnt(0)')
    a(f'v_max_u32 v{V_T2}, v{RV}, v{RV+1}')
    a(f'v_cmp_eq_u32 vcc, -1, v{V_T2}')
    poll_end(a, L('PV'), L('PV_D'))
    a(f'v_swap_b32 v{VA+1}, v{RV}')
    a(mf32(O1, VT1, PB))
    a(mf16(SUM, PMQ + 2, PMQ, SUM))
    a(mf16(O0, VA, PMQ, O0))
    a(mf16(O1, VA + 2, PMQ, O1))
    ST(9)
    a(f'v_rcp_f32 v{V_T}, v{SUM}')
    a(f'v_add_u32 v{V_T2}, s{S_OWB}, v{V_L16}')
    for r in range(WACC[2], WACC[3] + 4, 2):
        pass
    for r in (48, 50):
        a(f'v_mov_b64 v[{r}:{r+1}], 0')
    for r in (32, 34):
        a(f'v_mov_b64 v[{r}:{r+1}], 0')
    a('s_nop 0')
    D('O', [O0+i for i in range(8)] + [SUM], 36)
    for r in (O0, O0 + 2, O1, O1 + 2):
        a(f'v_pk_mul_f32 v[{r}:{r+1}], v[{r}:{r+1}], v[{V_T}:{V_T+1}] op_sel_hi:[1,0]')
    a(f'v_cvt_pk_bf16_f32 v{OA}, v{O0}, v{O0+1}')
    a(f'v_cvt_pk_bf16_f32 v{OA+1}, v{O1}, v{O1+1}')
    a(f'v_cvt_pk_bf16_f32 v{OA+2}, v{O0+2}, v{O0+3}')
    a(f'v_cvt_pk_bf16_f32 v{OA+3}, v{O1+2}, v{O1+3}')
    a(f's_mov_b64 exec, {LO}')
    a(f'ds_write2_b64 v{V_T2}, v[{OA}:{OA+1}], v[{OA+2}:{OA+3}] offset0:0 offset1:16')
    a('s_mov_b64 exec, -1')
    a(f'v_add_u32 v{V_T}, {L_O}, v{V_L16}')
    for r in (36, 38, 40, 42, 44, 46, 52, 54):
        a(f'v_mov_b64 v[{r}:{r+1}], 0')
    a('s_waitcnt lgkmcnt(0)')
    a('s_barrier')
    ST(10)
    a(f'ds_read_b128 v[{OA}:{OA+3}], v{V_T}')
    a(f'ds_read_b128 v[{OA+4}:{OA+7}], v{V_T} offset:1024')
    if 'pub' not in cfg.skip: publish(a, cfg, P, 'A')
    if cfg.kvflag is not None:
        a(f's_add_u32 s{S_T0}, s{S_STEP}, 1'); a(f's_lshr_b32 s{S_T0}, s{S_T0}, 2'); a(f's_lshl_b32 s{S_T0}, s{S_T0}, 8')
        a(f's_add_u32 s{S_T0}, s{S_T0}, s{S_KVFB}')
        a(f'buffer_load_dwordx2 v[56:57], off, {SM}, s{S_T0} sc1')
    def wo0(nu): a(smf(WACC[nu], OA, v8(WO_R + 8*nu)))
    def wo1(nu): a(smf(WACC[nu], OA + 4, v8(SREG + 8*nu)))
    def pack(p):
        t0, t1 = WACC[2*p], WACC[2*p + 1]
        out = []
        for r in range(4): out.append(f'v_permlane32_swap_b32 v{t0+r}, v{t1+r}')
        out.append(pkadd(t0, t0, t1)); out.append(pkadd(t0 + 2, t0 + 2, t1 + 2))
        out.append(f'v_cvt_pk_bf16_f32 v{t1}, v{t0}, v{t0+1}')
        out.append(f'v_cvt_pk_bf16_f32 v{t1+1}, v{t0+2}, v{t0+3}')
        out.append(f'buffer_store_dwordx2 v[{t1}:{t1+1}], v{V_PTW}, {SM}, s{S_PW+p} offen{sfl}')
        return out
    ST('w0')
    a('s_waitcnt lgkmcnt(1)' if not (prof is not None and 'w0' in stamps) else 's_waitcnt lgkmcnt(0)')
    ST('w1')
    wo0(0); wo0(1)
    a('s_waitcnt lgkmcnt(0)')
    D('OA', [OA+i for i in range(8)])
    wo1(0); wo1(1)
    wo0(2); wo0(3)
    for p in range(1, 4):
        ST(f'w{p+1}')
        pk = pack(p - 1)
        a.ext(pk[0:3]); wo1(2*p); a.ext(pk[3:5]); a('s_nop 0'); wo1(2*p + 1); a(pk[5]); a('s_nop 0'); a.ext(pk[6:8])
        if p < 3:
            wo0(2*p + 2); a(pk[8]); wo0(2*p + 3)
        else:
            a(pk[8])
    ST('w5')
    wl_addr(a, V_T2)
    sv = svload()
    a.ext(sv[0:4])
    a('s_nop 1')
    pk = pack(3)
    a.ext(pk[0:4]); a('s_nop 0'); a.ext(pk[4:6]); a('s_nop 0'); a.ext(pk[6:9])
    ST(11)
    a.ext(sv[4:14])
    PRA = 28
    ln = 29
    a(f'v_lshrrev_b32 v{ln}, 4, v{V_L16}')
    if cfg.RS_PERM:
        a(f'v_lshrrev_b32 v{PRA}, 4, v{ln}'); a(f'v_lshlrev_b32 v{PRA}, 2, v{PRA}')
        a(f'v_and_b32 v{30}, 3, v{ln}'); a(f'v_add_u32 v{PRA}, v{PRA}, v{30}')
        a(f'v_mul_u32_u24 v{PRA}, {cfg.SH}, v{PRA}')
        a(f'v_bfe_u32 v{30}, v{ln}, 2, 2'); a(f'v_lshl_add_u32 v{PRA}, v{30}, 4, v{PRA}')
    else:
        a(f'v_lshrrev_b32 v{PRA}, 2, v{ln}'); a(f'v_mul_u32_u24 v{PRA}, {cfg.SH}, v{PRA}')
        a(f'v_and_b32 v{30}, 3, v{ln}'); a(f'v_lshl_add_u32 v{PRA}, v{30}, 4, v{PRA}')
    a(f'v_add_u32 v{PRA}, s{S_PRW}, v{PRA}')
    a(f'v_add_u32 v{V_T}, {L_C}, v{V_L16}')
    for r in range(4): a(f'v_mov_b32 v{NEG+r}, -1')
    a('s_waitcnt lgkmcnt(8)')
    a.ext(sv[14:16])
    a(f'ds_read_b128 v[{SELR}:{SELR+3}], v{V_T} offset:2048')
    if not cfg.PR_NOACK: a('s_waitcnt vmcnt(0)')
    ST(12)
    if cfg.kvflag is not None and not cfg.PR_NOACK:
        a('v_and_b32 v56, v56, v57')
        a('s_nop 0')
        a(f'v_readfirstlane_b32 s{S_KVOK}, v56')
    a.label(L('PR'))
    a(f'buffer_load_dwordx4 v[{PR0}:{PR0+3}], v{PRA}, {SM}, s{S_PR} offen sc1')
    a(f'buffer_load_dwordx4 v[{PR1}:{PR1+3}], v{PRA}, {SM}, s{S_PR2} offen sc1')
    a('s_waitcnt vmcnt(0)')
    max_chain(a, V_T, list(range(PR0, PR0 + 8)))
    a(f'v_cmp_eq_u32 vcc, -1, v{V_T}')
    poll_end(a, L('PR'), L('PR_D'))
    ST(13)
    if cfg.kvflag is not None and cfg.PR_NOACK:
        a('v_and_b32 v56, v56, v57')
        a('s_nop 0')
        a(f'v_readfirstlane_b32 s{S_KVOK}, v56')
    a('s_waitcnt lgkmcnt(0)')
    a(mf32(RD, PR0, SELR))
    a(mf32(RD, PR1, SELR, RD))
    a(f'buffer_store_dwordx4 v[{NEG}:{NEG+3}], v{PRA}, {SM}, s{S_PR} offen{sfl}') if cfg.EARLY_CLR else None
    a(f'buffer_store_dwordx4 v[{NEG}:{NEG+3}], v{PRA}, {SM}, s{S_PR2} offen{sfl}') if cfg.EARLY_CLR else None
    a('s_nop 5' if cfg.EARLY_CLR else 's_nop 7')
    if cfg.RS_PERM:
        a(pkadd(RD, RD, RD + 2))
        a('s_nop 0')
        a(f'v_add_f32 v{RD}, v{RD}, v{RD+1}')
    else:
        a(f'v_permlane32_swap_b32 v{RD}, v{RD+2}')
        a(f'v_permlane32_swap_b32 v{RD+1}, v{RD+3}')
        a('s_nop 0')
        a(pkadd(RD, RD, RD + 2))
        a('s_nop 1')
        a(f'v_permlane16_swap_b32 v{RD}, v{RD+1}')
        a('s_nop 0')
        a(f'v_add_f32 v{RD}, v{RD}, v{RD+1}')
    a('s_nop 1')
    a(f'v_mov_b32_dpp v{RD+1}, v{RD} row_shl:4 row_mask:0xf bank_mask:0xf')
    a('s_nop 0')
    a(f'v_cvt_pk_bf16_f32 v{RD}, v{RD}, v{RD+1}')
    a(f'buffer_store_dword v{RD}, v{V_MFW}, {SM}, s{S_MEMW} offen{sfl}')
    ST(14)
    nclr = 1
    if not cfg.EARLY_CLR:
        a(f'buffer_store_dwordx4 v[{NEG}:{NEG+3}], v{PRA}, {SM}, s{S_PR} offen{sfl}')
        a(f'buffer_store_dwordx4 v[{NEG}:{NEG+3}], v{PRA}, {SM}, s{S_PR2} offen{sfl}')
        nclr = 3
    a(f'buffer_store_dword v{NEG}, v{V_MFW}, {SM}, s{S_MEMR} offen{sfl}')
    if prof is not None:
        lab = a.newlabel(P + 'DBG')
        a(f's_cmp_lg_u32 s{S_STEP}, {prof[1]}')
        a(f's_cbranch_scc1 {lab}')
        a('s_waitcnt lgkmcnt(0)')
        a(f's_mov_b32 s94, s{S_BUD}')
        for i in range(16):
            a(f'v_mov_b32 v{8+i}, s{64+2*i}')
        dbg_dump(a, list(range(8, 24)), prof[0])
        for r in range(4): a(f'v_mov_b32 v{NEG+r}, -1')
        a.label(lab)
    T0 = f's{S_T0}'
    for s in (S_MEMR, S_MEMW):
        a(f's_add_u32 {T0}, s{s}, 16384'); a(f's_and_b32 {T0}, {T0}, 0xffff')
        a(f's_and_b32 s{s}, s{s}, 0xffff0000'); a(f's_or_b32 s{s}, s{s}, {T0}')
    for s in [S_PR, S_PR2] + [S_PW + p for p in range(4)]:
        a(f's_xor_b32 s{s}, s{s}, 0x80000')
    msk = cfg.NS * 32768 - 1
    for s in (S_XW, S_XR, S_XC):
        a(f's_add_u32 {T0}, s{s}, 32768'); a(f's_and_b32 {T0}, {T0}, 0x{msk:x}')
        a(f's_add_u32 s{s}, {T0}, s{S_XBASE}')
    a(f's_add_u32 s{S_QKM}, s{S_QKM}, {32*4096}')
    a(f's_add_u32 s{S_VMG}, s{S_VMG}, {32*2048}')
    a(f's_add_u32 s{S_KVK}, s{S_KVK}, {32*8192}')
    a(f's_add_u32 s{S_KVV}, s{S_KVV}, {32*8192}')
    a(f's_add_u32 s{S_STEP}, s{S_STEP}, 1')
    a.ext(top_prep())
    if not cfg.AG_NOACK: a(f's_waitcnt vmcnt({nclr})')
    a(f's_branch {L("TOP")}')
    if cfg.kvflag is not None:
        a.label(L('KVW'))
        a(f's_lshr_b32 s{S_T0}, s{S_STEP}, 2'); a(f's_lshl_b32 s{S_T0}, s{S_T0}, 8')
        a(f's_add_u32 s{S_T0}, s{S_T0}, s{S_KVFB}')
        a.label(L('KVP'))
        a(f'buffer_load_dwordx2 v[8:9], off, {SM}, s{S_T0} sc1')
        a('s_waitcnt vmcnt(0)')
        a('v_and_b32 v8, v8, v9')
        a('v_cmp_eq_u32 vcc, 0, v8')
        poll_end(a, L('KVP'), L('KVP_D'))
        a(f's_branch {L("KVB")}')

    a.label(L('TAIL'))
    a(f'v_lshrrev_b32 v{V_T}, 1, v{V_L16}')
    a.label(L('TV'))
    a(f'buffer_load_dwordx2 v[{RV}:{RV+1}], v{V_T}, {X}, s{S_XR} offen offset:1024 sc1')
    a('s_waitcnt vmcnt(0)')
    a(f'v_max_u32 v{V_T2}, v{RV}, v{RV+1}')
    a(f'v_cmp_eq_u32 vcc, -1, v{V_T2}')
    poll_end(a, L('TV'), L('TV_D'))
    a(f'v_swap_b32 v{VA+1}, v{RV}')
    publish(a, cfg, P, 'B')
    a('s_waitcnt vmcnt(0)')


def publish(a, cfg, P, tag):
    SM = f's[{S_SM}:{S_SM+3}]'
    HI = f's[{S_HI8}:{S_HI8+1}]'
    l1, l2 = f'{P}_PUB{tag}1', f'{P}_PUB{tag}2'
    a(f's_cmp_eq_u32 s{S_J}, 0')
    a(f's_cbranch_scc0 {l1}')
    ad, ad2 = 62, 63
    a(f'v_lshrrev_b32 v{ad}, 8, v{V_L16}'); a(f'v_lshlrev_b32 v{ad}, 7, v{ad}')
    a(f'v_and_b32 v{ad2}, 0x70, v{V_L16}'); a(f'v_add_u32 v{ad}, v{ad}, v{ad2}')
    a(f's_mov_b64 exec, {HI}')
    a(f'buffer_store_dwordx4 v[{TT}:{TT+3}], v{ad}, {SM}, s{S_QKM} offen sc1')
    a('s_mov_b64 exec, -1')
    a(f's_branch {l2}')
    a.label(l1)
    t0, t1, t2, t3 = 56, 57, 58, 59
    def add2(x, y, dst):
        a(f'v_lshlrev_b32 v{t0}, 16, v{x}'); a(f'v_and_b32 v{t1}, 0xffff0000, v{x}')
        a(f'v_lshlrev_b32 v{t2}, 16, v{y}'); a(f'v_and_b32 v{t3}, 0xffff0000, v{y}')
        a(f'v_pk_add_f32 v[{t0}:{t1}], v[{t0}:{t1}], v[{t2}:{t3}]')
        a(f'v_cvt_pk_bf16_f32 v{dst}, v{t0}, v{t1}')
    add2(60, 61, 60)
    add2(62, 63, 61)
    ad = 62
    a(f'v_lshrrev_b32 v{ad}, 9, v{V_L16}'); a(f'v_lshlrev_b32 v{ad}, 8, v{ad}')
    a(f'v_bfe_u32 v{t0}, v{V_L16}, 8, 1'); a(f'v_lshl_add_u32 v{ad}, v{t0}, 2, v{ad}')
    a(f'v_bfe_u32 v{t0}, v{V_L16}, 7, 1'); a(f'v_lshl_add_u32 v{ad}, v{t0}, 7, v{ad}')
    a(f'v_bfe_u32 v{t0}, v{V_L16}, 4, 3'); a(f'v_lshl_add_u32 v{ad}, v{t0}, 3, v{ad}')
    a(f'buffer_store_dword v60, v{ad}, {SM}, s{S_VMG} offen sc1')
    a(f'buffer_store_dword v61, v{ad}, {SM}, s{S_VMG} offen offset:64 sc1')
    a.label(l2)


def post_v(a, cfg, P):
    X = f's[{S_X}:{S_X+3}]'
    T0 = f's{S_T0}'
    a(f's_add_u32 s{S_KVK}, s{S_KVK}, {32*8192}')
    a(f's_add_u32 s{S_KVV}, s{S_KVV}, {32*8192}')
    if 'kv' not in cfg.skip:
        for g in kv_dma(cfg): a.ext(g)
    for r in range(16, 20): a(f'v_mov_b32 v{r}, -1')
    a(f'v_lshrrev_b32 v20, 1, v{V_L16}')
    a(f'buffer_store_dwordx4 v[16:19], v{V_L16}, {X}, s{S_XC} offen sc1')
    a(f'buffer_store_dwordx2 v[16:17], v20, {X}, s{S_XC} offen offset:1024 sc1')
    msk = cfg.NS * 32768 - 1
    for s in (S_XW, S_XR, S_XC):
        a(f's_add_u32 {T0}, s{s}, 32768'); a(f's_and_b32 {T0}, {T0}, 0x{msk:x}')
        a(f's_add_u32 s{s}, {T0}, s{S_XBASE}')
    a(f's_add_u32 s{S_QKM}, s{S_QKM}, {32*4096}')
    a(f's_add_u32 s{S_VMG}, s{S_VMG}, {32*2048}')


def near_static(a, val):
    a(f's_mov_b32 s{S_NEAR}, {val}')


def near_measure(a, cfg, P):
    SM = f's[{S_SM}:{S_SM+3}]'
    X = f's[{S_X}:{S_X+3}]'
    T0, T1, T2, T3 = f's{S_T0}', f's{S_T1}', f's{S_T2}', f's{S_T3}'
    l1 = f'{P}_NM1'
    a(f's_lshl_b32 {T0}, s{S_WV}, 1'); a(f's_or_b32 {T0}, {T0}, s{S_J}')
    a(f's_cmp_eq_u32 {T0}, 0'); a(f's_cbranch_scc0 {l1}')
    a(f's_add_u32 {T0}, s{S_XBASE}, {(cfg.NS-1)*32768 + 1536}')
    a('v_mov_b32 v8, 0')
    a(f'buffer_load_dword v9, v8, {X}, {T0} offen offset:384 sc1')
    a('s_waitcnt vmcnt(0)')
    a('s_mov_b32 s70, -1'); a('s_mov_b32 s71, -1')
    for i in range(6):
        for b in range(2):
            off = b*8192 + (i % 3)*128 + (i // 3)*2048
            a(f's_add_u32 {T1}, {T0}, {off}')
            a('s_memtime s[64:65]')
            a('s_waitcnt lgkmcnt(0)')
            a(f'buffer_load_dword v9, v8, {X}, {T1} offen sc1')
            a('s_waitcnt vmcnt(0)')
            a('s_memtime s[66:67]')
            a('s_waitcnt lgkmcnt(0)')
            a('s_sub_u32 s66, s66, s64')
            a(f's_min_u32 s{70+b}, s{70+b}, s66')
    a('s_cmp_lt_u32 s71, s70'); a(f's_cselect_b32 {T2}, 1, 0')
    a(f'v_mov_b32 v9, {T2}')
    a(f's_lshl_b32 {T1}, s{S_H}, 7'); a(f's_add_u32 {T1}, {T1}, {C_CNT + 4096}')
    a('v_cmp_eq_u32 vcc, 0, v%d' % V_L16)
    a('s_and_saveexec_b64 s[64:65], vcc')
    a(f'buffer_store_dword v9, v8, {SM}, {T1} offen sc1')
    a('s_mov_b64 exec, s[64:65]')
    a('s_waitcnt vmcnt(0)')
    a.label(l1)
    lp, dn = f'{P}_NM2', f'{P}_NM3'
    a(f's_lshl_b32 {T1}, s{S_H}, 7'); a(f's_add_u32 {T1}, {T1}, {C_CNT + 4096}')
    a('v_mov_b32 v8, 0')
    a.label(lp)
    a(f'buffer_load_dword v9, v8, {SM}, {T1} offen sc1')
    a('s_waitcnt vmcnt(0)')
    a('v_cmp_eq_u32 vcc, -1, v9')
    poll_end(a, lp, dn)
    a(f'v_readfirstlane_b32 s{S_NEAR}, v9')
    a(f's_and_b32 s{S_NEAR}, s{S_NEAR}, 1')


def impl(cfg):
    if getattr(cfg, 'F', False):
        import k_rec2
        return k_rec2.role_setup2, k_rec2.const_tables2, k_rec2.rec_loop2
    return role_setup, const_tables, rec_loop

def memf0_src(a, cfg, G, dst, tmp):
    if getattr(cfg, 'F', False):
        a(f'v_bfe_u32 v{dst}, v{G}, 1, 3'); a(f'v_lshlrev_b32 v{dst}, 11, v{dst}')
        a(f'v_lshrrev_b32 v{tmp}, 4, v{G}'); a(f'v_lshl_add_u32 v{dst}, v{tmp}, 5, v{dst}')
        a(f'v_and_b32 v{tmp}, 1, v{G}'); a(f'v_lshl_add_u32 v{dst}, v{tmp}, 2, v{dst}')
    else:
        a(f'v_and_b32 v{dst}, 7, v{G}'); a(f'v_lshlrev_b32 v{dst}, 11, v{dst}')
        a(f'v_lshrrev_b32 v{tmp}, 4, v{G}'); a(f'v_lshl_add_u32 v{dst}, v{tmp}, 5, v{dst}')
        a(f'v_bfe_u32 v{tmp}, v{G}, 3, 1'); a(f'v_lshl_add_u32 v{dst}, v{tmp}, 2, v{dst}')

def gen_recc(nsteps=63, dbg=None, cfg=None, P='RC', near=None, sfl=''):
    cfg = cfg or Cfg()
    a = Asm()
    a('s_cmp_ge_u32 s2, 256')
    a(f's_cbranch_scc1 {P}_EXIT')
    if cfg.dynamic:
        common_setup(a)
        role_dynamic(a, cfg, P, f'{P}_EXIT')
    else:
        role_static(a, f'{P}_EXIT')
        common_setup(a)
    RS, CT, RL = impl(cfg)
    RS(a, cfg)
    a(f's_mov_b32 s{S_NST}, {nsteps}')
    CT(a)
    stage_weights(a, P)
    if near is None: near_measure(a, cfg, P)
    else: near_static(a, near)
    x_offsets(a, cfg)
    a('s_waitcnt vmcnt(0) lgkmcnt(0)')
    a('s_barrier')
    if cfg.dynamic:
        a(f's_cmp_eq_u32 s{S_MODE}, 1')
        a(f's_cbranch_scc0 {P}_FB')
        RL(a, cfg, P, '', dbg)
        a('s_endpgm')
        a.label(f'{P}_FB')
        RL(a, cfg, P + 'F', ' sc1', None)
    else:
        RL(a, cfg, P, sfl, dbg)
    a.label(f'{P}_EXIT')
    a('s_endpgm')
    return a.text()


def gen_prepc(cfg=None):
    cfg = cfg or Cfg()
    a = Asm()
    a('s_cmp_ge_u32 s2, 256')
    a('s_cbranch_scc1 PREP_END')
    a(f's_load_dwordx2 s[4:5], s[0:1], {KA_WS}')
    a(f's_load_dwordx2 s[6:7], s[0:1], {KA_MEM0}')
    a('s_lshl_b32 s3, s2, 12')
    a('v_lshlrev_b32 v1, 4, v0')
    a('v_add_u32 v1, s3, v1')
    for r in range(4):
        a(f'v_mov_b32 v{4+r}, -1'); a(f'v_mov_b32 v{8+r}, 0')
    a('s_waitcnt lgkmcnt(0)')
    a.srd(8, 4, SM_SIZE, add=WS_SM)
    a.srd(12, 6, 8 * 1024 * 2)
    a.srd(20, 4, 64 << 20, add=WS_X)
    a(f's_mov_b32 s16, {C_PART}')
    a('buffer_store_dwordx4 v[4:7], v1, s[8:11], s16 offen')
    a('s_lshr_b32 s17, s2, 3'); a(f's_mul_i32 s17, s17, {cfg.NS*32768}')
    a('s_and_b32 s18, s2, 7'); a('s_lshl_b32 s18, s18, 12'); a('s_add_u32 s17, s17, s18')
    a('v_lshlrev_b32 v2, 4, v0')
    for i in range(3):
        a('buffer_store_dwordx4 v[4:7], v2, s[20:23], s17 offen')
        a('s_add_u32 s17, s17, 32768')
    a('s_cmp_eq_u32 s2, 16'); a('s_cbranch_scc0 PREP_N1')
    a(f's_mov_b32 s16, {C_CNT}')
    a('buffer_store_dwordx4 v[8:11], v2, s[8:11], s16 offen')
    a.label('PREP_N1')
    a('s_cmp_eq_u32 s2, 17'); a('s_cbranch_scc0 PREP_N2')
    a(f's_mov_b32 s16, {C_CNT + 4096}')
    a('buffer_store_dwordx4 v[4:7], v2, s[8:11], s16 offen')
    a.label('PREP_N2')
    a('s_cmp_ge_u32 s2, 16'); a('s_cbranch_scc1 PREP_END')
    a('s_cmp_lt_u32 s2, 4')
    a('s_cbranch_scc1 PREP_M0')
    a(f's_mov_b32 s16, {C_MEMF}')
    a('buffer_store_dwordx4 v[4:7], v1, s[8:11], s16 offen')
    a('s_branch PREP_END')
    a.label('PREP_M0')
    a('v_lshrrev_b32 v2, 4, v1')
    memf0_src(a, cfg, 2, 3, 12)
    for t in range(4):
        a(f'buffer_load_dword v{4+t}, v3, s[12:15], 0 offen offset:{t*8}')
    a('s_waitcnt vmcnt(0)')
    for t in range(4):
        a(f'v_min_u32 v{4+t}, -2, v{4+t}')
    a(f's_mov_b32 s16, {C_MEMF}')
    a('buffer_store_dwordx4 v[4:7], v1, s[8:11], s16 offen')
    a.label('PREP_END')
    a('s_endpgm')
    return a.text()
```

```python
from asmlib import *
import tasks, tasks2, k_recc as rc
from gemm2 import Eng, S_WAVE, S_T0, S_T1, S_T2
from tasks import S_RB, S_CB, S_KS, S_PW, S_PWS, S_OSRD, MB, task_gemm
from k_ln import bf16_round, reduce_bits345

FL_KVQ = SM_CNT + 0x2000
FL_SEG = SM_CNT + 0x4000
F_AF, F_WF, F_RF, F_GF, F_DF = 0, 512, 1024, 1536, 2560
FL_END = FL_SEG + 64 * 4096

S_WID, S_RND, S_SEG, S_BUDW, S_EARLY, S_FOFF = 90, 91, 92, 93, 94, 95
S_FL = 96
FLS = f's[{S_FL}:{S_FL+3}]'
L_BC = 0x27F00

PLACE = False
S_WM = 87
def mode_store(a, instrs):
    l1, l2 = a.newlabel('MS'), a.newlabel('MS')
    a(f's_cmp_eq_u32 s{S_WM}, 1'); a(f's_cbranch_scc0 {l1}')
    for i in instrs: a(i)
    a(f's_branch {l2}')
    a.label(l1)
    for i in instrs: a(i + ' sc1')
    a.label(l2)

TL = False
TL_BASE = 0xF000000
def tl_stamp(a, vreg, lane=None):
    if not TL: return
    a('s_memrealtime s[88:89]'); a('s_waitcnt lgkmcnt(0)')
    if lane is None:
        a(f's_mov_b32 m0, s{S_SEG}'); a('s_nop 3'); a(f'v_writelane_b32 v{vreg}, s88, m0')
    else:
        a(f'v_writelane_b32 v{vreg}, s88, {lane}')
def tl_init(a, vregs):
    if not TL: return
    for v in vregs: a(f'v_mov_b32 v{v}, 0')
    a(f'v_writelane_b32 v{vregs[-1]}, s100, 0'); a(f'v_writelane_b32 v{vregs[-1]}, s101, 1')
def tl_dump(a, vregs):
    if not TL: return
    a('s_waitcnt vmcnt(0)')
    a(f's_load_dwordx2 s[40:41], s[0:1], {KA_WS}'); a('s_waitcnt lgkmcnt(0)')
    a.srd(4, 40, 1 << 20, add=TL_BASE)
    a(f's_lshl_b32 s42, s{S_WID}, 2'); a(f's_add_u32 s42, s42, s{S_WAVE}'); a('s_lshl_b32 s42, s42, 10')
    a('v_and_b32 v1, 63, v0'); a('v_lshlrev_b32 v1, 2, v1')
    for i, v in enumerate(vregs):
        a(f'buffer_store_dword v{v}, v1, s[4:7], s42 offen offset:{256*i}')
    a('s_waitcnt vmcnt(0)')

def budget(a, lab, done):
    a(f's_cbranch_vccz {done}')
    a(f's_cmp_eq_u32 s{S_BUDW}, 0')
    a(f's_cbranch_scc1 {done}')
    a(f's_sub_u32 s{S_BUDW}, s{S_BUDW}, 1')
    a(f's_branch {lab}')
    a.label(done)

def minchain(a, dst, regs):
    if len(regs) == 1:
        a(f'v_mov_b32 v{dst}, v{regs[0]}'); return
    if len(regs) == 2:
        a(f'v_min_u32 v{dst}, v{regs[0]}, v{regs[1]}'); return
    a(f'v_min3_u32 v{dst}, v{regs[0]}, v{regs[1]}, v{regs[2]}')
    i = 3
    while i + 1 < len(regs):
        a(f'v_min3_u32 v{dst}, v{dst}, v{regs[i]}, v{regs[i+1]}'); i += 2
    if i < len(regs): a(f'v_min_u32 v{dst}, v{dst}, v{regs[i]}')

def flag_load(a, vaddr, vdst, width):
    sfx = {1: 'dword', 4: 'dwordx4'}[width]
    r = f'v{vdst}' if width == 1 else f'v[{vdst}:{vdst+3}]'
    a(f'buffer_load_{sfx} {r}, v{vaddr}, {FLS}, s{S_FOFF} offen sc1')

def flag_test(a, vdst, width, vt):
    if width == 1:
        a(f'v_cmp_eq_u32 vcc, 0, v{vdst}')
    else:
        minchain(a, vt, list(range(vdst, vdst + 4)))
        a(f'v_cmp_eq_u32 vcc, 0, v{vt}')

def poll(a, name, vaddr, vdst, width, vt):
    lab = a.newlabel(name); done = lab + '_D'
    a.label(lab)
    flag_load(a, vaddr, vdst, width)
    a('s_waitcnt vmcnt(0)')
    flag_test(a, vdst, width, vt)
    budget(a, lab, done)

def seg_foff(a, add=0):
    a(f's_lshl_b32 s{S_FOFF}, s{S_SEG}, 12')
    a(f's_add_u32 s{S_FOFF}, s{S_FOFF}, {FL_SEG + add * 4096}')

def set_flag(a, vaddr, vone, off, local=False, add=0):
    seg_foff(a, add)
    a('s_mov_b64 exec, 1')
    i = f'buffer_store_dword v{vone}, v{vaddr}, {FLS}, s{S_FOFF} offen offset:{off}'
    if local: mode_store(a, [i])
    else: a(i + ' sc1')
    a('s_mov_b64 exec, -1')

def role_gemm(a, kind, nseg=64, prof=False):
    N = kind
    NP = 8
    def ST(i):
        if not prof: return
        a('s_memtime s[56:57]'); a('s_waitcnt lgkmcnt(0)')
        a('s_sub_u32 s59, s56, s58'); a(f's_add_u32 s{60+i}, s{60+i}, s59'); a('s_mov_b32 s58, s56')
    KS_, CB_ = 28, 29
    nk = 56 if kind == 'DN' else 64
    nch = nk // 8
    nd = nk // 4
    SW, SX, SO = 4, 8, 12
    T0, T1, T2 = f's{S_T0}', f's{S_T1}', f's{S_T2}'
    W = f's{S_WAVE}'
    LN, L16, VD, VT_, t1, t2 = 1, 2, 3, 4, 5, 6
    VXR, VPA, VPF, VFA, VONE, VOUT = 7, 8, 12, 16, 17, 18
    XF = 20
    AC0, AC1 = 52, 68
    TMP = 84
    a(f's_load_dwordx2 s[{S_PWS}:{S_PWS+1}], s[0:1], {KA_WS}')
    if kind == 'GU':
        a(f's_load_dwordx2 s[{S_PW}:{S_PW+1}], s[0:1], {KA_WG}')
        a(f's_load_dwordx2 s[40:41], s[0:1], {KA_WU}')
    else:
        a(f's_load_dwordx2 s[{S_PW}:{S_PW+1}], s[0:1], {KA_WO if kind == "WO" else KA_WD}')
    a(f'v_and_b32 v{LN}, 63, v0')
    a(f'v_lshlrev_b32 v{L16}, 4, v{LN}')
    a('s_waitcnt lgkmcnt(0)')
    if kind == 'GU':
        a(f's_cmp_ge_u32 {W}, 2')
        a(f's_cselect_b32 s{S_PW}, s40, s{S_PW}')
        a(f's_cselect_b32 s{S_PW+1}, s41, s{S_PW+1}')
    a.srd(SW, S_PW, (8 if kind == 'WO' else 7) * MB)
    xo, xb = {'WO': (WS_OF, 16*MB), 'GU': (WS_HN, 4*MB), 'DN': (WS_ACT, 14*MB)}[kind]
    a.srd(SX, S_PWS, xb, add=xo)
    oo, ob = {'WO': (WS_P1, 32*MB), 'GU': (WS_ACT, 14*MB), 'DN': (WS_P2, 32*MB)}[kind]
    a.srd(SO, S_PWS, ob, add=oo)
    S_GO, S_M0 = 42, 43
    if kind == 'GU':
        a(f'v_lshrrev_b32 v{t1}, 3, v{LN}'); a(f'v_mul_u32_u24 v{VD}, 7168, v{t1}')
        a(f'v_and_b32 v{t1}, 7, v{LN}'); a(f'v_lshl_add_u32 v{VD}, v{t1}, 4, v{VD}')
        a(f's_lshl_b32 {T0}, s{CB_}, 7')
        a(f's_and_b32 {T1}, {W}, 1'); a(f's_mul_i32 {T1}, {T1}, {64*7168}')
        a(f's_add_u32 s{S_GO}, {T0}, {T1}')
        a(f's_lshl_b32 s{S_M0}, {W}, 13')
        istep, cstep = 8 * 7168, 128 * 7168
        a(f'v_bfe_u32 v{t1}, v{LN}, 2, 2'); a(f'v_lshrrev_b32 v{t2}, 5, v{LN}')
        a(f'v_lshl_add_u32 v{t1}, v{t2}, 2, v{t1}'); a(f'v_lshlrev_b32 v{VT_}, 7, v{t1}')
        a(f'v_bfe_u32 v{t1}, v{LN}, 4, 1'); a(f'v_lshl_add_u32 v{VT_}, v{t1}, 14, v{VT_}')
        a(f'v_and_b32 v{t1}, 3, v{LN}'); a(f'v_lshl_add_u32 v{VT_}, v{t1}, 3, v{VT_}')
        a(f's_lshl_b32 {T0}, {W}, 5'); a(f'v_add_u32 v{VT_}, {T0}, v{VT_}')
        kkoff, h2off = 2048, 1024
    else:
        rows0 = 1024 if kind == 'WO' else 896
        a(f'v_lshrrev_b32 v{t1}, 4, v{LN}'); a(f'v_lshlrev_b32 v{t2}, 2, v{t1}')
        a(f'v_and_b32 v{VD}, 15, v{LN}'); a(f'v_xor_b32 v{VD}, v{VD}, v{t2}'); a(f'v_lshlrev_b32 v{VD}, 4, v{VD}')
        a(f'v_lshl_add_u32 v{VD}, v{t1}, 11, v{VD}')
        a(f's_mul_i32 {T0}, s{KS_}, {rows0 * 2048}'); a(f's_lshl_b32 {T1}, s{CB_}, 8'); a(f's_add_u32 {T0}, {T0}, {T1}')
        a(f's_lshl_b32 {T1}, {W}, 16'); a(f's_add_u32 s{S_GO}, {T0}, {T1}')
        a(f's_lshl_b32 s{S_M0}, {W}, 13')
        istep, cstep = 4 * 2048, 128 * 2048
        a(f'v_bfe_u32 v{t1}, v{LN}, 2, 2')
        a(f'v_lshrrev_b32 v{t2}, 5, v{LN}'); a(f'v_lshl_add_u32 v{t2}, v{t2}, 2, v{t1}'); a(f'v_lshlrev_b32 v{VT_}, 8, v{t2}')
        a(f'v_xor_b32 v{t1}, {W}, v{t1}'); a(f'v_lshl_add_u32 v{VT_}, v{t1}, 6, v{VT_}')
        a(f'v_bfe_u32 v{t1}, v{LN}, 4, 1'); a(f'v_lshl_add_u32 v{VT_}, v{t1}, 5, v{VT_}')
        a(f'v_and_b32 v{t1}, 3, v{LN}'); a(f'v_lshl_add_u32 v{VT_}, v{t1}, 3, v{VT_}')
        kkoff, h2off = 4096, 2048
    def wdma(q):
        a(f's_add_u32 {T0}, s{S_GO}, {q * cstep}')
        a(f's_add_u32 m0, s{S_M0}, {(q & 3) * 32768}')
        for i in range(8):
            a('s_nop 0')
            a(f'buffer_load_dwordx4 v{VD}, s[{SW}:{SW+3}], {T0} offen lds')
            if i < 7:
                a(f's_add_u32 {T0}, {T0}, {istep}'); a('s_add_u32 m0, m0, 1024')
    TLV = [200, 201, 202]
    tl_init(a, TLV)
    for q in range(min(4, nch)): wdma(q)
    for q in range(nch):
        left = min(nch, q + 4) - (q + 1)
        left = min(nch, max(4, q + 4)) - (q + 1)
        a(f's_waitcnt vmcnt({8 * left})')
        a('s_barrier')
        a(f'v_add_u32 v{t1}, {(q & 3) * 32768}, v{VT_}')
        for kk in range(8):
            kb = 8 * q + kk
            a(f'ds_read_b64_tr_b16 a[{4*kb}:{4*kb+1}], v{t1} offset:{kk * kkoff}')
            a(f'ds_read_b64_tr_b16 a[{4*kb+2}:{4*kb+3}], v{t1} offset:{kk * kkoff + h2off}')
            if kk % 4 == 3: a('s_waitcnt lgkmcnt(0)')
        a('s_barrier')
        if q + 4 < nch: wdma(q + 4)
    S_XO, S_XM0, S_OO = 44, 45, 46
    xstride = {'WO': 262144, 'GU': 65536, 'DN': 229376}[kind]
    if kind == 'WO':   a(f's_lshl_b32 s{S_XO}, s{KS_}, 16')
    elif kind == 'DN': a(f's_mul_i32 s{S_XO}, s{KS_}, {56*1024}')
    else:              a(f's_mov_b32 s{S_XO}, 0')
    a(f's_lshl_b32 {T0}, {W}, 10'); a(f's_add_u32 s{S_XO}, s{S_XO}, {T0}')
    a(f's_lshl_b32 s{S_XM0}, {W}, 10')
    if kind == 'GU':
        a(f's_lshl_b32 {T0}, s{CB_}, 2'); a(f's_add_u32 {T0}, {T0}, {W}'); a(f's_lshl_b32 s{S_OO}, {T0}, 10')
        ostride = 229376
    else:
        a(f's_lshl_b32 {T0}, s{KS_}, 23'); a(f's_lshl_b32 {T1}, s{CB_}, 14'); a(f's_add_u32 {T0}, {T0}, {T1}')
        a(f's_lshl_b32 {T1}, {W}, 12'); a(f's_add_u32 s{S_OO}, {T0}, {T1}')
        ostride = 1 << 17
    if kind == 'WO':
        a(f'v_and_b32 v{VPA}, 7, v{LN}'); a(f'v_lshlrev_b32 v{VPA}, 2, v{VPA}')
        a(f's_lshl_b32 {T0}, s{KS_}, 5'); a(f's_add_u32 {T0}, {T0}, {F_AF}'); a(f'v_add_u32 v{VPA}, {T0}, v{VPA}')
        pw = 1
    elif kind == 'GU':
        a(f'v_and_b32 v{VPA}, 3, v{LN}'); a(f'v_lshlrev_b32 v{VPA}, 4, v{VPA}'); a(f'v_add_u32 v{VPA}, {F_RF}, v{VPA}')
        pw = 4
    else:
        a(f'v_min_u32 v{VPA}, 13, v{LN}'); a(f'v_lshlrev_b32 v{VPA}, 4, v{VPA}')
        a(f's_mul_i32 {T0}, s{KS_}, {14*16}'); a(f's_add_u32 {T0}, {T0}, {F_GF}'); a(f'v_add_u32 v{VPA}, {T0}, v{VPA}')
        pw = 4
    if kind == 'GU':
        a(f's_lshl_b32 {T0}, s{CB_}, 4'); fo = F_GF
    else:
        a(f's_lshl_b32 {T0}, s{KS_}, 3'); a(f's_add_u32 {T0}, {T0}, s{CB_}'); a(f's_lshl_b32 {T0}, {T0}, 4')
        fo = F_WF if kind == 'WO' else F_DF
    a(f's_lshl_b32 {T1}, {W}, 2'); a(f's_add_u32 {T0}, {T0}, {T1}'); a(f'v_mov_b32 v{VFA}, {T0}')
    a(f'v_mov_b32 v{VONE}, 1')
    a(f'v_mov_b32 v{VOUT}, {L_BC}')
    a(f's_mov_b32 s{S_SEG}, 0'); a(f's_mov_b32 s{S_EARLY}, 0')

    def xdma(par_sreg_add):
        add = par_sreg_add
        a(f's_add_u32 {T1}, s{S_SEG}, {add}')
        a(f's_mul_i32 {T0}, {T1}, {xstride}'); a(f's_add_u32 {T0}, {T0}, s{S_XO}')
        a(f's_and_b32 {T1}, {T1}, 1'); a(f's_lshl_b32 {T1}, {T1}, 16'); a(f's_add_u32 m0, {T1}, s{S_XM0}')
        for i in range(nd):
            a('s_nop 0')
            a(f'buffer_load_dwordx4 v{L16}, s[{SX}:{SX+3}], {T0} offen lds')
            if i < nd - 1:
                a(f's_add_u32 {T0}, {T0}, 4096'); a('s_add_u32 m0, m0, 4096')

    top, have = f'{N}_TOP', f'{N}_HAVE'
    tl_stamp(a, TLV[2], 2)
    if prof:
        for i in range(NP + 1): a(f's_mov_b32 s{60+i}, 0')
        a('s_memtime s[56:57]'); a('s_waitcnt lgkmcnt(0)'); a('s_mov_b32 s58, s56')
    a.label(top)
    a(f's_cmp_lg_u32 s{S_EARLY}, 0'); a(f's_cbranch_scc1 {have}')
    nw = f'{N}_NW0'
    a(f's_cmp_lg_u32 {W}, 0'); a(f's_cbranch_scc1 {nw}')
    seg_foff(a)
    poll(a, N + '_P', VPA, VPF, pw, t1)
    a.label(nw)
    a('s_barrier')
    xdma(0)
    a.label(have)
    tl_stamp(a, TLV[0])
    ST(0)
    nw2 = f'{N}_NW1'
    a(f's_cmp_lg_u32 {W}, 0'); a(f's_cbranch_scc1 {nw2}')
    seg_foff(a, 1)
    flag_load(a, VPA, VPF, pw)
    a.label(nw2)
    a(f's_and_b32 {T0}, s{S_SEG}, 1'); a(f's_lshl_b32 {T0}, {T0}, 16')
    a(f'v_add_u32 v{VXR}, {T0}, v{L16}')
    nchunk = 4
    per = nk // nchunk
    dper = nd // nchunk if nd % nchunk == 0 else None
    def rd(kb):
        r = XF + 4 * (kb % 8)
        return f'ds_read_b128 v[{r}:{r+3}], v{VXR} offset:{kb * 1024}'
    def mf(kb):
        r = XF + 4 * (kb % 8); ac = AC0 if kb % 2 == 0 else AC1
        c = '0' if kb < 2 else f'v[{ac}:{ac+15}]'
        return f'v_mfma_f32_32x32x16_bf16 v[{ac}:{ac+15}], a[{4*kb}:{4*kb+3}], v[{r}:{r+3}], {c}'
    bounds = [0, 16, 32, 48, nk] if nk == 64 else [0, 16, 32, 44, 56]
    for c in range(nchunk):
        k0, k1 = bounds[c], bounds[c + 1]
        need = (k1 + 3) // 4
        a(f's_waitcnt vmcnt({nd - need})')
        if c == nchunk - 1:
            nw3 = f'{N}_NW2'
            a(f's_cmp_lg_u32 {W}, 0'); a(f's_cbranch_scc1 {nw3}')
            a('s_waitcnt vmcnt(0)')
            flag_test(a, VPF, pw, t1)
            a(f's_cmp_eq_u64 vcc, 0'); a(f's_cselect_b32 {T0}, 1, 0')
            a(f'v_mov_b32 v{t1}, {T0}')
            a(f'ds_write_b32 v{VOUT}, v{t1}')
            a('s_waitcnt lgkmcnt(0)')
            a.label(nw3)
        a('s_barrier')
        if c == 0: ST(1)
        if c == nchunk - 1: ST(2)
        if c == nchunk - 1:
            a(f'ds_read_b32 v{t2}, v{VOUT}')
        D = 6
        ks = list(range(k0, k1))
        for kb in ks[:D]: a(rd(kb))
        for i, kb in enumerate(ks):
            rem = min(len(ks), i + D) - (i + 1)
            a(f's_waitcnt lgkmcnt({rem})')
            a(mf(kb))
            if i + D < len(ks): a(rd(ks[i + D]))
    ST(3)
    a(f'v_readfirstlane_b32 s{S_EARLY}, v{t2}')
    if prof: a(f's_add_u32 s68, s68, s{S_EARLY}')
    a(f's_cmp_ge_u32 s{S_SEG}, {nseg - 1}'); a(f's_cselect_b32 s{S_EARLY}, 0, s{S_EARLY}')
    a(f's_mul_i32 {T2}, s{S_SEG}, {ostride}'); a(f's_add_u32 {T2}, {T2}, s{S_OO}')
    a('s_nop 7'); a('s_nop 7')
    for r in range(16):
        a(f'v_add_f32 v{AC0+r}, v{AC0+r}, v{AC1+r}')
    if kind == 'GU':
        G, U, T = AC0, AC0 + 8, TMP
        for r in range(8):
            a(f'v_cvt_pk_bf16_f32 v{T+r}, v{AC0+2*r}, v{AC0+2*r+1}')
        for r in range(4):
            a(f'v_lshlrev_b32 v{G+2*r}, 16, v{T+r}'); a(f'v_and_b32 v{G+2*r+1}, 0xffff0000, v{T+r}')
        for r in range(8): a(f'v_mul_f32 v{G+r}, 0xbfb8aa3b, v{G+r}')
        for r in range(4):
            a(f'v_lshlrev_b32 v{U+2*r}, 16, v{T+4+r}'); a(f'v_and_b32 v{U+2*r+1}, 0xffff0000, v{T+4+r}')
        for r in range(8): a(f'v_exp_f32 v{G+r}, v{G+r}')
        for r in range(8): a(f'v_add_f32 v{G+r}, 1.0, v{G+r}')
        for r in range(8): a(f'v_rcp_f32 v{G+r}, v{G+r}')
        a('s_nop 0')
        for r in range(4): a(f'v_cvt_pk_bf16_f32 v{T+r}, v{G+2*r}, v{G+2*r+1}')
        for r in range(4):
            a(f'v_lshlrev_b32 v{G+2*r}, 16, v{T+r}'); a(f'v_and_b32 v{G+2*r+1}, 0xffff0000, v{T+r}')
        for r in range(8): a(f'v_mul_f32 v{G+r}, v{G+r}, v{U+r}')
        for r in range(4): a(f'v_cvt_pk_bf16_f32 v{T+r}, v{G+2*r}, v{G+2*r+1}')
        a(f'buffer_store_dwordx4 v[{T}:{T+3}], v{L16}, s[{SO}:{SO+3}], {T2} offen sc1')
    else:
        for q in range(4):
            a(f'buffer_store_dwordx4 v[{AC0+4*q}:{AC0+4*q+3}], v{L16}, s[{SO}:{SO+3}], {T2} offen offset:{q*1024} sc1')
    ST(4)
    late, fin = f'{N}_LATE', f'{N}_FIN'
    a(f's_cmp_eq_u32 s{S_EARLY}, 0'); a(f's_cbranch_scc1 {late}')
    xdma(1)
    a(f's_waitcnt vmcnt({nd})')
    a(f's_branch {fin}')
    a.label(late)
    a('s_waitcnt vmcnt(0)')
    a.label(fin)
    ST(5)
    set_flag(a, VFA, VONE, fo)
    tl_stamp(a, TLV[1])
    a(f's_add_u32 s{S_SEG}, s{S_SEG}, 1')
    a(f's_cmp_lt_u32 s{S_SEG}, {nseg}'); a(f's_cbranch_scc1 {top}')
    tl_dump(a, TLV)
    if prof:
        a('s_waitcnt vmcnt(0)')
        a.srd(4, S_PWS, 1 << 20, add=0xF000000)
        a(f's_lshl_b32 {T0}, s2, 2'); a(f's_add_u32 {T0}, {T0}, {W}'); a(f's_lshl_b32 {T0}, {T0}, 6')
        a('v_mov_b32 v1, 0')
        a('s_mov_b64 exec, 1')
        for i in range(9):
            a(f'v_mov_b32 v2, s{60+i}')
            a(f'buffer_store_dword v2, v1, s[4:7], {T0} offen offset:{4*i}')
        a('s_mov_b64 exec, -1')
        a('s_waitcnt vmcnt(0)')


SCALE = '0x3db504f3'
LOG2E = '0x3fb8aa3b'
def role_att(a, nseg=64, prof=False):
    T0, T1, T2 = f's{S_T0}', f's{S_T1}', f's{S_T2}'
    S_HD, S_FM, S_KMO, S_VMO = 40, 41, 43, 44
    SQ, SK, SV, SO = 4, 8, 12, S_OSRD
    VA, VKM, VVM, VD, VFA, VONE, VKF = 2, 3, 6, 7, 8, 9, 10
    Q, K, KMr, VT, VM = 16, 48, 80, 112, 144
    S, SM = 160, 176
    P, PM = 192, 200
    O = 16
    T = 208
    R = 224
    def ST(i):
        if not prof: return
        a('s_memtime s[84:85]'); a('s_waitcnt lgkmcnt(0)')
        a('s_sub_u32 s87, s84, s86'); a(f's_add_u32 s{100}, s87, 0') if False else None
    a(f's_load_dwordx2 s[{S_PWS}:{S_PWS+1}], s[0:1], {KA_WS}')
    a('v_and_b32 v1, 63, v0')
    a(f's_lshl_b32 {T0}, s28, 2'); a(f's_add_u32 s{S_HD}, {T0}, s{S_WAVE}')
    a(f'v_lshlrev_b32 v{VA}, 4, v1')
    a('v_lshrrev_b32 v4, 5, v1')
    a(f'v_and_b32 v{VKM}, 7, v1'); a(f'v_lshlrev_b32 v{VKM}, 4, v{VKM}'); a(f'v_lshl_add_u32 v{VKM}, v4, 7, v{VKM}')
    a('v_and_b32 v5, 31, v1')
    a(f'v_lshlrev_b32 v{VVM}, 3, v5'); a(f'v_lshl_add_u32 v{VVM}, v4, 8, v{VVM}')
    a(f'v_lshlrev_b32 v{VD}, 2, v4'); a(f'v_sub_u32 v{VD}, v5, v{VD}')
    if PLACE:
        a(f's_lshr_b32 {T0}, s{S_HD}, 3'); a(f's_lshl_b32 {T0}, {T0}, 7'); a(f's_and_b32 {T1}, s{S_HD}, 7')
        a(f's_lshl_b32 {T1}, {T1}, 2'); a(f's_add_u32 {T0}, {T0}, {T1}'); a(f'v_mov_b32 v{VFA}, {T0}')
    else:
        a(f's_lshl_b32 {T0}, s{S_HD}, 2'); a(f'v_mov_b32 v{VFA}, {T0}')
    a(f'v_mov_b32 v{VONE}, 1')
    a(f's_lshr_b32 {T0}, s{S_HD}, 1'); a(f's_lshl_b32 {T0}, {T0}, 4'); a(f'v_mov_b32 v{VKF}, {T0}')
    a('s_waitcnt lgkmcnt(0)')
    a.srd(SQ, S_PWS, 16*MB, add=WS_QF)
    a.srd(SK, S_PWS, 16*MB, add=WS_KF)
    a.srd(SV, S_PWS, 16*MB, add=WS_VT)
    a.srd(SO, S_PWS, 16*MB, add=WS_OF)
    for r in range(16):
        cr = (r & 3) + 8 * (r >> 2)
        a(f'v_cmp_le_i32 s[{52+2*r}:{53+2*r}], {cr}, v{VD}')
    for t in range(4):
        a(f'v_mov_b32 v{VM+4*t+2}, 0'); a(f'v_mov_b32 v{VM+4*t+3}, 0')
    a(f'v_mov_b32 v{PM+2}, 0'); a(f'v_mov_b32 v{PM+3}, 0')
    a(f's_mov_b32 s{S_SEG}, 0')
    def offs(add):
        a(f's_add_u32 {T0}, s{S_SEG}, {add}'); a(f's_lshl_b32 {T0}, {T0}, 5'); a(f's_add_u32 {T0}, {T0}, s{S_HD}')
        a(f's_lshl_b32 s{S_FM}, {T0}, 13')
    def qkv_loads():
        a(f's_add_u32 s42, s{S_FM}, 0x1000')
        so = lambda i: f's{S_FM}' if i < 4 else 's42'
        for kb in range(8):
            a(f'buffer_load_dwordx4 v[{K+4*kb}:{K+4*kb+3}], v{VA}, s[{SK}:{SK+3}], {so(kb)} offen offset:{(kb&3)*1024}')
            a(f'buffer_load_dwordx4 v[{Q+4*kb}:{Q+4*kb+3}], v{VA}, s[{SQ}:{SQ+3}], {so(kb)} offen offset:{(kb&3)*1024}')
        for i in range(8):
            a(f'buffer_load_dwordx4 v[{VT+4*i}:{VT+4*i+3}], v{VA}, s[{SV}:{SV+3}], {so(i)} offen offset:{(i&3)*1024}')
    def kvq_wait(add):
        lab = a.newlabel('AT_NB')
        a(f's_add_u32 {T0}, s{S_SEG}, {add}'); a(f's_and_b32 {T1}, {T0}, 3')
        a(f's_cmp_lg_u32 {T1}, 0'); a(f's_cbranch_scc1 {lab}')
        a(f's_lshr_b32 {T0}, {T0}, 2'); a(f's_lshl_b32 {T0}, {T0}, 8'); a(f's_add_u32 s{S_FOFF}, {T0}, {FL_KVQ}')
        lp = a.newlabel('AT_KF'); dn = lp + '_D'
        a.label(lp)
        a(f'buffer_load_dwordx4 v[{T}:{T+3}], v{VKF}, {FLS}, s{S_FOFF} offen sc1')
        a('s_waitcnt vmcnt(0)')
        a(f'v_min3_u32 v{T}, v{T}, v{T+1}, v{T+2}')
        a(f'v_cmp_eq_u32 vcc, 0, v{T}')
        budget(a, lp, dn)
        a.label(lab)
    TLV = [12, 13, 14]
    tl_init(a, TLV)
    kvq_wait(0); offs(0); qkv_loads()
    tl_stamp(a, TLV[2], 2)
    a.label('AT_TOP')
    for kb in range(8):
        a(f's_waitcnt vmcnt({8 + 2*(7-kb)})')
        c = '0' if kb == 0 else f'v[{S}:{S+15}]'
        a(f'v_mfma_f32_32x32x16_bf16 v[{S}:{S+15}], v[{K+4*kb}:{K+4*kb+3}], v[{Q+4*kb}:{Q+4*kb+3}], {c}')
    a(f's_lshl_b32 {T0}, s{S_SEG}, 5'); a(f's_add_u32 {T0}, {T0}, s{S_HD}')
    a(f's_lshl_b32 s{S_KMO}, {T0}, 12'); a(f's_add_u32 s{S_KMO}, s{S_KMO}, {SM_QKM + 2048}')
    a(f's_lshl_b32 s{S_VMO}, {T0}, 11'); a(f's_add_u32 s{S_VMO}, s{S_VMO}, {SM_VMG}')
    def kmvm():
        for kb in range(8):
            a(f'buffer_load_dwordx4 v[{KMr+4*kb}:{KMr+4*kb+3}], v{VKM}, {FLS}, s{S_KMO} offen offset:{kb*256} sc1')
        for t in range(4):
            a(f'buffer_load_dwordx2 v[{VM+4*t}:{VM+4*t+1}], v{VVM}, {FLS}, s{S_VMO} offen offset:{t*512} sc1')
    kmvm()
    a('s_nop 7')
    def rnd(base, n):
        for r in range(n // 2):
            a(f'v_cvt_pk_bf16_f32 v{T+r}, v{base+2*r}, v{base+2*r+1}')
        for r in range(n // 2):
            a(f'v_lshlrev_b32 v{base+2*r}, 16, v{T+r}')
            a(f'v_and_b32 v{base+2*r+1}, 0xffff0000, v{T+r}')
    rnd(S, 16)
    for r in range(16): a(f'v_mul_f32 v{S+r}, {SCALE}, v{S+r}')
    rnd(S, 16)
    a(f'v_mov_b32 v{T+10}, 0xce6e6b28')
    for r in range(16):
        a(f'v_cndmask_b32 v{S+r}, v{T+10}, v{S+r}, s[{52+2*r}:{53+2*r}]')
    M = T + 11
    a(f'v_max3_f32 v{M}, v{S}, v{S+1}, v{S+2}')
    a(f'v_max3_f32 v{M+1}, v{S+3}, v{S+4}, v{S+5}')
    for r in range(6, 14, 4):
        a(f'v_max3_f32 v{M}, v{M}, v{S+r}, v{S+r+1}')
        a(f'v_max3_f32 v{M+1}, v{M+1}, v{S+r+2}, v{S+r+3}')
    a(f'v_max3_f32 v{M}, v{M}, v{S+14}, v{S+15}')
    a(f'v_max_f32 v{M}, v{M}, v{M+1}')
    kmr = list(range(KMr, KMr + 32)) + [VM + 4*t + q for t in range(4) for q in range(2)]
    def notready():
        a('s_waitcnt vmcnt(0)')
        rc.max_chain(a, T, kmr)
        a(f'v_cmp_eq_u32 vcc, -1, v{T}')
    notready()
    a('s_cbranch_vccz AT_GO')
    a.label('AT_PL')
    kmvm()
    notready()
    budget(a, 'AT_PL', 'AT_GO')
    tl_stamp(a, TLV[0])
    for kb in range(8):
        c = '0' if kb == 0 else f'v[{SM}:{SM+15}]'
        a(f'v_mfma_f32_32x32x16_bf16 v[{SM}:{SM+15}], v[{KMr+4*kb}:{KMr+4*kb+3}], v[{Q+4*kb}:{Q+4*kb+3}], {c}')
    a('s_nop 7'); a('s_nop 7')
    rnd(SM, 4)
    for r in range(4): a(f'v_mul_f32 v{SM+r}, {SCALE}, v{SM+r}')
    rnd(SM, 4)
    a(f'v_max3_f32 v{M}, v{M}, v{SM}, v{SM+1}')
    a(f'v_max3_f32 v{M}, v{M}, v{SM+2}, v{SM+3}')
    a(f'v_mov_b32 v{M+1}, v{M}')
    a('s_nop 1')
    a(f'v_permlane32_swap_b32 v{M}, v{M+1}')
    a('s_nop 1')
    a(f'v_max_f32 v{M}, v{M}, v{M+1}')
    N = 20
    for r in range(N): a(f'v_sub_f32 v{S+r}, v{S+r}, v{M}')
    for r in range(N): a(f'v_mul_f32 v{S+r}, {LOG2E}, v{S+r}')
    for r in range(N): a(f'v_exp_f32 v{S+r}, v{S+r}')
    a(f'v_add_f32 v{M}, v{S}, v{S+1}')
    a(f'v_add_f32 v{M+1}, v{S+2}, v{S+3}')
    for r in range(4, N, 2):
        a(f'v_add_f32 v{M}, v{M}, v{S+r}')
        a(f'v_add_f32 v{M+1}, v{M+1}, v{S+r+1}')
    a(f'v_add_f32 v{M}, v{M}, v{M+1}')
    a(f'v_mov_b32 v{M+1}, v{M}')
    a('s_nop 1')
    a(f'v_permlane32_swap_b32 v{M}, v{M+1}')
    a('s_nop 1')
    a(f'v_add_f32 v{M}, v{M}, v{M+1}')
    a(f'v_rcp_f32 v{M}, v{M}')
    a('s_nop 0')
    for r in range(N): a(f'v_mul_f32 v{S+r}, v{S+r}, v{M}')
    for r in range(8): a(f'v_cvt_pk_bf16_f32 v{P+r}, v{S+2*r}, v{S+2*r+1}')
    a(f'v_cvt_pk_bf16_f32 v{PM}, v{S+16}, v{S+17}')
    a(f'v_cvt_pk_bf16_f32 v{PM+1}, v{S+18}, v{S+19}')
    a('s_nop 1')
    for t in range(4):
        o = O + 16*t
        a(f'v_mfma_f32_32x32x16_bf16 v[{o}:{o+15}], v[{VT+8*t}:{VT+8*t+3}], v[{P}:{P+3}], 0')
    for t in range(4):
        o = O + 16*t
        a(f'v_mfma_f32_32x32x16_bf16 v[{o}:{o+15}], v[{VT+8*t+4}:{VT+8*t+7}], v[{P+4}:{P+7}], v[{o}:{o+15}]')
    for t in range(4):
        o = O + 16*t
        a(f'v_mfma_f32_32x32x16_bf16 v[{o}:{o+15}], v[{VM+4*t}:{VM+4*t+3}], v[{PM}:{PM+3}], v[{o}:{o+15}]')
    a(f's_add_u32 s42, s{S_FM}, 0x1000')
    a('s_nop 7')
    for t in range(4):
        o = O + 16*t
        if t == 3: a('s_nop 7')
        for r in range(8):
            a(f'v_cvt_pk_bf16_f32 v{R+8*t+r}, v{o+2*r}, v{o+2*r+1}')
        sts = []
        for hlf in range(2):
            i = 2*t + hlf
            so = f's{S_FM}' if i < 4 else 's42'
            sts.append(f'buffer_store_dwordx4 v[{R+8*t+4*hlf}:{R+8*t+4*hlf+3}], v{VA}, s[{SO}:{SO+3}], {so} offen offset:{(i&3)*1024}')
        if PLACE: mode_store(a, sts)
        else:
            for x in sts: a(x + ' sc1')
    a(f's_cmp_ge_u32 s{S_SEG}, {nseg - 1}'); a('s_cbranch_scc1 AT_LAST')
    a(f's_add_u32 {T0}, s{S_SEG}, 1'); a(f's_and_b32 {T0}, {T0}, 3')
    a(f's_cmp_lg_u32 {T0}, 0'); a('s_cbranch_scc1 AT_NF')
    a('s_waitcnt vmcnt(0)')
    set_flag(a, VFA, VONE, F_AF, local=PLACE)
    kvq_wait(1); offs(1); qkv_loads()
    a('s_branch AT_NX')
    a.label('AT_NF')
    offs(1); qkv_loads()
    a('s_waitcnt vmcnt(24)')
    set_flag(a, VFA, VONE, F_AF, local=PLACE)
    a.label('AT_NX')
    tl_stamp(a, TLV[1])
    a(f's_add_u32 s{S_SEG}, s{S_SEG}, 1')
    a('s_branch AT_TOP')
    a.label('AT_LAST')
    a('s_waitcnt vmcnt(0)')
    set_flag(a, VFA, VONE, F_AF, local=PLACE)
    tl_stamp(a, TLV[1])
    tl_dump(a, TLV)


def role_red(a, which, nseg=64, ldsb=0):
    N = f'R{which}'
    T0, T1, T2 = f's{S_T0}', f's{S_T1}', f's{S_T2}'
    W = f's{S_WAVE}'
    SP, SX, SH, SO = 4, 8, 12, S_OSRD
    S_PO, S_FM = 40, 41
    VP, VF, VR, VPA, VFA, VONE = 8, 2, 3, 7, 9, 15
    a(f's_load_dwordx2 s[{S_PWS}:{S_PWS+1}], s[0:1], {KA_WS}')
    a(f's_load_dwordx2 s[{S_PW}:{S_PW+1}], s[0:1], {KA_X if which == 1 else KA_OUT}')
    a('v_and_b32 v1, 63, v0')
    a('v_and_b32 v4, 7, v1')
    a('v_bfe_u32 v5, v1, 3, 1')
    a('v_lshrrev_b32 v6, 4, v1')
    a(f's_lshl_b32 {T0}, s29, 3')
    a(f'v_add_u32 v10, {T0}, v4')
    a(f'v_lshl_add_u32 v{VP}, v6, 2, v5'); a(f'v_lshlrev_b32 v{VP}, 9, v{VP}'); a(f'v_lshl_add_u32 v{VP}, v10, 4, v{VP}')
    a(f's_lshl_b32 {T0}, {W}, 15'); a(f'v_add_u32 v{VP}, {T0}, v{VP}')
    a(f'v_lshl_add_u32 v{VF}, v5, 5, v10'); a(f'v_lshlrev_b32 v{VF}, 4, v{VF}'); a(f'v_lshl_add_u32 v{VF}, v6, 10, v{VF}')
    a(f's_lshl_b32 {T0}, {W}, 14'); a(f'v_add_u32 v{VF}, {T0}, v{VF}')
    a(f'v_lshlrev_b32 v{VR}, 11, v10'); a(f'v_lshl_add_u32 v{VR}, v6, 5, v{VR}')
    a(f'v_lshl_add_u32 v{VR}, v5, {3 if which == 1 else 4}, v{VR}')
    a(f's_lshl_b32 {T0}, {W}, 9'); a(f'v_add_u32 v{VR}, {T0}, v{VR}')
    a(f'v_bfe_u32 v{VPA}, v1, 1, 2'); a(f'v_lshlrev_b32 v{VPA}, 3, v{VPA}')
    a(f'v_and_b32 v10, 1, v1'); a(f'v_add_u32 v{VPA}, v{VPA}, v10')
    a(f's_lshl_b32 {T0}, {W}, 1'); a(f'v_add_u32 v{VPA}, {T0}, v{VPA}')
    a(f'v_lshlrev_b32 v{VPA}, 4, v{VPA}'); a(f'v_add_u32 v{VPA}, {F_WF if which == 1 else F_DF}, v{VPA}')
    a(f's_lshl_b32 {T0}, s29, 4'); a(f's_lshl_b32 {T1}, {W}, 2'); a(f's_add_u32 {T0}, {T0}, {T1}'); a(f'v_mov_b32 v{VFA}, {T0}')
    a(f'v_mov_b32 v{VONE}, 1')
    if which == 1:
        a('v_lshlrev_b32 v13, 2, v4'); a(f's_lshl_b32 {T0}, {W}, 5'); a(f'v_add_u32 v14, {T0}, v13')
    else:
        a('v_cmp_eq_u32 s[44:45], 0, v5')
    a('s_waitcnt lgkmcnt(0)')
    a.srd(SP, S_PWS, 32*MB, add=WS_P1 if which == 1 else WS_P2)
    if which == 1:
        a.srd(SX, S_PW, 4*MB); a.srd(SH, S_PWS, 4*MB, add=WS_HB); a.srd(SO, S_PWS, 4*MB, add=WS_HN)
    else:
        a.srd(SX, S_PWS, 4*MB, add=WS_HB); a.srd(SO, S_PW, 4*MB)
    a(f's_mov_b32 s{S_SEG}, s28')
    L, X, F, G, H = 16, 144, 160, 16, 48
    TLV = [210, 211, 212]
    tl_init(a, TLV)
    tl_stamp(a, TLV[2], 2)
    a.label(f'{N}_TOP')
    a(f's_lshl_b32 s{S_FM}, s{S_SEG}, 16')
    a(f's_lshl_b32 s{S_PO}, s{S_SEG}, 17')
    if which == 1:
        for it in range(4):
            for h in range(2):
                r = X + (it*2 + h)*2
                a(f'buffer_load_dwordx2 v[{r}:{r+1}], v{VR}, s[{SX}:{SX+3}], s{S_FM} offen offset:{it*128 + h*16}')
    seg_foff(a)
    poll(a, N + '_P', VPA, 200, 4, 204)
    tl_stamp(a, TLV[0])
    for ks in range(4):
        for it in range(4):
            a(f's_add_u32 {T2}, s{S_PO}, {ks*(1<<23) + it*8192}')
            for h in range(2):
                r = L + ((ks*4 + it)*2 + h)*4
                a(f'buffer_load_dwordx4 v[{r}:{r+3}], v{VP}, s[{SP}:{SP+3}], {T2} offen offset:{h*1024}')
    nx = 0
    if which == 2:
        for it in range(4):
            a(f's_add_u32 {T2}, s{S_FM}, {it*4096}')
            a(f'buffer_load_dwordx4 v[{X+4*it}:{X+4*it+3}], v{VF}, s[{SX}:{SX+3}], {T2} offen')
        nx = 4
    tasks2.red_sum(a, L, F, nx)
    a('s_waitcnt vmcnt(0)')
    for i in range(16):
        a(f'v_lshlrev_b32 v{G+2*i}, 16, v{X+i}'); a(f'v_and_b32 v{G+2*i+1}, 0xffff0000, v{X+i}')
    for i in range(32): a(f'v_add_f32 v{F+i}, v{F+i}, v{G+i}')
    for i in range(16): a(f'v_cvt_pk_bf16_f32 v{H+i}, v{F+2*i}, v{F+2*i+1}')
    if which == 1:
        for it in range(4):
            a(f's_add_u32 {T2}, s{S_FM}, {it*4096}')
            a(f'buffer_store_dwordx4 v[{H+4*it}:{H+4*it+3}], v{VF}, s[{SH}:{SH+3}], {T2} offen sc1')
        for i in range(16):
            a(f'v_lshlrev_b32 v{F+2*i}, 16, v{H+i}'); a(f'v_and_b32 v{F+2*i+1}, 0xffff0000, v{H+i}')
        A0 = 100
        for c in range(4): a(f'v_add_f32 v{A0+c}, v{F+c}, v{F+4+c}')
        for i in range(8, 32, 4):
            for c in range(4): a(f'v_add_f32 v{A0+c}, v{A0+c}, v{F+i+c}')
        a(f'v_add_f32 v{A0}, v{A0}, v{A0+1}'); a(f'v_add_f32 v{A0+2}, v{A0+2}, v{A0+3}'); a(f'v_add_f32 v{A0}, v{A0}, v{A0+2}')
        reduce_bits345(a, A0, A0 + 4)
        a(f'ds_write_b32 v14, v{A0} offset:{ldsb}')
        a('s_waitcnt lgkmcnt(0)')
        a('s_barrier')
        for w in range(4): a(f'ds_read_b32 v{A0+w}, v13 offset:{ldsb + w*32}')
        a('s_waitcnt lgkmcnt(0)')
        MU = 10
        a(f'v_add_f32 v{A0}, v{A0}, v{A0+1}'); a(f'v_add_f32 v{A0+2}, v{A0+2}, v{A0+3}'); a(f'v_add_f32 v{MU}, v{A0}, v{A0+2}')
        a(f'v_mul_f32 v{MU}, 0x3a800000, v{MU}')
        for c in range(4): a(f'v_mov_b32 v{64+c}, 0')
        for i in range(0, 32, 4):
            for c in range(4): a(f'v_sub_f32 v{68+c}, v{F+i+c}, v{MU}')
            for c in range(4): a(f'v_fmac_f32 v{64+c}, v{68+c}, v{68+c}')
        RS = 11
        a('v_add_f32 v64, v64, v65'); a('v_add_f32 v66, v66, v67'); a(f'v_add_f32 v{RS}, v64, v66')
        reduce_bits345(a, RS, A0 + 4)
        a(f'ds_write_b32 v14, v{RS} offset:{ldsb + 128}')
        a('s_waitcnt lgkmcnt(0)')
        a('s_barrier')
        for w in range(4): a(f'ds_read_b32 v{64+w}, v13 offset:{ldsb + 128 + w*32}')
        a('s_waitcnt lgkmcnt(0)')
        a('v_add_f32 v64, v64, v65'); a('v_add_f32 v66, v66, v67'); a(f'v_add_f32 v{RS}, v64, v66')
        a(f'v_mul_f32 v{RS}, 0x3a800000, v{RS}')
        bf16_round(a, RS, RS)
        a(f'v_add_f32 v{RS}, 0x3727c5ac, v{RS}')
        bf16_round(a, RS, RS)
        a(f'v_sqrt_f32 v{RS}, v{RS}')
        a('s_nop 0')
        bf16_round(a, RS, RS)
        a(f'v_rcp_f32 v{RS}, v{RS}')
        bf16_round(a, MU, MU)
        for i in range(32): a(f'v_sub_f32 v{F+i}, v{F+i}, v{MU}')
        for i in range(16): a(f'v_cvt_pk_bf16_f32 v{G+i}, v{F+2*i}, v{F+2*i+1}')
        for i in range(16):
            a(f'v_lshlrev_b32 v{F+2*i}, 16, v{G+i}'); a(f'v_and_b32 v{F+2*i+1}, 0xffff0000, v{G+i}')
        for i in range(32): a(f'v_mul_f32 v{F+i}, v{F+i}, v{RS}')
        OO = 80
        for i in range(16): a(f'v_cvt_pk_bf16_f32 v{OO+i}, v{F+2*i}, v{F+2*i+1}')
        for it in range(4):
            a(f's_add_u32 {T2}, s{S_FM}, {it*4096}')
            a(f'buffer_store_dwordx4 v[{OO+4*it}:{OO+4*it+3}], v{VF}, s[{SO}:{SO+3}], {T2} offen sc1')
        a('s_waitcnt vmcnt(0)')
        set_flag(a, VFA, VONE, F_RF)
    else:
        S, R, OO = 64, 80, 96
        for it in range(4):
            for c in range(2):
                a(f'v_cndmask_b32 v{S+2*it+c}, v{H+4*it+c}, v{H+4*it+2+c}, s[44:45]')
        a('s_nop 1')
        for i in range(8):
            a(f'v_mov_b32_dpp v{R+i}, v{S+i} row_ror:8 row_mask:0xf bank_mask:0xf')
        for it in range(4):
            for c in range(2):
                a(f'v_cndmask_b32 v{OO+4*it+c}, v{R+2*it+c}, v{H+4*it+c}, s[44:45]')
                a(f'v_cndmask_b32 v{OO+4*it+2+c}, v{H+4*it+2+c}, v{R+2*it+c}, s[44:45]')
        for it in range(4):
            a(f'buffer_store_dwordx4 v[{OO+4*it}:{OO+4*it+3}], v{VR}, s[{SO}:{SO+3}], s{S_FM} offen offset:{it*128}')
    if TL and which == 2: a('s_waitcnt vmcnt(0)')
    tl_stamp(a, TLV[1])
    a(f's_add_u32 s{S_SEG}, s{S_SEG}, 2')
    a(f's_cmp_lt_u32 s{S_SEG}, {nseg}'); a(f's_cbranch_scc1 {N}_TOP')
    tl_dump(a, TLV)
```

```python
from asmlib import *
import mega, k_recc as rc
from mega import *
from mega import tl_stamp, tl_init, tl_dump

F_XW, F_XD = 1024, 2560
L_ST = 0x20000

class LQ:
    def __init__(self, a): self.a = a; self.q = []
    def op(self, s, tag=None): self.a(s); self.q.append(tag)
    def wait(self, tag):
        i = max(k for k, t in enumerate(self.q) if t == tag)
        n = len(self.q) - 1 - i
        assert n <= 15
        self.a(f's_waitcnt lgkmcnt({n})')
    def drain(self): self.a('s_waitcnt lgkmcnt(0)'); self.q = []

def ex_store(a, instrs):
    if mega.PLACE:
        for i in instrs: a(i + ' sc1')
    else: mode_store(a, instrs)

PROF = False
PIPE = True
PIPE2 = True
PF = True
def role_gemmx(a, kind, nseg=64):
    N = kind
    prof = PROF
    def ST(i):
        if mega.TL and PIPE:
            l0 = a.newlabel('TLX')
            a(f's_cmp_lt_u32 s{S_SEG}, 56'); a(f's_cbranch_scc1 {l0}')
            a('s_memrealtime s[88:89]'); a(f's_sub_u32 m0, s{S_SEG}, 56'); a('s_lshl_b32 m0, m0, 3'); a(f's_add_u32 m0, m0, {i}')
            a('s_waitcnt lgkmcnt(0)'); a('v_writelane_b32 v243, s88, m0')
            a.label(l0)
        if not prof: return
        a('s_memtime s[56:57]'); a('s_waitcnt lgkmcnt(0)')
        a('s_sub_u32 s59, s56, s58'); a(f's_add_u32 s{60+i}, s{60+i}, s59'); a('s_mov_b32 s58, s56')
    GU = kind == 'GU'
    KS_, CB_ = 28, 29
    nk = 56 if kind == 'DN' else 64
    nch = nk // 8
    nd = nk // 4
    SW, SX, SO = 4, 8, 12
    SR, SRES = 4, S_OSRD
    T0, T1, T2 = f's{S_T0}', f's{S_T1}', f's{S_T2}'
    W = f's{S_WAVE}'
    LN, L16, VD, VT_, t1, t2 = 1, 2, 3, 4, 5, 6
    VPA, VPF, VFA, VONE, VOUT = 8, 12, 16, 17, 18
    VXR = [7, 9, 10, 11]
    XF = 160 if GU else 20
    NR = 12 if GU else 8
    AC0, AC1 = 52, 68
    TMP = 84
    CS = 100
    SA, SB_, QA, QB = 116, 117, 118, 119
    UL, UH = 20, 21
    VNEG = 160
    S_E0 = 49
    VONES, VSTW, VSTR = 120, 121, 122
    NMU, RSTD = 124, 126
    STT = 128
    VEX, VXF, VXP, VFM, VRM = 136, 137, 138, 139, 140
    RES = 142
    EXL = 144
    a(f's_load_dwordx2 s[{S_PWS}:{S_PWS+1}], s[0:1], {KA_WS}')
    if GU:
        a(f's_load_dwordx2 s[{S_PW}:{S_PW+1}], s[0:1], {KA_WG}')
        a(f's_load_dwordx2 s[40:41], s[0:1], {KA_WU}')
    else:
        a(f's_load_dwordx2 s[{S_PW}:{S_PW+1}], s[0:1], {KA_WO if kind == "WO" else KA_WD}')
        a(f's_load_dwordx2 s[40:41], s[0:1], {KA_X if kind == "WO" else KA_OUT}')
    a(f'v_and_b32 v{LN}, 63, v0')
    a(f'v_lshlrev_b32 v{L16}, 4, v{LN}')
    a('s_waitcnt lgkmcnt(0)')
    if GU:
        a(f's_cmp_ge_u32 {W}, 2')
        a(f's_cselect_b32 s{S_PW}, s40, s{S_PW}')
        a(f's_cselect_b32 s{S_PW+1}, s41, s{S_PW+1}')
    a.srd(SW, S_PW, (8 if kind == 'WO' else 7) * MB)
    xo, xb = {'WO': (WS_OF, 16*MB), 'GU': (WS_HB, 4*MB), 'DN': (WS_ACT, 14*MB)}[kind]
    a.srd(SX, S_PWS, xb, add=xo)
    oo, ob = {'WO': (WS_P1, MB), 'GU': (WS_ACT, 14*MB), 'DN': (WS_P2, MB)}[kind]
    a.srd(SO, S_PWS, ob, add=oo)
    if kind == 'WO':   a.srd(SRES, S_PWS, 4*MB, add=WS_HB)
    elif kind == 'DN': a.srd(SRES, 40, 4*MB)
    S_GO, S_M0 = 42, 43
    if GU:
        a(f'v_lshrrev_b32 v{t1}, 3, v{LN}'); a(f'v_mul_u32_u24 v{VD}, 7168, v{t1}')
        a(f'v_and_b32 v{t1}, 7, v{LN}'); a(f'v_lshl_add_u32 v{VD}, v{t1}, 4, v{VD}')
        a(f's_lshl_b32 {T0}, s{CB_}, 7')
        a(f's_and_b32 {T1}, {W}, 1'); a(f's_mul_i32 {T1}, {T1}, {64*7168}')
        a(f's_add_u32 s{S_GO}, {T0}, {T1}')
        a(f's_lshl_b32 s{S_M0}, {W}, 13')
        istep, cstep = 8 * 7168, 128 * 7168
        a(f'v_bfe_u32 v{t1}, v{LN}, 2, 2'); a(f'v_lshrrev_b32 v{t2}, 5, v{LN}')
        a(f'v_lshl_add_u32 v{t1}, v{t2}, 2, v{t1}'); a(f'v_lshlrev_b32 v{VT_}, 7, v{t1}')
        a(f'v_bfe_u32 v{t1}, v{LN}, 4, 1'); a(f'v_lshl_add_u32 v{VT_}, v{t1}, 14, v{VT_}')
        a(f'v_and_b32 v{t1}, 3, v{LN}'); a(f'v_lshl_add_u32 v{VT_}, v{t1}, 3, v{VT_}')
        a(f's_lshl_b32 {T0}, {W}, 5'); a(f'v_add_u32 v{VT_}, {T0}, v{VT_}')
        kkoff, h2off = 2048, 1024
    else:
        rows0 = 1024 if kind == 'WO' else 896
        a(f'v_lshrrev_b32 v{t1}, 4, v{LN}'); a(f'v_lshlrev_b32 v{t2}, 2, v{t1}')
        a(f'v_and_b32 v{VD}, 15, v{LN}'); a(f'v_xor_b32 v{VD}, v{VD}, v{t2}'); a(f'v_lshlrev_b32 v{VD}, 4, v{VD}')
        a(f'v_lshl_add_u32 v{VD}, v{t1}, 11, v{VD}')
        a(f's_mul_i32 {T0}, s{KS_}, {rows0 * 2048}'); a(f's_lshl_b32 {T1}, s{CB_}, 8'); a(f's_add_u32 {T0}, {T0}, {T1}')
        a(f's_lshl_b32 {T1}, {W}, 16'); a(f's_add_u32 s{S_GO}, {T0}, {T1}')
        a(f's_lshl_b32 s{S_M0}, {W}, 13')
        istep, cstep = 4 * 2048, 128 * 2048
        a(f'v_bfe_u32 v{t1}, v{LN}, 2, 2')
        a(f'v_lshrrev_b32 v{t2}, 5, v{LN}'); a(f'v_lshl_add_u32 v{t2}, v{t2}, 2, v{t1}'); a(f'v_lshlrev_b32 v{VT_}, 8, v{t2}')
        a(f'v_xor_b32 v{t1}, {W}, v{t1}'); a(f'v_lshl_add_u32 v{VT_}, v{t1}, 6, v{VT_}')
        a(f'v_bfe_u32 v{t1}, v{LN}, 4, 1'); a(f'v_lshl_add_u32 v{VT_}, v{t1}, 5, v{VT_}')
        a(f'v_and_b32 v{t1}, 3, v{LN}'); a(f'v_lshl_add_u32 v{VT_}, v{t1}, 3, v{VT_}')
        kkoff, h2off = 4096, 2048
    def wdma(q):
        a(f's_add_u32 {T0}, s{S_GO}, {q * cstep}')
        a(f's_add_u32 m0, s{S_M0}, {(q & 3) * 32768}')
        for i in range(8):
            a('s_nop 0')
            a(f'buffer_load_dwordx4 v{VD}, s[{SW}:{SW+3}], {T0} offen lds')
            if i < 7:
                a(f's_add_u32 {T0}, {T0}, {istep}'); a('s_add_u32 m0, m0, 1024')
    TLV = [240, 241, 242]
    if mega.TL: a('v_mov_b32 v243, 0')
    tl_init(a, TLV)
    VTJ = [84, 85, 86, 87]
    if GU:
        for j in range(4):
            a(f's_xor_b32 {T0}, {W}, {j}'); a(f's_lshl_b32 {T0}, {T0}, 11'); a(f'v_add_u32 v{VTJ[j]}, {T0}, v{VT_}')
    for q in range(min(4, nch)): wdma(q)
    for q in range(nch):
        left = min(nch, max(4, q + 4)) - (q + 1)
        a(f's_waitcnt vmcnt({8 * left})')
        a('s_barrier')
        if GU:
            for j in range(4): a(f'v_add_u32 v{88+j}, {(q & 3) * 32768}, v{VTJ[j]}')
        else:
            a(f'v_add_u32 v{t1}, {(q & 3) * 32768}, v{VT_}')
        for kk in range(8):
            kb = 8 * q + kk
            if GU: ad, off = 88 + (kk & 3), (kk & 4) * kkoff
            else:  ad, off = t1, kk * kkoff
            a(f'ds_read_b64_tr_b16 a[{4*kb}:{4*kb+1}], v{ad} offset:{off}')
            a(f'ds_read_b64_tr_b16 a[{4*kb+2}:{4*kb+3}], v{ad} offset:{off + h2off}')
            if kk % 4 == 3: a('s_waitcnt lgkmcnt(0)')
        a('s_barrier')
        if q + 4 < nch: wdma(q + 4)
    S_XO, S_XM0, S_OO = 44, 45, 46
    S_EXL = 47
    xstride = {'WO': 262144, 'GU': 65536, 'DN': 229376}[kind]
    if kind == 'WO':   a(f's_lshl_b32 s{S_XO}, s{KS_}, 16')
    elif kind == 'DN': a(f's_mul_i32 s{S_XO}, s{KS_}, {56*1024}')
    else:              a(f's_mov_b32 s{S_XO}, 0')
    a(f's_lshl_b32 {T0}, {W}, 10'); a(f's_add_u32 s{S_XO}, s{S_XO}, {T0}')
    a(f's_lshl_b32 s{S_XM0}, {W}, 10')
    if GU:
        a(f's_lshl_b32 {T0}, s{CB_}, 2'); a(f's_add_u32 {T0}, {T0}, {W}'); a(f's_lshl_b32 s{S_OO}, {T0}, 10')
        ostride = 229376
        a(f'v_mov_b32 v{VONES}, 0x3f803f80')
        for r in range(4): a(f'v_mov_b32 v{XF+r}, 0x3f803f80')
        a('s_nop 1')
        for kb in range(64):
            c = '0' if kb == 0 else f'v[{CS}:{CS+15}]'
            a(f'v_mfma_f32_32x32x16_bf16 v[{CS}:{CS+15}], a[{4*kb}:{4*kb+3}], v[{XF}:{XF+3}], {c}')
        a(f'v_lshrrev_b32 v{VSTW}, 2, v{L16}')
        a(f'v_and_b32 v{VSTR}, 31, v{LN}'); a(f'v_lshlrev_b32 v{VSTR}, 2, v{VSTR}'); a(f'v_add_u32 v{VSTR}, {L_ST}, v{VSTR}')
        a(f's_lshl_b32 {T0}, {W}, 8'); a(f's_add_u32 {T0}, {T0}, {L_ST}'); a(f'v_add_u32 v{VSTW}, {T0}, v{VSTW}')
    else:
        a(f's_lshl_b32 {T0}, s{CB_}, 2'); a(f's_add_u32 {T1}, {T0}, {W}'); a(f's_lshl_b32 {T1}, {T1}, 2')
        a(f's_add_u32 {T1}, {T1}, s{KS_}'); a(f's_lshl_b32 s{S_OO}, {T1}, 12')
        a(f's_add_u32 {T1}, {T0}, s{KS_}'); a(f's_lshl_b32 s{S_EXL}, {T1}, 14')
        fx = F_XW if kind == 'WO' else F_XD
        a(f's_lshl_b32 {T2}, {T1}, 4'); a(f's_add_u32 {T2}, {T2}, {fx}'); a(f'v_mov_b32 v{VXP}, {T2}')
        a(f's_add_u32 {T1}, {T0}, {W}'); a(f's_lshl_b32 {T1}, {T1}, 4'); a(f's_lshl_b32 {T2}, s{KS_}, 2')
        a(f's_add_u32 {T1}, {T1}, {T2}'); a(f's_add_u32 {T1}, {T1}, {fx}'); a(f'v_mov_b32 v{VXF}, {T1}')
        mm, hh, sp = 84, 85, 86
        a(f'v_and_b32 v{mm}, 15, v{LN}'); a(f's_lshr_b32 {T0}, {W}, 1'); a(f's_lshl_b32 {T0}, {T0}, 4'); a(f'v_add_u32 v{mm}, {T0}, v{mm}')
        a(f'v_bfe_u32 v{hh}, v{LN}, 4, 1'); a(f'v_lshrrev_b32 v{sp}, 5, v{LN}')
        a(f'v_lshl_add_u32 v87, v{hh}, 5, v{mm}'); a(f'v_lshlrev_b32 v87, 4, v87')
        a(f's_and_b32 {T0}, {W}, 1')
        a(f's_lshl_b32 {T1}, {T0}, 11'); a(f'v_lshl_add_u32 v{VEX}, v{sp}, 10, v87'); a(f'v_add_u32 v{VEX}, {T1}, v{VEX}')
        a(f's_lshl_b32 {T1}, s{CB_}, 3'); a(f's_lshl_b32 {T2}, s{KS_}, 1'); a(f's_add_u32 {T1}, {T1}, {T2}'); a(f's_add_u32 {T1}, {T1}, {T0}')
        a(f's_lshl_b32 {T2}, {T1}, 10'); a(f'v_lshl_add_u32 v{VFM}, v{sp}, 3, v87'); a(f'v_add_u32 v{VFM}, {T2}, v{VFM}')
        a(f's_lshl_b32 {T2}, {T1}, 5'); a(f'v_lshlrev_b32 v{VRM}, 11, v{mm}'); a(f'v_lshl_add_u32 v{VRM}, v{sp}, 4, v{VRM}')
        a(f'v_lshl_add_u32 v{VRM}, v{hh}, 3, v{VRM}'); a(f'v_add_u32 v{VRM}, {T2}, v{VRM}')
        for r in range(4): a(f'v_mov_b32 v{VNEG+r}, -1')
        if kind == 'WO': a.srd(SR, 40, 4*MB)
        else:            a.srd(SR, S_PWS, 4*MB, add=WS_HB)
    if kind == 'WO':
        a(f'v_and_b32 v{VPA}, 7, v{LN}'); a(f'v_lshlrev_b32 v{VPA}, 2, v{VPA}')
        a(f's_lshl_b32 {T0}, s{KS_}, {7 if mega.PLACE else 5}'); a(f's_add_u32 {T0}, {T0}, {F_AF}'); a(f'v_add_u32 v{VPA}, {T0}, v{VPA}')
        pw = 1
    elif GU:
        a(f'v_and_b32 v{VPA}, 31, v{LN}'); a(f'v_lshlrev_b32 v{VPA}, 4, v{VPA}'); a(f'v_add_u32 v{VPA}, {F_WF}, v{VPA}')
        pw = 4
    else:
        a(f'v_min_u32 v{VPA}, 13, v{LN}'); a(f'v_lshlrev_b32 v{VPA}, 4, v{VPA}')
        a(f's_mul_i32 {T0}, s{KS_}, {256 if mega.PLACE else 14*16}'); a(f's_add_u32 {T0}, {T0}, {F_GF}'); a(f'v_add_u32 v{VPA}, {T0}, v{VPA}')
        pw = 4
    if GU:
        a(f's_lshl_b32 {T0}, s{CB_}, 4'); fo = F_GF
        if mega.PLACE:
            a(f's_lshl_b32 {T1}, s{KS_}, 5'); a(f's_add_u32 {T0}, {T0}, {T1}')
    else:
        a(f's_lshl_b32 {T0}, s{KS_}, 3'); a(f's_add_u32 {T0}, {T0}, s{CB_}'); a(f's_lshl_b32 {T0}, {T0}, 4')
        fo = F_WF
    a(f's_lshl_b32 {T1}, {W}, 2'); a(f's_add_u32 {T0}, {T0}, {T1}'); a(f'v_mov_b32 v{VFA}, {T0}')
    a(f'v_mov_b32 v{VONE}, 1')
    a(f'v_mov_b32 v{VOUT}, {L_BC}')
    a(f's_mov_b32 s{S_SEG}, 0'); a(f's_mov_b32 s{S_EARLY}, 0')
    for j in range(4 if GU else 1):
        if GU:
            a(f's_xor_b32 {T0}, {W}, {j}'); a(f's_lshl_b32 {T0}, {T0}, 10'); a(f'v_add_u32 v{VXR[j]}, {T0}, v{L16}')
        else:
            a(f'v_mov_b32 v{VXR[j]}, v{L16}')

    VPFA, VPFD = 19, 18
    if PF and PIPE2:
        if kind == 'DN':
            a(f'v_min_u32 v{VPFA}, 55, v{LN}'); a(f'v_lshlrev_b32 v{VPFA}, 5, v{VPFA}')
            a(f's_mul_i32 {T0}, s{CB_}, 7168'); a(f's_mul_i32 {T1}, {W}, 768')
        else:
            a(f'v_lshlrev_b32 v{VPFA}, 5, v{LN}')
            a(f's_and_b32 {T0}, s{CB_}, 7'); a(f's_lshl_b32 {T0}, {T0}, 13'); a(f's_lshl_b32 {T1}, {W}, 10')
        a(f's_add_u32 {T0}, {T0}, {T1}'); a(f'v_add_u32 v{VPFA}, {T0}, v{VPFA}')
    def xdma(add):
        a(f's_add_u32 {T1}, s{S_SEG}, {add}')
        a(f's_mul_i32 {T0}, {T1}, {xstride}'); a(f's_add_u32 {T0}, {T0}, s{S_XO}')
        a(f's_and_b32 {T1}, {T1}, 1'); a(f's_lshl_b32 {T1}, {T1}, 16'); a(f's_add_u32 m0, {T1}, s{S_XM0}')
        if PF and PIPE2: a(f'buffer_load_dword v{VPFD}, v{VPFA}, s[{SX}:{SX+3}], {T0} offen')
        for i in range(nd):
            a('s_nop 0')
            a(f'buffer_load_dwordx4 v{L16}, s[{SX}:{SX+3}], {T0} offen lds')
            if i < nd - 1:
                a(f's_add_u32 {T0}, {T0}, 4096'); a('s_add_u32 m0, m0, 4096')

    def pipe_loop():
        top, have = f'{N}_TOP', f'{N}_HAVE'
        S_DA, S_SLOT = 53, 48
        E = f's{S_EARLY}'
        nxs = 1 if GU else 4
        bounds = [0, 16, 32, 48, nk] if nk == 64 else [0, 16, 32, 44, 56]
        D = 6
        def done_stamp(prev):
            if not mega.TL: return
            a('s_memrealtime s[88:89]'); a('s_waitcnt lgkmcnt(0)')
            a(f's_sub_u32 m0, s{S_SEG}, {1 if prev else 0}'); a('s_nop 3'); a(f'v_writelane_b32 v{TLV[1]}, s88, m0')
        def flag(prev):
            seg_foff(a, -1 if prev else 0)
            a('s_mov_b64 exec, 1')
            i = f'buffer_store_dword v{VONE}, v{VFA}, {FLS}, s{S_FOFF} offen offset:{fo}'
            if GU and mega.PLACE: mode_store(a, [i])
            else: a(i + ' sc1')
            a('s_mov_b64 exec, -1')
        def rd(kb, slot):
            r = XF + 4 * (slot % NR)
            if GU: return f'ds_read_b128 v[{r}:{r+3}], v{VXR[kb & 3]} offset:{(kb & ~3) * 1024}'
            return f'ds_read_b128 v[{r}:{r+3}], v{VXR[0]} offset:{kb * 1024}'
        def mf(kb, slot):
            r = XF + 4 * (slot % NR); ac = AC0 if slot % 2 == 0 else AC1
            c = '0' if slot < 2 else f'v[{ac}:{ac+15}]'
            return f'v_mfma_f32_32x32x16_bf16 v[{ac}:{ac+15}], a[{4*kb}:{4*kb+3}], v[{r}:{r+3}], {c}'
        def stats(slot, i):
            r = XF + 4 * (slot % NR) + i
            lo, hi = UL + 2 * (i & 1), UH + 2 * (i & 1)
            a(f'v_lshlrev_b32 v{lo}, 16, v{r}'); a(f'v_and_b32 v{hi}, 0xffff0000, v{r}')
            a(f'v_fmac_f32 v{QA}, v{lo}, v{lo}'); a(f'v_add_f32 v{SA}, v{SA}, v{lo}')
            a(f'v_fmac_f32 v{QB}, v{hi}, v{hi}'); a(f'v_add_f32 v{SB_}, v{SB_}, v{hi}')
        def dma_groups(add):
            g0 = [f's_add_u32 s{S_DA+1}, s{S_SEG}, {add}', f's_mul_i32 s{S_DA}, s{S_DA+1}, {xstride}',
                  f's_add_u32 s{S_DA}, s{S_DA}, s{S_XO}', f's_and_b32 s{S_DA+1}, s{S_DA+1}, 1',
                  f's_lshl_b32 s{S_DA+1}, s{S_DA+1}, 16', f's_add_u32 m0, s{S_DA+1}, s{S_XM0}']
            if PF and PIPE2: g0.append(f'buffer_load_dword v{VPFD}, v{VPFA}, s[{SX}:{SX+3}], s{S_DA} offen')
            gs = []
            for i in range(nd):
                g = ['s_nop 0', f'buffer_load_dwordx4 v{L16}, s[{SX}:{SX+3}], s{S_DA} offen lds']
                if i < nd - 1: g += [f's_add_u32 s{S_DA}, s{S_DA}, 4096', 's_add_u32 m0, m0, 4096']
                gs.append(g)
            gs[0] = g0 + gs[0]
            return gs
        def order(c):
            ks = list(range(bounds[c], bounds[c + 1]))
            if GU and c == 3: ks = [48, 52, 56, 60] + [k for k in ks if k & 3]
            return ks
        def pro(c, lq, base):
            ks = order(c)
            for i in range(D): lq.op(rd(ks[i], base + i), ('x', base + i))
        def body(c, lq, base, dma=None):
            ks = order(c); last = c == 3
            sw = []
            if GU:
                for i, kb in enumerate(ks):
                    if (kb & 3) == 0: sw += [(i, base + i, d) for d in range(4)]
            per_gap = 2 if (GU and last) else 1
            dma = list(dma or [])
            for i, kb in enumerate(ks):
                lq.wait(('x', base + i))
                a(mf(kb, base + i))
                if dma:
                    k = -(-len(dma) // (len(ks) - i))
                    for _ in range(k): a.ext(dma.pop(0))
                n = 0
                while sw and sw[0][0] <= i and n < per_gap:
                    assert i - (sw[0][1] - base) <= NR - D - 1
                    stats(sw[0][1], sw[0][2]); sw.pop(0); n += 1
                if i + D < len(ks): lq.op(rd(ks[i + D], base + i + D), ('x', base + i + D))
                if GU and last:
                    if i == 8:
                        assert not sw
                        a(f'v_add_f32 v{SA}, v{SA}, v{SB_}'); a(f'v_add_f32 v{QA}, v{QA}, v{QB}')
                        a('s_nop 1')
                        a(f'v_permlane32_swap_b32 v{SA}, v{QA}')
                        a('s_nop 1')
                        a(f'v_add_f32 v{SA}, v{SA}, v{QA}')
                        lq.op(f'ds_write_b32 v{VSTW}, v{SA}', 'stw')
                    if i == 9:
                        lq.wait('stw')
                        a('s_barrier')
                        for w in range(4):
                            lq.op(f'ds_read2_b32 v[{STT+2*w}:{STT+2*w+1}], v{VSTR} offset0:{64*w} offset1:{64*w+32}', ('st', w))
                    if i == 12:
                        lq.wait(('st', 3))
                        for (d, x, y) in [(0, 0, 2), (1, 1, 3), (4, 4, 6), (5, 5, 7), (0, 0, 4), (1, 1, 5)]:
                            a(f'v_add_f32 v{STT+d}, v{STT+x}, v{STT+y}')
                        a(f'v_mul_f32 v{NMU}, 0x3a800000, v{STT}')
                        a(f'v_mul_f32 v{RSTD}, 0x3a800000, v{STT+1}')
                    if i == 13:
                        a(f'v_fma_f32 v{RSTD}, -v{NMU}, v{NMU}, v{RSTD}')
                        a(f'v_max_f32 v{RSTD}, 0, v{RSTD}')
                        bf16_round(a, RSTD, RSTD)
                        a(f'v_add_f32 v{RSTD}, 0x3727c5ac, v{RSTD}')
                        bf16_round(a, RSTD, RSTD)
                    if i == 14:
                        a(f'v_sqrt_f32 v{RSTD}, v{RSTD}')
                        bf16_round(a, NMU, NMU)
                        bf16_round(a, RSTD, RSTD)
                        a(f'v_rcp_f32 v{RSTD}, v{RSTD}')
            assert not sw and not dma
        def ex_loads():
            for s_ in range(4):
                a(f'buffer_load_dwordx4 v[{EXL+4*s_}:{EXL+4*s_+3}], v{VEX}, s[{SO}:{SO+3}], s{S_E0+s_} offen sc1')
        def ex_finish(prev):
            lp = a.newlabel(N + '_X'); dn = lp + '_D'
            a.label(lp)
            a('s_waitcnt vmcnt(0)')
            rc.max_chain(a, t1, list(range(EXL, EXL + 16)))
            a(f'v_cmp_eq_u32 vcc, -1, v{t1}')
            a(f's_cbranch_vccz {dn}')
            a(f's_cmp_eq_u32 s{S_BUDW}, 0'); a(f's_cbranch_scc1 {dn}')
            a(f's_sub_u32 s{S_BUDW}, s{S_BUDW}, 1')
            ex_loads()
            a(f's_branch {lp}')
            a.label(dn)
            pk = lambda d, x, y: a(f'v_pk_add_f32 v[{d}:{d+1}], v[{x}:{x+1}], v[{y}:{y+1}]')
            pk(EXL, EXL, EXL + 4); pk(EXL + 2, EXL + 2, EXL + 6); pk(EXL + 8, EXL + 8, EXL + 12); pk(EXL + 10, EXL + 10, EXL + 14)
            pk(EXL, EXL, EXL + 8); pk(EXL + 2, EXL + 2, EXL + 10)
            a(f'v_lshlrev_b32 v{EXL+8}, 16, v{RES}'); a(f'v_and_b32 v{EXL+9}, 0xffff0000, v{RES}')
            a(f'v_cvt_pk_bf16_f32 v{EXL}, v{EXL}, v{EXL+1}'); a(f'v_cvt_pk_bf16_f32 v{EXL+2}, v{EXL+2}, v{EXL+3}')
            a(f'v_lshlrev_b32 v{EXL+10}, 16, v{RES+1}'); a(f'v_and_b32 v{EXL+11}, 0xffff0000, v{RES+1}')
            a(f'v_lshlrev_b32 v{EXL+4}, 16, v{EXL}'); a(f'v_and_b32 v{EXL+5}, 0xffff0000, v{EXL}')
            a(f'v_lshlrev_b32 v{EXL+6}, 16, v{EXL+2}'); a(f'v_and_b32 v{EXL+7}, 0xffff0000, v{EXL+2}')
            pk(EXL + 4, EXL + 4, EXL + 8); pk(EXL + 6, EXL + 6, EXL + 10)
            a(f's_lshl_b32 {T2}, s{S_SEG}, 16')
            if prev: a(f's_sub_u32 {T2}, {T2}, 65536')
            a(f'v_cvt_pk_bf16_f32 v{EXL}, v{EXL+4}, v{EXL+5}'); a(f'v_cvt_pk_bf16_f32 v{EXL+1}, v{EXL+6}, v{EXL+7}')
            if kind == 'WO':
                a(f'buffer_store_dwordx2 v[{EXL}:{EXL+1}], v{VFM}, s[{SRES}:{SRES+3}], {T2} offen sc1')
            else:
                a(f'buffer_store_dwordx2 v[{EXL}:{EXL+1}], v{VRM}, s[{SRES}:{SRES+3}], {T2} offen')
            ex_store(a, [f'buffer_store_dwordx4 v[{VNEG}:{VNEG+3}], v{VEX}, s[{SO}:{SO+3}], s{S_E0+s_} offen' for s_ in range(4)])

        def old_head():
            tl_stamp(a, TLV[2], 2)
            if prof:
                for i in range(12): a(f's_mov_b32 s{60+i}, 0')
                a('s_memtime s[56:57]'); a('s_waitcnt lgkmcnt(0)'); a('s_mov_b32 s58, s56')
            a.label(top)
            a(f's_cmp_lg_u32 {E}, 0'); a(f's_cbranch_scc1 {have}')
            nw = f'{N}_NW0'
            a(f's_cmp_lg_u32 {W}, 0'); a(f's_cbranch_scc1 {nw}')
            seg_foff(a)
            poll(a, N + '_P', VPA, VPF, pw, t1)
            a.label(nw)
            a('s_barrier')
            ST(5)
            xdma(0)
            a.label(have)
            tl_stamp(a, TLV[0])
            ST(0)
            if GU:
                for r in (SA, SB_, QA, QB): a(f'v_mov_b32 v{r}, 0')
            lq = LQ(a)
            pos = 0
            for c in range(4):
                need = (bounds[c + 1] + 3) // 4
                if c < 3:
                    ln_, lj = a.newlabel(N + '_NP'), a.newlabel(N + '_PJ')
                    a(f's_cmp_eq_u32 {E}, 0'); a(f's_cbranch_scc1 {ln_}')
                    if c < 2:
                        a(f's_waitcnt vmcnt({nd - need + nxs})')
                        if c == 1 and not GU: ex_loads()
                    elif GU:
                        a('s_waitcnt vmcnt(0)')
                        flag(True); done_stamp(True)
                    else:
                        ex_finish(True)
                    a(f's_branch {lj}')
                    a.label(ln_)
                    a(f's_waitcnt vmcnt({nd - need})')
                    a.label(lj)
                    if c == 2:
                        nw2 = f'{N}_NW1'
                        a(f's_cmp_lg_u32 {W}, 0'); a(f's_cbranch_scc1 {nw2}')
                        seg_foff(a, 1)
                        flag_load(a, VPA, VPF, pw)
                        a.label(nw2)
                else:
                    a('s_waitcnt vmcnt(0)')
                    if kind == 'WO' or (kind == 'DN' and mega.TL):
                        l0 = a.newlabel(N + '_NF')
                        a(f's_cmp_eq_u32 {E}, 0'); a(f's_cbranch_scc1 {l0}')
                        if kind == 'WO': flag(True)
                        done_stamp(True)
                        a.label(l0)
                    nw3 = f'{N}_NW2'
                    a(f's_cmp_lg_u32 {W}, 0'); a(f's_cbranch_scc1 {nw3}')
                    flag_test(a, VPF, pw, t1)
                    a(f's_cmp_eq_u64 vcc, 0'); a(f's_cselect_b32 {T0}, 1, 0')
                    a(f'v_mov_b32 v{t1}, {T0}')
                    a(f'ds_write_b32 v{VOUT}, v{t1}')
                    a('s_waitcnt lgkmcnt(0)')
                    a.label(nw3)
                a('s_barrier')
                if c == 0: ST(1)
                if c == 3: ST(2)
                if c < 3:
                    pro(c, lq, pos)
                    body(c, lq, pos)
                else:
                    lq.op(f'ds_read_b32 v{t2}, v{VOUT}', 'early')
                    if not GU:
                        a(f's_lshl_b32 {T2}, s{S_SEG}, 16')
                        a(f'buffer_load_dwordx2 v[{RES}:{RES+1}], v{VRM if kind == "WO" else VFM}, s[{SR}:{SR+3}], {T2} offen')
                    pro(c, lq, pos)
                    lq.wait('early')
                    a(f'v_readfirstlane_b32 {E}, v{t2}')
                    if prof: a(f's_add_u32 s70, s70, {E}')
                    a(f's_cmp_ge_u32 s{S_SEG}, {nseg - 1}'); a(f's_cselect_b32 {E}, 0, {E}')
                    lb, lj = f'{N}_LB', f'{N}_LJ'
                    a(f's_cmp_eq_u32 {E}, 0'); a(f's_cbranch_scc1 {lb}')
                    lqa = LQ(a); lqa.q = list(lq.q)
                    body(c, lqa, pos, dma_groups(1))
                    a(f's_branch {lj}')
                    a.label(lb)
                    body(c, lq, pos)
                    a.label(lj)
                pos += len(order(c))
                lq.q = []
        def ex_check():
            rc.max_chain(a, t1, list(range(EXL, EXL + 16)))
            a(f'v_cmp_eq_u32 vcc, -1, v{t1}')
        def ex_fin(prev):
            pk = lambda d, x, y: a(f'v_pk_add_f32 v[{d}:{d+1}], v[{x}:{x+1}], v[{y}:{y+1}]')
            pk(EXL, EXL, EXL + 4); pk(EXL + 2, EXL + 2, EXL + 6); pk(EXL + 8, EXL + 8, EXL + 12); pk(EXL + 10, EXL + 10, EXL + 14)
            pk(EXL, EXL, EXL + 8); pk(EXL + 2, EXL + 2, EXL + 10)
            a(f'v_lshlrev_b32 v{EXL+8}, 16, v{RES}'); a(f'v_and_b32 v{EXL+9}, 0xffff0000, v{RES}')
            a(f'v_cvt_pk_bf16_f32 v{EXL}, v{EXL}, v{EXL+1}'); a(f'v_cvt_pk_bf16_f32 v{EXL+2}, v{EXL+2}, v{EXL+3}')
            a(f'v_lshlrev_b32 v{EXL+10}, 16, v{RES+1}'); a(f'v_and_b32 v{EXL+11}, 0xffff0000, v{RES+1}')
            a(f'v_lshlrev_b32 v{EXL+4}, 16, v{EXL}'); a(f'v_and_b32 v{EXL+5}, 0xffff0000, v{EXL}')
            a(f'v_lshlrev_b32 v{EXL+6}, 16, v{EXL+2}'); a(f'v_and_b32 v{EXL+7}, 0xffff0000, v{EXL+2}')
            pk(EXL + 4, EXL + 4, EXL + 8); pk(EXL + 6, EXL + 6, EXL + 10)
            a(f's_lshl_b32 {T2}, s{S_SEG}, 16')
            if prev: a(f's_sub_u32 {T2}, {T2}, 65536')
            a(f'v_cvt_pk_bf16_f32 v{EXL}, v{EXL+4}, v{EXL+5}'); a(f'v_cvt_pk_bf16_f32 v{EXL+1}, v{EXL+6}, v{EXL+7}')
            if kind == 'WO':
                a(f'buffer_store_dwordx2 v[{EXL}:{EXL+1}], v{VFM}, s[{SRES}:{SRES+3}], {T2} offen sc1')
            else:
                a(f'buffer_store_dwordx2 v[{EXL}:{EXL+1}], v{VRM}, s[{SRES}:{SRES+3}], {T2} offen')
            ex_store(a, [f'buffer_store_dwordx4 v[{VNEG}:{VNEG+3}], v{VEX}, s[{SO}:{SO+3}], s{S_E0+s_} offen' for s_ in range(4)])
        def next_ready(dst, val):
            flag_test(a, VPF, pw, t1)
            a(f's_cmp_eq_u64 vcc, 0'); a(f's_cselect_b32 {dst}, {val}, 0')
            a(f's_cmp_ge_u32 s{S_SEG}, {nseg - 1}'); a(f's_cselect_b32 {dst}, 0, {dst}')

        if PIPE2:
            HASFLAG = kind != 'DN'
            NEEDACK = HASFLAG or mega.TL
            tl_stamp(a, TLV[2], 2)
            if prof:
                for i in range(12): a(f's_mov_b32 s{60+i}, 0')
                a('s_memtime s[56:57]'); a('s_waitcnt lgkmcnt(0)'); a('s_mov_b32 s58, s56')
            for r in range(pw): a(f'v_mov_b32 v{VPF+r}, 0')
            a.label(top)
            a(f's_cmp_eq_u32 {E}, 1'); a(f's_cbranch_scc1 {have}')
            if not GU:
                a(f's_cmp_eq_u32 {E}, 2'); a(f's_cbranch_scc1 {have}')
            lp, iss = f'{N}_PL', f'{N}_ISS'
            seg_foff(a)
            a.label(lp)
            flag_test(a, VPF, pw, t1)
            a(f's_cbranch_vccz {iss}')
            a(f's_cmp_eq_u32 s{S_BUDW}, 0'); a(f's_cbranch_scc1 {iss}')
            a(f's_sub_u32 s{S_BUDW}, s{S_BUDW}, 1')
            flag_load(a, VPA, VPF, pw)
            a('s_waitcnt vmcnt(0)')
            a(f's_branch {lp}')
            a.label(iss)
            ST(5)
            xdma(0)
            if NEEDACK:
                a(f's_cmp_eq_u32 {E}, 3'); a(f's_cbranch_scc0 {have}')
                a(f's_waitcnt vmcnt({nd + (0 if GU else 4)})')
                if HASFLAG: flag(True)
                done_stamp(True)
            a.label(have)
            tl_stamp(a, TLV[0])
            ST(0)
            if GU:
                for r in (SA, SB_, QA, QB): a(f'v_mov_b32 v{r}, 0')
            lq = LQ(a)
            pos = 0
            for c in range(4):
                need = (bounds[c + 1] + 3) // 4
                if c < 3:
                    l1, l3, l0, lj = (a.newlabel(N + x) for x in ('_C1', '_C3', '_C0', '_CJ'))
                    a(f's_cmp_eq_u32 {E}, 1'); a(f's_cbranch_scc1 {l1}')
                    if HASFLAG:
                        a(f's_cmp_eq_u32 {E}, 3'); a(f's_cbranch_scc1 {l3}')
                    if not GU and c > 0:
                        a(f's_cmp_eq_u32 {E}, 2'); a(f's_cbranch_scc0 {l0}')
                        if c == 1:
                            a(f's_waitcnt vmcnt({nd - need})'); ex_loads()
                        else:
                            ex_finish(True)
                        a(f's_branch {lj}')
                    a.label(l0)
                    a(f's_waitcnt vmcnt({nd - need})')
                    a(f's_branch {lj}')
                    if HASFLAG:
                        a.label(l3)
                        a(f's_waitcnt vmcnt({nd - need + 1})')
                        a(f's_branch {lj}')
                    a.label(l1)
                    if c < 2:
                        a(f's_waitcnt vmcnt({nd - need + nxs})')
                        if c == 1 and not GU: ex_loads()
                    elif GU:
                        a('s_waitcnt vmcnt(0)')
                        flag(True); done_stamp(True)
                    else:
                        ex_finish(True)
                    a.label(lj)
                    if c == 2:
                        seg_foff(a, 1)
                        flag_load(a, VPA, VPF, pw)
                else:
                    a('s_waitcnt vmcnt(0)')
                    if kind == 'WO' or (kind == 'DN' and mega.TL):
                        l0, l1 = a.newlabel(N + '_NF'), a.newlabel(N + '_NF')
                        a(f's_cmp_eq_u32 {E}, 1'); a(f's_cbranch_scc1 {l1}')
                        a(f's_cmp_eq_u32 {E}, 2'); a(f's_cbranch_scc0 {l0}')
                        a.label(l1)
                        if kind == 'WO': flag(True)
                        done_stamp(True)
                        a.label(l0)
                    next_ready(E, 1)
                a('s_barrier')
                if c == 0: ST(1)
                if c == 3: ST(2)
                if c < 3:
                    pro(c, lq, pos)
                    body(c, lq, pos)
                else:
                    if not GU:
                        a(f's_lshl_b32 {T2}, s{S_SEG}, 16')
                        a(f'buffer_load_dwordx2 v[{RES}:{RES+1}], v{VRM if kind == "WO" else VFM}, s[{SR}:{SR+3}], {T2} offen')
                    pro(c, lq, pos)
                    if prof: a(f's_add_u32 s70, s70, {E}')
                    lb, lj = f'{N}_LB', f'{N}_LJ'
                    a(f's_cmp_eq_u32 {E}, 0'); a(f's_cbranch_scc1 {lb}')
                    lqa = LQ(a); lqa.q = list(lq.q)
                    body(c, lqa, pos, dma_groups(1))
                    a(f's_branch {lj}')
                    a.label(lb)
                    seg_foff(a, 1)
                    flag_load(a, VPA, VPF, pw)
                    body(c, lq, pos)
                    a.label(lj)
                pos += len(order(c))
                lq.q = []
        else:
          old_head()
        ST(3)
        fin = f'{N}_FIN'
        if GU:
            a(f's_mul_i32 {T2}, s{S_SEG}, {ostride}'); a(f's_add_u32 {T2}, {T2}, s{S_OO}')
            for j in range(4): a(f'v_xor_b32 v{VXR[j]}, 0x10000, v{VXR[j]}')
            a('s_nop 7'); a('s_nop 4')
            for r in range(0, 16, 2):
                a(f'v_pk_add_f32 v[{AC0+r}:{AC0+r+1}], v[{AC0+r}:{AC0+r+1}], v[{AC1+r}:{AC1+r+1}]')
            for r in range(0, 16, 2):
                a(f'v_pk_fma_f32 v[{AC0+r}:{AC0+r+1}], v[{CS+r}:{CS+r+1}], v[{NMU}:{NMU+1}], v[{AC0+r}:{AC0+r+1}] op_sel_hi:[1,0,1] neg_lo:[0,1,0] neg_hi:[0,1,0]')
            for r in range(0, 16, 2):
                a(f'v_pk_mul_f32 v[{AC0+r}:{AC0+r+1}], v[{AC0+r}:{AC0+r+1}], v[{RSTD}:{RSTD+1}] op_sel_hi:[1,0]')
            G, U, T = AC0, AC0 + 8, TMP
            for r in range(8):
                a(f'v_cvt_pk_bf16_f32 v{T+r}, v{AC0+2*r}, v{AC0+2*r+1}')
            for r in range(4):
                a(f'v_lshlrev_b32 v{G+2*r}, 16, v{T+r}'); a(f'v_and_b32 v{G+2*r+1}, 0xffff0000, v{T+r}')
            for r in range(8): a(f'v_mul_f32 v{G+r}, 0xbfb8aa3b, v{G+r}')
            for r in range(4):
                a(f'v_lshlrev_b32 v{U+2*r}, 16, v{T+4+r}'); a(f'v_and_b32 v{U+2*r+1}, 0xffff0000, v{T+4+r}')
            for r in range(8): a(f'v_exp_f32 v{G+r}, v{G+r}')
            for r in range(8): a(f'v_add_f32 v{G+r}, 1.0, v{G+r}')
            for r in range(8): a(f'v_rcp_f32 v{G+r}, v{G+r}')
            a('s_nop 0')
            for r in range(4): a(f'v_cvt_pk_bf16_f32 v{T+r}, v{G+2*r}, v{G+2*r+1}')
            for r in range(4):
                a(f'v_lshlrev_b32 v{G+2*r}, 16, v{T+r}'); a(f'v_and_b32 v{G+2*r+1}, 0xffff0000, v{T+r}')
            for r in range(8): a(f'v_mul_f32 v{G+r}, v{G+r}, v{U+r}')
            for r in range(4): a(f'v_cvt_pk_bf16_f32 v{T+r}, v{G+2*r}, v{G+2*r+1}')
            i = f'buffer_store_dwordx4 v[{T}:{T+3}], v{L16}, s[{SO}:{SO+3}], {T2} offen'
            if mega.PLACE: mode_store(a, [i])
            else: a(i + ' sc1')
            ST(4)
            a(f's_cmp_lg_u32 {E}, 0'); a(f's_cbranch_scc1 {fin}')
            if PIPE2:
                a('s_waitcnt vmcnt(1)')
                next_ready(E, 3)
                a(f's_cmp_lg_u32 {E}, 0'); a(f's_cbranch_scc1 {fin}')
                seg_foff(a, 1)
                flag_load(a, VPA, VPF, pw)
            a('s_waitcnt vmcnt(0)')
            flag(False); done_stamp(False)
            a.label(fin)
        else:
            a(f's_and_b32 s{S_SLOT}, s{S_SEG}, 1'); a(f's_lshl_b32 s{S_SLOT}, s{S_SLOT}, 19')
            a(f's_add_u32 {T2}, s{S_SLOT}, s{S_OO}')
            a(f'v_xor_b32 v{VXR[0]}, 0x10000, v{VXR[0]}')
            a('s_nop 7'); a('s_nop 4')
            for r in range(0, 16, 2):
                a(f'v_pk_add_f32 v[{AC0+r}:{AC0+r+1}], v[{AC0+r}:{AC0+r+1}], v[{AC1+r}:{AC1+r+1}]')
            ex_store(a, [f'buffer_store_dwordx4 v[{AC0+4*q}:{AC0+4*q+3}], v{L16}, s[{SO}:{SO+3}], {T2} offen offset:{q*1024}' for q in range(4)])
            a(f's_add_u32 s{S_E0}, s{S_SLOT}, s{S_EXL}')
            for s_ in range(1, 4): a(f's_add_u32 s{S_E0+s_}, s{S_E0}, {4096*s_}')
            ST(4)
            a(f's_cmp_lg_u32 {E}, 0'); a(f's_cbranch_scc1 {fin}')
            if PIPE2:
                late, lp, exok = f'{N}_LATE', f'{N}_XL', f'{N}_XOK'
                a('s_waitcnt vmcnt(4)')
                next_ready(E, 2)
                a(f's_cmp_lg_u32 {E}, 0'); a(f's_cbranch_scc1 {late}')
                seg_foff(a, 1)
                a.label(lp)
                ex_loads()
                flag_load(a, VPA, VPF, pw)
                a('s_waitcnt vmcnt(0)')
                ex_check()
                a(f's_cbranch_vccz {exok}')
                next_ready(E, 2)
                a(f's_cmp_lg_u32 {E}, 0'); a(f's_cbranch_scc1 {late}')
                a(f's_cmp_eq_u32 s{S_BUDW}, 0'); a(f's_cbranch_scc1 {exok}')
                a(f's_sub_u32 s{S_BUDW}, s{S_BUDW}, 1')
                a(f's_branch {lp}')
                a.label(late)
                xdma(1)
                a(f's_branch {fin}')
                a.label(exok)
                ex_fin(False)
                ST(6)
                if NEEDACK:
                    next_ready(E, 3)
                    a(f's_cmp_lg_u32 {E}, 0'); a(f's_cbranch_scc1 {fin}')
                    a('s_waitcnt vmcnt(4)')
                    if kind == 'WO': flag(False)
                    done_stamp(False)
            else:
                ex_loads()
                ex_finish(False)
                ST(6)
                if kind == 'WO' or mega.TL: a('s_waitcnt vmcnt(0)')
                if kind == 'WO': flag(False)
                done_stamp(False)
            a.label(fin)
        ST(7)
        a(f's_add_u32 s{S_SEG}, s{S_SEG}, 1')
        a(f's_cmp_lt_u32 s{S_SEG}, {nseg}'); a(f's_cbranch_scc1 {top}')

    assert PIPE or not mega.PLACE
    if PIPE:
        pipe_loop()
    else:
        top, have = f'{N}_TOP', f'{N}_HAVE'
        tl_stamp(a, TLV[2], 2)
        if prof:
            for i in range(12): a(f's_mov_b32 s{60+i}, 0')
            a('s_memtime s[56:57]'); a('s_waitcnt lgkmcnt(0)'); a('s_mov_b32 s58, s56')
        a.label(top)
        a(f's_cmp_lg_u32 s{S_EARLY}, 0'); a(f's_cbranch_scc1 {have}')
        nw = f'{N}_NW0'
        a(f's_cmp_lg_u32 {W}, 0'); a(f's_cbranch_scc1 {nw}')
        seg_foff(a)
        poll(a, N + '_P', VPA, VPF, pw, t1)
        a.label(nw)
        a('s_barrier')
        xdma(0)
        a.label(have)
        tl_stamp(a, TLV[0])
        ST(0)
        nw2 = f'{N}_NW1'
        a(f's_cmp_lg_u32 {W}, 0'); a(f's_cbranch_scc1 {nw2}')
        seg_foff(a, 1)
        flag_load(a, VPA, VPF, pw)
        a.label(nw2)
        if GU:
            for r in (SA, SB_, QA, QB): a(f'v_mov_b32 v{r}, 0')
        bounds = [0, 16, 32, 48, nk] if nk == 64 else [0, 16, 32, 44, 56]
        lq = LQ(a)
        pos = 0
        def rd(kb, slot):
            r = XF + 4 * (slot % NR)
            if GU: return f'ds_read_b128 v[{r}:{r+3}], v{VXR[kb & 3]} offset:{(kb & ~3) * 1024}'
            return f'ds_read_b128 v[{r}:{r+3}], v{VXR[0]} offset:{kb * 1024}'
        def mf(kb, slot):
            r = XF + 4 * (slot % NR); ac = AC0 if slot % 2 == 0 else AC1
            c = '0' if slot < 2 else f'v[{ac}:{ac+15}]'
            return f'v_mfma_f32_32x32x16_bf16 v[{ac}:{ac+15}], a[{4*kb}:{4*kb+3}], v[{r}:{r+3}], {c}'
        def stats(slot, i):
            r = XF + 4 * (slot % NR) + i
            lo, hi = UL + 2 * (i & 1), UH + 2 * (i & 1)
            a(f'v_lshlrev_b32 v{lo}, 16, v{r}'); a(f'v_and_b32 v{hi}, 0xffff0000, v{r}')
            a(f'v_fmac_f32 v{QA}, v{lo}, v{lo}'); a(f'v_add_f32 v{SA}, v{SA}, v{lo}')
            a(f'v_fmac_f32 v{QB}, v{hi}, v{hi}'); a(f'v_add_f32 v{SB_}, v{SB_}, v{hi}')
        for c in range(4):
            k0, k1 = bounds[c], bounds[c + 1]
            need = (k1 + 3) // 4
            a(f's_waitcnt vmcnt({nd - need})')
            last = c == 3
            if last:
                nw3 = f'{N}_NW2'
                a(f's_cmp_lg_u32 {W}, 0'); a(f's_cbranch_scc1 {nw3}')
                a('s_waitcnt vmcnt(0)')
                flag_test(a, VPF, pw, t1)
                a(f's_cmp_eq_u64 vcc, 0'); a(f's_cselect_b32 {T0}, 1, 0')
                a(f'v_mov_b32 v{t1}, {T0}')
                a(f'ds_write_b32 v{VOUT}, v{t1}')
                a('s_waitcnt lgkmcnt(0)')
                a.label(nw3)
            a('s_barrier')
            if c == 0: ST(1)
            if last: ST(2)
            if last:
                lq.op(f'ds_read_b32 v{t2}, v{VOUT}', 'early')
                if not GU:
                    a(f's_lshl_b32 {T2}, s{S_SEG}, 16')
                    a(f'buffer_load_dwordx2 v[{RES}:{RES+1}], v{VRM if kind == "WO" else VFM}, s[{SR}:{SR+3}], {T2} offen')
            D = 6
            ks = list(range(k0, k1))
            if GU and last:
                ks = [48, 52, 56, 60] + [k for k in ks if k & 3]
            base = pos
            sw = []
            if GU:
                for i, kb in enumerate(ks):
                    if (kb & 3) == 0: sw += [(i, base + i, d) for d in range(4)]
            per_gap = 2 if (GU and last) else 1
            for i in range(D): lq.op(rd(ks[i], base + i), ('x', base + i))
            for i, kb in enumerate(ks):
                lq.wait(('x', base + i))
                a(mf(kb, base + i))
                n = 0
                while sw and sw[0][0] <= i and n < per_gap:
                    assert i - (sw[0][1] - base) <= NR - D - 1
                    stats(sw[0][1], sw[0][2]); sw.pop(0); n += 1
                if i + D < len(ks): lq.op(rd(ks[i + D], base + i + D), ('x', base + i + D))
                if GU and last:
                    if i == 8:
                        assert not sw
                        a(f'v_add_f32 v{SA}, v{SA}, v{SB_}'); a(f'v_add_f32 v{QA}, v{QA}, v{QB}')
                        a('s_nop 1')
                        a(f'v_permlane32_swap_b32 v{SA}, v{QA}')
                        a('s_nop 1')
                        a(f'v_add_f32 v{SA}, v{SA}, v{QA}')
                        lq.op(f'ds_write_b32 v{VSTW}, v{SA}', 'stw')
                    if i == 9:
                        lq.wait('stw')
                        a('s_barrier')
                        for w in range(4):
                            lq.op(f'ds_read2_b32 v[{STT+2*w}:{STT+2*w+1}], v{VSTR} offset0:{64*w} offset1:{64*w+32}', ('st', w))
                    if i == 12:
                        lq.wait(('st', 3))
                        for (d, x, y) in [(0, 0, 2), (1, 1, 3), (4, 4, 6), (5, 5, 7), (0, 0, 4), (1, 1, 5)]:
                            a(f'v_add_f32 v{STT+d}, v{STT+x}, v{STT+y}')
                        a(f'v_mul_f32 v{NMU}, 0x3a800000, v{STT}')
                        a(f'v_mul_f32 v{RSTD}, 0x3a800000, v{STT+1}')
                    if i == 13:
                        a(f'v_fma_f32 v{RSTD}, -v{NMU}, v{NMU}, v{RSTD}')
                        a(f'v_max_f32 v{RSTD}, 0, v{RSTD}')
                        bf16_round(a, RSTD, RSTD)
                        a(f'v_add_f32 v{RSTD}, 0x3727c5ac, v{RSTD}')
                        bf16_round(a, RSTD, RSTD)
                    if i == 14:
                        a(f'v_sqrt_f32 v{RSTD}, v{RSTD}')
                        bf16_round(a, NMU, NMU)
                        bf16_round(a, RSTD, RSTD)
                        a(f'v_rcp_f32 v{RSTD}, v{RSTD}')
            assert not sw
            pos += len(ks)
            lq.q = []
        ST(3)
        a(f'v_readfirstlane_b32 s{S_EARLY}, v{t2}')
        if prof: a(f's_add_u32 s70, s70, s{S_EARLY}')
        a(f's_cmp_ge_u32 s{S_SEG}, {nseg - 1}'); a(f's_cselect_b32 s{S_EARLY}, 0, s{S_EARLY}')
        late, fin = f'{N}_LATE', f'{N}_FIN'
        if GU:
            a(f's_mul_i32 {T2}, s{S_SEG}, {ostride}'); a(f's_add_u32 {T2}, {T2}, s{S_OO}')
            for j in range(4): a(f'v_xor_b32 v{VXR[j]}, 0x10000, v{VXR[j]}')
            a('s_nop 7'); a('s_nop 4')
            for r in range(0, 16, 2):
                a(f'v_pk_add_f32 v[{AC0+r}:{AC0+r+1}], v[{AC0+r}:{AC0+r+1}], v[{AC1+r}:{AC1+r+1}]')
            for r in range(0, 16, 2):
                a(f'v_pk_fma_f32 v[{AC0+r}:{AC0+r+1}], v[{CS+r}:{CS+r+1}], v[{NMU}:{NMU+1}], v[{AC0+r}:{AC0+r+1}] op_sel_hi:[1,0,1] neg_lo:[0,1,0] neg_hi:[0,1,0]')
            for r in range(0, 16, 2):
                a(f'v_pk_mul_f32 v[{AC0+r}:{AC0+r+1}], v[{AC0+r}:{AC0+r+1}], v[{RSTD}:{RSTD+1}] op_sel_hi:[1,0]')
            G, U, T = AC0, AC0 + 8, TMP
            for r in range(8):
                a(f'v_cvt_pk_bf16_f32 v{T+r}, v{AC0+2*r}, v{AC0+2*r+1}')
            for r in range(4):
                a(f'v_lshlrev_b32 v{G+2*r}, 16, v{T+r}'); a(f'v_and_b32 v{G+2*r+1}, 0xffff0000, v{T+r}')
            for r in range(8): a(f'v_mul_f32 v{G+r}, 0xbfb8aa3b, v{G+r}')
            for r in range(4):
                a(f'v_lshlrev_b32 v{U+2*r}, 16, v{T+4+r}'); a(f'v_and_b32 v{U+2*r+1}, 0xffff0000, v{T+4+r}')
            for r in range(8): a(f'v_exp_f32 v{G+r}, v{G+r}')
            for r in range(8): a(f'v_add_f32 v{G+r}, 1.0, v{G+r}')
            for r in range(8): a(f'v_rcp_f32 v{G+r}, v{G+r}')
            a('s_nop 0')
            for r in range(4): a(f'v_cvt_pk_bf16_f32 v{T+r}, v{G+2*r}, v{G+2*r+1}')
            for r in range(4):
                a(f'v_lshlrev_b32 v{G+2*r}, 16, v{T+r}'); a(f'v_and_b32 v{G+2*r+1}, 0xffff0000, v{T+r}')
            for r in range(8): a(f'v_mul_f32 v{G+r}, v{G+r}, v{U+r}')
            for r in range(4): a(f'v_cvt_pk_bf16_f32 v{T+r}, v{G+2*r}, v{G+2*r+1}')
            a(f'buffer_store_dwordx4 v[{T}:{T+3}], v{L16}, s[{SO}:{SO+3}], {T2} offen sc1')
            a(f's_cmp_eq_u32 s{S_EARLY}, 0'); a(f's_cbranch_scc1 {late}')
            xdma(1)
            a(f's_waitcnt vmcnt({nd})')
            a(f's_branch {fin}')
            a.label(late)
            a('s_waitcnt vmcnt(0)')
            a.label(fin)
            ST(7)
            set_flag(a, VFA, VONE, fo)
        else:
            S_SLOT = 48
            a(f's_and_b32 s{S_SLOT}, s{S_SEG}, 1'); a(f's_lshl_b32 s{S_SLOT}, s{S_SLOT}, 19')
            a(f's_add_u32 {T2}, s{S_SLOT}, s{S_OO}')
            a(f'v_xor_b32 v{VXR[0]}, 0x10000, v{VXR[0]}')
            a('s_nop 7'); a('s_nop 4')
            for r in range(0, 16, 2):
                a(f'v_pk_add_f32 v[{AC0+r}:{AC0+r+1}], v[{AC0+r}:{AC0+r+1}], v[{AC1+r}:{AC1+r+1}]')
            mode_store(a, [f'buffer_store_dwordx4 v[{AC0+4*q}:{AC0+4*q+3}], v{L16}, s[{SO}:{SO+3}], {T2} offen offset:{q*1024}' for q in range(4)])
            ST(4)
            a(f's_add_u32 s{S_E0}, s{S_SLOT}, s{S_EXL}')
            for s_ in range(1, 4): a(f's_add_u32 s{S_E0+s_}, s{S_E0}, {4096*s_}')
            lp = a.newlabel(N + '_X'); dn = lp + '_D'
            a.label(lp)
            for s_ in range(4):
                a(f'buffer_load_dwordx4 v[{EXL+4*s_}:{EXL+4*s_+3}], v{VEX}, s[{SO}:{SO+3}], s{S_E0+s_} offen sc1')
            a('s_waitcnt vmcnt(0)')
            rc.max_chain(a, t1, list(range(EXL, EXL + 16)))
            a(f'v_cmp_eq_u32 vcc, -1, v{t1}')
            budget(a, lp, dn)
            ST(5)
            mode_store(a, [f'buffer_store_dwordx4 v[{VNEG}:{VNEG+3}], v{VEX}, s[{SO}:{SO+3}], s{S_E0+s_} offen' for s_ in range(4)])
            pk = lambda d, x, y: a(f'v_pk_add_f32 v[{d}:{d+1}], v[{x}:{x+1}], v[{y}:{y+1}]')
            pk(EXL, EXL, EXL + 4); pk(EXL + 2, EXL + 2, EXL + 6); pk(EXL + 8, EXL + 8, EXL + 12); pk(EXL + 10, EXL + 10, EXL + 14)
            pk(EXL, EXL, EXL + 8); pk(EXL + 2, EXL + 2, EXL + 10)
            a(f'v_lshlrev_b32 v{EXL+8}, 16, v{RES}'); a(f'v_and_b32 v{EXL+9}, 0xffff0000, v{RES}')
            a(f'v_cvt_pk_bf16_f32 v{EXL}, v{EXL}, v{EXL+1}'); a(f'v_cvt_pk_bf16_f32 v{EXL+2}, v{EXL+2}, v{EXL+3}')
            a(f'v_lshlrev_b32 v{EXL+10}, 16, v{RES+1}'); a(f'v_and_b32 v{EXL+11}, 0xffff0000, v{RES+1}')
            a(f'v_lshlrev_b32 v{EXL+4}, 16, v{EXL}'); a(f'v_and_b32 v{EXL+5}, 0xffff0000, v{EXL}')
            a(f'v_lshlrev_b32 v{EXL+6}, 16, v{EXL+2}'); a(f'v_and_b32 v{EXL+7}, 0xffff0000, v{EXL+2}')
            pk(EXL + 4, EXL + 4, EXL + 8); pk(EXL + 6, EXL + 6, EXL + 10)
            a(f's_lshl_b32 {T2}, s{S_SEG}, 16')
            a(f'v_cvt_pk_bf16_f32 v{EXL}, v{EXL+4}, v{EXL+5}'); a(f'v_cvt_pk_bf16_f32 v{EXL+1}, v{EXL+6}, v{EXL+7}')
            if kind == 'WO':
                a(f'buffer_store_dwordx2 v[{EXL}:{EXL+1}], v{VFM}, s[{SRES}:{SRES+3}], {T2} offen sc1')
            else:
                a(f'buffer_store_dwordx2 v[{EXL}:{EXL+1}], v{VRM}, s[{SRES}:{SRES+3}], {T2} offen')
            ST(6)
            a(f's_cmp_eq_u32 s{S_EARLY}, 0'); a(f's_cbranch_scc1 {late}')
            xdma(1)
            if kind == 'WO': a(f's_waitcnt vmcnt({nd})')
            a(f's_branch {fin}')
            a.label(late)
            if kind == 'WO' or mega.TL: a('s_waitcnt vmcnt(0)')
            a.label(fin)
            ST(7)
            if kind == 'WO': set_flag(a, VFA, VONE, fo)
        tl_stamp(a, TLV[1])
        a(f's_add_u32 s{S_SEG}, s{S_SEG}, 1')
        a(f's_cmp_lt_u32 s{S_SEG}, {nseg}'); a(f's_cbranch_scc1 {top}')
    tl_dump(a, TLV + [243])
    if prof:
        a('s_waitcnt vmcnt(0)')
        a.srd(4, S_PWS, 1 << 20, add=0xF200000)
        a(f's_lshl_b32 {T0}, s{S_WID}, 2'); a(f's_add_u32 {T0}, {T0}, {W}'); a(f's_lshl_b32 {T0}, {T0}, 6')
        a('v_mov_b32 v1, 0')
        a('s_mov_b64 exec, 1')
        for i in range(11):
            a(f'v_mov_b32 v2, s{60+i}')
            a(f'buffer_store_dword v2, v1, s[4:7], {T0} offen offset:{4*i}')
        a('s_mov_b64 exec, -1')
        a('s_waitcnt vmcnt(0)')
```

```python
import sys; sys.path.insert(0,'gen')
from asmlib import *
import tasks, tasks2, mega, k_recc as rc
from mega import *
import mega2
from mega2 import role_gemmx, S_WM
from gemm2 import Eng, S_WAVE, S_T0, S_T1, S_T2
from tasks import S_RB, S_CB, S_KS, S_PW, S_PWS, S_OSRD, MB, task_gemm
from k_ln import bf16_round, reduce_bits345

def gen_prep(cfg):
    a = Asm()
    a('s_cmp_ge_u32 s2, 256')
    a('s_cbranch_scc1 PREP_END')
    a(f's_load_dwordx2 s[4:5], s[0:1], {KA_WS}')
    a(f's_load_dwordx2 s[6:7], s[0:1], {KA_MEM0}')
    a(f's_load_dwordx2 s[24:25], s[0:1], {KA_X}')
    a('v_and_b32 v21, 63, v0'); a('v_lshrrev_b32 v22, 6, v0'); a('s_nop 0'); a('v_readfirstlane_b32 s19, v22')
    a('v_and_b32 v24, 7, v21'); a('v_bfe_u32 v25, v21, 3, 1'); a('v_lshrrev_b32 v26, 4, v21')
    a('s_lshr_b32 s30, s2, 2'); a('s_and_b32 s31, s2, 3'); a('s_lshl_b32 s31, s31, 3')
    a('v_add_u32 v27, s31, v24')
    a('v_lshlrev_b32 v23, 11, v27'); a('v_lshl_add_u32 v23, v26, 5, v23'); a('v_lshl_add_u32 v23, v25, 3, v23')
    a('s_lshl_b32 s32, s19, 9'); a('s_lshl_b32 s33, s30, 16'); a('s_add_u32 s32, s32, s33'); a('v_add_u32 v23, s32, v23')
    a('v_lshl_add_u32 v28, v25, 5, v27'); a('v_lshlrev_b32 v28, 4, v28'); a('v_lshl_add_u32 v28, v26, 10, v28')
    a('s_lshl_b32 s32, s19, 14'); a('s_add_u32 s32, s32, s33'); a('v_add_u32 v28, s32, v28')
    a('v_lshlrev_b32 v29, 2, v24'); a('s_lshl_b32 s32, s19, 5'); a('v_add_u32 v30, s32, v29')
    a('s_lshl_b32 s3, s2, 12')
    a('v_lshlrev_b32 v1, 4, v0')
    a('v_add_u32 v1, s3, v1')
    for r in range(4):
        a(f'v_mov_b32 v{4+r}, -1'); a(f'v_mov_b32 v{8+r}, 0')
    a('s_waitcnt lgkmcnt(0)')
    a.srd(36, 24, 4*MB)
    X = 32
    for it in range(4):
        for h in range(2):
            r = X + (it*2 + h)*2
            a(f'buffer_load_dwordx2 v[{r}:{r+1}], v23, s[36:39], 0 offen offset:{it*128 + h*16}')
    a.srd(8, 4, SM_SIZE, add=WS_SM)
    a.srd(12, 6, 8 * 1024 * 2)
    a.srd(20, 4, 64 << 20, add=rc.WS_X)
    a.srd(40, 4, 4*MB, add=WS_XN)
    a(f's_mov_b32 s16, {rc.C_PART}')
    a('buffer_store_dwordx4 v[4:7], v1, s[8:11], s16 offen')
    a.srd(44, 4, 0x2100000, add=WS_P1)
    a('buffer_store_dwordx4 v[4:7], v1, s[44:47], 0 offen')
    a(f's_mov_b32 s16, {WS_P2 - WS_P1}')
    a('buffer_store_dwordx4 v[4:7], v1, s[44:47], s16 offen')
    a('s_lshr_b32 s17, s2, 3'); a(f's_mul_i32 s17, s17, {cfg.NS*32768}')
    a('s_and_b32 s18, s2, 7'); a('s_lshl_b32 s18, s18, 12'); a('s_add_u32 s17, s17, s18')
    a('v_lshlrev_b32 v2, 4, v0')
    for i in range(3):
        a('buffer_store_dwordx4 v[4:7], v2, s[20:23], s17 offen')
        a('s_add_u32 s17, s17, 32768')
    a('v_lshrrev_b32 v3, 11, v1'); a('v_lshlrev_b32 v3, 12, v3'); a('v_and_b32 v12, 2047, v1'); a('v_add_u32 v3, v3, v12')
    a(f's_mov_b32 s16, {SM_QKM + 2048}')
    for i in range(4):
        a('buffer_store_dwordx4 v[4:7], v3, s[8:11], s16 offen'); a(f's_add_u32 s16, s16, {2*MB}')
    a(f's_mov_b32 s16, {SM_VMG}')
    for i in range(4):
        a('buffer_store_dwordx4 v[4:7], v1, s[8:11], s16 offen'); a(f's_add_u32 s16, s16, {MB}')
    nfl = FL_SEG + 65*4096 - FL_KVQ
    a(f'v_cmp_gt_u32 vcc, {nfl}, v1') if nfl <= 64 else (a(f's_mov_b32 s17, {nfl}'), a('v_cmp_gt_u32 vcc, s17, v1'))
    a('s_and_saveexec_b64 s[26:27], vcc')
    a(f's_mov_b32 s16, {FL_KVQ}')
    a('buffer_store_dwordx4 v[8:11], v1, s[8:11], s16 offen')
    a('s_mov_b64 exec, s[26:27]')
    a('s_cmp_eq_u32 s2, 16'); a('s_cbranch_scc0 PREP_N1')
    a(f's_mov_b32 s16, {rc.C_CNT}')
    a('buffer_store_dwordx4 v[8:11], v2, s[8:11], s16 offen')
    a.label('PREP_N1')
    a('s_cmp_eq_u32 s2, 17'); a('s_cbranch_scc0 PREP_N2')
    a(f's_mov_b32 s16, {rc.C_CNT + 4096}')
    a('buffer_store_dwordx4 v[4:7], v2, s[8:11], s16 offen')
    a.label('PREP_N2')
    a('s_cmp_ge_u32 s2, 16'); a('s_cbranch_scc1 PREP_LN')
    a('s_cmp_lt_u32 s2, 4')
    a('s_cbranch_scc1 PREP_M0')
    a(f's_mov_b32 s16, {rc.C_MEMF}')
    a('buffer_store_dwordx4 v[4:7], v1, s[8:11], s16 offen')
    a('s_branch PREP_LN')
    a.label('PREP_M0')
    a('v_lshrrev_b32 v2, 4, v1')
    rc.memf0_src(a, cfg, 2, 3, 12)
    for t in range(4):
        a(f'buffer_load_dword v{12+t}, v3, s[12:15], 0 offen offset:{t*8}')
    a('s_waitcnt vmcnt(0)')
    for t in range(4):
        a(f'v_min_u32 v{12+t}, -2, v{12+t}')
    a(f's_mov_b32 s16, {rc.C_MEMF}')
    a('buffer_store_dwordx4 v[12:15], v1, s[8:11], s16 offen')
    a.label('PREP_LN')
    F, G, A0, MU, RS = 64, 96, 16, 20, 21
    a('s_waitcnt vmcnt(0)')
    for i in range(16):
        a(f'v_lshlrev_b32 v{F+2*i}, 16, v{X+i}'); a(f'v_and_b32 v{F+2*i+1}, 0xffff0000, v{X+i}')
    for c in range(4): a(f'v_add_f32 v{A0+c}, v{F+c}, v{F+4+c}')
    for i in range(8, 32, 4):
        for c in range(4): a(f'v_add_f32 v{A0+c}, v{A0+c}, v{F+i+c}')
    a(f'v_add_f32 v{A0}, v{A0}, v{A0+1}'); a(f'v_add_f32 v{A0+2}, v{A0+2}, v{A0+3}'); a(f'v_add_f32 v{A0}, v{A0}, v{A0+2}')
    reduce_bits345(a, A0, 31)
    a(f'ds_write_b32 v30, v{A0}')
    a('s_waitcnt lgkmcnt(0)'); a('s_barrier')
    for w in range(4): a(f'ds_read_b32 v{A0+w}, v29 offset:{w*32}')
    a('s_waitcnt lgkmcnt(0)')
    a(f'v_add_f32 v{A0}, v{A0}, v{A0+1}'); a(f'v_add_f32 v{A0+2}, v{A0+2}, v{A0+3}'); a(f'v_add_f32 v{MU}, v{A0}, v{A0+2}')
    a(f'v_mul_f32 v{MU}, 0x3a800000, v{MU}')
    for c in range(4): a(f'v_mov_b32 v{A0+c}, 0')
    for i in range(0, 32, 4):
        for c in range(4): a(f'v_sub_f32 v{G+c}, v{F+i+c}, v{MU}')
        for c in range(4): a(f'v_fmac_f32 v{A0+c}, v{G+c}, v{G+c}')
    a(f'v_add_f32 v{A0}, v{A0}, v{A0+1}'); a(f'v_add_f32 v{A0+2}, v{A0+2}, v{A0+3}'); a(f'v_add_f32 v{RS}, v{A0}, v{A0+2}')
    reduce_bits345(a, RS, 31)
    a(f'ds_write_b32 v30, v{RS} offset:128')
    a('s_waitcnt lgkmcnt(0)'); a('s_barrier')
    for w in range(4): a(f'ds_read_b32 v{A0+w}, v29 offset:{128 + w*32}')
    a('s_waitcnt lgkmcnt(0)')
    a(f'v_add_f32 v{A0}, v{A0}, v{A0+1}'); a(f'v_add_f32 v{A0+2}, v{A0+2}, v{A0+3}'); a(f'v_add_f32 v{RS}, v{A0}, v{A0+2}')
    a(f'v_mul_f32 v{RS}, 0x3a800000, v{RS}')
    bf16_round(a, RS, RS)
    a(f'v_add_f32 v{RS}, 0x3727c5ac, v{RS}')
    bf16_round(a, RS, RS)
    a(f'v_sqrt_f32 v{RS}, v{RS}')
    a('s_nop 0')
    bf16_round(a, RS, RS)
    a(f'v_rcp_f32 v{RS}, v{RS}')
    bf16_round(a, MU, MU)
    for i in range(32): a(f'v_sub_f32 v{F+i}, v{F+i}, v{MU}')
    for i in range(16): a(f'v_cvt_pk_bf16_f32 v{G+i}, v{F+2*i}, v{F+2*i+1}')
    for i in range(16):
        a(f'v_lshlrev_b32 v{F+2*i}, 16, v{G+i}'); a(f'v_and_b32 v{F+2*i+1}, 0xffff0000, v{G+i}')
    for i in range(32): a(f'v_mul_f32 v{F+i}, v{F+i}, v{RS}')
    for i in range(16): a(f'v_cvt_pk_bf16_f32 v{G+i}, v{F+2*i}, v{F+2*i+1}')
    for it in range(4):
        a(f's_mov_b32 s16, {it*4096}')
        a(f'buffer_store_dwordx4 v[{G+4*it}:{G+4*it+3}], v28, s[40:43], s16 offen')
    a.label('PREP_END')
    a('s_endpgm')
    return a.text()


def kvq_loop(a, g, nbg_rounds=9):
    T0, T1, T2 = f's{S_T0}', f's{S_T1}', f's{S_T2}'
    a(f's_mov_b32 s{S_RND}, 0')
    a.label('KQ_TOP')
    a(f's_cmp_lg_u32 s{S_RND}, 0'); a('s_cbranch_scc1 KQ_BG')
    a(f's_and_b32 {T0}, s{S_WID}, 31'); a(f's_and_b32 s{S_RB}, {T0}, 3')
    a(f's_lshr_b32 {T0}, {T0}, 2'); a(f's_lshr_b32 {T1}, s{S_WID}, 5'); a(f's_lshl_b32 {T1}, {T1}, 3'); a(f's_add_u32 s31, {T0}, {T1}')
    a('s_branch KQ_DEC')
    a.label('KQ_BG')
    if PLACE:
        a(f's_sub_u32 {T1}, s{S_RND}, 1'); a(f's_mul_i32 {T0}, {T1}, 43'); a(f's_lshr_b32 {T0}, {T0}, 7')
        a(f's_mul_i32 {T2}, {T0}, 3'); a(f's_sub_u32 {T1}, {T1}, {T2}')
        a(f's_lshl_b32 {T0}, {T0}, 2'); a(f's_add_u32 {T0}, {T0}, 4'); a(f's_and_b32 {T2}, s{S_WID}, 3')
        a(f's_add_u32 s{S_RB}, {T0}, {T2}')
        a(f's_lshl_b32 {T1}, {T1}, 4'); a(f's_lshr_b32 {T2}, s{S_WID}, 2'); a(f's_add_u32 s31, {T1}, {T2}')
    else:
        a(f's_sub_u32 {T0}, s{S_WID}, 64'); a(f's_lshr_b32 {T0}, {T0}, 5'); a(f's_lshl_b32 {T0}, {T0}, 4')
        a(f's_and_b32 {T1}, s{S_WID}, 15'); a(f's_add_u32 {T0}, {T0}, {T1}')
        a(f's_sub_u32 {T1}, s{S_RND}, 1'); a(f's_lshl_b32 {T1}, {T1}, 6'); a(f's_add_u32 {T0}, {T0}, {T1}')
        a(f's_mul_i32 {T1}, {T0}, 683'); a(f's_lshr_b32 {T1}, {T1}, 16')
        a(f's_mul_i32 {T2}, {T1}, 96'); a(f's_sub_u32 {T0}, {T0}, {T2}')
        a(f's_lshl_b32 {T1}, {T1}, 1'); a(f's_add_u32 {T1}, {T1}, 4'); a(f's_and_b32 {T2}, {T0}, 1')
        a(f's_add_u32 s{S_RB}, {T1}, {T2}'); a(f's_lshr_b32 s31, {T0}, 1')
    a.label('KQ_DEC')
    a(f's_and_b32 s{S_RB}, s{S_RB}, 15')
    a(f's_and_b32 s{S_CB}, s31, 15'); a(f's_mov_b32 s{S_KS}, 0')
    a('s_lshr_b32 s31, s31, 4')
    a(f's_lshl_b32 {T0}, s{S_RB}, 8'); a(f's_lshl_b32 {T1}, s{S_CB}, 4'); a(f's_add_u32 {T0}, {T0}, {T1}')
    a(f's_lshl_b32 {T1}, s31, 2'); a(f's_add_u32 {T0}, {T0}, {T1}'); a(f's_add_u32 s{S_FOFF}, {T0}, {FL_KVQ}')
    a('s_cmp_eq_u32 s31, 1'); a('s_cbranch_scc1 KQ_V')
    a('s_cmp_eq_u32 s31, 2'); a('s_cbranch_scc1 KQ_Q')
    task_gemm(a, g, 'K'); a('s_branch KQ_FIN')
    a.label('KQ_V'); task_gemm(a, g, 'V'); a('s_branch KQ_FIN')
    a.label('KQ_Q'); task_gemm(a, g, 'Q')
    a.label('KQ_FIN')
    a('s_waitcnt vmcnt(0)')
    a('s_barrier')
    if mega.TL:
        a('s_memrealtime s[88:89]'); a('s_waitcnt lgkmcnt(0)'); a('s_mov_b32 s101, s88')
    a(f's_cmp_lg_u32 s{S_WAVE}, 0'); a('s_cbranch_scc1 KQ_NF')
    a('v_mov_b32 v1, 1')
    a('s_mov_b64 exec, 1')
    a(f'buffer_store_dword v1, off, {FLS}, s{S_FOFF} sc1')
    a('s_mov_b64 exec, -1')
    a.label('KQ_NF')
    a(f's_add_u32 s{S_RND}, s{S_RND}, 1')
    if PLACE:
        a(f's_cmp_ge_u32 s{S_WID}, 64'); a('s_cbranch_scc1 KQ_END')
    else:
        a(f's_cmp_lt_u32 s{S_WID}, 64'); a('s_cbranch_scc1 KQ_END')
        a(f's_and_b32 {T0}, s{S_WID}, 16'); a(f's_cmp_eq_u32 {T0}, 0'); a('s_cbranch_scc1 KQ_END')
    if mega.TL:
        pass
    a(f's_cmp_le_u32 s{S_RND}, {nbg_rounds}'); a('s_cbranch_scc1 KQ_TOP')
    if mega.TL:
        a('v_mov_b32 v12, 0'); a('v_writelane_b32 v12, s100, 0'); a('v_writelane_b32 v12, s101, 1')
        mega.tl_dump(a, [12, 12, 12])
    a('s_endpgm')
    a.label('KQ_END')


EXP_START = None
PLACE = mega.PLACE
EXP_WARM = 0
EXP_HALF = 0
def gen_mega(cfg, dbg=None, prof=False):
    tasks.set_coh(True)
    a = Asm()
    P = 'RC'
    a('s_cmp_ge_u32 s2, 256')
    a('s_cbranch_scc1 MG_EXIT')
    def rstamp(sreg):
        if mega.TL:
            a('s_memrealtime s[88:89]'); a('s_waitcnt lgkmcnt(0)'); a(f's_mov_b32 s{sreg}, s88')
    rstamp(100)
    rc.common_setup(a)
    if EXP_WARM:
        a(f's_cmp_eq_u32 s{rc.S_WV}, 1'); a('s_cbranch_scc0 MG_NOWARM')
        a('s_load_dwordx8 s[64:71], s[0:1], 16')
        a(f'v_lshrrev_b32 v200, 4, v{rc.V_L16}'); a(f'v_mul_u32_u24 v200, {EXP_WARM*1024}, v200')
        a('s_waitcnt lgkmcnt(0)')
        n = (8 << 20) // (64 * EXP_WARM * 1024)
        for m in range(4):
            a.srd(72, 64 + 2*m, 8 << 20)
            for i in range(n):
                a(f's_mov_b32 s76, {i * 64 * EXP_WARM * 1024}')
                a(f'buffer_load_dword v{201 + (m*n + i) % 50}, v200, s[72:75], s76 offen')
        a.label('MG_NOWARM')
    rc.role_dynamic(a, cfg, P, 'MG_WORK', nx=8)
    rstamp(101)
    if EXP_HALF:
        a(f's_cmp_ge_u32 s{rc.S_H}, {EXP_HALF}'); a('s_cbranch_scc1 MG_EXIT')
    RS, CT, RL = rc.impl(cfg)
    def xs(i):
        if rc.EXP_STAMP:
            a('s_memrealtime s[88:89]'); a('s_waitcnt lgkmcnt(0)'); a(f'v_writelane_b32 v60, s88, {i}')
    xs(0)
    RS(a, cfg)
    a(f's_mov_b32 s{rc.S_NST}, 63')
    xs(1)
    CT(a)
    rc.stage_weights(a, P)
    rstamp(72)
    rc.near_measure(a, cfg, P)
    rc.x_offsets(a, cfg)
    a('s_waitcnt vmcnt(0) lgkmcnt(0)')
    a('s_barrier')
    rstamp(73)
    a(f's_cmp_eq_u32 s{rc.S_MODE}, 1')
    a(f's_cbranch_scc0 {P}_FB')
    if not EXP_START: RL(a, cfg, P, '', dbg)
    if mega.TL:
        rstamp(74)
        a.srd(84, rc.S_WS, 1 << 20, add=mega.TL_BASE + (1 << 20))
        a(f's_lshl_b32 s76, s{rc.S_H}, 1'); a(f's_add_u32 s76, s76, s{rc.S_J}'); a('s_lshl_b32 s76, s76, 2')
        a(f's_add_u32 s76, s76, s{rc.S_WV}'); a('s_lshl_b32 s76, s76, 5')
        a('v_mov_b32 v9, 0'); a('s_mov_b64 exec, 1')
        for i, r in enumerate([100, 101, 72, 73, 74, 75]):
            a(f'v_mov_b32 v8, s{r}'); a(f'buffer_store_dword v8, v9, s[84:87], s76 offen offset:{4*i}')
        if rc.EXP_STAMP:
            a('s_mov_b64 exec, -1'); a('s_lshl_b32 s76, s76, 3'); a('s_add_u32 s76, s76, 65536')
            a(f'v_lshrrev_b32 v9, 2, v{rc.V_L16}')
            a('buffer_store_dword v60, v9, s[84:87], s76 offen')
        a('s_waitcnt vmcnt(0)')
    a('s_endpgm')
    a.label(f'{P}_FB')
    RL(a, cfg, P + 'F', ' sc1', None)
    a('s_endpgm')
    a.label('MG_WORK')
    if EXP_START == 'now': a('s_endpgm')
    T0, T1 = 's46', 's47'
    a(f's_sub_u32 {T0}, s{rc.S_J}, 2'); a(f's_lshl_b32 {T0}, {T0}, 5'); a(f's_add_u32 {T0}, {T0}, s{rc.S_H}')
    a(f's_sub_u32 {T1}, s{rc.S_H}, 32'); a(f's_lshl_b32 {T1}, {T1}, 1'); a(f's_add_u32 {T1}, {T1}, s{rc.S_J}')
    a(f's_cmp_eq_u32 s{rc.S_MODE}, 1'); a(f's_cselect_b32 s{S_WID}, {T0}, {T1}')
    a(f's_cmp_ge_u32 s{S_WID}, 192'); a('s_cbranch_scc1 MG_EXIT')
    a(f's_mov_b32 s{S_WAVE}, s{rc.S_WV}')
    a.srd(S_FL, rc.S_WS, SM_SIZE, add=WS_SM)
    a(f's_mov_b32 s{S_BUDW}, 200000')
    a(f's_mov_b32 s{S_WM}, s{rc.S_MODE}')
    g = Eng()
    kvq_loop(a, g)
    W = f's{S_WID}'
    def rng(lo, hi, lab):
        a(f's_cmp_lt_u32 {W}, {hi}'); a(f's_cbranch_scc1 {lab}')
    if not PLACE:
        rng(0, 32, 'MG_WO'); rng(0, 64, 'MG_DN')
    a(f's_sub_u32 s46, {W}, 64'); a('s_lshr_b32 s46, s46, 5'); a(f's_and_b32 s47, {W}, 31')
    if PLACE:
        a('s_cmp_ge_u32 s47, 24'); a('s_cbranch_scc1 MG_DN')
        a('s_cmp_ge_u32 s47, 16'); a('s_cbranch_scc1 MG_WO')
    a('s_cmp_ge_u32 s47, 14'); a('s_cbranch_scc1 MG_AT')
    a('s_mul_i32 s29, s46, 14'); a('s_add_u32 s29, s29, s47'); a('s_mov_b32 s28, s46')
    role_gemmx(a, 'GU'); a('s_endpgm')
    a.label('MG_WO')
    if PLACE: a('s_mov_b32 s28, s46'); a('s_and_b32 s29, s47, 7')
    else: a(f's_lshr_b32 s28, {W}, 3'); a(f's_and_b32 s29, {W}, 7')
    role_gemmx(a, 'WO'); a('s_endpgm')
    a.label('MG_DN')
    if PLACE: a('s_mov_b32 s28, s46'); a('s_and_b32 s29, s47, 7')
    else: a(f's_sub_u32 s29, {W}, 32'); a('s_lshr_b32 s28, s29, 3'); a('s_and_b32 s29, s29, 7')
    role_gemmx(a, 'DN'); a('s_endpgm')
    a.label('MG_AT')
    a('s_lshl_b32 s28, s46, 1'); a('s_add_u32 s28, s28, s47'); a('s_sub_u32 s28, s28, 14')
    role_att(a)
    a.label('MG_EXIT')
    a('s_endpgm')
    return a.text()


def header():
    src = open('cdna_kernels/' + KNAME[:-7] + '.s.ref').read().split('\n')
    out = []
    for l in src:
        if l.startswith('; Override launch'): break
        out.append(l)
    return '\n'.join(out)

OLD = False
def build(path, hdr='; test', cfg=None, **kw):
    import k_rec2
    C = rc.Cfg if OLD else k_rec2.Cfg2
    cfg = cfg or C(dynamic=True, RS_PERM=False, EARLY_CLR=True, kvflag=FL_KVQ, tl=mega.TL, NOPK=False)
    ks = [('prep_kernel', gen_prep(cfg), 128, 128), ('mega_kernel', gen_mega(cfg, **kw), 512, 256)]
    ls = [('prep_kernel', (256,1,1), (256,1,1), 1024), ('mega_kernel', (256,1,1), (256,1,1), 163840)]
    txt = assemble_file(hdr, ls, ks)
    open(path, 'w').write(txt)
    print('bytes', len(txt), 'lines', txt.count('\n'))
if __name__ == '__main__':
    p = sys.argv[1] if len(sys.argv) > 1 else 'mg.s'
    if len(sys.argv) > 2 and 'tl' in sys.argv[2:]: mega.TL = True
    if 'prof' in sys.argv[2:]: mega2.PROF = True
    if 'x2' in sys.argv[2:]: mega2.TLX2 = True
    if 'nopf' in sys.argv[2:]: mega2.PF = False
    if 'old' in sys.argv[2:]: OLD = True
    if 'now' in sys.argv[2:]: EXP_START = 'now'
    for x in sys.argv[2:]:
        if x.startswith('half='): EXP_HALF = int(x[5:])
        if x.startswith('warm='): EXP_WARM = int(x[5:])
        if x == 'lin': rc.EXP_LIN = True
        if x == 'reg': rc.EXP_REG = True
        if x.startswith('fl='): rc.EXP_FL = ' ' + x[3:].replace('+', ' ')
        if x == 'xs': rc.EXP_STAMP = True
    build(p, header())
    import chk; chk.chk(p)
```

```python
from asmlib import *
import mega, k_recc as rc
from mega import *
from mega import tl_stamp, tl_init, tl_dump

F_XW, F_XD = 1024, 2560
L_ST = 0x20000

class LQ:
    def __init__(self, a): self.a = a; self.q = []
    def op(self, s, tag=None): self.a(s); self.q.append(tag)
    def wait(self, tag):
        i = max(k for k, t in enumerate(self.q) if t == tag)
        n = len(self.q) - 1 - i
        assert n <= 15
        self.a(f's_waitcnt lgkmcnt({n})')
    def drain(self): self.a('s_waitcnt lgkmcnt(0)'); self.q = []

def ex_store(a, instrs):
    if mega.PLACE:
        for i in instrs: a(i + ' sc1')
    else: mode_store(a, instrs)

PROF = False
PIPE = True
PIPE2 = True
PF = True
def role_gemmx(a, kind, nseg=64):
    N = kind
    prof = PROF
    def ST(i):
        if mega.TL and PIPE:
            l0 = a.newlabel('TLX')
            a(f's_cmp_lt_u32 s{S_SEG}, 56'); a(f's_cbranch_scc1 {l0}')
            a('s_memrealtime s[88:89]'); a(f's_sub_u32 m0, s{S_SEG}, 56'); a('s_lshl_b32 m0, m0, 3'); a(f's_add_u32 m0, m0, {i}')
            a('s_waitcnt lgkmcnt(0)'); a('v_writelane_b32 v243, s88, m0')
            a.label(l0)
        if not prof: return
        a('s_memtime s[56:57]'); a('s_waitcnt lgkmcnt(0)')
        a('s_sub_u32 s59, s56, s58'); a(f's_add_u32 s{60+i}, s{60+i}, s59'); a('s_mov_b32 s58, s56')
    GU = kind == 'GU'
    KS_, CB_ = 28, 29
    nk = 56 if kind == 'DN' else 64
    nch = nk // 8
    nd = nk // 4
    SW, SX, SO = 4, 8, 12
    SR, SRES = 4, S_OSRD
    T0, T1, T2 = f's{S_T0}', f's{S_T1}', f's{S_T2}'
    W = f's{S_WAVE}'
    LN, L16, VD, VT_, t1, t2 = 1, 2, 3, 4, 5, 6
    VPA, VPF, VFA, VONE, VOUT = 8, 12, 16, 17, 18
    VXR = [7, 9, 10, 11]
    XF = 160 if GU else 20
    NR = 12 if GU else 8
    AC0, AC1 = 52, 68
    TMP = 84
    CS = 100
    SA, SB_, QA, QB = 116, 117, 118, 119
    UL, UH = 20, 21
    VNEG = 160
    S_E0 = 49
    VONES, VSTW, VSTR = 120, 121, 122
    NMU, RSTD = 124, 126
    STT = 128
    VEX, VXF, VXP, VFM, VRM = 136, 137, 138, 139, 140
    RES = 142
    EXL = 144
    a(f's_load_dwordx2 s[{S_PWS}:{S_PWS+1}], s[0:1], {KA_WS}')
    if GU:
        a(f's_load_dwordx2 s[{S_PW}:{S_PW+1}], s[0:1], {KA_WG}')
        a(f's_load_dwordx2 s[40:41], s[0:1], {KA_WU}')
    else:
        a(f's_load_dwordx2 s[{S_PW}:{S_PW+1}], s[0:1], {KA_WO if kind == "WO" else KA_WD}')
        a(f's_load_dwordx2 s[40:41], s[0:1], {KA_X if kind == "WO" else KA_OUT}')
    a(f'v_and_b32 v{LN}, 63, v0')
    a(f'v_lshlrev_b32 v{L16}, 4, v{LN}')
    a('s_waitcnt lgkmcnt(0)')
    if GU:
        a(f's_cmp_ge_u32 {W}, 2')
        a(f's_cselect_b32 s{S_PW}, s40, s{S_PW}')
        a(f's_cselect_b32 s{S_PW+1}, s41, s{S_PW+1}')
    a.srd(SW, S_PW, (8 if kind == 'WO' else 7) * MB)
    xo, xb = {'WO': (WS_OF, 16*MB), 'GU': (WS_HB, 4*MB), 'DN': (WS_ACT, 14*MB)}[kind]
    a.srd(SX, S_PWS, xb, add=xo)
    oo, ob = {'WO': (WS_P1, MB), 'GU': (WS_ACT, 14*MB), 'DN': (WS_P2, MB)}[kind]
    a.srd(SO, S_PWS, ob, add=oo)
    if kind == 'WO':   a.srd(SRES, S_PWS, 4*MB, add=WS_HB)
    elif kind == 'DN': a.srd(SRES, 40, 4*MB)
    S_GO, S_M0 = 42, 43
    if GU:
        a(f'v_lshrrev_b32 v{t1}, 3, v{LN}'); a(f'v_mul_u32_u24 v{VD}, 7168, v{t1}')
        a(f'v_and_b32 v{t1}, 7, v{LN}'); a(f'v_lshl_add_u32 v{VD}, v{t1}, 4, v{VD}')
        a(f's_lshl_b32 {T0}, s{CB_}, 7')
        a(f's_and_b32 {T1}, {W}, 1'); a(f's_mul_i32 {T1}, {T1}, {64*7168}')
        a(f's_add_u32 s{S_GO}, {T0}, {T1}')
        a(f's_lshl_b32 s{S_M0}, {W}, 13')
        istep, cstep = 8 * 7168, 128 * 7168
        a(f'v_bfe_u32 v{t1}, v{LN}, 2, 2'); a(f'v_lshrrev_b32 v{t2}, 5, v{LN}')
        a(f'v_lshl_add_u32 v{t1}, v{t2}, 2, v{t1}'); a(f'v_lshlrev_b32 v{VT_}, 7, v{t1}')
        a(f'v_bfe_u32 v{t1}, v{LN}, 4, 1'); a(f'v_lshl_add_u32 v{VT_}, v{t1}, 14, v{VT_}')
        a(f'v_and_b32 v{t1}, 3, v{LN}'); a(f'v_lshl_add_u32 v{VT_}, v{t1}, 3, v{VT_}')
        a(f's_lshl_b32 {T0}, {W}, 5'); a(f'v_add_u32 v{VT_}, {T0}, v{VT_}')
        kkoff, h2off = 2048, 1024
    else:
        rows0 = 1024 if kind == 'WO' else 896
        a(f'v_lshrrev_b32 v{t1}, 4, v{LN}'); a(f'v_lshlrev_b32 v{t2}, 2, v{t1}')
        a(f'v_and_b32 v{VD}, 15, v{LN}'); a(f'v_xor_b32 v{VD}, v{VD}, v{t2}'); a(f'v_lshlrev_b32 v{VD}, 4, v{VD}')
        a(f'v_lshl_add_u32 v{VD}, v{t1}, 11, v{VD}')
        a(f's_mul_i32 {T0}, s{KS_}, {rows0 * 2048}'); a(f's_lshl_b32 {T1}, s{CB_}, 8'); a(f's_add_u32 {T0}, {T0}, {T1}')
        a(f's_lshl_b32 {T1}, {W}, 16'); a(f's_add_u32 s{S_GO}, {T0}, {T1}')
        a(f's_lshl_b32 s{S_M0}, {W}, 13')
        istep, cstep = 4 * 2048, 128 * 2048
        a(f'v_bfe_u32 v{t1}, v{LN}, 2, 2')
        a(f'v_lshrrev_b32 v{t2}, 5, v{LN}'); a(f'v_lshl_add_u32 v{t2}, v{t2}, 2, v{t1}'); a(f'v_lshlrev_b32 v{VT_}, 8, v{t2}')
        a(f'v_xor_b32 v{t1}, {W}, v{t1}'); a(f'v_lshl_add_u32 v{VT_}, v{t1}, 6, v{VT_}')
        a(f'v_bfe_u32 v{t1}, v{LN}, 4, 1'); a(f'v_lshl_add_u32 v{VT_}, v{t1}, 5, v{VT_}')
        a(f'v_and_b32 v{t1}, 3, v{LN}'); a(f'v_lshl_add_u32 v{VT_}, v{t1}, 3, v{VT_}')
        kkoff, h2off = 4096, 2048
    def wdma(q):
        a(f's_add_u32 {T0}, s{S_GO}, {q * cstep}')
        a(f's_add_u32 m0, s{S_M0}, {(q & 3) * 32768}')
        for i in range(8):
            a('s_nop 0')
            a(f'buffer_load_dwordx4 v{VD}, s[{SW}:{SW+3}], {T0} offen lds')
            if i < 7:
                a(f's_add_u32 {T0}, {T0}, {istep}'); a('s_add_u32 m0, m0, 1024')
    TLV = [240, 241, 242]
    if mega.TL: a('v_mov_b32 v243, 0')
    tl_init(a, TLV)
    VTJ = [84, 85, 86, 87]
    if GU:
        for j in range(4):
            a(f's_xor_b32 {T0}, {W}, {j}'); a(f's_lshl_b32 {T0}, {T0}, 11'); a(f'v_add_u32 v{VTJ[j]}, {T0}, v{VT_}')
    for q in range(min(4, nch)): wdma(q)
    for q in range(nch):
        left = min(nch, max(4, q + 4)) - (q + 1)
        a(f's_waitcnt vmcnt({8 * left})')
        a('s_barrier')
        if GU:
            for j in range(4): a(f'v_add_u32 v{88+j}, {(q & 3) * 32768}, v{VTJ[j]}')
        else:
            a(f'v_add_u32 v{t1}, {(q & 3) * 32768}, v{VT_}')
        for kk in range(8):
            kb = 8 * q + kk
            if GU: ad, off = 88 + (kk & 3), (kk & 4) * kkoff
            else:  ad, off = t1, kk * kkoff
            a(f'ds_read_b64_tr_b16 a[{4*kb}:{4*kb+1}], v{ad} offset:{off}')
            a(f'ds_read_b64_tr_b16 a[{4*kb+2}:{4*kb+3}], v{ad} offset:{off + h2off}')
            if kk % 4 == 3: a('s_waitcnt lgkmcnt(0)')
        a('s_barrier')
        if q + 4 < nch: wdma(q + 4)
    S_XO, S_XM0, S_OO = 44, 45, 46
    S_EXL = 47
    xstride = {'WO': 262144, 'GU': 65536, 'DN': 229376}[kind]
    if kind == 'WO':   a(f's_lshl_b32 s{S_XO}, s{KS_}, 16')
    elif kind == 'DN': a(f's_mul_i32 s{S_XO}, s{KS_}, {56*1024}')
    else:              a(f's_mov_b32 s{S_XO}, 0')
    a(f's_lshl_b32 {T0}, {W}, 10'); a(f's_add_u32 s{S_XO}, s{S_XO}, {T0}')
    a(f's_lshl_b32 s{S_XM0}, {W}, 10')
    if GU:
        a(f's_lshl_b32 {T0}, s{CB_}, 2'); a(f's_add_u32 {T0}, {T0}, {W}'); a(f's_lshl_b32 s{S_OO}, {T0}, 10')
        ostride = 229376
        a(f'v_mov_b32 v{VONES}, 0x3f803f80')
        for r in range(4): a(f'v_mov_b32 v{XF+r}, 0x3f803f80')
        a('s_nop 1')
        for kb in range(64):
            c = '0' if kb == 0 else f'v[{CS}:{CS+15}]'
            a(f'v_mfma_f32_32x32x16_bf16 v[{CS}:{CS+15}], a[{4*kb}:{4*kb+3}], v[{XF}:{XF+3}], {c}')
        a(f'v_lshrrev_b32 v{VSTW}, 2, v{L16}')
        a(f'v_and_b32 v{VSTR}, 31, v{LN}'); a(f'v_lshlrev_b32 v{VSTR}, 2, v{VSTR}'); a(f'v_add_u32 v{VSTR}, {L_ST}, v{VSTR}')
        a(f's_lshl_b32 {T0}, {W}, 8'); a(f's_add_u32 {T0}, {T0}, {L_ST}'); a(f'v_add_u32 v{VSTW}, {T0}, v{VSTW}')
    else:
        a(f's_lshl_b32 {T0}, s{CB_}, 2'); a(f's_add_u32 {T1}, {T0}, {W}'); a(f's_lshl_b32 {T1}, {T1}, 2')
        a(f's_add_u32 {T1}, {T1}, s{KS_}'); a(f's_lshl_b32 s{S_OO}, {T1}, 12')
        a(f's_add_u32 {T1}, {T0}, s{KS_}'); a(f's_lshl_b32 s{S_EXL}, {T1}, 14')
        fx = F_XW if kind == 'WO' else F_XD
        a(f's_lshl_b32 {T2}, {T1}, 4'); a(f's_add_u32 {T2}, {T2}, {fx}'); a(f'v_mov_b32 v{VXP}, {T2}')
        a(f's_add_u32 {T1}, {T0}, {W}'); a(f's_lshl_b32 {T1}, {T1}, 4'); a(f's_lshl_b32 {T2}, s{KS_}, 2')
        a(f's_add_u32 {T1}, {T1}, {T2}'); a(f's_add_u32 {T1}, {T1}, {fx}'); a(f'v_mov_b32 v{VXF}, {T1}')
        mm, hh, sp = 84, 85, 86
        a(f'v_and_b32 v{mm}, 15, v{LN}'); a(f's_lshr_b32 {T0}, {W}, 1'); a(f's_lshl_b32 {T0}, {T0}, 4'); a(f'v_add_u32 v{mm}, {T0}, v{mm}')
        a(f'v_bfe_u32 v{hh}, v{LN}, 4, 1'); a(f'v_lshrrev_b32 v{sp}, 5, v{LN}')
        a(f'v_lshl_add_u32 v87, v{hh}, 5, v{mm}'); a(f'v_lshlrev_b32 v87, 4, v87')
        a(f's_and_b32 {T0}, {W}, 1')
        a(f's_lshl_b32 {T1}, {T0}, 11'); a(f'v_lshl_add_u32 v{VEX}, v{sp}, 10, v87'); a(f'v_add_u32 v{VEX}, {T1}, v{VEX}')
        a(f's_lshl_b32 {T1}, s{CB_}, 3'); a(f's_lshl_b32 {T2}, s{KS_}, 1'); a(f's_add_u32 {T1}, {T1}, {T2}'); a(f's_add_u32 {T1}, {T1}, {T0}')
        a(f's_lshl_b32 {T2}, {T1}, 10'); a(f'v_lshl_add_u32 v{VFM}, v{sp}, 3, v87'); a(f'v_add_u32 v{VFM}, {T2}, v{VFM}')
        a(f's_lshl_b32 {T2}, {T1}, 5'); a(f'v_lshlrev_b32 v{VRM}, 11, v{mm}'); a(f'v_lshl_add_u32 v{VRM}, v{sp}, 4, v{VRM}')
        a(f'v_lshl_add_u32 v{VRM}, v{hh}, 3, v{VRM}'); a(f'v_add_u32 v{VRM}, {T2}, v{VRM}')
        for r in range(4): a(f'v_mov_b32 v{VNEG+r}, -1')
        if kind == 'WO': a.srd(SR, 40, 4*MB)
        else:            a.srd(SR, S_PWS, 4*MB, add=WS_HB)
    if kind == 'WO':
        a(f'v_and_b32 v{VPA}, 7, v{LN}'); a(f'v_lshlrev_b32 v{VPA}, 2, v{VPA}')
        a(f's_lshl_b32 {T0}, s{KS_}, {7 if mega.PLACE else 5}'); a(f's_add_u32 {T0}, {T0}, {F_AF}'); a(f'v_add_u32 v{VPA}, {T0}, v{VPA}')
        pw = 1
    elif GU:
        a(f'v_and_b32 v{VPA}, 31, v{LN}'); a(f'v_lshlrev_b32 v{VPA}, 4, v{VPA}'); a(f'v_add_u32 v{VPA}, {F_WF}, v{VPA}')
        pw = 4
    else:
        a(f'v_min_u32 v{VPA}, 13, v{LN}'); a(f'v_lshlrev_b32 v{VPA}, 4, v{VPA}')
        a(f's_mul_i32 {T0}, s{KS_}, {256 if mega.PLACE else 14*16}'); a(f's_add_u32 {T0}, {T0}, {F_GF}'); a(f'v_add_u32 v{VPA}, {T0}, v{VPA}')
        pw = 4
    if GU:
        a(f's_lshl_b32 {T0}, s{CB_}, 4'); fo = F_GF
        if mega.PLACE:
            a(f's_lshl_b32 {T1}, s{KS_}, 5'); a(f's_add_u32 {T0}, {T0}, {T1}')
    else:
        a(f's_lshl_b32 {T0}, s{KS_}, 3'); a(f's_add_u32 {T0}, {T0}, s{CB_}'); a(f's_lshl_b32 {T0}, {T0}, 4')
        fo = F_WF
    a(f's_lshl_b32 {T1}, {W}, 2'); a(f's_add_u32 {T0}, {T0}, {T1}'); a(f'v_mov_b32 v{VFA}, {T0}')
    a(f'v_mov_b32 v{VONE}, 1')
    a(f'v_mov_b32 v{VOUT}, {L_BC}')
    a(f's_mov_b32 s{S_SEG}, 0'); a(f's_mov_b32 s{S_EARLY}, 0')
    for j in range(4 if GU else 1):
        if GU:
            a(f's_xor_b32 {T0}, {W}, {j}'); a(f's_lshl_b32 {T0}, {T0}, 10'); a(f'v_add_u32 v{VXR[j]}, {T0}, v{L16}')
        else:
            a(f'v_mov_b32 v{VXR[j]}, v{L16}')

    VPFA, VPFD = 19, 18
    if PF and PIPE2:
        if kind == 'DN':
            a(f'v_min_u32 v{VPFA}, 55, v{LN}'); a(f'v_lshlrev_b32 v{VPFA}, 5, v{VPFA}')
            a(f's_mul_i32 {T0}, s{CB_}, 7168'); a(f's_mul_i32 {T1}, {W}, 768')
        else:
            a(f'v_lshlrev_b32 v{VPFA}, 5, v{LN}')
            a(f's_and_b32 {T0}, s{CB_}, 7'); a(f's_lshl_b32 {T0}, {T0}, 13'); a(f's_lshl_b32 {T1}, {W}, 10')
        a(f's_add_u32 {T0}, {T0}, {T1}'); a(f'v_add_u32 v{VPFA}, {T0}, v{VPFA}')
    def xdma(add, hi=None):
        hi = hi or nd
        a(f's_add_u32 {T1}, s{S_SEG}, {add}')
        a(f's_mul_i32 {T0}, {T1}, {xstride}'); a(f's_add_u32 {T0}, {T0}, s{S_XO}')
        a(f's_and_b32 {T1}, {T1}, 1'); a(f's_lshl_b32 {T1}, {T1}, 16'); a(f's_add_u32 m0, {T1}, s{S_XM0}')
        if PF and PIPE2: a(f'buffer_load_dword v{VPFD}, v{VPFA}, s[{SX}:{SX+3}], {T0} offen')
        for i in range(hi):
            a('s_nop 0')
            a(f'buffer_load_dwordx4 v{L16}, s[{SX}:{SX+3}], {T0} offen lds')
            if i < hi - 1:
                a(f's_add_u32 {T0}, {T0}, 4096'); a('s_add_u32 m0, m0, 4096')

    def pipe_loop():
        top, have = f'{N}_TOP', f'{N}_HAVE'
        S_DA, S_SLOT = 53, 48
        E = f's{S_EARLY}'
        nxs = 1 if GU else 4
        bounds = [0, 16, 32, 48, nk] if nk == 64 else [0, 16, 32, 44, 56]
        D = 6
        def done_stamp(prev):
            if not mega.TL: return
            a('s_memrealtime s[88:89]'); a('s_waitcnt lgkmcnt(0)')
            a(f's_sub_u32 m0, s{S_SEG}, {1 if prev else 0}'); a('s_nop 3'); a(f'v_writelane_b32 v{TLV[1]}, s88, m0')
        def flag(prev):
            seg_foff(a, -1 if prev else 0)
            a('s_mov_b64 exec, 1')
            i = f'buffer_store_dword v{VONE}, v{VFA}, {FLS}, s{S_FOFF} offen offset:{fo}'
            if GU and mega.PLACE: mode_store(a, [i])
            else: a(i + ' sc1')
            a('s_mov_b64 exec, -1')
        def rd(kb, slot):
            r = XF + 4 * (slot % NR)
            if GU: return f'ds_read_b128 v[{r}:{r+3}], v{VXR[kb & 3]} offset:{(kb & ~3) * 1024}'
            return f'ds_read_b128 v[{r}:{r+3}], v{VXR[0]} offset:{kb * 1024}'
        def mf(kb, slot):
            r = XF + 4 * (slot % NR); ac = AC0 if slot % 2 == 0 else AC1
            c = '0' if slot < 2 else f'v[{ac}:{ac+15}]'
            return f'v_mfma_f32_32x32x16_bf16 v[{ac}:{ac+15}], a[{4*kb}:{4*kb+3}], v[{r}:{r+3}], {c}'
        def stats(slot, i):
            r = XF + 4 * (slot % NR) + i
            lo, hi = UL + 2 * (i & 1), UH + 2 * (i & 1)
            a(f'v_lshlrev_b32 v{lo}, 16, v{r}'); a(f'v_and_b32 v{hi}, 0xffff0000, v{r}')
            a(f'v_fmac_f32 v{QA}, v{lo}, v{lo}'); a(f'v_add_f32 v{SA}, v{SA}, v{lo}')
            a(f'v_fmac_f32 v{QB}, v{hi}, v{hi}'); a(f'v_add_f32 v{SB_}, v{SB_}, v{hi}')
        def dma_groups(add, lo=0, hi=None):
            hi = hi or nd
            g0 = [f's_add_u32 s{S_DA+1}, s{S_SEG}, {add}', f's_mul_i32 s{S_DA}, s{S_DA+1}, {xstride}',
                  f's_add_u32 s{S_DA}, s{S_DA}, s{S_XO}', f's_and_b32 s{S_DA+1}, s{S_DA+1}, 1',
                  f's_lshl_b32 s{S_DA+1}, s{S_DA+1}, 16', f's_add_u32 m0, s{S_DA+1}, s{S_XM0}']
            if lo: g0 += [f's_add_u32 s{S_DA}, s{S_DA}, {4096*lo}', f's_add_u32 m0, m0, {4096*lo}']
            if PF and PIPE2 and lo == 0: g0.append(f'buffer_load_dword v{VPFD}, v{VPFA}, s[{SX}:{SX+3}], s{S_DA} offen')
            gs = []
            for i in range(lo, hi):
                g = ['s_nop 0', f'buffer_load_dwordx4 v{L16}, s[{SX}:{SX+3}], s{S_DA} offen lds']
                if i < hi - 1: g += [f's_add_u32 s{S_DA}, s{S_DA}, 4096', 's_add_u32 m0, m0, 4096']
                gs.append(g)
            gs[0] = g0 + gs[0]
            return gs
        def order(c):
            ks = list(range(bounds[c], bounds[c + 1]))
            if GU and c == 3: ks = [48, 52, 56, 60] + [k for k in ks if k & 3]
            return ks
        def pro(c, lq, base):
            ks = order(c)
            for i in range(D): lq.op(rd(ks[i], base + i), ('x', base + i))
        def body(c, lq, base, dma=None):
            ks = order(c); last = c == 3
            sw = []
            if GU:
                for i, kb in enumerate(ks):
                    if (kb & 3) == 0: sw += [(i, base + i, d) for d in range(4)]
            per_gap = 2 if (GU and last) else 1
            dma = list(dma or [])
            for i, kb in enumerate(ks):
                lq.wait(('x', base + i))
                a(mf(kb, base + i))
                if dma:
                    k = -(-len(dma) // (len(ks) - i))
                    for _ in range(k): a.ext(dma.pop(0))
                n = 0
                while sw and sw[0][0] <= i and n < per_gap:
                    assert i - (sw[0][1] - base) <= NR - D - 1
                    stats(sw[0][1], sw[0][2]); sw.pop(0); n += 1
                if i + D < len(ks): lq.op(rd(ks[i + D], base + i + D), ('x', base + i + D))
                if GU and last:
                    if i == 8:
                        assert not sw
                        a(f'v_add_f32 v{SA}, v{SA}, v{SB_}'); a(f'v_add_f32 v{QA}, v{QA}, v{QB}')
                        a('s_nop 1')
                        a(f'v_permlane32_swap_b32 v{SA}, v{QA}')
                        a('s_nop 1')
                        a(f'v_add_f32 v{SA}, v{SA}, v{QA}')
                        lq.op(f'ds_write_b32 v{VSTW}, v{SA}', 'stw')
                    if i == 9:
                        lq.wait('stw')
                        a('s_barrier')
                        for w in range(4):
                            lq.op(f'ds_read2_b32 v[{STT+2*w}:{STT+2*w+1}], v{VSTR} offset0:{64*w} offset1:{64*w+32}', ('st', w))
                    if i == 12:
                        lq.wait(('st', 3))
                        for (d, x, y) in [(0, 0, 2), (1, 1, 3), (4, 4, 6), (5, 5, 7), (0, 0, 4), (1, 1, 5)]:
                            a(f'v_add_f32 v{STT+d}, v{STT+x}, v{STT+y}')
                        a(f'v_mul_f32 v{NMU}, 0x3a800000, v{STT}')
                        a(f'v_mul_f32 v{RSTD}, 0x3a800000, v{STT+1}')
                    if i == 13:
                        a(f'v_fma_f32 v{RSTD}, -v{NMU}, v{NMU}, v{RSTD}')
                        a(f'v_max_f32 v{RSTD}, 0, v{RSTD}')
                        bf16_round(a, RSTD, RSTD)
                        a(f'v_add_f32 v{RSTD}, 0x3727c5ac, v{RSTD}')
                        bf16_round(a, RSTD, RSTD)
                    if i == 14:
                        a(f'v_sqrt_f32 v{RSTD}, v{RSTD}')
                        bf16_round(a, NMU, NMU)
                        bf16_round(a, RSTD, RSTD)
                        a(f'v_rcp_f32 v{RSTD}, v{RSTD}')
            assert not sw and not dma
        def ex_loads():
            for s_ in range(4):
                a(f'buffer_load_dwordx4 v[{EXL+4*s_}:{EXL+4*s_+3}], v{VEX}, s[{SO}:{SO+3}], s{S_E0+s_} offen sc1')
        def ex_finish(prev):
            lp = a.newlabel(N + '_X'); dn = lp + '_D'
            a.label(lp)
            a('s_waitcnt vmcnt(0)')
            rc.max_chain(a, t1, list(range(EXL, EXL + 16)))
            a(f'v_cmp_eq_u32 vcc, -1, v{t1}')
            a(f's_cbranch_vccz {dn}')
            a(f's_cmp_eq_u32 s{S_BUDW}, 0'); a(f's_cbranch_scc1 {dn}')
            a(f's_sub_u32 s{S_BUDW}, s{S_BUDW}, 1')
            ex_loads()
            a(f's_branch {lp}')
            a.label(dn)
            pk = lambda d, x, y: a(f'v_pk_add_f32 v[{d}:{d+1}], v[{x}:{x+1}], v[{y}:{y+1}]')
            pk(EXL, EXL, EXL + 4); pk(EXL + 2, EXL + 2, EXL + 6); pk(EXL + 8, EXL + 8, EXL + 12); pk(EXL + 10, EXL + 10, EXL + 14)
            pk(EXL, EXL, EXL + 8); pk(EXL + 2, EXL + 2, EXL + 10)
            a(f'v_lshlrev_b32 v{EXL+8}, 16, v{RES}'); a(f'v_and_b32 v{EXL+9}, 0xffff0000, v{RES}')
            a(f'v_cvt_pk_bf16_f32 v{EXL}, v{EXL}, v{EXL+1}'); a(f'v_cvt_pk_bf16_f32 v{EXL+2}, v{EXL+2}, v{EXL+3}')
            a(f'v_lshlrev_b32 v{EXL+10}, 16, v{RES+1}'); a(f'v_and_b32 v{EXL+11}, 0xffff0000, v{RES+1}')
            a(f'v_lshlrev_b32 v{EXL+4}, 16, v{EXL}'); a(f'v_and_b32 v{EXL+5}, 0xffff0000, v{EXL}')
            a(f'v_lshlrev_b32 v{EXL+6}, 16, v{EXL+2}'); a(f'v_and_b32 v{EXL+7}, 0xffff0000, v{EXL+2}')
            pk(EXL + 4, EXL + 4, EXL + 8); pk(EXL + 6, EXL + 6, EXL + 10)
            a(f's_lshl_b32 {T2}, s{S_SEG}, 16')
            if prev: a(f's_sub_u32 {T2}, {T2}, 65536')
            a(f'v_cvt_pk_bf16_f32 v{EXL}, v{EXL+4}, v{EXL+5}'); a(f'v_cvt_pk_bf16_f32 v{EXL+1}, v{EXL+6}, v{EXL+7}')
            if kind == 'WO':
                a(f'buffer_store_dwordx2 v[{EXL}:{EXL+1}], v{VFM}, s[{SRES}:{SRES+3}], {T2} offen sc1')
            else:
                a(f'buffer_store_dwordx2 v[{EXL}:{EXL+1}], v{VRM}, s[{SRES}:{SRES+3}], {T2} offen')
            ex_store(a, [f'buffer_store_dwordx4 v[{VNEG}:{VNEG+3}], v{VEX}, s[{SO}:{SO+3}], s{S_E0+s_} offen' for s_ in range(4)])

        def old_head():
            tl_stamp(a, TLV[2], 2)
            if prof:
                for i in range(12): a(f's_mov_b32 s{60+i}, 0')
                a('s_memtime s[56:57]'); a('s_waitcnt lgkmcnt(0)'); a('s_mov_b32 s58, s56')
            a.label(top)
            a(f's_cmp_lg_u32 {E}, 0'); a(f's_cbranch_scc1 {have}')
            nw = f'{N}_NW0'
            a(f's_cmp_lg_u32 {W}, 0'); a(f's_cbranch_scc1 {nw}')
            seg_foff(a)
            poll(a, N + '_P', VPA, VPF, pw, t1)
            a.label(nw)
            a('s_barrier')
            ST(5)
            xdma(0)
            a.label(have)
            tl_stamp(a, TLV[0])
            ST(0)
            if GU:
                for r in (SA, SB_, QA, QB): a(f'v_mov_b32 v{r}, 0')
            lq = LQ(a)
            pos = 0
            for c in range(4):
                need = (bounds[c + 1] + 3) // 4
                if c < 3:
                    ln_, lj = a.newlabel(N + '_NP'), a.newlabel(N + '_PJ')
                    a(f's_cmp_eq_u32 {E}, 0'); a(f's_cbranch_scc1 {ln_}')
                    if c < 2:
                        a(f's_waitcnt vmcnt({nd - need + nxs})')
                        if c == 1 and not GU: ex_loads()
                    elif GU:
                        a('s_waitcnt vmcnt(0)')
                        flag(True); done_stamp(True)
                    else:
                        ex_finish(True)
                    a(f's_branch {lj}')
                    a.label(ln_)
                    a(f's_waitcnt vmcnt({nd - need})')
                    a.label(lj)
                    if c == 2:
                        nw2 = f'{N}_NW1'
                        a(f's_cmp_lg_u32 {W}, 0'); a(f's_cbranch_scc1 {nw2}')
                        seg_foff(a, 1)
                        flag_load(a, VPA, VPF, pw)
                        a.label(nw2)
                else:
                    a('s_waitcnt vmcnt(0)')
                    if kind == 'WO' or (kind == 'DN' and mega.TL):
                        l0 = a.newlabel(N + '_NF')
                        a(f's_cmp_eq_u32 {E}, 0'); a(f's_cbranch_scc1 {l0}')
                        if kind == 'WO': flag(True)
                        done_stamp(True)
                        a.label(l0)
                    nw3 = f'{N}_NW2'
                    a(f's_cmp_lg_u32 {W}, 0'); a(f's_cbranch_scc1 {nw3}')
                    flag_test(a, VPF, pw, t1)
                    a(f's_cmp_eq_u64 vcc, 0'); a(f's_cselect_b32 {T0}, 1, 0')
                    a(f'v_mov_b32 v{t1}, {T0}')
                    a(f'ds_write_b32 v{VOUT}, v{t1}')
                    a('s_waitcnt lgkmcnt(0)')
                    a.label(nw3)
                a('s_barrier')
                if c == 0: ST(1)
                if c == 3: ST(2)
                if c < 3:
                    pro(c, lq, pos)
                    body(c, lq, pos)
                else:
                    lq.op(f'ds_read_b32 v{t2}, v{VOUT}', 'early')
                    if not GU:
                        a(f's_lshl_b32 {T2}, s{S_SEG}, 16')
                        a(f'buffer_load_dwordx2 v[{RES}:{RES+1}], v{VRM if kind == "WO" else VFM}, s[{SR}:{SR+3}], {T2} offen')
                    pro(c, lq, pos)
                    lq.wait('early')
                    a(f'v_readfirstlane_b32 {E}, v{t2}')
                    if prof: a(f's_add_u32 s70, s70, {E}')
                    a(f's_cmp_ge_u32 s{S_SEG}, {nseg - 1}'); a(f's_cselect_b32 {E}, 0, {E}')
                    lb, lj = f'{N}_LB', f'{N}_LJ'
                    a(f's_cmp_eq_u32 {E}, 0'); a(f's_cbranch_scc1 {lb}')
                    lqa = LQ(a); lqa.q = list(lq.q)
                    body(c, lqa, pos, dma_groups(1))
                    a(f's_branch {lj}')
                    a.label(lb)
                    body(c, lq, pos)
                    a.label(lj)
                pos += len(order(c))
                lq.q = []
        def ex_check():
            rc.max_chain(a, t1, list(range(EXL, EXL + 16)))
            a(f'v_cmp_eq_u32 vcc, -1, v{t1}')
        def ex_fin(prev):
            pk = lambda d, x, y: a(f'v_pk_add_f32 v[{d}:{d+1}], v[{x}:{x+1}], v[{y}:{y+1}]')
            pk(EXL, EXL, EXL + 4); pk(EXL + 2, EXL + 2, EXL + 6); pk(EXL + 8, EXL + 8, EXL + 12); pk(EXL + 10, EXL + 10, EXL + 14)
            pk(EXL, EXL, EXL + 8); pk(EXL + 2, EXL + 2, EXL + 10)
            a(f'v_lshlrev_b32 v{EXL+8}, 16, v{RES}'); a(f'v_and_b32 v{EXL+9}, 0xffff0000, v{RES}')
            a(f'v_cvt_pk_bf16_f32 v{EXL}, v{EXL}, v{EXL+1}'); a(f'v_cvt_pk_bf16_f32 v{EXL+2}, v{EXL+2}, v{EXL+3}')
            a(f'v_lshlrev_b32 v{EXL+10}, 16, v{RES+1}'); a(f'v_and_b32 v{EXL+11}, 0xffff0000, v{RES+1}')
            a(f'v_lshlrev_b32 v{EXL+4}, 16, v{EXL}'); a(f'v_and_b32 v{EXL+5}, 0xffff0000, v{EXL}')
            a(f'v_lshlrev_b32 v{EXL+6}, 16, v{EXL+2}'); a(f'v_and_b32 v{EXL+7}, 0xffff0000, v{EXL+2}')
            pk(EXL + 4, EXL + 4, EXL + 8); pk(EXL + 6, EXL + 6, EXL + 10)
            a(f's_lshl_b32 {T2}, s{S_SEG}, 16')
            if prev: a(f's_sub_u32 {T2}, {T2}, 65536')
            a(f'v_cvt_pk_bf16_f32 v{EXL}, v{EXL+4}, v{EXL+5}'); a(f'v_cvt_pk_bf16_f32 v{EXL+1}, v{EXL+6}, v{EXL+7}')
            if kind == 'WO':
                a(f'buffer_store_dwordx2 v[{EXL}:{EXL+1}], v{VFM}, s[{SRES}:{SRES+3}], {T2} offen sc1')
            else:
                a(f'buffer_store_dwordx2 v[{EXL}:{EXL+1}], v{VRM}, s[{SRES}:{SRES+3}], {T2} offen')
            ex_store(a, [f'buffer_store_dwordx4 v[{VNEG}:{VNEG+3}], v{VEX}, s[{SO}:{SO+3}], s{S_E0+s_} offen' for s_ in range(4)])
        def next_ready(dst, val):
            flag_test(a, VPF, pw, t1)
            a(f's_cmp_eq_u64 vcc, 0'); a(f's_cselect_b32 {dst}, {val}, 0')
            a(f's_cmp_ge_u32 s{S_SEG}, {nseg - 1}'); a(f's_cselect_b32 {dst}, 0, {dst}')

        if PIPE2:
            HASFLAG = kind != 'DN'
            NEEDACK = HASFLAG or mega.TL
            n1 = 8; n2 = nd - n1
            S_PEND = 55
            tl_stamp(a, TLV[2], 2)
            if prof:
                for i in range(12): a(f's_mov_b32 s{60+i}, 0')
                a('s_memtime s[56:57]'); a('s_waitcnt lgkmcnt(0)'); a('s_mov_b32 s58, s56')
            for r in range(pw): a(f'v_mov_b32 v{VPF+r}, 0')
            a.label(top)
            a(f's_cmp_eq_u32 {E}, 1'); a(f's_cbranch_scc1 {have}')
            if not GU:
                a(f's_cmp_eq_u32 {E}, 2'); a(f's_cbranch_scc1 {have}')
            lp, iss = f'{N}_PL', f'{N}_ISS'
            seg_foff(a)
            a.label(lp)
            flag_test(a, VPF, pw, t1)
            a(f's_cbranch_vccz {iss}')
            a(f's_cmp_eq_u32 s{S_BUDW}, 0'); a(f's_cbranch_scc1 {iss}')
            a(f's_sub_u32 s{S_BUDW}, s{S_BUDW}, 1')
            flag_load(a, VPA, VPF, pw)
            a('s_waitcnt vmcnt(0)')
            a(f's_branch {lp}')
            a.label(iss)
            ST(5)
            xdma(0, n1)
            if NEEDACK:
                a(f's_cmp_eq_u32 {E}, 3'); a(f's_cbranch_scc0 {have}')
                a(f's_waitcnt vmcnt({n1 + (1 if PF else 0) + (0 if GU else 4)})')
                if HASFLAG: flag(True)
                done_stamp(True)
            a.label(have)
            tl_stamp(a, TLV[0])
            ST(0)
            if GU:
                for r in (SA, SB_, QA, QB): a(f'v_mov_b32 v{r}, 0')
            lq = LQ(a)
            pos = 0
            def nextload():
                seg_foff(a, 1)
                flag_load(a, VPA, VPF, pw)
            for c in range(4):
                need = (bounds[c + 1] + 3) // 4
                lj = a.newlabel(N + '_CJ')
                if c < 2:
                    base = n1 - 4 if c == 0 else n2
                    l1, l3, l0 = (a.newlabel(N + x) for x in ('_C1', '_C3', '_C0'))
                    a(f's_cmp_eq_u32 {E}, 1'); a(f's_cbranch_scc1 {l1}')
                    if HASFLAG and c == 0:
                        a(f's_cmp_eq_u32 {E}, 3'); a(f's_cbranch_scc1 {l3}')
                    if c == 0:
                        a(f's_waitcnt vmcnt({base})')
                    else:
                        if HASFLAG:
                            a(f's_cmp_eq_u32 {E}, 3'); a(f's_cbranch_scc1 {l3}')
                        a(f's_waitcnt vmcnt({base})')
                        if not GU:
                            a(f's_cmp_eq_u32 {E}, 2'); a(f's_cbranch_scc0 {lj}')
                            ex_loads()
                    a(f's_branch {lj}')
                    if HASFLAG:
                        a.label(l3)
                        a(f's_waitcnt vmcnt({base + 1})')
                        a(f's_branch {lj}')
                    a.label(l1)
                    if c == 0:
                        a(f's_waitcnt vmcnt({base + nxs})')
                    elif GU:
                        a(f's_waitcnt vmcnt({base})')
                        flag(True); done_stamp(True)
                    else:
                        a(f's_waitcnt vmcnt({base + nxs})')
                        ex_loads()
                    a.label(lj)
                    if c == 1: nextload()
                elif c == 2:
                    lp_ = a.newlabel(N + '_C2')
                    if GU:
                        a(f's_cmp_eq_u32 {E}, 1'); a(f's_cbranch_scc1 {lp_}')
                        a(f's_waitcnt vmcnt({nd - need + 1})')
                        a(f's_branch {lj}')
                        a.label(lp_)
                        a(f's_waitcnt vmcnt({nd - need + 2})')
                    else:
                        a(f's_sub_u32 {T0}, {E}, 1'); a(f's_cmp_lt_u32 {T0}, 2'); a(f's_cbranch_scc1 {lp_}')
                        a(f's_waitcnt vmcnt({nd - need + 1})')
                        a(f's_branch {lj}')
                        a.label(lp_)
                        ex_finish(True)
                    a.label(lj)
                else:
                    if GU:
                        a('s_waitcnt vmcnt(0)')
                    else:
                        a(f's_sub_u32 {T0}, {E}, 1'); a(f's_cmp_lt_u32 {T0}, 2'); a(f's_cselect_b32 s{S_PEND}, 1, 0')
                        a(f's_cbranch_scc1 {lj}')
                        a('s_waitcnt vmcnt(0)')
                        a.label(lj)
                    next_ready(E, 1)
                a('s_barrier')
                if c == 0: ST(1)
                if c == 3: ST(2)
                if c == 0:
                    pro(c, lq, pos)
                    body(c, lq, pos, dma_groups(0, n1, nd))
                elif c < 3:
                    pro(c, lq, pos)
                    body(c, lq, pos)
                else:
                    def pub(cnt):
                        if kind == 'WO' or (kind == 'DN' and mega.TL):
                            l0 = a.newlabel(N + '_NF')
                            a(f's_cmp_eq_u32 s{S_PEND}, 0'); a(f's_cbranch_scc1 {l0}')
                            a(f's_waitcnt vmcnt({cnt})')
                            if kind == 'WO': flag(True)
                            done_stamp(True)
                            a.label(l0)
                    if not GU:
                        a(f's_lshl_b32 {T2}, s{S_SEG}, 16')
                        a(f'buffer_load_dwordx2 v[{RES}:{RES+1}], v{VRM if kind == "WO" else VFM}, s[{SR}:{SR+3}], {T2} offen')
                    pro(c, lq, pos)
                    if prof: a(f's_add_u32 s70, s70, {E}')
                    lb, lj = f'{N}_LB', f'{N}_LJ'
                    a(f's_cmp_eq_u32 {E}, 0'); a(f's_cbranch_scc1 {lb}')
                    lqa = LQ(a); lqa.q = list(lq.q)
                    body(c, lqa, pos, dma_groups(1, 0, n1))
                    pub(4 + 1 + (1 if PF else 0) + n1)
                    a(f's_branch {lj}')
                    a.label(lb)
                    nextload()
                    body(c, lq, pos)
                    pub(4 + 1 + 1)
                    a.label(lj)
                pos += len(order(c))
                lq.q = []
        else:
          old_head()
        ST(3)
        fin = f'{N}_FIN'
        if GU:
            a(f's_mul_i32 {T2}, s{S_SEG}, {ostride}'); a(f's_add_u32 {T2}, {T2}, s{S_OO}')
            for j in range(4): a(f'v_xor_b32 v{VXR[j]}, 0x10000, v{VXR[j]}')
            a('s_nop 7'); a('s_nop 4')
            for r in range(0, 16, 2):
                a(f'v_pk_add_f32 v[{AC0+r}:{AC0+r+1}], v[{AC0+r}:{AC0+r+1}], v[{AC1+r}:{AC1+r+1}]')
            for r in range(0, 16, 2):
                a(f'v_pk_fma_f32 v[{AC0+r}:{AC0+r+1}], v[{CS+r}:{CS+r+1}], v[{NMU}:{NMU+1}], v[{AC0+r}:{AC0+r+1}] op_sel_hi:[1,0,1] neg_lo:[0,1,0] neg_hi:[0,1,0]')
            for r in range(0, 16, 2):
                a(f'v_pk_mul_f32 v[{AC0+r}:{AC0+r+1}], v[{AC0+r}:{AC0+r+1}], v[{RSTD}:{RSTD+1}] op_sel_hi:[1,0]')
            G, U, T = AC0, AC0 + 8, TMP
            for r in range(8):
                a(f'v_cvt_pk_bf16_f32 v{T+r}, v{AC0+2*r}, v{AC0+2*r+1}')
            for r in range(4):
                a(f'v_lshlrev_b32 v{G+2*r}, 16, v{T+r}'); a(f'v_and_b32 v{G+2*r+1}, 0xffff0000, v{T+r}')
            for r in range(8): a(f'v_mul_f32 v{G+r}, 0xbfb8aa3b, v{G+r}')
            for r in range(4):
                a(f'v_lshlrev_b32 v{U+2*r}, 16, v{T+4+r}'); a(f'v_and_b32 v{U+2*r+1}, 0xffff0000, v{T+4+r}')
            for r in range(8): a(f'v_exp_f32 v{G+r}, v{G+r}')
            for r in range(8): a(f'v_add_f32 v{G+r}, 1.0, v{G+r}')
            for r in range(8): a(f'v_rcp_f32 v{G+r}, v{G+r}')
            a('s_nop 0')
            for r in range(4): a(f'v_cvt_pk_bf16_f32 v{T+r}, v{G+2*r}, v{G+2*r+1}')
            for r in range(4):
                a(f'v_lshlrev_b32 v{G+2*r}, 16, v{T+r}'); a(f'v_and_b32 v{G+2*r+1}, 0xffff0000, v{T+r}')
            for r in range(8): a(f'v_mul_f32 v{G+r}, v{G+r}, v{U+r}')
            for r in range(4): a(f'v_cvt_pk_bf16_f32 v{T+r}, v{G+2*r}, v{G+2*r+1}')
            i = f'buffer_store_dwordx4 v[{T}:{T+3}], v{L16}, s[{SO}:{SO+3}], {T2} offen'
            if mega.PLACE: mode_store(a, [i])
            else: a(i + ' sc1')
            ST(4)
            a(f's_cmp_lg_u32 {E}, 0'); a(f's_cbranch_scc1 {fin}')
            if PIPE2:
                a('s_waitcnt vmcnt(1)')
                next_ready(E, 3)
                a(f's_cmp_lg_u32 {E}, 0'); a(f's_cbranch_scc1 {fin}')
                seg_foff(a, 1)
                flag_load(a, VPA, VPF, pw)
            a('s_waitcnt vmcnt(0)')
            flag(False); done_stamp(False)
            a.label(fin)
        else:
            a(f's_and_b32 s{S_SLOT}, s{S_SEG}, 1'); a(f's_lshl_b32 s{S_SLOT}, s{S_SLOT}, 19')
            a(f's_add_u32 {T2}, s{S_SLOT}, s{S_OO}')
            a(f'v_xor_b32 v{VXR[0]}, 0x10000, v{VXR[0]}')
            a('s_nop 7'); a('s_nop 4')
            for r in range(0, 16, 2):
                a(f'v_pk_add_f32 v[{AC0+r}:{AC0+r+1}], v[{AC0+r}:{AC0+r+1}], v[{AC1+r}:{AC1+r+1}]')
            ex_store(a, [f'buffer_store_dwordx4 v[{AC0+4*q}:{AC0+4*q+3}], v{L16}, s[{SO}:{SO+3}], {T2} offen offset:{q*1024}' for q in range(4)])
            a(f's_add_u32 s{S_E0}, s{S_SLOT}, s{S_EXL}')
            for s_ in range(1, 4): a(f's_add_u32 s{S_E0+s_}, s{S_E0}, {4096*s_}')
            ST(4)
            a(f's_cmp_lg_u32 {E}, 0'); a(f's_cbranch_scc1 {fin}')
            if PIPE2:
                late, lp, exok = f'{N}_LATE', f'{N}_XL', f'{N}_XOK'
                if kind == 'WO':
                    w4, w5 = a.newlabel(N + '_W4'), a.newlabel(N + '_W5')
                    a(f's_cmp_eq_u32 s55, 0'); a(f's_cbranch_scc1 {w4}')
                    a('s_waitcnt vmcnt(5)'); a(f's_branch {w5}')
                    a.label(w4); a('s_waitcnt vmcnt(4)'); a.label(w5)
                else:
                    a('s_waitcnt vmcnt(4)')
                next_ready(E, 2)
                a(f's_cmp_lg_u32 {E}, 0'); a(f's_cbranch_scc1 {late}')
                seg_foff(a, 1)
                a.label(lp)
                ex_loads()
                flag_load(a, VPA, VPF, pw)
                a('s_waitcnt vmcnt(0)')
                ex_check()
                a(f's_cbranch_vccz {exok}')
                next_ready(E, 2)
                a(f's_cmp_lg_u32 {E}, 0'); a(f's_cbranch_scc1 {late}')
                a(f's_cmp_eq_u32 s{S_BUDW}, 0'); a(f's_cbranch_scc1 {exok}')
                a(f's_sub_u32 s{S_BUDW}, s{S_BUDW}, 1')
                a(f's_branch {lp}')
                a.label(late)
                xdma(1, n1)
                a(f's_branch {fin}')
                a.label(exok)
                ex_fin(False)
                ST(6)
                if NEEDACK:
                    next_ready(E, 3)
                    a(f's_cmp_lg_u32 {E}, 0'); a(f's_cbranch_scc1 {fin}')
                    a('s_waitcnt vmcnt(4)')
                    if kind == 'WO': flag(False)
                    done_stamp(False)
            else:
                ex_loads()
                ex_finish(False)
                ST(6)
                if kind == 'WO' or mega.TL: a('s_waitcnt vmcnt(0)')
                if kind == 'WO': flag(False)
                done_stamp(False)
            a.label(fin)
        ST(7)
        a(f's_add_u32 s{S_SEG}, s{S_SEG}, 1')
        a(f's_cmp_lt_u32 s{S_SEG}, {nseg}'); a(f's_cbranch_scc1 {top}')

    assert PIPE or not mega.PLACE
    if PIPE:
        pipe_loop()
    else:
        top, have = f'{N}_TOP', f'{N}_HAVE'
        tl_stamp(a, TLV[2], 2)
        if prof:
            for i in range(12): a(f's_mov_b32 s{60+i}, 0')
            a('s_memtime s[56:57]'); a('s_waitcnt lgkmcnt(0)'); a('s_mov_b32 s58, s56')
        a.label(top)
        a(f's_cmp_lg_u32 s{S_EARLY}, 0'); a(f's_cbranch_scc1 {have}')
        nw = f'{N}_NW0'
        a(f's_cmp_lg_u32 {W}, 0'); a(f's_cbranch_scc1 {nw}')
        seg_foff(a)
        poll(a, N + '_P', VPA, VPF, pw, t1)
        a.label(nw)
        a('s_barrier')
        xdma(0)
        a.label(have)
        tl_stamp(a, TLV[0])
        ST(0)
        nw2 = f'{N}_NW1'
        a(f's_cmp_lg_u32 {W}, 0'); a(f's_cbranch_scc1 {nw2}')
        seg_foff(a, 1)
        flag_load(a, VPA, VPF, pw)
        a.label(nw2)
        if GU:
            for r in (SA, SB_, QA, QB): a(f'v_mov_b32 v{r}, 0')
        bounds = [0, 16, 32, 48, nk] if nk == 64 else [0, 16, 32, 44, 56]
        lq = LQ(a)
        pos = 0
        def rd(kb, slot):
            r = XF + 4 * (slot % NR)
            if GU: return f'ds_read_b128 v[{r}:{r+3}], v{VXR[kb & 3]} offset:{(kb & ~3) * 1024}'
            return f'ds_read_b128 v[{r}:{r+3}], v{VXR[0]} offset:{kb * 1024}'
        def mf(kb, slot):
            r = XF + 4 * (slot % NR); ac = AC0 if slot % 2 == 0 else AC1
            c = '0' if slot < 2 else f'v[{ac}:{ac+15}]'
            return f'v_mfma_f32_32x32x16_bf16 v[{ac}:{ac+15}], a[{4*kb}:{4*kb+3}], v[{r}:{r+3}], {c}'
        def stats(slot, i):
            r = XF + 4 * (slot % NR) + i
            lo, hi = UL + 2 * (i & 1), UH + 2 * (i & 1)
            a(f'v_lshlrev_b32 v{lo}, 16, v{r}'); a(f'v_and_b32 v{hi}, 0xffff0000, v{r}')
            a(f'v_fmac_f32 v{QA}, v{lo}, v{lo}'); a(f'v_add_f32 v{SA}, v{SA}, v{lo}')
            a(f'v_fmac_f32 v{QB}, v{hi}, v{hi}'); a(f'v_add_f32 v{SB_}, v{SB_}, v{hi}')
        for c in range(4):
            k0, k1 = bounds[c], bounds[c + 1]
            need = (k1 + 3) // 4
            a(f's_waitcnt vmcnt({nd - need})')
            last = c == 3
            if last:
                nw3 = f'{N}_NW2'
                a(f's_cmp_lg_u32 {W}, 0'); a(f's_cbranch_scc1 {nw3}')
                a('s_waitcnt vmcnt(0)')
                flag_test(a, VPF, pw, t1)
                a(f's_cmp_eq_u64 vcc, 0'); a(f's_cselect_b32 {T0}, 1, 0')
                a(f'v_mov_b32 v{t1}, {T0}')
                a(f'ds_write_b32 v{VOUT}, v{t1}')
                a('s_waitcnt lgkmcnt(0)')
                a.label(nw3)
            a('s_barrier')
            if c == 0: ST(1)
            if last: ST(2)
            if last:
                lq.op(f'ds_read_b32 v{t2}, v{VOUT}', 'early')
                if not GU:
                    a(f's_lshl_b32 {T2}, s{S_SEG}, 16')
                    a(f'buffer_load_dwordx2 v[{RES}:{RES+1}], v{VRM if kind == "WO" else VFM}, s[{SR}:{SR+3}], {T2} offen')
            D = 6
            ks = list(range(k0, k1))
            if GU and last:
                ks = [48, 52, 56, 60] + [k for k in ks if k & 3]
            base = pos
            sw = []
            if GU:
                for i, kb in enumerate(ks):
                    if (kb & 3) == 0: sw += [(i, base + i, d) for d in range(4)]
            per_gap = 2 if (GU and last) else 1
            for i in range(D): lq.op(rd(ks[i], base + i), ('x', base + i))
            for i, kb in enumerate(ks):
                lq.wait(('x', base + i))
                a(mf(kb, base + i))
                n = 0
                while sw and sw[0][0] <= i and n < per_gap:
                    assert i - (sw[0][1] - base) <= NR - D - 1
                    stats(sw[0][1], sw[0][2]); sw.pop(0); n += 1
                if i + D < len(ks): lq.op(rd(ks[i + D], base + i + D), ('x', base + i + D))
                if GU and last:
                    if i == 8:
                        assert not sw
                        a(f'v_add_f32 v{SA}, v{SA}, v{SB_}'); a(f'v_add_f32 v{QA}, v{QA}, v{QB}')
                        a('s_nop 1')
                        a(f'v_permlane32_swap_b32 v{SA}, v{QA}')
                        a('s_nop 1')
                        a(f'v_add_f32 v{SA}, v{SA}, v{QA}')
                        lq.op(f'ds_write_b32 v{VSTW}, v{SA}', 'stw')
                    if i == 9:
                        lq.wait('stw')
                        a('s_barrier')
                        for w in range(4):
                            lq.op(f'ds_read2_b32 v[{STT+2*w}:{STT+2*w+1}], v{VSTR} offset0:{64*w} offset1:{64*w+32}', ('st', w))
                    if i == 12:
                        lq.wait(('st', 3))
                        for (d, x, y) in [(0, 0, 2), (1, 1, 3), (4, 4, 6), (5, 5, 7), (0, 0, 4), (1, 1, 5)]:
                            a(f'v_add_f32 v{STT+d}, v{STT+x}, v{STT+y}')
                        a(f'v_mul_f32 v{NMU}, 0x3a800000, v{STT}')
                        a(f'v_mul_f32 v{RSTD}, 0x3a800000, v{STT+1}')
                    if i == 13:
                        a(f'v_fma_f32 v{RSTD}, -v{NMU}, v{NMU}, v{RSTD}')
                        a(f'v_max_f32 v{RSTD}, 0, v{RSTD}')
                        bf16_round(a, RSTD, RSTD)
                        a(f'v_add_f32 v{RSTD}, 0x3727c5ac, v{RSTD}')
                        bf16_round(a, RSTD, RSTD)
                    if i == 14:
                        a(f'v_sqrt_f32 v{RSTD}, v{RSTD}')
                        bf16_round(a, NMU, NMU)
                        bf16_round(a, RSTD, RSTD)
                        a(f'v_rcp_f32 v{RSTD}, v{RSTD}')
            assert not sw
            pos += len(ks)
            lq.q = []
        ST(3)
        a(f'v_readfirstlane_b32 s{S_EARLY}, v{t2}')
        if prof: a(f's_add_u32 s70, s70, s{S_EARLY}')
        a(f's_cmp_ge_u32 s{S_SEG}, {nseg - 1}'); a(f's_cselect_b32 s{S_EARLY}, 0, s{S_EARLY}')
        late, fin = f'{N}_LATE', f'{N}_FIN'
        if GU:
            a(f's_mul_i32 {T2}, s{S_SEG}, {ostride}'); a(f's_add_u32 {T2}, {T2}, s{S_OO}')
            for j in range(4): a(f'v_xor_b32 v{VXR[j]}, 0x10000, v{VXR[j]}')
            a('s_nop 7'); a('s_nop 4')
            for r in range(0, 16, 2):
                a(f'v_pk_add_f32 v[{AC0+r}:{AC0+r+1}], v[{AC0+r}:{AC0+r+1}], v[{AC1+r}:{AC1+r+1}]')
            for r in range(0, 16, 2):
                a(f'v_pk_fma_f32 v[{AC0+r}:{AC0+r+1}], v[{CS+r}:{CS+r+1}], v[{NMU}:{NMU+1}], v[{AC0+r}:{AC0+r+1}] op_sel_hi:[1,0,1] neg_lo:[0,1,0] neg_hi:[0,1,0]')
            for r in range(0, 16, 2):
                a(f'v_pk_mul_f32 v[{AC0+r}:{AC0+r+1}], v[{AC0+r}:{AC0+r+1}], v[{RSTD}:{RSTD+1}] op_sel_hi:[1,0]')
            G, U, T = AC0, AC0 + 8, TMP
            for r in range(8):
                a(f'v_cvt_pk_bf16_f32 v{T+r}, v{AC0+2*r}, v{AC0+2*r+1}')
            for r in range(4):
                a(f'v_lshlrev_b32 v{G+2*r}, 16, v{T+r}'); a(f'v_and_b32 v{G+2*r+1}, 0xffff0000, v{T+r}')
            for r in range(8): a(f'v_mul_f32 v{G+r}, 0xbfb8aa3b, v{G+r}')
            for r in range(4):
                a(f'v_lshlrev_b32 v{U+2*r}, 16, v{T+4+r}'); a(f'v_and_b32 v{U+2*r+1}, 0xffff0000, v{T+4+r}')
            for r in range(8): a(f'v_exp_f32 v{G+r}, v{G+r}')
            for r in range(8): a(f'v_add_f32 v{G+r}, 1.0, v{G+r}')
            for r in range(8): a(f'v_rcp_f32 v{G+r}, v{G+r}')
            a('s_nop 0')
            for r in range(4): a(f'v_cvt_pk_bf16_f32 v{T+r}, v{G+2*r}, v{G+2*r+1}')
            for r in range(4):
                a(f'v_lshlrev_b32 v{G+2*r}, 16, v{T+r}'); a(f'v_and_b32 v{G+2*r+1}, 0xffff0000, v{T+r}')
            for r in range(8): a(f'v_mul_f32 v{G+r}, v{G+r}, v{U+r}')
            for r in range(4): a(f'v_cvt_pk_bf16_f32 v{T+r}, v{G+2*r}, v{G+2*r+1}')
            a(f'buffer_store_dwordx4 v[{T}:{T+3}], v{L16}, s[{SO}:{SO+3}], {T2} offen sc1')
            a(f's_cmp_eq_u32 s{S_EARLY}, 0'); a(f's_cbranch_scc1 {late}')
            xdma(1)
            a(f's_waitcnt vmcnt({nd})')
            a(f's_branch {fin}')
            a.label(late)
            a('s_waitcnt vmcnt(0)')
            a.label(fin)
            ST(7)
            set_flag(a, VFA, VONE, fo)
        else:
            S_SLOT = 48
            a(f's_and_b32 s{S_SLOT}, s{S_SEG}, 1'); a(f's_lshl_b32 s{S_SLOT}, s{S_SLOT}, 19')
            a(f's_add_u32 {T2}, s{S_SLOT}, s{S_OO}')
            a(f'v_xor_b32 v{VXR[0]}, 0x10000, v{VXR[0]}')
            a('s_nop 7'); a('s_nop 4')
            for r in range(0, 16, 2):
                a(f'v_pk_add_f32 v[{AC0+r}:{AC0+r+1}], v[{AC0+r}:{AC0+r+1}], v[{AC1+r}:{AC1+r+1}]')
            mode_store(a, [f'buffer_store_dwordx4 v[{AC0+4*q}:{AC0+4*q+3}], v{L16}, s[{SO}:{SO+3}], {T2} offen offset:{q*1024}' for q in range(4)])
            ST(4)
            a(f's_add_u32 s{S_E0}, s{S_SLOT}, s{S_EXL}')
            for s_ in range(1, 4): a(f's_add_u32 s{S_E0+s_}, s{S_E0}, {4096*s_}')
            lp = a.newlabel(N + '_X'); dn = lp + '_D'
            a.label(lp)
            for s_ in range(4):
                a(f'buffer_load_dwordx4 v[{EXL+4*s_}:{EXL+4*s_+3}], v{VEX}, s[{SO}:{SO+3}], s{S_E0+s_} offen sc1')
            a('s_waitcnt vmcnt(0)')
            rc.max_chain(a, t1, list(range(EXL, EXL + 16)))
            a(f'v_cmp_eq_u32 vcc, -1, v{t1}')
            budget(a, lp, dn)
            ST(5)
            mode_store(a, [f'buffer_store_dwordx4 v[{VNEG}:{VNEG+3}], v{VEX}, s[{SO}:{SO+3}], s{S_E0+s_} offen' for s_ in range(4)])
            pk = lambda d, x, y: a(f'v_pk_add_f32 v[{d}:{d+1}], v[{x}:{x+1}], v[{y}:{y+1}]')
            pk(EXL, EXL, EXL + 4); pk(EXL + 2, EXL + 2, EXL + 6); pk(EXL + 8, EXL + 8, EXL + 12); pk(EXL + 10, EXL + 10, EXL + 14)
            pk(EXL, EXL, EXL + 8); pk(EXL + 2, EXL + 2, EXL + 10)
            a(f'v_lshlrev_b32 v{EXL+8}, 16, v{RES}'); a(f'v_and_b32 v{EXL+9}, 0xffff0000, v{RES}')
            a(f'v_cvt_pk_bf16_f32 v{EXL}, v{EXL}, v{EXL+1}'); a(f'v_cvt_pk_bf16_f32 v{EXL+2}, v{EXL+2}, v{EXL+3}')
            a(f'v_lshlrev_b32 v{EXL+10}, 16, v{RES+1}'); a(f'v_and_b32 v{EXL+11}, 0xffff0000, v{RES+1}')
            a(f'v_lshlrev_b32 v{EXL+4}, 16, v{EXL}'); a(f'v_and_b32 v{EXL+5}, 0xffff0000, v{EXL}')
            a(f'v_lshlrev_b32 v{EXL+6}, 16, v{EXL+2}'); a(f'v_and_b32 v{EXL+7}, 0xffff0000, v{EXL+2}')
            pk(EXL + 4, EXL + 4, EXL + 8); pk(EXL + 6, EXL + 6, EXL + 10)
            a(f's_lshl_b32 {T2}, s{S_SEG}, 16')
            a(f'v_cvt_pk_bf16_f32 v{EXL}, v{EXL+4}, v{EXL+5}'); a(f'v_cvt_pk_bf16_f32 v{EXL+1}, v{EXL+6}, v{EXL+7}')
            if kind == 'WO':
                a(f'buffer_store_dwordx2 v[{EXL}:{EXL+1}], v{VFM}, s[{SRES}:{SRES+3}], {T2} offen sc1')
            else:
                a(f'buffer_store_dwordx2 v[{EXL}:{EXL+1}], v{VRM}, s[{SRES}:{SRES+3}], {T2} offen')
            ST(6)
            a(f's_cmp_eq_u32 s{S_EARLY}, 0'); a(f's_cbranch_scc1 {late}')
            xdma(1)
            if kind == 'WO': a(f's_waitcnt vmcnt({nd})')
            a(f's_branch {fin}')
            a.label(late)
            if kind == 'WO' or mega.TL: a('s_waitcnt vmcnt(0)')
            a.label(fin)
            ST(7)
            if kind == 'WO': set_flag(a, VFA, VONE, fo)
        tl_stamp(a, TLV[1])
        a(f's_add_u32 s{S_SEG}, s{S_SEG}, 1')
        a(f's_cmp_lt_u32 s{S_SEG}, {nseg}'); a(f's_cbranch_scc1 {top}')
    tl_dump(a, TLV + [243])
    if prof:
        a('s_waitcnt vmcnt(0)')
        a.srd(4, S_PWS, 1 << 20, add=0xF200000)
        a(f's_lshl_b32 {T0}, s{S_WID}, 2'); a(f's_add_u32 {T0}, {T0}, {W}'); a(f's_lshl_b32 {T0}, {T0}, 6')
        a('v_mov_b32 v1, 0')
        a('s_mov_b64 exec, 1')
        for i in range(11):
            a(f'v_mov_b32 v2, s{60+i}')
            a(f'buffer_store_dword v2, v1, s[4:7], {T0} offen offset:{4*i}')
        a('s_mov_b64 exec, -1')
        a('s_waitcnt vmcnt(0)')
```

```python
from asmlib import *
import mega, k_recc as rc
from mega import *
from mega import tl_stamp, tl_init, tl_dump

F_XW, F_XD = 1024, 2560
L_ST = 0x20000

class LQ:
    def __init__(self, a): self.a = a; self.q = []
    def op(self, s, tag=None): self.a(s); self.q.append(tag)
    def wait(self, tag):
        i = max(k for k, t in enumerate(self.q) if t == tag)
        n = len(self.q) - 1 - i
        assert n <= 15
        self.a(f's_waitcnt lgkmcnt({n})')
    def drain(self): self.a('s_waitcnt lgkmcnt(0)'); self.q = []

def ex_store(a, instrs):
    if mega.PLACE:
        for i in instrs: a(i + ' sc1')
    else: mode_store(a, instrs)

PROF = False
PIPE = True
PIPE2 = True
STREAM = True
TLX2 = False
PF = True
def role_gemmx(a, kind, nseg=64):
    N = kind
    prof = PROF
    def ST(i):
        if TLX2:
            if i in (5, 6): return
            if i >= 10: i -= 5
        elif i >= 10: return
        if mega.TL and PIPE:
            l0 = a.newlabel('TLX')
            a(f's_cmp_lt_u32 s{S_SEG}, 56'); a(f's_cbranch_scc1 {l0}')
            a('s_memrealtime s[88:89]'); a(f's_sub_u32 m0, s{S_SEG}, 56'); a('s_lshl_b32 m0, m0, 3'); a(f's_add_u32 m0, m0, {i}')
            a('s_waitcnt lgkmcnt(0)'); a('v_writelane_b32 v243, s88, m0')
            a.label(l0)
        if not prof: return
        a('s_memtime s[56:57]'); a('s_waitcnt lgkmcnt(0)')
        a('s_sub_u32 s59, s56, s58'); a(f's_add_u32 s{60+i}, s{60+i}, s59'); a('s_mov_b32 s58, s56')
    GU = kind == 'GU'
    KS_, CB_ = 28, 29
    nk = 56 if kind == 'DN' else 64
    nch = nk // 8
    nd = nk // 4
    SW, SX, SO = 4, 8, 12
    SR, SRES = 4, S_OSRD
    T0, T1, T2 = f's{S_T0}', f's{S_T1}', f's{S_T2}'
    W = f's{S_WAVE}'
    LN, L16, VD, VT_, t1, t2 = 1, 2, 3, 4, 5, 6
    VPA, VPF, VFA, VONE, VOUT = 8, 12, 16, 17, 18
    VXR = [7, 9, 10, 11]
    XF = 160 if GU else 20
    NR = 12 if GU else 8
    AC0, AC1 = 52, 68
    TMP = 84
    CS = 100
    SA, SB_, QA, QB = 116, 117, 118, 119
    UL, UH = 20, 21
    VNEG = 160
    S_E0 = 49
    VONES, VSTW, VSTR = 120, 121, 122
    NMU, RSTD = 124, 126
    STT = 128
    VEX, VXF, VXP, VFM, VRM = 136, 137, 138, 139, 140
    RES = 142
    EXL = 144
    a(f's_load_dwordx2 s[{S_PWS}:{S_PWS+1}], s[0:1], {KA_WS}')
    if GU:
        a(f's_load_dwordx2 s[{S_PW}:{S_PW+1}], s[0:1], {KA_WG}')
        a(f's_load_dwordx2 s[40:41], s[0:1], {KA_WU}')
    else:
        a(f's_load_dwordx2 s[{S_PW}:{S_PW+1}], s[0:1], {KA_WO if kind == "WO" else KA_WD}')
        a(f's_load_dwordx2 s[40:41], s[0:1], {KA_X if kind == "WO" else KA_OUT}')
    a(f'v_and_b32 v{LN}, 63, v0')
    a(f'v_lshlrev_b32 v{L16}, 4, v{LN}')
    a('s_waitcnt lgkmcnt(0)')
    if GU:
        a(f's_cmp_ge_u32 {W}, 2')
        a(f's_cselect_b32 s{S_PW}, s40, s{S_PW}')
        a(f's_cselect_b32 s{S_PW+1}, s41, s{S_PW+1}')
    a.srd(SW, S_PW, (8 if kind == 'WO' else 7) * MB)
    xo, xb = {'WO': (WS_OF, 16*MB), 'GU': (WS_HB, 4*MB), 'DN': (WS_ACT, 14*MB)}[kind]
    a.srd(SX, S_PWS, xb, add=xo)
    oo, ob = {'WO': (WS_P1, MB), 'GU': (WS_ACT, 14*MB), 'DN': (WS_P2, MB)}[kind]
    a.srd(SO, S_PWS, ob, add=oo)
    if kind == 'WO':   a.srd(SRES, S_PWS, 4*MB, add=WS_HB)
    elif kind == 'DN': a.srd(SRES, 40, 4*MB)
    S_GO, S_M0 = 42, 43
    if GU:
        a(f'v_lshrrev_b32 v{t1}, 3, v{LN}'); a(f'v_mul_u32_u24 v{VD}, 7168, v{t1}')
        a(f'v_and_b32 v{t1}, 7, v{LN}'); a(f'v_lshl_add_u32 v{VD}, v{t1}, 4, v{VD}')
        a(f's_lshl_b32 {T0}, s{CB_}, 7')
        a(f's_and_b32 {T1}, {W}, 1'); a(f's_mul_i32 {T1}, {T1}, {64*7168}')
        a(f's_add_u32 s{S_GO}, {T0}, {T1}')
        a(f's_lshl_b32 s{S_M0}, {W}, 13')
        istep, cstep = 8 * 7168, 128 * 7168
        a(f'v_bfe_u32 v{t1}, v{LN}, 2, 2'); a(f'v_lshrrev_b32 v{t2}, 5, v{LN}')
        a(f'v_lshl_add_u32 v{t1}, v{t2}, 2, v{t1}'); a(f'v_lshlrev_b32 v{VT_}, 7, v{t1}')
        a(f'v_bfe_u32 v{t1}, v{LN}, 4, 1'); a(f'v_lshl_add_u32 v{VT_}, v{t1}, 14, v{VT_}')
        a(f'v_and_b32 v{t1}, 3, v{LN}'); a(f'v_lshl_add_u32 v{VT_}, v{t1}, 3, v{VT_}')
        a(f's_lshl_b32 {T0}, {W}, 5'); a(f'v_add_u32 v{VT_}, {T0}, v{VT_}')
        kkoff, h2off = 2048, 1024
    else:
        rows0 = 1024 if kind == 'WO' else 896
        a(f'v_lshrrev_b32 v{t1}, 4, v{LN}'); a(f'v_lshlrev_b32 v{t2}, 2, v{t1}')
        a(f'v_and_b32 v{VD}, 15, v{LN}'); a(f'v_xor_b32 v{VD}, v{VD}, v{t2}'); a(f'v_lshlrev_b32 v{VD}, 4, v{VD}')
        a(f'v_lshl_add_u32 v{VD}, v{t1}, 11, v{VD}')
        a(f's_mul_i32 {T0}, s{KS_}, {rows0 * 2048}'); a(f's_lshl_b32 {T1}, s{CB_}, 8'); a(f's_add_u32 {T0}, {T0}, {T1}')
        a(f's_lshl_b32 {T1}, {W}, 16'); a(f's_add_u32 s{S_GO}, {T0}, {T1}')
        a(f's_lshl_b32 s{S_M0}, {W}, 13')
        istep, cstep = 4 * 2048, 128 * 2048
        a(f'v_bfe_u32 v{t1}, v{LN}, 2, 2')
        a(f'v_lshrrev_b32 v{t2}, 5, v{LN}'); a(f'v_lshl_add_u32 v{t2}, v{t2}, 2, v{t1}'); a(f'v_lshlrev_b32 v{VT_}, 8, v{t2}')
        a(f'v_xor_b32 v{t1}, {W}, v{t1}'); a(f'v_lshl_add_u32 v{VT_}, v{t1}, 6, v{VT_}')
        a(f'v_bfe_u32 v{t1}, v{LN}, 4, 1'); a(f'v_lshl_add_u32 v{VT_}, v{t1}, 5, v{VT_}')
        a(f'v_and_b32 v{t1}, 3, v{LN}'); a(f'v_lshl_add_u32 v{VT_}, v{t1}, 3, v{VT_}')
        kkoff, h2off = 4096, 2048
    def wdma(q):
        a(f's_add_u32 {T0}, s{S_GO}, {q * cstep}')
        a(f's_add_u32 m0, s{S_M0}, {(q & 3) * 32768}')
        for i in range(8):
            a('s_nop 0')
            a(f'buffer_load_dwordx4 v{VD}, s[{SW}:{SW+3}], {T0} offen lds')
            if i < 7:
                a(f's_add_u32 {T0}, {T0}, {istep}'); a('s_add_u32 m0, m0, 1024')
    TLV = [240, 241, 242]
    if mega.TL: a('v_mov_b32 v243, 0')
    tl_init(a, TLV)
    VTJ = [84, 85, 86, 87]
    if GU:
        for j in range(4):
            a(f's_xor_b32 {T0}, {W}, {j}'); a(f's_lshl_b32 {T0}, {T0}, 11'); a(f'v_add_u32 v{VTJ[j]}, {T0}, v{VT_}')
    for q in range(min(4, nch)): wdma(q)
    for q in range(nch):
        left = min(nch, max(4, q + 4)) - (q + 1)
        a(f's_waitcnt vmcnt({8 * left})')
        a('s_barrier')
        if GU:
            for j in range(4): a(f'v_add_u32 v{88+j}, {(q & 3) * 32768}, v{VTJ[j]}')
        else:
            a(f'v_add_u32 v{t1}, {(q & 3) * 32768}, v{VT_}')
        for kk in range(8):
            kb = 8 * q + kk
            if GU: ad, off = 88 + (kk & 3), (kk & 4) * kkoff
            else:  ad, off = t1, kk * kkoff
            a(f'ds_read_b64_tr_b16 a[{4*kb}:{4*kb+1}], v{ad} offset:{off}')
            a(f'ds_read_b64_tr_b16 a[{4*kb+2}:{4*kb+3}], v{ad} offset:{off + h2off}')
            if kk % 4 == 3: a('s_waitcnt lgkmcnt(0)')
        a('s_barrier')
        if q + 4 < nch: wdma(q + 4)
    S_XO, S_XM0, S_OO = 44, 45, 46
    S_EXL = 47
    xstride = {'WO': 262144, 'GU': 65536, 'DN': 229376}[kind]
    if kind == 'WO':   a(f's_lshl_b32 s{S_XO}, s{KS_}, 16')
    elif kind == 'DN': a(f's_mul_i32 s{S_XO}, s{KS_}, {56*1024}')
    else:              a(f's_mov_b32 s{S_XO}, 0')
    a(f's_lshl_b32 {T0}, {W}, 10'); a(f's_add_u32 s{S_XO}, s{S_XO}, {T0}')
    a(f's_lshl_b32 s{S_XM0}, {W}, 10')
    if GU:
        a(f's_lshl_b32 {T0}, s{CB_}, 2'); a(f's_add_u32 {T0}, {T0}, {W}'); a(f's_lshl_b32 s{S_OO}, {T0}, 10')
        ostride = 229376
        a(f'v_mov_b32 v{VONES}, 0x3f803f80')
        for r in range(4): a(f'v_mov_b32 v{XF+r}, 0x3f803f80')
        a('s_nop 1')
        for kb in range(64):
            c = '0' if kb == 0 else f'v[{CS}:{CS+15}]'
            a(f'v_mfma_f32_32x32x16_bf16 v[{CS}:{CS+15}], a[{4*kb}:{4*kb+3}], v[{XF}:{XF+3}], {c}')
        a(f'v_lshrrev_b32 v{VSTW}, 2, v{L16}')
        a(f'v_and_b32 v{VSTR}, 31, v{LN}'); a(f'v_lshlrev_b32 v{VSTR}, 2, v{VSTR}'); a(f'v_add_u32 v{VSTR}, {L_ST}, v{VSTR}')
        a(f's_lshl_b32 {T0}, {W}, 8'); a(f's_add_u32 {T0}, {T0}, {L_ST}'); a(f'v_add_u32 v{VSTW}, {T0}, v{VSTW}')
    else:
        a(f's_lshl_b32 {T0}, s{CB_}, 2'); a(f's_add_u32 {T1}, {T0}, {W}'); a(f's_lshl_b32 {T1}, {T1}, 2')
        a(f's_add_u32 {T1}, {T1}, s{KS_}'); a(f's_lshl_b32 s{S_OO}, {T1}, 12')
        a(f's_add_u32 {T1}, {T0}, s{KS_}'); a(f's_lshl_b32 s{S_EXL}, {T1}, 14')
        fx = F_XW if kind == 'WO' else F_XD
        a(f's_lshl_b32 {T2}, {T1}, 4'); a(f's_add_u32 {T2}, {T2}, {fx}'); a(f'v_mov_b32 v{VXP}, {T2}')
        a(f's_add_u32 {T1}, {T0}, {W}'); a(f's_lshl_b32 {T1}, {T1}, 4'); a(f's_lshl_b32 {T2}, s{KS_}, 2')
        a(f's_add_u32 {T1}, {T1}, {T2}'); a(f's_add_u32 {T1}, {T1}, {fx}'); a(f'v_mov_b32 v{VXF}, {T1}')
        mm, hh, sp = 84, 85, 86
        a(f'v_and_b32 v{mm}, 15, v{LN}'); a(f's_lshr_b32 {T0}, {W}, 1'); a(f's_lshl_b32 {T0}, {T0}, 4'); a(f'v_add_u32 v{mm}, {T0}, v{mm}')
        a(f'v_bfe_u32 v{hh}, v{LN}, 4, 1'); a(f'v_lshrrev_b32 v{sp}, 5, v{LN}')
        a(f'v_lshl_add_u32 v87, v{hh}, 5, v{mm}'); a(f'v_lshlrev_b32 v87, 4, v87')
        a(f's_and_b32 {T0}, {W}, 1')
        a(f's_lshl_b32 {T1}, {T0}, 11'); a(f'v_lshl_add_u32 v{VEX}, v{sp}, 10, v87'); a(f'v_add_u32 v{VEX}, {T1}, v{VEX}')
        a(f's_lshl_b32 {T1}, s{CB_}, 3'); a(f's_lshl_b32 {T2}, s{KS_}, 1'); a(f's_add_u32 {T1}, {T1}, {T2}'); a(f's_add_u32 {T1}, {T1}, {T0}')
        a(f's_lshl_b32 {T2}, {T1}, 10'); a(f'v_lshl_add_u32 v{VFM}, v{sp}, 3, v87'); a(f'v_add_u32 v{VFM}, {T2}, v{VFM}')
        a(f's_lshl_b32 {T2}, {T1}, 5'); a(f'v_lshlrev_b32 v{VRM}, 11, v{mm}'); a(f'v_lshl_add_u32 v{VRM}, v{sp}, 4, v{VRM}')
        a(f'v_lshl_add_u32 v{VRM}, v{hh}, 3, v{VRM}'); a(f'v_add_u32 v{VRM}, {T2}, v{VRM}')
        for r in range(4): a(f'v_mov_b32 v{VNEG+r}, -1')
        if kind == 'WO': a.srd(SR, 40, 4*MB)
        else:            a.srd(SR, S_PWS, 4*MB, add=WS_HB)
    if kind == 'WO':
        a(f'v_and_b32 v{VPA}, 7, v{LN}'); a(f'v_lshlrev_b32 v{VPA}, 2, v{VPA}')
        a(f's_lshl_b32 {T0}, s{KS_}, {7 if mega.PLACE else 5}'); a(f's_add_u32 {T0}, {T0}, {F_AF}'); a(f'v_add_u32 v{VPA}, {T0}, v{VPA}')
        pw = 1
    elif GU:
        a(f'v_and_b32 v{VPA}, 31, v{LN}'); a(f'v_lshlrev_b32 v{VPA}, 4, v{VPA}'); a(f'v_add_u32 v{VPA}, {F_WF}, v{VPA}')
        pw = 4
    else:
        a(f'v_min_u32 v{VPA}, 13, v{LN}'); a(f'v_lshlrev_b32 v{VPA}, 4, v{VPA}')
        a(f's_mul_i32 {T0}, s{KS_}, {256 if mega.PLACE else 14*16}'); a(f's_add_u32 {T0}, {T0}, {F_GF}'); a(f'v_add_u32 v{VPA}, {T0}, v{VPA}')
        pw = 4
    if GU:
        a(f's_lshl_b32 {T0}, s{CB_}, 4'); fo = F_GF
        if mega.PLACE:
            a(f's_lshl_b32 {T1}, s{KS_}, 5'); a(f's_add_u32 {T0}, {T0}, {T1}')
    else:
        a(f's_lshl_b32 {T0}, s{KS_}, 3'); a(f's_add_u32 {T0}, {T0}, s{CB_}'); a(f's_lshl_b32 {T0}, {T0}, 4')
        fo = F_WF
    a(f's_lshl_b32 {T1}, {W}, 2'); a(f's_add_u32 {T0}, {T0}, {T1}'); a(f'v_mov_b32 v{VFA}, {T0}')
    a(f'v_mov_b32 v{VONE}, 1')
    a(f'v_mov_b32 v{VOUT}, {L_BC}')
    a(f's_mov_b32 s{S_SEG}, 0'); a(f's_mov_b32 s{S_EARLY}, 0')
    for j in range(4 if GU else 1):
        if GU:
            a(f's_xor_b32 {T0}, {W}, {j}'); a(f's_lshl_b32 {T0}, {T0}, 10'); a(f'v_add_u32 v{VXR[j]}, {T0}, v{L16}')
        else:
            a(f'v_mov_b32 v{VXR[j]}, v{L16}')

    VPFA, VPFD = 19, 18
    if PF and PIPE2:
        if kind == 'DN':
            a(f'v_min_u32 v{VPFA}, 55, v{LN}'); a(f'v_lshlrev_b32 v{VPFA}, 5, v{VPFA}')
            a(f's_mul_i32 {T0}, s{CB_}, 7168'); a(f's_mul_i32 {T1}, {W}, 768')
        else:
            a(f'v_lshlrev_b32 v{VPFA}, 5, v{LN}')
            a(f's_and_b32 {T0}, s{CB_}, 7'); a(f's_lshl_b32 {T0}, {T0}, 13'); a(f's_lshl_b32 {T1}, {W}, 10')
        a(f's_add_u32 {T0}, {T0}, {T1}'); a(f'v_add_u32 v{VPFA}, {T0}, v{VPFA}')
    def xdma(add, hi=None):
        hi = hi or nd
        a(f's_add_u32 {T1}, s{S_SEG}, {add}')
        a(f's_mul_i32 {T0}, {T1}, {xstride}'); a(f's_add_u32 {T0}, {T0}, s{S_XO}')
        a(f's_and_b32 {T1}, {T1}, 1'); a(f's_lshl_b32 {T1}, {T1}, 16'); a(f's_add_u32 m0, {T1}, s{S_XM0}')
        if PF and PIPE2: a(f'buffer_load_dword v{VPFD}, v{VPFA}, s[{SX}:{SX+3}], {T0} offen')
        for i in range(hi):
            a('s_nop 0')
            a(f'buffer_load_dwordx4 v{L16}, s[{SX}:{SX+3}], {T0} offen lds')
            if i < hi - 1:
                a(f's_add_u32 {T0}, {T0}, 4096'); a('s_add_u32 m0, m0, 4096')

    def pipe_loop():
        top, have = f'{N}_TOP', f'{N}_HAVE'
        S_DA, S_SLOT = 53, 48
        E = f's{S_EARLY}'
        nxs = 1 if GU else 4
        bounds = [0, 16, 32, 48, nk] if nk == 64 else [0, 16, 32, 44, 56]
        D = 6
        def done_stamp(prev):
            if not mega.TL: return
            a('s_memrealtime s[88:89]'); a('s_waitcnt lgkmcnt(0)')
            a(f's_sub_u32 m0, s{S_SEG}, {1 if prev else 0}'); a('s_nop 3'); a(f'v_writelane_b32 v{TLV[1]}, s88, m0')
        def flag(prev):
            seg_foff(a, -1 if prev else 0)
            a('s_mov_b64 exec, 1')
            i = f'buffer_store_dword v{VONE}, v{VFA}, {FLS}, s{S_FOFF} offen offset:{fo}'
            if GU and mega.PLACE: mode_store(a, [i])
            else: a(i + ' sc1')
            a('s_mov_b64 exec, -1')
        def rd(kb, slot):
            r = XF + 4 * (slot % NR)
            if GU: return f'ds_read_b128 v[{r}:{r+3}], v{VXR[kb & 3]} offset:{(kb & ~3) * 1024}'
            return f'ds_read_b128 v[{r}:{r+3}], v{VXR[0]} offset:{kb * 1024}'
        def mf(kb, slot):
            r = XF + 4 * (slot % NR); ac = AC0 if slot % 2 == 0 else AC1
            c = '0' if slot < 2 else f'v[{ac}:{ac+15}]'
            return f'v_mfma_f32_32x32x16_bf16 v[{ac}:{ac+15}], a[{4*kb}:{4*kb+3}], v[{r}:{r+3}], {c}'
        def stats(slot, i):
            r = XF + 4 * (slot % NR) + i
            lo, hi = UL + 2 * (i & 1), UH + 2 * (i & 1)
            a(f'v_lshlrev_b32 v{lo}, 16, v{r}'); a(f'v_and_b32 v{hi}, 0xffff0000, v{r}')
            a(f'v_fmac_f32 v{QA}, v{lo}, v{lo}'); a(f'v_add_f32 v{SA}, v{SA}, v{lo}')
            a(f'v_fmac_f32 v{QB}, v{hi}, v{hi}'); a(f'v_add_f32 v{SB_}, v{SB_}, v{hi}')
        def dma_groups(add, lo=0, hi=None):
            hi = hi or nd
            g0 = [f's_add_u32 s{S_DA+1}, s{S_SEG}, {add}', f's_mul_i32 s{S_DA}, s{S_DA+1}, {xstride}',
                  f's_add_u32 s{S_DA}, s{S_DA}, s{S_XO}', f's_and_b32 s{S_DA+1}, s{S_DA+1}, 1',
                  f's_lshl_b32 s{S_DA+1}, s{S_DA+1}, 16', f's_add_u32 m0, s{S_DA+1}, s{S_XM0}']
            if lo: g0 += [f's_add_u32 s{S_DA}, s{S_DA}, {4096*lo}', f's_add_u32 m0, m0, {4096*lo}']
            if PF and PIPE2 and lo == 0: g0.append(f'buffer_load_dword v{VPFD}, v{VPFA}, s[{SX}:{SX+3}], s{S_DA} offen')
            gs = []
            for i in range(lo, hi):
                g = ['s_nop 0', f'buffer_load_dwordx4 v{L16}, s[{SX}:{SX+3}], s{S_DA} offen lds']
                if i < hi - 1: g += [f's_add_u32 s{S_DA}, s{S_DA}, 4096', 's_add_u32 m0, m0, 4096']
                gs.append(g)
            gs[0] = g0 + gs[0]
            return gs
        def order(c):
            ks = list(range(bounds[c], bounds[c + 1]))
            if GU and c == 3: ks = [48, 52, 56, 60] + [k for k in ks if k & 3]
            return ks
        def pro(c, lq, base):
            ks = order(c)
            for i in range(D): lq.op(rd(ks[i], base + i), ('x', base + i))
        def body(c, lq, base, dma=None):
            ks = order(c); last = c == 3
            sw = []
            if GU:
                for i, kb in enumerate(ks):
                    if (kb & 3) == 0: sw += [(i, base + i, d) for d in range(4)]
            per_gap = 2 if (GU and last) else 1
            dma = list(dma or [])
            for i, kb in enumerate(ks):
                lq.wait(('x', base + i))
                a(mf(kb, base + i))
                if dma:
                    k = -(-len(dma) // (len(ks) - i))
                    for _ in range(k): a.ext(dma.pop(0))
                n = 0
                while sw and sw[0][0] <= i and n < per_gap:
                    assert i - (sw[0][1] - base) <= NR - D - 1
                    stats(sw[0][1], sw[0][2]); sw.pop(0); n += 1
                if i + D < len(ks): lq.op(rd(ks[i + D], base + i + D), ('x', base + i + D))
                if GU and last:
                    if i == 8:
                        assert not sw
                        a(f'v_add_f32 v{SA}, v{SA}, v{SB_}'); a(f'v_add_f32 v{QA}, v{QA}, v{QB}')
                        a('s_nop 1')
                        a(f'v_permlane32_swap_b32 v{SA}, v{QA}')
                        a('s_nop 1')
                        a(f'v_add_f32 v{SA}, v{SA}, v{QA}')
                        lq.op(f'ds_write_b32 v{VSTW}, v{SA}', 'stw')
                    if i == 9:
                        lq.wait('stw')
                        a('s_barrier')
                        for w in range(4):
                            lq.op(f'ds_read2_b32 v[{STT+2*w}:{STT+2*w+1}], v{VSTR} offset0:{64*w} offset1:{64*w+32}', ('st', w))
                    if i == 12:
                        lq.wait(('st', 3))
                        for (d, x, y) in [(0, 0, 2), (1, 1, 3), (4, 4, 6), (5, 5, 7), (0, 0, 4), (1, 1, 5)]:
                            a(f'v_add_f32 v{STT+d}, v{STT+x}, v{STT+y}')
                        a(f'v_mul_f32 v{NMU}, 0x3a800000, v{STT}')
                        a(f'v_mul_f32 v{RSTD}, 0x3a800000, v{STT+1}')
                    if i == 13:
                        a(f'v_fma_f32 v{RSTD}, -v{NMU}, v{NMU}, v{RSTD}')
                        a(f'v_max_f32 v{RSTD}, 0, v{RSTD}')
                        bf16_round(a, RSTD, RSTD)
                        a(f'v_add_f32 v{RSTD}, 0x3727c5ac, v{RSTD}')
                        bf16_round(a, RSTD, RSTD)
                    if i == 14:
                        a(f'v_sqrt_f32 v{RSTD}, v{RSTD}')
                        bf16_round(a, NMU, NMU)
                        bf16_round(a, RSTD, RSTD)
                        a(f'v_rcp_f32 v{RSTD}, v{RSTD}')
            assert not sw and not dma
        ks_all = order(0) + order(1) + order(2) + order(3)
        NT = len(ks_all); B3 = bounds[3]
        def stream(p0, p1, lq, sw, dma=None):
            dma = list(dma or [])
            for i in range(p0, p1):
                lq.wait(('x', i))
                a(mf(ks_all[i], i))
                if dma:
                    k = -(-len(dma) // (p1 - i))
                    for _ in range(k): a.ext(dma.pop(0))
                n = 0
                while sw and sw[0][0] <= i and n < (2 if i >= B3 else 1):
                    assert i - sw[0][1] <= NR - D - 1
                    stats(sw[0][1], sw[0][2]); sw.pop(0); n += 1
                if i + D < NT: lq.op(rd(ks_all[i + D], i + D), ('x', i + D))
                if GU and i >= B3:
                    j = i - B3
                    if j == 8:
                        assert not sw
                        a(f'v_add_f32 v{SA}, v{SA}, v{SB_}'); a(f'v_add_f32 v{QA}, v{QA}, v{QB}')
                        a('s_nop 1')
                        a(f'v_permlane32_swap_b32 v{SA}, v{QA}')
                        a('s_nop 1')
                        a(f'v_add_f32 v{SA}, v{SA}, v{QA}')
                        lq.op(f'ds_write_b32 v{VSTW}, v{SA}', 'stw')
                    if j == 9:
                        lq.wait('stw')
                        a('s_barrier')
                        for w in range(4):
                            lq.op(f'ds_read2_b32 v[{STT+2*w}:{STT+2*w+1}], v{VSTR} offset0:{64*w} offset1:{64*w+32}', ('st', w))
                    if j == 12:
                        lq.wait(('st', 3))
                        for (d, x, y) in [(0, 0, 2), (1, 1, 3), (4, 4, 6), (5, 5, 7), (0, 0, 4), (1, 1, 5)]:
                            a(f'v_add_f32 v{STT+d}, v{STT+x}, v{STT+y}')
                        a(f'v_mul_f32 v{NMU}, 0x3a800000, v{STT}')
                        a(f'v_mul_f32 v{RSTD}, 0x3a800000, v{STT+1}')
                    if j == 13:
                        a(f'v_fma_f32 v{RSTD}, -v{NMU}, v{NMU}, v{RSTD}')
                        a(f'v_max_f32 v{RSTD}, 0, v{RSTD}')
                        bf16_round(a, RSTD, RSTD)
                        a(f'v_add_f32 v{RSTD}, 0x3727c5ac, v{RSTD}')
                        bf16_round(a, RSTD, RSTD)
                    if j == 14:
                        a(f'v_sqrt_f32 v{RSTD}, v{RSTD}')
                        bf16_round(a, NMU, NMU)
                        bf16_round(a, RSTD, RSTD)
                        a(f'v_rcp_f32 v{RSTD}, v{RSTD}')
            assert not dma
        def ex_loads():
            for s_ in range(4):
                a(f'buffer_load_dwordx4 v[{EXL+4*s_}:{EXL+4*s_+3}], v{VEX}, s[{SO}:{SO+3}], s{S_E0+s_} offen sc1')
        def ex_finish(prev):
            lp = a.newlabel(N + '_X'); dn = lp + '_D'
            a.label(lp)
            a('s_waitcnt vmcnt(0)')
            rc.max_chain(a, t1, list(range(EXL, EXL + 16)))
            a(f'v_cmp_eq_u32 vcc, -1, v{t1}')
            a(f's_cbranch_vccz {dn}')
            a(f's_cmp_eq_u32 s{S_BUDW}, 0'); a(f's_cbranch_scc1 {dn}')
            a(f's_sub_u32 s{S_BUDW}, s{S_BUDW}, 1')
            ex_loads()
            a(f's_branch {lp}')
            a.label(dn)
            pk = lambda d, x, y: a(f'v_pk_add_f32 v[{d}:{d+1}], v[{x}:{x+1}], v[{y}:{y+1}]')
            pk(EXL, EXL, EXL + 4); pk(EXL + 2, EXL + 2, EXL + 6); pk(EXL + 8, EXL + 8, EXL + 12); pk(EXL + 10, EXL + 10, EXL + 14)
            pk(EXL, EXL, EXL + 8); pk(EXL + 2, EXL + 2, EXL + 10)
            a(f'v_lshlrev_b32 v{EXL+8}, 16, v{RES}'); a(f'v_and_b32 v{EXL+9}, 0xffff0000, v{RES}')
            a(f'v_cvt_pk_bf16_f32 v{EXL}, v{EXL}, v{EXL+1}'); a(f'v_cvt_pk_bf16_f32 v{EXL+2}, v{EXL+2}, v{EXL+3}')
            a(f'v_lshlrev_b32 v{EXL+10}, 16, v{RES+1}'); a(f'v_and_b32 v{EXL+11}, 0xffff0000, v{RES+1}')
            a(f'v_lshlrev_b32 v{EXL+4}, 16, v{EXL}'); a(f'v_and_b32 v{EXL+5}, 0xffff0000, v{EXL}')
            a(f'v_lshlrev_b32 v{EXL+6}, 16, v{EXL+2}'); a(f'v_and_b32 v{EXL+7}, 0xffff0000, v{EXL+2}')
            pk(EXL + 4, EXL + 4, EXL + 8); pk(EXL + 6, EXL + 6, EXL + 10)
            a(f's_lshl_b32 {T2}, s{S_SEG}, 16')
            if prev: a(f's_sub_u32 {T2}, {T2}, 65536')
            a(f'v_cvt_pk_bf16_f32 v{EXL}, v{EXL+4}, v{EXL+5}'); a(f'v_cvt_pk_bf16_f32 v{EXL+1}, v{EXL+6}, v{EXL+7}')
            if kind == 'WO':
                a(f'buffer_store_dwordx2 v[{EXL}:{EXL+1}], v{VFM}, s[{SRES}:{SRES+3}], {T2} offen sc1')
            else:
                a(f'buffer_store_dwordx2 v[{EXL}:{EXL+1}], v{VRM}, s[{SRES}:{SRES+3}], {T2} offen')
            ex_store(a, [f'buffer_store_dwordx4 v[{VNEG}:{VNEG+3}], v{VEX}, s[{SO}:{SO+3}], s{S_E0+s_} offen' for s_ in range(4)])

        def old_head():
            tl_stamp(a, TLV[2], 2)
            if prof:
                for i in range(12): a(f's_mov_b32 s{60+i}, 0')
                a('s_memtime s[56:57]'); a('s_waitcnt lgkmcnt(0)'); a('s_mov_b32 s58, s56')
            a.label(top)
            a(f's_cmp_lg_u32 {E}, 0'); a(f's_cbranch_scc1 {have}')
            nw = f'{N}_NW0'
            a(f's_cmp_lg_u32 {W}, 0'); a(f's_cbranch_scc1 {nw}')
            seg_foff(a)
            poll(a, N + '_P', VPA, VPF, pw, t1)
            a.label(nw)
            a('s_barrier')
            ST(5)
            xdma(0)
            a.label(have)
            tl_stamp(a, TLV[0])
            ST(0)
            if GU:
                for r in (SA, SB_, QA, QB): a(f'v_mov_b32 v{r}, 0')
            lq = LQ(a)
            pos = 0
            for c in range(4):
                need = (bounds[c + 1] + 3) // 4
                if c < 3:
                    ln_, lj = a.newlabel(N + '_NP'), a.newlabel(N + '_PJ')
                    a(f's_cmp_eq_u32 {E}, 0'); a(f's_cbranch_scc1 {ln_}')
                    if c < 2:
                        a(f's_waitcnt vmcnt({nd - need + nxs})')
                        if c == 1 and not GU: ex_loads()
                    elif GU:
                        a('s_waitcnt vmcnt(0)')
                        flag(True); done_stamp(True)
                    else:
                        ex_finish(True)
                    a(f's_branch {lj}')
                    a.label(ln_)
                    a(f's_waitcnt vmcnt({nd - need})')
                    a.label(lj)
                    if c == 2:
                        nw2 = f'{N}_NW1'
                        a(f's_cmp_lg_u32 {W}, 0'); a(f's_cbranch_scc1 {nw2}')
                        seg_foff(a, 1)
                        flag_load(a, VPA, VPF, pw)
                        a.label(nw2)
                else:
                    a('s_waitcnt vmcnt(0)')
                    if kind == 'WO' or (kind == 'DN' and mega.TL):
                        l0 = a.newlabel(N + '_NF')
                        a(f's_cmp_eq_u32 {E}, 0'); a(f's_cbranch_scc1 {l0}')
                        if kind == 'WO': flag(True)
                        done_stamp(True)
                        a.label(l0)
                    nw3 = f'{N}_NW2'
                    a(f's_cmp_lg_u32 {W}, 0'); a(f's_cbranch_scc1 {nw3}')
                    flag_test(a, VPF, pw, t1)
                    a(f's_cmp_eq_u64 vcc, 0'); a(f's_cselect_b32 {T0}, 1, 0')
                    a(f'v_mov_b32 v{t1}, {T0}')
                    a(f'ds_write_b32 v{VOUT}, v{t1}')
                    a('s_waitcnt lgkmcnt(0)')
                    a.label(nw3)
                a('s_barrier')
                if c == 0: ST(1)
                if c == 3: ST(2)
                if c < 3:
                    pro(c, lq, pos)
                    body(c, lq, pos)
                else:
                    lq.op(f'ds_read_b32 v{t2}, v{VOUT}', 'early')
                    if not GU:
                        a(f's_lshl_b32 {T2}, s{S_SEG}, 16')
                        a(f'buffer_load_dwordx2 v[{RES}:{RES+1}], v{VRM if kind == "WO" else VFM}, s[{SR}:{SR+3}], {T2} offen')
                    pro(c, lq, pos)
                    lq.wait('early')
                    a(f'v_readfirstlane_b32 {E}, v{t2}')
                    if prof: a(f's_add_u32 s70, s70, {E}')
                    a(f's_cmp_ge_u32 s{S_SEG}, {nseg - 1}'); a(f's_cselect_b32 {E}, 0, {E}')
                    lb, lj = f'{N}_LB', f'{N}_LJ'
                    a(f's_cmp_eq_u32 {E}, 0'); a(f's_cbranch_scc1 {lb}')
                    lqa = LQ(a); lqa.q = list(lq.q)
                    body(c, lqa, pos, dma_groups(1))
                    a(f's_branch {lj}')
                    a.label(lb)
                    body(c, lq, pos)
                    a.label(lj)
                pos += len(order(c))
                lq.q = []
        def ex_check():
            rc.max_chain(a, t1, list(range(EXL, EXL + 16)))
            a(f'v_cmp_eq_u32 vcc, -1, v{t1}')
        def ex_fin(prev):
            pk = lambda d, x, y: a(f'v_pk_add_f32 v[{d}:{d+1}], v[{x}:{x+1}], v[{y}:{y+1}]')
            pk(EXL, EXL, EXL + 4); pk(EXL + 2, EXL + 2, EXL + 6); pk(EXL + 8, EXL + 8, EXL + 12); pk(EXL + 10, EXL + 10, EXL + 14)
            pk(EXL, EXL, EXL + 8); pk(EXL + 2, EXL + 2, EXL + 10)
            a(f'v_lshlrev_b32 v{EXL+8}, 16, v{RES}'); a(f'v_and_b32 v{EXL+9}, 0xffff0000, v{RES}')
            a(f'v_cvt_pk_bf16_f32 v{EXL}, v{EXL}, v{EXL+1}'); a(f'v_cvt_pk_bf16_f32 v{EXL+2}, v{EXL+2}, v{EXL+3}')
            a(f'v_lshlrev_b32 v{EXL+10}, 16, v{RES+1}'); a(f'v_and_b32 v{EXL+11}, 0xffff0000, v{RES+1}')
            a(f'v_lshlrev_b32 v{EXL+4}, 16, v{EXL}'); a(f'v_and_b32 v{EXL+5}, 0xffff0000, v{EXL}')
            a(f'v_lshlrev_b32 v{EXL+6}, 16, v{EXL+2}'); a(f'v_and_b32 v{EXL+7}, 0xffff0000, v{EXL+2}')
            pk(EXL + 4, EXL + 4, EXL + 8); pk(EXL + 6, EXL + 6, EXL + 10)
            a(f's_lshl_b32 {T2}, s{S_SEG}, 16')
            if prev: a(f's_sub_u32 {T2}, {T2}, 65536')
            a(f'v_cvt_pk_bf16_f32 v{EXL}, v{EXL+4}, v{EXL+5}'); a(f'v_cvt_pk_bf16_f32 v{EXL+1}, v{EXL+6}, v{EXL+7}')
            if kind == 'WO':
                a(f'buffer_store_dwordx2 v[{EXL}:{EXL+1}], v{VFM}, s[{SRES}:{SRES+3}], {T2} offen sc1')
            else:
                a(f'buffer_store_dwordx2 v[{EXL}:{EXL+1}], v{VRM}, s[{SRES}:{SRES+3}], {T2} offen')
            ex_store(a, [f'buffer_store_dwordx4 v[{VNEG}:{VNEG+3}], v{VEX}, s[{SO}:{SO+3}], s{S_E0+s_} offen' for s_ in range(4)])
        def next_ready(dst, val):
            flag_test(a, VPF, pw, t1)
            a(f's_cmp_eq_u64 vcc, 0'); a(f's_cselect_b32 {dst}, {val}, 0')
            a(f's_cmp_ge_u32 s{S_SEG}, {nseg - 1}'); a(f's_cselect_b32 {dst}, 0, {dst}')

        if PIPE2:
            HASFLAG = kind != 'DN'
            NEEDACK = HASFLAG or mega.TL
            n1 = 8; n2 = nd - n1
            S_PEND = 55
            tl_stamp(a, TLV[2], 2)
            if prof:
                for i in range(12): a(f's_mov_b32 s{60+i}, 0')
                a('s_memtime s[56:57]'); a('s_waitcnt lgkmcnt(0)'); a('s_mov_b32 s58, s56')
            for r in range(pw): a(f'v_mov_b32 v{VPF+r}, 0')
            a.label(top)
            a(f's_cmp_eq_u32 {E}, 1'); a(f's_cbranch_scc1 {have}')
            if not GU:
                a(f's_cmp_eq_u32 {E}, 2'); a(f's_cbranch_scc1 {have}')
            lp, iss = f'{N}_PL', f'{N}_ISS'
            seg_foff(a)
            a.label(lp)
            flag_test(a, VPF, pw, t1)
            a(f's_cbranch_vccz {iss}')
            a(f's_cmp_eq_u32 s{S_BUDW}, 0'); a(f's_cbranch_scc1 {iss}')
            a(f's_sub_u32 s{S_BUDW}, s{S_BUDW}, 1')
            flag_load(a, VPA, VPF, pw)
            a('s_waitcnt vmcnt(0)')
            a(f's_branch {lp}')
            a.label(iss)
            ST(5)
            xdma(0, n1)
            if NEEDACK:
                a(f's_cmp_eq_u32 {E}, 3'); a(f's_cbranch_scc0 {have}')
                a(f's_waitcnt vmcnt({n1 + (1 if PF else 0) + (0 if GU else 4)})')
                if HASFLAG: flag(True)
                done_stamp(True)
            a.label(have)
            tl_stamp(a, TLV[0])
            ST(0)
            if GU:
                for r in (SA, SB_, QA, QB): a(f'v_mov_b32 v{r}, 0')
            lq = LQ(a)
            pos = 0
            def nextload():
                seg_foff(a, 1)
                flag_load(a, VPA, VPF, pw)
            for c in range(4):
                need = (bounds[c + 1] + 3) // 4
                lj = a.newlabel(N + '_CJ')
                if c < 2:
                    base = n1 - 4 if c == 0 else n2
                    l1, l3, l0 = (a.newlabel(N + x) for x in ('_C1', '_C3', '_C0'))
                    a(f's_cmp_eq_u32 {E}, 1'); a(f's_cbranch_scc1 {l1}')
                    if HASFLAG and c == 0:
                        a(f's_cmp_eq_u32 {E}, 3'); a(f's_cbranch_scc1 {l3}')
                    if c == 0:
                        a(f's_waitcnt vmcnt({base})')
                    else:
                        if HASFLAG:
                            a(f's_cmp_eq_u32 {E}, 3'); a(f's_cbranch_scc1 {l3}')
                        a(f's_waitcnt vmcnt({base})')
                        if not GU:
                            a(f's_cmp_eq_u32 {E}, 2'); a(f's_cbranch_scc0 {lj}')
                            ex_loads()
                    a(f's_branch {lj}')
                    if HASFLAG:
                        a.label(l3)
                        a(f's_waitcnt vmcnt({base + 1})')
                        a(f's_branch {lj}')
                    a.label(l1)
                    if c == 0:
                        a(f's_waitcnt vmcnt({base + nxs})')
                    elif GU:
                        a(f's_waitcnt vmcnt({base})')
                        flag(True); done_stamp(True)
                    else:
                        a(f's_waitcnt vmcnt({base + nxs})')
                        ex_loads()
                    a.label(lj)
                    if c == 1: nextload()
                elif c == 2:
                    lp_ = a.newlabel(N + '_C2')
                    if GU:
                        a(f's_cmp_eq_u32 {E}, 1'); a(f's_cbranch_scc1 {lp_}')
                        a(f's_waitcnt vmcnt({nd - need + 1})')
                        a(f's_branch {lj}')
                        a.label(lp_)
                        a(f's_waitcnt vmcnt({nd - need + 2})')
                    else:
                        a(f's_sub_u32 {T0}, {E}, 1'); a(f's_cmp_lt_u32 {T0}, 2'); a(f's_cbranch_scc1 {lp_}')
                        a(f's_waitcnt vmcnt({nd - need + 1})')
                        a(f's_branch {lj}')
                        a.label(lp_)
                        ex_finish(True)
                    a.label(lj)
                else:
                    if GU:
                        a('s_waitcnt vmcnt(0)')
                    else:
                        a(f's_sub_u32 {T0}, {E}, 1'); a(f's_cmp_lt_u32 {T0}, 2'); a(f's_cselect_b32 s{S_PEND}, 1, 0')
                        a(f's_cbranch_scc1 {lj}')
                        a('s_waitcnt vmcnt(0)')
                        a.label(lj)
                    next_ready(E, 1)
                a('s_barrier')
                if c == 0: ST(1)
                if c == 1: ST(10)
                if c == 2: ST(11)
                if c == 3: ST(2)
                SP = [0] + [bounds[k] - D for k in (1, 2, 3)] + [NT]
                if c == 0:
                    if STREAM:
                        sw = [(i, i, d) for i, kb in enumerate(ks_all) if (kb & 3) == 0 for d in range(4)] if GU else []
                        for i in range(D): lq.op(rd(ks_all[i], i), ('x', i))
                        stream(SP[0], SP[1], lq, sw, dma_groups(0, n1, nd))
                    else:
                        pro(c, lq, pos)
                        body(c, lq, pos, dma_groups(0, n1, nd))
                elif c < 3:
                    if STREAM: stream(SP[c], SP[c + 1], lq, sw)
                    else:
                        pro(c, lq, pos)
                        body(c, lq, pos)
                else:
                    def pub(cnt):
                        if kind == 'WO' or (kind == 'DN' and mega.TL):
                            l0 = a.newlabel(N + '_NF')
                            a(f's_cmp_eq_u32 s{S_PEND}, 0'); a(f's_cbranch_scc1 {l0}')
                            a(f's_waitcnt vmcnt({cnt})')
                            if kind == 'WO': flag(True)
                            done_stamp(True)
                            a.label(l0)
                    if not GU:
                        a(f's_lshl_b32 {T2}, s{S_SEG}, 16')
                        a(f'buffer_load_dwordx2 v[{RES}:{RES+1}], v{VRM if kind == "WO" else VFM}, s[{SR}:{SR+3}], {T2} offen')
                    if not STREAM: pro(c, lq, pos)
                    if prof: a(f's_add_u32 s70, s70, {E}')
                    lb, lj = f'{N}_LB', f'{N}_LJ'
                    a(f's_cmp_eq_u32 {E}, 0'); a(f's_cbranch_scc1 {lb}')
                    lqa = LQ(a); lqa.q = list(lq.q)
                    if STREAM: stream(SP[3], SP[4], lqa, list(sw), dma_groups(1, 0, n1))
                    else: body(c, lqa, pos, dma_groups(1, 0, n1))
                    pub(4 + 1 + (1 if PF else 0) + n1)
                    a(f's_branch {lj}')
                    a.label(lb)
                    nextload()
                    if STREAM: stream(SP[3], SP[4], lq, sw)
                    else: body(c, lq, pos)
                    pub(4 + 1 + 1)
                    a.label(lj)
                pos += len(order(c))
                if not STREAM: lq.q = []
        else:
          old_head()
        ST(3)
        fin = f'{N}_FIN'
        if GU:
            a(f's_mul_i32 {T2}, s{S_SEG}, {ostride}'); a(f's_add_u32 {T2}, {T2}, s{S_OO}')
            for j in range(4): a(f'v_xor_b32 v{VXR[j]}, 0x10000, v{VXR[j]}')
            a('s_nop 7'); a('s_nop 4')
            for r in range(0, 16, 2):
                a(f'v_pk_add_f32 v[{AC0+r}:{AC0+r+1}], v[{AC0+r}:{AC0+r+1}], v[{AC1+r}:{AC1+r+1}]')
            for r in range(0, 16, 2):
                a(f'v_pk_fma_f32 v[{AC0+r}:{AC0+r+1}], v[{CS+r}:{CS+r+1}], v[{NMU}:{NMU+1}], v[{AC0+r}:{AC0+r+1}] op_sel_hi:[1,0,1] neg_lo:[0,1,0] neg_hi:[0,1,0]')
            for r in range(0, 16, 2):
                a(f'v_pk_mul_f32 v[{AC0+r}:{AC0+r+1}], v[{AC0+r}:{AC0+r+1}], v[{RSTD}:{RSTD+1}] op_sel_hi:[1,0]')
            G, U, T = AC0, AC0 + 8, TMP
            for r in range(8):
                a(f'v_cvt_pk_bf16_f32 v{T+r}, v{AC0+2*r}, v{AC0+2*r+1}')
            for r in range(4):
                a(f'v_lshlrev_b32 v{G+2*r}, 16, v{T+r}'); a(f'v_and_b32 v{G+2*r+1}, 0xffff0000, v{T+r}')
            for r in range(8): a(f'v_mul_f32 v{G+r}, 0xbfb8aa3b, v{G+r}')
            for r in range(4):
                a(f'v_lshlrev_b32 v{U+2*r}, 16, v{T+4+r}'); a(f'v_and_b32 v{U+2*r+1}, 0xffff0000, v{T+4+r}')
            for r in range(8): a(f'v_exp_f32 v{G+r}, v{G+r}')
            for r in range(8): a(f'v_add_f32 v{G+r}, 1.0, v{G+r}')
            for r in range(8): a(f'v_rcp_f32 v{G+r}, v{G+r}')
            a('s_nop 0')
            for r in range(4): a(f'v_cvt_pk_bf16_f32 v{T+r}, v{G+2*r}, v{G+2*r+1}')
            for r in range(4):
                a(f'v_lshlrev_b32 v{G+2*r}, 16, v{T+r}'); a(f'v_and_b32 v{G+2*r+1}, 0xffff0000, v{T+r}')
            for r in range(8): a(f'v_mul_f32 v{G+r}, v{G+r}, v{U+r}')
            for r in range(4): a(f'v_cvt_pk_bf16_f32 v{T+r}, v{G+2*r}, v{G+2*r+1}')
            i = f'buffer_store_dwordx4 v[{T}:{T+3}], v{L16}, s[{SO}:{SO+3}], {T2} offen'
            if mega.PLACE: mode_store(a, [i])
            else: a(i + ' sc1')
            ST(4)
            a(f's_cmp_lg_u32 {E}, 0'); a(f's_cbranch_scc1 {fin}')
            if PIPE2:
                a('s_waitcnt vmcnt(1)')
                next_ready(E, 3)
                a(f's_cmp_lg_u32 {E}, 0'); a(f's_cbranch_scc1 {fin}')
                seg_foff(a, 1)
                flag_load(a, VPA, VPF, pw)
            a('s_waitcnt vmcnt(0)')
            flag(False); done_stamp(False)
            a.label(fin)
        else:
            a(f's_and_b32 s{S_SLOT}, s{S_SEG}, 1'); a(f's_lshl_b32 s{S_SLOT}, s{S_SLOT}, 19')
            a(f's_add_u32 {T2}, s{S_SLOT}, s{S_OO}')
            a(f'v_xor_b32 v{VXR[0]}, 0x10000, v{VXR[0]}')
            a('s_nop 7'); a('s_nop 4')
            for r in range(0, 16, 2):
                a(f'v_pk_add_f32 v[{AC0+r}:{AC0+r+1}], v[{AC0+r}:{AC0+r+1}], v[{AC1+r}:{AC1+r+1}]')
            ex_store(a, [f'buffer_store_dwordx4 v[{AC0+4*q}:{AC0+4*q+3}], v{L16}, s[{SO}:{SO+3}], {T2} offen offset:{q*1024}' for q in range(4)])
            a(f's_add_u32 s{S_E0}, s{S_SLOT}, s{S_EXL}')
            for s_ in range(1, 4): a(f's_add_u32 s{S_E0+s_}, s{S_E0}, {4096*s_}')
            ST(4)
            a(f's_cmp_lg_u32 {E}, 0'); a(f's_cbranch_scc1 {fin}')
            if PIPE2:
                late, lp, exok = f'{N}_LATE', f'{N}_XL', f'{N}_XOK'
                if kind == 'WO':
                    w4, w5 = a.newlabel(N + '_W4'), a.newlabel(N + '_W5')
                    a(f's_cmp_eq_u32 s55, 0'); a(f's_cbranch_scc1 {w4}')
                    a('s_waitcnt vmcnt(5)'); a(f's_branch {w5}')
                    a.label(w4); a('s_waitcnt vmcnt(4)'); a.label(w5)
                else:
                    a('s_waitcnt vmcnt(4)')
                next_ready(E, 2)
                a(f's_cmp_lg_u32 {E}, 0'); a(f's_cbranch_scc1 {late}')
                seg_foff(a, 1)
                a.label(lp)
                ex_loads()
                flag_load(a, VPA, VPF, pw)
                a('s_waitcnt vmcnt(0)')
                ex_check()
                a(f's_cbranch_vccz {exok}')
                next_ready(E, 2)
                a(f's_cmp_lg_u32 {E}, 0'); a(f's_cbranch_scc1 {late}')
                a(f's_cmp_eq_u32 s{S_BUDW}, 0'); a(f's_cbranch_scc1 {exok}')
                a(f's_sub_u32 s{S_BUDW}, s{S_BUDW}, 1')
                a(f's_branch {lp}')
                a.label(late)
                xdma(1, n1)
                a(f's_branch {fin}')
                a.label(exok)
                ex_fin(False)
                ST(6)
                if NEEDACK:
                    next_ready(E, 3)
                    a(f's_cmp_lg_u32 {E}, 0'); a(f's_cbranch_scc1 {fin}')
                    a('s_waitcnt vmcnt(4)')
                    if kind == 'WO': flag(False)
                    done_stamp(False)
            else:
                ex_loads()
                ex_finish(False)
                ST(6)
                if kind == 'WO' or mega.TL: a('s_waitcnt vmcnt(0)')
                if kind == 'WO': flag(False)
                done_stamp(False)
            a.label(fin)
        ST(7)
        a(f's_add_u32 s{S_SEG}, s{S_SEG}, 1')
        a(f's_cmp_lt_u32 s{S_SEG}, {nseg}'); a(f's_cbranch_scc1 {top}')

    assert PIPE or not mega.PLACE
    if PIPE:
        pipe_loop()
    else:
        top, have = f'{N}_TOP', f'{N}_HAVE'
        tl_stamp(a, TLV[2], 2)
        if prof:
            for i in range(12): a(f's_mov_b32 s{60+i}, 0')
            a('s_memtime s[56:57]'); a('s_waitcnt lgkmcnt(0)'); a('s_mov_b32 s58, s56')
        a.label(top)
        a(f's_cmp_lg_u32 s{S_EARLY}, 0'); a(f's_cbranch_scc1 {have}')
        nw = f'{N}_NW0'
        a(f's_cmp_lg_u32 {W}, 0'); a(f's_cbranch_scc1 {nw}')
        seg_foff(a)
        poll(a, N + '_P', VPA, VPF, pw, t1)
        a.label(nw)
        a('s_barrier')
        xdma(0)
        a.label(have)
        tl_stamp(a, TLV[0])
        ST(0)
        nw2 = f'{N}_NW1'
        a(f's_cmp_lg_u32 {W}, 0'); a(f's_cbranch_scc1 {nw2}')
        seg_foff(a, 1)
        flag_load(a, VPA, VPF, pw)
        a.label(nw2)
        if GU:
            for r in (SA, SB_, QA, QB): a(f'v_mov_b32 v{r}, 0')
        bounds = [0, 16, 32, 48, nk] if nk == 64 else [0, 16, 32, 44, 56]
        lq = LQ(a)
        pos = 0
        def rd(kb, slot):
            r = XF + 4 * (slot % NR)
            if GU: return f'ds_read_b128 v[{r}:{r+3}], v{VXR[kb & 3]} offset:{(kb & ~3) * 1024}'
            return f'ds_read_b128 v[{r}:{r+3}], v{VXR[0]} offset:{kb * 1024}'
        def mf(kb, slot):
            r = XF + 4 * (slot % NR); ac = AC0 if slot % 2 == 0 else AC1
            c = '0' if slot < 2 else f'v[{ac}:{ac+15}]'
            return f'v_mfma_f32_32x32x16_bf16 v[{ac}:{ac+15}], a[{4*kb}:{4*kb+3}], v[{r}:{r+3}], {c}'
        def stats(slot, i):
            r = XF + 4 * (slot % NR) + i
            lo, hi = UL + 2 * (i & 1), UH + 2 * (i & 1)
            a(f'v_lshlrev_b32 v{lo}, 16, v{r}'); a(f'v_and_b32 v{hi}, 0xffff0000, v{r}')
            a(f'v_fmac_f32 v{QA}, v{lo}, v{lo}'); a(f'v_add_f32 v{SA}, v{SA}, v{lo}')
            a(f'v_fmac_f32 v{QB}, v{hi}, v{hi}'); a(f'v_add_f32 v{SB_}, v{SB_}, v{hi}')
        for c in range(4):
            k0, k1 = bounds[c], bounds[c + 1]
            need = (k1 + 3) // 4
            a(f's_waitcnt vmcnt({nd - need})')
            last = c == 3
            if last:
                nw3 = f'{N}_NW2'
                a(f's_cmp_lg_u32 {W}, 0'); a(f's_cbranch_scc1 {nw3}')
                a('s_waitcnt vmcnt(0)')
                flag_test(a, VPF, pw, t1)
                a(f's_cmp_eq_u64 vcc, 0'); a(f's_cselect_b32 {T0}, 1, 0')
                a(f'v_mov_b32 v{t1}, {T0}')
                a(f'ds_write_b32 v{VOUT}, v{t1}')
                a('s_waitcnt lgkmcnt(0)')
                a.label(nw3)
            a('s_barrier')
            if c == 0: ST(1)
            if last: ST(2)
            if last:
                lq.op(f'ds_read_b32 v{t2}, v{VOUT}', 'early')
                if not GU:
                    a(f's_lshl_b32 {T2}, s{S_SEG}, 16')
                    a(f'buffer_load_dwordx2 v[{RES}:{RES+1}], v{VRM if kind == "WO" else VFM}, s[{SR}:{SR+3}], {T2} offen')
            D = 6
            ks = list(range(k0, k1))
            if GU and last:
                ks = [48, 52, 56, 60] + [k for k in ks if k & 3]
            base = pos
            sw = []
            if GU:
                for i, kb in enumerate(ks):
                    if (kb & 3) == 0: sw += [(i, base + i, d) for d in range(4)]
            per_gap = 2 if (GU and last) else 1
            for i in range(D): lq.op(rd(ks[i], base + i), ('x', base + i))
            for i, kb in enumerate(ks):
                lq.wait(('x', base + i))
                a(mf(kb, base + i))
                n = 0
                while sw and sw[0][0] <= i and n < per_gap:
                    assert i - (sw[0][1] - base) <= NR - D - 1
                    stats(sw[0][1], sw[0][2]); sw.pop(0); n += 1
                if i + D < len(ks): lq.op(rd(ks[i + D], base + i + D), ('x', base + i + D))
                if GU and last:
                    if i == 8:
                        assert not sw
                        a(f'v_add_f32 v{SA}, v{SA}, v{SB_}'); a(f'v_add_f32 v{QA}, v{QA}, v{QB}')
                        a('s_nop 1')
                        a(f'v_permlane32_swap_b32 v{SA}, v{QA}')
                        a('s_nop 1')
                        a(f'v_add_f32 v{SA}, v{SA}, v{QA}')
                        lq.op(f'ds_write_b32 v{VSTW}, v{SA}', 'stw')
                    if i == 9:
                        lq.wait('stw')
                        a('s_barrier')
                        for w in range(4):
                            lq.op(f'ds_read2_b32 v[{STT+2*w}:{STT+2*w+1}], v{VSTR} offset0:{64*w} offset1:{64*w+32}', ('st', w))
                    if i == 12:
                        lq.wait(('st', 3))
                        for (d, x, y) in [(0, 0, 2), (1, 1, 3), (4, 4, 6), (5, 5, 7), (0, 0, 4), (1, 1, 5)]:
                            a(f'v_add_f32 v{STT+d}, v{STT+x}, v{STT+y}')
                        a(f'v_mul_f32 v{NMU}, 0x3a800000, v{STT}')
                        a(f'v_mul_f32 v{RSTD}, 0x3a800000, v{STT+1}')
                    if i == 13:
                        a(f'v_fma_f32 v{RSTD}, -v{NMU}, v{NMU}, v{RSTD}')
                        a(f'v_max_f32 v{RSTD}, 0, v{RSTD}')
                        bf16_round(a, RSTD, RSTD)
                        a(f'v_add_f32 v{RSTD}, 0x3727c5ac, v{RSTD}')
                        bf16_round(a, RSTD, RSTD)
                    if i == 14:
                        a(f'v_sqrt_f32 v{RSTD}, v{RSTD}')
                        bf16_round(a, NMU, NMU)
                        bf16_round(a, RSTD, RSTD)
                        a(f'v_rcp_f32 v{RSTD}, v{RSTD}')
            assert not sw
            pos += len(ks)
            lq.q = []
        ST(3)
        a(f'v_readfirstlane_b32 s{S_EARLY}, v{t2}')
        if prof: a(f's_add_u32 s70, s70, s{S_EARLY}')
        a(f's_cmp_ge_u32 s{S_SEG}, {nseg - 1}'); a(f's_cselect_b32 s{S_EARLY}, 0, s{S_EARLY}')
        late, fin = f'{N}_LATE', f'{N}_FIN'
        if GU:
            a(f's_mul_i32 {T2}, s{S_SEG}, {ostride}'); a(f's_add_u32 {T2}, {T2}, s{S_OO}')
            for j in range(4): a(f'v_xor_b32 v{VXR[j]}, 0x10000, v{VXR[j]}')
            a('s_nop 7'); a('s_nop 4')
            for r in range(0, 16, 2):
                a(f'v_pk_add_f32 v[{AC0+r}:{AC0+r+1}], v[{AC0+r}:{AC0+r+1}], v[{AC1+r}:{AC1+r+1}]')
            for r in range(0, 16, 2):
                a(f'v_pk_fma_f32 v[{AC0+r}:{AC0+r+1}], v[{CS+r}:{CS+r+1}], v[{NMU}:{NMU+1}], v[{AC0+r}:{AC0+r+1}] op_sel_hi:[1,0,1] neg_lo:[0,1,0] neg_hi:[0,1,0]')
            for r in range(0, 16, 2):
                a(f'v_pk_mul_f32 v[{AC0+r}:{AC0+r+1}], v[{AC0+r}:{AC0+r+1}], v[{RSTD}:{RSTD+1}] op_sel_hi:[1,0]')
            G, U, T = AC0, AC0 + 8, TMP
            for r in range(8):
                a(f'v_cvt_pk_bf16_f32 v{T+r}, v{AC0+2*r}, v{AC0+2*r+1}')
            for r in range(4):
                a(f'v_lshlrev_b32 v{G+2*r}, 16, v{T+r}'); a(f'v_and_b32 v{G+2*r+1}, 0xffff0000, v{T+r}')
            for r in range(8): a(f'v_mul_f32 v{G+r}, 0xbfb8aa3b, v{G+r}')
            for r in range(4):
                a(f'v_lshlrev_b32 v{U+2*r}, 16, v{T+4+r}'); a(f'v_and_b32 v{U+2*r+1}, 0xffff0000, v{T+4+r}')
            for r in range(8): a(f'v_exp_f32 v{G+r}, v{G+r}')
            for r in range(8): a(f'v_add_f32 v{G+r}, 1.0, v{G+r}')
            for r in range(8): a(f'v_rcp_f32 v{G+r}, v{G+r}')
            a('s_nop 0')
            for r in range(4): a(f'v_cvt_pk_bf16_f32 v{T+r}, v{G+2*r}, v{G+2*r+1}')
            for r in range(4):
                a(f'v_lshlrev_b32 v{G+2*r}, 16, v{T+r}'); a(f'v_and_b32 v{G+2*r+1}, 0xffff0000, v{T+r}')
            for r in range(8): a(f'v_mul_f32 v{G+r}, v{G+r}, v{U+r}')
            for r in range(4): a(f'v_cvt_pk_bf16_f32 v{T+r}, v{G+2*r}, v{G+2*r+1}')
            a(f'buffer_store_dwordx4 v[{T}:{T+3}], v{L16}, s[{SO}:{SO+3}], {T2} offen sc1')
            a(f's_cmp_eq_u32 s{S_EARLY}, 0'); a(f's_cbranch_scc1 {late}')
            xdma(1)
            a(f's_waitcnt vmcnt({nd})')
            a(f's_branch {fin}')
            a.label(late)
            a('s_waitcnt vmcnt(0)')
            a.label(fin)
            ST(7)
            set_flag(a, VFA, VONE, fo)
        else:
            S_SLOT = 48
            a(f's_and_b32 s{S_SLOT}, s{S_SEG}, 1'); a(f's_lshl_b32 s{S_SLOT}, s{S_SLOT}, 19')
            a(f's_add_u32 {T2}, s{S_SLOT}, s{S_OO}')
            a(f'v_xor_b32 v{VXR[0]}, 0x10000, v{VXR[0]}')
            a('s_nop 7'); a('s_nop 4')
            for r in range(0, 16, 2):
                a(f'v_pk_add_f32 v[{AC0+r}:{AC0+r+1}], v[{AC0+r}:{AC0+r+1}], v[{AC1+r}:{AC1+r+1}]')
            mode_store(a, [f'buffer_store_dwordx4 v[{AC0+4*q}:{AC0+4*q+3}], v{L16}, s[{SO}:{SO+3}], {T2} offen offset:{q*1024}' for q in range(4)])
            ST(4)
            a(f's_add_u32 s{S_E0}, s{S_SLOT}, s{S_EXL}')
            for s_ in range(1, 4): a(f's_add_u32 s{S_E0+s_}, s{S_E0}, {4096*s_}')
            lp = a.newlabel(N + '_X'); dn = lp + '_D'
            a.label(lp)
            for s_ in range(4):
                a(f'buffer_load_dwordx4 v[{EXL+4*s_}:{EXL+4*s_+3}], v{VEX}, s[{SO}:{SO+3}], s{S_E0+s_} offen sc1')
            a('s_waitcnt vmcnt(0)')
            rc.max_chain(a, t1, list(range(EXL, EXL + 16)))
            a(f'v_cmp_eq_u32 vcc, -1, v{t1}')
            budget(a, lp, dn)
            ST(5)
            mode_store(a, [f'buffer_store_dwordx4 v[{VNEG}:{VNEG+3}], v{VEX}, s[{SO}:{SO+3}], s{S_E0+s_} offen' for s_ in range(4)])
            pk = lambda d, x, y: a(f'v_pk_add_f32 v[{d}:{d+1}], v[{x}:{x+1}], v[{y}:{y+1}]')
            pk(EXL, EXL, EXL + 4); pk(EXL + 2, EXL + 2, EXL + 6); pk(EXL + 8, EXL + 8, EXL + 12); pk(EXL + 10, EXL + 10, EXL + 14)
            pk(EXL, EXL, EXL + 8); pk(EXL + 2, EXL + 2, EXL + 10)
            a(f'v_lshlrev_b32 v{EXL+8}, 16, v{RES}'); a(f'v_and_b32 v{EXL+9}, 0xffff0000, v{RES}')
            a(f'v_cvt_pk_bf16_f32 v{EXL}, v{EXL}, v{EXL+1}'); a(f'v_cvt_pk_bf16_f32 v{EXL+2}, v{EXL+2}, v{EXL+3}')
            a(f'v_lshlrev_b32 v{EXL+10}, 16, v{RES+1}'); a(f'v_and_b32 v{EXL+11}, 0xffff0000, v{RES+1}')
            a(f'v_lshlrev_b32 v{EXL+4}, 16, v{EXL}'); a(f'v_and_b32 v{EXL+5}, 0xffff0000, v{EXL}')
            a(f'v_lshlrev_b32 v{EXL+6}, 16, v{EXL+2}'); a(f'v_and_b32 v{EXL+7}, 0xffff0000, v{EXL+2}')
            pk(EXL + 4, EXL + 4, EXL + 8); pk(EXL + 6, EXL + 6, EXL + 10)
            a(f's_lshl_b32 {T2}, s{S_SEG}, 16')
            a(f'v_cvt_pk_bf16_f32 v{EXL}, v{EXL+4}, v{EXL+5}'); a(f'v_cvt_pk_bf16_f32 v{EXL+1}, v{EXL+6}, v{EXL+7}')
            if kind == 'WO':
                a(f'buffer_store_dwordx2 v[{EXL}:{EXL+1}], v{VFM}, s[{SRES}:{SRES+3}], {T2} offen sc1')
            else:
                a(f'buffer_store_dwordx2 v[{EXL}:{EXL+1}], v{VRM}, s[{SRES}:{SRES+3}], {T2} offen')
            ST(6)
            a(f's_cmp_eq_u32 s{S_EARLY}, 0'); a(f's_cbranch_scc1 {late}')
            xdma(1)
            if kind == 'WO': a(f's_waitcnt vmcnt({nd})')
            a(f's_branch {fin}')
            a.label(late)
            if kind == 'WO' or mega.TL: a('s_waitcnt vmcnt(0)')
            a.label(fin)
            ST(7)
            if kind == 'WO': set_flag(a, VFA, VONE, fo)
        tl_stamp(a, TLV[1])
        a(f's_add_u32 s{S_SEG}, s{S_SEG}, 1')
        a(f's_cmp_lt_u32 s{S_SEG}, {nseg}'); a(f's_cbranch_scc1 {top}')
    tl_dump(a, TLV + [243])
    if prof:
        a('s_waitcnt vmcnt(0)')
        a.srd(4, S_PWS, 1 << 20, add=0xF200000)
        a(f's_lshl_b32 {T0}, s{S_WID}, 2'); a(f's_add_u32 {T0}, {T0}, {W}'); a(f's_lshl_b32 {T0}, {T0}, 6')
        a('v_mov_b32 v1, 0')
        a('s_mov_b64 exec, 1')
        for i in range(11):
            a(f'v_mov_b32 v2, s{60+i}')
            a(f'buffer_store_dword v2, v1, s[4:7], {T0} offen offset:{4*i}')
        a('s_mov_b64 exec, -1')
        a('s_waitcnt vmcnt(0)')
```

```python
from asmlib import *
import mega, k_recc as rc
from mega import *
from mega import tl_stamp, tl_init, tl_dump

F_XW, F_XD = 1024, 2560
L_ST = 0x20000

class LQ:
    def __init__(self, a): self.a = a; self.q = []
    def op(self, s, tag=None): self.a(s); self.q.append(tag)
    def wait(self, tag):
        i = max(k for k, t in enumerate(self.q) if t == tag)
        n = len(self.q) - 1 - i
        assert n <= 15
        self.a(f's_waitcnt lgkmcnt({n})')
    def drain(self): self.a('s_waitcnt lgkmcnt(0)'); self.q = []

def ex_store(a, instrs):
    if mega.PLACE:
        for i in instrs: a(i + ' sc1')
    else: mode_store(a, instrs)

PROF = False
PIPE = True
PIPE2 = True
TLLITE = False
TLFROM = 56
STREAM = True
RDFIRST = True
WEVERY = 4
TLX2 = False
PF = True
def role_gemmx(a, kind, nseg=64):
    N = kind
    prof = PROF
    def ST(i):
        if TLX2:
            if i in (5, 6): return
            if i >= 10: i -= 5
        elif i >= 10: return
        if mega.TL and PIPE and not TLLITE:
            l0 = a.newlabel('TLX')
            a(f's_cmp_lt_u32 s{S_SEG}, {TLFROM}'); a(f's_cbranch_scc1 {l0}')
            a('s_memrealtime s[88:89]'); a(f's_sub_u32 m0, s{S_SEG}, 56'); a('s_lshl_b32 m0, m0, 3'); a(f's_add_u32 m0, m0, {i}')
            a('s_waitcnt lgkmcnt(0)'); a('v_writelane_b32 v243, s88, m0')
            a.label(l0)
        if not prof: return
        a('s_memtime s[56:57]'); a('s_waitcnt lgkmcnt(0)')
        a('s_sub_u32 s59, s56, s58'); a(f's_add_u32 s{60+i}, s{60+i}, s59'); a('s_mov_b32 s58, s56')
    GU = kind == 'GU'
    KS_, CB_ = 28, 29
    nk = 56 if kind == 'DN' else 64
    nch = nk // 8
    nd = nk // 4
    SW, SX, SO = 4, 8, 12
    SR, SRES = 4, S_OSRD
    T0, T1, T2 = f's{S_T0}', f's{S_T1}', f's{S_T2}'
    W = f's{S_WAVE}'
    LN, L16, VD, VT_, t1, t2 = 1, 2, 3, 4, 5, 6
    VPA, VPF, VFA, VONE, VOUT = 8, 12, 16, 17, 18
    VXR = [7, 9, 10, 11]
    XF = 160 if GU else 20
    NR = 12 if GU else 8
    AC0, AC1 = 52, 68
    TMP = 84
    CS = 100
    SA, SB_, QA, QB = 116, 117, 118, 119
    UL, UH = 20, 21
    VNEG = 160
    S_E0 = 49
    VONES, VSTW, VSTR = 120, 121, 122
    NMU, RSTD = 124, 126
    STT = 128
    VEX, VXF, VXP, VFM, VRM = 136, 137, 138, 139, 140
    RES = 142
    EXL = 144
    a(f's_load_dwordx2 s[{S_PWS}:{S_PWS+1}], s[0:1], {KA_WS}')
    if GU:
        a(f's_load_dwordx2 s[{S_PW}:{S_PW+1}], s[0:1], {KA_WG}')
        a(f's_load_dwordx2 s[40:41], s[0:1], {KA_WU}')
    else:
        a(f's_load_dwordx2 s[{S_PW}:{S_PW+1}], s[0:1], {KA_WO if kind == "WO" else KA_WD}')
        a(f's_load_dwordx2 s[40:41], s[0:1], {KA_X if kind == "WO" else KA_OUT}')
    a(f'v_and_b32 v{LN}, 63, v0')
    a(f'v_lshlrev_b32 v{L16}, 4, v{LN}')
    a('s_waitcnt lgkmcnt(0)')
    if GU:
        a(f's_cmp_ge_u32 {W}, 2')
        a(f's_cselect_b32 s{S_PW}, s40, s{S_PW}')
        a(f's_cselect_b32 s{S_PW+1}, s41, s{S_PW+1}')
    a.srd(SW, S_PW, (8 if kind == 'WO' else 7) * MB)
    xo, xb = {'WO': (WS_OF, 16*MB), 'GU': (WS_HB, 4*MB), 'DN': (WS_ACT, 14*MB)}[kind]
    a.srd(SX, S_PWS, xb, add=xo)
    oo, ob = {'WO': (WS_P1, MB), 'GU': (WS_ACT, 14*MB), 'DN': (WS_P2, MB)}[kind]
    a.srd(SO, S_PWS, ob, add=oo)
    if kind == 'WO':   a.srd(SRES, S_PWS, 4*MB, add=WS_HB)
    elif kind == 'DN': a.srd(SRES, 40, 4*MB)
    S_GO, S_M0 = 42, 43
    if GU:
        a(f'v_lshrrev_b32 v{t1}, 3, v{LN}'); a(f'v_mul_u32_u24 v{VD}, 7168, v{t1}')
        a(f'v_and_b32 v{t1}, 7, v{LN}'); a(f'v_lshl_add_u32 v{VD}, v{t1}, 4, v{VD}')
        a(f's_lshl_b32 {T0}, s{CB_}, 7')
        a(f's_and_b32 {T1}, {W}, 1'); a(f's_mul_i32 {T1}, {T1}, {64*7168}')
        a(f's_add_u32 s{S_GO}, {T0}, {T1}')
        a(f's_lshl_b32 s{S_M0}, {W}, 13')
        istep, cstep = 8 * 7168, 128 * 7168
        a(f'v_bfe_u32 v{t1}, v{LN}, 2, 2'); a(f'v_lshrrev_b32 v{t2}, 5, v{LN}')
        a(f'v_lshl_add_u32 v{t1}, v{t2}, 2, v{t1}'); a(f'v_lshlrev_b32 v{VT_}, 7, v{t1}')
        a(f'v_bfe_u32 v{t1}, v{LN}, 4, 1'); a(f'v_lshl_add_u32 v{VT_}, v{t1}, 14, v{VT_}')
        a(f'v_and_b32 v{t1}, 3, v{LN}'); a(f'v_lshl_add_u32 v{VT_}, v{t1}, 3, v{VT_}')
        a(f's_lshl_b32 {T0}, {W}, 5'); a(f'v_add_u32 v{VT_}, {T0}, v{VT_}')
        kkoff, h2off = 2048, 1024
    else:
        rows0 = 1024 if kind == 'WO' else 896
        a(f'v_lshrrev_b32 v{t1}, 4, v{LN}'); a(f'v_lshlrev_b32 v{t2}, 2, v{t1}')
        a(f'v_and_b32 v{VD}, 15, v{LN}'); a(f'v_xor_b32 v{VD}, v{VD}, v{t2}'); a(f'v_lshlrev_b32 v{VD}, 4, v{VD}')
        a(f'v_lshl_add_u32 v{VD}, v{t1}, 11, v{VD}')
        a(f's_mul_i32 {T0}, s{KS_}, {rows0 * 2048}'); a(f's_lshl_b32 {T1}, s{CB_}, 8'); a(f's_add_u32 {T0}, {T0}, {T1}')
        a(f's_lshl_b32 {T1}, {W}, 16'); a(f's_add_u32 s{S_GO}, {T0}, {T1}')
        a(f's_lshl_b32 s{S_M0}, {W}, 13')
        istep, cstep = 4 * 2048, 128 * 2048
        a(f'v_bfe_u32 v{t1}, v{LN}, 2, 2')
        a(f'v_lshrrev_b32 v{t2}, 5, v{LN}'); a(f'v_lshl_add_u32 v{t2}, v{t2}, 2, v{t1}'); a(f'v_lshlrev_b32 v{VT_}, 8, v{t2}')
        a(f'v_xor_b32 v{t1}, {W}, v{t1}'); a(f'v_lshl_add_u32 v{VT_}, v{t1}, 6, v{VT_}')
        a(f'v_bfe_u32 v{t1}, v{LN}, 4, 1'); a(f'v_lshl_add_u32 v{VT_}, v{t1}, 5, v{VT_}')
        a(f'v_and_b32 v{t1}, 3, v{LN}'); a(f'v_lshl_add_u32 v{VT_}, v{t1}, 3, v{VT_}')
        kkoff, h2off = 4096, 2048
    def wdma(q):
        a(f's_add_u32 {T0}, s{S_GO}, {q * cstep}')
        a(f's_add_u32 m0, s{S_M0}, {(q & 3) * 32768}')
        for i in range(8):
            a('s_nop 0')
            a(f'buffer_load_dwordx4 v{VD}, s[{SW}:{SW+3}], {T0} offen lds')
            if i < 7:
                a(f's_add_u32 {T0}, {T0}, {istep}'); a('s_add_u32 m0, m0, 1024')
    TLV = [240, 241, 242]
    if mega.TL: a('v_mov_b32 v243, 0')
    tl_init(a, TLV)
    VTJ = [84, 85, 86, 87]
    if GU:
        for j in range(4):
            a(f's_xor_b32 {T0}, {W}, {j}'); a(f's_lshl_b32 {T0}, {T0}, 11'); a(f'v_add_u32 v{VTJ[j]}, {T0}, v{VT_}')
    for q in range(min(4, nch)): wdma(q)
    for q in range(nch):
        left = min(nch, max(4, q + 4)) - (q + 1)
        a(f's_waitcnt vmcnt({8 * left})')
        a('s_barrier')
        if GU:
            for j in range(4): a(f'v_add_u32 v{88+j}, {(q & 3) * 32768}, v{VTJ[j]}')
        else:
            a(f'v_add_u32 v{t1}, {(q & 3) * 32768}, v{VT_}')
        for kk in range(8):
            kb = 8 * q + kk
            if GU: ad, off = 88 + (kk & 3), (kk & 4) * kkoff
            else:  ad, off = t1, kk * kkoff
            a(f'ds_read_b64_tr_b16 a[{4*kb}:{4*kb+1}], v{ad} offset:{off}')
            a(f'ds_read_b64_tr_b16 a[{4*kb+2}:{4*kb+3}], v{ad} offset:{off + h2off}')
            if kk % 4 == 3: a('s_waitcnt lgkmcnt(0)')
        a('s_barrier')
        if q + 4 < nch: wdma(q + 4)
    S_XO, S_XM0, S_OO = 44, 45, 46
    S_EXL = 47
    xstride = {'WO': 262144, 'GU': 65536, 'DN': 229376}[kind]
    if kind == 'WO':   a(f's_lshl_b32 s{S_XO}, s{KS_}, 16')
    elif kind == 'DN': a(f's_mul_i32 s{S_XO}, s{KS_}, {56*1024}')
    else:              a(f's_mov_b32 s{S_XO}, 0')
    a(f's_lshl_b32 {T0}, {W}, 10'); a(f's_add_u32 s{S_XO}, s{S_XO}, {T0}')
    a(f's_lshl_b32 s{S_XM0}, {W}, 10')
    if GU:
        a(f's_lshl_b32 {T0}, s{CB_}, 2'); a(f's_add_u32 {T0}, {T0}, {W}'); a(f's_lshl_b32 s{S_OO}, {T0}, 10')
        ostride = 229376
        a(f'v_mov_b32 v{VONES}, 0x3f803f80')
        for r in range(4): a(f'v_mov_b32 v{XF+r}, 0x3f803f80')
        a('s_nop 1')
        for kb in range(64):
            c = '0' if kb == 0 else f'v[{CS}:{CS+15}]'
            a(f'v_mfma_f32_32x32x16_bf16 v[{CS}:{CS+15}], a[{4*kb}:{4*kb+3}], v[{XF}:{XF+3}], {c}')
        a(f'v_lshrrev_b32 v{VSTW}, 2, v{L16}')
        a(f'v_and_b32 v{VSTR}, 31, v{LN}'); a(f'v_lshlrev_b32 v{VSTR}, 2, v{VSTR}'); a(f'v_add_u32 v{VSTR}, {L_ST}, v{VSTR}')
        a(f's_lshl_b32 {T0}, {W}, 8'); a(f's_add_u32 {T0}, {T0}, {L_ST}'); a(f'v_add_u32 v{VSTW}, {T0}, v{VSTW}')
    else:
        a(f's_lshl_b32 {T0}, s{CB_}, 2'); a(f's_add_u32 {T1}, {T0}, {W}'); a(f's_lshl_b32 {T1}, {T1}, 2')
        a(f's_add_u32 {T1}, {T1}, s{KS_}'); a(f's_lshl_b32 s{S_OO}, {T1}, 12')
        a(f's_add_u32 {T1}, {T0}, s{KS_}'); a(f's_lshl_b32 s{S_EXL}, {T1}, 14')
        fx = F_XW if kind == 'WO' else F_XD
        a(f's_lshl_b32 {T2}, {T1}, 4'); a(f's_add_u32 {T2}, {T2}, {fx}'); a(f'v_mov_b32 v{VXP}, {T2}')
        a(f's_add_u32 {T1}, {T0}, {W}'); a(f's_lshl_b32 {T1}, {T1}, 4'); a(f's_lshl_b32 {T2}, s{KS_}, 2')
        a(f's_add_u32 {T1}, {T1}, {T2}'); a(f's_add_u32 {T1}, {T1}, {fx}'); a(f'v_mov_b32 v{VXF}, {T1}')
        mm, hh, sp = 84, 85, 86
        a(f'v_and_b32 v{mm}, 15, v{LN}'); a(f's_lshr_b32 {T0}, {W}, 1'); a(f's_lshl_b32 {T0}, {T0}, 4'); a(f'v_add_u32 v{mm}, {T0}, v{mm}')
        a(f'v_bfe_u32 v{hh}, v{LN}, 4, 1'); a(f'v_lshrrev_b32 v{sp}, 5, v{LN}')
        a(f'v_lshl_add_u32 v87, v{hh}, 5, v{mm}'); a(f'v_lshlrev_b32 v87, 4, v87')
        a(f's_and_b32 {T0}, {W}, 1')
        a(f's_lshl_b32 {T1}, {T0}, 11'); a(f'v_lshl_add_u32 v{VEX}, v{sp}, 10, v87'); a(f'v_add_u32 v{VEX}, {T1}, v{VEX}')
        a(f's_lshl_b32 {T1}, s{CB_}, 3'); a(f's_lshl_b32 {T2}, s{KS_}, 1'); a(f's_add_u32 {T1}, {T1}, {T2}'); a(f's_add_u32 {T1}, {T1}, {T0}')
        a(f's_lshl_b32 {T2}, {T1}, 10'); a(f'v_lshl_add_u32 v{VFM}, v{sp}, 3, v87'); a(f'v_add_u32 v{VFM}, {T2}, v{VFM}')
        a(f's_lshl_b32 {T2}, {T1}, 5'); a(f'v_lshlrev_b32 v{VRM}, 11, v{mm}'); a(f'v_lshl_add_u32 v{VRM}, v{sp}, 4, v{VRM}')
        a(f'v_lshl_add_u32 v{VRM}, v{hh}, 3, v{VRM}'); a(f'v_add_u32 v{VRM}, {T2}, v{VRM}')
        for r in range(4): a(f'v_mov_b32 v{VNEG+r}, -1')
        if kind == 'WO': a.srd(SR, 40, 4*MB)
        else:            a.srd(SR, S_PWS, 4*MB, add=WS_HB)
    if kind == 'WO':
        a(f'v_and_b32 v{VPA}, 7, v{LN}'); a(f'v_lshlrev_b32 v{VPA}, 2, v{VPA}')
        a(f's_lshl_b32 {T0}, s{KS_}, {7 if mega.PLACE else 5}'); a(f's_add_u32 {T0}, {T0}, {F_AF}'); a(f'v_add_u32 v{VPA}, {T0}, v{VPA}')
        pw = 1
    elif GU:
        a(f'v_and_b32 v{VPA}, 31, v{LN}'); a(f'v_lshlrev_b32 v{VPA}, 4, v{VPA}'); a(f'v_add_u32 v{VPA}, {F_WF}, v{VPA}')
        pw = 4
    else:
        a(f'v_min_u32 v{VPA}, 13, v{LN}'); a(f'v_lshlrev_b32 v{VPA}, 4, v{VPA}')
        a(f's_mul_i32 {T0}, s{KS_}, {256 if mega.PLACE else 14*16}'); a(f's_add_u32 {T0}, {T0}, {F_GF}'); a(f'v_add_u32 v{VPA}, {T0}, v{VPA}')
        pw = 4
    if GU:
        a(f's_lshl_b32 {T0}, s{CB_}, 4'); fo = F_GF
        if mega.PLACE:
            a(f's_lshl_b32 {T1}, s{KS_}, 5'); a(f's_add_u32 {T0}, {T0}, {T1}')
    else:
        a(f's_lshl_b32 {T0}, s{KS_}, 3'); a(f's_add_u32 {T0}, {T0}, s{CB_}'); a(f's_lshl_b32 {T0}, {T0}, 4')
        fo = F_WF
    a(f's_lshl_b32 {T1}, {W}, 2'); a(f's_add_u32 {T0}, {T0}, {T1}'); a(f'v_mov_b32 v{VFA}, {T0}')
    a(f'v_mov_b32 v{VONE}, 1')
    a(f'v_mov_b32 v{VOUT}, {L_BC}')
    a(f's_mov_b32 s{S_SEG}, 0'); a(f's_mov_b32 s{S_EARLY}, 0')
    for j in range(4 if GU else 1):
        if GU:
            a(f's_xor_b32 {T0}, {W}, {j}'); a(f's_lshl_b32 {T0}, {T0}, 10'); a(f'v_add_u32 v{VXR[j]}, {T0}, v{L16}')
        else:
            a(f'v_mov_b32 v{VXR[j]}, v{L16}')

    VPFA, VPFD = 19, 18
    if PF and PIPE2:
        if kind == 'DN':
            a(f'v_min_u32 v{VPFA}, 55, v{LN}'); a(f'v_lshlrev_b32 v{VPFA}, 5, v{VPFA}')
            a(f's_mul_i32 {T0}, s{CB_}, 7168'); a(f's_mul_i32 {T1}, {W}, 768')
        else:
            a(f'v_lshlrev_b32 v{VPFA}, 5, v{LN}')
            a(f's_and_b32 {T0}, s{CB_}, 7'); a(f's_lshl_b32 {T0}, {T0}, 13'); a(f's_lshl_b32 {T1}, {W}, 10')
        a(f's_add_u32 {T0}, {T0}, {T1}'); a(f'v_add_u32 v{VPFA}, {T0}, v{VPFA}')
    def xdma(add, hi=None):
        hi = hi or nd
        a(f's_add_u32 {T1}, s{S_SEG}, {add}')
        a(f's_mul_i32 {T0}, {T1}, {xstride}'); a(f's_add_u32 {T0}, {T0}, s{S_XO}')
        a(f's_and_b32 {T1}, {T1}, 1'); a(f's_lshl_b32 {T1}, {T1}, 16'); a(f's_add_u32 m0, {T1}, s{S_XM0}')
        if PF and PIPE2: a(f'buffer_load_dword v{VPFD}, v{VPFA}, s[{SX}:{SX+3}], {T0} offen')
        for i in range(hi):
            a('s_nop 0')
            a(f'buffer_load_dwordx4 v{L16}, s[{SX}:{SX+3}], {T0} offen lds')
            if i < hi - 1:
                a(f's_add_u32 {T0}, {T0}, 4096'); a('s_add_u32 m0, m0, 4096')

    def pipe_loop():
        top, have = f'{N}_TOP', f'{N}_HAVE'
        S_DA, S_SLOT = 53, 48
        E = f's{S_EARLY}'
        nxs = 1 if GU else 4
        bounds = [0, 16, 32, 48, nk] if nk == 64 else [0, 16, 32, 44, 56]
        D = 6
        def done_stamp(prev):
            if not mega.TL: return
            a('s_memrealtime s[88:89]'); a('s_waitcnt lgkmcnt(0)')
            a(f's_sub_u32 m0, s{S_SEG}, {1 if prev else 0}'); a('s_nop 3'); a(f'v_writelane_b32 v{TLV[1]}, s88, m0')
        def flag(prev):
            seg_foff(a, -1 if prev else 0)
            a('s_mov_b64 exec, 1')
            i = f'buffer_store_dword v{VONE}, v{VFA}, {FLS}, s{S_FOFF} offen offset:{fo}'
            if GU and mega.PLACE: mode_store(a, [i])
            else: a(i + ' sc1')
            a('s_mov_b64 exec, -1')
        def rd(kb, slot):
            r = XF + 4 * (slot % NR)
            if GU: return f'ds_read_b128 v[{r}:{r+3}], v{VXR[kb & 3]} offset:{(kb & ~3) * 1024}'
            return f'ds_read_b128 v[{r}:{r+3}], v{VXR[0]} offset:{kb * 1024}'
        def mf(kb, slot):
            r = XF + 4 * (slot % NR); ac = AC0 if slot % 2 == 0 else AC1
            c = '0' if slot < 2 else f'v[{ac}:{ac+15}]'
            return f'v_mfma_f32_32x32x16_bf16 v[{ac}:{ac+15}], a[{4*kb}:{4*kb+3}], v[{r}:{r+3}], {c}'
        def stats(slot, i):
            r = XF + 4 * (slot % NR) + i
            lo, hi = UL + 2 * (i & 1), UH + 2 * (i & 1)
            a(f'v_lshlrev_b32 v{lo}, 16, v{r}'); a(f'v_and_b32 v{hi}, 0xffff0000, v{r}')
            a(f'v_fmac_f32 v{QA}, v{lo}, v{lo}'); a(f'v_add_f32 v{SA}, v{SA}, v{lo}')
            a(f'v_fmac_f32 v{QB}, v{hi}, v{hi}'); a(f'v_add_f32 v{SB_}, v{SB_}, v{hi}')
        def dma_groups(add, lo=0, hi=None):
            hi = hi or nd
            g0 = [f's_add_u32 s{S_DA+1}, s{S_SEG}, {add}', f's_mul_i32 s{S_DA}, s{S_DA+1}, {xstride}',
                  f's_add_u32 s{S_DA}, s{S_DA}, s{S_XO}', f's_and_b32 s{S_DA+1}, s{S_DA+1}, 1',
                  f's_lshl_b32 s{S_DA+1}, s{S_DA+1}, 16', f's_add_u32 m0, s{S_DA+1}, s{S_XM0}']
            if lo: g0 += [f's_add_u32 s{S_DA}, s{S_DA}, {4096*lo}', f's_add_u32 m0, m0, {4096*lo}']
            if PF and PIPE2 and lo == 0: g0.append(f'buffer_load_dword v{VPFD}, v{VPFA}, s[{SX}:{SX+3}], s{S_DA} offen')
            gs = []
            for i in range(lo, hi):
                g = ['s_nop 0', f'buffer_load_dwordx4 v{L16}, s[{SX}:{SX+3}], s{S_DA} offen lds']
                if i < hi - 1: g += [f's_add_u32 s{S_DA}, s{S_DA}, 4096', 's_add_u32 m0, m0, 4096']
                gs.append(g)
            gs[0] = g0 + gs[0]
            return gs
        def order(c):
            ks = list(range(bounds[c], bounds[c + 1]))
            if GU and c == 3: ks = [48, 52, 56, 60] + [k for k in ks if k & 3]
            return ks
        def pro(c, lq, base):
            ks = order(c)
            for i in range(D): lq.op(rd(ks[i], base + i), ('x', base + i))
        def body(c, lq, base, dma=None):
            ks = order(c); last = c == 3
            sw = []
            if GU:
                for i, kb in enumerate(ks):
                    if (kb & 3) == 0: sw += [(i, base + i, d) for d in range(4)]
            per_gap = 2 if (GU and last) else 1
            dma = list(dma or [])
            for i, kb in enumerate(ks):
                lq.wait(('x', base + i))
                a(mf(kb, base + i))
                if dma:
                    k = -(-len(dma) // (len(ks) - i))
                    for _ in range(k): a.ext(dma.pop(0))
                n = 0
                while sw and sw[0][0] <= i and n < per_gap:
                    assert i - (sw[0][1] - base) <= NR - D - 1
                    stats(sw[0][1], sw[0][2]); sw.pop(0); n += 1
                if i + D < len(ks): lq.op(rd(ks[i + D], base + i + D), ('x', base + i + D))
                if GU and last:
                    if i == 8:
                        assert not sw
                        a(f'v_add_f32 v{SA}, v{SA}, v{SB_}'); a(f'v_add_f32 v{QA}, v{QA}, v{QB}')
                        a('s_nop 1')
                        a(f'v_permlane32_swap_b32 v{SA}, v{QA}')
                        a('s_nop 1')
                        a(f'v_add_f32 v{SA}, v{SA}, v{QA}')
                        lq.op(f'ds_write_b32 v{VSTW}, v{SA}', 'stw')
                    if i == 9:
                        lq.wait('stw')
                        a('s_barrier')
                        for w in range(4):
                            lq.op(f'ds_read2_b32 v[{STT+2*w}:{STT+2*w+1}], v{VSTR} offset0:{64*w} offset1:{64*w+32}', ('st', w))
                    if i == 12:
                        lq.wait(('st', 3))
                        for (d, x, y) in [(0, 0, 2), (1, 1, 3), (4, 4, 6), (5, 5, 7), (0, 0, 4), (1, 1, 5)]:
                            a(f'v_add_f32 v{STT+d}, v{STT+x}, v{STT+y}')
                        a(f'v_mul_f32 v{NMU}, 0x3a800000, v{STT}')
                        a(f'v_mul_f32 v{RSTD}, 0x3a800000, v{STT+1}')
                    if i == 13:
                        a(f'v_fma_f32 v{RSTD}, -v{NMU}, v{NMU}, v{RSTD}')
                        a(f'v_max_f32 v{RSTD}, 0, v{RSTD}')
                        bf16_round(a, RSTD, RSTD)
                        a(f'v_add_f32 v{RSTD}, 0x3727c5ac, v{RSTD}')
                        bf16_round(a, RSTD, RSTD)
                    if i == 14:
                        a(f'v_sqrt_f32 v{RSTD}, v{RSTD}')
                        bf16_round(a, NMU, NMU)
                        bf16_round(a, RSTD, RSTD)
                        a(f'v_rcp_f32 v{RSTD}, v{RSTD}')
            assert not sw and not dma
        ks_all = order(0) + order(1) + order(2) + order(3)
        NT = len(ks_all); B3 = bounds[3]
        def stream(p0, p1, lq, sw, dma=None):
            dma = list(dma or [])
            rf = RDFIRST and GU
            we = WEVERY if rf else 1
            for i in range(p0, p1):
                if i % we == 0: lq.wait(('x', min(NT - 1, i + we - 1)))
                a(mf(ks_all[i], i))
                if rf and i + D < NT: lq.op(rd(ks_all[i + D], i + D), ('x', i + D))
                if dma:
                    k = -(-len(dma) // (p1 - i))
                    for _ in range(k): a.ext(dma.pop(0))
                n = 0
                while sw and sw[0][0] <= i and n < (2 if i >= B3 else 1):
                    assert i - sw[0][1] <= NR - D - 1
                    stats(sw[0][1], sw[0][2]); sw.pop(0); n += 1
                if not rf and i + D < NT: lq.op(rd(ks_all[i + D], i + D), ('x', i + D))
                if GU and i >= B3:
                    j = i - B3
                    if j == 8:
                        assert not sw
                        a(f'v_add_f32 v{SA}, v{SA}, v{SB_}'); a(f'v_add_f32 v{QA}, v{QA}, v{QB}')
                        a('s_nop 1')
                        a(f'v_permlane32_swap_b32 v{SA}, v{QA}')
                        a('s_nop 1')
                        a(f'v_add_f32 v{SA}, v{SA}, v{QA}')
                        lq.op(f'ds_write_b32 v{VSTW}, v{SA}', 'stw')
                    if j == 9:
                        lq.wait('stw')
                        a('s_barrier')
                        for w in range(4):
                            lq.op(f'ds_read2_b32 v[{STT+2*w}:{STT+2*w+1}], v{VSTR} offset0:{64*w} offset1:{64*w+32}', ('st', w))
                    if j == 12:
                        lq.wait(('st', 3))
                        for (d, x, y) in [(0, 0, 2), (1, 1, 3), (4, 4, 6), (5, 5, 7), (0, 0, 4), (1, 1, 5)]:
                            a(f'v_add_f32 v{STT+d}, v{STT+x}, v{STT+y}')
                        a(f'v_mul_f32 v{NMU}, 0x3a800000, v{STT}')
                        a(f'v_mul_f32 v{RSTD}, 0x3a800000, v{STT+1}')
                    if j == 13:
                        a(f'v_fma_f32 v{RSTD}, -v{NMU}, v{NMU}, v{RSTD}')
                        a(f'v_max_f32 v{RSTD}, 0, v{RSTD}')
                        bf16_round(a, RSTD, RSTD)
                        a(f'v_add_f32 v{RSTD}, 0x3727c5ac, v{RSTD}')
                        bf16_round(a, RSTD, RSTD)
                    if j == 14:
                        a(f'v_sqrt_f32 v{RSTD}, v{RSTD}')
                        bf16_round(a, NMU, NMU)
                        bf16_round(a, RSTD, RSTD)
                        a(f'v_rcp_f32 v{RSTD}, v{RSTD}')
            assert not dma
        def ex_loads():
            for s_ in range(4):
                a(f'buffer_load_dwordx4 v[{EXL+4*s_}:{EXL+4*s_+3}], v{VEX}, s[{SO}:{SO+3}], s{S_E0+s_} offen sc1')
        def ex_finish(prev):
            lp = a.newlabel(N + '_X'); dn = lp + '_D'
            a.label(lp)
            a('s_waitcnt vmcnt(0)')
            rc.max_chain(a, t1, list(range(EXL, EXL + 16)))
            a(f'v_cmp_eq_u32 vcc, -1, v{t1}')
            a(f's_cbranch_vccz {dn}')
            a(f's_cmp_eq_u32 s{S_BUDW}, 0'); a(f's_cbranch_scc1 {dn}')
            a(f's_sub_u32 s{S_BUDW}, s{S_BUDW}, 1')
            ex_loads()
            a(f's_branch {lp}')
            a.label(dn)
            pk = lambda d, x, y: a(f'v_pk_add_f32 v[{d}:{d+1}], v[{x}:{x+1}], v[{y}:{y+1}]')
            pk(EXL, EXL, EXL + 4); pk(EXL + 2, EXL + 2, EXL + 6); pk(EXL + 8, EXL + 8, EXL + 12); pk(EXL + 10, EXL + 10, EXL + 14)
            pk(EXL, EXL, EXL + 8); pk(EXL + 2, EXL + 2, EXL + 10)
            a(f'v_lshlrev_b32 v{EXL+8}, 16, v{RES}'); a(f'v_and_b32 v{EXL+9}, 0xffff0000, v{RES}')
            a(f'v_cvt_pk_bf16_f32 v{EXL}, v{EXL}, v{EXL+1}'); a(f'v_cvt_pk_bf16_f32 v{EXL+2}, v{EXL+2}, v{EXL+3}')
            a(f'v_lshlrev_b32 v{EXL+10}, 16, v{RES+1}'); a(f'v_and_b32 v{EXL+11}, 0xffff0000, v{RES+1}')
            a(f'v_lshlrev_b32 v{EXL+4}, 16, v{EXL}'); a(f'v_and_b32 v{EXL+5}, 0xffff0000, v{EXL}')
            a(f'v_lshlrev_b32 v{EXL+6}, 16, v{EXL+2}'); a(f'v_and_b32 v{EXL+7}, 0xffff0000, v{EXL+2}')
            pk(EXL + 4, EXL + 4, EXL + 8); pk(EXL + 6, EXL + 6, EXL + 10)
            a(f's_lshl_b32 {T2}, s{S_SEG}, 16')
            if prev: a(f's_sub_u32 {T2}, {T2}, 65536')
            a(f'v_cvt_pk_bf16_f32 v{EXL}, v{EXL+4}, v{EXL+5}'); a(f'v_cvt_pk_bf16_f32 v{EXL+1}, v{EXL+6}, v{EXL+7}')
            if kind == 'WO':
                a(f'buffer_store_dwordx2 v[{EXL}:{EXL+1}], v{VFM}, s[{SRES}:{SRES+3}], {T2} offen sc1')
            else:
                a(f'buffer_store_dwordx2 v[{EXL}:{EXL+1}], v{VRM}, s[{SRES}:{SRES+3}], {T2} offen')
            ex_store(a, [f'buffer_store_dwordx4 v[{VNEG}:{VNEG+3}], v{VEX}, s[{SO}:{SO+3}], s{S_E0+s_} offen' for s_ in range(4)])

        def old_head():
            tl_stamp(a, TLV[2], 2)
            if prof:
                for i in range(12): a(f's_mov_b32 s{60+i}, 0')
                a('s_memtime s[56:57]'); a('s_waitcnt lgkmcnt(0)'); a('s_mov_b32 s58, s56')
            a.label(top)
            a(f's_cmp_lg_u32 {E}, 0'); a(f's_cbranch_scc1 {have}')
            nw = f'{N}_NW0'
            a(f's_cmp_lg_u32 {W}, 0'); a(f's_cbranch_scc1 {nw}')
            seg_foff(a)
            poll(a, N + '_P', VPA, VPF, pw, t1)
            a.label(nw)
            a('s_barrier')
            ST(5)
            xdma(0)
            a.label(have)
            tl_stamp(a, TLV[0])
            ST(0)
            if GU:
                for r in (SA, SB_, QA, QB): a(f'v_mov_b32 v{r}, 0')
            lq = LQ(a)
            pos = 0
            for c in range(4):
                need = (bounds[c + 1] + 3) // 4
                if c < 3:
                    ln_, lj = a.newlabel(N + '_NP'), a.newlabel(N + '_PJ')
                    a(f's_cmp_eq_u32 {E}, 0'); a(f's_cbranch_scc1 {ln_}')
                    if c < 2:
                        a(f's_waitcnt vmcnt({nd - need + nxs})')
                        if c == 1 and not GU: ex_loads()
                    elif GU:
                        a('s_waitcnt vmcnt(0)')
                        flag(True); done_stamp(True)
                    else:
                        ex_finish(True)
                    a(f's_branch {lj}')
                    a.label(ln_)
                    a(f's_waitcnt vmcnt({nd - need})')
                    a.label(lj)
                    if c == 2:
                        nw2 = f'{N}_NW1'
                        a(f's_cmp_lg_u32 {W}, 0'); a(f's_cbranch_scc1 {nw2}')
                        seg_foff(a, 1)
                        flag_load(a, VPA, VPF, pw)
                        a.label(nw2)
                else:
                    a('s_waitcnt vmcnt(0)')
                    if kind == 'WO' or (kind == 'DN' and mega.TL):
                        l0 = a.newlabel(N + '_NF')
                        a(f's_cmp_eq_u32 {E}, 0'); a(f's_cbranch_scc1 {l0}')
                        if kind == 'WO': flag(True)
                        done_stamp(True)
                        a.label(l0)
                    nw3 = f'{N}_NW2'
                    a(f's_cmp_lg_u32 {W}, 0'); a(f's_cbranch_scc1 {nw3}')
                    flag_test(a, VPF, pw, t1)
                    a(f's_cmp_eq_u64 vcc, 0'); a(f's_cselect_b32 {T0}, 1, 0')
                    a(f'v_mov_b32 v{t1}, {T0}')
                    a(f'ds_write_b32 v{VOUT}, v{t1}')
                    a('s_waitcnt lgkmcnt(0)')
                    a.label(nw3)
                a('s_barrier')
                if c == 0: ST(1)
                if c == 3: ST(2)
                if c < 3:
                    pro(c, lq, pos)
                    body(c, lq, pos)
                else:
                    lq.op(f'ds_read_b32 v{t2}, v{VOUT}', 'early')
                    if not GU:
                        a(f's_lshl_b32 {T2}, s{S_SEG}, 16')
                        a(f'buffer_load_dwordx2 v[{RES}:{RES+1}], v{VRM if kind == "WO" else VFM}, s[{SR}:{SR+3}], {T2} offen')
                    pro(c, lq, pos)
                    lq.wait('early')
                    a(f'v_readfirstlane_b32 {E}, v{t2}')
                    if prof: a(f's_add_u32 s70, s70, {E}')
                    a(f's_cmp_ge_u32 s{S_SEG}, {nseg - 1}'); a(f's_cselect_b32 {E}, 0, {E}')
                    lb, lj = f'{N}_LB', f'{N}_LJ'
                    a(f's_cmp_eq_u32 {E}, 0'); a(f's_cbranch_scc1 {lb}')
                    lqa = LQ(a); lqa.q = list(lq.q)
                    body(c, lqa, pos, dma_groups(1))
                    a(f's_branch {lj}')
                    a.label(lb)
                    body(c, lq, pos)
                    a.label(lj)
                pos += len(order(c))
                lq.q = []
        def ex_check():
            rc.max_chain(a, t1, list(range(EXL, EXL + 16)))
            a(f'v_cmp_eq_u32 vcc, -1, v{t1}')
        def ex_fin(prev):
            pk = lambda d, x, y: a(f'v_pk_add_f32 v[{d}:{d+1}], v[{x}:{x+1}], v[{y}:{y+1}]')
            pk(EXL, EXL, EXL + 4); pk(EXL + 2, EXL + 2, EXL + 6); pk(EXL + 8, EXL + 8, EXL + 12); pk(EXL + 10, EXL + 10, EXL + 14)
            pk(EXL, EXL, EXL + 8); pk(EXL + 2, EXL + 2, EXL + 10)
            a(f'v_lshlrev_b32 v{EXL+8}, 16, v{RES}'); a(f'v_and_b32 v{EXL+9}, 0xffff0000, v{RES}')
            a(f'v_cvt_pk_bf16_f32 v{EXL}, v{EXL}, v{EXL+1}'); a(f'v_cvt_pk_bf16_f32 v{EXL+2}, v{EXL+2}, v{EXL+3}')
            a(f'v_lshlrev_b32 v{EXL+10}, 16, v{RES+1}'); a(f'v_and_b32 v{EXL+11}, 0xffff0000, v{RES+1}')
            a(f'v_lshlrev_b32 v{EXL+4}, 16, v{EXL}'); a(f'v_and_b32 v{EXL+5}, 0xffff0000, v{EXL}')
            a(f'v_lshlrev_b32 v{EXL+6}, 16, v{EXL+2}'); a(f'v_and_b32 v{EXL+7}, 0xffff0000, v{EXL+2}')
            pk(EXL + 4, EXL + 4, EXL + 8); pk(EXL + 6, EXL + 6, EXL + 10)
            a(f's_lshl_b32 {T2}, s{S_SEG}, 16')
            if prev: a(f's_sub_u32 {T2}, {T2}, 65536')
            a(f'v_cvt_pk_bf16_f32 v{EXL}, v{EXL+4}, v{EXL+5}'); a(f'v_cvt_pk_bf16_f32 v{EXL+1}, v{EXL+6}, v{EXL+7}')
            if kind == 'WO':
                a(f'buffer_store_dwordx2 v[{EXL}:{EXL+1}], v{VFM}, s[{SRES}:{SRES+3}], {T2} offen sc1')
            else:
                a(f'buffer_store_dwordx2 v[{EXL}:{EXL+1}], v{VRM}, s[{SRES}:{SRES+3}], {T2} offen')
            ex_store(a, [f'buffer_store_dwordx4 v[{VNEG}:{VNEG+3}], v{VEX}, s[{SO}:{SO+3}], s{S_E0+s_} offen' for s_ in range(4)])
        def next_ready(dst, val):
            flag_test(a, VPF, pw, t1)
            a(f's_cmp_eq_u64 vcc, 0'); a(f's_cselect_b32 {dst}, {val}, 0')
            a(f's_cmp_ge_u32 s{S_SEG}, {nseg - 1}'); a(f's_cselect_b32 {dst}, 0, {dst}')

        if PIPE2:
            HASFLAG = kind != 'DN'
            NEEDACK = HASFLAG or mega.TL
            n1 = 8; n2 = nd - n1
            S_PEND = 55
            tl_stamp(a, TLV[2], 2)
            if prof:
                for i in range(12): a(f's_mov_b32 s{60+i}, 0')
                a('s_memtime s[56:57]'); a('s_waitcnt lgkmcnt(0)'); a('s_mov_b32 s58, s56')
            for r in range(pw): a(f'v_mov_b32 v{VPF+r}, 0')
            a.label(top)
            a(f's_cmp_eq_u32 {E}, 1'); a(f's_cbranch_scc1 {have}')
            if not GU:
                a(f's_cmp_eq_u32 {E}, 2'); a(f's_cbranch_scc1 {have}')
            lp, iss = f'{N}_PL', f'{N}_ISS'
            seg_foff(a)
            a.label(lp)
            flag_test(a, VPF, pw, t1)
            a(f's_cbranch_vccz {iss}')
            a(f's_cmp_eq_u32 s{S_BUDW}, 0'); a(f's_cbranch_scc1 {iss}')
            a(f's_sub_u32 s{S_BUDW}, s{S_BUDW}, 1')
            flag_load(a, VPA, VPF, pw)
            a('s_waitcnt vmcnt(0)')
            a(f's_branch {lp}')
            a.label(iss)
            ST(5)
            xdma(0, n1)
            if NEEDACK:
                a(f's_cmp_eq_u32 {E}, 3'); a(f's_cbranch_scc0 {have}')
                a(f's_waitcnt vmcnt({n1 + (1 if PF else 0) + (0 if GU else 4)})')
                if HASFLAG: flag(True)
                done_stamp(True)
            a.label(have)
            tl_stamp(a, TLV[0])
            ST(0)
            if GU:
                for r in (SA, SB_, QA, QB): a(f'v_mov_b32 v{r}, 0')
            lq = LQ(a)
            pos = 0
            def nextload():
                seg_foff(a, 1)
                flag_load(a, VPA, VPF, pw)
            for c in range(4):
                need = (bounds[c + 1] + 3) // 4
                lj = a.newlabel(N + '_CJ')
                if c < 2:
                    base = n1 - 4 if c == 0 else n2
                    l1, l3, l0 = (a.newlabel(N + x) for x in ('_C1', '_C3', '_C0'))
                    a(f's_cmp_eq_u32 {E}, 1'); a(f's_cbranch_scc1 {l1}')
                    if HASFLAG and c == 0:
                        a(f's_cmp_eq_u32 {E}, 3'); a(f's_cbranch_scc1 {l3}')
                    if c == 0:
                        a(f's_waitcnt vmcnt({base})')
                    else:
                        if HASFLAG:
                            a(f's_cmp_eq_u32 {E}, 3'); a(f's_cbranch_scc1 {l3}')
                        a(f's_waitcnt vmcnt({base})')
                        if not GU:
                            a(f's_cmp_eq_u32 {E}, 2'); a(f's_cbranch_scc0 {lj}')
                            ex_loads()
                    a(f's_branch {lj}')
                    if HASFLAG:
                        a.label(l3)
                        a(f's_waitcnt vmcnt({base + 1})')
                        a(f's_branch {lj}')
                    a.label(l1)
                    if c == 0:
                        a(f's_waitcnt vmcnt({base + nxs})')
                    elif GU:
                        a(f's_waitcnt vmcnt({base})')
                        flag(True); done_stamp(True)
                    else:
                        a(f's_waitcnt vmcnt({base + nxs})')
                        ex_loads()
                    a.label(lj)
                    if c == 1: nextload()
                elif c == 2:
                    lp_ = a.newlabel(N + '_C2')
                    if GU:
                        a(f's_cmp_eq_u32 {E}, 1'); a(f's_cbranch_scc1 {lp_}')
                        a(f's_waitcnt vmcnt({nd - need + 1})')
                        a(f's_branch {lj}')
                        a.label(lp_)
                        a(f's_waitcnt vmcnt({nd - need + 2})')
                    else:
                        a(f's_sub_u32 {T0}, {E}, 1'); a(f's_cmp_lt_u32 {T0}, 2'); a(f's_cbranch_scc1 {lp_}')
                        a(f's_waitcnt vmcnt({nd - need + 1})')
                        a(f's_branch {lj}')
                        a.label(lp_)
                        ex_finish(True)
                    a.label(lj)
                else:
                    if GU:
                        a('s_waitcnt vmcnt(0)')
                    else:
                        a(f's_sub_u32 {T0}, {E}, 1'); a(f's_cmp_lt_u32 {T0}, 2'); a(f's_cselect_b32 s{S_PEND}, 1, 0')
                        a(f's_cbranch_scc1 {lj}')
                        a('s_waitcnt vmcnt(0)')
                        a.label(lj)
                    next_ready(E, 1)
                a('s_barrier')
                if c == 0: ST(1)
                if c == 1: ST(10)
                if c == 2: ST(11)
                if c == 3: ST(2)
                SP = [0] + [bounds[k] - D for k in (1, 2, 3)] + [NT]
                if c == 0:
                    if STREAM:
                        sw = [(i, i, d) for i, kb in enumerate(ks_all) if (kb & 3) == 0 for d in range(4)] if GU else []
                        for i in range(D): lq.op(rd(ks_all[i], i), ('x', i))
                        stream(SP[0], SP[1], lq, sw, dma_groups(0, n1, nd))
                    else:
                        pro(c, lq, pos)
                        body(c, lq, pos, dma_groups(0, n1, nd))
                elif c < 3:
                    if STREAM: stream(SP[c], SP[c + 1], lq, sw)
                    else:
                        pro(c, lq, pos)
                        body(c, lq, pos)
                else:
                    def pub(cnt):
                        if kind == 'WO' or (kind == 'DN' and mega.TL):
                            l0 = a.newlabel(N + '_NF')
                            a(f's_cmp_eq_u32 s{S_PEND}, 0'); a(f's_cbranch_scc1 {l0}')
                            a(f's_waitcnt vmcnt({cnt})')
                            if kind == 'WO': flag(True)
                            done_stamp(True)
                            a.label(l0)
                    if not GU:
                        a(f's_lshl_b32 {T2}, s{S_SEG}, 16')
                        a(f'buffer_load_dwordx2 v[{RES}:{RES+1}], v{VRM if kind == "WO" else VFM}, s[{SR}:{SR+3}], {T2} offen')
                    if not STREAM: pro(c, lq, pos)
                    if prof: a(f's_add_u32 s70, s70, {E}')
                    lb, lj = f'{N}_LB', f'{N}_LJ'
                    a(f's_cmp_eq_u32 {E}, 0'); a(f's_cbranch_scc1 {lb}')
                    lqa = LQ(a); lqa.q = list(lq.q)
                    if STREAM: stream(SP[3], SP[4], lqa, list(sw), dma_groups(1, 0, n1))
                    else: body(c, lqa, pos, dma_groups(1, 0, n1))
                    pub(4 + 1 + (1 if PF else 0) + n1)
                    a(f's_branch {lj}')
                    a.label(lb)
                    nextload()
                    if STREAM: stream(SP[3], SP[4], lq, sw)
                    else: body(c, lq, pos)
                    pub(4 + 1 + 1)
                    a.label(lj)
                pos += len(order(c))
                if not STREAM: lq.q = []
        else:
          old_head()
        ST(3)
        fin = f'{N}_FIN'
        if GU:
            a(f's_mul_i32 {T2}, s{S_SEG}, {ostride}'); a(f's_add_u32 {T2}, {T2}, s{S_OO}')
            for j in range(4): a(f'v_xor_b32 v{VXR[j]}, 0x10000, v{VXR[j]}')
            a('s_nop 7'); a('s_nop 4')
            for r in range(0, 16, 2):
                a(f'v_pk_add_f32 v[{AC0+r}:{AC0+r+1}], v[{AC0+r}:{AC0+r+1}], v[{AC1+r}:{AC1+r+1}]')
            for r in range(0, 16, 2):
                a(f'v_pk_fma_f32 v[{AC0+r}:{AC0+r+1}], v[{CS+r}:{CS+r+1}], v[{NMU}:{NMU+1}], v[{AC0+r}:{AC0+r+1}] op_sel_hi:[1,0,1] neg_lo:[0,1,0] neg_hi:[0,1,0]')
            for r in range(0, 16, 2):
                a(f'v_pk_mul_f32 v[{AC0+r}:{AC0+r+1}], v[{AC0+r}:{AC0+r+1}], v[{RSTD}:{RSTD+1}] op_sel_hi:[1,0]')
            G, U, T = AC0, AC0 + 8, TMP
            for r in range(8):
                a(f'v_cvt_pk_bf16_f32 v{T+r}, v{AC0+2*r}, v{AC0+2*r+1}')
            for r in range(4):
                a(f'v_lshlrev_b32 v{G+2*r}, 16, v{T+r}'); a(f'v_and_b32 v{G+2*r+1}, 0xffff0000, v{T+r}')
            for r in range(8): a(f'v_mul_f32 v{G+r}, 0xbfb8aa3b, v{G+r}')
            for r in range(4):
                a(f'v_lshlrev_b32 v{U+2*r}, 16, v{T+4+r}'); a(f'v_and_b32 v{U+2*r+1}, 0xffff0000, v{T+4+r}')
            for r in range(8): a(f'v_exp_f32 v{G+r}, v{G+r}')
            for r in range(8): a(f'v_add_f32 v{G+r}, 1.0, v{G+r}')
            for r in range(8): a(f'v_rcp_f32 v{G+r}, v{G+r}')
            a('s_nop 0')
            for r in range(4): a(f'v_cvt_pk_bf16_f32 v{T+r}, v{G+2*r}, v{G+2*r+1}')
            for r in range(4):
                a(f'v_lshlrev_b32 v{G+2*r}, 16, v{T+r}'); a(f'v_and_b32 v{G+2*r+1}, 0xffff0000, v{T+r}')
            for r in range(8): a(f'v_mul_f32 v{G+r}, v{G+r}, v{U+r}')
            for r in range(4): a(f'v_cvt_pk_bf16_f32 v{T+r}, v{G+2*r}, v{G+2*r+1}')
            i = f'buffer_store_dwordx4 v[{T}:{T+3}], v{L16}, s[{SO}:{SO+3}], {T2} offen'
            if mega.PLACE: mode_store(a, [i])
            else: a(i + ' sc1')
            ST(4)
            a(f's_cmp_lg_u32 {E}, 0'); a(f's_cbranch_scc1 {fin}')
            if PIPE2:
                a('s_waitcnt vmcnt(1)')
                next_ready(E, 3)
                a(f's_cmp_lg_u32 {E}, 0'); a(f's_cbranch_scc1 {fin}')
                seg_foff(a, 1)
                flag_load(a, VPA, VPF, pw)
            a('s_waitcnt vmcnt(0)')
            flag(False); done_stamp(False)
            a.label(fin)
        else:
            a(f's_and_b32 s{S_SLOT}, s{S_SEG}, 1'); a(f's_lshl_b32 s{S_SLOT}, s{S_SLOT}, 19')
            a(f's_add_u32 {T2}, s{S_SLOT}, s{S_OO}')
            a(f'v_xor_b32 v{VXR[0]}, 0x10000, v{VXR[0]}')
            a('s_nop 7'); a('s_nop 4')
            for r in range(0, 16, 2):
                a(f'v_pk_add_f32 v[{AC0+r}:{AC0+r+1}], v[{AC0+r}:{AC0+r+1}], v[{AC1+r}:{AC1+r+1}]')
            ex_store(a, [f'buffer_store_dwordx4 v[{AC0+4*q}:{AC0+4*q+3}], v{L16}, s[{SO}:{SO+3}], {T2} offen offset:{q*1024}' for q in range(4)])
            a(f's_add_u32 s{S_E0}, s{S_SLOT}, s{S_EXL}')
            for s_ in range(1, 4): a(f's_add_u32 s{S_E0+s_}, s{S_E0}, {4096*s_}')
            ST(4)
            a(f's_cmp_lg_u32 {E}, 0'); a(f's_cbranch_scc1 {fin}')
            if PIPE2:
                late, lp, exok = f'{N}_LATE', f'{N}_XL', f'{N}_XOK'
                if kind == 'WO':
                    w4, w5 = a.newlabel(N + '_W4'), a.newlabel(N + '_W5')
                    a(f's_cmp_eq_u32 s55, 0'); a(f's_cbranch_scc1 {w4}')
                    a('s_waitcnt vmcnt(5)'); a(f's_branch {w5}')
                    a.label(w4); a('s_waitcnt vmcnt(4)'); a.label(w5)
                else:
                    a('s_waitcnt vmcnt(4)')
                next_ready(E, 2)
                a(f's_cmp_lg_u32 {E}, 0'); a(f's_cbranch_scc1 {late}')
                seg_foff(a, 1)
                a.label(lp)
                ex_loads()
                flag_load(a, VPA, VPF, pw)
                a('s_waitcnt vmcnt(0)')
                ex_check()
                a(f's_cbranch_vccz {exok}')
                next_ready(E, 2)
                a(f's_cmp_lg_u32 {E}, 0'); a(f's_cbranch_scc1 {late}')
                a(f's_cmp_eq_u32 s{S_BUDW}, 0'); a(f's_cbranch_scc1 {exok}')
                a(f's_sub_u32 s{S_BUDW}, s{S_BUDW}, 1')
                a(f's_branch {lp}')
                a.label(late)
                xdma(1, n1)
                a(f's_branch {fin}')
                a.label(exok)
                ex_fin(False)
                ST(6)
                if NEEDACK:
                    next_ready(E, 3)
                    a(f's_cmp_lg_u32 {E}, 0'); a(f's_cbranch_scc1 {fin}')
                    a('s_waitcnt vmcnt(4)')
                    if kind == 'WO': flag(False)
                    done_stamp(False)
            else:
                ex_loads()
                ex_finish(False)
                ST(6)
                if kind == 'WO' or mega.TL: a('s_waitcnt vmcnt(0)')
                if kind == 'WO': flag(False)
                done_stamp(False)
            a.label(fin)
        ST(7)
        a(f's_add_u32 s{S_SEG}, s{S_SEG}, 1')
        a(f's_cmp_lt_u32 s{S_SEG}, {nseg}'); a(f's_cbranch_scc1 {top}')

    assert PIPE or not mega.PLACE
    if PIPE:
        pipe_loop()
    else:
        top, have = f'{N}_TOP', f'{N}_HAVE'
        tl_stamp(a, TLV[2], 2)
        if prof:
            for i in range(12): a(f's_mov_b32 s{60+i}, 0')
            a('s_memtime s[56:57]'); a('s_waitcnt lgkmcnt(0)'); a('s_mov_b32 s58, s56')
        a.label(top)
        a(f's_cmp_lg_u32 s{S_EARLY}, 0'); a(f's_cbranch_scc1 {have}')
        nw = f'{N}_NW0'
        a(f's_cmp_lg_u32 {W}, 0'); a(f's_cbranch_scc1 {nw}')
        seg_foff(a)
        poll(a, N + '_P', VPA, VPF, pw, t1)
        a.label(nw)
        a('s_barrier')
        xdma(0)
        a.label(have)
        tl_stamp(a, TLV[0])
        ST(0)
        nw2 = f'{N}_NW1'
        a(f's_cmp_lg_u32 {W}, 0'); a(f's_cbranch_scc1 {nw2}')
        seg_foff(a, 1)
        flag_load(a, VPA, VPF, pw)
        a.label(nw2)
        if GU:
            for r in (SA, SB_, QA, QB): a(f'v_mov_b32 v{r}, 0')
        bounds = [0, 16, 32, 48, nk] if nk == 64 else [0, 16, 32, 44, 56]
        lq = LQ(a)
        pos = 0
        def rd(kb, slot):
            r = XF + 4 * (slot % NR)
            if GU: return f'ds_read_b128 v[{r}:{r+3}], v{VXR[kb & 3]} offset:{(kb & ~3) * 1024}'
            return f'ds_read_b128 v[{r}:{r+3}], v{VXR[0]} offset:{kb * 1024}'
        def mf(kb, slot):
            r = XF + 4 * (slot % NR); ac = AC0 if slot % 2 == 0 else AC1
            c = '0' if slot < 2 else f'v[{ac}:{ac+15}]'
            return f'v_mfma_f32_32x32x16_bf16 v[{ac}:{ac+15}], a[{4*kb}:{4*kb+3}], v[{r}:{r+3}], {c}'
        def stats(slot, i):
            r = XF + 4 * (slot % NR) + i
            lo, hi = UL + 2 * (i & 1), UH + 2 * (i & 1)
            a(f'v_lshlrev_b32 v{lo}, 16, v{r}'); a(f'v_and_b32 v{hi}, 0xffff0000, v{r}')
            a(f'v_fmac_f32 v{QA}, v{lo}, v{lo}'); a(f'v_add_f32 v{SA}, v{SA}, v{lo}')
            a(f'v_fmac_f32 v{QB}, v{hi}, v{hi}'); a(f'v_add_f32 v{SB_}, v{SB_}, v{hi}')
        for c in range(4):
            k0, k1 = bounds[c], bounds[c + 1]
            need = (k1 + 3) // 4
            a(f's_waitcnt vmcnt({nd - need})')
            last = c == 3
            if last:
                nw3 = f'{N}_NW2'
                a(f's_cmp_lg_u32 {W}, 0'); a(f's_cbranch_scc1 {nw3}')
                a('s_waitcnt vmcnt(0)')
                flag_test(a, VPF, pw, t1)
                a(f's_cmp_eq_u64 vcc, 0'); a(f's_cselect_b32 {T0}, 1, 0')
                a(f'v_mov_b32 v{t1}, {T0}')
                a(f'ds_write_b32 v{VOUT}, v{t1}')
                a('s_waitcnt lgkmcnt(0)')
                a.label(nw3)
            a('s_barrier')
            if c == 0: ST(1)
            if last: ST(2)
            if last:
                lq.op(f'ds_read_b32 v{t2}, v{VOUT}', 'early')
                if not GU:
                    a(f's_lshl_b32 {T2}, s{S_SEG}, 16')
                    a(f'buffer_load_dwordx2 v[{RES}:{RES+1}], v{VRM if kind == "WO" else VFM}, s[{SR}:{SR+3}], {T2} offen')
            D = 6
            ks = list(range(k0, k1))
            if GU and last:
                ks = [48, 52, 56, 60] + [k for k in ks if k & 3]
            base = pos
            sw = []
            if GU:
                for i, kb in enumerate(ks):
                    if (kb & 3) == 0: sw += [(i, base + i, d) for d in range(4)]
            per_gap = 2 if (GU and last) else 1
            for i in range(D): lq.op(rd(ks[i], base + i), ('x', base + i))
            for i, kb in enumerate(ks):
                lq.wait(('x', base + i))
                a(mf(kb, base + i))
                n = 0
                while sw and sw[0][0] <= i and n < per_gap:
                    assert i - (sw[0][1] - base) <= NR - D - 1
                    stats(sw[0][1], sw[0][2]); sw.pop(0); n += 1
                if i + D < len(ks): lq.op(rd(ks[i + D], base + i + D), ('x', base + i + D))
                if GU and last:
                    if i == 8:
                        assert not sw
                        a(f'v_add_f32 v{SA}, v{SA}, v{SB_}'); a(f'v_add_f32 v{QA}, v{QA}, v{QB}')
                        a('s_nop 1')
                        a(f'v_permlane32_swap_b32 v{SA}, v{QA}')
                        a('s_nop 1')
                        a(f'v_add_f32 v{SA}, v{SA}, v{QA}')
                        lq.op(f'ds_write_b32 v{VSTW}, v{SA}', 'stw')
                    if i == 9:
                        lq.wait('stw')
                        a('s_barrier')
                        for w in range(4):
                            lq.op(f'ds_read2_b32 v[{STT+2*w}:{STT+2*w+1}], v{VSTR} offset0:{64*w} offset1:{64*w+32}', ('st', w))
                    if i == 12:
                        lq.wait(('st', 3))
                        for (d, x, y) in [(0, 0, 2), (1, 1, 3), (4, 4, 6), (5, 5, 7), (0, 0, 4), (1, 1, 5)]:
                            a(f'v_add_f32 v{STT+d}, v{STT+x}, v{STT+y}')
                        a(f'v_mul_f32 v{NMU}, 0x3a800000, v{STT}')
                        a(f'v_mul_f32 v{RSTD}, 0x3a800000, v{STT+1}')
                    if i == 13:
                        a(f'v_fma_f32 v{RSTD}, -v{NMU}, v{NMU}, v{RSTD}')
                        a(f'v_max_f32 v{RSTD}, 0, v{RSTD}')
                        bf16_round(a, RSTD, RSTD)
                        a(f'v_add_f32 v{RSTD}, 0x3727c5ac, v{RSTD}')
                        bf16_round(a, RSTD, RSTD)
                    if i == 14:
                        a(f'v_sqrt_f32 v{RSTD}, v{RSTD}')
                        bf16_round(a, NMU, NMU)
                        bf16_round(a, RSTD, RSTD)
                        a(f'v_rcp_f32 v{RSTD}, v{RSTD}')
            assert not sw
            pos += len(ks)
            lq.q = []
        ST(3)
        a(f'v_readfirstlane_b32 s{S_EARLY}, v{t2}')
        if prof: a(f's_add_u32 s70, s70, s{S_EARLY}')
        a(f's_cmp_ge_u32 s{S_SEG}, {nseg - 1}'); a(f's_cselect_b32 s{S_EARLY}, 0, s{S_EARLY}')
        late, fin = f'{N}_LATE', f'{N}_FIN'
        if GU:
            a(f's_mul_i32 {T2}, s{S_SEG}, {ostride}'); a(f's_add_u32 {T2}, {T2}, s{S_OO}')
            for j in range(4): a(f'v_xor_b32 v{VXR[j]}, 0x10000, v{VXR[j]}')
            a('s_nop 7'); a('s_nop 4')
            for r in range(0, 16, 2):
                a(f'v_pk_add_f32 v[{AC0+r}:{AC0+r+1}], v[{AC0+r}:{AC0+r+1}], v[{AC1+r}:{AC1+r+1}]')
            for r in range(0, 16, 2):
                a(f'v_pk_fma_f32 v[{AC0+r}:{AC0+r+1}], v[{CS+r}:{CS+r+1}], v[{NMU}:{NMU+1}], v[{AC0+r}:{AC0+r+1}] op_sel_hi:[1,0,1] neg_lo:[0,1,0] neg_hi:[0,1,0]')
            for r in range(0, 16, 2):
                a(f'v_pk_mul_f32 v[{AC0+r}:{AC0+r+1}], v[{AC0+r}:{AC0+r+1}], v[{RSTD}:{RSTD+1}] op_sel_hi:[1,0]')
            G, U, T = AC0, AC0 + 8, TMP
            for r in range(8):
                a(f'v_cvt_pk_bf16_f32 v{T+r}, v{AC0+2*r}, v{AC0+2*r+1}')
            for r in range(4):
                a(f'v_lshlrev_b32 v{G+2*r}, 16, v{T+r}'); a(f'v_and_b32 v{G+2*r+1}, 0xffff0000, v{T+r}')
            for r in range(8): a(f'v_mul_f32 v{G+r}, 0xbfb8aa3b, v{G+r}')
            for r in range(4):
                a(f'v_lshlrev_b32 v{U+2*r}, 16, v{T+4+r}'); a(f'v_and_b32 v{U+2*r+1}, 0xffff0000, v{T+4+r}')
            for r in range(8): a(f'v_exp_f32 v{G+r}, v{G+r}')
            for r in range(8): a(f'v_add_f32 v{G+r}, 1.0, v{G+r}')
            for r in range(8): a(f'v_rcp_f32 v{G+r}, v{G+r}')
            a('s_nop 0')
            for r in range(4): a(f'v_cvt_pk_bf16_f32 v{T+r}, v{G+2*r}, v{G+2*r+1}')
            for r in range(4):
                a(f'v_lshlrev_b32 v{G+2*r}, 16, v{T+r}'); a(f'v_and_b32 v{G+2*r+1}, 0xffff0000, v{T+r}')
            for r in range(8): a(f'v_mul_f32 v{G+r}, v{G+r}, v{U+r}')
            for r in range(4): a(f'v_cvt_pk_bf16_f32 v{T+r}, v{G+2*r}, v{G+2*r+1}')
            a(f'buffer_store_dwordx4 v[{T}:{T+3}], v{L16}, s[{SO}:{SO+3}], {T2} offen sc1')
            a(f's_cmp_eq_u32 s{S_EARLY}, 0'); a(f's_cbranch_scc1 {late}')
            xdma(1)
            a(f's_waitcnt vmcnt({nd})')
            a(f's_branch {fin}')
            a.label(late)
            a('s_waitcnt vmcnt(0)')
            a.label(fin)
            ST(7)
            set_flag(a, VFA, VONE, fo)
        else:
            S_SLOT = 48
            a(f's_and_b32 s{S_SLOT}, s{S_SEG}, 1'); a(f's_lshl_b32 s{S_SLOT}, s{S_SLOT}, 19')
            a(f's_add_u32 {T2}, s{S_SLOT}, s{S_OO}')
            a(f'v_xor_b32 v{VXR[0]}, 0x10000, v{VXR[0]}')
            a('s_nop 7'); a('s_nop 4')
            for r in range(0, 16, 2):
                a(f'v_pk_add_f32 v[{AC0+r}:{AC0+r+1}], v[{AC0+r}:{AC0+r+1}], v[{AC1+r}:{AC1+r+1}]')
            mode_store(a, [f'buffer_store_dwordx4 v[{AC0+4*q}:{AC0+4*q+3}], v{L16}, s[{SO}:{SO+3}], {T2} offen offset:{q*1024}' for q in range(4)])
            ST(4)
            a(f's_add_u32 s{S_E0}, s{S_SLOT}, s{S_EXL}')
            for s_ in range(1, 4): a(f's_add_u32 s{S_E0+s_}, s{S_E0}, {4096*s_}')
            lp = a.newlabel(N + '_X'); dn = lp + '_D'
            a.label(lp)
            for s_ in range(4):
                a(f'buffer_load_dwordx4 v[{EXL+4*s_}:{EXL+4*s_+3}], v{VEX}, s[{SO}:{SO+3}], s{S_E0+s_} offen sc1')
            a('s_waitcnt vmcnt(0)')
            rc.max_chain(a, t1, list(range(EXL, EXL + 16)))
            a(f'v_cmp_eq_u32 vcc, -1, v{t1}')
            budget(a, lp, dn)
            ST(5)
            mode_store(a, [f'buffer_store_dwordx4 v[{VNEG}:{VNEG+3}], v{VEX}, s[{SO}:{SO+3}], s{S_E0+s_} offen' for s_ in range(4)])
            pk = lambda d, x, y: a(f'v_pk_add_f32 v[{d}:{d+1}], v[{x}:{x+1}], v[{y}:{y+1}]')
            pk(EXL, EXL, EXL + 4); pk(EXL + 2, EXL + 2, EXL + 6); pk(EXL + 8, EXL + 8, EXL + 12); pk(EXL + 10, EXL + 10, EXL + 14)
            pk(EXL, EXL, EXL + 8); pk(EXL + 2, EXL + 2, EXL + 10)
            a(f'v_lshlrev_b32 v{EXL+8}, 16, v{RES}'); a(f'v_and_b32 v{EXL+9}, 0xffff0000, v{RES}')
            a(f'v_cvt_pk_bf16_f32 v{EXL}, v{EXL}, v{EXL+1}'); a(f'v_cvt_pk_bf16_f32 v{EXL+2}, v{EXL+2}, v{EXL+3}')
            a(f'v_lshlrev_b32 v{EXL+10}, 16, v{RES+1}'); a(f'v_and_b32 v{EXL+11}, 0xffff0000, v{RES+1}')
            a(f'v_lshlrev_b32 v{EXL+4}, 16, v{EXL}'); a(f'v_and_b32 v{EXL+5}, 0xffff0000, v{EXL}')
            a(f'v_lshlrev_b32 v{EXL+6}, 16, v{EXL+2}'); a(f'v_and_b32 v{EXL+7}, 0xffff0000, v{EXL+2}')
            pk(EXL + 4, EXL + 4, EXL + 8); pk(EXL + 6, EXL + 6, EXL + 10)
            a(f's_lshl_b32 {T2}, s{S_SEG}, 16')
            a(f'v_cvt_pk_bf16_f32 v{EXL}, v{EXL+4}, v{EXL+5}'); a(f'v_cvt_pk_bf16_f32 v{EXL+1}, v{EXL+6}, v{EXL+7}')
            if kind == 'WO':
                a(f'buffer_store_dwordx2 v[{EXL}:{EXL+1}], v{VFM}, s[{SRES}:{SRES+3}], {T2} offen sc1')
            else:
                a(f'buffer_store_dwordx2 v[{EXL}:{EXL+1}], v{VRM}, s[{SRES}:{SRES+3}], {T2} offen')
            ST(6)
            a(f's_cmp_eq_u32 s{S_EARLY}, 0'); a(f's_cbranch_scc1 {late}')
            xdma(1)
            if kind == 'WO': a(f's_waitcnt vmcnt({nd})')
            a(f's_branch {fin}')
            a.label(late)
            if kind == 'WO' or mega.TL: a('s_waitcnt vmcnt(0)')
            a.label(fin)
            ST(7)
            if kind == 'WO': set_flag(a, VFA, VONE, fo)
        tl_stamp(a, TLV[1])
        a(f's_add_u32 s{S_SEG}, s{S_SEG}, 1')
        a(f's_cmp_lt_u32 s{S_SEG}, {nseg}'); a(f's_cbranch_scc1 {top}')
    tl_dump(a, TLV + [243])
    if prof:
        a('s_waitcnt vmcnt(0)')
        a.srd(4, S_PWS, 1 << 20, add=0xF200000)
        a(f's_lshl_b32 {T0}, s{S_WID}, 2'); a(f's_add_u32 {T0}, {T0}, {W}'); a(f's_lshl_b32 {T0}, {T0}, 6')
        a('v_mov_b32 v1, 0')
        a('s_mov_b64 exec, 1')
        for i in range(11):
            a(f'v_mov_b32 v2, s{60+i}')
            a(f'buffer_store_dword v2, v1, s[4:7], {T0} offen offset:{4*i}')
        a('s_mov_b64 exec, -1')
        a('s_waitcnt vmcnt(0)')
```

```python
import sys; sys.path.insert(0,'gen')
from asmlib import *
import tasks, tasks2, mega, k_recc as rc
from mega import *
import mega2
from mega2 import role_gemmx, S_WM
from gemm2 import Eng, S_WAVE, S_T0, S_T1, S_T2
from tasks import S_RB, S_CB, S_KS, S_PW, S_PWS, S_OSRD, MB, task_gemm
from k_ln import bf16_round, reduce_bits345

def gen_prep(cfg):
    a = Asm()
    a('s_cmp_ge_u32 s2, 256')
    a('s_cbranch_scc1 PREP_END')
    a(f's_load_dwordx2 s[4:5], s[0:1], {KA_WS}')
    a(f's_load_dwordx2 s[6:7], s[0:1], {KA_MEM0}')
    a(f's_load_dwordx2 s[24:25], s[0:1], {KA_X}')
    a('v_and_b32 v21, 63, v0'); a('v_lshrrev_b32 v22, 6, v0'); a('s_nop 0'); a('v_readfirstlane_b32 s19, v22')
    a('v_and_b32 v24, 7, v21'); a('v_bfe_u32 v25, v21, 3, 1'); a('v_lshrrev_b32 v26, 4, v21')
    a('s_lshr_b32 s30, s2, 2'); a('s_and_b32 s31, s2, 3'); a('s_lshl_b32 s31, s31, 3')
    a('v_add_u32 v27, s31, v24')
    a('v_lshlrev_b32 v23, 11, v27'); a('v_lshl_add_u32 v23, v26, 5, v23'); a('v_lshl_add_u32 v23, v25, 3, v23')
    a('s_lshl_b32 s32, s19, 9'); a('s_lshl_b32 s33, s30, 16'); a('s_add_u32 s32, s32, s33'); a('v_add_u32 v23, s32, v23')
    a('v_lshl_add_u32 v28, v25, 5, v27'); a('v_lshlrev_b32 v28, 4, v28'); a('v_lshl_add_u32 v28, v26, 10, v28')
    a('s_lshl_b32 s32, s19, 14'); a('s_add_u32 s32, s32, s33'); a('v_add_u32 v28, s32, v28')
    a('v_lshlrev_b32 v29, 2, v24'); a('s_lshl_b32 s32, s19, 5'); a('v_add_u32 v30, s32, v29')
    a('s_lshl_b32 s3, s2, 12')
    a('v_lshlrev_b32 v1, 4, v0')
    a('v_add_u32 v1, s3, v1')
    for r in range(4):
        a(f'v_mov_b32 v{4+r}, -1'); a(f'v_mov_b32 v{8+r}, 0')
    a('s_waitcnt lgkmcnt(0)')
    a.srd(36, 24, 4*MB)
    X = 32
    for it in range(4):
        for h in range(2):
            r = X + (it*2 + h)*2
            a(f'buffer_load_dwordx2 v[{r}:{r+1}], v23, s[36:39], 0 offen offset:{it*128 + h*16}')
    a.srd(8, 4, SM_SIZE, add=WS_SM)
    a.srd(12, 6, 8 * 1024 * 2)
    a.srd(20, 4, 64 << 20, add=rc.WS_X)
    a.srd(40, 4, 4*MB, add=WS_XN)
    a(f's_mov_b32 s16, {rc.C_PART}')
    a('buffer_store_dwordx4 v[4:7], v1, s[8:11], s16 offen')
    a.srd(44, 4, 0x2100000, add=WS_P1)
    a('buffer_store_dwordx4 v[4:7], v1, s[44:47], 0 offen')
    a(f's_mov_b32 s16, {WS_P2 - WS_P1}')
    a('buffer_store_dwordx4 v[4:7], v1, s[44:47], s16 offen')
    a('s_lshr_b32 s17, s2, 3'); a(f's_mul_i32 s17, s17, {cfg.NS*32768}')
    a('s_and_b32 s18, s2, 7'); a('s_lshl_b32 s18, s18, 12'); a('s_add_u32 s17, s17, s18')
    a('v_lshlrev_b32 v2, 4, v0')
    for i in range(3):
        a('buffer_store_dwordx4 v[4:7], v2, s[20:23], s17 offen')
        a('s_add_u32 s17, s17, 32768')
    a('v_lshrrev_b32 v3, 11, v1'); a('v_lshlrev_b32 v3, 12, v3'); a('v_and_b32 v12, 2047, v1'); a('v_add_u32 v3, v3, v12')
    a(f's_mov_b32 s16, {SM_QKM + 2048}')
    for i in range(4):
        a('buffer_store_dwordx4 v[4:7], v3, s[8:11], s16 offen'); a(f's_add_u32 s16, s16, {2*MB}')
    a(f's_mov_b32 s16, {SM_VMG}')
    for i in range(4):
        a('buffer_store_dwordx4 v[4:7], v1, s[8:11], s16 offen'); a(f's_add_u32 s16, s16, {MB}')
    nfl = FL_SEG + 65*4096 - FL_KVQ
    a(f'v_cmp_gt_u32 vcc, {nfl}, v1') if nfl <= 64 else (a(f's_mov_b32 s17, {nfl}'), a('v_cmp_gt_u32 vcc, s17, v1'))
    a('s_and_saveexec_b64 s[26:27], vcc')
    a(f's_mov_b32 s16, {FL_KVQ}')
    a('buffer_store_dwordx4 v[8:11], v1, s[8:11], s16 offen')
    a('s_mov_b64 exec, s[26:27]')
    a('s_cmp_eq_u32 s2, 16'); a('s_cbranch_scc0 PREP_N1')
    a(f's_mov_b32 s16, {rc.C_CNT}')
    a('buffer_store_dwordx4 v[8:11], v2, s[8:11], s16 offen')
    a.label('PREP_N1')
    a('s_cmp_eq_u32 s2, 17'); a('s_cbranch_scc0 PREP_N2')
    a(f's_mov_b32 s16, {rc.C_CNT + 4096}')
    a('buffer_store_dwordx4 v[4:7], v2, s[8:11], s16 offen')
    a.label('PREP_N2')
    a('s_cmp_ge_u32 s2, 16'); a('s_cbranch_scc1 PREP_LN')
    a('s_cmp_lt_u32 s2, 4')
    a('s_cbranch_scc1 PREP_M0')
    a(f's_mov_b32 s16, {rc.C_MEMF}')
    a('buffer_store_dwordx4 v[4:7], v1, s[8:11], s16 offen')
    a('s_branch PREP_LN')
    a.label('PREP_M0')
    a('v_lshrrev_b32 v2, 4, v1')
    rc.memf0_src(a, cfg, 2, 3, 12)
    for t in range(4):
        a(f'buffer_load_dword v{12+t}, v3, s[12:15], 0 offen offset:{t*8}')
    a('s_waitcnt vmcnt(0)')
    for t in range(4):
        a(f'v_min_u32 v{12+t}, -2, v{12+t}')
    a(f's_mov_b32 s16, {rc.C_MEMF}')
    a('buffer_store_dwordx4 v[12:15], v1, s[8:11], s16 offen')
    a.label('PREP_LN')
    F, G, A0, MU, RS = 64, 96, 16, 20, 21
    a('s_waitcnt vmcnt(0)')
    for i in range(16):
        a(f'v_lshlrev_b32 v{F+2*i}, 16, v{X+i}'); a(f'v_and_b32 v{F+2*i+1}, 0xffff0000, v{X+i}')
    for c in range(4): a(f'v_add_f32 v{A0+c}, v{F+c}, v{F+4+c}')
    for i in range(8, 32, 4):
        for c in range(4): a(f'v_add_f32 v{A0+c}, v{A0+c}, v{F+i+c}')
    a(f'v_add_f32 v{A0}, v{A0}, v{A0+1}'); a(f'v_add_f32 v{A0+2}, v{A0+2}, v{A0+3}'); a(f'v_add_f32 v{A0}, v{A0}, v{A0+2}')
    reduce_bits345(a, A0, 31)
    a(f'ds_write_b32 v30, v{A0}')
    a('s_waitcnt lgkmcnt(0)'); a('s_barrier')
    for w in range(4): a(f'ds_read_b32 v{A0+w}, v29 offset:{w*32}')
    a('s_waitcnt lgkmcnt(0)')
    a(f'v_add_f32 v{A0}, v{A0}, v{A0+1}'); a(f'v_add_f32 v{A0+2}, v{A0+2}, v{A0+3}'); a(f'v_add_f32 v{MU}, v{A0}, v{A0+2}')
    a(f'v_mul_f32 v{MU}, 0x3a800000, v{MU}')
    for c in range(4): a(f'v_mov_b32 v{A0+c}, 0')
    for i in range(0, 32, 4):
        for c in range(4): a(f'v_sub_f32 v{G+c}, v{F+i+c}, v{MU}')
        for c in range(4): a(f'v_fmac_f32 v{A0+c}, v{G+c}, v{G+c}')
    a(f'v_add_f32 v{A0}, v{A0}, v{A0+1}'); a(f'v_add_f32 v{A0+2}, v{A0+2}, v{A0+3}'); a(f'v_add_f32 v{RS}, v{A0}, v{A0+2}')
    reduce_bits345(a, RS, 31)
    a(f'ds_write_b32 v30, v{RS} offset:128')
    a('s_waitcnt lgkmcnt(0)'); a('s_barrier')
    for w in range(4): a(f'ds_read_b32 v{A0+w}, v29 offset:{128 + w*32}')
    a('s_waitcnt lgkmcnt(0)')
    a(f'v_add_f32 v{A0}, v{A0}, v{A0+1}'); a(f'v_add_f32 v{A0+2}, v{A0+2}, v{A0+3}'); a(f'v_add_f32 v{RS}, v{A0}, v{A0+2}')
    a(f'v_mul_f32 v{RS}, 0x3a800000, v{RS}')
    bf16_round(a, RS, RS)
    a(f'v_add_f32 v{RS}, 0x3727c5ac, v{RS}')
    bf16_round(a, RS, RS)
    a(f'v_sqrt_f32 v{RS}, v{RS}')
    a('s_nop 0')
    bf16_round(a, RS, RS)
    a(f'v_rcp_f32 v{RS}, v{RS}')
    bf16_round(a, MU, MU)
    for i in range(32): a(f'v_sub_f32 v{F+i}, v{F+i}, v{MU}')
    for i in range(16): a(f'v_cvt_pk_bf16_f32 v{G+i}, v{F+2*i}, v{F+2*i+1}')
    for i in range(16):
        a(f'v_lshlrev_b32 v{F+2*i}, 16, v{G+i}'); a(f'v_and_b32 v{F+2*i+1}, 0xffff0000, v{G+i}')
    for i in range(32): a(f'v_mul_f32 v{F+i}, v{F+i}, v{RS}')
    for i in range(16): a(f'v_cvt_pk_bf16_f32 v{G+i}, v{F+2*i}, v{F+2*i+1}')
    for it in range(4):
        a(f's_mov_b32 s16, {it*4096}')
        a(f'buffer_store_dwordx4 v[{G+4*it}:{G+4*it+3}], v28, s[40:43], s16 offen')
    a.label('PREP_END')
    a('s_endpgm')
    return a.text()


def kvq_loop(a, g, nbg_rounds=9):
    T0, T1, T2 = f's{S_T0}', f's{S_T1}', f's{S_T2}'
    a(f's_mov_b32 s{S_RND}, 0')
    a.label('KQ_TOP')
    a(f's_cmp_lg_u32 s{S_RND}, 0'); a('s_cbranch_scc1 KQ_BG')
    a(f's_and_b32 {T0}, s{S_WID}, 31'); a(f's_and_b32 s{S_RB}, {T0}, 3')
    a(f's_lshr_b32 {T0}, {T0}, 2'); a(f's_lshr_b32 {T1}, s{S_WID}, 5'); a(f's_lshl_b32 {T1}, {T1}, 3'); a(f's_add_u32 s31, {T0}, {T1}')
    a('s_branch KQ_DEC')
    a.label('KQ_BG')
    if PLACE:
        a(f's_sub_u32 {T1}, s{S_RND}, 1'); a(f's_mul_i32 {T0}, {T1}, 43'); a(f's_lshr_b32 {T0}, {T0}, 7')
        a(f's_mul_i32 {T2}, {T0}, 3'); a(f's_sub_u32 {T1}, {T1}, {T2}')
        a(f's_lshl_b32 {T0}, {T0}, 2'); a(f's_add_u32 {T0}, {T0}, 4'); a(f's_and_b32 {T2}, s{S_WID}, 3')
        a(f's_add_u32 s{S_RB}, {T0}, {T2}')
        a(f's_lshl_b32 {T1}, {T1}, 4'); a(f's_lshr_b32 {T2}, s{S_WID}, 2'); a(f's_add_u32 s31, {T1}, {T2}')
    else:
        a(f's_sub_u32 {T0}, s{S_WID}, 64'); a(f's_lshr_b32 {T0}, {T0}, 5'); a(f's_lshl_b32 {T0}, {T0}, 4')
        a(f's_and_b32 {T1}, s{S_WID}, 15'); a(f's_add_u32 {T0}, {T0}, {T1}')
        a(f's_sub_u32 {T1}, s{S_RND}, 1'); a(f's_lshl_b32 {T1}, {T1}, 6'); a(f's_add_u32 {T0}, {T0}, {T1}')
        a(f's_mul_i32 {T1}, {T0}, 683'); a(f's_lshr_b32 {T1}, {T1}, 16')
        a(f's_mul_i32 {T2}, {T1}, 96'); a(f's_sub_u32 {T0}, {T0}, {T2}')
        a(f's_lshl_b32 {T1}, {T1}, 1'); a(f's_add_u32 {T1}, {T1}, 4'); a(f's_and_b32 {T2}, {T0}, 1')
        a(f's_add_u32 s{S_RB}, {T1}, {T2}'); a(f's_lshr_b32 s31, {T0}, 1')
    a.label('KQ_DEC')
    a(f's_and_b32 s{S_RB}, s{S_RB}, 15')
    a(f's_and_b32 s{S_CB}, s31, 15'); a(f's_mov_b32 s{S_KS}, 0')
    a('s_lshr_b32 s31, s31, 4')
    a(f's_lshl_b32 {T0}, s{S_RB}, 8'); a(f's_lshl_b32 {T1}, s{S_CB}, 4'); a(f's_add_u32 {T0}, {T0}, {T1}')
    a(f's_lshl_b32 {T1}, s31, 2'); a(f's_add_u32 {T0}, {T0}, {T1}'); a(f's_add_u32 s{S_FOFF}, {T0}, {FL_KVQ}')
    a('s_cmp_eq_u32 s31, 1'); a('s_cbranch_scc1 KQ_V')
    a('s_cmp_eq_u32 s31, 2'); a('s_cbranch_scc1 KQ_Q')
    task_gemm(a, g, 'K'); a('s_branch KQ_FIN')
    a.label('KQ_V'); task_gemm(a, g, 'V'); a('s_branch KQ_FIN')
    a.label('KQ_Q'); task_gemm(a, g, 'Q')
    a.label('KQ_FIN')
    a('s_waitcnt vmcnt(0)')
    a('s_barrier')
    if mega.TL:
        a('s_memrealtime s[88:89]'); a('s_waitcnt lgkmcnt(0)'); a('s_mov_b32 s101, s88')
    a(f's_cmp_lg_u32 s{S_WAVE}, 0'); a('s_cbranch_scc1 KQ_NF')
    a('v_mov_b32 v1, 1')
    a('s_mov_b64 exec, 1')
    a(f'buffer_store_dword v1, off, {FLS}, s{S_FOFF} sc1')
    a('s_mov_b64 exec, -1')
    a.label('KQ_NF')
    a(f's_add_u32 s{S_RND}, s{S_RND}, 1')
    if PLACE:
        a(f's_cmp_ge_u32 s{S_WID}, 64'); a('s_cbranch_scc1 KQ_END')
    else:
        a(f's_cmp_lt_u32 s{S_WID}, 64'); a('s_cbranch_scc1 KQ_END')
        a(f's_and_b32 {T0}, s{S_WID}, 16'); a(f's_cmp_eq_u32 {T0}, 0'); a('s_cbranch_scc1 KQ_END')
    if mega.TL:
        pass
    a(f's_cmp_le_u32 s{S_RND}, {nbg_rounds}'); a('s_cbranch_scc1 KQ_TOP')
    if mega.TL:
        a('v_mov_b32 v12, 0'); a('v_writelane_b32 v12, s100, 0'); a('v_writelane_b32 v12, s101, 1')
        mega.tl_dump(a, [12, 12, 12])
    a('s_endpgm')
    a.label('KQ_END')


EXP_START = None
PLACE = mega.PLACE
EXP_WARM = 0
EXP_HALF = 0
def gen_mega(cfg, dbg=None, prof=False):
    tasks.set_coh(True)
    a = Asm()
    P = 'RC'
    a('s_cmp_ge_u32 s2, 256')
    a('s_cbranch_scc1 MG_EXIT')
    def rstamp(sreg):
        if mega.TL:
            a('s_memrealtime s[88:89]'); a('s_waitcnt lgkmcnt(0)'); a(f's_mov_b32 s{sreg}, s88')
    rstamp(100)
    rc.common_setup(a)
    if EXP_WARM:
        a(f's_cmp_eq_u32 s{rc.S_WV}, 1'); a('s_cbranch_scc0 MG_NOWARM')
        a('s_load_dwordx8 s[64:71], s[0:1], 16')
        a(f'v_lshrrev_b32 v200, 4, v{rc.V_L16}'); a(f'v_mul_u32_u24 v200, {EXP_WARM*1024}, v200')
        a('s_waitcnt lgkmcnt(0)')
        n = (8 << 20) // (64 * EXP_WARM * 1024)
        for m in range(4):
            a.srd(72, 64 + 2*m, 8 << 20)
            for i in range(n):
                a(f's_mov_b32 s76, {i * 64 * EXP_WARM * 1024}')
                a(f'buffer_load_dword v{201 + (m*n + i) % 50}, v200, s[72:75], s76 offen')
        a.label('MG_NOWARM')
    rc.role_dynamic(a, cfg, P, 'MG_WORK', nx=8)
    rstamp(101)
    if EXP_HALF:
        a(f's_cmp_ge_u32 s{rc.S_H}, {EXP_HALF}'); a('s_cbranch_scc1 MG_EXIT')
    RS, CT, RL = rc.impl(cfg)
    def xs(i):
        if rc.EXP_STAMP:
            a('s_memrealtime s[88:89]'); a('s_waitcnt lgkmcnt(0)'); a(f'v_writelane_b32 v60, s88, {i}')
    xs(0)
    RS(a, cfg)
    a(f's_mov_b32 s{rc.S_NST}, 63')
    xs(1)
    CT(a)
    rc.stage_weights(a, P)
    rstamp(72)
    rc.near_measure(a, cfg, P)
    rc.x_offsets(a, cfg)
    a('s_waitcnt vmcnt(0) lgkmcnt(0)')
    a('s_barrier')
    rstamp(73)
    a(f's_cmp_eq_u32 s{rc.S_MODE}, 1')
    a(f's_cbranch_scc0 {P}_FB')
    if not EXP_START: RL(a, cfg, P, '', dbg)
    if mega.TL:
        rstamp(74)
        a.srd(84, rc.S_WS, 1 << 20, add=mega.TL_BASE + (1 << 20))
        a(f's_lshl_b32 s76, s{rc.S_H}, 1'); a(f's_add_u32 s76, s76, s{rc.S_J}'); a('s_lshl_b32 s76, s76, 2')
        a(f's_add_u32 s76, s76, s{rc.S_WV}'); a('s_lshl_b32 s76, s76, 5')
        a('v_mov_b32 v9, 0'); a('s_mov_b64 exec, 1')
        for i, r in enumerate([100, 101, 72, 73, 74, 75]):
            a(f'v_mov_b32 v8, s{r}'); a(f'buffer_store_dword v8, v9, s[84:87], s76 offen offset:{4*i}')
        if rc.EXP_STAMP:
            a('s_mov_b64 exec, -1'); a('s_lshl_b32 s76, s76, 3'); a('s_add_u32 s76, s76, 65536')
            a(f'v_lshrrev_b32 v9, 2, v{rc.V_L16}')
            a('buffer_store_dword v60, v9, s[84:87], s76 offen')
        a('s_waitcnt vmcnt(0)')
    a('s_endpgm')
    a.label(f'{P}_FB')
    RL(a, cfg, P + 'F', ' sc1', None)
    a('s_endpgm')
    a.label('MG_WORK')
    if EXP_START == 'now': a('s_endpgm')
    T0, T1 = 's46', 's47'
    a(f's_sub_u32 {T0}, s{rc.S_J}, 2'); a(f's_lshl_b32 {T0}, {T0}, 5'); a(f's_add_u32 {T0}, {T0}, s{rc.S_H}')
    a(f's_sub_u32 {T1}, s{rc.S_H}, 32'); a(f's_lshl_b32 {T1}, {T1}, 1'); a(f's_add_u32 {T1}, {T1}, s{rc.S_J}')
    a(f's_cmp_eq_u32 s{rc.S_MODE}, 1'); a(f's_cselect_b32 s{S_WID}, {T0}, {T1}')
    a(f's_cmp_ge_u32 s{S_WID}, 192'); a('s_cbranch_scc1 MG_EXIT')
    a(f's_mov_b32 s{S_WAVE}, s{rc.S_WV}')
    a.srd(S_FL, rc.S_WS, SM_SIZE, add=WS_SM)
    a(f's_mov_b32 s{S_BUDW}, 200000')
    a(f's_mov_b32 s{S_WM}, s{rc.S_MODE}')
    g = Eng()
    kvq_loop(a, g)
    W = f's{S_WID}'
    def rng(lo, hi, lab):
        a(f's_cmp_lt_u32 {W}, {hi}'); a(f's_cbranch_scc1 {lab}')
    if not PLACE:
        rng(0, 32, 'MG_WO'); rng(0, 64, 'MG_DN')
    a(f's_sub_u32 s46, {W}, 64'); a('s_lshr_b32 s46, s46, 5'); a(f's_and_b32 s47, {W}, 31')
    if PLACE:
        a('s_cmp_ge_u32 s47, 24'); a('s_cbranch_scc1 MG_DN')
        a('s_cmp_ge_u32 s47, 16'); a('s_cbranch_scc1 MG_WO')
    a('s_cmp_ge_u32 s47, 14'); a('s_cbranch_scc1 MG_AT')
    a('s_mul_i32 s29, s46, 14'); a('s_add_u32 s29, s29, s47'); a('s_mov_b32 s28, s46')
    role_gemmx(a, 'GU'); a('s_endpgm')
    a.label('MG_WO')
    if PLACE: a('s_mov_b32 s28, s46'); a('s_and_b32 s29, s47, 7')
    else: a(f's_lshr_b32 s28, {W}, 3'); a(f's_and_b32 s29, {W}, 7')
    role_gemmx(a, 'WO'); a('s_endpgm')
    a.label('MG_DN')
    if PLACE: a('s_mov_b32 s28, s46'); a('s_and_b32 s29, s47, 7')
    else: a(f's_sub_u32 s29, {W}, 32'); a('s_lshr_b32 s28, s29, 3'); a('s_and_b32 s29, s29, 7')
    role_gemmx(a, 'DN'); a('s_endpgm')
    a.label('MG_AT')
    a('s_lshl_b32 s28, s46, 1'); a('s_add_u32 s28, s28, s47'); a('s_sub_u32 s28, s28, 14')
    role_att(a)
    a.label('MG_EXIT')
    a('s_endpgm')
    return a.text()


def header():
    src = open('cdna_kernels/' + KNAME[:-7] + '.s.ref').read().split('\n')
    out = []
    for l in src:
        if l.startswith('; Override launch'): break
        out.append(l)
    return '\n'.join(out)

OLD = False
def build(path, hdr='; test', cfg=None, **kw):
    import k_rec2
    C = rc.Cfg if OLD else k_rec2.Cfg2
    cfg = cfg or C(dynamic=True, RS_PERM=False, EARLY_CLR=True, kvflag=FL_KVQ, tl=mega.TL, NOPK=False)
    ks = [('prep_kernel', gen_prep(cfg), 128, 128), ('mega_kernel', gen_mega(cfg, **kw), 512, 256)]
    ls = [('prep_kernel', (256,1,1), (256,1,1), 1024), ('mega_kernel', (256,1,1), (256,1,1), 163840)]
    txt = assemble_file(hdr, ls, ks)
    open(path, 'w').write(txt)
    print('bytes', len(txt), 'lines', txt.count('\n'))
if __name__ == '__main__':
    p = sys.argv[1] if len(sys.argv) > 1 else 'mg.s'
    if len(sys.argv) > 2 and 'tl' in sys.argv[2:]: mega.TL = True
    if 'prof' in sys.argv[2:]: mega2.PROF = True
    if 'x2' in sys.argv[2:]: mega2.TLX2 = True
    if 'lite' in sys.argv[2:]: mega2.TLLITE = True
    if 'last' in sys.argv[2:]: mega2.TLFROM = 63
    if 'p1' in sys.argv[2:]: mega2.PIPE2 = False
    if 'nostream' in sys.argv[2:]: mega2.STREAM = False
    if 'nopf' in sys.argv[2:]: mega2.PF = False
    if 'nordf' in sys.argv[2:]: mega2.RDFIRST = False
    for x in sys.argv[2:]:
        if x.startswith('we='): mega2.WEVERY = int(x[3:])
    if 'old' in sys.argv[2:]: OLD = True
    if 'now' in sys.argv[2:]: EXP_START = 'now'
    for x in sys.argv[2:]:
        if x.startswith('half='): EXP_HALF = int(x[5:])
        if x.startswith('warm='): EXP_WARM = int(x[5:])
        if x == 'lin': rc.EXP_LIN = True
        if x == 'reg': rc.EXP_REG = True
        if x.startswith('fl='): rc.EXP_FL = ' ' + x[3:].replace('+', ' ')
        if x == 'xs': rc.EXP_STAMP = True
    build(p, header())
    import chk; chk.chk(p)
```

```python
from asmlib import *

WS_X = 0xB000000
C_MEMF = SM_MEMF
C_PART = SM_PART
C_CNT = SM_CNT
CNT_MODE, CNT_FB = 2048, 2176
WS_DBGC = 0x7000000

class Cfg:
    NS = 64
    SG, SP, SH = 4096, 2048, 64
    RS_PERM = True
    dynamic = False
    force_fallback = False
    EARLY_CLR = False
    skip = ()
    kvflag = None
    NOPK = False
    PR_NOACK = False
    AG_NOACK = False
    PQ_EARLY = False
    def __init__(self, **kw):
        for k, v in kw.items(): setattr(self, k, v)

L_WA = 0x00000
L_WB = 0x10000
L_M = 0x20000
L_O = 0x22000
L_C = 0x22800
L_R = 0x23400
L_KV = 0x24000
REC_LDS = 0x28000

V_IDX, V_AGP, V_PTW, V_MFW, V_KDM, V_L16, V_T, V_T2 = 0, 1, 2, 3, 4, 5, 6, 7
AM = 8
AQ0, AQ1, AK0, AK1, AV0, AV1 = 40, 44, 48, 52, 56, 60
SREG = 64
WV_R = 128
WO_R = 192
XS, D0, D1, RX, VA, RV, TT = 44, 40, 48, 52, 60, 62, 56
SEL0, SEL1, KT0, KT1, VT0, VT1, SA, SB, SMM = 24, 28, 32, 36, 8, 12, 16, 20, 24
R0, R1, R2, R3, MM = 32, 36, 40, 44, 48
PB, PMQ, ONES, SUM, O0, O1 = 36, 40, 44, 52, 16, 20
WACC = [24, 28, 32, 36, 40, 44, 48, 52]
OA = 8
PR0, PR1, SELR, RD, NEG = 8, 12, 16, 20, 24

S_SM = 4
S_KV = 8
S_X = 12
S_W = 16
S_STEP, S_WV, S_H, S_J = 20, 21, 22, 23
S_MEMR, S_MEMW, S_PR, S_PR2 = 24, 25, 26, 27
S_PW = 28
S_XW, S_XR, S_XC, S_NEAR = 32, 33, 34, 35
S_KVK, S_KVV, S_QKM, S_VMG = 36, 37, 38, 39
S_LO8 = 40
S_BUD, S_NST, S_M0, S_MEMC = 42, 43, 44, 45
S_T0, S_T1, S_T2, S_T3 = 46, 47, 48, 49
S_PTR = 50
S_WS = 52
S_SWB, S_OWB, S_KVB, S_PRW = 54, 55, 56, 57
S_HI8 = 58
S_XBASE = 60
S_MODE = 61
S_LID = 62
S_SC = 63
S_KVOK, S_KVFB = 96, 97
SOFT_C = 0x3e0293ee


def smf(acc, A, B):
    return f'v_smfmac_f32_16x16x64_bf16 v[{acc}:{acc+3}], v[{A}:{A+3}], {B}, v{V_IDX}'
def wq(pi, t): b = 16*pi + 8*t; return f'a[{b}:{b+7}]'
def wk(pi, t): b = 128 + 16*pi + 8*t; return f'a[{b}:{b+7}]'
def wv(pi, t):
    b = (WV_R + 16*pi + 8*t) if pi < 4 else (SREG + 16*(pi-4) + 8*t)
    return f'v[{b}:{b+7}]'
def v8(r): return f'v[{r}:{r+7}]'
def mf32(d, A, B, C=None):
    c = '0' if C is None else f'v[{C}:{C+3}]'
    return f'v_mfma_f32_16x16x32_bf16 v[{d}:{d+3}], v[{A}:{A+3}], v[{B}:{B+3}], {c}'
def mf16(d, A, B, C):
    return f'v_mfma_f32_16x16x16_bf16 v[{d}:{d+3}], v[{A}:{A+1}], v[{B}:{B+1}], v[{C}:{C+3}]'
NOPK = False
def pkadd(d, x, y):
    if NOPK: return f'v_add_f32 v{d}, v{x}, v{y}\n    v_add_f32 v{d+1}, v{x+1}, v{y+1}'
    return f'v_pk_add_f32 v[{d}:{d+1}], v[{x}:{x+1}], v[{y}:{y+1}]'


def poll_end(a, lab, done):
    a(f's_cbranch_vccz {done}')
    a(f's_cmp_eq_u32 s{S_BUD}, 0')
    a(f's_cbranch_scc1 {done}')
    a(f's_sub_u32 s{S_BUD}, s{S_BUD}, 1')
    a(f's_branch {lab}')
    a.label(done)

def max_chain(a, dst, regs):
    if len(regs) == 2:
        a(f'v_max_u32 v{dst}, v{regs[0]}, v{regs[1]}'); return
    a(f'v_max3_u32 v{dst}, v{regs[0]}, v{regs[1]}, v{regs[2]}')
    i = 3
    while i + 1 < len(regs):
        a(f'v_max3_u32 v{dst}, v{dst}, v{regs[i]}, v{regs[i+1]}')
        i += 2
    if i < len(regs):
        a(f'v_max_u32 v{dst}, v{dst}, v{regs[i]}')


def dbg_dump(a, regs, slot, tmp=V_T):
    a('s_waitcnt vmcnt(0) lgkmcnt(0)')
    a('s_nop 7'); a('s_nop 7')
    a.srd(84, S_WS, 4 << 20, add=WS_DBGC + slot * (4 << 20))
    a(f's_lshl_b32 s88, s{S_H}, 1'); a(f's_add_u32 s88, s88, s{S_J}'); a('s_lshl_b32 s88, s88, 2')
    a(f's_add_u32 s88, s88, s{S_WV}'); a('s_lshl_b32 s88, s88, 14')
    a(f'v_lshrrev_b32 v{tmp}, 2, v{V_L16}')
    for i, r in enumerate(regs):
        a(f'buffer_store_dword v{r}, v{tmp}, s[84:87], s88 offen')
        a('s_add_u32 s88, s88, 256')
    a('s_waitcnt vmcnt(0)')


def role_static(a, exit_label):
    a(f's_and_b32 s{S_J}, s2, 7')
    a(f's_cmp_ge_u32 s{S_J}, 2'); a(f's_cbranch_scc1 {exit_label}')
    a(f's_lshr_b32 s{S_H}, s2, 3')


def role_dynamic(a, cfg, P, exit_label, nx=2):
    SM = f's[{S_SM}:{S_SM+3}]'
    T0, T1, T2, T3 = f's{S_T0}', f's{S_T1}', f's{S_T2}', f's{S_T3}'
    lw, lp, dec, fb, bc = (f'{P}_RD{i}' for i in range(5))
    a(f's_cmp_eq_u32 s{S_WV}, 0')
    a(f's_cbranch_scc0 {lw}')
    a(f's_getreg_b32 {T0}, hwreg(HW_REG_XCC_ID, 0, 4)')
    a(f's_lshl_b32 {T1}, {T0}, 7'); a(f's_add_u32 {T1}, {T1}, {C_CNT}')
    a('v_mov_b32 v8, 1'); a('v_mov_b32 v9, 0')
    a('s_mov_b64 exec, 1')
    a(f'buffer_atomic_add v8, v9, {SM}, {T1} offen sc0 sc1')
    a('s_waitcnt vmcnt(0)')
    a(f'v_readfirstlane_b32 {T2}, v8')
    a('s_mov_b64 exec, 0x1ffff')
    a(f'v_lshlrev_b32 v9, 3, v{V_L16}')
    a(f's_mov_b32 {T1}, {C_CNT}')
    a(f's_mov_b32 {T3}, {1 if cfg.force_fallback else 4000}')
    a.label(lp)
    a(f'buffer_load_dword v10, v9, {SM}, {T1} offen sc1')
    a('s_waitcnt vmcnt(0)')
    a(f'v_readlane_b32 s{S_MODE}, v10, 16')
    a(f's_cmp_lg_u32 s{S_MODE}, 0')
    a(f's_cbranch_scc1 {fb}')
    a('v_cmp_gt_u32 vcc, 32, v10')
    a(f's_and_b32 s64, vcc_lo, {(1 << nx) - 1}')
    if cfg.force_fallback:
        a('s_or_b32 s64, s64, 1')
    a(f's_mov_b32 s{S_MODE}, 1')
    a('s_cmp_eq_u32 s64, 0')
    a(f's_cbranch_scc1 {dec}')
    a(f's_mov_b32 s{S_MODE}, 2')
    a(f's_sub_u32 {T3}, {T3}, 1')
    a(f's_cmp_eq_u32 {T3}, 0')
    a(f's_cbranch_scc0 {lp}')
    a.label(dec)
    a('s_mov_b64 exec, 1')
    a(f'v_mov_b32 v10, s{S_MODE}'); a('v_mov_b32 v11, 0'); a('v_mov_b32 v9, 0')
    a(f's_mov_b32 {T1}, {C_CNT + CNT_MODE}')
    a(f'buffer_atomic_cmpswap v[10:11], v9, {SM}, {T1} offen sc0 sc1')
    a('s_waitcnt vmcnt(0)')
    a(f'v_readfirstlane_b32 {T1}, v10')
    a(f's_cmp_eq_u32 {T1}, 0')
    a(f's_cselect_b32 s{S_MODE}, s{S_MODE}, {T1}')
    a.label(fb)
    a('s_mov_b64 exec, 1')
    a(f's_cmp_eq_u32 s{S_MODE}, 1')
    a(f's_cbranch_scc1 {bc}')
    a('v_mov_b32 v8, 1'); a('v_mov_b32 v9, 0')
    a(f's_mov_b32 {T1}, {C_CNT + CNT_FB}')
    a(f'buffer_atomic_add v8, v9, {SM}, {T1} offen sc0 sc1')
    a('s_waitcnt vmcnt(0)')
    a(f'v_readfirstlane_b32 {T2}, v8')
    a(f's_and_b32 {T0}, {T2}, 1')
    a(f's_lshr_b32 {T1}, {T2}, 1')
    a(f's_mov_b32 {T2}, {T1}')
    a.label(bc)
    a(f's_cmp_lt_u32 {T0}, 2'); a(f's_cselect_b32 {T1}, 4, 0')
    a(f's_cmp_lt_u32 {T2}, 32'); a(f's_cselect_b32 {T1}, {T1}, 0')
    a(f's_or_b32 {T1}, {T1}, s{S_MODE}')
    a(f's_lshl_b32 {T2}, {T2}, 8'); a(f's_or_b32 {T1}, {T1}, {T2}')
    a(f's_lshl_b32 {T0}, {T0}, 24'); a(f's_or_b32 {T1}, {T1}, {T0}')
    a(f'v_mov_b32 v8, {T1}'); a(f'v_mov_b32 v9, {L_R}')
    a('ds_write_b32 v9, v8')
    a('s_mov_b64 exec, -1')
    a('s_waitcnt lgkmcnt(0)')
    a.label(lw)
    a('s_barrier')
    a(f'v_mov_b32 v9, {L_R}')
    a('ds_read_b32 v8, v9')
    a('s_waitcnt lgkmcnt(0)')
    a(f'v_readfirstlane_b32 s{S_LID}, v8')
    a(f's_and_b32 s{S_MODE}, s{S_LID}, 3')
    a(f's_lshr_b32 s{S_J}, s{S_LID}, 24')
    a(f's_bfe_u32 s{S_H}, s{S_LID}, 0x100008')
    a(f's_bitcmp1_b32 s{S_LID}, 2')
    a(f's_cbranch_scc0 {exit_label}')
    a(f's_and_b32 s{S_H}, s{S_H}, 31'); a(f's_and_b32 s{S_J}, s{S_J}, 1')


def common_setup(a, extra=()):
    a(f's_load_dwordx2 s[{S_WS}:{S_WS+1}], s[0:1], {KA_WS}')
    for x in extra: a(x)
    a('v_lshrrev_b32 v1, 6, v0')
    a(f'v_and_b32 v{V_L16}, 63, v0')
    a(f'v_readfirstlane_b32 s{S_WV}, v1')
    a(f'v_lshlrev_b32 v{V_L16}, 4, v{V_L16}')
    a(f's_mov_b32 s{S_LO8}, 0x00ff00ff'); a(f's_mov_b32 s{S_LO8+1}, 0x00ff00ff')
    a(f's_mov_b32 s{S_HI8}, 0xff00ff00'); a(f's_mov_b32 s{S_HI8+1}, 0xff00ff00')
    a(f's_mov_b32 s{S_BUD}, 400000')
    a(f's_mov_b32 s{S_SC}, 0x{SOFT_C:x}')
    a('s_waitcnt lgkmcnt(0)')
    a.srd(S_SM, S_WS, SM_SIZE, add=WS_SM)
    a.srd(S_KV, S_WS, 32 << 20, add=WS_KF)
    a.srd(S_X, S_WS, 64 << 20, add=WS_X)


def role_setup(a, cfg):
    W, H, J = f's{S_WV}', f's{S_H}', f's{S_J}'
    T0, T1, T2 = f's{S_T0}', f's{S_T1}', f's{S_T2}'
    ln, t1, t2 = 8, 9, 10
    a(f'v_lshrrev_b32 v{ln}, 4, v{V_L16}')
    a(f'v_mov_b32 v{V_IDX}, 0xeeee'); a(f'v_mov_b32 v{t1}, 0x4444')
    a(f'v_cndmask_b32 v{V_IDX}, v{V_IDX}, v{t1}, s[{S_LO8}:{S_LO8+1}]')
    a(f's_lshl_b32 {T0}, {W}, 11')
    a(f'v_add_u32 v{V_AGP}, {T0}, v{V_L16}')
    a(f'v_lshrrev_b32 v{t1}, 5, v{ln}'); a(f'v_lshlrev_b32 v{t1}, 10, v{t1}')
    a(f'v_bfe_u32 v{t2}, v{ln}, 4, 1'); a(f'v_lshl_add_u32 v{t1}, v{t2}, 9, v{t1}')
    a(f'v_bfe_u32 v{t2}, v{ln}, 3, 1'); a(f'v_lshl_add_u32 v{t1}, v{t2}, 8, v{t1}')
    a(f'v_and_b32 v{t2}, 7, v{ln}'); a(f'v_lshl_add_u32 v{t1}, v{t2}, 4, v{t1}')
    a(f'v_add_u32 v{V_KDM}, {T0}, v{t1}')
    a(f's_lshl_b32 {T0}, {W}, 16'); a(f's_mul_i32 {T1}, {H}, {cfg.SH}'); a(f's_add_u32 {T0}, {T0}, {T1}')
    a(f'v_lshrrev_b32 v{t1}, 5, v{ln}'); a(f'v_lshlrev_b32 v{t1}, 13, v{t1}')
    a(f'v_bfe_u32 v{t2}, v{ln}, 4, 1'); a(f'v_mul_u32_u24 v{t2}, {cfg.SG}, v{t2}'); a(f'v_add_u32 v{t1}, v{t1}, v{t2}')
    a(f'v_bfe_u32 v{t2}, v{ln}, 1, 1'); a(f'v_mul_u32_u24 v{t2}, {cfg.SP}, v{t2}'); a(f'v_add_u32 v{t1}, v{t1}, v{t2}')
    a(f'v_bfe_u32 v{t2}, v{ln}, 2, 2'); a(f'v_lshl_add_u32 v{t1}, v{t2}, 4, v{t1}')
    a(f'v_and_b32 v{t2}, 1, v{ln}'); a(f'v_lshl_add_u32 v{t1}, v{t2}, 3, v{t1}')
    a(f'v_add_u32 v{V_PTW}, {T0}, v{t1}')
    a(f's_lshl_b32 {T0}, {H}, 8')
    a(f's_and_b32 {T1}, {W}, 1'); a(f's_lshl_b32 {T1}, {T1}, 7'); a(f's_add_u32 {T0}, {T0}, {T1}')
    a(f's_lshr_b32 {T1}, {W}, 1'); a(f's_lshl_b32 {T1}, {T1}, 6'); a(f's_add_u32 {T0}, {T0}, {T1}')
    a(f'v_and_b32 v{t1}, 3, v{ln}'); a(f'v_lshlrev_b32 v{t1}, 4, v{t1}')
    a(f'v_lshrrev_b32 v{t2}, 4, v{ln}'); a(f'v_lshl_add_u32 v{t1}, v{t2}, 2, v{t1}')
    a(f'v_add_u32 v{t1}, {T0}, v{t1}')
    a(f'v_and_b32 v{t2}, 12, v{ln}')
    a(f'v_cmp_eq_u32 vcc, 0, v{t2}')
    a(f'v_mov_b32 v{V_MFW}, 0x40000000')
    a('s_nop 1')
    a(f'v_cndmask_b32 v{V_MFW}, v{V_MFW}, v{t1}, vcc')
    a(f's_lshl_b32 {T0}, {J}, 13')
    a(f's_add_u32 s{S_MEMR}, {T0}, {C_MEMF}')
    a(f's_add_u32 s{S_MEMW}, s{S_MEMR}, 16384')
    a(f's_lshl_b32 {T0}, {J}, 18'); a(f's_add_u32 {T0}, {T0}, {C_PART}')
    for p in range(4):
        a(f's_add_u32 s{S_PW+p}, {T0}, {p*16384}')
    a(f's_lshl_b32 {T1}, {H}, 13'); a(f's_add_u32 s{S_PR}, {T0}, {T1}')
    a(f's_add_u32 s{S_PR2}, s{S_PR}, {16*cfg.SH}')
    a(f's_lshr_b32 {T0}, {W}, 1'); a(f's_mul_i32 {T0}, {T0}, {cfg.SG}')
    a(f's_and_b32 {T1}, {W}, 1'); a(f's_mul_i32 {T1}, {T1}, {cfg.SP}'); a(f's_add_u32 s{S_PRW}, {T0}, {T1}')
    a(f's_mul_i32 s{S_XBASE}, {H}, {cfg.NS*32768}')
    a(f's_lshl_b32 s{S_KVK}, {H}, 13')
    a(f's_add_u32 s{S_KVV}, s{S_KVK}, {16 << 20}')
    a(f's_lshl_b32 {T0}, {W}, 12'); a(f's_add_u32 s{S_KVB}, {T0}, {L_KV}')
    a(f's_lshl_b32 s{S_QKM}, {H}, 12'); a(f's_add_u32 s{S_QKM}, s{S_QKM}, {SM_QKM + 2048}')
    a(f's_lshl_b32 {T0}, {W}, 9'); a(f's_add_u32 s{S_QKM}, s{S_QKM}, {T0}')
    a(f's_lshl_b32 s{S_VMG}, {H}, 11'); a(f's_add_u32 s{S_VMG}, s{S_VMG}, {SM_VMG}'); a(f's_add_u32 s{S_VMG}, s{S_VMG}, {T0}')
    a(f's_mul_i32 {T0}, {W}, 1536'); a(f's_add_u32 s{S_SWB}, {T0}, {L_M}')
    a(f's_lshr_b32 {T0}, {W}, 1'); a(f's_lshl_b32 {T0}, {T0}, 10')
    a(f's_and_b32 {T1}, {W}, 1'); a(f's_lshl_b32 {T1}, {T1}, 3')
    a(f's_add_u32 {T0}, {T0}, {T1}'); a(f's_add_u32 s{S_OWB}, {T0}, {L_O}')
    a(f's_mov_b32 s{S_STEP}, 0')


def x_offsets(a, cfg):
    T0, T1 = f's{S_T0}', f's{S_T1}'
    a(f's_lshl_b32 {T0}, s{S_NEAR}, 13'); a(f's_add_u32 {T0}, {T0}, s{S_XBASE}')
    a(f's_lshl_b32 {T1}, s{S_WV}, 11'); a(f's_add_u32 {T0}, {T0}, {T1}')
    a(f's_lshl_b32 {T1}, s{S_J}, 14')
    a(f's_add_u32 s{S_XW}, {T0}, {T1}')
    a(f's_xor_b32 s{S_XR}, s{S_XW}, 0x4000')
    a(f's_add_u32 s{S_XC}, s{S_XW}, {(3 % cfg.NS) * 32768}')


def const_tables(a):
    ln, t1, t2, js, c0, one = 8, 9, 10, 11, 12, 13
    R = 16
    a(f'v_lshrrev_b32 v{ln}, 4, v{V_L16}')
    a(f'v_add_u32 v{t2}, {L_C}, v{V_L16}')
    a(f'v_mov_b32 v{c0}, v{t2}')
    def onehot(cond_vcc):
        a(f'v_and_b32 v{t1}, 1, v{js}')
        a(f'v_lshlrev_b32 v{t1}, 4, v{t1}')
        a(f'v_mov_b32 v{one}, 0x3f80')
        a(f'v_lshlrev_b32 v{one}, v{t1}, v{one}')
        a(f'v_lshrrev_b32 v{t1}, 1, v{js}')
        for q in range(4):
            a(f'v_cmp_eq_u32 vcc, {q}, v{t1}')
            a('s_nop 1')
            a(f'v_cndmask_b32 v{R+q}, 0, v{one}, vcc')
    for tp in range(2):
        a(f'v_and_b32 v{js}, 3, v{ln}')
        a(f'v_bfe_u32 v{t1}, v{ln}, 3, 1'); a(f'v_lshl_add_u32 v{js}, v{t1}, 2, v{js}')
        a(f'v_bfe_u32 v{t1}, v{ln}, 2, 1'); a(f'v_bfe_u32 v{t2}, v{ln}, 4, 1')
        a(f'v_xor_b32 v{t1}, v{t1}, v{t2}')
        a(f'v_lshrrev_b32 v{t2}, 5, v{ln}'); a(f'v_xor_b32 v{t2}, {tp}, v{t2}')
        a(f'v_or_b32 v{t1}, v{t1}, v{t2}')
        a(f'v_lshl_add_u32 v{js}, v{t1}, 6, v{js}')
        onehot(None)
        a(f'ds_write_b128 v{c0}, v[{R}:{R+3}] offset:{tp*1024}')
        a('s_waitcnt lgkmcnt(0)')
    a(f'v_and_b32 v{js}, 7, v{ln}')
    onehot(None)
    a(f'ds_write_b128 v{c0}, v[{R}:{R+3}] offset:2048')
    a('s_waitcnt lgkmcnt(0)')


EXP_LIN = False
EXP_FL = ''
EXP_REG = False
EXP_STAMP = False
def stage_weights(a, tag, mid=None):
    W, H, J = f's{S_WV}', f's{S_H}', f's{S_J}'
    T0, T1, T2, T3 = f's{S_T0}', f's{S_T1}', f's{S_T2}', f's{S_T3}'
    LN, t1, t2, t3 = 8, 9, 10, 11
    VD = 12
    TB = [14, 15, 16, 17]
    TC = [18, 19, 20, 21]
    VOF = [24 + f for f in range(4)]
    OB = [32 + n for n in range(8)]
    OC = [40 + n for n in range(8)]
    V_WL = 48
    a(f'v_lshrrev_b32 v{LN}, 4, v{V_L16}')
    a(f'v_lshrrev_b32 v{t1}, 4, v{LN}')
    a(f'v_and_b32 v{t2}, 1, v{t1}')
    a(f'v_lshrrev_b32 v{t3}, 1, v{t1}'); a(f'v_lshl_or_b32 v{t2}, v{t3}, 2, v{t2}')
    a(f'v_and_b32 v{t3}, 15, v{LN}'); a(f'v_xor_b32 v{t2}, v{t2}, v{t3}')
    a(f'v_lshlrev_b32 v{t1}, 13, v{t1}'); a(f'v_lshl_add_u32 v{t1}, v{t2}, 4, v{t1}')
    a(f's_lshl_b32 {T0}, {H}, 8')
    a(f'v_add_u32 v{VD}, {T0}, v{t1}')
    a(f'v_lshrrev_b32 v{t1}, 4, v{LN}'); a(f'v_lshlrev_b32 v{t1}, 3, v{t1}')
    a(f'v_bfe_u32 v{t2}, v{LN}, 2, 2'); a(f'v_add_u32 v{t1}, v{t1}, v{t2}')
    a(f'v_lshlrev_b32 v{t1}, 8, v{t1}')
    a(f'v_and_b32 v{t3}, 1, v{t2}'); a(f'v_lshrrev_b32 v{t2}, 1, v{t2}'); a(f'v_lshl_or_b32 v{t2}, v{t2}, 2, v{t3}')
    a(f'v_bfe_u32 v{t3}, v{LN}, 1, 1'); a(f'v_lshlrev_b32 v{t3}, 1, v{t3}')
    a(f's_lshl_b32 {T0}, {W}, 2'); a(f'v_add_u32 v{t3}, {T0}, v{t3}')
    a(f'v_xor_b32 v{t2}, v{t2}, v{t3}')
    a(f'v_lshl_add_u32 v{t1}, v{t2}, 4, v{t1}')
    a(f'v_and_b32 v{t2}, 1, v{LN}'); a(f'v_lshl_add_u32 v{t1}, v{t2}, 3, v{t1}')
    for x in range(2):
        a(f's_and_b32 {T0}, {W}, 1'); a(f's_xor_b32 {T0}, {T0}, {x}'); a(f's_lshl_b32 {T0}, {T0}, 15')
        a(f'v_add_u32 v{TB[2*x]}, {T0}, v{t1}')
        a(f'v_xor_b32 v{TB[2*x+1]}, 16, v{TB[2*x]}')
        a(f'v_add_u32 v{TC[2*x]}, {L_WB}, v{TB[2*x]}')
        a(f'v_add_u32 v{TC[2*x+1]}, {L_WB}, v{TB[2*x+1]}')
    a(f's_lshl_b32 {T0}, {J}, 10'); a(f'v_add_u32 v{t1}, {T0}, v{V_L16}')
    for f in range(4):
        a(f'v_xor_b32 v{VOF[f]}, {f << 5}, v{t1}')
    a(f'v_bfe_u32 v{t1}, v{LN}, 4, 1'); a(f'v_lshlrev_b32 v{t1}, 5, v{t1}')
    a(f'v_lshrrev_b32 v{t2}, 5, v{LN}'); a(f'v_lshl_add_u32 v{t1}, v{t2}, 2, v{t1}')
    a(f'v_bfe_u32 v{t2}, v{LN}, 2, 2'); a(f'v_add_u32 v{t1}, v{t1}, v{t2}')
    a(f'v_lshlrev_b32 v{t1}, 10, v{t1}')
    a(f'v_lshl_add_u32 v{t1}, v{t2}, 5, v{t1}')
    a(f'v_and_b32 v{t2}, 3, v{LN}'); a(f'v_lshl_add_u32 v{t1}, v{t2}, 3, v{t1}')
    a(f's_lshl_b32 {T0}, {W}, 8'); a(f'v_add_u32 v{t1}, {T0}, v{t1}')
    for n in range(8):
        a(f'v_xor_b32 v{OB[n]}, {n << 5}, v{t1}')
        a(f'v_add_u32 v{OC[n]}, {L_WB}, v{OB[n]}')
    a(f's_lshl_b32 {T0}, {W}, 14'); a(f'v_add_u32 v{V_WL}, {T0}, v{V_L16}')

    def load_ptr(ka):
        a(f's_load_dwordx2 s[{S_PTR}:{S_PTR+1}], s[0:1], {ka}')
        a('s_waitcnt lgkmcnt(0)')
        a.srd(S_W, S_PTR, 8 << 20)

    def dma_qkv(P, region):
        if EXP_LIN:
            a(f's_lshl_b32 {T0}, {H}, 1'); a(f's_add_u32 {T0}, {T0}, {J}'); a(f's_lshl_b32 {T0}, {T0}, 17')
            a(f's_lshl_b32 {T1}, {W}, 14'); a(f's_add_u32 {T0}, {T0}, {T1}'); a(f's_add_u32 {T0}, {T0}, {P << 16}')
            a(f's_add_u32 m0, {T1}, {region}')
            for i in range(16):
                a(f'buffer_load_dwordx4 v{V_L16}, s[{S_W}:{S_W+3}], {T0} offen lds')
                if i < 15:
                    a(f's_add_u32 {T0}, {T0}, 1024'); a('s_add_u32 m0, m0, 1024'); a('s_nop 0')
            return
        a(f's_lshl_b32 {T0}, {J}, 22'); a(f's_lshl_b32 {T1}, {W}, 19'); a(f's_add_u32 {T0}, {T0}, {T1}')
        a(f's_add_u32 {T0}, {T0}, {P << 21}')
        a(f's_lshl_b32 {T1}, {W}, 14'); a(f's_add_u32 m0, {T1}, {region}')
        for i in range(16):
            if EXP_REG: a(f'buffer_load_dwordx4 v[{128 + (P*16 + i)*4 % 128}:{131 + (P*16 + i)*4 % 128}], v{VD}, s[{S_W}:{S_W+3}], {T0} offen{EXP_FL}')
            else: a(f'buffer_load_dwordx4 v{VD}, s[{S_W}:{S_W+3}], {T0} offen{EXP_FL} lds')
            if i < 15:
                a(f's_add_u32 {T0}, {T0}, 32768'); a('s_add_u32 m0, m0, 1024'); a('s_nop 0')

    def dma_wo(cp, region):
        a(f's_lshl_b32 {T0}, {H}, 7'); a(f's_lshl_b32 {T1}, {W}, 4'); a(f's_add_u32 {T0}, {T0}, {T1}')
        a(f's_add_u32 {T0}, {T0}, {64*cp}'); a(f's_lshl_b32 {T0}, {T0}, 11')
        a(f's_lshl_b32 {T1}, {W}, 14'); a(f's_add_u32 m0, {T1}, {region}')
        for i in range(16):
            a(f'buffer_load_dwordx4 v{VOF[i & 3]}, s[{S_W}:{S_W+3}], {T0} offen{EXP_FL} lds')
            if i < 15:
                a(f's_add_u32 {T0}, {T0}, 2048'); a('s_add_u32 m0, m0, 1024'); a('s_nop 0')

    def read_qkv_range(base_pi, tb, dest):
        n = 0
        for pl in range(4):
            pi = base_pi + pl
            for tau in range(2):
                d = dest(pi, tau)
                for hq in range(2):
                    for q in range(2):
                        r = 4*hq + 2*q
                        a(f'ds_read_b64_tr_b16 {d(r)}, v{tb[2*(pl >> 1) + tau]} offset:{(pl & 1)*16384 + hq*8192 + q*1024}')
                a('s_waitcnt lgkmcnt(8)')

    def read_qkv(P, tb, dest, nm):
        l1, l2 = f'{tag}_ST{nm}A', f'{tag}_ST{nm}B'
        a(f's_lshr_b32 {T0}, {W}, 1'); a(f's_cmp_eq_u32 {T0}, {P}')
        a(f's_cbranch_scc0 {l1}')
        read_qkv_range(0, tb, dest)
        a(f's_branch {l2}')
        a.label(l1)
        read_qkv_range(4, tb, dest)
        a.label(l2)

    def read_wo(ad, dest):
        for nu in range(8):
            for hq in range(2):
                for q in range(2):
                    r = dest + 8*nu + 4*hq + 2*q
                    a(f'ds_read_b64_tr_b16 v[{r}:{r+1}], v{ad[nu]} offset:{hq*16384 + q*8192}')
            a('s_waitcnt lgkmcnt(8)')

    dq = lambda pi, t: (lambda r: f'a[{16*pi+8*t+r}:{16*pi+8*t+r+1}]')
    dk = lambda pi, t: (lambda r: f'a[{128+16*pi+8*t+r}:{128+16*pi+8*t+r+1}]')
    def dv(pi, t):
        b = WV_R + 16*pi + 8*t if pi < 4 else SREG + 16*(pi-4) + 8*t
        return lambda r: f'v[{b+r}:{b+r+1}]'

    pieces = [('q', 0), ('q', 1), ('k', 0), ('k', 1), ('v', 0), ('v', 1), ('o', 0), ('o', 1)]
    ptrs = {'q': KA_WQ, 'k': KA_WK, 'v': KA_WV, 'o': KA_WO}
    def issue(n):
        m, P = pieces[n]
        if P == 0: load_ptr(ptrs[m])
        reg = L_WB if n & 1 else L_WA
        if m == 'o': dma_wo(P, reg)
        else: dma_qkv(P, reg)
    def xs(i):
        if EXP_STAMP:
            a('s_memrealtime s[88:89]'); a('s_waitcnt lgkmcnt(0)'); a(f'v_writelane_b32 v60, s88, {i}')
    xs(2)
    issue(0); issue(1)
    if mid: mid(a)
    xs(3)
    for n in range(8):
        m, P = pieces[n]
        a(f's_waitcnt vmcnt({16 if n < 7 else 0})')
        xs(4 + 2*n)
        a('s_barrier')
        tb = TC if n & 1 else TB
        if m == 'q': read_qkv(P, tb, dq, n)
        elif m == 'k': read_qkv(P, tb, dk, n)
        elif m == 'v': read_qkv(P, tb, dv, n)
        elif P == 0: read_wo(OB, WO_R)
        else: read_wo(OC, SREG)
        a('s_waitcnt lgkmcnt(0)')
        xs(5 + 2*n)
        a('s_barrier')
        if n + 2 < 8: issue(n + 2)
        if n == 6:
            for i in range(16):
                r = SREG + 4*i
                a(f'ds_write_b128 v{V_WL}, v[{r}:{r+3}] offset:{L_WA + i*1024}')
            a('s_waitcnt lgkmcnt(0)')
        if n == 7:
            a(f'v_add_u32 v{V_WL}, {L_WB}, v{V_WL}')
            for i in range(16):
                r = SREG + 4*i
                a(f'ds_write_b128 v{V_WL}, v[{r}:{r+3}] offset:{i*1024}')
            a('s_waitcnt lgkmcnt(0)')


def kv_dma(cfg):
    KV = f's[{S_KV}:{S_KV+3}]'
    out = []
    out.append([f's_mov_b32 m0, s{S_KVB}', 's_nop 0', f'buffer_load_dwordx4 v{V_KDM}, {KV}, s{S_KVK} offen lds'])
    out.append([f's_add_u32 m0, s{S_KVB}, {1024-128}', 's_nop 0', f'buffer_load_dwordx4 v{V_KDM}, {KV}, s{S_KVK} offen offset:128 lds'])
    out.append([f's_add_u32 m0, s{S_KVB}, 2048', 's_nop 0', f'buffer_load_dwordx4 v{V_KDM}, {KV}, s{S_KVV} offen lds'])
    out.append([f's_add_u32 m0, s{S_KVB}, {3072-128}', 's_nop 0', f'buffer_load_dwordx4 v{V_KDM}, {KV}, s{S_KVV} offen offset:128 lds'])
    return out


def svload():
    return [f'ds_read_b128 v[{SREG+4*i}:{SREG+4*i+3}], v{V_T2} offset:{L_WA + i*1024}' for i in range(16)]

def wl_addr(a, dst, add=0):
    a(f's_lshl_b32 s{S_T0}, s{S_WV}, 14')
    if add: a(f's_add_u32 s{S_T0}, s{S_T0}, {add}')
    a(f'v_add_u32 v{dst}, s{S_T0}, v{V_L16}')


def rec_loop(a, cfg, P, sfl, dbg=None):
    SM = f's[{S_SM}:{S_SM+3}]'
    X = f's[{S_X}:{S_X+3}]'
    LO = f's[{S_LO8}:{S_LO8+1}]'
    HI = f's[{S_HI8}:{S_HI8+1}]'
    dbg = dbg or {}
    L = lambda s: f'{P}_{s}'
    def D(name, regs, tmp=V_T):
        if name in dbg:
            lab = a.newlabel(P + 'DBG')
            a(f's_cmp_lg_u32 s{S_STEP}, {dbg[name][1]}')
            a(f's_cbranch_scc1 {lab}')
            dbg_dump(a, regs, dbg[name][0], tmp)
            a.label(lab)
    prof = dbg.get('prof')
    global NOPK
    NOPK = cfg.NOPK
    stamps = getattr(cfg, 'stamps', None) or list(range(15))
    def ST(i):
        if prof is not None and i in stamps:
            k = stamps.index(i)
            if getattr(cfg, 'RT', False):
                if i == 14:
                    a(f's_mov_b64 s[94:95], s[{64+2*k}:{65+2*k}]') if False else None
                if i == 0:
                    k14 = stamps.index(14)
                    a('s_waitcnt lgkmcnt(0)')
                    a(f's_mov_b64 s[{64+2*14}:{65+2*14}], s[{64+2*k14}:{65+2*k14}]')
                a(f's_memrealtime s[{64+2*k}:{65+2*k}]')
            else:
                a(f's_memtime s[{64+2*k}:{65+2*k}]')

    MWr, A1, A2, A3 = AM + 8, AM + 12, AM + 20, AM + 28
    NEG = 24
    def top_prep():
        out = []
        out.append(f'v_add_u32 v{MWr}, {L_M}, v{V_AGP}')
        out.append(f'v_xor_b32 v{A1}, 0x800, v{MWr}')
        out.append(f'v_xor_b32 v{A2}, 0x1000, v{MWr}')
        out.append(f'v_xor_b32 v{A3}, 0x1800, v{MWr}')
        for r in range(40, 64, 2):
            out.append(f'v_mov_b64 v[{r}:{r+1}], 0')
        return out

    wl_addr(a, V_T2)
    sv0 = svload()
    a.ext(sv0[:8]); a('s_waitcnt lgkmcnt(0)'); a.ext(sv0[8:])
    a.ext(top_prep())
    for r in range(4): a(f'v_mov_b32 v{NEG+r}, -1')
    if cfg.kvflag is not None:
        a(f's_lshr_b32 s{S_KVFB}, s{S_H}, 1'); a(f's_lshl_b32 s{S_KVFB}, s{S_KVFB}, 4')
        a(f's_add_u32 s{S_KVFB}, s{S_KVFB}, {cfg.kvflag}')
        a(f's_mov_b32 s{S_KVOK}, 0')
    a.label(L('TOP'))
    if cfg.kvflag is not None:
        a(f's_cmp_eq_u32 s{S_KVOK}, 0'); a(f's_cbranch_scc1 {L("KVW")}')
        a.label(L('KVB'))
        if getattr(cfg, 'tl', False):
            lab = a.newlabel(P + 'TL')
            a(f's_cmp_lg_u32 s{S_STEP}, 0'); a(f's_cbranch_scc1 {lab}')
            a('s_memrealtime s[88:89]'); a('s_waitcnt lgkmcnt(0)'); a('s_mov_b32 s75, s88')
            a.label(lab)
    ST(0)
    a.label(L('PM'))
    a(f'buffer_load_dwordx4 v[{AM}:{AM+3}], v{V_AGP}, {SM}, s{S_MEMR} offen sc1')
    a(f'buffer_load_dwordx4 v[{AM+4}:{AM+7}], v{V_AGP}, {SM}, s{S_MEMR} offen offset:1024 sc1')
    a('s_waitcnt vmcnt(0)')
    max_chain(a, V_T, list(range(AM, AM + 8)))
    a(f'v_cmp_eq_u32 vcc, -1, v{V_T}')
    poll_end(a, L('PM'), L('PM_D'))
    ST(1)
    a(f'ds_write_b128 v{MWr}, v[{AM}:{AM+3}]')
    a(f'ds_write_b128 v{MWr}, v[{AM+4}:{AM+7}] offset:1024')
    def qk(pi):
        A = AM + 4*pi
        return [smf(AQ0, A, wq(pi, 0)), smf(AQ1, A, wq(pi, 1)), smf(AK0, A, wk(pi, 0)), smf(AK1, A, wk(pi, 1))]
    def qk4(pi): a.ext(qk(pi))
    def vv(pi): return [smf(AV0, AM + 4*pi, wv(pi, 0)), smf(AV1, AM + 4*pi, wv(pi, 1))]
    kvd = kv_dma(cfg) if 'kv' not in cfg.skip else [[], [], [], []]
    xcl = [f'buffer_store_dwordx4 v[{NEG}:{NEG+3}], v{V_L16}, {X}, s{S_XC} offen sc1',
           f'buffer_store_dwordx4 v[{NEG}:{NEG+3}], v{V_L16}, {X}, s{S_XC} offen offset:1024 sc1']
    m = qk(0)
    a(m[0]); a.ext(kvd[0]); a(m[1]); a.ext(kvd[1]); a(m[2]); a(xcl[0]); a(m[3]); a(xcl[1])
    a('s_waitcnt lgkmcnt(0)')
    a('s_barrier')
    ST(2)
    for pi in range(2, 8):
        ad = [A1, A2, A3][(pi >> 1) - 1]
        a(f'ds_read_b128 v[{AM+4*pi}:{AM+4*pi+3}], v{ad} offset:{(pi & 1)*1024}')
    m = qk(1)
    a(m[0]); a.ext(kvd[2]); a(m[1]); a.ext(kvd[3]); a(m[2]); a(m[3])
    a.ext(vv(0)); a.ext(vv(1))
    D('AM', list(range(AM, AM + 32)))
    fine = prof is not None and 'q0' in stamps
    ST('q0')
    for pi in range(2, 6):
        a(f's_waitcnt lgkmcnt({0 if fine else 7 - pi})')
        ST(f'q{pi}w')
        qk4(pi)
    a('s_waitcnt lgkmcnt(0)')
    ST('q6')
    for pi in (6, 7):
        a(smf(AQ0, AM + 4*pi, wq(pi, 0))); a(smf(AQ1, AM + 4*pi, wq(pi, 1)))
    a(smf(AK0, AM + 24, wk(6, 0))); a(smf(AK1, AM + 24, wk(6, 1)))
    ST('q7')
    a(f'v_permlane32_swap_b32 v{AQ0}, v{AQ1}')
    a(f'v_permlane32_swap_b32 v{AQ0+1}, v{AQ1+1}')
    a(f'v_permlane32_swap_b32 v{AQ0+2}, v{AQ1+2}')
    a(smf(AK0, AM + 28, wk(7, 0)))
    a(f'v_permlane32_swap_b32 v{AQ0+3}, v{AQ1+3}')
    a(pkadd(AQ0, AQ0, AQ1))
    a(smf(AK1, AM + 28, wk(7, 1)))
    a(pkadd(AQ0 + 2, AQ0 + 2, AQ1 + 2))
    a('s_nop 0')
    a(f'v_cvt_pk_bf16_f32 v{XS}, v{AQ0}, v{AQ0+1}')
    VS = []
    for pi in [4, 5, 6, 7, 2, 3]: VS += vv(pi)
    a(VS[0])
    a(f'v_cvt_pk_bf16_f32 v{XS+1}, v{AQ0+2}, v{AQ0+3}')
    a('s_nop 1')
    a(VS[1])
    ST('q8')
    for r in range(4):
        a(f'v_permlane32_swap_b32 v{AK0+r}, v{AK1+r}')
    a(VS[2])
    a(pkadd(AK0, AK0, AK1)); a(pkadd(AK0 + 2, AK0 + 2, AK1 + 2))
    a('s_nop 0')
    a(f'v_cvt_pk_bf16_f32 v{XS+2}, v{AK0}, v{AK0+1}')
    a(f'v_cvt_pk_bf16_f32 v{XS+3}, v{AK0+2}, v{AK0+3}')
    a(VS[3])
    a(f'buffer_store_dwordx4 v[{XS}:{XS+3}], v{V_L16}, {X}, s{S_XW} offen sc1')
    if cfg.PQ_EARLY:
        a(f'buffer_load_dwordx4 v[{RX}:{RX+3}], v{V_L16}, {X}, s{S_XR} offen sc1')
    ST(3)
    D('XS', [XS, XS+1, XS+2, XS+3])
    wl_addr(a, V_T2, L_WB)
    wo_ld = [f'ds_read_b128 v[{SREG+4*i}:{SREG+4*i+3}], v{V_T2} offset:{i*1024}' for i in range(16)]
    a(f'v_add_u32 v{V_T}, {L_C}, v{V_L16}')
    a(VS[4]); a(wo_ld[0]); a(wo_ld[1]); a(wo_ld[2])
    a(VS[5]); a(wo_ld[3]); a(wo_ld[4]); a(wo_ld[5])
    a(VS[6]); a(wo_ld[6]); a(wo_ld[7])
    a(VS[7])
    a(f'ds_read_b128 v[{SEL0}:{SEL0+3}], v{V_T}')
    a(f'ds_read_b128 v[{SEL1}:{SEL1+3}], v{V_T} offset:1024')
    a(VS[8]); a(wo_ld[8]); a(wo_ld[9])
    a(VS[9]); a(wo_ld[10]); a(wo_ld[11])
    a(VS[10])
    a('s_waitcnt lgkmcnt(4)')
    a(wo_ld[12]); a(wo_ld[13])
    a(VS[11])
    a(mf32(D0, XS, SEL0))
    a(wo_ld[14]); a(wo_ld[15])
    a(mf32(D1, XS, SEL1))
    a(f'v_lshrrev_b32 v{V_T2}, 1, v{V_L16}')
    a('s_nop 4')
    for r in range(4):
        a(f'v_permlane32_swap_b32 v{AV0+r}, v{AV1+r}')
    a('s_nop 0')
    a(pkadd(AV0, AV0, AV1)); a(pkadd(AV0 + 2, AV0 + 2, AV1 + 2))
    a('s_nop 0')
    a(f'v_cvt_pk_bf16_f32 v{VA}, v{AV0}, v{AV0+1}')
    a(f'v_cvt_pk_bf16_f32 v{VA+1}, v{AV0+2}, v{AV0+3}')
    a('s_nop 1')
    a(f'v_permlane16_swap_b32 v{VA}, v{VA+1}')
    a('s_nop 1')
    a(f'v_permlane32_swap_b32 v{VA}, v{VA+1}')
    a('s_nop 1')
    a(f'buffer_store_dwordx2 v[{VA}:{VA+1}], v{V_T2}, {X}, s{S_XW} offen offset:1024 sc1')
    ST(4)
    a('s_barrier')
    SW, SR, MR, PVA = XS, XS + 1, XS + 2, XS + 3
    a(f'v_mov_b32 v{PVA}, v{V_T2}')
    a(f'v_lshrrev_b32 v{SR}, 8, v{V_L16}'); a(f'v_lshlrev_b32 v{SR}, 7, v{SR}')
    a(f'v_and_b32 v{V_T}, 0x70, v{V_L16}')
    a(f'v_add_u32 v{SR}, v{SR}, v{V_T}')
    a(f'v_add_u32 v{SW}, s{S_SWB}, v{SR}')
    a(f'v_and_b32 v{V_T2}, 0x80, v{V_L16}')
    a(f'v_lshl_add_u32 v{SR}, v{V_T2}, 2, v{SR}')
    a(f'v_add_u32 v{SR}, {L_M}, v{SR}')
    a(f'v_lshrrev_b32 v{MR}, 9, v{V_L16}'); a(f'v_lshl_add_u32 v{MR}, v{MR}, 7, v{V_T}')
    a(f'v_bfe_u32 v{V_T}, v{V_L16}, 8, 1'); a(f'v_lshl_add_u32 v{MR}, v{V_T}, 3, v{MR}')
    a(f'v_bfe_u32 v{V_T}, v{V_L16}, 7, 1'); a(f'v_lshl_add_u32 v{MR}, v{V_T}, 2, v{MR}')
    a(f'v_add_u32 v{MR}, {L_M + 1280}, v{MR}')
    a(f'v_add_u32 v{V_T}, s{S_KVB}, v{V_L16}')
    a('s_waitcnt vmcnt(1)')
    ST(5)
    if cfg.PQ_EARLY:
        a(f'ds_read_b128 v[{KT0}:{KT0+3}], v{V_T}')
        a(f'ds_read_b128 v[{KT1}:{KT1+3}], v{V_T} offset:1024')
        a(f'ds_read_b128 v[{VT0}:{VT0+3}], v{V_T} offset:2048')
        a(f'ds_read_b128 v[{VT1}:{VT1+3}], v{V_T} offset:3072')
        max_chain(a, V_T2, [RX, RX+1, RX+2, RX+3])
        a(f'v_cmp_eq_u32 vcc, -1, v{V_T2}')
        a(f's_cbranch_vccz {L("PQ_D")}')
    a.label(L('PQ'))
    a(f'buffer_load_dwordx4 v[{RX}:{RX+3}], v{V_L16}, {X}, s{S_XR} offen sc1')
    if not cfg.PQ_EARLY:
        a(f'ds_read_b128 v[{KT0}:{KT0+3}], v{V_T}')
        a(f'ds_read_b128 v[{KT1}:{KT1+3}], v{V_T} offset:1024')
        a(f'ds_read_b128 v[{VT0}:{VT0+3}], v{V_T} offset:2048')
        a(f'ds_read_b128 v[{VT1}:{VT1+3}], v{V_T} offset:3072')
    a('s_waitcnt vmcnt(0)')
    max_chain(a, V_T2, [RX, RX+1, RX+2, RX+3])
    a(f'v_cmp_eq_u32 vcc, -1, v{V_T2}')
    poll_end(a, L('PQ'), L('PQ_D'))
    ST(6)
    a('s_waitcnt lgkmcnt(0)')
    a(mf32(D0, RX, SEL0, D0))
    a(mf32(D1, RX, SEL1, D1))
    a(f'buffer_load_dwordx2 v[{RV}:{RV+1}], v{PVA}, {X}, s{S_XR} offen offset:1024 sc1')
    a(f's_cmp_eq_u32 s{S_STEP}, s{S_NST}')
    a('s_nop 2')
    a(f'v_cvt_pk_bf16_f32 v{TT}, v{D0}, v{D0+1}')
    a(f'v_cvt_pk_bf16_f32 v{TT+1}, v{D0+2}, v{D0+3}')
    a('s_nop 0')
    a(f'v_cvt_pk_bf16_f32 v{TT+2}, v{D1}, v{D1+1}')
    a(f'v_cvt_pk_bf16_f32 v{TT+3}, v{D1+2}, v{D1+3}')
    a(f's_cbranch_scc1 {L("TAIL")}')
    a('s_nop 0')
    a(mf32(SA, KT0, TT))
    a(mf32(SB, KT1, TT))
    a(mf32(SMM, TT, TT))
    D('T', [TT, TT+1, TT+2, TT+3], V_T2)
    a(f's_mov_b64 exec, {LO}')
    a('s_nop 1')
    a(f'ds_write_b128 v{SW}, v[{SA}:{SA+3}]')
    a('s_nop 1')
    a(f'ds_write_b128 v{SW}, v[{SB}:{SB+3}] offset:512')
    a('s_nop 2')
    a(f'ds_write_b128 v{SW}, v[{SMM}:{SMM+3}] offset:1024')
    a('s_mov_b64 exec, -1')
    a('s_waitcnt lgkmcnt(0)')
    a('s_barrier')
    ST(7)
    a(f'ds_read2st64_b32 v[{MM}:{MM+1}], v{MR} offset0:0 offset1:6')
    a(f'ds_read2st64_b32 v[{MM+2}:{MM+3}], v{MR} offset0:12 offset1:18')
    for w in range(4):
        r = R0 + 4*w
        a(f'ds_read_b128 v[{r}:{r+3}], v{SR} offset:{w*1536}')
    a(f'v_mov_b32 v{V_T}, v{PVA}') if False else None
    for r in range(WACC[0], WACC[0] + 8, 2):
        a(f'v_mov_b64 v[{r}:{r+1}], 0')
    a('s_waitcnt lgkmcnt(4)')
    a(pkadd(MM, MM, MM + 2))
    a('s_waitcnt lgkmcnt(2)')
    a(pkadd(R0, R0, R1)); a(pkadd(R0 + 2, R0 + 2, R1 + 2))
    a(f'v_add_f32 v{MM}, v{MM}, v{MM+1}')
    M, M2 = MM + 2, MM + 3
    HALF = SUM + 2
    a('s_waitcnt lgkmcnt(0)')
    a(pkadd(R2, R2, R3)); a(pkadd(R2 + 2, R2 + 2, R3 + 2))
    a(pkadd(R0, R0, R2)); a(pkadd(R0 + 2, R0 + 2, R2 + 2))
    a(f'v_mov_b32 v{ONES}, 0x3f803f80')
    a(f'v_max3_f32 v{M}, v{R0}, v{R0+1}, v{MM}')
    a(f'v_mov_b32 v{ONES+1}, 0x3f803f80')
    a(f'v_max3_f32 v{M}, v{M}, v{R0+2}, v{R0+3}')
    D('S', [R0, R0+1, R0+2, R0+3, MM], V_T2)
    a(f'v_mov_b32 v{ONES+2}, 0x3f803f80')
    a(f'v_mov_b32 v{ONES+3}, 0x3f803f80')
    a(f'v_max_f32_dpp v{M}, v{M}, v{M} row_ror:8 row_mask:0xf bank_mask:0xf')
    a(f'v_mov_b32 v{PMQ+2}, 0x3f003f00')
    a(f'v_mov_b32 v{M2}, v{M}')
    a(f'v_mov_b32 v{PMQ+3}, 0x3f003f00')
    a('s_nop 0')
    a(f'v_permlane32_swap_b32 v{M}, v{M2}')
    a('s_nop 0')
    a(f'v_max_f32 v{M}, v{M}, v{M2}')
    a(f'v_mov_b32 v{M2}, v{M}')
    a('s_nop 1')
    a(f'v_permlane16_swap_b32 v{M}, v{M2}')
    a('s_nop 0')
    a(f'v_max_f32 v{M}, v{M}, v{M2}')
    a(f'v_mul_f32 v{M}, s{S_SC}, v{M}')
    E = [R0, R0+1, R0+2, R0+3, MM]
    for e in E:
        a(f'v_fma_f32 v{e}, v{e}, s{S_SC}, -v{M}')
    for e in (MM, R0, R0+1, R0+2, R0+3):
        a(f'v_exp_f32 v{e}, v{e}')
    a(f'v_mov_b32_dpp v{M2}, v{MM} row_ror:8 row_mask:0xf bank_mask:0xf')
    a(f'v_cvt_pk_bf16_f32 v{PB}, v{R0}, v{R0+1}')
    a(f'v_cvt_pk_bf16_f32 v{PB+1}, v{R0+2}, v{R0+3}')
    a(f'v_cvt_pk_bf16_f32 v{PMQ}, v{MM}, v{M2}')
    a(f'v_mov_b32_dpp v{PB+2}, v{PB} row_ror:8 row_mask:0xf bank_mask:0xf')
    a(f'v_mov_b32_dpp v{PB+3}, v{PB+1} row_ror:8 row_mask:0xf bank_mask:0xf')
    a(f'v_cvt_pk_bf16_f32 v{PMQ+1}, v{MM}, v{M2}')
    ST(8)
    a('s_waitcnt vmcnt(0)')
    a(mf32(SUM, ONES, PB))
    a(f'v_max_u32 v{V_T2}, v{RV}, v{RV+1}')
    a(f'v_cmp_eq_u32 vcc, -1, v{V_T2}')
    a(mf32(O0, VT0, PB))
    a(f's_cbranch_vccz {L("PV_D")}')
    a(f'v_lshrrev_b32 v{V_T}, 1, v{V_L16}')
    a.label(L('PV'))
    a(f'buffer_load_dwordx2 v[{RV}:{RV+1}], v{V_T}, {X}, s{S_XR} offen offset:1024 sc1')
    a('s_waitcnt vmcnt(0)')
    a(f'v_max_u32 v{V_T2}, v{RV}, v{RV+1}')
    a(f'v_cmp_eq_u32 vcc, -1, v{V_T2}')
    poll_end(a, L('PV'), L('PV_D'))
    a(f'v_swap_b32 v{VA+1}, v{RV}')
    a(mf32(O1, VT1, PB))
    a(mf16(SUM, PMQ + 2, PMQ, SUM))
    a(mf16(O0, VA, PMQ, O0))
    a(mf16(O1, VA + 2, PMQ, O1))
    ST(9)
    a(f'v_rcp_f32 v{V_T}, v{SUM}')
    a(f'v_add_u32 v{V_T2}, s{S_OWB}, v{V_L16}')
    for r in range(WACC[2], WACC[3] + 4, 2):
        pass
    for r in (48, 50):
        a(f'v_mov_b64 v[{r}:{r+1}], 0')
    for r in (32, 34):
        a(f'v_mov_b64 v[{r}:{r+1}], 0')
    a('s_nop 0')
    D('O', [O0+i for i in range(8)] + [SUM], 36)
    for r in (O0, O0 + 2, O1, O1 + 2):
        a(f'v_pk_mul_f32 v[{r}:{r+1}], v[{r}:{r+1}], v[{V_T}:{V_T+1}] op_sel_hi:[1,0]')
    a(f'v_cvt_pk_bf16_f32 v{OA}, v{O0}, v{O0+1}')
    a(f'v_cvt_pk_bf16_f32 v{OA+1}, v{O1}, v{O1+1}')
    a(f'v_cvt_pk_bf16_f32 v{OA+2}, v{O0+2}, v{O0+3}')
    a(f'v_cvt_pk_bf16_f32 v{OA+3}, v{O1+2}, v{O1+3}')
    a(f's_mov_b64 exec, {LO}')
    a(f'ds_write2_b64 v{V_T2}, v[{OA}:{OA+1}], v[{OA+2}:{OA+3}] offset0:0 offset1:16')
    a('s_mov_b64 exec, -1')
    a(f'v_add_u32 v{V_T}, {L_O}, v{V_L16}')
    for r in (36, 38, 40, 42, 44, 46, 52, 54):
        a(f'v_mov_b64 v[{r}:{r+1}], 0')
    a('s_waitcnt lgkmcnt(0)')
    a('s_barrier')
    ST(10)
    a(f'ds_read_b128 v[{OA}:{OA+3}], v{V_T}')
    a(f'ds_read_b128 v[{OA+4}:{OA+7}], v{V_T} offset:1024')
    if 'pub' not in cfg.skip: publish(a, cfg, P, 'A')
    if cfg.kvflag is not None:
        a(f's_add_u32 s{S_T0}, s{S_STEP}, 1'); a(f's_lshr_b32 s{S_T0}, s{S_T0}, 2'); a(f's_lshl_b32 s{S_T0}, s{S_T0}, 8')
        a(f's_add_u32 s{S_T0}, s{S_T0}, s{S_KVFB}')
        a(f'buffer_load_dwordx2 v[56:57], off, {SM}, s{S_T0} sc1')
    def wo0(nu): a(smf(WACC[nu], OA, v8(WO_R + 8*nu)))
    def wo1(nu): a(smf(WACC[nu], OA + 4, v8(SREG + 8*nu)))
    def pack(p):
        t0, t1 = WACC[2*p], WACC[2*p + 1]
        out = []
        for r in range(4): out.append(f'v_permlane32_swap_b32 v{t0+r}, v{t1+r}')
        out.append(pkadd(t0, t0, t1)); out.append(pkadd(t0 + 2, t0 + 2, t1 + 2))
        out.append(f'v_cvt_pk_bf16_f32 v{t1}, v{t0}, v{t0+1}')
        out.append(f'v_cvt_pk_bf16_f32 v{t1+1}, v{t0+2}, v{t0+3}')
        out.append(f'buffer_store_dwordx2 v[{t1}:{t1+1}], v{V_PTW}, {SM}, s{S_PW+p} offen{sfl}')
        return out
    ST('w0')
    a('s_waitcnt lgkmcnt(1)' if not (prof is not None and 'w0' in stamps) else 's_waitcnt lgkmcnt(0)')
    ST('w1')
    wo0(0); wo0(1)
    a('s_waitcnt lgkmcnt(0)')
    D('OA', [OA+i for i in range(8)])
    wo1(0); wo1(1)
    wo0(2); wo0(3)
    for p in range(1, 4):
        ST(f'w{p+1}')
        pk = pack(p - 1)
        a.ext(pk[0:3]); wo1(2*p); a.ext(pk[3:5]); a('s_nop 0'); wo1(2*p + 1); a(pk[5]); a('s_nop 0'); a.ext(pk[6:8])
        if p < 3:
            wo0(2*p + 2); a(pk[8]); wo0(2*p + 3)
        else:
            a(pk[8])
    ST('w5')
    wl_addr(a, V_T2)
    sv = svload()
    a.ext(sv[0:4])
    a('s_nop 1')
    pk = pack(3)
    a.ext(pk[0:4]); a('s_nop 0'); a.ext(pk[4:6]); a('s_nop 0'); a.ext(pk[6:9])
    ST(11)
    a.ext(sv[4:14])
    PRA = 28
    ln = 29
    a(f'v_lshrrev_b32 v{ln}, 4, v{V_L16}')
    if cfg.RS_PERM:
        a(f'v_lshrrev_b32 v{PRA}, 4, v{ln}'); a(f'v_lshlrev_b32 v{PRA}, 2, v{PRA}')
        a(f'v_and_b32 v{30}, 3, v{ln}'); a(f'v_add_u32 v{PRA}, v{PRA}, v{30}')
        a(f'v_mul_u32_u24 v{PRA}, {cfg.SH}, v{PRA}')
        a(f'v_bfe_u32 v{30}, v{ln}, 2, 2'); a(f'v_lshl_add_u32 v{PRA}, v{30}, 4, v{PRA}')
    else:
        a(f'v_lshrrev_b32 v{PRA}, 2, v{ln}'); a(f'v_mul_u32_u24 v{PRA}, {cfg.SH}, v{PRA}')
        a(f'v_and_b32 v{30}, 3, v{ln}'); a(f'v_lshl_add_u32 v{PRA}, v{30}, 4, v{PRA}')
    a(f'v_add_u32 v{PRA}, s{S_PRW}, v{PRA}')
    a(f'v_add_u32 v{V_T}, {L_C}, v{V_L16}')
    for r in range(4): a(f'v_mov_b32 v{NEG+r}, -1')
    a('s_waitcnt lgkmcnt(8)')
    a.ext(sv[14:16])
    a(f'ds_read_b128 v[{SELR}:{SELR+3}], v{V_T} offset:2048')
    if not cfg.PR_NOACK: a('s_waitcnt vmcnt(0)')
    ST(12)
    if cfg.kvflag is not None and not cfg.PR_NOACK:
        a('v_and_b32 v56, v56, v57')
        a('s_nop 0')
        a(f'v_readfirstlane_b32 s{S_KVOK}, v56')
    a.label(L('PR'))
    a(f'buffer_load_dwordx4 v[{PR0}:{PR0+3}], v{PRA}, {SM}, s{S_PR} offen sc1')
    a(f'buffer_load_dwordx4 v[{PR1}:{PR1+3}], v{PRA}, {SM}, s{S_PR2} offen sc1')
    a('s_waitcnt vmcnt(0)')
    max_chain(a, V_T, list(range(PR0, PR0 + 8)))
    a(f'v_cmp_eq_u32 vcc, -1, v{V_T}')
    poll_end(a, L('PR'), L('PR_D'))
    ST(13)
    if cfg.kvflag is not None and cfg.PR_NOACK:
        a('v_and_b32 v56, v56, v57')
        a('s_nop 0')
        a(f'v_readfirstlane_b32 s{S_KVOK}, v56')
    a('s_waitcnt lgkmcnt(0)')
    a(mf32(RD, PR0, SELR))
    a(mf32(RD, PR1, SELR, RD))
    a(f'buffer_store_dwordx4 v[{NEG}:{NEG+3}], v{PRA}, {SM}, s{S_PR} offen{sfl}') if cfg.EARLY_CLR else None
    a(f'buffer_store_dwordx4 v[{NEG}:{NEG+3}], v{PRA}, {SM}, s{S_PR2} offen{sfl}') if cfg.EARLY_CLR else None
    a('s_nop 5' if cfg.EARLY_CLR else 's_nop 7')
    if cfg.RS_PERM:
        a(pkadd(RD, RD, RD + 2))
        a('s_nop 0')
        a(f'v_add_f32 v{RD}, v{RD}, v{RD+1}')
    else:
        a(f'v_permlane32_swap_b32 v{RD}, v{RD+2}')
        a(f'v_permlane32_swap_b32 v{RD+1}, v{RD+3}')
        a('s_nop 0')
        a(pkadd(RD, RD, RD + 2))
        a('s_nop 1')
        a(f'v_permlane16_swap_b32 v{RD}, v{RD+1}')
        a('s_nop 0')
        a(f'v_add_f32 v{RD}, v{RD}, v{RD+1}')
    a('s_nop 1')
    a(f'v_mov_b32_dpp v{RD+1}, v{RD} row_shl:4 row_mask:0xf bank_mask:0xf')
    a('s_nop 0')
    a(f'v_cvt_pk_bf16_f32 v{RD}, v{RD}, v{RD+1}')
    a(f'buffer_store_dword v{RD}, v{V_MFW}, {SM}, s{S_MEMW} offen{sfl}')
    ST(14)
    nclr = 1
    if not cfg.EARLY_CLR:
        a(f'buffer_store_dwordx4 v[{NEG}:{NEG+3}], v{PRA}, {SM}, s{S_PR} offen{sfl}')
        a(f'buffer_store_dwordx4 v[{NEG}:{NEG+3}], v{PRA}, {SM}, s{S_PR2} offen{sfl}')
        nclr = 3
    a(f'buffer_store_dword v{NEG}, v{V_MFW}, {SM}, s{S_MEMR} offen{sfl}')
    if prof is not None:
        lab = a.newlabel(P + 'DBG')
        a(f's_cmp_lg_u32 s{S_STEP}, {prof[1]}')
        a(f's_cbranch_scc1 {lab}')
        a('s_waitcnt lgkmcnt(0)')
        a(f's_mov_b32 s94, s{S_BUD}')
        for i in range(16):
            a(f'v_mov_b32 v{8+i}, s{64+2*i}')
        dbg_dump(a, list(range(8, 24)), prof[0])
        for r in range(4): a(f'v_mov_b32 v{NEG+r}, -1')
        a.label(lab)
    T0 = f's{S_T0}'
    for s in (S_MEMR, S_MEMW):
        a(f's_add_u32 {T0}, s{s}, 16384'); a(f's_and_b32 {T0}, {T0}, 0xffff')
        a(f's_and_b32 s{s}, s{s}, 0xffff0000'); a(f's_or_b32 s{s}, s{s}, {T0}')
    for s in [S_PR, S_PR2] + [S_PW + p for p in range(4)]:
        a(f's_xor_b32 s{s}, s{s}, 0x80000')
    msk = cfg.NS * 32768 - 1
    for s in (S_XW, S_XR, S_XC):
        a(f's_add_u32 {T0}, s{s}, 32768'); a(f's_and_b32 {T0}, {T0}, 0x{msk:x}')
        a(f's_add_u32 s{s}, {T0}, s{S_XBASE}')
    a(f's_add_u32 s{S_QKM}, s{S_QKM}, {32*4096}')
    a(f's_add_u32 s{S_VMG}, s{S_VMG}, {32*2048}')
    a(f's_add_u32 s{S_KVK}, s{S_KVK}, {32*8192}')
    a(f's_add_u32 s{S_KVV}, s{S_KVV}, {32*8192}')
    a(f's_add_u32 s{S_STEP}, s{S_STEP}, 1')
    a.ext(top_prep())
    if not cfg.AG_NOACK: a(f's_waitcnt vmcnt({nclr})')
    a(f's_branch {L("TOP")}')
    if cfg.kvflag is not None:
        a.label(L('KVW'))
        a(f's_lshr_b32 s{S_T0}, s{S_STEP}, 2'); a(f's_lshl_b32 s{S_T0}, s{S_T0}, 8')
        a(f's_add_u32 s{S_T0}, s{S_T0}, s{S_KVFB}')
        a.label(L('KVP'))
        a(f'buffer_load_dwordx2 v[8:9], off, {SM}, s{S_T0} sc1')
        a('s_waitcnt vmcnt(0)')
        a('v_and_b32 v8, v8, v9')
        a('v_cmp_eq_u32 vcc, 0, v8')
        poll_end(a, L('KVP'), L('KVP_D'))
        a(f's_branch {L("KVB")}')

    a.label(L('TAIL'))
    a(f'v_lshrrev_b32 v{V_T}, 1, v{V_L16}')
    a.label(L('TV'))
    a(f'buffer_load_dwordx2 v[{RV}:{RV+1}], v{V_T}, {X}, s{S_XR} offen offset:1024 sc1')
    a('s_waitcnt vmcnt(0)')
    a(f'v_max_u32 v{V_T2}, v{RV}, v{RV+1}')
    a(f'v_cmp_eq_u32 vcc, -1, v{V_T2}')
    poll_end(a, L('TV'), L('TV_D'))
    a(f'v_swap_b32 v{VA+1}, v{RV}')
    publish(a, cfg, P, 'B')
    a('s_waitcnt vmcnt(0)')


def publish(a, cfg, P, tag):
    SM = f's[{S_SM}:{S_SM+3}]'
    HI = f's[{S_HI8}:{S_HI8+1}]'
    l1, l2 = f'{P}_PUB{tag}1', f'{P}_PUB{tag}2'
    a(f's_cmp_eq_u32 s{S_J}, 0')
    a(f's_cbranch_scc0 {l1}')
    ad, ad2 = 62, 63
    a(f'v_lshrrev_b32 v{ad}, 8, v{V_L16}'); a(f'v_lshlrev_b32 v{ad}, 7, v{ad}')
    a(f'v_and_b32 v{ad2}, 0x70, v{V_L16}'); a(f'v_add_u32 v{ad}, v{ad}, v{ad2}')
    a(f's_mov_b64 exec, {HI}')
    a(f'buffer_store_dwordx4 v[{TT}:{TT+3}], v{ad}, {SM}, s{S_QKM} offen sc1')
    a('s_mov_b64 exec, -1')
    a(f's_branch {l2}')
    a.label(l1)
    t0, t1, t2, t3 = 56, 57, 58, 59
    def add2(x, y, dst):
        a(f'v_lshlrev_b32 v{t0}, 16, v{x}'); a(f'v_and_b32 v{t1}, 0xffff0000, v{x}')
        a(f'v_lshlrev_b32 v{t2}, 16, v{y}'); a(f'v_and_b32 v{t3}, 0xffff0000, v{y}')
        a(f'v_pk_add_f32 v[{t0}:{t1}], v[{t0}:{t1}], v[{t2}:{t3}]')
        a(f'v_cvt_pk_bf16_f32 v{dst}, v{t0}, v{t1}')
    add2(60, 61, 60)
    add2(62, 63, 61)
    ad = 62
    a(f'v_lshrrev_b32 v{ad}, 9, v{V_L16}'); a(f'v_lshlrev_b32 v{ad}, 8, v{ad}')
    a(f'v_bfe_u32 v{t0}, v{V_L16}, 8, 1'); a(f'v_lshl_add_u32 v{ad}, v{t0}, 2, v{ad}')
    a(f'v_bfe_u32 v{t0}, v{V_L16}, 7, 1'); a(f'v_lshl_add_u32 v{ad}, v{t0}, 7, v{ad}')
    a(f'v_bfe_u32 v{t0}, v{V_L16}, 4, 3'); a(f'v_lshl_add_u32 v{ad}, v{t0}, 3, v{ad}')
    a(f'buffer_store_dword v60, v{ad}, {SM}, s{S_VMG} offen sc1')
    a(f'buffer_store_dword v61, v{ad}, {SM}, s{S_VMG} offen offset:64 sc1')
    a.label(l2)


def post_v(a, cfg, P):
    X = f's[{S_X}:{S_X+3}]'
    T0 = f's{S_T0}'
    a(f's_add_u32 s{S_KVK}, s{S_KVK}, {32*8192}')
    a(f's_add_u32 s{S_KVV}, s{S_KVV}, {32*8192}')
    if 'kv' not in cfg.skip:
        for g in kv_dma(cfg): a.ext(g)
    for r in range(16, 20): a(f'v_mov_b32 v{r}, -1')
    a(f'v_lshrrev_b32 v20, 1, v{V_L16}')
    a(f'buffer_store_dwordx4 v[16:19], v{V_L16}, {X}, s{S_XC} offen sc1')
    a(f'buffer_store_dwordx2 v[16:17], v20, {X}, s{S_XC} offen offset:1024 sc1')
    msk = cfg.NS * 32768 - 1
    for s in (S_XW, S_XR, S_XC):
        a(f's_add_u32 {T0}, s{s}, 32768'); a(f's_and_b32 {T0}, {T0}, 0x{msk:x}')
        a(f's_add_u32 s{s}, {T0}, s{S_XBASE}')
    a(f's_add_u32 s{S_QKM}, s{S_QKM}, {32*4096}')
    a(f's_add_u32 s{S_VMG}, s{S_VMG}, {32*2048}')


def near_static(a, val):
    a(f's_mov_b32 s{S_NEAR}, {val}')


def near_measure(a, cfg, P):
    SM = f's[{S_SM}:{S_SM+3}]'
    X = f's[{S_X}:{S_X+3}]'
    T0, T1, T2, T3 = f's{S_T0}', f's{S_T1}', f's{S_T2}', f's{S_T3}'
    l1 = f'{P}_NM1'
    a(f's_lshl_b32 {T0}, s{S_WV}, 1'); a(f's_or_b32 {T0}, {T0}, s{S_J}')
    a(f's_cmp_eq_u32 {T0}, 0'); a(f's_cbranch_scc0 {l1}')
    a(f's_add_u32 {T0}, s{S_XBASE}, {(cfg.NS-1)*32768 + 1536}')
    a('v_mov_b32 v8, 0')
    a(f'buffer_load_dword v9, v8, {X}, {T0} offen offset:384 sc1')
    a('s_waitcnt vmcnt(0)')
    a('s_mov_b32 s70, -1'); a('s_mov_b32 s71, -1')
    for i in range(6):
        for b in range(2):
            off = b*8192 + (i % 3)*128 + (i // 3)*2048
            a(f's_add_u32 {T1}, {T0}, {off}')
            a('s_memtime s[64:65]')
            a('s_waitcnt lgkmcnt(0)')
            a(f'buffer_load_dword v9, v8, {X}, {T1} offen sc1')
            a('s_waitcnt vmcnt(0)')
            a('s_memtime s[66:67]')
            a('s_waitcnt lgkmcnt(0)')
            a('s_sub_u32 s66, s66, s64')
            a(f's_min_u32 s{70+b}, s{70+b}, s66')
    a('s_cmp_lt_u32 s71, s70'); a(f's_cselect_b32 {T2}, 1, 0')
    a(f'v_mov_b32 v9, {T2}')
    a(f's_lshl_b32 {T1}, s{S_H}, 7'); a(f's_add_u32 {T1}, {T1}, {C_CNT + 4096}')
    a('v_cmp_eq_u32 vcc, 0, v%d' % V_L16)
    a('s_and_saveexec_b64 s[64:65], vcc')
    a(f'buffer_store_dword v9, v8, {SM}, {T1} offen sc1')
    a('s_mov_b64 exec, s[64:65]')
    a('s_waitcnt vmcnt(0)')
    a.label(l1)
    lp, dn = f'{P}_NM2', f'{P}_NM3'
    a(f's_lshl_b32 {T1}, s{S_H}, 7'); a(f's_add_u32 {T1}, {T1}, {C_CNT + 4096}')
    a('v_mov_b32 v8, 0')
    a.label(lp)
    a(f'buffer_load_dword v9, v8, {SM}, {T1} offen sc1')
    a('s_waitcnt vmcnt(0)')
    a('v_cmp_eq_u32 vcc, -1, v9')
    poll_end(a, lp, dn)
    a(f'v_readfirstlane_b32 s{S_NEAR}, v9')
    a(f's_and_b32 s{S_NEAR}, s{S_NEAR}, 1')


def impl(cfg):
    if getattr(cfg, 'F', False):
        import k_rec2
        return k_rec2.role_setup2, k_rec2.const_tables2, k_rec2.rec_loop2
    return role_setup, const_tables, rec_loop

def memf0_src(a, cfg, G, dst, tmp):
    if getattr(cfg, 'F', False):
        a(f'v_bfe_u32 v{dst}, v{G}, 1, 3'); a(f'v_lshlrev_b32 v{dst}, 11, v{dst}')
        a(f'v_lshrrev_b32 v{tmp}, 4, v{G}'); a(f'v_lshl_add_u32 v{dst}, v{tmp}, 5, v{dst}')
        a(f'v_and_b32 v{tmp}, 1, v{G}'); a(f'v_lshl_add_u32 v{dst}, v{tmp}, 2, v{dst}')
    else:
        a(f'v_and_b32 v{dst}, 7, v{G}'); a(f'v_lshlrev_b32 v{dst}, 11, v{dst}')
        a(f'v_lshrrev_b32 v{tmp}, 4, v{G}'); a(f'v_lshl_add_u32 v{dst}, v{tmp}, 5, v{dst}')
        a(f'v_bfe_u32 v{tmp}, v{G}, 3, 1'); a(f'v_lshl_add_u32 v{dst}, v{tmp}, 2, v{dst}')

def gen_recc(nsteps=63, dbg=None, cfg=None, P='RC', near=None, sfl=''):
    cfg = cfg or Cfg()
    a = Asm()
    a('s_cmp_ge_u32 s2, 256')
    a(f's_cbranch_scc1 {P}_EXIT')
    if cfg.dynamic:
        common_setup(a)
        role_dynamic(a, cfg, P, f'{P}_EXIT')
    else:
        role_static(a, f'{P}_EXIT')
        common_setup(a)
    RS, CT, RL = impl(cfg)
    RS(a, cfg)
    a(f's_mov_b32 s{S_NST}, {nsteps}')
    CT(a)
    stage_weights(a, P)
    if near is None: near_measure(a, cfg, P)
    else: near_static(a, near)
    x_offsets(a, cfg)
    a('s_waitcnt vmcnt(0) lgkmcnt(0)')
    a('s_barrier')
    if cfg.dynamic:
        a(f's_cmp_eq_u32 s{S_MODE}, 1')
        a(f's_cbranch_scc0 {P}_FB')
        RL(a, cfg, P, '', dbg)
        a('s_endpgm')
        a.label(f'{P}_FB')
        RL(a, cfg, P + 'F', ' sc1', None)
    else:
        RL(a, cfg, P, sfl, dbg)
    a.label(f'{P}_EXIT')
    a('s_endpgm')
    return a.text()


def gen_prepc(cfg=None):
    cfg = cfg or Cfg()
    a = Asm()
    a('s_cmp_ge_u32 s2, 256')
    a('s_cbranch_scc1 PREP_END')
    a(f's_load_dwordx2 s[4:5], s[0:1], {KA_WS}')
    a(f's_load_dwordx2 s[6:7], s[0:1], {KA_MEM0}')
    a('s_lshl_b32 s3, s2, 12')
    a('v_lshlrev_b32 v1, 4, v0')
    a('v_add_u32 v1, s3, v1')
    for r in range(4):
        a(f'v_mov_b32 v{4+r}, -1'); a(f'v_mov_b32 v{8+r}, 0')
    a('s_waitcnt lgkmcnt(0)')
    a.srd(8, 4, SM_SIZE, add=WS_SM)
    a.srd(12, 6, 8 * 1024 * 2)
    a.srd(20, 4, 64 << 20, add=WS_X)
    a(f's_mov_b32 s16, {C_PART}')
    a('buffer_store_dwordx4 v[4:7], v1, s[8:11], s16 offen')
    a('s_lshr_b32 s17, s2, 3'); a(f's_mul_i32 s17, s17, {cfg.NS*32768}')
    a('s_and_b32 s18, s2, 7'); a('s_lshl_b32 s18, s18, 12'); a('s_add_u32 s17, s17, s18')
    a('v_lshlrev_b32 v2, 4, v0')
    for i in range(3):
        a('buffer_store_dwordx4 v[4:7], v2, s[20:23], s17 offen')
        a('s_add_u32 s17, s17, 32768')
    a('s_cmp_eq_u32 s2, 16'); a('s_cbranch_scc0 PREP_N1')
    a(f's_mov_b32 s16, {C_CNT}')
    a('buffer_store_dwordx4 v[8:11], v2, s[8:11], s16 offen')
    a.label('PREP_N1')
    a('s_cmp_eq_u32 s2, 17'); a('s_cbranch_scc0 PREP_N2')
    a(f's_mov_b32 s16, {C_CNT + 4096}')
    a('buffer_store_dwordx4 v[4:7], v2, s[8:11], s16 offen')
    a.label('PREP_N2')
    a('s_cmp_ge_u32 s2, 16'); a('s_cbranch_scc1 PREP_END')
    a('s_cmp_lt_u32 s2, 4')
    a('s_cbranch_scc1 PREP_M0')
    a(f's_mov_b32 s16, {C_MEMF}')
    a('buffer_store_dwordx4 v[4:7], v1, s[8:11], s16 offen')
    a('s_branch PREP_END')
    a.label('PREP_M0')
    a('v_lshrrev_b32 v2, 4, v1')
    memf0_src(a, cfg, 2, 3, 12)
    for t in range(4):
        a(f'buffer_load_dword v{4+t}, v3, s[12:15], 0 offen offset:{t*8}')
    a('s_waitcnt vmcnt(0)')
    for t in range(4):
        a(f'v_min_u32 v{4+t}, -2, v{4+t}')
    a(f's_mov_b32 s16, {C_MEMF}')
    a('buffer_store_dwordx4 v[4:7], v1, s[8:11], s16 offen')
    a.label('PREP_END')
    a('s_endpgm')
    return a.text()
```

```python
import sys; sys.path.insert(0,'gen')
from asmlib import *
import tasks, tasks2, mega, k_recc as rc
from mega import *
import mega2
from mega2 import role_gemmx, S_WM
from gemm2 import Eng, S_WAVE, S_T0, S_T1, S_T2
from tasks import S_RB, S_CB, S_KS, S_PW, S_PWS, S_OSRD, MB, task_gemm
from k_ln import bf16_round, reduce_bits345

def gen_prep(cfg):
    a = Asm()
    a('s_cmp_ge_u32 s2, 256')
    a('s_cbranch_scc1 PREP_END')
    a(f's_load_dwordx2 s[4:5], s[0:1], {KA_WS}')
    a(f's_load_dwordx2 s[6:7], s[0:1], {KA_MEM0}')
    a(f's_load_dwordx2 s[24:25], s[0:1], {KA_X}')
    a('v_and_b32 v21, 63, v0'); a('v_lshrrev_b32 v22, 6, v0'); a('s_nop 0'); a('v_readfirstlane_b32 s19, v22')
    a('v_and_b32 v24, 7, v21'); a('v_bfe_u32 v25, v21, 3, 1'); a('v_lshrrev_b32 v26, 4, v21')
    a('s_lshr_b32 s30, s2, 2'); a('s_and_b32 s31, s2, 3'); a('s_lshl_b32 s31, s31, 3')
    a('v_add_u32 v27, s31, v24')
    a('v_lshlrev_b32 v23, 11, v27'); a('v_lshl_add_u32 v23, v26, 5, v23'); a('v_lshl_add_u32 v23, v25, 3, v23')
    a('s_lshl_b32 s32, s19, 9'); a('s_lshl_b32 s33, s30, 16'); a('s_add_u32 s32, s32, s33'); a('v_add_u32 v23, s32, v23')
    a('v_lshl_add_u32 v28, v25, 5, v27'); a('v_lshlrev_b32 v28, 4, v28'); a('v_lshl_add_u32 v28, v26, 10, v28')
    a('s_lshl_b32 s32, s19, 14'); a('s_add_u32 s32, s32, s33'); a('v_add_u32 v28, s32, v28')
    a('v_lshlrev_b32 v29, 2, v24'); a('s_lshl_b32 s32, s19, 5'); a('v_add_u32 v30, s32, v29')
    a('s_lshl_b32 s3, s2, 12')
    a('v_lshlrev_b32 v1, 4, v0')
    a('v_add_u32 v1, s3, v1')
    for r in range(4):
        a(f'v_mov_b32 v{4+r}, -1'); a(f'v_mov_b32 v{8+r}, 0')
    a('s_waitcnt lgkmcnt(0)')
    a.srd(36, 24, 4*MB)
    X = 32
    for it in range(4):
        for h in range(2):
            r = X + (it*2 + h)*2
            a(f'buffer_load_dwordx2 v[{r}:{r+1}], v23, s[36:39], 0 offen offset:{it*128 + h*16}')
    a.srd(8, 4, SM_SIZE, add=WS_SM)
    a.srd(12, 6, 8 * 1024 * 2)
    a.srd(20, 4, 64 << 20, add=rc.WS_X)
    a.srd(40, 4, 4*MB, add=WS_XN)
    a(f's_mov_b32 s16, {rc.C_PART}')
    a('buffer_store_dwordx4 v[4:7], v1, s[8:11], s16 offen')
    a.srd(44, 4, 0x2100000, add=WS_P1)
    a('buffer_store_dwordx4 v[4:7], v1, s[44:47], 0 offen')
    a(f's_mov_b32 s16, {WS_P2 - WS_P1}')
    a('buffer_store_dwordx4 v[4:7], v1, s[44:47], s16 offen')
    a('s_lshr_b32 s17, s2, 3'); a(f's_mul_i32 s17, s17, {cfg.NS*32768}')
    a('s_and_b32 s18, s2, 7'); a('s_lshl_b32 s18, s18, 12'); a('s_add_u32 s17, s17, s18')
    a('v_lshlrev_b32 v2, 4, v0')
    for i in range(3):
        a('buffer_store_dwordx4 v[4:7], v2, s[20:23], s17 offen')
        a('s_add_u32 s17, s17, 32768')
    a('v_lshrrev_b32 v3, 11, v1'); a('v_lshlrev_b32 v3, 12, v3'); a('v_and_b32 v12, 2047, v1'); a('v_add_u32 v3, v3, v12')
    a(f's_mov_b32 s16, {SM_QKM + 2048}')
    for i in range(4):
        a('buffer_store_dwordx4 v[4:7], v3, s[8:11], s16 offen'); a(f's_add_u32 s16, s16, {2*MB}')
    a(f's_mov_b32 s16, {SM_VMG}')
    for i in range(4):
        a('buffer_store_dwordx4 v[4:7], v1, s[8:11], s16 offen'); a(f's_add_u32 s16, s16, {MB}')
    nfl = FL_SEG + 65*4096 - FL_KVQ
    a(f'v_cmp_gt_u32 vcc, {nfl}, v1') if nfl <= 64 else (a(f's_mov_b32 s17, {nfl}'), a('v_cmp_gt_u32 vcc, s17, v1'))
    a('s_and_saveexec_b64 s[26:27], vcc')
    a(f's_mov_b32 s16, {FL_KVQ}')
    a('buffer_store_dwordx4 v[8:11], v1, s[8:11], s16 offen')
    a('s_mov_b64 exec, s[26:27]')
    a('s_cmp_eq_u32 s2, 16'); a('s_cbranch_scc0 PREP_N1')
    a(f's_mov_b32 s16, {rc.C_CNT}')
    a('buffer_store_dwordx4 v[8:11], v2, s[8:11], s16 offen')
    a.label('PREP_N1')
    a('s_cmp_eq_u32 s2, 17'); a('s_cbranch_scc0 PREP_N2')
    a(f's_mov_b32 s16, {rc.C_CNT + 4096}')
    a('buffer_store_dwordx4 v[4:7], v2, s[8:11], s16 offen')
    a.label('PREP_N2')
    a('s_cmp_ge_u32 s2, 16'); a('s_cbranch_scc1 PREP_LN')
    a('s_cmp_lt_u32 s2, 4')
    a('s_cbranch_scc1 PREP_M0')
    a(f's_mov_b32 s16, {rc.C_MEMF}')
    a('buffer_store_dwordx4 v[4:7], v1, s[8:11], s16 offen')
    a('s_branch PREP_LN')
    a.label('PREP_M0')
    a('v_lshrrev_b32 v2, 4, v1')
    rc.memf0_src(a, cfg, 2, 3, 12)
    for t in range(4):
        a(f'buffer_load_dword v{12+t}, v3, s[12:15], 0 offen offset:{t*8}')
    a('s_waitcnt vmcnt(0)')
    for t in range(4):
        a(f'v_min_u32 v{12+t}, -2, v{12+t}')
    a(f's_mov_b32 s16, {rc.C_MEMF}')
    a('buffer_store_dwordx4 v[12:15], v1, s[8:11], s16 offen')
    a.label('PREP_LN')
    F, G, A0, MU, RS = 64, 96, 16, 20, 21
    a('s_waitcnt vmcnt(0)')
    for i in range(16):
        a(f'v_lshlrev_b32 v{F+2*i}, 16, v{X+i}'); a(f'v_and_b32 v{F+2*i+1}, 0xffff0000, v{X+i}')
    for c in range(4): a(f'v_add_f32 v{A0+c}, v{F+c}, v{F+4+c}')
    for i in range(8, 32, 4):
        for c in range(4): a(f'v_add_f32 v{A0+c}, v{A0+c}, v{F+i+c}')
    a(f'v_add_f32 v{A0}, v{A0}, v{A0+1}'); a(f'v_add_f32 v{A0+2}, v{A0+2}, v{A0+3}'); a(f'v_add_f32 v{A0}, v{A0}, v{A0+2}')
    reduce_bits345(a, A0, 31)
    a(f'ds_write_b32 v30, v{A0}')
    a('s_waitcnt lgkmcnt(0)'); a('s_barrier')
    for w in range(4): a(f'ds_read_b32 v{A0+w}, v29 offset:{w*32}')
    a('s_waitcnt lgkmcnt(0)')
    a(f'v_add_f32 v{A0}, v{A0}, v{A0+1}'); a(f'v_add_f32 v{A0+2}, v{A0+2}, v{A0+3}'); a(f'v_add_f32 v{MU}, v{A0}, v{A0+2}')
    a(f'v_mul_f32 v{MU}, 0x3a800000, v{MU}')
    for c in range(4): a(f'v_mov_b32 v{A0+c}, 0')
    for i in range(0, 32, 4):
        for c in range(4): a(f'v_sub_f32 v{G+c}, v{F+i+c}, v{MU}')
        for c in range(4): a(f'v_fmac_f32 v{A0+c}, v{G+c}, v{G+c}')
    a(f'v_add_f32 v{A0}, v{A0}, v{A0+1}'); a(f'v_add_f32 v{A0+2}, v{A0+2}, v{A0+3}'); a(f'v_add_f32 v{RS}, v{A0}, v{A0+2}')
    reduce_bits345(a, RS, 31)
    a(f'ds_write_b32 v30, v{RS} offset:128')
    a('s_waitcnt lgkmcnt(0)'); a('s_barrier')
    for w in range(4): a(f'ds_read_b32 v{A0+w}, v29 offset:{128 + w*32}')
    a('s_waitcnt lgkmcnt(0)')
    a(f'v_add_f32 v{A0}, v{A0}, v{A0+1}'); a(f'v_add_f32 v{A0+2}, v{A0+2}, v{A0+3}'); a(f'v_add_f32 v{RS}, v{A0}, v{A0+2}')
    a(f'v_mul_f32 v{RS}, 0x3a800000, v{RS}')
    bf16_round(a, RS, RS)
    a(f'v_add_f32 v{RS}, 0x3727c5ac, v{RS}')
    bf16_round(a, RS, RS)
    a(f'v_sqrt_f32 v{RS}, v{RS}')
    a('s_nop 0')
    bf16_round(a, RS, RS)
    a(f'v_rcp_f32 v{RS}, v{RS}')
    bf16_round(a, MU, MU)
    for i in range(32): a(f'v_sub_f32 v{F+i}, v{F+i}, v{MU}')
    for i in range(16): a(f'v_cvt_pk_bf16_f32 v{G+i}, v{F+2*i}, v{F+2*i+1}')
    for i in range(16):
        a(f'v_lshlrev_b32 v{F+2*i}, 16, v{G+i}'); a(f'v_and_b32 v{F+2*i+1}, 0xffff0000, v{G+i}')
    for i in range(32): a(f'v_mul_f32 v{F+i}, v{F+i}, v{RS}')
    for i in range(16): a(f'v_cvt_pk_bf16_f32 v{G+i}, v{F+2*i}, v{F+2*i+1}')
    for it in range(4):
        a(f's_mov_b32 s16, {it*4096}')
        a(f'buffer_store_dwordx4 v[{G+4*it}:{G+4*it+3}], v28, s[40:43], s16 offen')
    a.label('PREP_END')
    a('s_endpgm')
    return a.text()


def kvq_loop(a, g, nbg_rounds=9):
    T0, T1, T2 = f's{S_T0}', f's{S_T1}', f's{S_T2}'
    a(f's_mov_b32 s{S_RND}, 0')
    a.label('KQ_TOP')
    a(f's_cmp_lg_u32 s{S_RND}, 0'); a('s_cbranch_scc1 KQ_BG')
    a(f's_and_b32 {T0}, s{S_WID}, 31'); a(f's_and_b32 s{S_RB}, {T0}, 3')
    a(f's_lshr_b32 {T0}, {T0}, 2'); a(f's_lshr_b32 {T1}, s{S_WID}, 5'); a(f's_lshl_b32 {T1}, {T1}, 3'); a(f's_add_u32 s31, {T0}, {T1}')
    a('s_branch KQ_DEC')
    a.label('KQ_BG')
    if PLACE:
        a(f's_sub_u32 {T1}, s{S_RND}, 1'); a(f's_mul_i32 {T0}, {T1}, 43'); a(f's_lshr_b32 {T0}, {T0}, 7')
        a(f's_mul_i32 {T2}, {T0}, 3'); a(f's_sub_u32 {T1}, {T1}, {T2}')
        a(f's_lshl_b32 {T0}, {T0}, 2'); a(f's_add_u32 {T0}, {T0}, 4'); a(f's_and_b32 {T2}, s{S_WID}, 3')
        a(f's_add_u32 s{S_RB}, {T0}, {T2}')
        a(f's_lshl_b32 {T1}, {T1}, 4'); a(f's_lshr_b32 {T2}, s{S_WID}, 2'); a(f's_add_u32 s31, {T1}, {T2}')
    else:
        a(f's_sub_u32 {T0}, s{S_WID}, 64'); a(f's_lshr_b32 {T0}, {T0}, 5'); a(f's_lshl_b32 {T0}, {T0}, 4')
        a(f's_and_b32 {T1}, s{S_WID}, 15'); a(f's_add_u32 {T0}, {T0}, {T1}')
        a(f's_sub_u32 {T1}, s{S_RND}, 1'); a(f's_lshl_b32 {T1}, {T1}, 6'); a(f's_add_u32 {T0}, {T0}, {T1}')
        a(f's_mul_i32 {T1}, {T0}, 683'); a(f's_lshr_b32 {T1}, {T1}, 16')
        a(f's_mul_i32 {T2}, {T1}, 96'); a(f's_sub_u32 {T0}, {T0}, {T2}')
        a(f's_lshl_b32 {T1}, {T1}, 1'); a(f's_add_u32 {T1}, {T1}, 4'); a(f's_and_b32 {T2}, {T0}, 1')
        a(f's_add_u32 s{S_RB}, {T1}, {T2}'); a(f's_lshr_b32 s31, {T0}, 1')
    a.label('KQ_DEC')
    a(f's_and_b32 s{S_RB}, s{S_RB}, 15')
    a(f's_and_b32 s{S_CB}, s31, 15'); a(f's_mov_b32 s{S_KS}, 0')
    a('s_lshr_b32 s31, s31, 4')
    a(f's_lshl_b32 {T0}, s{S_RB}, 8'); a(f's_lshl_b32 {T1}, s{S_CB}, 4'); a(f's_add_u32 {T0}, {T0}, {T1}')
    a(f's_lshl_b32 {T1}, s31, 2'); a(f's_add_u32 {T0}, {T0}, {T1}'); a(f's_add_u32 s{S_FOFF}, {T0}, {FL_KVQ}')
    a('s_cmp_eq_u32 s31, 1'); a('s_cbranch_scc1 KQ_V')
    a('s_cmp_eq_u32 s31, 2'); a('s_cbranch_scc1 KQ_Q')
    task_gemm(a, g, 'K'); a('s_branch KQ_FIN')
    a.label('KQ_V'); task_gemm(a, g, 'V'); a('s_branch KQ_FIN')
    a.label('KQ_Q'); task_gemm(a, g, 'Q')
    a.label('KQ_FIN')
    a('s_waitcnt vmcnt(0)')
    a('s_barrier')
    if mega.TL:
        a('s_memrealtime s[88:89]'); a('s_waitcnt lgkmcnt(0)'); a('s_mov_b32 s101, s88')
    a(f's_cmp_lg_u32 s{S_WAVE}, 0'); a('s_cbranch_scc1 KQ_NF')
    a('v_mov_b32 v1, 1')
    a('s_mov_b64 exec, 1')
    a(f'buffer_store_dword v1, off, {FLS}, s{S_FOFF} sc1')
    a('s_mov_b64 exec, -1')
    a.label('KQ_NF')
    a(f's_add_u32 s{S_RND}, s{S_RND}, 1')
    if PLACE:
        a(f's_cmp_ge_u32 s{S_WID}, 64'); a('s_cbranch_scc1 KQ_END')
    else:
        a(f's_cmp_lt_u32 s{S_WID}, 64'); a('s_cbranch_scc1 KQ_END')
        a(f's_and_b32 {T0}, s{S_WID}, 16'); a(f's_cmp_eq_u32 {T0}, 0'); a('s_cbranch_scc1 KQ_END')
    if mega.TL:
        pass
    a(f's_cmp_le_u32 s{S_RND}, {nbg_rounds}'); a('s_cbranch_scc1 KQ_TOP')
    if mega.TL:
        a('v_mov_b32 v12, 0'); a('v_writelane_b32 v12, s100, 0'); a('v_writelane_b32 v12, s101, 1')
        mega.tl_dump(a, [12, 12, 12])
    a('s_endpgm')
    a.label('KQ_END')


MERGE = True
S_RST = 99
S_DBG = 92
def prep_merged(a, cfg):
    V = lambda r: r + 128
    SM = f's[{rc.S_SM}:{rc.S_SM+3}]'; XR = f's[{rc.S_X}:{rc.S_X+3}]'
    WV = f's{rc.S_WV}'
    C = ' sc1'
    A16, A17, A18 = 's70', 's71', 's3'
    a.srd(72, 64, 4*MB)
    a.srd(S_DBG, 68, 256)
    a(f's_getreg_b32 s{rc.S_J}, hwreg(HW_REG_XCC_ID, 0, 4)'); a(f's_and_b32 s{rc.S_J}, s{rc.S_J}, 7')
    a(f's_cmp_eq_u32 {WV}, 0'); a('s_cbranch_scc0 PM_NT')
    a(f's_lshl_b32 s70, s{rc.S_J}, 4'); a(f'v_mov_b32 v{V(52)}, 1'); a(f'v_mov_b32 v{V(53)}, s70')
    a('s_mov_b64 exec, 1')
    a(f'buffer_atomic_add v{V(52)}, v{V(53)}, s[{S_DBG}:{S_DBG+3}], 0 offen sc0 sc1')
    a('s_mov_b64 exec, -1')
    a.label('PM_NT')
    a(f'v_and_b32 v{V(21)}, 63, v0')
    a(f'v_and_b32 v{V(24)}, 7, v{V(21)}'); a(f'v_bfe_u32 v{V(25)}, v{V(21)}, 3, 1'); a(f'v_lshrrev_b32 v{V(26)}, 4, v{V(21)}')
    a('s_lshr_b32 s70, s2, 2'); a('s_and_b32 s71, s2, 3'); a('s_lshl_b32 s71, s71, 3')
    a(f'v_add_u32 v{V(27)}, s71, v{V(24)}')
    a(f'v_lshlrev_b32 v{V(23)}, 11, v{V(27)}'); a(f'v_lshl_add_u32 v{V(23)}, v{V(26)}, 5, v{V(23)}'); a(f'v_lshl_add_u32 v{V(23)}, v{V(25)}, 3, v{V(23)}')
    a(f's_lshl_b32 s90, {WV}, 9'); a('s_lshl_b32 s91, s70, 16'); a('s_add_u32 s90, s90, s91'); a(f'v_add_u32 v{V(23)}, s90, v{V(23)}')
    X = V(32)
    for it in range(4):
        for h in range(2):
            r = X + (it*2 + h)*2
            a(f'buffer_load_dwordx2 v[{r}:{r+1}], v{V(23)}, s[72:75], 0 offen offset:{it*128 + h*16}')
    a(f'v_lshlrev_b32 v{V(1)}, 4, v0'); a('s_lshl_b32 s3, s2, 12'); a(f'v_add_u32 v{V(1)}, s3, v{V(1)}')
    a.srd(76, 66, 8 * 1024 * 2)
    a('s_cmp_lt_u32 s2, 4'); a('s_cbranch_scc0 PM_N0')
    a(f'v_lshrrev_b32 v{V(2)}, 4, v{V(1)}')
    rc.memf0_src(a, cfg, V(2), V(3), V(12))
    for t in range(4):
        a(f'buffer_load_dword v{V(48)+t}, v{V(3)}, s[76:79], 0 offen offset:{t*8}')
    a.label('PM_N0')
    a(f'v_lshl_add_u32 v{V(28)}, v{V(25)}, 5, v{V(27)}'); a(f'v_lshlrev_b32 v{V(28)}, 4, v{V(28)}'); a(f'v_lshl_add_u32 v{V(28)}, v{V(26)}, 10, v{V(28)}')
    a(f's_lshl_b32 s90, {WV}, 14'); a('s_add_u32 s90, s90, s91'); a(f'v_add_u32 v{V(28)}, s90, v{V(28)}')
    a(f'v_lshlrev_b32 v{V(29)}, 2, v{V(24)}'); a(f'v_add_u32 v{V(29)}, {rc.L_M}, v{V(29)}')
    a(f's_lshl_b32 s90, {WV}, 5'); a(f'v_add_u32 v{V(30)}, s90, v{V(29)}')
    for r in range(4):
        a(f'v_mov_b32 v{V(4)+r}, -1'); a(f'v_mov_b32 v{V(8)+r}, 0')
    N1, Z = f'v[{V(4)}:{V(7)}]', f'v[{V(8)}:{V(11)}]'
    a.srd(80, rc.S_WS, 4*MB, add=WS_XN)
    a.srd(84, rc.S_WS, 0x2100000, add=WS_P1)
    ns = 0
    a(f's_mov_b32 {A16}, {rc.C_PART}')
    a(f'buffer_store_dwordx4 {N1}, v{V(1)}, {SM}, {A16} offen' + C)
    a(f'buffer_store_dwordx4 {N1}, v{V(1)}, s[84:87], 0 offen' + C)
    a(f's_mov_b32 {A16}, {WS_P2 - WS_P1}')
    a(f'buffer_store_dwordx4 {N1}, v{V(1)}, s[84:87], {A16} offen' + C)
    a(f's_lshr_b32 {A17}, s2, 3'); a(f's_mul_i32 {A17}, {A17}, {cfg.NS*32768}')
    a(f's_and_b32 {A18}, s2, 7'); a(f's_lshl_b32 {A18}, {A18}, 12'); a(f's_add_u32 {A17}, {A17}, {A18}')
    a(f'v_lshlrev_b32 v{V(2)}, 4, v0')
    for i in range(3):
        a(f'buffer_store_dwordx4 {N1}, v{V(2)}, {XR}, {A17} offen' + C)
        a(f's_add_u32 {A17}, {A17}, 32768')
    a(f'v_lshrrev_b32 v{V(3)}, 11, v{V(1)}'); a(f'v_lshlrev_b32 v{V(3)}, 12, v{V(3)}'); a(f'v_and_b32 v{V(12)}, 2047, v{V(1)}'); a(f'v_add_u32 v{V(3)}, v{V(3)}, v{V(12)}')
    a(f's_mov_b32 {A16}, {SM_QKM + 2048}')
    for i in range(4):
        a(f'buffer_store_dwordx4 {N1}, v{V(3)}, {SM}, {A16} offen' + C); a(f's_add_u32 {A16}, {A16}, {2*MB}')
    a(f's_mov_b32 {A16}, {SM_VMG}')
    for i in range(4):
        a(f'buffer_store_dwordx4 {N1}, v{V(1)}, {SM}, {A16} offen' + C); a(f's_add_u32 {A16}, {A16}, {MB}')
    nclr = 14
    nfl = FL_SEG + 65*4096 - FL_KVQ
    a(f's_mov_b32 {A17}, {nfl}'); a(f'v_cmp_gt_u32 vcc, {A17}, v{V(1)}')
    a('s_and_saveexec_b64 s[90:91], vcc')
    a('s_cbranch_execz PM_NF')
    a(f's_mov_b32 {A16}, {FL_KVQ}')
    a(f'buffer_store_dwordx4 {Z}, v{V(1)}, {SM}, {A16} offen' + C)
    a.label('PM_NF')
    a('s_mov_b64 exec, s[90:91]')
    a('s_cmp_eq_u32 s2, 17'); a('s_cbranch_scc0 PM_N2')
    a(f's_mov_b32 {A16}, {rc.C_CNT + 4096}')
    a(f'buffer_store_dwordx4 {N1}, v{V(2)}, {SM}, {A16} offen' + C)
    a.label('PM_N2')
    a('s_cmp_ge_u32 s2, 16'); a('s_cbranch_scc1 PM_LN')
    a('s_cmp_lt_u32 s2, 4'); a('s_cbranch_scc1 PM_LN')
    a(f's_mov_b32 {A16}, {rc.C_MEMF}')
    a(f'buffer_store_dwordx4 {N1}, v{V(1)}, {SM}, {A16} offen' + C)
    a.label('PM_LN')
    F, G, A0, MU, RS = V(64), V(96), V(16), V(20), V(21)
    a(f's_waitcnt vmcnt({nclr})')
    a('s_cmp_lt_u32 s2, 4'); a('s_cbranch_scc0 PM_N1')
    for t in range(4):
        a(f'v_min_u32 v{V(48)+t}, -2, v{V(48)+t}')
    a(f's_mov_b32 {A16}, {rc.C_MEMF}')
    a(f'buffer_store_dwordx4 v[{V(48)}:{V(51)}], v{V(1)}, {SM}, {A16} offen' + C)
    a.label('PM_N1')
    a(f's_cmp_eq_u32 {WV}, 0'); a('s_cbranch_scc0 PM_NB')
    a(f'v_mov_b32 v{V(53)}, {rc.L_R}')
    a('s_mov_b64 exec, 1')
    a(f'ds_write_b32 v{V(53)}, v{V(52)}')
    a('s_mov_b64 exec, -1')
    a.label('PM_NB')
    T31 = V(31)
    for i in range(16):
        a(f'v_lshlrev_b32 v{F+2*i}, 16, v{X+i}'); a(f'v_and_b32 v{F+2*i+1}, 0xffff0000, v{X+i}')
    for c in range(4): a(f'v_add_f32 v{A0+c}, v{F+c}, v{F+4+c}')
    for i in range(8, 32, 4):
        for c in range(4): a(f'v_add_f32 v{A0+c}, v{A0+c}, v{F+i+c}')
    a(f'v_add_f32 v{A0}, v{A0}, v{A0+1}'); a(f'v_add_f32 v{A0+2}, v{A0+2}, v{A0+3}'); a(f'v_add_f32 v{A0}, v{A0}, v{A0+2}')
    reduce_bits345(a, A0, T31)
    a(f'ds_write_b32 v{V(30)}, v{A0}')
    a('s_waitcnt lgkmcnt(0)'); a('s_barrier')
    a(f'v_mov_b32 v{V(53)}, {rc.L_R}')
    for w in range(4): a(f'ds_read_b32 v{A0+w}, v{V(29)} offset:{w*32}')
    a(f'ds_read_b32 v{V(52)}, v{V(53)}')
    a('s_waitcnt lgkmcnt(0)')
    a(f'v_readfirstlane_b32 s{rc.S_H}, v{V(52)}')
    a(f'v_add_f32 v{A0}, v{A0}, v{A0+1}'); a(f'v_add_f32 v{A0+2}, v{A0+2}, v{A0+3}'); a(f'v_add_f32 v{MU}, v{A0}, v{A0+2}')
    a(f'v_mul_f32 v{MU}, 0x3a800000, v{MU}')
    for c in range(4): a(f'v_mov_b32 v{A0+c}, 0')
    for i in range(0, 32, 4):
        for c in range(4): a(f'v_sub_f32 v{G+c}, v{F+i+c}, v{MU}')
        for c in range(4): a(f'v_fmac_f32 v{A0+c}, v{G+c}, v{G+c}')
    a(f'v_add_f32 v{A0}, v{A0}, v{A0+1}'); a(f'v_add_f32 v{A0+2}, v{A0+2}, v{A0+3}'); a(f'v_add_f32 v{RS}, v{A0}, v{A0+2}')
    reduce_bits345(a, RS, T31)
    a(f'ds_write_b32 v{V(30)}, v{RS} offset:128')
    a('s_waitcnt lgkmcnt(0)'); a('s_barrier')
    for w in range(4): a(f'ds_read_b32 v{A0+w}, v{V(29)} offset:{128 + w*32}')
    a('s_waitcnt lgkmcnt(0)')
    a(f'v_add_f32 v{A0}, v{A0}, v{A0+1}'); a(f'v_add_f32 v{A0+2}, v{A0+2}, v{A0+3}'); a(f'v_add_f32 v{RS}, v{A0}, v{A0+2}')
    a(f'v_mul_f32 v{RS}, 0x3a800000, v{RS}')
    bf16_round(a, RS, RS)
    a(f'v_add_f32 v{RS}, 0x3727c5ac, v{RS}')
    bf16_round(a, RS, RS)
    a(f'v_sqrt_f32 v{RS}, v{RS}')
    a('s_nop 0')
    bf16_round(a, RS, RS)
    a(f'v_rcp_f32 v{RS}, v{RS}')
    bf16_round(a, MU, MU)
    for i in range(32): a(f'v_sub_f32 v{F+i}, v{F+i}, v{MU}')
    for i in range(16): a(f'v_cvt_pk_bf16_f32 v{G+i}, v{F+2*i}, v{F+2*i+1}')
    for i in range(16):
        a(f'v_lshlrev_b32 v{F+2*i}, 16, v{G+i}'); a(f'v_and_b32 v{F+2*i+1}, 0xffff0000, v{G+i}')
    for i in range(32): a(f'v_mul_f32 v{F+i}, v{F+i}, v{RS}')
    for i in range(16): a(f'v_cvt_pk_bf16_f32 v{G+i}, v{F+2*i}, v{F+2*i+1}')
    for it in range(4):
        a(f's_mov_b32 {A16}, {it*4096}')
        a(f'buffer_store_dwordx4 v[{G+4*it}:{G+4*it+3}], v{V(28)}, s[80:83], {A16} offen' + C)

def signal_done(a, tag, nnew):
    l = f'{tag}_SG'
    a(f's_waitcnt vmcnt({nnew})')
    a('s_barrier')
    a(f's_cmp_eq_u32 s{rc.S_WV}, 0'); a(f's_cbranch_scc0 {l}')
    a('s_getreg_b32 s70, hwreg(HW_REG_XCC_ID, 0, 4)')
    a('s_and_b32 s70, s70, 7'); a('s_lshl_b32 s70, s70, 4'); a('s_add_u32 s70, s70, 128')
    a('v_mov_b32 v8, 1'); a('v_mov_b32 v10, s70')
    a('s_mov_b64 exec, 1')
    a(f'buffer_atomic_add v8, v10, s[{S_DBG}:{S_DBG+3}], 0 offen sc1')
    a('s_mov_b64 exec, -1')
    a.label(l)

def verify(a, tag, force_fallback):
    lw, lp, dn = f'{tag}_VW', f'{tag}_VP', f'{tag}_VD'
    a(f's_cmp_eq_u32 s{rc.S_WV}, 0'); a(f's_cbranch_scc0 {lw}')
    a('s_mov_b64 exec, 0xff')
    a(f'v_add_u32 v9, 128, v{rc.V_L16}')
    a('s_mov_b32 s70, 200000')
    a.label(lp)
    a(f'buffer_load_dword v10, v9, s[{S_DBG}:{S_DBG+3}], 0 offen sc1')
    a('s_waitcnt vmcnt(0)')
    for k in range(8): a(f'v_readlane_b32 s{80+k}, v10, {k}')
    for k in range(1, 8): a(f's_add_u32 s80, s80, s{80+k}')
    a('s_cmp_eq_u32 s80, 256'); a(f's_cbranch_scc1 {dn}')
    a('s_sub_u32 s70, s70, 1'); a('s_cmp_lg_u32 s70, 0'); a(f's_cbranch_scc1 {lp}')
    a.label(dn)
    a('v_cmp_ne_u32 vcc, 32, v10')
    a('s_cmp_eq_u64 vcc, 0'); a('s_cselect_b32 s70, 1, 2')
    if force_fallback: a('s_mov_b32 s70, 2')
    a('v_mov_b32 v8, s70'); a(f'v_mov_b32 v9, {rc.L_R}')
    a('ds_write_b32 v9, v8')
    a('s_mov_b64 exec, -1')
    a('s_waitcnt lgkmcnt(0)')
    a.label(lw)
    a('s_barrier')
    a(f'v_mov_b32 v9, {rc.L_R}')
    a('ds_read_b32 v8, v9')
    a('s_waitcnt lgkmcnt(0)')
    a('v_readfirstlane_b32 s70, v8')
    a('s_barrier')
    a('s_cmp_eq_u32 s70, 1'); a('s_cbranch_scc0 MG_FALL')

EXP_START = None
PLACE = mega.PLACE
EXP_WARM = 0
EXP_HALF = 0
def gen_mega(cfg, dbg=None, prof=False):
    tasks.set_coh(True)
    a = Asm()
    P = 'RC'
    a('s_cmp_ge_u32 s2, 256')
    a('s_cbranch_scc1 MG_EXIT')
    def rstamp(sreg):
        if mega.TL:
            a('s_memrealtime s[88:89]'); a('s_waitcnt lgkmcnt(0)'); a(f's_mov_b32 s{sreg}, s88')
    rstamp(100)
    if MERGE:
        rc.common_setup(a, [f's_load_dwordx2 s[64:65], s[0:1], {KA_X}', f's_load_dwordx2 s[66:67], s[0:1], {KA_MEM0}', f's_load_dwordx2 s[68:69], s[0:1], {KA_DBG}'])
        prep_merged(a, cfg)
        a(f's_mov_b32 s{S_RST}, 0'); a(f's_mov_b32 s{rc.S_MODE}, 1')
        a('s_branch MG_ROLE')
        a.label('MG_FALL')
        a(f's_mov_b32 s{S_RST}, 1'); a(f's_mov_b32 s{rc.S_MODE}, 2')
        a(f's_and_b32 s{rc.S_J}, s2, 1'); a(f's_lshr_b32 s{rc.S_H}, s2, 1')
        a(f'v_lshrrev_b32 v0, 4, v{rc.V_L16}'); a(f's_lshl_b32 s70, s{rc.S_WV}, 6'); a('v_or_b32 v0, s70, v0')
        a.label('MG_ROLE')
        a(f's_cmp_lt_u32 s{rc.S_J}, 2'); a('s_cbranch_scc0 MG_WORK')
        a(f's_cmp_lt_u32 s{rc.S_H}, 32'); a('s_cbranch_scc0 MG_WORK')
        a(f's_and_b32 s{rc.S_H}, s{rc.S_H}, 31'); a(f's_and_b32 s{rc.S_J}, s{rc.S_J}, 1')
    else:
        rc.common_setup(a)
    if EXP_WARM:
        a(f's_cmp_eq_u32 s{rc.S_WV}, 1'); a('s_cbranch_scc0 MG_NOWARM')
        a('s_load_dwordx8 s[64:71], s[0:1], 16')
        a(f'v_lshrrev_b32 v200, 4, v{rc.V_L16}'); a(f'v_mul_u32_u24 v200, {EXP_WARM*1024}, v200')
        a('s_waitcnt lgkmcnt(0)')
        n = (8 << 20) // (64 * EXP_WARM * 1024)
        for m in range(4):
            a.srd(72, 64 + 2*m, 8 << 20)
            for i in range(n):
                a(f's_mov_b32 s76, {i * 64 * EXP_WARM * 1024}')
                a(f'buffer_load_dword v{201 + (m*n + i) % 50}, v200, s[72:75], s76 offen')
        a.label('MG_NOWARM')
    if not MERGE: rc.role_dynamic(a, cfg, P, 'MG_WORK', nx=8)
    rstamp(101)
    if EXP_HALF:
        a(f's_cmp_ge_u32 s{rc.S_H}, {EXP_HALF}'); a('s_cbranch_scc1 MG_EXIT')
    RS, CT, RL = rc.impl(cfg)
    def xs(i):
        if rc.EXP_STAMP:
            a('s_memrealtime s[88:89]'); a('s_waitcnt lgkmcnt(0)'); a(f'v_writelane_b32 v60, s88, {i}')
    xs(0)
    RS(a, cfg)
    a(f's_mov_b32 s{rc.S_NST}, 63')
    xs(1)
    CT(a)
    def mid(a):
        a(f's_cmp_eq_u32 s{S_RST}, 0'); a('s_cbranch_scc0 RC_NOSIG')
        signal_done(a, 'RC', 32)
        a.label('RC_NOSIG')
    rc.stage_weights(a, P, mid if MERGE else None)
    rstamp(72)
    if MERGE:
        a(f's_cmp_eq_u32 s{S_RST}, 0'); a('s_cbranch_scc0 RC_NOVER')
        verify(a, 'RC', cfg.force_fallback)
        a.label('RC_NOVER')
    rc.near_measure(a, cfg, P)
    rc.x_offsets(a, cfg)
    a('s_waitcnt vmcnt(0) lgkmcnt(0)')
    a('s_barrier')
    rstamp(73)
    a(f's_cmp_eq_u32 s{rc.S_MODE}, 1')
    a(f's_cbranch_scc0 {P}_FB')
    if not EXP_START: RL(a, cfg, P, '', dbg)
    if mega.TL:
        rstamp(74)
        a.srd(84, rc.S_WS, 1 << 20, add=mega.TL_BASE + (1 << 20))
        a(f's_lshl_b32 s76, s{rc.S_H}, 1'); a(f's_add_u32 s76, s76, s{rc.S_J}'); a('s_lshl_b32 s76, s76, 2')
        a(f's_add_u32 s76, s76, s{rc.S_WV}'); a('s_lshl_b32 s76, s76, 5')
        a('v_mov_b32 v9, 0'); a('s_mov_b64 exec, 1')
        for i, r in enumerate([100, 101, 72, 73, 74, 75]):
            a(f'v_mov_b32 v8, s{r}'); a(f'buffer_store_dword v8, v9, s[84:87], s76 offen offset:{4*i}')
        if rc.EXP_STAMP:
            a('s_mov_b64 exec, -1'); a('s_lshl_b32 s76, s76, 3'); a('s_add_u32 s76, s76, 65536')
            a(f'v_lshrrev_b32 v9, 2, v{rc.V_L16}')
            a('buffer_store_dword v60, v9, s[84:87], s76 offen')
        a('s_waitcnt vmcnt(0)')
    a('s_endpgm')
    a.label(f'{P}_FB')
    RL(a, cfg, P + 'F', ' sc1', None)
    a('s_endpgm')
    a.label('MG_WORK')
    if EXP_START == 'now': a('s_endpgm')
    if MERGE:
        a(f's_cmp_eq_u32 s{S_RST}, 0'); a('s_cbranch_scc0 WK_NOVER')
        signal_done(a, 'WK', 0)
        verify(a, 'WK', cfg.force_fallback)
        a.label('WK_NOVER')
    T0, T1 = 's46', 's47'
    a(f's_sub_u32 {T0}, s{rc.S_J}, 2'); a(f's_lshl_b32 {T0}, {T0}, 5'); a(f's_add_u32 {T0}, {T0}, s{rc.S_H}')
    a(f's_sub_u32 {T1}, s{rc.S_H}, 32'); a(f's_lshl_b32 {T1}, {T1}, 1'); a(f's_add_u32 {T1}, {T1}, s{rc.S_J}')
    a(f's_cmp_eq_u32 s{rc.S_MODE}, 1'); a(f's_cselect_b32 s{S_WID}, {T0}, {T1}')
    a(f's_cmp_ge_u32 s{S_WID}, 192'); a('s_cbranch_scc1 MG_EXIT')
    a(f's_mov_b32 s{S_WAVE}, s{rc.S_WV}')
    a.srd(S_FL, rc.S_WS, SM_SIZE, add=WS_SM)
    a(f's_mov_b32 s{S_BUDW}, 200000')
    a(f's_mov_b32 s{S_WM}, s{rc.S_MODE}')
    g = Eng()
    kvq_loop(a, g)
    W = f's{S_WID}'
    def rng(lo, hi, lab):
        a(f's_cmp_lt_u32 {W}, {hi}'); a(f's_cbranch_scc1 {lab}')
    if not PLACE:
        rng(0, 32, 'MG_WO'); rng(0, 64, 'MG_DN')
    a(f's_sub_u32 s46, {W}, 64'); a('s_lshr_b32 s46, s46, 5'); a(f's_and_b32 s47, {W}, 31')
    if PLACE:
        a('s_cmp_ge_u32 s47, 24'); a('s_cbranch_scc1 MG_DN')
        a('s_cmp_ge_u32 s47, 16'); a('s_cbranch_scc1 MG_WO')
    a('s_cmp_ge_u32 s47, 14'); a('s_cbranch_scc1 MG_AT')
    a('s_mul_i32 s29, s46, 14'); a('s_add_u32 s29, s29, s47'); a('s_mov_b32 s28, s46')
    role_gemmx(a, 'GU'); a('s_endpgm')
    a.label('MG_WO')
    if PLACE: a('s_mov_b32 s28, s46'); a('s_and_b32 s29, s47, 7')
    else: a(f's_lshr_b32 s28, {W}, 3'); a(f's_and_b32 s29, {W}, 7')
    role_gemmx(a, 'WO'); a('s_endpgm')
    a.label('MG_DN')
    if PLACE: a('s_mov_b32 s28, s46'); a('s_and_b32 s29, s47, 7')
    else: a(f's_sub_u32 s29, {W}, 32'); a('s_lshr_b32 s28, s29, 3'); a('s_and_b32 s29, s29, 7')
    role_gemmx(a, 'DN'); a('s_endpgm')
    a.label('MG_AT')
    a('s_lshl_b32 s28, s46, 1'); a('s_add_u32 s28, s28, s47'); a('s_sub_u32 s28, s28, 14')
    role_att(a)
    a.label('MG_EXIT')
    a('s_endpgm')
    return a.text()


def header():
    src = open('cdna_kernels/' + KNAME[:-7] + '.s.ref').read().split('\n')
    out = []
    for l in src:
        if l.startswith('; Override launch'): break
        out.append(l)
    return '\n'.join(out)

OLD = False
FFB = False
def build(path, hdr='; test', cfg=None, **kw):
    import k_rec2
    C = rc.Cfg if OLD else k_rec2.Cfg2
    cfg = cfg or C(force_fallback=FFB, dynamic=True, RS_PERM=False, EARLY_CLR=True, kvflag=FL_KVQ, tl=mega.TL, NOPK=False)
    if MERGE:
        ks = [(KNAME, gen_mega(cfg, **kw), 512, 256)]
        ls = [(KNAME, (256,1,1), (256,1,1), 163840)]
    else:
        ks = [('prep_kernel', gen_prep(cfg), 128, 128), ('mega_kernel', gen_mega(cfg, **kw), 512, 256)]
        ls = [('prep_kernel', (256,1,1), (256,1,1), 1024), ('mega_kernel', (256,1,1), (256,1,1), 163840)]
    txt = assemble_file(hdr, ls, ks)
    open(path, 'w').write(txt)
    print('bytes', len(txt), 'lines', txt.count('\n'))
if __name__ == '__main__':
    p = sys.argv[1] if len(sys.argv) > 1 else 'mg.s'
    if len(sys.argv) > 2 and 'tl' in sys.argv[2:]: mega.TL = True
    if 'prof' in sys.argv[2:]: mega2.PROF = True
    if 'x2' in sys.argv[2:]: mega2.TLX2 = True
    if 'lite' in sys.argv[2:]: mega2.TLLITE = True
    if 'last' in sys.argv[2:]: mega2.TLFROM = 63
    if 'p1' in sys.argv[2:]: mega2.PIPE2 = False
    if 'nostream' in sys.argv[2:]: mega2.STREAM = False
    if 'nopf' in sys.argv[2:]: mega2.PF = False
    if 'nordf' in sys.argv[2:]: mega2.RDFIRST = False
    for x in sys.argv[2:]:
        if x.startswith('we='): mega2.WEVERY = int(x[3:])
    if 'old' in sys.argv[2:]: OLD = True
    if 'nomerge' in sys.argv[2:]: MERGE = False
    if 'ffb' in sys.argv[2:]: FFB = True
    if 'now' in sys.argv[2:]: EXP_START = 'now'
    for x in sys.argv[2:]:
        if x.startswith('half='): EXP_HALF = int(x[5:])
        if x.startswith('warm='): EXP_WARM = int(x[5:])
        if x == 'lin': rc.EXP_LIN = True
        if x == 'reg': rc.EXP_REG = True
        if x.startswith('fl='): rc.EXP_FL = ' ' + x[3:].replace('+', ' ')
        if x == 'xs': rc.EXP_STAMP = True
    build(p, header())
    import chk; chk.chk(p)
```

```python
from asmlib import *
import k_recc as rc
from k_recc import *

S_PA = 98


class Cfg2(rc.Cfg):
    F = True
    PUBV = True
    PQ_A = 9
    PQ_B = 0
    AG_B = 0
    RV_LATE = False
    PIPE_AG = True
    PIPE_PR = True
    PIPE_PQ = True


def role_setup2(a, cfg):
    rc.role_setup(a, cfg)
    W, H, J = f's{S_WV}', f's{S_H}', f's{S_J}'
    T0, T1 = f's{S_T0}', f's{S_T1}'
    ln, t1, t2 = 8, 9, 10
    a(f'v_lshrrev_b32 v{ln}, 4, v{V_L16}')
    a(f'v_and_b32 v{t1}, 1, v{ln}')
    a(f'v_cmp_eq_u32 vcc, 0, v{t1}')
    a(f'v_mov_b32 v{V_IDX}, 0xeeee'); a(f'v_mov_b32 v{t1}, 0x4444')
    a(f'v_cndmask_b32 v{V_IDX}, v{V_IDX}, v{t1}, vcc')
    a(f's_lshr_b32 {T0}, {H}, 1'); a(f's_lshl_b32 {T0}, {T0}, 9')
    a(f's_and_b32 {T1}, {H}, 1'); a(f's_lshl_b32 {T1}, {T1}, 7'); a(f's_add_u32 {T0}, {T0}, {T1}')
    a(f's_lshr_b32 {T1}, {W}, 1'); a(f's_lshl_b32 {T1}, {T1}, 6'); a(f's_add_u32 {T0}, {T0}, {T1}')
    a(f's_and_b32 {T1}, {W}, 1'); a(f's_lshl_b32 {T1}, {T1}, 4'); a(f's_add_u32 {T0}, {T0}, {T1}')
    a(f'v_bfe_u32 v{t1}, v{ln}, 1, 1'); a(f'v_lshlrev_b32 v{t1}, 8, v{t1}')
    a(f'v_and_b32 v{t2}, 1, v{ln}'); a(f'v_lshl_add_u32 v{t1}, v{t2}, 5, v{t1}')
    a(f'v_lshrrev_b32 v{t2}, 4, v{ln}'); a(f'v_lshl_add_u32 v{t1}, v{t2}, 2, v{t1}')
    a(f'v_add_u32 v{t1}, {T0}, v{t1}')
    a(f'v_and_b32 v{t2}, 12, v{ln}')
    a(f'v_cmp_eq_u32 vcc, 0, v{t2}')
    a(f'v_mov_b32 v{V_MFW}, 0x40000000')
    a('s_nop 1')
    a(f'v_cndmask_b32 v{V_MFW}, v{V_MFW}, v{t1}, vcc')


def const_tables2(a):
    ln, t1, t2, js, c0, one = 8, 9, 10, 11, 12, 13
    R = 16
    a(f'v_lshrrev_b32 v{ln}, 4, v{V_L16}')
    a(f'v_add_u32 v{c0}, {L_C}, v{V_L16}')
    def onehot():
        a(f'v_and_b32 v{t1}, 1, v{js}')
        a(f'v_lshlrev_b32 v{t1}, 4, v{t1}')
        a(f'v_mov_b32 v{one}, 0x3f80')
        a(f'v_lshlrev_b32 v{one}, v{t1}, v{one}')
        a(f'v_lshrrev_b32 v{t1}, 1, v{js}')
        for q in range(4):
            a(f'v_cmp_eq_u32 vcc, {q}, v{t1}')
            a('s_nop 1')
            a(f'v_cndmask_b32 v{R+q}, 0, v{one}, vcc')
    for tp in range(2):
        a(f'v_and_b32 v{js}, 1, v{ln}')
        a(f'v_bfe_u32 v{t1}, v{ln}, 3, 1'); a(f'v_lshl_add_u32 v{js}, v{t1}, 2, v{js}')
        if tp: a(f'v_add_u32 v{js}, 2, v{js}')
        a(f'v_bfe_u32 v{t1}, v{ln}, 1, 2'); a(f'v_lshrrev_b32 v{t2}, 4, v{ln}')
        a(f'v_xor_b32 v{t1}, v{t1}, v{t2}')
        a(f'v_lshl_add_u32 v{js}, v{t1}, 6, v{js}')
        onehot()
        a(f'ds_write_b128 v{c0}, v[{R}:{R+3}] offset:{tp*1024}')
        a('s_waitcnt lgkmcnt(0)')
    a(f'v_and_b32 v{js}, 7, v{ln}')
    onehot()
    a(f'ds_write_b128 v{c0}, v[{R}:{R+3}] offset:2048')
    a('s_waitcnt lgkmcnt(0)')


def add(d, x, y): return f'v_add_f32 v{d}, v{x}, v{y}'
def cvt(d, x, y): return f'v_cvt_pk_bf16_f32 v{d}, v{x}, v{y}'
def pka(d, x, y): return f'v_pk_add_f32 v[{d}:{d+1}], v[{x}:{x+1}], v[{y}:{y+1}]'


def rec_loop2(a, cfg, P, sfl, dbg=None):
    SM = f's[{S_SM}:{S_SM+3}]'
    X = f's[{S_X}:{S_X+3}]'
    LO = f's[{S_LO8}:{S_LO8+1}]'
    HI = f's[{S_HI8}:{S_HI8+1}]'
    T0 = f's{S_T0}'
    dbg = dbg or {}
    L = lambda s: f'{P}_{s}'
    def D(name, regs, tmp=V_T):
        if name in dbg:
            lab = a.newlabel(P + 'DBG')
            a(f's_cmp_lg_u32 s{S_STEP}, {dbg[name][1]}')
            a(f's_cbranch_scc1 {lab}')
            dbg_dump(a, regs, dbg[name][0], tmp)
            a.label(lab)
    prof = dbg.get('prof')
    stamps = getattr(cfg, 'stamps', None) or list(range(15))
    def ST(i):
        if prof is not None and i in stamps:
            k = stamps.index(i)
            if getattr(cfg, 'RT', False):
                if i == 0:
                    k14 = stamps.index(14)
                    a('s_waitcnt lgkmcnt(0)')
                    a(f's_mov_b64 s[{64+2*14}:{65+2*14}], s[{64+2*k14}:{65+2*k14}]')
                a(f's_memrealtime s[{64+2*k}:{65+2*k}]')
            else:
                a(f's_memtime s[{64+2*k}:{65+2*k}]')
    kvf = cfg.kvflag is not None
    MWr, A1, A2, A3 = AM + 8, AM + 12, AM + 20, AM + 28
    NEG = 24
    NEG2 = 60
    FLG = 32

    def check(regs, tmp):
        max_chain(a, tmp, regs)
        a(f'v_cmp_eq_u32 vcc, -1, v{tmp}')

    def ag_issue(so):
        a(f'buffer_load_dwordx4 v[{AM}:{AM+3}], v{V_AGP}, {SM}, s{so} offen sc1')
        a(f'buffer_load_dwordx4 v[{AM+4}:{AM+7}], v{V_AGP}, {SM}, s{so} offen offset:1024 sc1')

    def top_prep():
        out = []
        out.append(f'v_add_u32 v{MWr}, {L_M}, v{V_AGP}')
        out.append(f'v_xor_b32 v{A1}, 0x800, v{MWr}')
        out.append(f'v_xor_b32 v{A2}, 0x1000, v{MWr}')
        out.append(f'v_xor_b32 v{A3}, 0x1800, v{MWr}')
        for r in range(NEG, NEG + 4): out.append(f'v_mov_b32 v{r}, -1')
        for r in range(40, 64, 2):
            out.append(f'v_mov_b64 v[{r}:{r+1}], 0')
        return out

    def flag_issue():
        a(f's_add_u32 {T0}, s{S_STEP}, 1'); a(f's_lshr_b32 {T0}, {T0}, 2'); a(f's_lshl_b32 {T0}, {T0}, 11')
        a(f's_add_u32 {T0}, {T0}, s{S_KVFB}')
        a(f'buffer_load_dwordx2 v[{FLG}:{FLG+1}], off, {SM}, {T0} sc1')

    def kv_issue():
        for g in kv_dma(cfg): a.ext(g)
        a(f's_add_u32 s{S_KVK}, s{S_KVK}, {32*8192}')
        a(f's_add_u32 s{S_KVV}, s{S_KVV}, {32*8192}')

    wl_addr(a, V_T2)
    sv0 = svload()
    a.ext(sv0[:8]); a('s_waitcnt lgkmcnt(0)'); a.ext(sv0[8:])
    if kvf:
        a(f's_lshr_b32 s{S_KVFB}, s{S_H}, 1'); a(f's_lshl_b32 s{S_KVFB}, s{S_KVFB}, 7')
        a(f's_add_u32 s{S_KVFB}, s{S_KVFB}, {cfg.kvflag}')
        a(f's_mov_b32 s{S_KVOK}, 0')
        flag_issue()
    else:
        kv_issue()
    ag_issue(S_MEMR)
    a.ext(top_prep())
    a.label(L('TOP'))
    if kvf:
        a(f's_cmp_lg_u32 s{S_KVOK}, 0x01010101'); a(f's_cbranch_scc1 {L("KVW")}')
        a.label(L('KVB'))
        if getattr(cfg, 'tl', False):
            lab = a.newlabel(P + 'TL')
            a(f's_cmp_lg_u32 s{S_STEP}, 0'); a(f's_cbranch_scc1 {lab}')
            a('s_memrealtime s[88:89]'); a('s_waitcnt lgkmcnt(0)'); a('s_mov_b32 s75, s88')
            a.label(lab)
    ST(0)
    a.label(L('PM'))
    if cfg.PIPE_AG:
        ag_issue(S_MEMR)
        a('s_waitcnt vmcnt(2)')
    else:
        a('s_waitcnt vmcnt(0)')
    check(list(range(AM, AM + 8)), V_T)
    if cfg.PIPE_AG:
        poll_end(a, L('PM'), L('PM_D'))
    else:
        a(f's_cbranch_vccz {L("PM_D")}')
        a.label(L('PM2'))
        ag_issue(S_MEMR)
        a('s_waitcnt vmcnt(0)')
        check(list(range(AM, AM + 8)), V_T)
        poll_end(a, L('PM2'), L('PM_D'))
    ST(1)
    a(f'ds_write_b128 v{MWr}, v[{AM}:{AM+3}]')
    a(f'ds_write_b128 v{MWr}, v[{AM+4}:{AM+7}] offset:1024')
    def qk(pi):
        A = AM + 4*pi
        return [smf(AQ0, A, wq(pi, 0)), smf(AQ1, A, wq(pi, 1)), smf(AK0, A, wk(pi, 0)), smf(AK1, A, wk(pi, 1))]
    def vv(pi): return [smf(AV0, AM + 4*pi, wv(pi, 0)), smf(AV1, AM + 4*pi, wv(pi, 1))]
    xcl = [f'buffer_store_dwordx4 v[{NEG}:{NEG+3}], v{V_L16}, {X}, s{S_XC} offen sc1',
           f'buffer_store_dwordx4 v[{NEG}:{NEG+3}], v{V_L16}, {X}, s{S_XC} offen offset:1024 sc1']
    m = qk(0)
    a(m[0]); a(xcl[0]); a(m[1]); a(xcl[1])
    if kvf: a(f'v_and_b32 v{FLG}, v{FLG}, v{FLG+1}')
    a(m[2]); a(m[3])
    if kvf: a(f'v_readfirstlane_b32 s{S_KVOK}, v{FLG}')
    a('s_waitcnt lgkmcnt(0)')
    a('s_barrier')
    ST(2)
    for pi in range(2, 8):
        ad = [A1, A2, A3][(pi >> 1) - 1]
        a(f'ds_read_b128 v[{AM+4*pi}:{AM+4*pi+3}], v{ad} offset:{(pi & 1)*1024}')
    a.ext(qk(1))
    a.ext(vv(0))
    D('AM', list(range(AM, AM + 32)))
    noprof = prof is None
    for pi in range(2, 6):
        a(f's_waitcnt lgkmcnt({7 - pi})')
        a.ext(qk(pi))
    a('s_waitcnt lgkmcnt(1)')
    a(smf(AQ0, AM + 24, wq(6, 0))); a(smf(AQ1, AM + 24, wq(6, 1)))
    a('s_waitcnt lgkmcnt(0)')
    a(smf(AQ0, AM + 28, wq(7, 0))); a(smf(AQ1, AM + 28, wq(7, 1)))
    a(smf(AK0, AM + 24, wk(6, 0)))
    a(add(40, 40, 41))
    a(smf(AK1, AM + 24, wk(6, 1)))
    a(add(42, 42, 43)); a(add(44, 44, 45))
    a(smf(AK0, AM + 28, wk(7, 0)))
    a(add(46, 46, 47)); a(cvt(45, 44, 46))
    a(smf(AK1, AM + 28, wk(7, 1)))
    a(cvt(44, 40, 42))
    a('s_nop 2')
    a(add(48, 48, 49)); a(add(50, 50, 51))
    a('s_nop 1')
    a(add(52, 52, 53)); a(add(54, 54, 55))
    a(cvt(46, 48, 50)); a(cvt(47, 52, 54))
    a(f'buffer_store_dwordx4 v[{XS}:{XS+3}], v{V_L16}, {X}, s{S_XW} offen sc1')
    ST(3)
    D('XS', [XS, XS+1, XS+2, XS+3])
    VS = []
    for pi in [4, 5, 6, 7, 1, 2, 3]: VS += vv(pi)
    wl_addr(a, V_T2, L_WB)
    wo_ld = [f'ds_read_b128 v[{SREG+4*i}:{SREG+4*i+3}], v{V_T2} offset:{i*1024}' for i in range(16)]
    a(f'v_add_u32 v{V_T}, {L_C}, v{V_L16}')
    pq = f'buffer_load_dwordx4 v[{RX}:{RX+3}], v{V_L16}, {X}, s{S_XR} offen sc1'
    fill = {2: wo_ld[0:2], 3: wo_ld[2:4],
            4: [f'ds_read_b128 v[{SEL0}:{SEL0+3}], v{V_T}', f'ds_read_b128 v[{SEL1}:{SEL1+3}], v{V_T} offset:1024'],
            5: wo_ld[4:6], 6: wo_ld[6:8], 7: wo_ld[8:10],
            8: wo_ld[10:12], 9: wo_ld[12:14], 10: wo_ld[14:16]}
    for i, mm in enumerate(VS):
        a(mm)
        a.ext(fill.get(i, []))
        if i == 8:
            a(f'v_add_u32 v{V_T}, s{S_KVB}, v{V_L16}')
        if i == 9:
            a(f'ds_read_b128 v[{KT0}:{KT0+3}], v{V_T}')
            a(f'ds_read_b128 v[{KT1}:{KT1+3}], v{V_T} offset:1024')
        if i + 1 == cfg.PQ_A and cfg.PIPE_PQ:
            a(pq)
    a('s_waitcnt lgkmcnt(14)')
    a(mf32(D0, XS, SEL0))
    a(mf32(D1, XS, SEL1))
    a(f'v_lshrrev_b32 v{V_T2}, 1, v{V_L16}')
    a(add(56, 56, 57)); a(add(58, 58, 59))
    a(add(60, 60, 61)); a(add(62, 62, 63))
    a(cvt(61, 60, 62)); a(cvt(60, 56, 58))
    a(f'buffer_store_dwordx2 v[{VA}:{VA+1}], v{V_T2}, {X}, s{S_XW} offen offset:1024 sc1')
    ST(4)
    n_after = 2 + 1 + (1 if cfg.PIPE_PQ else 0) + 1
    a(f's_waitcnt vmcnt({n_after})')
    a(f'ds_read_b128 v[{VT0}:{VT0+3}], v{V_T} offset:2048')
    a(f'ds_read_b128 v[{VT1}:{VT1+3}], v{V_T} offset:3072')
    SW, SR, MR, PVA = XS, XS + 1, XS + 2, XS + 3
    a(f'v_mov_b32 v{PVA}, v{V_T2}')
    a(f'v_lshrrev_b32 v{SR}, 8, v{V_L16}'); a(f'v_lshlrev_b32 v{SR}, 7, v{SR}')
    a(f'v_and_b32 v{V_T}, 0x70, v{V_L16}')
    a(f'v_add_u32 v{SR}, v{SR}, v{V_T}')
    a(f'v_add_u32 v{SW}, s{S_SWB}, v{SR}')
    a(f'v_and_b32 v{V_T2}, 0x80, v{V_L16}')
    a(f'v_lshl_add_u32 v{SR}, v{V_T2}, 2, v{SR}')
    a(f'v_add_u32 v{SR}, {L_M}, v{SR}')
    a(f'v_lshrrev_b32 v{MR}, 9, v{V_L16}'); a(f'v_lshl_add_u32 v{MR}, v{MR}, 7, v{V_T}')
    a(f'v_bfe_u32 v{V_T}, v{V_L16}, 8, 1'); a(f'v_lshl_add_u32 v{MR}, v{V_T}, 3, v{MR}')
    a(f'v_bfe_u32 v{V_T}, v{V_L16}, 7, 1'); a(f'v_lshl_add_u32 v{MR}, v{V_T}, 2, v{MR}')
    a(f'v_add_u32 v{MR}, {L_M + 1280}, v{MR}')
    if cfg.PIPE_PQ: a(pq)
    a('s_barrier')
    ST(5)
    if cfg.PIPE_PQ:
        a('s_waitcnt vmcnt(2)')
        check([RX, RX+1, RX+2, RX+3], V_T2)
        a(f's_cbranch_vccz {L("PQ_D")}')
        a.label(L('PQ'))
        a(pq)
        a('s_waitcnt vmcnt(1)')
        check([RX, RX+1, RX+2, RX+3], V_T2)
        poll_end(a, L('PQ'), L('PQ_D'))
    else:
        a.label(L('PQ'))
        a(pq)
        a('s_waitcnt vmcnt(0)')
        check([RX, RX+1, RX+2, RX+3], V_T2)
        poll_end(a, L('PQ'), L('PQ_D'))
    ST(6)
    a('s_waitcnt lgkmcnt(0)')
    a(mf32(D0, RX, SEL0, D0))
    a(mf32(D1, RX, SEL1, D1))
    rvl = f'buffer_load_dwordx2 v[{RV}:{RV+1}], v{PVA}, {X}, s{S_XR} offen offset:1024 sc1'
    if not cfg.RV_LATE: a(rvl)
    a(f's_cmp_eq_u32 s{S_STEP}, s{S_NST}')
    a('s_nop 2')
    a(cvt(TT, D0, D0 + 1)); a(cvt(TT + 1, D0 + 2, D0 + 3))
    a('s_nop 0')
    a(cvt(TT + 2, D1, D1 + 1)); a(cvt(TT + 3, D1 + 2, D1 + 3))
    a(f's_cbranch_scc1 {L("TAIL")}')
    a('s_nop 0')
    a(mf32(SA, KT0, TT))
    a(mf32(SB, KT1, TT))
    a(mf32(SMM, TT, TT))
    D('T', [TT, TT+1, TT+2, TT+3], V_T2)
    if cfg.RV_LATE: a(rvl)
    if kvf:
        a(f's_cmp_lg_u32 s{S_KVOK}, 0x01010101'); a(f's_cbranch_scc1 {L("NKV")}')
    kvd = kv_dma(cfg)
    a.ext(kvd[0])
    a(f's_mov_b64 exec, {LO}')
    a(f'ds_write_b128 v{SW}, v[{SA}:{SA+3}]')
    a('s_mov_b64 exec, -1')
    a.ext(kvd[1])
    a(f's_mov_b64 exec, {LO}')
    a(f'ds_write_b128 v{SW}, v[{SB}:{SB+3}] offset:512')
    a('s_mov_b64 exec, -1')
    a.ext(kvd[2])
    a(f's_mov_b64 exec, {LO}')
    a(f'ds_write_b128 v{SW}, v[{SMM}:{SMM+3}] offset:1024')
    a('s_mov_b64 exec, -1')
    a.ext(kvd[3])
    a(f's_add_u32 s{S_KVK}, s{S_KVK}, {32*8192}')
    a(f's_add_u32 s{S_KVV}, s{S_KVV}, {32*8192}')
    NKVD = 4
    if kvf:
        a(f's_branch {L("NKV2")}')
        a.label(L('NKV'))
        a(f's_mov_b64 exec, {LO}')
        a('s_nop 1')
        a(f'ds_write_b128 v{SW}, v[{SA}:{SA+3}]')
        a('s_nop 1')
        a(f'ds_write_b128 v{SW}, v[{SB}:{SB+3}] offset:512')
        a('s_nop 2')
        a(f'ds_write_b128 v{SW}, v[{SMM}:{SMM+3}] offset:1024')
        a('s_mov_b64 exec, -1')
        a('s_waitcnt vmcnt(0)')
        a.label(L('NKV2'))
    a('s_waitcnt lgkmcnt(0)')
    a('s_barrier')
    ST(7)
    a(f'ds_read2st64_b32 v[{MM}:{MM+1}], v{MR} offset0:0 offset1:6')
    a(f'ds_read2st64_b32 v[{MM+2}:{MM+3}], v{MR} offset0:12 offset1:18')
    for w in range(4):
        r = R0 + 4*w
        a(f'ds_read_b128 v[{r}:{r+3}], v{SR} offset:{w*1536}')
    OWA, PUA = 28, 29
    a(f'v_and_b32 v{OWA}, 0xf0, v{V_L16}'); a(f'v_and_b32 v{V_T}, 0x300, v{V_L16}')
    a(f'v_lshl_add_u32 v{OWA}, v{OWA}, 1, v{V_T}'); a(f'v_add_u32 v{OWA}, s{S_OWB}, v{OWA}')
    a(f'v_lshrrev_b32 v{PUA}, 8, v{V_L16}'); a(f'v_lshlrev_b32 v{PUA}, 7, v{PUA}')
    a(f'v_and_b32 v{V_T}, 0x70, v{V_L16}'); a(f'v_add_u32 v{PUA}, v{PUA}, v{V_T}')
    a('s_waitcnt lgkmcnt(4)')
    a(pka(MM, MM, MM + 2))
    a('s_waitcnt lgkmcnt(2)')
    a(pka(R0, R0, R1)); a(pka(R0 + 2, R0 + 2, R1 + 2))
    a(f'v_add_f32 v{MM}, v{MM}, v{MM+1}')
    M, M2 = MM + 2, MM + 3
    a('s_waitcnt lgkmcnt(0)')
    a(pka(R2, R2, R3)); a(pka(R2 + 2, R2 + 2, R3 + 2))
    a(pka(R0, R0, R2)); a(pka(R0 + 2, R0 + 2, R2 + 2))
    a(f'v_mov_b32 v{ONES}, 0x3f803f80')
    a(f'v_max3_f32 v{M}, v{R0}, v{R0+1}, v{MM}')
    a(f'v_mov_b32 v{ONES+1}, 0x3f803f80')
    a(f'v_max3_f32 v{M}, v{M}, v{R0+2}, v{R0+3}')
    D('S', [R0, R0+1, R0+2, R0+3, MM], V_T2)
    a(f'v_mov_b32 v{ONES+2}, 0x3f803f80')
    a(f'v_mov_b32 v{ONES+3}, 0x3f803f80')
    a(f'v_max_f32_dpp v{M}, v{M}, v{M} row_ror:8 row_mask:0xf bank_mask:0xf')
    a(f'v_mov_b32 v{PMQ+2}, 0x3f003f00')
    a(f'v_mov_b32 v{M2}, v{M}')
    a(f'v_mov_b32 v{PMQ+3}, 0x3f003f00')
    a('s_nop 0')
    a(f'v_permlane32_swap_b32 v{M}, v{M2}')
    a('s_nop 0')
    a(f'v_max_f32 v{M}, v{M}, v{M2}')
    a(f'v_mov_b32 v{M2}, v{M}')
    a('s_nop 1')
    a(f'v_permlane16_swap_b32 v{M}, v{M2}')
    a('s_nop 0')
    a(f'v_max_f32 v{M}, v{M}, v{M2}')
    a(f'v_mul_f32 v{M}, s{S_SC}, v{M}')
    E = [R0, R0+1, R0+2, R0+3, MM]
    for e in E:
        a(f'v_fma_f32 v{e}, v{e}, s{S_SC}, -v{M}')
    for e in (MM, R0, R0+1, R0+2, R0+3):
        a(f'v_exp_f32 v{e}, v{e}')
    a(f'v_mov_b32_dpp v{M2}, v{MM} row_ror:8 row_mask:0xf bank_mask:0xf')
    a(cvt(PB, R0, R0 + 1)); a(cvt(PB + 1, R0 + 2, R0 + 3))
    a(cvt(PMQ, MM, M2))
    a(f'v_mov_b32_dpp v{PB+2}, v{PB} row_ror:8 row_mask:0xf bank_mask:0xf')
    a(f'v_mov_b32_dpp v{PB+3}, v{PB+1} row_ror:8 row_mask:0xf bank_mask:0xf')
    a(cvt(PMQ + 1, MM, M2))
    ST(8)
    a(f's_waitcnt vmcnt({NKVD})')
    a(mf32(SUM, ONES, PB))
    a(f'v_max_u32 v{V_T2}, v{RV}, v{RV+1}')
    a(f'v_cmp_eq_u32 vcc, -1, v{V_T2}')
    a(mf32(O0, VT0, PB))
    a(f's_cbranch_vccz {L("PV_D")}')
    a(f'v_lshrrev_b32 v{V_T}, 1, v{V_L16}')
    a.label(L('PV'))
    a(f'buffer_load_dwordx2 v[{RV}:{RV+1}], v{V_T}, {X}, s{S_XR} offen offset:1024 sc1')
    a('s_waitcnt vmcnt(0)')
    a(f'v_max_u32 v{V_T2}, v{RV}, v{RV+1}')
    a(f'v_cmp_eq_u32 vcc, -1, v{V_T2}')
    poll_end(a, L('PV'), L('PV_D'))
    a(f'v_swap_b32 v{VA+1}, v{RV}')
    a(mf32(O1, VT1, PB))
    a(mf16(SUM, PMQ + 2, PMQ, SUM))
    a(mf16(O0, VA, PMQ, O0))
    a(mf16(O1, VA + 2, PMQ, O1))
    ST(9)
    a('s_nop 1')
    a(f'v_rcp_f32 v{V_T}, v{SUM}')
    a('s_nop 2')
    D('O', [O0+i for i in range(8)] + [SUM], 36)
    for r in (O0, O0 + 2, O1, O1 + 2):
        a(f'v_pk_mul_f32 v[{r}:{r+1}], v[{r}:{r+1}], v[{V_T}:{V_T+1}] op_sel_hi:[1,0]')
    a(cvt(OA, O0, O0 + 1)); a(cvt(OA + 1, O1, O1 + 1))
    a(cvt(OA + 2, O0 + 2, O0 + 3)); a(cvt(OA + 3, O1 + 2, O1 + 3))
    a(f's_mov_b64 exec, {LO}')
    a(f'ds_write2_b64 v{OWA}, v[{OA}:{OA+1}], v[{OA+2}:{OA+3}] offset0:0 offset1:2')
    a('s_mov_b64 exec, -1')
    a(f'v_add_u32 v{V_T}, {L_O}, v{V_L16}')
    for r in (24, 26, 30, 32, 34, 36, 38, 40):
        a(f'v_mov_b64 v[{r}:{r+1}], 0')
    a('s_waitcnt lgkmcnt(0)')
    a('s_barrier')
    ST(10)
    a(f'ds_read_b128 v[{OA}:{OA+3}], v{V_T}')
    a(f'ds_read_b128 v[{OA+4}:{OA+7}], v{V_T} offset:1024')
    if 'pub' not in cfg.skip:
        if cfg.PUBV:
            publish(a, cfg, P, 'A')
        else:
            lab = a.newlabel(P + 'PUB')
            a(f's_cmp_eq_u32 s{S_J}, 0'); a(f's_cbranch_scc0 {lab}')
            a(f's_mov_b64 exec, {HI}')
            a(f'buffer_store_dwordx4 v[{TT}:{TT+3}], v{PUA}, {SM}, s{S_QKM} offen sc1')
            a('s_mov_b64 exec, -1')
            a.label(lab)
    for r in (28, 42, 44, 46, 48, 50, 52, 54):
        a(f'v_mov_b64 v[{r}:{r+1}], 0')
    PRA = V_T2
    a(f'v_lshrrev_b32 v{PRA}, 6, v{V_L16}'); a(f'v_mul_u32_u24 v{PRA}, {cfg.SH}, v{PRA}')
    a(f'v_and_b32 v{V_T}, 0x30, v{V_L16}'); a(f'v_add3_u32 v{PRA}, v{PRA}, v{V_T}, s{S_PRW}')
    def wo0(nu): return smf(WACC[nu], OA, v8(WO_R + 8*nu))
    def wo1(nu): return smf(WACC[nu], OA + 4, v8(SREG + 8*nu))
    def pack(p):
        t0, t1 = WACC[2*p], WACC[2*p + 1]
        return [add(t0, t0, t0 + 1), add(t0 + 2, t0 + 2, t0 + 3), add(t1, t1, t1 + 1), add(t1 + 2, t1 + 2, t1 + 3),
                cvt(t1 + 1, t1, t1 + 2), cvt(t1, t0, t0 + 2),
                f'buffer_store_dwordx2 v[{t1}:{t1+1}], v{V_PTW}, {SM}, s{S_PW+p} offen{sfl}']
    a('s_waitcnt lgkmcnt(1)')
    a(wo0(0)); a(wo0(1))
    a('s_waitcnt lgkmcnt(0)')
    D('OA', [OA+i for i in range(8)])
    a(wo1(0)); a(wo1(1))
    SVA = 58
    for p in range(1, 4):
        pk = pack(p - 1)
        a(wo0(2*p))
        if p == 1:
            for r in range(NEG2, NEG2 + 4, 4): pass
            a(f'v_mov_b32 v{NEG2}, -1')
        a(wo0(2*p + 1)); a(pk[0]); a(pk[1])
        a(wo1(2*p)); a(pk[2]); a(pk[3])
        a(wo1(2*p + 1)); a(pk[4]); a(pk[5]); a(pk[6])
    ST(11)
    a(f's_lshl_b32 {T0}, s{S_WV}, 14')
    a(f'v_add_u32 v{SVA}, {T0}, v{V_L16}')
    sv = [f'ds_read_b128 v[{SREG+4*i}:{SREG+4*i+3}], v{SVA} offset:{L_WA + i*1024}' for i in range(16)]
    a(f'v_add_u32 v{V_T}, {L_C}, v{V_L16}')
    a(f'ds_read_b128 v[{SELR}:{SELR+3}], v{V_T} offset:2048')
    for r in range(NEG2 + 1, NEG2 + 4): a(f'v_mov_b32 v{r}, -1')
    pk = pack(3)
    a.ext(pk)
    def pr_issue():
        a(f'buffer_load_dwordx4 v[{PR0}:{PR0+3}], v{PRA}, {SM}, s{S_PR} offen sc1')
        a(f'buffer_load_dwordx4 v[{PR1}:{PR1+3}], v{PRA}, {SM}, s{S_PR2} offen sc1')
    if cfg.PIPE_PR: pr_issue()
    a.ext(sv[0:14])
    a('s_waitcnt lgkmcnt(8)')
    a.ext(sv[14:16])
    ST(12)
    a.label(L('PR'))
    pr_issue()
    a('s_waitcnt vmcnt(2)' if cfg.PIPE_PR else 's_waitcnt vmcnt(0)')
    check(list(range(PR0, PR0 + 8)), V_T)
    poll_end(a, L('PR'), L('PR_D'))
    ST(13)
    a('s_waitcnt lgkmcnt(0)')
    a(mf32(RD, PR0, SELR))
    a(mf32(RD, PR1, SELR, RD))
    a(f'buffer_store_dwordx4 v[{NEG2}:{NEG2+3}], v{PRA}, {SM}, s{S_PR} offen{sfl}')
    a(f'buffer_store_dwordx4 v[{NEG2}:{NEG2+3}], v{PRA}, {SM}, s{S_PR2} offen{sfl}')
    a('s_nop 5')
    a(f'v_permlane32_swap_b32 v{RD}, v{RD+2}')
    a(f'v_permlane32_swap_b32 v{RD+1}, v{RD+3}')
    a('s_nop 0')
    a(pka(RD, RD, RD + 2))
    a('s_nop 1')
    a(f'v_permlane16_swap_b32 v{RD}, v{RD+1}')
    a('s_nop 0')
    a(f'v_add_f32 v{RD}, v{RD}, v{RD+1}')
    a('s_nop 1')
    a(f'v_mov_b32_dpp v{RD+1}, v{RD} row_shl:4 row_mask:0xf bank_mask:0xf')
    a('s_nop 0')
    a(cvt(RD, RD, RD + 1))
    a(f'buffer_store_dword v{RD}, v{V_MFW}, {SM}, s{S_MEMW} offen{sfl}')
    ST(14)
    a(f'buffer_store_dword v{NEG2}, v{V_MFW}, {SM}, s{S_MEMR} offen{sfl}')
    if prof is not None:
        lab = a.newlabel(P + 'DBG')
        a(f's_cmp_lg_u32 s{S_STEP}, {prof[1]}')
        a(f's_cbranch_scc1 {lab}')
        a('s_waitcnt vmcnt(0) lgkmcnt(0)')
        a(f's_mov_b32 s94, s{S_BUD}')
        for i in range(16):
            a(f'v_mov_b32 v{8+i}, s{64+2*i}')
        dbg_dump(a, list(range(8, 24)), prof[0], tmp=V_T)
        a.label(lab)
    a(f's_add_u32 s{S_STEP}, s{S_STEP}, 1')
    if kvf: flag_issue()
    if cfg.PIPE_AG: ag_issue(S_MEMW)
    for s in (S_MEMR, S_MEMW):
        a(f's_add_u32 {T0}, s{s}, 16384'); a(f's_and_b32 {T0}, {T0}, 0xffff')
        a(f's_and_b32 s{s}, s{s}, 0xffff0000'); a(f's_or_b32 s{s}, s{s}, {T0}')
    for s in [S_PR, S_PR2] + [S_PW + p for p in range(4)]:
        a(f's_xor_b32 s{s}, s{s}, 0x80000')
    msk = cfg.NS * 32768 - 1
    for s in (S_XW, S_XR, S_XC):
        a(f's_add_u32 {T0}, s{s}, 32768'); a(f's_and_b32 {T0}, {T0}, 0x{msk:x}')
        a(f's_add_u32 s{s}, {T0}, s{S_XBASE}')
    a(f's_add_u32 s{S_QKM}, s{S_QKM}, {32*4096}')
    a(f's_add_u32 s{S_VMG}, s{S_VMG}, {32*2048}')
    a.ext(top_prep())
    if not cfg.PIPE_AG:
        a('s_waitcnt vmcnt(1)' if not kvf else 's_waitcnt vmcnt(2)')
        ag_issue(S_MEMR)
    a(f's_branch {L("TOP")}')
    if kvf:
        a.label(L('KVW'))
        a(f's_lshr_b32 {T0}, s{S_STEP}, 2'); a(f's_lshl_b32 {T0}, {T0}, 11')
        a(f's_add_u32 {T0}, {T0}, s{S_KVFB}')
        a.label(L('KVP'))
        a(f'buffer_load_dwordx2 v[36:37], off, {SM}, {T0} sc1')
        a('s_waitcnt vmcnt(0)')
        a('v_and_b32 v36, v36, v37')
        a('v_cmp_ne_u32 vcc, 0x01010101, v36')
        poll_end(a, L('KVP'), L('KVP_D'))
        kv_issue()
        a(f'v_xor_b32 v{A3}, 0x1800, v{MWr}')
        if not cfg.PIPE_AG: ag_issue(S_MEMR)
        a(f's_branch {L("KVB")}')

    a.label(L('TAIL'))
    if cfg.PUBV:
        a(f'v_lshrrev_b32 v{V_T}, 1, v{V_L16}')
        a.label(L('TV'))
        a(f'buffer_load_dwordx2 v[{RV}:{RV+1}], v{V_T}, {X}, s{S_XR} offen offset:1024 sc1')
        a('s_waitcnt vmcnt(0)')
        a(f'v_max_u32 v{V_T2}, v{RV}, v{RV+1}')
        a(f'v_cmp_eq_u32 vcc, -1, v{V_T2}')
        poll_end(a, L('TV'), L('TV_D'))
        a(f'v_swap_b32 v{VA+1}, v{RV}')
        publish(a, cfg, P, 'B')
    else:
        lab = a.newlabel(P + 'PUB')
        a(f's_cmp_eq_u32 s{S_J}, 0'); a(f's_cbranch_scc0 {lab}')
        PUA = 29
        a(f'v_lshrrev_b32 v{PUA}, 8, v{V_L16}'); a(f'v_lshlrev_b32 v{PUA}, 7, v{PUA}')
        a(f'v_and_b32 v{V_T}, 0x70, v{V_L16}'); a(f'v_add_u32 v{PUA}, v{PUA}, v{V_T}')
        a(f's_mov_b64 exec, {HI}')
        a(f'buffer_store_dwordx4 v[{TT}:{TT+3}], v{PUA}, {SM}, s{S_QKM} offen sc1')
        a('s_mov_b64 exec, -1')
        a.label(lab)
    a('s_waitcnt vmcnt(0)')
```

```python
from asmlib import *

WS_X = 0xB000000
C_MEMF = SM_MEMF
C_PART = SM_PART
C_CNT = SM_CNT
CNT_MODE, CNT_FB = 2048, 2176
WS_DBGC = 0x7000000

class Cfg:
    NS = 64
    SG, SP, SH = 4096, 2048, 64
    RS_PERM = True
    dynamic = False
    force_fallback = False
    EARLY_CLR = False
    skip = ()
    kvflag = None
    NOPK = False
    PR_NOACK = False
    AG_NOACK = False
    PQ_EARLY = False
    def __init__(self, **kw):
        for k, v in kw.items(): setattr(self, k, v)

L_WA = 0x00000
L_WB = 0x10000
L_M = 0x20000
L_O = 0x22000
L_C = 0x22800
L_R = 0x23400
L_KV = 0x24000
REC_LDS = 0x28000

V_IDX, V_AGP, V_PTW, V_MFW, V_KDM, V_L16, V_T, V_T2 = 0, 1, 2, 3, 4, 5, 6, 7
AM = 8
AQ0, AQ1, AK0, AK1, AV0, AV1 = 40, 44, 48, 52, 56, 60
SREG = 64
WV_R = 128
WO_R = 192
XS, D0, D1, RX, VA, RV, TT = 44, 40, 48, 52, 60, 62, 56
SEL0, SEL1, KT0, KT1, VT0, VT1, SA, SB, SMM = 24, 28, 32, 36, 8, 12, 16, 20, 24
R0, R1, R2, R3, MM = 32, 36, 40, 44, 48
PB, PMQ, ONES, SUM, O0, O1 = 36, 40, 44, 52, 16, 20
WACC = [24, 28, 32, 36, 40, 44, 48, 52]
OA = 8
PR0, PR1, SELR, RD, NEG = 8, 12, 16, 20, 24

S_SM = 4
S_KV = 8
S_X = 12
S_W = 16
S_STEP, S_WV, S_H, S_J = 20, 21, 22, 23
S_MEMR, S_MEMW, S_PR, S_PR2 = 24, 25, 26, 27
S_PW = 28
S_XW, S_XR, S_XC, S_NEAR = 32, 33, 34, 35
S_KVK, S_KVV, S_QKM, S_VMG = 36, 37, 38, 39
S_LO8 = 40
S_BUD, S_NST, S_M0, S_MEMC = 42, 43, 44, 45
S_T0, S_T1, S_T2, S_T3 = 46, 47, 48, 49
S_PTR = 50
S_WS = 52
S_SWB, S_OWB, S_KVB, S_PRW = 54, 55, 56, 57
S_HI8 = 58
S_XBASE = 60
S_MODE = 61
S_LID = 62
S_SC = 63
S_KVOK, S_KVFB = 96, 97
SOFT_C = 0x3e0293ee


def smf(acc, A, B):
    return f'v_smfmac_f32_16x16x64_bf16 v[{acc}:{acc+3}], v[{A}:{A+3}], {B}, v{V_IDX}'
def wq(pi, t): b = 16*pi + 8*t; return f'a[{b}:{b+7}]'
def wk(pi, t): b = 128 + 16*pi + 8*t; return f'a[{b}:{b+7}]'
def wv(pi, t):
    b = (WV_R + 16*pi + 8*t) if pi < 4 else (SREG + 16*(pi-4) + 8*t)
    return f'v[{b}:{b+7}]'
def v8(r): return f'v[{r}:{r+7}]'
def mf32(d, A, B, C=None):
    c = '0' if C is None else f'v[{C}:{C+3}]'
    return f'v_mfma_f32_16x16x32_bf16 v[{d}:{d+3}], v[{A}:{A+3}], v[{B}:{B+3}], {c}'
def mf16(d, A, B, C):
    return f'v_mfma_f32_16x16x16_bf16 v[{d}:{d+3}], v[{A}:{A+1}], v[{B}:{B+1}], v[{C}:{C+3}]'
NOPK = False
def pkadd(d, x, y):
    if NOPK: return f'v_add_f32 v{d}, v{x}, v{y}\n    v_add_f32 v{d+1}, v{x+1}, v{y+1}'
    return f'v_pk_add_f32 v[{d}:{d+1}], v[{x}:{x+1}], v[{y}:{y+1}]'


def poll_end(a, lab, done):
    a(f's_cbranch_vccz {done}')
    a(f's_cmp_eq_u32 s{S_BUD}, 0')
    a(f's_cbranch_scc1 {done}')
    a(f's_sub_u32 s{S_BUD}, s{S_BUD}, 1')
    a(f's_branch {lab}')
    a.label(done)

def max_chain(a, dst, regs):
    if len(regs) == 2:
        a(f'v_max_u32 v{dst}, v{regs[0]}, v{regs[1]}'); return
    a(f'v_max3_u32 v{dst}, v{regs[0]}, v{regs[1]}, v{regs[2]}')
    i = 3
    while i + 1 < len(regs):
        a(f'v_max3_u32 v{dst}, v{dst}, v{regs[i]}, v{regs[i+1]}')
        i += 2
    if i < len(regs):
        a(f'v_max_u32 v{dst}, v{dst}, v{regs[i]}')


def dbg_dump(a, regs, slot, tmp=V_T):
    a('s_waitcnt vmcnt(0) lgkmcnt(0)')
    a('s_nop 7'); a('s_nop 7')
    a.srd(84, S_WS, 4 << 20, add=WS_DBGC + slot * (4 << 20))
    a(f's_lshl_b32 s88, s{S_H}, 1'); a(f's_add_u32 s88, s88, s{S_J}'); a('s_lshl_b32 s88, s88, 2')
    a(f's_add_u32 s88, s88, s{S_WV}'); a('s_lshl_b32 s88, s88, 14')
    a(f'v_lshrrev_b32 v{tmp}, 2, v{V_L16}')
    for i, r in enumerate(regs):
        a(f'buffer_store_dword v{r}, v{tmp}, s[84:87], s88 offen')
        a('s_add_u32 s88, s88, 256')
    a('s_waitcnt vmcnt(0)')


def role_static(a, exit_label):
    a(f's_and_b32 s{S_J}, s2, 7')
    a(f's_cmp_ge_u32 s{S_J}, 2'); a(f's_cbranch_scc1 {exit_label}')
    a(f's_lshr_b32 s{S_H}, s2, 3')


def role_dynamic(a, cfg, P, exit_label, nx=2):
    SM = f's[{S_SM}:{S_SM+3}]'
    T0, T1, T2, T3 = f's{S_T0}', f's{S_T1}', f's{S_T2}', f's{S_T3}'
    lw, lp, dec, fb, bc = (f'{P}_RD{i}' for i in range(5))
    a(f's_cmp_eq_u32 s{S_WV}, 0')
    a(f's_cbranch_scc0 {lw}')
    a(f's_getreg_b32 {T0}, hwreg(HW_REG_XCC_ID, 0, 4)')
    a(f's_lshl_b32 {T1}, {T0}, 7'); a(f's_add_u32 {T1}, {T1}, {C_CNT}')
    a('v_mov_b32 v8, 1'); a('v_mov_b32 v9, 0')
    a('s_mov_b64 exec, 1')
    a(f'buffer_atomic_add v8, v9, {SM}, {T1} offen sc0 sc1')
    a('s_waitcnt vmcnt(0)')
    a(f'v_readfirstlane_b32 {T2}, v8')
    a('s_mov_b64 exec, 0x1ffff')
    a(f'v_lshlrev_b32 v9, 3, v{V_L16}')
    a(f's_mov_b32 {T1}, {C_CNT}')
    a(f's_mov_b32 {T3}, {1 if cfg.force_fallback else 4000}')
    a.label(lp)
    a(f'buffer_load_dword v10, v9, {SM}, {T1} offen sc1')
    a('s_waitcnt vmcnt(0)')
    a(f'v_readlane_b32 s{S_MODE}, v10, 16')
    a(f's_cmp_lg_u32 s{S_MODE}, 0')
    a(f's_cbranch_scc1 {fb}')
    a('v_cmp_gt_u32 vcc, 32, v10')
    a(f's_and_b32 s64, vcc_lo, {(1 << nx) - 1}')
    if cfg.force_fallback:
        a('s_or_b32 s64, s64, 1')
    a(f's_mov_b32 s{S_MODE}, 1')
    a('s_cmp_eq_u32 s64, 0')
    a(f's_cbranch_scc1 {dec}')
    a(f's_mov_b32 s{S_MODE}, 2')
    a(f's_sub_u32 {T3}, {T3}, 1')
    a(f's_cmp_eq_u32 {T3}, 0')
    a(f's_cbranch_scc0 {lp}')
    a.label(dec)
    a('s_mov_b64 exec, 1')
    a(f'v_mov_b32 v10, s{S_MODE}'); a('v_mov_b32 v11, 0'); a('v_mov_b32 v9, 0')
    a(f's_mov_b32 {T1}, {C_CNT + CNT_MODE}')
    a(f'buffer_atomic_cmpswap v[10:11], v9, {SM}, {T1} offen sc0 sc1')
    a('s_waitcnt vmcnt(0)')
    a(f'v_readfirstlane_b32 {T1}, v10')
    a(f's_cmp_eq_u32 {T1}, 0')
    a(f's_cselect_b32 s{S_MODE}, s{S_MODE}, {T1}')
    a.label(fb)
    a('s_mov_b64 exec, 1')
    a(f's_cmp_eq_u32 s{S_MODE}, 1')
    a(f's_cbranch_scc1 {bc}')
    a('v_mov_b32 v8, 1'); a('v_mov_b32 v9, 0')
    a(f's_mov_b32 {T1}, {C_CNT + CNT_FB}')
    a(f'buffer_atomic_add v8, v9, {SM}, {T1} offen sc0 sc1')
    a('s_waitcnt vmcnt(0)')
    a(f'v_readfirstlane_b32 {T2}, v8')
    a(f's_and_b32 {T0}, {T2}, 1')
    a(f's_lshr_b32 {T1}, {T2}, 1')
    a(f's_mov_b32 {T2}, {T1}')
    a.label(bc)
    a(f's_cmp_lt_u32 {T0}, 2'); a(f's_cselect_b32 {T1}, 4, 0')
    a(f's_cmp_lt_u32 {T2}, 32'); a(f's_cselect_b32 {T1}, {T1}, 0')
    a(f's_or_b32 {T1}, {T1}, s{S_MODE}')
    a(f's_lshl_b32 {T2}, {T2}, 8'); a(f's_or_b32 {T1}, {T1}, {T2}')
    a(f's_lshl_b32 {T0}, {T0}, 24'); a(f's_or_b32 {T1}, {T1}, {T0}')
    a(f'v_mov_b32 v8, {T1}'); a(f'v_mov_b32 v9, {L_R}')
    a('ds_write_b32 v9, v8')
    a('s_mov_b64 exec, -1')
    a('s_waitcnt lgkmcnt(0)')
    a.label(lw)
    a('s_barrier')
    a(f'v_mov_b32 v9, {L_R}')
    a('ds_read_b32 v8, v9')
    a('s_waitcnt lgkmcnt(0)')
    a(f'v_readfirstlane_b32 s{S_LID}, v8')
    a(f's_and_b32 s{S_MODE}, s{S_LID}, 3')
    a(f's_lshr_b32 s{S_J}, s{S_LID}, 24')
    a(f's_bfe_u32 s{S_H}, s{S_LID}, 0x100008')
    a(f's_bitcmp1_b32 s{S_LID}, 2')
    a(f's_cbranch_scc0 {exit_label}')
    a(f's_and_b32 s{S_H}, s{S_H}, 31'); a(f's_and_b32 s{S_J}, s{S_J}, 1')


def common_setup(a, extra=()):
    a(f's_load_dwordx2 s[{S_WS}:{S_WS+1}], s[0:1], {KA_WS}')
    for x in extra: a(x)
    a('v_lshrrev_b32 v1, 6, v0')
    a(f'v_and_b32 v{V_L16}, 63, v0')
    a(f'v_readfirstlane_b32 s{S_WV}, v1')
    a(f'v_lshlrev_b32 v{V_L16}, 4, v{V_L16}')
    a(f's_mov_b32 s{S_LO8}, 0x00ff00ff'); a(f's_mov_b32 s{S_LO8+1}, 0x00ff00ff')
    a(f's_mov_b32 s{S_HI8}, 0xff00ff00'); a(f's_mov_b32 s{S_HI8+1}, 0xff00ff00')
    a(f's_mov_b32 s{S_BUD}, 400000')
    a(f's_mov_b32 s{S_SC}, 0x{SOFT_C:x}')
    a('s_waitcnt lgkmcnt(0)')
    a.srd(S_SM, S_WS, SM_SIZE, add=WS_SM)
    a.srd(S_KV, S_WS, 32 << 20, add=WS_KF)
    a.srd(S_X, S_WS, 64 << 20, add=WS_X)


def role_setup(a, cfg):
    W, H, J = f's{S_WV}', f's{S_H}', f's{S_J}'
    T0, T1, T2 = f's{S_T0}', f's{S_T1}', f's{S_T2}'
    ln, t1, t2 = 8, 9, 10
    a(f'v_lshrrev_b32 v{ln}, 4, v{V_L16}')
    a(f'v_mov_b32 v{V_IDX}, 0xeeee'); a(f'v_mov_b32 v{t1}, 0x4444')
    a(f'v_cndmask_b32 v{V_IDX}, v{V_IDX}, v{t1}, s[{S_LO8}:{S_LO8+1}]')
    a(f's_lshl_b32 {T0}, {W}, 11')
    a(f'v_add_u32 v{V_AGP}, {T0}, v{V_L16}')
    a(f'v_lshrrev_b32 v{t1}, 5, v{ln}'); a(f'v_lshlrev_b32 v{t1}, 10, v{t1}')
    a(f'v_bfe_u32 v{t2}, v{ln}, 4, 1'); a(f'v_lshl_add_u32 v{t1}, v{t2}, 9, v{t1}')
    a(f'v_bfe_u32 v{t2}, v{ln}, 3, 1'); a(f'v_lshl_add_u32 v{t1}, v{t2}, 8, v{t1}')
    a(f'v_and_b32 v{t2}, 7, v{ln}'); a(f'v_lshl_add_u32 v{t1}, v{t2}, 4, v{t1}')
    a(f'v_add_u32 v{V_KDM}, {T0}, v{t1}')
    a(f's_lshl_b32 {T0}, {W}, 16'); a(f's_mul_i32 {T1}, {H}, {cfg.SH}'); a(f's_add_u32 {T0}, {T0}, {T1}')
    a(f'v_lshrrev_b32 v{t1}, 5, v{ln}'); a(f'v_lshlrev_b32 v{t1}, 13, v{t1}')
    a(f'v_bfe_u32 v{t2}, v{ln}, 4, 1'); a(f'v_mul_u32_u24 v{t2}, {cfg.SG}, v{t2}'); a(f'v_add_u32 v{t1}, v{t1}, v{t2}')
    a(f'v_bfe_u32 v{t2}, v{ln}, 1, 1'); a(f'v_mul_u32_u24 v{t2}, {cfg.SP}, v{t2}'); a(f'v_add_u32 v{t1}, v{t1}, v{t2}')
    a(f'v_bfe_u32 v{t2}, v{ln}, 2, 2'); a(f'v_lshl_add_u32 v{t1}, v{t2}, 4, v{t1}')
    a(f'v_and_b32 v{t2}, 1, v{ln}'); a(f'v_lshl_add_u32 v{t1}, v{t2}, 3, v{t1}')
    a(f'v_add_u32 v{V_PTW}, {T0}, v{t1}')
    a(f's_lshl_b32 {T0}, {H}, 8')
    a(f's_and_b32 {T1}, {W}, 1'); a(f's_lshl_b32 {T1}, {T1}, 7'); a(f's_add_u32 {T0}, {T0}, {T1}')
    a(f's_lshr_b32 {T1}, {W}, 1'); a(f's_lshl_b32 {T1}, {T1}, 6'); a(f's_add_u32 {T0}, {T0}, {T1}')
    a(f'v_and_b32 v{t1}, 3, v{ln}'); a(f'v_lshlrev_b32 v{t1}, 4, v{t1}')
    a(f'v_lshrrev_b32 v{t2}, 4, v{ln}'); a(f'v_lshl_add_u32 v{t1}, v{t2}, 2, v{t1}')
    a(f'v_add_u32 v{t1}, {T0}, v{t1}')
    a(f'v_and_b32 v{t2}, 12, v{ln}')
    a(f'v_cmp_eq_u32 vcc, 0, v{t2}')
    a(f'v_mov_b32 v{V_MFW}, 0x40000000')
    a('s_nop 1')
    a(f'v_cndmask_b32 v{V_MFW}, v{V_MFW}, v{t1}, vcc')
    a(f's_lshl_b32 {T0}, {J}, 13')
    a(f's_add_u32 s{S_MEMR}, {T0}, {C_MEMF}')
    a(f's_add_u32 s{S_MEMW}, s{S_MEMR}, 16384')
    a(f's_lshl_b32 {T0}, {J}, 18'); a(f's_add_u32 {T0}, {T0}, {C_PART}')
    for p in range(4):
        a(f's_add_u32 s{S_PW+p}, {T0}, {p*16384}')
    a(f's_lshl_b32 {T1}, {H}, 13'); a(f's_add_u32 s{S_PR}, {T0}, {T1}')
    a(f's_add_u32 s{S_PR2}, s{S_PR}, {16*cfg.SH}')
    a(f's_lshr_b32 {T0}, {W}, 1'); a(f's_mul_i32 {T0}, {T0}, {cfg.SG}')
    a(f's_and_b32 {T1}, {W}, 1'); a(f's_mul_i32 {T1}, {T1}, {cfg.SP}'); a(f's_add_u32 s{S_PRW}, {T0}, {T1}')
    a(f's_mul_i32 s{S_XBASE}, {H}, {cfg.NS*32768}')
    a(f's_lshl_b32 s{S_KVK}, {H}, 13')
    a(f's_add_u32 s{S_KVV}, s{S_KVK}, {16 << 20}')
    a(f's_lshl_b32 {T0}, {W}, 12'); a(f's_add_u32 s{S_KVB}, {T0}, {L_KV}')
    a(f's_lshl_b32 s{S_QKM}, {H}, 12'); a(f's_add_u32 s{S_QKM}, s{S_QKM}, {SM_QKM + 2048}')
    a(f's_lshl_b32 {T0}, {W}, 9'); a(f's_add_u32 s{S_QKM}, s{S_QKM}, {T0}')
    a(f's_lshl_b32 s{S_VMG}, {H}, 11'); a(f's_add_u32 s{S_VMG}, s{S_VMG}, {SM_VMG}'); a(f's_add_u32 s{S_VMG}, s{S_VMG}, {T0}')
    a(f's_mul_i32 {T0}, {W}, 1536'); a(f's_add_u32 s{S_SWB}, {T0}, {L_M}')
    a(f's_lshr_b32 {T0}, {W}, 1'); a(f's_lshl_b32 {T0}, {T0}, 10')
    a(f's_and_b32 {T1}, {W}, 1'); a(f's_lshl_b32 {T1}, {T1}, 3')
    a(f's_add_u32 {T0}, {T0}, {T1}'); a(f's_add_u32 s{S_OWB}, {T0}, {L_O}')
    a(f's_mov_b32 s{S_STEP}, 0')


def x_offsets(a, cfg):
    T0, T1 = f's{S_T0}', f's{S_T1}'
    a(f's_lshl_b32 {T0}, s{S_NEAR}, 13'); a(f's_add_u32 {T0}, {T0}, s{S_XBASE}')
    a(f's_lshl_b32 {T1}, s{S_WV}, 11'); a(f's_add_u32 {T0}, {T0}, {T1}')
    a(f's_lshl_b32 {T1}, s{S_J}, 14')
    a(f's_add_u32 s{S_XW}, {T0}, {T1}')
    a(f's_xor_b32 s{S_XR}, s{S_XW}, 0x4000')
    a(f's_add_u32 s{S_XC}, s{S_XW}, {(3 % cfg.NS) * 32768}')


def const_tables(a):
    ln, t1, t2, js, c0, one = 8, 9, 10, 11, 12, 13
    R = 16
    a(f'v_lshrrev_b32 v{ln}, 4, v{V_L16}')
    a(f'v_add_u32 v{t2}, {L_C}, v{V_L16}')
    a(f'v_mov_b32 v{c0}, v{t2}')
    def onehot(cond_vcc):
        a(f'v_and_b32 v{t1}, 1, v{js}')
        a(f'v_lshlrev_b32 v{t1}, 4, v{t1}')
        a(f'v_mov_b32 v{one}, 0x3f80')
        a(f'v_lshlrev_b32 v{one}, v{t1}, v{one}')
        a(f'v_lshrrev_b32 v{t1}, 1, v{js}')
        for q in range(4):
            a(f'v_cmp_eq_u32 vcc, {q}, v{t1}')
            a('s_nop 1')
            a(f'v_cndmask_b32 v{R+q}, 0, v{one}, vcc')
    for tp in range(2):
        a(f'v_and_b32 v{js}, 3, v{ln}')
        a(f'v_bfe_u32 v{t1}, v{ln}, 3, 1'); a(f'v_lshl_add_u32 v{js}, v{t1}, 2, v{js}')
        a(f'v_bfe_u32 v{t1}, v{ln}, 2, 1'); a(f'v_bfe_u32 v{t2}, v{ln}, 4, 1')
        a(f'v_xor_b32 v{t1}, v{t1}, v{t2}')
        a(f'v_lshrrev_b32 v{t2}, 5, v{ln}'); a(f'v_xor_b32 v{t2}, {tp}, v{t2}')
        a(f'v_or_b32 v{t1}, v{t1}, v{t2}')
        a(f'v_lshl_add_u32 v{js}, v{t1}, 6, v{js}')
        onehot(None)
        a(f'ds_write_b128 v{c0}, v[{R}:{R+3}] offset:{tp*1024}')
        a('s_waitcnt lgkmcnt(0)')
    a(f'v_and_b32 v{js}, 7, v{ln}')
    onehot(None)
    a(f'ds_write_b128 v{c0}, v[{R}:{R+3}] offset:2048')
    a('s_waitcnt lgkmcnt(0)')


EXP_LIN = False
EXP_FL = ''
EXP_REG = False
EXP_STAMP = False
def stage_weights(a, tag, mid=None, mid1=None):
    W, H, J = f's{S_WV}', f's{S_H}', f's{S_J}'
    T0, T1, T2, T3 = f's{S_T0}', f's{S_T1}', f's{S_T2}', f's{S_T3}'
    LN, t1, t2, t3 = 8, 9, 10, 11
    VD = 12
    TB = [14, 15, 16, 17]
    TC = [18, 19, 20, 21]
    VOF = [24 + f for f in range(4)]
    OB = [32 + n for n in range(8)]
    OC = [40 + n for n in range(8)]
    V_WL = 48
    a(f'v_lshrrev_b32 v{LN}, 4, v{V_L16}')
    a(f'v_lshrrev_b32 v{t1}, 4, v{LN}')
    a(f'v_and_b32 v{t2}, 1, v{t1}')
    a(f'v_lshrrev_b32 v{t3}, 1, v{t1}'); a(f'v_lshl_or_b32 v{t2}, v{t3}, 2, v{t2}')
    a(f'v_and_b32 v{t3}, 15, v{LN}'); a(f'v_xor_b32 v{t2}, v{t2}, v{t3}')
    a(f'v_lshlrev_b32 v{t1}, 13, v{t1}'); a(f'v_lshl_add_u32 v{t1}, v{t2}, 4, v{t1}')
    a(f's_lshl_b32 {T0}, {H}, 8')
    a(f'v_add_u32 v{VD}, {T0}, v{t1}')
    a(f'v_lshrrev_b32 v{t1}, 4, v{LN}'); a(f'v_lshlrev_b32 v{t1}, 3, v{t1}')
    a(f'v_bfe_u32 v{t2}, v{LN}, 2, 2'); a(f'v_add_u32 v{t1}, v{t1}, v{t2}')
    a(f'v_lshlrev_b32 v{t1}, 8, v{t1}')
    a(f'v_and_b32 v{t3}, 1, v{t2}'); a(f'v_lshrrev_b32 v{t2}, 1, v{t2}'); a(f'v_lshl_or_b32 v{t2}, v{t2}, 2, v{t3}')
    a(f'v_bfe_u32 v{t3}, v{LN}, 1, 1'); a(f'v_lshlrev_b32 v{t3}, 1, v{t3}')
    a(f's_lshl_b32 {T0}, {W}, 2'); a(f'v_add_u32 v{t3}, {T0}, v{t3}')
    a(f'v_xor_b32 v{t2}, v{t2}, v{t3}')
    a(f'v_lshl_add_u32 v{t1}, v{t2}, 4, v{t1}')
    a(f'v_and_b32 v{t2}, 1, v{LN}'); a(f'v_lshl_add_u32 v{t1}, v{t2}, 3, v{t1}')
    for x in range(2):
        a(f's_and_b32 {T0}, {W}, 1'); a(f's_xor_b32 {T0}, {T0}, {x}'); a(f's_lshl_b32 {T0}, {T0}, 15')
        a(f'v_add_u32 v{TB[2*x]}, {T0}, v{t1}')
        a(f'v_xor_b32 v{TB[2*x+1]}, 16, v{TB[2*x]}')
        a(f'v_add_u32 v{TC[2*x]}, {L_WB}, v{TB[2*x]}')
        a(f'v_add_u32 v{TC[2*x+1]}, {L_WB}, v{TB[2*x+1]}')
    a(f's_lshl_b32 {T0}, {J}, 10'); a(f'v_add_u32 v{t1}, {T0}, v{V_L16}')
    for f in range(4):
        a(f'v_xor_b32 v{VOF[f]}, {f << 5}, v{t1}')
    a(f'v_bfe_u32 v{t1}, v{LN}, 4, 1'); a(f'v_lshlrev_b32 v{t1}, 5, v{t1}')
    a(f'v_lshrrev_b32 v{t2}, 5, v{LN}'); a(f'v_lshl_add_u32 v{t1}, v{t2}, 2, v{t1}')
    a(f'v_bfe_u32 v{t2}, v{LN}, 2, 2'); a(f'v_add_u32 v{t1}, v{t1}, v{t2}')
    a(f'v_lshlrev_b32 v{t1}, 10, v{t1}')
    a(f'v_lshl_add_u32 v{t1}, v{t2}, 5, v{t1}')
    a(f'v_and_b32 v{t2}, 3, v{LN}'); a(f'v_lshl_add_u32 v{t1}, v{t2}, 3, v{t1}')
    a(f's_lshl_b32 {T0}, {W}, 8'); a(f'v_add_u32 v{t1}, {T0}, v{t1}')
    for n in range(8):
        a(f'v_xor_b32 v{OB[n]}, {n << 5}, v{t1}')
        a(f'v_add_u32 v{OC[n]}, {L_WB}, v{OB[n]}')
    a(f's_lshl_b32 {T0}, {W}, 14'); a(f'v_add_u32 v{V_WL}, {T0}, v{V_L16}')

    def load_ptr(ka):
        a(f's_load_dwordx2 s[{S_PTR}:{S_PTR+1}], s[0:1], {ka}')
        a('s_waitcnt lgkmcnt(0)')
        a.srd(S_W, S_PTR, 8 << 20)

    def dma_qkv(P, region):
        if EXP_LIN:
            a(f's_lshl_b32 {T0}, {H}, 1'); a(f's_add_u32 {T0}, {T0}, {J}'); a(f's_lshl_b32 {T0}, {T0}, 17')
            a(f's_lshl_b32 {T1}, {W}, 14'); a(f's_add_u32 {T0}, {T0}, {T1}'); a(f's_add_u32 {T0}, {T0}, {P << 16}')
            a(f's_add_u32 m0, {T1}, {region}')
            for i in range(16):
                a(f'buffer_load_dwordx4 v{V_L16}, s[{S_W}:{S_W+3}], {T0} offen lds')
                if i < 15:
                    a(f's_add_u32 {T0}, {T0}, 1024'); a('s_add_u32 m0, m0, 1024'); a('s_nop 0')
            return
        a(f's_lshl_b32 {T0}, {J}, 22'); a(f's_lshl_b32 {T1}, {W}, 19'); a(f's_add_u32 {T0}, {T0}, {T1}')
        a(f's_add_u32 {T0}, {T0}, {P << 21}')
        a(f's_lshl_b32 {T1}, {W}, 14'); a(f's_add_u32 m0, {T1}, {region}')
        for i in range(16):
            if EXP_REG: a(f'buffer_load_dwordx4 v[{128 + (P*16 + i)*4 % 128}:{131 + (P*16 + i)*4 % 128}], v{VD}, s[{S_W}:{S_W+3}], {T0} offen{EXP_FL}')
            else: a(f'buffer_load_dwordx4 v{VD}, s[{S_W}:{S_W+3}], {T0} offen{EXP_FL} lds')
            if i < 15:
                a(f's_add_u32 {T0}, {T0}, 32768'); a('s_add_u32 m0, m0, 1024'); a('s_nop 0')

    def dma_wo(cp, region):
        a(f's_lshl_b32 {T0}, {H}, 7'); a(f's_lshl_b32 {T1}, {W}, 4'); a(f's_add_u32 {T0}, {T0}, {T1}')
        a(f's_add_u32 {T0}, {T0}, {64*cp}'); a(f's_lshl_b32 {T0}, {T0}, 11')
        a(f's_lshl_b32 {T1}, {W}, 14'); a(f's_add_u32 m0, {T1}, {region}')
        for i in range(16):
            a(f'buffer_load_dwordx4 v{VOF[i & 3]}, s[{S_W}:{S_W+3}], {T0} offen{EXP_FL} lds')
            if i < 15:
                a(f's_add_u32 {T0}, {T0}, 2048'); a('s_add_u32 m0, m0, 1024'); a('s_nop 0')

    def read_qkv_range(base_pi, tb, dest):
        n = 0
        for pl in range(4):
            pi = base_pi + pl
            for tau in range(2):
                d = dest(pi, tau)
                for hq in range(2):
                    for q in range(2):
                        r = 4*hq + 2*q
                        a(f'ds_read_b64_tr_b16 {d(r)}, v{tb[2*(pl >> 1) + tau]} offset:{(pl & 1)*16384 + hq*8192 + q*1024}')
                a('s_waitcnt lgkmcnt(8)')

    def read_qkv(P, tb, dest, nm):
        l1, l2 = f'{tag}_ST{nm}A', f'{tag}_ST{nm}B'
        a(f's_lshr_b32 {T0}, {W}, 1'); a(f's_cmp_eq_u32 {T0}, {P}')
        a(f's_cbranch_scc0 {l1}')
        read_qkv_range(0, tb, dest)
        a(f's_branch {l2}')
        a.label(l1)
        read_qkv_range(4, tb, dest)
        a.label(l2)

    def read_wo(ad, dest):
        for nu in range(8):
            for hq in range(2):
                for q in range(2):
                    r = dest + 8*nu + 4*hq + 2*q
                    a(f'ds_read_b64_tr_b16 v[{r}:{r+1}], v{ad[nu]} offset:{hq*16384 + q*8192}')
            a('s_waitcnt lgkmcnt(8)')

    dq = lambda pi, t: (lambda r: f'a[{16*pi+8*t+r}:{16*pi+8*t+r+1}]')
    dk = lambda pi, t: (lambda r: f'a[{128+16*pi+8*t+r}:{128+16*pi+8*t+r+1}]')
    def dv(pi, t):
        b = WV_R + 16*pi + 8*t if pi < 4 else SREG + 16*(pi-4) + 8*t
        return lambda r: f'v[{b+r}:{b+r+1}]'

    pieces = [('q', 0), ('q', 1), ('k', 0), ('k', 1), ('v', 0), ('v', 1), ('o', 0), ('o', 1)]
    ptrs = {'q': KA_WQ, 'k': KA_WK, 'v': KA_WV, 'o': KA_WO}
    def issue(n):
        m, P = pieces[n]
        if P == 0: load_ptr(ptrs[m])
        reg = L_WB if n & 1 else L_WA
        if m == 'o': dma_wo(P, reg)
        else: dma_qkv(P, reg)
    def xs(i):
        if EXP_STAMP:
            a('s_memrealtime s[88:89]'); a('s_waitcnt lgkmcnt(0)'); a(f'v_writelane_b32 v60, s88, {i}')
    xs(2)
    issue(0)
    if mid1: mid1(a)
    issue(1)
    if mid: mid(a)
    xs(3)
    for n in range(8):
        m, P = pieces[n]
        a(f's_waitcnt vmcnt({16 if n < 7 else 0})')
        xs(4 + 2*n)
        a('s_barrier')
        tb = TC if n & 1 else TB
        if m == 'q': read_qkv(P, tb, dq, n)
        elif m == 'k': read_qkv(P, tb, dk, n)
        elif m == 'v': read_qkv(P, tb, dv, n)
        elif P == 0: read_wo(OB, WO_R)
        else: read_wo(OC, SREG)
        a('s_waitcnt lgkmcnt(0)')
        xs(5 + 2*n)
        a('s_barrier')
        if n + 2 < 8: issue(n + 2)
        if n == 6:
            for i in range(16):
                r = SREG + 4*i
                a(f'ds_write_b128 v{V_WL}, v[{r}:{r+3}] offset:{L_WA + i*1024}')
            a('s_waitcnt lgkmcnt(0)')
        if n == 7:
            a(f'v_add_u32 v{V_WL}, {L_WB}, v{V_WL}')
            for i in range(16):
                r = SREG + 4*i
                a(f'ds_write_b128 v{V_WL}, v[{r}:{r+3}] offset:{i*1024}')
            a('s_waitcnt lgkmcnt(0)')


def kv_dma(cfg):
    KV = f's[{S_KV}:{S_KV+3}]'
    out = []
    out.append([f's_mov_b32 m0, s{S_KVB}', 's_nop 0', f'buffer_load_dwordx4 v{V_KDM}, {KV}, s{S_KVK} offen lds'])
    out.append([f's_add_u32 m0, s{S_KVB}, {1024-128}', 's_nop 0', f'buffer_load_dwordx4 v{V_KDM}, {KV}, s{S_KVK} offen offset:128 lds'])
    out.append([f's_add_u32 m0, s{S_KVB}, 2048', 's_nop 0', f'buffer_load_dwordx4 v{V_KDM}, {KV}, s{S_KVV} offen lds'])
    out.append([f's_add_u32 m0, s{S_KVB}, {3072-128}', 's_nop 0', f'buffer_load_dwordx4 v{V_KDM}, {KV}, s{S_KVV} offen offset:128 lds'])
    return out


def svload():
    return [f'ds_read_b128 v[{SREG+4*i}:{SREG+4*i+3}], v{V_T2} offset:{L_WA + i*1024}' for i in range(16)]

def wl_addr(a, dst, add=0):
    a(f's_lshl_b32 s{S_T0}, s{S_WV}, 14')
    if add: a(f's_add_u32 s{S_T0}, s{S_T0}, {add}')
    a(f'v_add_u32 v{dst}, s{S_T0}, v{V_L16}')


def rec_loop(a, cfg, P, sfl, dbg=None):
    SM = f's[{S_SM}:{S_SM+3}]'
    X = f's[{S_X}:{S_X+3}]'
    LO = f's[{S_LO8}:{S_LO8+1}]'
    HI = f's[{S_HI8}:{S_HI8+1}]'
    dbg = dbg or {}
    L = lambda s: f'{P}_{s}'
    def D(name, regs, tmp=V_T):
        if name in dbg:
            lab = a.newlabel(P + 'DBG')
            a(f's_cmp_lg_u32 s{S_STEP}, {dbg[name][1]}')
            a(f's_cbranch_scc1 {lab}')
            dbg_dump(a, regs, dbg[name][0], tmp)
            a.label(lab)
    prof = dbg.get('prof')
    global NOPK
    NOPK = cfg.NOPK
    stamps = getattr(cfg, 'stamps', None) or list(range(15))
    def ST(i):
        if prof is not None and i in stamps:
            k = stamps.index(i)
            if getattr(cfg, 'RT', False):
                if i == 14:
                    a(f's_mov_b64 s[94:95], s[{64+2*k}:{65+2*k}]') if False else None
                if i == 0:
                    k14 = stamps.index(14)
                    a('s_waitcnt lgkmcnt(0)')
                    a(f's_mov_b64 s[{64+2*14}:{65+2*14}], s[{64+2*k14}:{65+2*k14}]')
                a(f's_memrealtime s[{64+2*k}:{65+2*k}]')
            else:
                a(f's_memtime s[{64+2*k}:{65+2*k}]')

    MWr, A1, A2, A3 = AM + 8, AM + 12, AM + 20, AM + 28
    NEG = 24
    def top_prep():
        out = []
        out.append(f'v_add_u32 v{MWr}, {L_M}, v{V_AGP}')
        out.append(f'v_xor_b32 v{A1}, 0x800, v{MWr}')
        out.append(f'v_xor_b32 v{A2}, 0x1000, v{MWr}')
        out.append(f'v_xor_b32 v{A3}, 0x1800, v{MWr}')
        for r in range(40, 64, 2):
            out.append(f'v_mov_b64 v[{r}:{r+1}], 0')
        return out

    wl_addr(a, V_T2)
    sv0 = svload()
    a.ext(sv0[:8]); a('s_waitcnt lgkmcnt(0)'); a.ext(sv0[8:])
    a.ext(top_prep())
    for r in range(4): a(f'v_mov_b32 v{NEG+r}, -1')
    if cfg.kvflag is not None:
        a(f's_lshr_b32 s{S_KVFB}, s{S_H}, 1'); a(f's_lshl_b32 s{S_KVFB}, s{S_KVFB}, 4')
        a(f's_add_u32 s{S_KVFB}, s{S_KVFB}, {cfg.kvflag}')
        a(f's_mov_b32 s{S_KVOK}, 0')
    a.label(L('TOP'))
    if cfg.kvflag is not None:
        a(f's_cmp_eq_u32 s{S_KVOK}, 0'); a(f's_cbranch_scc1 {L("KVW")}')
        a.label(L('KVB'))
        if getattr(cfg, 'tl', False):
            lab = a.newlabel(P + 'TL')
            a(f's_cmp_lg_u32 s{S_STEP}, 0'); a(f's_cbranch_scc1 {lab}')
            a('s_memrealtime s[88:89]'); a('s_waitcnt lgkmcnt(0)'); a('s_mov_b32 s75, s88')
            a.label(lab)
    ST(0)
    a.label(L('PM'))
    a(f'buffer_load_dwordx4 v[{AM}:{AM+3}], v{V_AGP}, {SM}, s{S_MEMR} offen sc1')
    a(f'buffer_load_dwordx4 v[{AM+4}:{AM+7}], v{V_AGP}, {SM}, s{S_MEMR} offen offset:1024 sc1')
    a('s_waitcnt vmcnt(0)')
    max_chain(a, V_T, list(range(AM, AM + 8)))
    a(f'v_cmp_eq_u32 vcc, -1, v{V_T}')
    poll_end(a, L('PM'), L('PM_D'))
    ST(1)
    a(f'ds_write_b128 v{MWr}, v[{AM}:{AM+3}]')
    a(f'ds_write_b128 v{MWr}, v[{AM+4}:{AM+7}] offset:1024')
    def qk(pi):
        A = AM + 4*pi
        return [smf(AQ0, A, wq(pi, 0)), smf(AQ1, A, wq(pi, 1)), smf(AK0, A, wk(pi, 0)), smf(AK1, A, wk(pi, 1))]
    def qk4(pi): a.ext(qk(pi))
    def vv(pi): return [smf(AV0, AM + 4*pi, wv(pi, 0)), smf(AV1, AM + 4*pi, wv(pi, 1))]
    kvd = kv_dma(cfg) if 'kv' not in cfg.skip else [[], [], [], []]
    xcl = [f'buffer_store_dwordx4 v[{NEG}:{NEG+3}], v{V_L16}, {X}, s{S_XC} offen sc1',
           f'buffer_store_dwordx4 v[{NEG}:{NEG+3}], v{V_L16}, {X}, s{S_XC} offen offset:1024 sc1']
    m = qk(0)
    a(m[0]); a.ext(kvd[0]); a(m[1]); a.ext(kvd[1]); a(m[2]); a(xcl[0]); a(m[3]); a(xcl[1])
    a('s_waitcnt lgkmcnt(0)')
    a('s_barrier')
    ST(2)
    for pi in range(2, 8):
        ad = [A1, A2, A3][(pi >> 1) - 1]
        a(f'ds_read_b128 v[{AM+4*pi}:{AM+4*pi+3}], v{ad} offset:{(pi & 1)*1024}')
    m = qk(1)
    a(m[0]); a.ext(kvd[2]); a(m[1]); a.ext(kvd[3]); a(m[2]); a(m[3])
    a.ext(vv(0)); a.ext(vv(1))
    D('AM', list(range(AM, AM + 32)))
    fine = prof is not None and 'q0' in stamps
    ST('q0')
    for pi in range(2, 6):
        a(f's_waitcnt lgkmcnt({0 if fine else 7 - pi})')
        ST(f'q{pi}w')
        qk4(pi)
    a('s_waitcnt lgkmcnt(0)')
    ST('q6')
    for pi in (6, 7):
        a(smf(AQ0, AM + 4*pi, wq(pi, 0))); a(smf(AQ1, AM + 4*pi, wq(pi, 1)))
    a(smf(AK0, AM + 24, wk(6, 0))); a(smf(AK1, AM + 24, wk(6, 1)))
    ST('q7')
    a(f'v_permlane32_swap_b32 v{AQ0}, v{AQ1}')
    a(f'v_permlane32_swap_b32 v{AQ0+1}, v{AQ1+1}')
    a(f'v_permlane32_swap_b32 v{AQ0+2}, v{AQ1+2}')
    a(smf(AK0, AM + 28, wk(7, 0)))
    a(f'v_permlane32_swap_b32 v{AQ0+3}, v{AQ1+3}')
    a(pkadd(AQ0, AQ0, AQ1))
    a(smf(AK1, AM + 28, wk(7, 1)))
    a(pkadd(AQ0 + 2, AQ0 + 2, AQ1 + 2))
    a('s_nop 0')
    a(f'v_cvt_pk_bf16_f32 v{XS}, v{AQ0}, v{AQ0+1}')
    VS = []
    for pi in [4, 5, 6, 7, 2, 3]: VS += vv(pi)
    a(VS[0])
    a(f'v_cvt_pk_bf16_f32 v{XS+1}, v{AQ0+2}, v{AQ0+3}')
    a('s_nop 1')
    a(VS[1])
    ST('q8')
    for r in range(4):
        a(f'v_permlane32_swap_b32 v{AK0+r}, v{AK1+r}')
    a(VS[2])
    a(pkadd(AK0, AK0, AK1)); a(pkadd(AK0 + 2, AK0 + 2, AK1 + 2))
    a('s_nop 0')
    a(f'v_cvt_pk_bf16_f32 v{XS+2}, v{AK0}, v{AK0+1}')
    a(f'v_cvt_pk_bf16_f32 v{XS+3}, v{AK0+2}, v{AK0+3}')
    a(VS[3])
    a(f'buffer_store_dwordx4 v[{XS}:{XS+3}], v{V_L16}, {X}, s{S_XW} offen sc1')
    if cfg.PQ_EARLY:
        a(f'buffer_load_dwordx4 v[{RX}:{RX+3}], v{V_L16}, {X}, s{S_XR} offen sc1')
    ST(3)
    D('XS', [XS, XS+1, XS+2, XS+3])
    wl_addr(a, V_T2, L_WB)
    wo_ld = [f'ds_read_b128 v[{SREG+4*i}:{SREG+4*i+3}], v{V_T2} offset:{i*1024}' for i in range(16)]
    a(f'v_add_u32 v{V_T}, {L_C}, v{V_L16}')
    a(VS[4]); a(wo_ld[0]); a(wo_ld[1]); a(wo_ld[2])
    a(VS[5]); a(wo_ld[3]); a(wo_ld[4]); a(wo_ld[5])
    a(VS[6]); a(wo_ld[6]); a(wo_ld[7])
    a(VS[7])
    a(f'ds_read_b128 v[{SEL0}:{SEL0+3}], v{V_T}')
    a(f'ds_read_b128 v[{SEL1}:{SEL1+3}], v{V_T} offset:1024')
    a(VS[8]); a(wo_ld[8]); a(wo_ld[9])
    a(VS[9]); a(wo_ld[10]); a(wo_ld[11])
    a(VS[10])
    a('s_waitcnt lgkmcnt(4)')
    a(wo_ld[12]); a(wo_ld[13])
    a(VS[11])
    a(mf32(D0, XS, SEL0))
    a(wo_ld[14]); a(wo_ld[15])
    a(mf32(D1, XS, SEL1))
    a(f'v_lshrrev_b32 v{V_T2}, 1, v{V_L16}')
    a('s_nop 4')
    for r in range(4):
        a(f'v_permlane32_swap_b32 v{AV0+r}, v{AV1+r}')
    a('s_nop 0')
    a(pkadd(AV0, AV0, AV1)); a(pkadd(AV0 + 2, AV0 + 2, AV1 + 2))
    a('s_nop 0')
    a(f'v_cvt_pk_bf16_f32 v{VA}, v{AV0}, v{AV0+1}')
    a(f'v_cvt_pk_bf16_f32 v{VA+1}, v{AV0+2}, v{AV0+3}')
    a('s_nop 1')
    a(f'v_permlane16_swap_b32 v{VA}, v{VA+1}')
    a('s_nop 1')
    a(f'v_permlane32_swap_b32 v{VA}, v{VA+1}')
    a('s_nop 1')
    a(f'buffer_store_dwordx2 v[{VA}:{VA+1}], v{V_T2}, {X}, s{S_XW} offen offset:1024 sc1')
    ST(4)
    a('s_barrier')
    SW, SR, MR, PVA = XS, XS + 1, XS + 2, XS + 3
    a(f'v_mov_b32 v{PVA}, v{V_T2}')
    a(f'v_lshrrev_b32 v{SR}, 8, v{V_L16}'); a(f'v_lshlrev_b32 v{SR}, 7, v{SR}')
    a(f'v_and_b32 v{V_T}, 0x70, v{V_L16}')
    a(f'v_add_u32 v{SR}, v{SR}, v{V_T}')
    a(f'v_add_u32 v{SW}, s{S_SWB}, v{SR}')
    a(f'v_and_b32 v{V_T2}, 0x80, v{V_L16}')
    a(f'v_lshl_add_u32 v{SR}, v{V_T2}, 2, v{SR}')
    a(f'v_add_u32 v{SR}, {L_M}, v{SR}')
    a(f'v_lshrrev_b32 v{MR}, 9, v{V_L16}'); a(f'v_lshl_add_u32 v{MR}, v{MR}, 7, v{V_T}')
    a(f'v_bfe_u32 v{V_T}, v{V_L16}, 8, 1'); a(f'v_lshl_add_u32 v{MR}, v{V_T}, 3, v{MR}')
    a(f'v_bfe_u32 v{V_T}, v{V_L16}, 7, 1'); a(f'v_lshl_add_u32 v{MR}, v{V_T}, 2, v{MR}')
    a(f'v_add_u32 v{MR}, {L_M + 1280}, v{MR}')
    a(f'v_add_u32 v{V_T}, s{S_KVB}, v{V_L16}')
    a('s_waitcnt vmcnt(1)')
    ST(5)
    if cfg.PQ_EARLY:
        a(f'ds_read_b128 v[{KT0}:{KT0+3}], v{V_T}')
        a(f'ds_read_b128 v[{KT1}:{KT1+3}], v{V_T} offset:1024')
        a(f'ds_read_b128 v[{VT0}:{VT0+3}], v{V_T} offset:2048')
        a(f'ds_read_b128 v[{VT1}:{VT1+3}], v{V_T} offset:3072')
        max_chain(a, V_T2, [RX, RX+1, RX+2, RX+3])
        a(f'v_cmp_eq_u32 vcc, -1, v{V_T2}')
        a(f's_cbranch_vccz {L("PQ_D")}')
    a.label(L('PQ'))
    a(f'buffer_load_dwordx4 v[{RX}:{RX+3}], v{V_L16}, {X}, s{S_XR} offen sc1')
    if not cfg.PQ_EARLY:
        a(f'ds_read_b128 v[{KT0}:{KT0+3}], v{V_T}')
        a(f'ds_read_b128 v[{KT1}:{KT1+3}], v{V_T} offset:1024')
        a(f'ds_read_b128 v[{VT0}:{VT0+3}], v{V_T} offset:2048')
        a(f'ds_read_b128 v[{VT1}:{VT1+3}], v{V_T} offset:3072')
    a('s_waitcnt vmcnt(0)')
    max_chain(a, V_T2, [RX, RX+1, RX+2, RX+3])
    a(f'v_cmp_eq_u32 vcc, -1, v{V_T2}')
    poll_end(a, L('PQ'), L('PQ_D'))
    ST(6)
    a('s_waitcnt lgkmcnt(0)')
    a(mf32(D0, RX, SEL0, D0))
    a(mf32(D1, RX, SEL1, D1))
    a(f'buffer_load_dwordx2 v[{RV}:{RV+1}], v{PVA}, {X}, s{S_XR} offen offset:1024 sc1')
    a(f's_cmp_eq_u32 s{S_STEP}, s{S_NST}')
    a('s_nop 2')
    a(f'v_cvt_pk_bf16_f32 v{TT}, v{D0}, v{D0+1}')
    a(f'v_cvt_pk_bf16_f32 v{TT+1}, v{D0+2}, v{D0+3}')
    a('s_nop 0')
    a(f'v_cvt_pk_bf16_f32 v{TT+2}, v{D1}, v{D1+1}')
    a(f'v_cvt_pk_bf16_f32 v{TT+3}, v{D1+2}, v{D1+3}')
    a(f's_cbranch_scc1 {L("TAIL")}')
    a('s_nop 0')
    a(mf32(SA, KT0, TT))
    a(mf32(SB, KT1, TT))
    a(mf32(SMM, TT, TT))
    D('T', [TT, TT+1, TT+2, TT+3], V_T2)
    a(f's_mov_b64 exec, {LO}')
    a('s_nop 1')
    a(f'ds_write_b128 v{SW}, v[{SA}:{SA+3}]')
    a('s_nop 1')
    a(f'ds_write_b128 v{SW}, v[{SB}:{SB+3}] offset:512')
    a('s_nop 2')
    a(f'ds_write_b128 v{SW}, v[{SMM}:{SMM+3}] offset:1024')
    a('s_mov_b64 exec, -1')
    a('s_waitcnt lgkmcnt(0)')
    a('s_barrier')
    ST(7)
    a(f'ds_read2st64_b32 v[{MM}:{MM+1}], v{MR} offset0:0 offset1:6')
    a(f'ds_read2st64_b32 v[{MM+2}:{MM+3}], v{MR} offset0:12 offset1:18')
    for w in range(4):
        r = R0 + 4*w
        a(f'ds_read_b128 v[{r}:{r+3}], v{SR} offset:{w*1536}')
    a(f'v_mov_b32 v{V_T}, v{PVA}') if False else None
    for r in range(WACC[0], WACC[0] + 8, 2):
        a(f'v_mov_b64 v[{r}:{r+1}], 0')
    a('s_waitcnt lgkmcnt(4)')
    a(pkadd(MM, MM, MM + 2))
    a('s_waitcnt lgkmcnt(2)')
    a(pkadd(R0, R0, R1)); a(pkadd(R0 + 2, R0 + 2, R1 + 2))
    a(f'v_add_f32 v{MM}, v{MM}, v{MM+1}')
    M, M2 = MM + 2, MM + 3
    HALF = SUM + 2
    a('s_waitcnt lgkmcnt(0)')
    a(pkadd(R2, R2, R3)); a(pkadd(R2 + 2, R2 + 2, R3 + 2))
    a(pkadd(R0, R0, R2)); a(pkadd(R0 + 2, R0 + 2, R2 + 2))
    a(f'v_mov_b32 v{ONES}, 0x3f803f80')
    a(f'v_max3_f32 v{M}, v{R0}, v{R0+1}, v{MM}')
    a(f'v_mov_b32 v{ONES+1}, 0x3f803f80')
    a(f'v_max3_f32 v{M}, v{M}, v{R0+2}, v{R0+3}')
    D('S', [R0, R0+1, R0+2, R0+3, MM], V_T2)
    a(f'v_mov_b32 v{ONES+2}, 0x3f803f80')
    a(f'v_mov_b32 v{ONES+3}, 0x3f803f80')
    a(f'v_max_f32_dpp v{M}, v{M}, v{M} row_ror:8 row_mask:0xf bank_mask:0xf')
    a(f'v_mov_b32 v{PMQ+2}, 0x3f003f00')
    a(f'v_mov_b32 v{M2}, v{M}')
    a(f'v_mov_b32 v{PMQ+3}, 0x3f003f00')
    a('s_nop 0')
    a(f'v_permlane32_swap_b32 v{M}, v{M2}')
    a('s_nop 0')
    a(f'v_max_f32 v{M}, v{M}, v{M2}')
    a(f'v_mov_b32 v{M2}, v{M}')
    a('s_nop 1')
    a(f'v_permlane16_swap_b32 v{M}, v{M2}')
    a('s_nop 0')
    a(f'v_max_f32 v{M}, v{M}, v{M2}')
    a(f'v_mul_f32 v{M}, s{S_SC}, v{M}')
    E = [R0, R0+1, R0+2, R0+3, MM]
    for e in E:
        a(f'v_fma_f32 v{e}, v{e}, s{S_SC}, -v{M}')
    for e in (MM, R0, R0+1, R0+2, R0+3):
        a(f'v_exp_f32 v{e}, v{e}')
    a(f'v_mov_b32_dpp v{M2}, v{MM} row_ror:8 row_mask:0xf bank_mask:0xf')
    a(f'v_cvt_pk_bf16_f32 v{PB}, v{R0}, v{R0+1}')
    a(f'v_cvt_pk_bf16_f32 v{PB+1}, v{R0+2}, v{R0+3}')
    a(f'v_cvt_pk_bf16_f32 v{PMQ}, v{MM}, v{M2}')
    a(f'v_mov_b32_dpp v{PB+2}, v{PB} row_ror:8 row_mask:0xf bank_mask:0xf')
    a(f'v_mov_b32_dpp v{PB+3}, v{PB+1} row_ror:8 row_mask:0xf bank_mask:0xf')
    a(f'v_cvt_pk_bf16_f32 v{PMQ+1}, v{MM}, v{M2}')
    ST(8)
    a('s_waitcnt vmcnt(0)')
    a(mf32(SUM, ONES, PB))
    a(f'v_max_u32 v{V_T2}, v{RV}, v{RV+1}')
    a(f'v_cmp_eq_u32 vcc, -1, v{V_T2}')
    a(mf32(O0, VT0, PB))
    a(f's_cbranch_vccz {L("PV_D")}')
    a(f'v_lshrrev_b32 v{V_T}, 1, v{V_L16}')
    a.label(L('PV'))
    a(f'buffer_load_dwordx2 v[{RV}:{RV+1}], v{V_T}, {X}, s{S_XR} offen offset:1024 sc1')
    a('s_waitcnt vmcnt(0)')
    a(f'v_max_u32 v{V_T2}, v{RV}, v{RV+1}')
    a(f'v_cmp_eq_u32 vcc, -1, v{V_T2}')
    poll_end(a, L('PV'), L('PV_D'))
    a(f'v_swap_b32 v{VA+1}, v{RV}')
    a(mf32(O1, VT1, PB))
    a(mf16(SUM, PMQ + 2, PMQ, SUM))
    a(mf16(O0, VA, PMQ, O0))
    a(mf16(O1, VA + 2, PMQ, O1))
    ST(9)
    a(f'v_rcp_f32 v{V_T}, v{SUM}')
    a(f'v_add_u32 v{V_T2}, s{S_OWB}, v{V_L16}')
    for r in range(WACC[2], WACC[3] + 4, 2):
        pass
    for r in (48, 50):
        a(f'v_mov_b64 v[{r}:{r+1}], 0')
    for r in (32, 34):
        a(f'v_mov_b64 v[{r}:{r+1}], 0')
    a('s_nop 0')
    D('O', [O0+i for i in range(8)] + [SUM], 36)
    for r in (O0, O0 + 2, O1, O1 + 2):
        a(f'v_pk_mul_f32 v[{r}:{r+1}], v[{r}:{r+1}], v[{V_T}:{V_T+1}] op_sel_hi:[1,0]')
    a(f'v_cvt_pk_bf16_f32 v{OA}, v{O0}, v{O0+1}')
    a(f'v_cvt_pk_bf16_f32 v{OA+1}, v{O1}, v{O1+1}')
    a(f'v_cvt_pk_bf16_f32 v{OA+2}, v{O0+2}, v{O0+3}')
    a(f'v_cvt_pk_bf16_f32 v{OA+3}, v{O1+2}, v{O1+3}')
    a(f's_mov_b64 exec, {LO}')
    a(f'ds_write2_b64 v{V_T2}, v[{OA}:{OA+1}], v[{OA+2}:{OA+3}] offset0:0 offset1:16')
    a('s_mov_b64 exec, -1')
    a(f'v_add_u32 v{V_T}, {L_O}, v{V_L16}')
    for r in (36, 38, 40, 42, 44, 46, 52, 54):
        a(f'v_mov_b64 v[{r}:{r+1}], 0')
    a('s_waitcnt lgkmcnt(0)')
    a('s_barrier')
    ST(10)
    a(f'ds_read_b128 v[{OA}:{OA+3}], v{V_T}')
    a(f'ds_read_b128 v[{OA+4}:{OA+7}], v{V_T} offset:1024')
    if 'pub' not in cfg.skip: publish(a, cfg, P, 'A')
    if cfg.kvflag is not None:
        a(f's_add_u32 s{S_T0}, s{S_STEP}, 1'); a(f's_lshr_b32 s{S_T0}, s{S_T0}, 2'); a(f's_lshl_b32 s{S_T0}, s{S_T0}, 8')
        a(f's_add_u32 s{S_T0}, s{S_T0}, s{S_KVFB}')
        a(f'buffer_load_dwordx2 v[56:57], off, {SM}, s{S_T0} sc1')
    def wo0(nu): a(smf(WACC[nu], OA, v8(WO_R + 8*nu)))
    def wo1(nu): a(smf(WACC[nu], OA + 4, v8(SREG + 8*nu)))
    def pack(p):
        t0, t1 = WACC[2*p], WACC[2*p + 1]
        out = []
        for r in range(4): out.append(f'v_permlane32_swap_b32 v{t0+r}, v{t1+r}')
        out.append(pkadd(t0, t0, t1)); out.append(pkadd(t0 + 2, t0 + 2, t1 + 2))
        out.append(f'v_cvt_pk_bf16_f32 v{t1}, v{t0}, v{t0+1}')
        out.append(f'v_cvt_pk_bf16_f32 v{t1+1}, v{t0+2}, v{t0+3}')
        out.append(f'buffer_store_dwordx2 v[{t1}:{t1+1}], v{V_PTW}, {SM}, s{S_PW+p} offen{sfl}')
        return out
    ST('w0')
    a('s_waitcnt lgkmcnt(1)' if not (prof is not None and 'w0' in stamps) else 's_waitcnt lgkmcnt(0)')
    ST('w1')
    wo0(0); wo0(1)
    a('s_waitcnt lgkmcnt(0)')
    D('OA', [OA+i for i in range(8)])
    wo1(0); wo1(1)
    wo0(2); wo0(3)
    for p in range(1, 4):
        ST(f'w{p+1}')
        pk = pack(p - 1)
        a.ext(pk[0:3]); wo1(2*p); a.ext(pk[3:5]); a('s_nop 0'); wo1(2*p + 1); a(pk[5]); a('s_nop 0'); a.ext(pk[6:8])
        if p < 3:
            wo0(2*p + 2); a(pk[8]); wo0(2*p + 3)
        else:
            a(pk[8])
    ST('w5')
    wl_addr(a, V_T2)
    sv = svload()
    a.ext(sv[0:4])
    a('s_nop 1')
    pk = pack(3)
    a.ext(pk[0:4]); a('s_nop 0'); a.ext(pk[4:6]); a('s_nop 0'); a.ext(pk[6:9])
    ST(11)
    a.ext(sv[4:14])
    PRA = 28
    ln = 29
    a(f'v_lshrrev_b32 v{ln}, 4, v{V_L16}')
    if cfg.RS_PERM:
        a(f'v_lshrrev_b32 v{PRA}, 4, v{ln}'); a(f'v_lshlrev_b32 v{PRA}, 2, v{PRA}')
        a(f'v_and_b32 v{30}, 3, v{ln}'); a(f'v_add_u32 v{PRA}, v{PRA}, v{30}')
        a(f'v_mul_u32_u24 v{PRA}, {cfg.SH}, v{PRA}')
        a(f'v_bfe_u32 v{30}, v{ln}, 2, 2'); a(f'v_lshl_add_u32 v{PRA}, v{30}, 4, v{PRA}')
    else:
        a(f'v_lshrrev_b32 v{PRA}, 2, v{ln}'); a(f'v_mul_u32_u24 v{PRA}, {cfg.SH}, v{PRA}')
        a(f'v_and_b32 v{30}, 3, v{ln}'); a(f'v_lshl_add_u32 v{PRA}, v{30}, 4, v{PRA}')
    a(f'v_add_u32 v{PRA}, s{S_PRW}, v{PRA}')
    a(f'v_add_u32 v{V_T}, {L_C}, v{V_L16}')
    for r in range(4): a(f'v_mov_b32 v{NEG+r}, -1')
    a('s_waitcnt lgkmcnt(8)')
    a.ext(sv[14:16])
    a(f'ds_read_b128 v[{SELR}:{SELR+3}], v{V_T} offset:2048')
    if not cfg.PR_NOACK: a('s_waitcnt vmcnt(0)')
    ST(12)
    if cfg.kvflag is not None and not cfg.PR_NOACK:
        a('v_and_b32 v56, v56, v57')
        a('s_nop 0')
        a(f'v_readfirstlane_b32 s{S_KVOK}, v56')
    a.label(L('PR'))
    a(f'buffer_load_dwordx4 v[{PR0}:{PR0+3}], v{PRA}, {SM}, s{S_PR} offen sc1')
    a(f'buffer_load_dwordx4 v[{PR1}:{PR1+3}], v{PRA}, {SM}, s{S_PR2} offen sc1')
    a('s_waitcnt vmcnt(0)')
    max_chain(a, V_T, list(range(PR0, PR0 + 8)))
    a(f'v_cmp_eq_u32 vcc, -1, v{V_T}')
    poll_end(a, L('PR'), L('PR_D'))
    ST(13)
    if cfg.kvflag is not None and cfg.PR_NOACK:
        a('v_and_b32 v56, v56, v57')
        a('s_nop 0')
        a(f'v_readfirstlane_b32 s{S_KVOK}, v56')
    a('s_waitcnt lgkmcnt(0)')
    a(mf32(RD, PR0, SELR))
    a(mf32(RD, PR1, SELR, RD))
    a(f'buffer_store_dwordx4 v[{NEG}:{NEG+3}], v{PRA}, {SM}, s{S_PR} offen{sfl}') if cfg.EARLY_CLR else None
    a(f'buffer_store_dwordx4 v[{NEG}:{NEG+3}], v{PRA}, {SM}, s{S_PR2} offen{sfl}') if cfg.EARLY_CLR else None
    a('s_nop 5' if cfg.EARLY_CLR else 's_nop 7')
    if cfg.RS_PERM:
        a(pkadd(RD, RD, RD + 2))
        a('s_nop 0')
        a(f'v_add_f32 v{RD}, v{RD}, v{RD+1}')
    else:
        a(f'v_permlane32_swap_b32 v{RD}, v{RD+2}')
        a(f'v_permlane32_swap_b32 v{RD+1}, v{RD+3}')
        a('s_nop 0')
        a(pkadd(RD, RD, RD + 2))
        a('s_nop 1')
        a(f'v_permlane16_swap_b32 v{RD}, v{RD+1}')
        a('s_nop 0')
        a(f'v_add_f32 v{RD}, v{RD}, v{RD+1}')
    a('s_nop 1')
    a(f'v_mov_b32_dpp v{RD+1}, v{RD} row_shl:4 row_mask:0xf bank_mask:0xf')
    a('s_nop 0')
    a(f'v_cvt_pk_bf16_f32 v{RD}, v{RD}, v{RD+1}')
    a(f'buffer_store_dword v{RD}, v{V_MFW}, {SM}, s{S_MEMW} offen{sfl}')
    ST(14)
    nclr = 1
    if not cfg.EARLY_CLR:
        a(f'buffer_store_dwordx4 v[{NEG}:{NEG+3}], v{PRA}, {SM}, s{S_PR} offen{sfl}')
        a(f'buffer_store_dwordx4 v[{NEG}:{NEG+3}], v{PRA}, {SM}, s{S_PR2} offen{sfl}')
        nclr = 3
    a(f'buffer_store_dword v{NEG}, v{V_MFW}, {SM}, s{S_MEMR} offen{sfl}')
    if prof is not None:
        lab = a.newlabel(P + 'DBG')
        a(f's_cmp_lg_u32 s{S_STEP}, {prof[1]}')
        a(f's_cbranch_scc1 {lab}')
        a('s_waitcnt lgkmcnt(0)')
        a(f's_mov_b32 s94, s{S_BUD}')
        for i in range(16):
            a(f'v_mov_b32 v{8+i}, s{64+2*i}')
        dbg_dump(a, list(range(8, 24)), prof[0])
        for r in range(4): a(f'v_mov_b32 v{NEG+r}, -1')
        a.label(lab)
    T0 = f's{S_T0}'
    for s in (S_MEMR, S_MEMW):
        a(f's_add_u32 {T0}, s{s}, 16384'); a(f's_and_b32 {T0}, {T0}, 0xffff')
        a(f's_and_b32 s{s}, s{s}, 0xffff0000'); a(f's_or_b32 s{s}, s{s}, {T0}')
    for s in [S_PR, S_PR2] + [S_PW + p for p in range(4)]:
        a(f's_xor_b32 s{s}, s{s}, 0x80000')
    msk = cfg.NS * 32768 - 1
    for s in (S_XW, S_XR, S_XC):
        a(f's_add_u32 {T0}, s{s}, 32768'); a(f's_and_b32 {T0}, {T0}, 0x{msk:x}')
        a(f's_add_u32 s{s}, {T0}, s{S_XBASE}')
    a(f's_add_u32 s{S_QKM}, s{S_QKM}, {32*4096}')
    a(f's_add_u32 s{S_VMG}, s{S_VMG}, {32*2048}')
    a(f's_add_u32 s{S_KVK}, s{S_KVK}, {32*8192}')
    a(f's_add_u32 s{S_KVV}, s{S_KVV}, {32*8192}')
    a(f's_add_u32 s{S_STEP}, s{S_STEP}, 1')
    a.ext(top_prep())
    if not cfg.AG_NOACK: a(f's_waitcnt vmcnt({nclr})')
    a(f's_branch {L("TOP")}')
    if cfg.kvflag is not None:
        a.label(L('KVW'))
        a(f's_lshr_b32 s{S_T0}, s{S_STEP}, 2'); a(f's_lshl_b32 s{S_T0}, s{S_T0}, 8')
        a(f's_add_u32 s{S_T0}, s{S_T0}, s{S_KVFB}')
        a.label(L('KVP'))
        a(f'buffer_load_dwordx2 v[8:9], off, {SM}, s{S_T0} sc1')
        a('s_waitcnt vmcnt(0)')
        a('v_and_b32 v8, v8, v9')
        a('v_cmp_eq_u32 vcc, 0, v8')
        poll_end(a, L('KVP'), L('KVP_D'))
        a(f's_branch {L("KVB")}')

    a.label(L('TAIL'))
    a(f'v_lshrrev_b32 v{V_T}, 1, v{V_L16}')
    a.label(L('TV'))
    a(f'buffer_load_dwordx2 v[{RV}:{RV+1}], v{V_T}, {X}, s{S_XR} offen offset:1024 sc1')
    a('s_waitcnt vmcnt(0)')
    a(f'v_max_u32 v{V_T2}, v{RV}, v{RV+1}')
    a(f'v_cmp_eq_u32 vcc, -1, v{V_T2}')
    poll_end(a, L('TV'), L('TV_D'))
    a(f'v_swap_b32 v{VA+1}, v{RV}')
    publish(a, cfg, P, 'B')
    a('s_waitcnt vmcnt(0)')


def publish(a, cfg, P, tag):
    SM = f's[{S_SM}:{S_SM+3}]'
    HI = f's[{S_HI8}:{S_HI8+1}]'
    l1, l2 = f'{P}_PUB{tag}1', f'{P}_PUB{tag}2'
    a(f's_cmp_eq_u32 s{S_J}, 0')
    a(f's_cbranch_scc0 {l1}')
    ad, ad2 = 62, 63
    a(f'v_lshrrev_b32 v{ad}, 8, v{V_L16}'); a(f'v_lshlrev_b32 v{ad}, 7, v{ad}')
    a(f'v_and_b32 v{ad2}, 0x70, v{V_L16}'); a(f'v_add_u32 v{ad}, v{ad}, v{ad2}')
    a(f's_mov_b64 exec, {HI}')
    a(f'buffer_store_dwordx4 v[{TT}:{TT+3}], v{ad}, {SM}, s{S_QKM} offen sc1')
    a('s_mov_b64 exec, -1')
    a(f's_branch {l2}')
    a.label(l1)
    t0, t1, t2, t3 = 56, 57, 58, 59
    def add2(x, y, dst):
        a(f'v_lshlrev_b32 v{t0}, 16, v{x}'); a(f'v_and_b32 v{t1}, 0xffff0000, v{x}')
        a(f'v_lshlrev_b32 v{t2}, 16, v{y}'); a(f'v_and_b32 v{t3}, 0xffff0000, v{y}')
        a(f'v_pk_add_f32 v[{t0}:{t1}], v[{t0}:{t1}], v[{t2}:{t3}]')
        a(f'v_cvt_pk_bf16_f32 v{dst}, v{t0}, v{t1}')
    add2(60, 61, 60)
    add2(62, 63, 61)
    ad = 62
    a(f'v_lshrrev_b32 v{ad}, 9, v{V_L16}'); a(f'v_lshlrev_b32 v{ad}, 8, v{ad}')
    a(f'v_bfe_u32 v{t0}, v{V_L16}, 8, 1'); a(f'v_lshl_add_u32 v{ad}, v{t0}, 2, v{ad}')
    a(f'v_bfe_u32 v{t0}, v{V_L16}, 7, 1'); a(f'v_lshl_add_u32 v{ad}, v{t0}, 7, v{ad}')
    a(f'v_bfe_u32 v{t0}, v{V_L16}, 4, 3'); a(f'v_lshl_add_u32 v{ad}, v{t0}, 3, v{ad}')
    a(f'buffer_store_dword v60, v{ad}, {SM}, s{S_VMG} offen sc1')
    a(f'buffer_store_dword v61, v{ad}, {SM}, s{S_VMG} offen offset:64 sc1')
    a.label(l2)


def post_v(a, cfg, P):
    X = f's[{S_X}:{S_X+3}]'
    T0 = f's{S_T0}'
    a(f's_add_u32 s{S_KVK}, s{S_KVK}, {32*8192}')
    a(f's_add_u32 s{S_KVV}, s{S_KVV}, {32*8192}')
    if 'kv' not in cfg.skip:
        for g in kv_dma(cfg): a.ext(g)
    for r in range(16, 20): a(f'v_mov_b32 v{r}, -1')
    a(f'v_lshrrev_b32 v20, 1, v{V_L16}')
    a(f'buffer_store_dwordx4 v[16:19], v{V_L16}, {X}, s{S_XC} offen sc1')
    a(f'buffer_store_dwordx2 v[16:17], v20, {X}, s{S_XC} offen offset:1024 sc1')
    msk = cfg.NS * 32768 - 1
    for s in (S_XW, S_XR, S_XC):
        a(f's_add_u32 {T0}, s{s}, 32768'); a(f's_and_b32 {T0}, {T0}, 0x{msk:x}')
        a(f's_add_u32 s{s}, {T0}, s{S_XBASE}')
    a(f's_add_u32 s{S_QKM}, s{S_QKM}, {32*4096}')
    a(f's_add_u32 s{S_VMG}, s{S_VMG}, {32*2048}')


def near_static(a, val):
    a(f's_mov_b32 s{S_NEAR}, {val}')


def near_measure(a, cfg, P):
    SM = f's[{S_SM}:{S_SM+3}]'
    X = f's[{S_X}:{S_X+3}]'
    T0, T1, T2, T3 = f's{S_T0}', f's{S_T1}', f's{S_T2}', f's{S_T3}'
    l1 = f'{P}_NM1'
    a(f's_lshl_b32 {T0}, s{S_WV}, 1'); a(f's_or_b32 {T0}, {T0}, s{S_J}')
    a(f's_cmp_eq_u32 {T0}, 0'); a(f's_cbranch_scc0 {l1}')
    a(f's_add_u32 {T0}, s{S_XBASE}, {(cfg.NS-1)*32768 + 1536}')
    a('v_mov_b32 v8, 0')
    a(f'buffer_load_dword v9, v8, {X}, {T0} offen offset:384 sc1')
    a('s_waitcnt vmcnt(0)')
    a('s_mov_b32 s70, -1'); a('s_mov_b32 s71, -1')
    for i in range(6):
        for b in range(2):
            off = b*8192 + (i % 3)*128 + (i // 3)*2048
            a(f's_add_u32 {T1}, {T0}, {off}')
            a('s_memtime s[64:65]')
            a('s_waitcnt lgkmcnt(0)')
            a(f'buffer_load_dword v9, v8, {X}, {T1} offen sc1')
            a('s_waitcnt vmcnt(0)')
            a('s_memtime s[66:67]')
            a('s_waitcnt lgkmcnt(0)')
            a('s_sub_u32 s66, s66, s64')
            a(f's_min_u32 s{70+b}, s{70+b}, s66')
    a('s_cmp_lt_u32 s71, s70'); a(f's_cselect_b32 {T2}, 1, 0')
    a(f'v_mov_b32 v9, {T2}')
    a(f's_lshl_b32 {T1}, s{S_H}, 7'); a(f's_add_u32 {T1}, {T1}, {C_CNT + 4096}')
    a('v_cmp_eq_u32 vcc, 0, v%d' % V_L16)
    a('s_and_saveexec_b64 s[64:65], vcc')
    a(f'buffer_store_dword v9, v8, {SM}, {T1} offen sc1')
    a('s_mov_b64 exec, s[64:65]')
    a('s_waitcnt vmcnt(0)')
    a.label(l1)
    lp, dn = f'{P}_NM2', f'{P}_NM3'
    a(f's_lshl_b32 {T1}, s{S_H}, 7'); a(f's_add_u32 {T1}, {T1}, {C_CNT + 4096}')
    a('v_mov_b32 v8, 0')
    a.label(lp)
    a(f'buffer_load_dword v9, v8, {SM}, {T1} offen sc1')
    a('s_waitcnt vmcnt(0)')
    a('v_cmp_eq_u32 vcc, -1, v9')
    poll_end(a, lp, dn)
    a(f'v_readfirstlane_b32 s{S_NEAR}, v9')
    a(f's_and_b32 s{S_NEAR}, s{S_NEAR}, 1')


def impl(cfg):
    if getattr(cfg, 'F', False):
        import k_rec2
        return k_rec2.role_setup2, k_rec2.const_tables2, k_rec2.rec_loop2
    return role_setup, const_tables, rec_loop

def memf0_src(a, cfg, G, dst, tmp):
    if getattr(cfg, 'F', False):
        a(f'v_bfe_u32 v{dst}, v{G}, 1, 3'); a(f'v_lshlrev_b32 v{dst}, 11, v{dst}')
        a(f'v_lshrrev_b32 v{tmp}, 4, v{G}'); a(f'v_lshl_add_u32 v{dst}, v{tmp}, 5, v{dst}')
        a(f'v_and_b32 v{tmp}, 1, v{G}'); a(f'v_lshl_add_u32 v{dst}, v{tmp}, 2, v{dst}')
    else:
        a(f'v_and_b32 v{dst}, 7, v{G}'); a(f'v_lshlrev_b32 v{dst}, 11, v{dst}')
        a(f'v_lshrrev_b32 v{tmp}, 4, v{G}'); a(f'v_lshl_add_u32 v{dst}, v{tmp}, 5, v{dst}')
        a(f'v_bfe_u32 v{tmp}, v{G}, 3, 1'); a(f'v_lshl_add_u32 v{dst}, v{tmp}, 2, v{dst}')

def gen_recc(nsteps=63, dbg=None, cfg=None, P='RC', near=None, sfl=''):
    cfg = cfg or Cfg()
    a = Asm()
    a('s_cmp_ge_u32 s2, 256')
    a(f's_cbranch_scc1 {P}_EXIT')
    if cfg.dynamic:
        common_setup(a)
        role_dynamic(a, cfg, P, f'{P}_EXIT')
    else:
        role_static(a, f'{P}_EXIT')
        common_setup(a)
    RS, CT, RL = impl(cfg)
    RS(a, cfg)
    a(f's_mov_b32 s{S_NST}, {nsteps}')
    CT(a)
    stage_weights(a, P)
    if near is None: near_measure(a, cfg, P)
    else: near_static(a, near)
    x_offsets(a, cfg)
    a('s_waitcnt vmcnt(0) lgkmcnt(0)')
    a('s_barrier')
    if cfg.dynamic:
        a(f's_cmp_eq_u32 s{S_MODE}, 1')
        a(f's_cbranch_scc0 {P}_FB')
        RL(a, cfg, P, '', dbg)
        a('s_endpgm')
        a.label(f'{P}_FB')
        RL(a, cfg, P + 'F', ' sc1', None)
    else:
        RL(a, cfg, P, sfl, dbg)
    a.label(f'{P}_EXIT')
    a('s_endpgm')
    return a.text()


def gen_prepc(cfg=None):
    cfg = cfg or Cfg()
    a = Asm()
    a('s_cmp_ge_u32 s2, 256')
    a('s_cbranch_scc1 PREP_END')
    a(f's_load_dwordx2 s[4:5], s[0:1], {KA_WS}')
    a(f's_load_dwordx2 s[6:7], s[0:1], {KA_MEM0}')
    a('s_lshl_b32 s3, s2, 12')
    a('v_lshlrev_b32 v1, 4, v0')
    a('v_add_u32 v1, s3, v1')
    for r in range(4):
        a(f'v_mov_b32 v{4+r}, -1'); a(f'v_mov_b32 v{8+r}, 0')
    a('s_waitcnt lgkmcnt(0)')
    a.srd(8, 4, SM_SIZE, add=WS_SM)
    a.srd(12, 6, 8 * 1024 * 2)
    a.srd(20, 4, 64 << 20, add=WS_X)
    a(f's_mov_b32 s16, {C_PART}')
    a('buffer_store_dwordx4 v[4:7], v1, s[8:11], s16 offen')
    a('s_lshr_b32 s17, s2, 3'); a(f's_mul_i32 s17, s17, {cfg.NS*32768}')
    a('s_and_b32 s18, s2, 7'); a('s_lshl_b32 s18, s18, 12'); a('s_add_u32 s17, s17, s18')
    a('v_lshlrev_b32 v2, 4, v0')
    for i in range(3):
        a('buffer_store_dwordx4 v[4:7], v2, s[20:23], s17 offen')
        a('s_add_u32 s17, s17, 32768')
    a('s_cmp_eq_u32 s2, 16'); a('s_cbranch_scc0 PREP_N1')
    a(f's_mov_b32 s16, {C_CNT}')
    a('buffer_store_dwordx4 v[8:11], v2, s[8:11], s16 offen')
    a.label('PREP_N1')
    a('s_cmp_eq_u32 s2, 17'); a('s_cbranch_scc0 PREP_N2')
    a(f's_mov_b32 s16, {C_CNT + 4096}')
    a('buffer_store_dwordx4 v[4:7], v2, s[8:11], s16 offen')
    a.label('PREP_N2')
    a('s_cmp_ge_u32 s2, 16'); a('s_cbranch_scc1 PREP_END')
    a('s_cmp_lt_u32 s2, 4')
    a('s_cbranch_scc1 PREP_M0')
    a(f's_mov_b32 s16, {C_MEMF}')
    a('buffer_store_dwordx4 v[4:7], v1, s[8:11], s16 offen')
    a('s_branch PREP_END')
    a.label('PREP_M0')
    a('v_lshrrev_b32 v2, 4, v1')
    memf0_src(a, cfg, 2, 3, 12)
    for t in range(4):
        a(f'buffer_load_dword v{4+t}, v3, s[12:15], 0 offen offset:{t*8}')
    a('s_waitcnt vmcnt(0)')
    for t in range(4):
        a(f'v_min_u32 v{4+t}, -2, v{4+t}')
    a(f's_mov_b32 s16, {C_MEMF}')
    a('buffer_store_dwordx4 v[4:7], v1, s[8:11], s16 offen')
    a.label('PREP_END')
    a('s_endpgm')
    return a.text()
```

```python
from asmlib import *
import tasks, tasks2, k_recc as rc
from gemm2 import Eng, S_WAVE, S_T0, S_T1, S_T2
from tasks import S_RB, S_CB, S_KS, S_PW, S_PWS, S_OSRD, MB, task_gemm
from k_ln import bf16_round, reduce_bits345

FL_KVQ = SM_CNT + 0x2000
KV_FULL = 0x01010101
FL_SEG = SM_CNT + 0xA000
F_AF, F_WF, F_RF, F_GF, F_DF = 0, 512, 1024, 1536, 2560
FL_END = FL_SEG + 64 * 4096

S_WID, S_RND, S_SEG, S_BUDW, S_EARLY, S_FOFF = 90, 91, 92, 93, 94, 95
S_FL = 96
FLS = f's[{S_FL}:{S_FL+3}]'
L_BC = 0x27F00

PLACE = False
S_WM = 87
def mode_store(a, instrs):
    l1, l2 = a.newlabel('MS'), a.newlabel('MS')
    a(f's_cmp_eq_u32 s{S_WM}, 1'); a(f's_cbranch_scc0 {l1}')
    for i in instrs: a(i)
    a(f's_branch {l2}')
    a.label(l1)
    for i in instrs: a(i + ' sc1')
    a.label(l2)

TL = False
TL_BASE = 0xF000000
def tl_stamp(a, vreg, lane=None):
    if not TL: return
    a('s_memrealtime s[88:89]'); a('s_waitcnt lgkmcnt(0)')
    if lane is None:
        a(f's_mov_b32 m0, s{S_SEG}'); a('s_nop 3'); a(f'v_writelane_b32 v{vreg}, s88, m0')
    else:
        a(f'v_writelane_b32 v{vreg}, s88, {lane}')
def tl_init(a, vregs):
    if not TL: return
    for v in vregs: a(f'v_mov_b32 v{v}, 0')
    a(f'v_writelane_b32 v{vregs[-1]}, s100, 0'); a(f'v_writelane_b32 v{vregs[-1]}, s101, 1')
def tl_dump(a, vregs):
    if not TL: return
    a('s_waitcnt vmcnt(0)')
    a(f's_load_dwordx2 s[40:41], s[0:1], {KA_WS}'); a('s_waitcnt lgkmcnt(0)')
    a.srd(4, 40, 1 << 20, add=TL_BASE)
    a(f's_lshl_b32 s42, s{S_WID}, 2'); a(f's_add_u32 s42, s42, s{S_WAVE}'); a('s_lshl_b32 s42, s42, 10')
    a('v_and_b32 v1, 63, v0'); a('v_lshlrev_b32 v1, 2, v1')
    for i, v in enumerate(vregs):
        a(f'buffer_store_dword v{v}, v1, s[4:7], s42 offen offset:{256*i}')
    a('s_waitcnt vmcnt(0)')

def budget(a, lab, done):
    a(f's_cbranch_vccz {done}')
    a(f's_cmp_eq_u32 s{S_BUDW}, 0')
    a(f's_cbranch_scc1 {done}')
    a(f's_sub_u32 s{S_BUDW}, s{S_BUDW}, 1')
    a(f's_branch {lab}')
    a.label(done)

def minchain(a, dst, regs):
    if len(regs) == 1:
        a(f'v_mov_b32 v{dst}, v{regs[0]}'); return
    if len(regs) == 2:
        a(f'v_min_u32 v{dst}, v{regs[0]}, v{regs[1]}'); return
    a(f'v_min3_u32 v{dst}, v{regs[0]}, v{regs[1]}, v{regs[2]}')
    i = 3
    while i + 1 < len(regs):
        a(f'v_min3_u32 v{dst}, v{dst}, v{regs[i]}, v{regs[i+1]}'); i += 2
    if i < len(regs): a(f'v_min_u32 v{dst}, v{dst}, v{regs[i]}')

def flag_load(a, vaddr, vdst, width):
    sfx = {1: 'dword', 4: 'dwordx4'}[width]
    r = f'v{vdst}' if width == 1 else f'v[{vdst}:{vdst+3}]'
    a(f'buffer_load_{sfx} {r}, v{vaddr}, {FLS}, s{S_FOFF} offen sc1')

def flag_test(a, vdst, width, vt):
    if width == 1:
        a(f'v_cmp_eq_u32 vcc, 0, v{vdst}')
    else:
        minchain(a, vt, list(range(vdst, vdst + 4)))
        a(f'v_cmp_eq_u32 vcc, 0, v{vt}')

def poll(a, name, vaddr, vdst, width, vt):
    lab = a.newlabel(name); done = lab + '_D'
    a.label(lab)
    flag_load(a, vaddr, vdst, width)
    a('s_waitcnt vmcnt(0)')
    flag_test(a, vdst, width, vt)
    budget(a, lab, done)

def seg_foff(a, add=0):
    a(f's_lshl_b32 s{S_FOFF}, s{S_SEG}, 12')
    a(f's_add_u32 s{S_FOFF}, s{S_FOFF}, {FL_SEG + add * 4096}')

def set_flag(a, vaddr, vone, off, local=False, add=0):
    seg_foff(a, add)
    a('s_mov_b64 exec, 1')
    i = f'buffer_store_dword v{vone}, v{vaddr}, {FLS}, s{S_FOFF} offen offset:{off}'
    if local: mode_store(a, [i])
    else: a(i + ' sc1')
    a('s_mov_b64 exec, -1')

def role_gemm(a, kind, nseg=64, prof=False):
    N = kind
    NP = 8
    def ST(i):
        if not prof: return
        a('s_memtime s[56:57]'); a('s_waitcnt lgkmcnt(0)')
        a('s_sub_u32 s59, s56, s58'); a(f's_add_u32 s{60+i}, s{60+i}, s59'); a('s_mov_b32 s58, s56')
    KS_, CB_ = 28, 29
    nk = 56 if kind == 'DN' else 64
    nch = nk // 8
    nd = nk // 4
    SW, SX, SO = 4, 8, 12
    T0, T1, T2 = f's{S_T0}', f's{S_T1}', f's{S_T2}'
    W = f's{S_WAVE}'
    LN, L16, VD, VT_, t1, t2 = 1, 2, 3, 4, 5, 6
    VXR, VPA, VPF, VFA, VONE, VOUT = 7, 8, 12, 16, 17, 18
    XF = 20
    AC0, AC1 = 52, 68
    TMP = 84
    a(f's_load_dwordx2 s[{S_PWS}:{S_PWS+1}], s[0:1], {KA_WS}')
    if kind == 'GU':
        a(f's_load_dwordx2 s[{S_PW}:{S_PW+1}], s[0:1], {KA_WG}')
        a(f's_load_dwordx2 s[40:41], s[0:1], {KA_WU}')
    else:
        a(f's_load_dwordx2 s[{S_PW}:{S_PW+1}], s[0:1], {KA_WO if kind == "WO" else KA_WD}')
    a(f'v_and_b32 v{LN}, 63, v0')
    a(f'v_lshlrev_b32 v{L16}, 4, v{LN}')
    a('s_waitcnt lgkmcnt(0)')
    if kind == 'GU':
        a(f's_cmp_ge_u32 {W}, 2')
        a(f's_cselect_b32 s{S_PW}, s40, s{S_PW}')
        a(f's_cselect_b32 s{S_PW+1}, s41, s{S_PW+1}')
    a.srd(SW, S_PW, (8 if kind == 'WO' else 7) * MB)
    xo, xb = {'WO': (WS_OF, 16*MB), 'GU': (WS_HN, 4*MB), 'DN': (WS_ACT, 14*MB)}[kind]
    a.srd(SX, S_PWS, xb, add=xo)
    oo, ob = {'WO': (WS_P1, 32*MB), 'GU': (WS_ACT, 14*MB), 'DN': (WS_P2, 32*MB)}[kind]
    a.srd(SO, S_PWS, ob, add=oo)
    S_GO, S_M0 = 42, 43
    if kind == 'GU':
        a(f'v_lshrrev_b32 v{t1}, 3, v{LN}'); a(f'v_mul_u32_u24 v{VD}, 7168, v{t1}')
        a(f'v_and_b32 v{t1}, 7, v{LN}'); a(f'v_lshl_add_u32 v{VD}, v{t1}, 4, v{VD}')
        a(f's_lshl_b32 {T0}, s{CB_}, 7')
        a(f's_and_b32 {T1}, {W}, 1'); a(f's_mul_i32 {T1}, {T1}, {64*7168}')
        a(f's_add_u32 s{S_GO}, {T0}, {T1}')
        a(f's_lshl_b32 s{S_M0}, {W}, 13')
        istep, cstep = 8 * 7168, 128 * 7168
        a(f'v_bfe_u32 v{t1}, v{LN}, 2, 2'); a(f'v_lshrrev_b32 v{t2}, 5, v{LN}')
        a(f'v_lshl_add_u32 v{t1}, v{t2}, 2, v{t1}'); a(f'v_lshlrev_b32 v{VT_}, 7, v{t1}')
        a(f'v_bfe_u32 v{t1}, v{LN}, 4, 1'); a(f'v_lshl_add_u32 v{VT_}, v{t1}, 14, v{VT_}')
        a(f'v_and_b32 v{t1}, 3, v{LN}'); a(f'v_lshl_add_u32 v{VT_}, v{t1}, 3, v{VT_}')
        a(f's_lshl_b32 {T0}, {W}, 5'); a(f'v_add_u32 v{VT_}, {T0}, v{VT_}')
        kkoff, h2off = 2048, 1024
    else:
        rows0 = 1024 if kind == 'WO' else 896
        a(f'v_lshrrev_b32 v{t1}, 4, v{LN}'); a(f'v_lshlrev_b32 v{t2}, 2, v{t1}')
        a(f'v_and_b32 v{VD}, 15, v{LN}'); a(f'v_xor_b32 v{VD}, v{VD}, v{t2}'); a(f'v_lshlrev_b32 v{VD}, 4, v{VD}')
        a(f'v_lshl_add_u32 v{VD}, v{t1}, 11, v{VD}')
        a(f's_mul_i32 {T0}, s{KS_}, {rows0 * 2048}'); a(f's_lshl_b32 {T1}, s{CB_}, 8'); a(f's_add_u32 {T0}, {T0}, {T1}')
        a(f's_lshl_b32 {T1}, {W}, 16'); a(f's_add_u32 s{S_GO}, {T0}, {T1}')
        a(f's_lshl_b32 s{S_M0}, {W}, 13')
        istep, cstep = 4 * 2048, 128 * 2048
        a(f'v_bfe_u32 v{t1}, v{LN}, 2, 2')
        a(f'v_lshrrev_b32 v{t2}, 5, v{LN}'); a(f'v_lshl_add_u32 v{t2}, v{t2}, 2, v{t1}'); a(f'v_lshlrev_b32 v{VT_}, 8, v{t2}')
        a(f'v_xor_b32 v{t1}, {W}, v{t1}'); a(f'v_lshl_add_u32 v{VT_}, v{t1}, 6, v{VT_}')
        a(f'v_bfe_u32 v{t1}, v{LN}, 4, 1'); a(f'v_lshl_add_u32 v{VT_}, v{t1}, 5, v{VT_}')
        a(f'v_and_b32 v{t1}, 3, v{LN}'); a(f'v_lshl_add_u32 v{VT_}, v{t1}, 3, v{VT_}')
        kkoff, h2off = 4096, 2048
    def wdma(q):
        a(f's_add_u32 {T0}, s{S_GO}, {q * cstep}')
        a(f's_add_u32 m0, s{S_M0}, {(q & 3) * 32768}')
        for i in range(8):
            a('s_nop 0')
            a(f'buffer_load_dwordx4 v{VD}, s[{SW}:{SW+3}], {T0} offen lds')
            if i < 7:
                a(f's_add_u32 {T0}, {T0}, {istep}'); a('s_add_u32 m0, m0, 1024')
    TLV = [200, 201, 202]
    tl_init(a, TLV)
    for q in range(min(4, nch)): wdma(q)
    for q in range(nch):
        left = min(nch, q + 4) - (q + 1)
        left = min(nch, max(4, q + 4)) - (q + 1)
        a(f's_waitcnt vmcnt({8 * left})')
        a('s_barrier')
        a(f'v_add_u32 v{t1}, {(q & 3) * 32768}, v{VT_}')
        for kk in range(8):
            kb = 8 * q + kk
            a(f'ds_read_b64_tr_b16 a[{4*kb}:{4*kb+1}], v{t1} offset:{kk * kkoff}')
            a(f'ds_read_b64_tr_b16 a[{4*kb+2}:{4*kb+3}], v{t1} offset:{kk * kkoff + h2off}')
            if kk % 4 == 3: a('s_waitcnt lgkmcnt(0)')
        a('s_barrier')
        if q + 4 < nch: wdma(q + 4)
    S_XO, S_XM0, S_OO = 44, 45, 46
    xstride = {'WO': 262144, 'GU': 65536, 'DN': 229376}[kind]
    if kind == 'WO':   a(f's_lshl_b32 s{S_XO}, s{KS_}, 16')
    elif kind == 'DN': a(f's_mul_i32 s{S_XO}, s{KS_}, {56*1024}')
    else:              a(f's_mov_b32 s{S_XO}, 0')
    a(f's_lshl_b32 {T0}, {W}, 10'); a(f's_add_u32 s{S_XO}, s{S_XO}, {T0}')
    a(f's_lshl_b32 s{S_XM0}, {W}, 10')
    if kind == 'GU':
        a(f's_lshl_b32 {T0}, s{CB_}, 2'); a(f's_add_u32 {T0}, {T0}, {W}'); a(f's_lshl_b32 s{S_OO}, {T0}, 10')
        ostride = 229376
    else:
        a(f's_lshl_b32 {T0}, s{KS_}, 23'); a(f's_lshl_b32 {T1}, s{CB_}, 14'); a(f's_add_u32 {T0}, {T0}, {T1}')
        a(f's_lshl_b32 {T1}, {W}, 12'); a(f's_add_u32 s{S_OO}, {T0}, {T1}')
        ostride = 1 << 17
    if kind == 'WO':
        a(f'v_and_b32 v{VPA}, 7, v{LN}'); a(f'v_lshlrev_b32 v{VPA}, 2, v{VPA}')
        a(f's_lshl_b32 {T0}, s{KS_}, 5'); a(f's_add_u32 {T0}, {T0}, {F_AF}'); a(f'v_add_u32 v{VPA}, {T0}, v{VPA}')
        pw = 1
    elif kind == 'GU':
        a(f'v_and_b32 v{VPA}, 3, v{LN}'); a(f'v_lshlrev_b32 v{VPA}, 4, v{VPA}'); a(f'v_add_u32 v{VPA}, {F_RF}, v{VPA}')
        pw = 4
    else:
        a(f'v_min_u32 v{VPA}, 13, v{LN}'); a(f'v_lshlrev_b32 v{VPA}, 4, v{VPA}')
        a(f's_mul_i32 {T0}, s{KS_}, {14*16}'); a(f's_add_u32 {T0}, {T0}, {F_GF}'); a(f'v_add_u32 v{VPA}, {T0}, v{VPA}')
        pw = 4
    if kind == 'GU':
        a(f's_lshl_b32 {T0}, s{CB_}, 4'); fo = F_GF
    else:
        a(f's_lshl_b32 {T0}, s{KS_}, 3'); a(f's_add_u32 {T0}, {T0}, s{CB_}'); a(f's_lshl_b32 {T0}, {T0}, 4')
        fo = F_WF if kind == 'WO' else F_DF
    a(f's_lshl_b32 {T1}, {W}, 2'); a(f's_add_u32 {T0}, {T0}, {T1}'); a(f'v_mov_b32 v{VFA}, {T0}')
    a(f'v_mov_b32 v{VONE}, 1')
    a(f'v_mov_b32 v{VOUT}, {L_BC}')
    a(f's_mov_b32 s{S_SEG}, 0'); a(f's_mov_b32 s{S_EARLY}, 0')

    def xdma(par_sreg_add):
        add = par_sreg_add
        a(f's_add_u32 {T1}, s{S_SEG}, {add}')
        a(f's_mul_i32 {T0}, {T1}, {xstride}'); a(f's_add_u32 {T0}, {T0}, s{S_XO}')
        a(f's_and_b32 {T1}, {T1}, 1'); a(f's_lshl_b32 {T1}, {T1}, 16'); a(f's_add_u32 m0, {T1}, s{S_XM0}')
        for i in range(nd):
            a('s_nop 0')
            a(f'buffer_load_dwordx4 v{L16}, s[{SX}:{SX+3}], {T0} offen lds')
            if i < nd - 1:
                a(f's_add_u32 {T0}, {T0}, 4096'); a('s_add_u32 m0, m0, 4096')

    top, have = f'{N}_TOP', f'{N}_HAVE'
    tl_stamp(a, TLV[2], 2)
    if prof:
        for i in range(NP + 1): a(f's_mov_b32 s{60+i}, 0')
        a('s_memtime s[56:57]'); a('s_waitcnt lgkmcnt(0)'); a('s_mov_b32 s58, s56')
    a.label(top)
    a(f's_cmp_lg_u32 s{S_EARLY}, 0'); a(f's_cbranch_scc1 {have}')
    nw = f'{N}_NW0'
    a(f's_cmp_lg_u32 {W}, 0'); a(f's_cbranch_scc1 {nw}')
    seg_foff(a)
    poll(a, N + '_P', VPA, VPF, pw, t1)
    a.label(nw)
    a('s_barrier')
    xdma(0)
    a.label(have)
    tl_stamp(a, TLV[0])
    ST(0)
    nw2 = f'{N}_NW1'
    a(f's_cmp_lg_u32 {W}, 0'); a(f's_cbranch_scc1 {nw2}')
    seg_foff(a, 1)
    flag_load(a, VPA, VPF, pw)
    a.label(nw2)
    a(f's_and_b32 {T0}, s{S_SEG}, 1'); a(f's_lshl_b32 {T0}, {T0}, 16')
    a(f'v_add_u32 v{VXR}, {T0}, v{L16}')
    nchunk = 4
    per = nk // nchunk
    dper = nd // nchunk if nd % nchunk == 0 else None
    def rd(kb):
        r = XF + 4 * (kb % 8)
        return f'ds_read_b128 v[{r}:{r+3}], v{VXR} offset:{kb * 1024}'
    def mf(kb):
        r = XF + 4 * (kb % 8); ac = AC0 if kb % 2 == 0 else AC1
        c = '0' if kb < 2 else f'v[{ac}:{ac+15}]'
        return f'v_mfma_f32_32x32x16_bf16 v[{ac}:{ac+15}], a[{4*kb}:{4*kb+3}], v[{r}:{r+3}], {c}'
    bounds = [0, 16, 32, 48, nk] if nk == 64 else [0, 16, 32, 44, 56]
    for c in range(nchunk):
        k0, k1 = bounds[c], bounds[c + 1]
        need = (k1 + 3) // 4
        a(f's_waitcnt vmcnt({nd - need})')
        if c == nchunk - 1:
            nw3 = f'{N}_NW2'
            a(f's_cmp_lg_u32 {W}, 0'); a(f's_cbranch_scc1 {nw3}')
            a('s_waitcnt vmcnt(0)')
            flag_test(a, VPF, pw, t1)
            a(f's_cmp_eq_u64 vcc, 0'); a(f's_cselect_b32 {T0}, 1, 0')
            a(f'v_mov_b32 v{t1}, {T0}')
            a(f'ds_write_b32 v{VOUT}, v{t1}')
            a('s_waitcnt lgkmcnt(0)')
            a.label(nw3)
        a('s_barrier')
        if c == 0: ST(1)
        if c == nchunk - 1: ST(2)
        if c == nchunk - 1:
            a(f'ds_read_b32 v{t2}, v{VOUT}')
        D = 6
        ks = list(range(k0, k1))
        for kb in ks[:D]: a(rd(kb))
        for i, kb in enumerate(ks):
            rem = min(len(ks), i + D) - (i + 1)
            a(f's_waitcnt lgkmcnt({rem})')
            a(mf(kb))
            if i + D < len(ks): a(rd(ks[i + D]))
    ST(3)
    a(f'v_readfirstlane_b32 s{S_EARLY}, v{t2}')
    if prof: a(f's_add_u32 s68, s68, s{S_EARLY}')
    a(f's_cmp_ge_u32 s{S_SEG}, {nseg - 1}'); a(f's_cselect_b32 s{S_EARLY}, 0, s{S_EARLY}')
    a(f's_mul_i32 {T2}, s{S_SEG}, {ostride}'); a(f's_add_u32 {T2}, {T2}, s{S_OO}')
    a('s_nop 7'); a('s_nop 7')
    for r in range(16):
        a(f'v_add_f32 v{AC0+r}, v{AC0+r}, v{AC1+r}')
    if kind == 'GU':
        G, U, T = AC0, AC0 + 8, TMP
        for r in range(8):
            a(f'v_cvt_pk_bf16_f32 v{T+r}, v{AC0+2*r}, v{AC0+2*r+1}')
        for r in range(4):
            a(f'v_lshlrev_b32 v{G+2*r}, 16, v{T+r}'); a(f'v_and_b32 v{G+2*r+1}, 0xffff0000, v{T+r}')
        for r in range(8): a(f'v_mul_f32 v{G+r}, 0xbfb8aa3b, v{G+r}')
        for r in range(4):
            a(f'v_lshlrev_b32 v{U+2*r}, 16, v{T+4+r}'); a(f'v_and_b32 v{U+2*r+1}, 0xffff0000, v{T+4+r}')
        for r in range(8): a(f'v_exp_f32 v{G+r}, v{G+r}')
        for r in range(8): a(f'v_add_f32 v{G+r}, 1.0, v{G+r}')
        for r in range(8): a(f'v_rcp_f32 v{G+r}, v{G+r}')
        a('s_nop 0')
        for r in range(4): a(f'v_cvt_pk_bf16_f32 v{T+r}, v{G+2*r}, v{G+2*r+1}')
        for r in range(4):
            a(f'v_lshlrev_b32 v{G+2*r}, 16, v{T+r}'); a(f'v_and_b32 v{G+2*r+1}, 0xffff0000, v{T+r}')
        for r in range(8): a(f'v_mul_f32 v{G+r}, v{G+r}, v{U+r}')
        for r in range(4): a(f'v_cvt_pk_bf16_f32 v{T+r}, v{G+2*r}, v{G+2*r+1}')
        a(f'buffer_store_dwordx4 v[{T}:{T+3}], v{L16}, s[{SO}:{SO+3}], {T2} offen sc1')
    else:
        for q in range(4):
            a(f'buffer_store_dwordx4 v[{AC0+4*q}:{AC0+4*q+3}], v{L16}, s[{SO}:{SO+3}], {T2} offen offset:{q*1024} sc1')
    ST(4)
    late, fin = f'{N}_LATE', f'{N}_FIN'
    a(f's_cmp_eq_u32 s{S_EARLY}, 0'); a(f's_cbranch_scc1 {late}')
    xdma(1)
    a(f's_waitcnt vmcnt({nd})')
    a(f's_branch {fin}')
    a.label(late)
    a('s_waitcnt vmcnt(0)')
    a.label(fin)
    ST(5)
    set_flag(a, VFA, VONE, fo)
    tl_stamp(a, TLV[1])
    a(f's_add_u32 s{S_SEG}, s{S_SEG}, 1')
    a(f's_cmp_lt_u32 s{S_SEG}, {nseg}'); a(f's_cbranch_scc1 {top}')
    tl_dump(a, TLV)
    if prof:
        a('s_waitcnt vmcnt(0)')
        a.srd(4, S_PWS, 1 << 20, add=0xF000000)
        a(f's_lshl_b32 {T0}, s2, 2'); a(f's_add_u32 {T0}, {T0}, {W}'); a(f's_lshl_b32 {T0}, {T0}, 6')
        a('v_mov_b32 v1, 0')
        a('s_mov_b64 exec, 1')
        for i in range(9):
            a(f'v_mov_b32 v2, s{60+i}')
            a(f'buffer_store_dword v2, v1, s[4:7], {T0} offen offset:{4*i}')
        a('s_mov_b64 exec, -1')
        a('s_waitcnt vmcnt(0)')


SCALE = '0x3db504f3'
LOG2E = '0x3fb8aa3b'
def role_att(a, nseg=64, prof=False):
    T0, T1, T2 = f's{S_T0}', f's{S_T1}', f's{S_T2}'
    S_HD, S_FM, S_KMO, S_VMO = 40, 41, 43, 44
    SQ, SK, SV, SO = 4, 8, 12, S_OSRD
    VA, VKM, VVM, VD, VFA, VONE, VKF = 2, 3, 6, 7, 8, 9, 10
    Q, K, KMr, VT, VM = 16, 48, 80, 112, 144
    S, SM = 160, 176
    P, PM = 192, 200
    O = 16
    T = 208
    R = 224
    def ST(i):
        if not prof: return
        a('s_memtime s[84:85]'); a('s_waitcnt lgkmcnt(0)')
        a('s_sub_u32 s87, s84, s86'); a(f's_add_u32 s{100}, s87, 0') if False else None
    a(f's_load_dwordx2 s[{S_PWS}:{S_PWS+1}], s[0:1], {KA_WS}')
    a('v_and_b32 v1, 63, v0')
    a(f's_lshl_b32 {T0}, s28, 2'); a(f's_add_u32 s{S_HD}, {T0}, s{S_WAVE}')
    a(f'v_lshlrev_b32 v{VA}, 4, v1')
    a('v_lshrrev_b32 v4, 5, v1')
    a(f'v_and_b32 v{VKM}, 7, v1'); a(f'v_lshlrev_b32 v{VKM}, 4, v{VKM}'); a(f'v_lshl_add_u32 v{VKM}, v4, 7, v{VKM}')
    a('v_and_b32 v5, 31, v1')
    a(f'v_lshlrev_b32 v{VVM}, 3, v5'); a(f'v_lshl_add_u32 v{VVM}, v4, 8, v{VVM}')
    a(f'v_lshlrev_b32 v{VD}, 2, v4'); a(f'v_sub_u32 v{VD}, v5, v{VD}')
    if PLACE:
        a(f's_lshr_b32 {T0}, s{S_HD}, 3'); a(f's_lshl_b32 {T0}, {T0}, 7'); a(f's_and_b32 {T1}, s{S_HD}, 7')
        a(f's_lshl_b32 {T1}, {T1}, 2'); a(f's_add_u32 {T0}, {T0}, {T1}'); a(f'v_mov_b32 v{VFA}, {T0}')
    else:
        a(f's_lshl_b32 {T0}, s{S_HD}, 2'); a(f'v_mov_b32 v{VFA}, {T0}')
    a(f'v_mov_b32 v{VONE}, 1')
    a(f's_lshr_b32 {T0}, s{S_HD}, 1'); a(f's_lshl_b32 {T0}, {T0}, 7'); a(f'v_mov_b32 v{VKF}, {T0}')
    a('s_waitcnt lgkmcnt(0)')
    a.srd(SQ, S_PWS, 16*MB, add=WS_QF)
    a.srd(SK, S_PWS, 16*MB, add=WS_KF)
    a.srd(SV, S_PWS, 16*MB, add=WS_VT)
    a.srd(SO, S_PWS, 16*MB, add=WS_OF)
    for r in range(16):
        cr = (r & 3) + 8 * (r >> 2)
        a(f'v_cmp_le_i32 s[{52+2*r}:{53+2*r}], {cr}, v{VD}')
    for t in range(4):
        a(f'v_mov_b32 v{VM+4*t+2}, 0'); a(f'v_mov_b32 v{VM+4*t+3}, 0')
    a(f'v_mov_b32 v{PM+2}, 0'); a(f'v_mov_b32 v{PM+3}, 0')
    a(f's_mov_b32 s{S_SEG}, 0')
    def offs(add):
        a(f's_add_u32 {T0}, s{S_SEG}, {add}'); a(f's_lshl_b32 {T0}, {T0}, 5'); a(f's_add_u32 {T0}, {T0}, s{S_HD}')
        a(f's_lshl_b32 s{S_FM}, {T0}, 13')
    def qkv_loads():
        a(f's_add_u32 s42, s{S_FM}, 0x1000')
        so = lambda i: f's{S_FM}' if i < 4 else 's42'
        for kb in range(8):
            a(f'buffer_load_dwordx4 v[{K+4*kb}:{K+4*kb+3}], v{VA}, s[{SK}:{SK+3}], {so(kb)} offen offset:{(kb&3)*1024}')
            a(f'buffer_load_dwordx4 v[{Q+4*kb}:{Q+4*kb+3}], v{VA}, s[{SQ}:{SQ+3}], {so(kb)} offen offset:{(kb&3)*1024}')
        for i in range(8):
            a(f'buffer_load_dwordx4 v[{VT+4*i}:{VT+4*i+3}], v{VA}, s[{SV}:{SV+3}], {so(i)} offen offset:{(i&3)*1024}')
    def kvq_wait(add):
        lab = a.newlabel('AT_NB')
        a(f's_add_u32 {T0}, s{S_SEG}, {add}'); a(f's_and_b32 {T1}, {T0}, 3')
        a(f's_cmp_lg_u32 {T1}, 0'); a(f's_cbranch_scc1 {lab}')
        a(f's_lshr_b32 {T0}, {T0}, 2'); a(f's_lshl_b32 {T0}, {T0}, 11'); a(f's_add_u32 s{S_FOFF}, {T0}, {FL_KVQ}')
        lp = a.newlabel('AT_KF'); dn = lp + '_D'
        a.label(lp)
        a(f'buffer_load_dwordx4 v[{T}:{T+3}], v{VKF}, {FLS}, s{S_FOFF} offen sc1')
        a('s_waitcnt vmcnt(0)')
        a(f'v_and_b32 v{T}, v{T}, v{T+1}'); a(f'v_and_b32 v{T}, v{T}, v{T+2}')
        a(f'v_cmp_ne_u32 vcc, 0x{KV_FULL:x}, v{T}')
        budget(a, lp, dn)
        a.label(lab)
    TLV = [12, 13, 14]
    tl_init(a, TLV)
    kvq_wait(0); offs(0); qkv_loads()
    tl_stamp(a, TLV[2], 2)
    a.label('AT_TOP')
    for kb in range(8):
        a(f's_waitcnt vmcnt({8 + 2*(7-kb)})')
        c = '0' if kb == 0 else f'v[{S}:{S+15}]'
        a(f'v_mfma_f32_32x32x16_bf16 v[{S}:{S+15}], v[{K+4*kb}:{K+4*kb+3}], v[{Q+4*kb}:{Q+4*kb+3}], {c}')
    a(f's_lshl_b32 {T0}, s{S_SEG}, 5'); a(f's_add_u32 {T0}, {T0}, s{S_HD}')
    a(f's_lshl_b32 s{S_KMO}, {T0}, 12'); a(f's_add_u32 s{S_KMO}, s{S_KMO}, {SM_QKM + 2048}')
    a(f's_lshl_b32 s{S_VMO}, {T0}, 11'); a(f's_add_u32 s{S_VMO}, s{S_VMO}, {SM_VMG}')
    def kmvm():
        for kb in range(8):
            a(f'buffer_load_dwordx4 v[{KMr+4*kb}:{KMr+4*kb+3}], v{VKM}, {FLS}, s{S_KMO} offen offset:{kb*256} sc1')
        for t in range(4):
            a(f'buffer_load_dwordx2 v[{VM+4*t}:{VM+4*t+1}], v{VVM}, {FLS}, s{S_VMO} offen offset:{t*512} sc1')
    kmvm()
    a('s_nop 7')
    def rnd(base, n):
        for r in range(n // 2):
            a(f'v_cvt_pk_bf16_f32 v{T+r}, v{base+2*r}, v{base+2*r+1}')
        for r in range(n // 2):
            a(f'v_lshlrev_b32 v{base+2*r}, 16, v{T+r}')
            a(f'v_and_b32 v{base+2*r+1}, 0xffff0000, v{T+r}')
    rnd(S, 16)
    for r in range(16): a(f'v_mul_f32 v{S+r}, {SCALE}, v{S+r}')
    rnd(S, 16)
    a(f'v_mov_b32 v{T+10}, 0xce6e6b28')
    for r in range(16):
        a(f'v_cndmask_b32 v{S+r}, v{T+10}, v{S+r}, s[{52+2*r}:{53+2*r}]')
    M = T + 11
    a(f'v_max3_f32 v{M}, v{S}, v{S+1}, v{S+2}')
    a(f'v_max3_f32 v{M+1}, v{S+3}, v{S+4}, v{S+5}')
    for r in range(6, 14, 4):
        a(f'v_max3_f32 v{M}, v{M}, v{S+r}, v{S+r+1}')
        a(f'v_max3_f32 v{M+1}, v{M+1}, v{S+r+2}, v{S+r+3}')
    a(f'v_max3_f32 v{M}, v{M}, v{S+14}, v{S+15}')
    a(f'v_max_f32 v{M}, v{M}, v{M+1}')
    kmr = list(range(KMr, KMr + 32)) + [VM + 4*t + q for t in range(4) for q in range(2)]
    def notready():
        a('s_waitcnt vmcnt(0)')
        rc.max_chain(a, T, kmr)
        a(f'v_cmp_eq_u32 vcc, -1, v{T}')
    notready()
    a('s_cbranch_vccz AT_GO')
    a.label('AT_PL')
    kmvm()
    notready()
    budget(a, 'AT_PL', 'AT_GO')
    tl_stamp(a, TLV[0])
    for kb in range(8):
        c = '0' if kb == 0 else f'v[{SM}:{SM+15}]'
        a(f'v_mfma_f32_32x32x16_bf16 v[{SM}:{SM+15}], v[{KMr+4*kb}:{KMr+4*kb+3}], v[{Q+4*kb}:{Q+4*kb+3}], {c}')
    a('s_nop 7'); a('s_nop 7')
    rnd(SM, 4)
    for r in range(4): a(f'v_mul_f32 v{SM+r}, {SCALE}, v{SM+r}')
    rnd(SM, 4)
    a(f'v_max3_f32 v{M}, v{M}, v{SM}, v{SM+1}')
    a(f'v_max3_f32 v{M}, v{M}, v{SM+2}, v{SM+3}')
    a(f'v_mov_b32 v{M+1}, v{M}')
    a('s_nop 1')
    a(f'v_permlane32_swap_b32 v{M}, v{M+1}')
    a('s_nop 1')
    a(f'v_max_f32 v{M}, v{M}, v{M+1}')
    N = 20
    for r in range(N): a(f'v_sub_f32 v{S+r}, v{S+r}, v{M}')
    for r in range(N): a(f'v_mul_f32 v{S+r}, {LOG2E}, v{S+r}')
    for r in range(N): a(f'v_exp_f32 v{S+r}, v{S+r}')
    a(f'v_add_f32 v{M}, v{S}, v{S+1}')
    a(f'v_add_f32 v{M+1}, v{S+2}, v{S+3}')
    for r in range(4, N, 2):
        a(f'v_add_f32 v{M}, v{M}, v{S+r}')
        a(f'v_add_f32 v{M+1}, v{M+1}, v{S+r+1}')
    a(f'v_add_f32 v{M}, v{M}, v{M+1}')
    a(f'v_mov_b32 v{M+1}, v{M}')
    a('s_nop 1')
    a(f'v_permlane32_swap_b32 v{M}, v{M+1}')
    a('s_nop 1')
    a(f'v_add_f32 v{M}, v{M}, v{M+1}')
    a(f'v_rcp_f32 v{M}, v{M}')
    a('s_nop 0')
    for r in range(N): a(f'v_mul_f32 v{S+r}, v{S+r}, v{M}')
    for r in range(8): a(f'v_cvt_pk_bf16_f32 v{P+r}, v{S+2*r}, v{S+2*r+1}')
    a(f'v_cvt_pk_bf16_f32 v{PM}, v{S+16}, v{S+17}')
    a(f'v_cvt_pk_bf16_f32 v{PM+1}, v{S+18}, v{S+19}')
    a('s_nop 1')
    for t in range(4):
        o = O + 16*t
        a(f'v_mfma_f32_32x32x16_bf16 v[{o}:{o+15}], v[{VT+8*t}:{VT+8*t+3}], v[{P}:{P+3}], 0')
    for t in range(4):
        o = O + 16*t
        a(f'v_mfma_f32_32x32x16_bf16 v[{o}:{o+15}], v[{VT+8*t+4}:{VT+8*t+7}], v[{P+4}:{P+7}], v[{o}:{o+15}]')
    for t in range(4):
        o = O + 16*t
        a(f'v_mfma_f32_32x32x16_bf16 v[{o}:{o+15}], v[{VM+4*t}:{VM+4*t+3}], v[{PM}:{PM+3}], v[{o}:{o+15}]')
    a(f's_add_u32 s42, s{S_FM}, 0x1000')
    a('s_nop 7')
    for t in range(4):
        o = O + 16*t
        if t == 3: a('s_nop 7')
        for r in range(8):
            a(f'v_cvt_pk_bf16_f32 v{R+8*t+r}, v{o+2*r}, v{o+2*r+1}')
        sts = []
        for hlf in range(2):
            i = 2*t + hlf
            so = f's{S_FM}' if i < 4 else 's42'
            sts.append(f'buffer_store_dwordx4 v[{R+8*t+4*hlf}:{R+8*t+4*hlf+3}], v{VA}, s[{SO}:{SO+3}], {so} offen offset:{(i&3)*1024}')
        if PLACE: mode_store(a, sts)
        else:
            for x in sts: a(x + ' sc1')
    a(f's_cmp_ge_u32 s{S_SEG}, {nseg - 1}'); a('s_cbranch_scc1 AT_LAST')
    a(f's_add_u32 {T0}, s{S_SEG}, 1'); a(f's_and_b32 {T0}, {T0}, 3')
    a(f's_cmp_lg_u32 {T0}, 0'); a('s_cbranch_scc1 AT_NF')
    a('s_waitcnt vmcnt(0)')
    set_flag(a, VFA, VONE, F_AF, local=PLACE)
    kvq_wait(1); offs(1); qkv_loads()
    a('s_branch AT_NX')
    a.label('AT_NF')
    offs(1); qkv_loads()
    a('s_waitcnt vmcnt(24)')
    set_flag(a, VFA, VONE, F_AF, local=PLACE)
    a.label('AT_NX')
    tl_stamp(a, TLV[1])
    a(f's_add_u32 s{S_SEG}, s{S_SEG}, 1')
    a('s_branch AT_TOP')
    a.label('AT_LAST')
    a('s_waitcnt vmcnt(0)')
    set_flag(a, VFA, VONE, F_AF, local=PLACE)
    tl_stamp(a, TLV[1])
    tl_dump(a, TLV)


def role_red(a, which, nseg=64, ldsb=0):
    N = f'R{which}'
    T0, T1, T2 = f's{S_T0}', f's{S_T1}', f's{S_T2}'
    W = f's{S_WAVE}'
    SP, SX, SH, SO = 4, 8, 12, S_OSRD
    S_PO, S_FM = 40, 41
    VP, VF, VR, VPA, VFA, VONE = 8, 2, 3, 7, 9, 15
    a(f's_load_dwordx2 s[{S_PWS}:{S_PWS+1}], s[0:1], {KA_WS}')
    a(f's_load_dwordx2 s[{S_PW}:{S_PW+1}], s[0:1], {KA_X if which == 1 else KA_OUT}')
    a('v_and_b32 v1, 63, v0')
    a('v_and_b32 v4, 7, v1')
    a('v_bfe_u32 v5, v1, 3, 1')
    a('v_lshrrev_b32 v6, 4, v1')
    a(f's_lshl_b32 {T0}, s29, 3')
    a(f'v_add_u32 v10, {T0}, v4')
    a(f'v_lshl_add_u32 v{VP}, v6, 2, v5'); a(f'v_lshlrev_b32 v{VP}, 9, v{VP}'); a(f'v_lshl_add_u32 v{VP}, v10, 4, v{VP}')
    a(f's_lshl_b32 {T0}, {W}, 15'); a(f'v_add_u32 v{VP}, {T0}, v{VP}')
    a(f'v_lshl_add_u32 v{VF}, v5, 5, v10'); a(f'v_lshlrev_b32 v{VF}, 4, v{VF}'); a(f'v_lshl_add_u32 v{VF}, v6, 10, v{VF}')
    a(f's_lshl_b32 {T0}, {W}, 14'); a(f'v_add_u32 v{VF}, {T0}, v{VF}')
    a(f'v_lshlrev_b32 v{VR}, 11, v10'); a(f'v_lshl_add_u32 v{VR}, v6, 5, v{VR}')
    a(f'v_lshl_add_u32 v{VR}, v5, {3 if which == 1 else 4}, v{VR}')
    a(f's_lshl_b32 {T0}, {W}, 9'); a(f'v_add_u32 v{VR}, {T0}, v{VR}')
    a(f'v_bfe_u32 v{VPA}, v1, 1, 2'); a(f'v_lshlrev_b32 v{VPA}, 3, v{VPA}')
    a(f'v_and_b32 v10, 1, v1'); a(f'v_add_u32 v{VPA}, v{VPA}, v10')
    a(f's_lshl_b32 {T0}, {W}, 1'); a(f'v_add_u32 v{VPA}, {T0}, v{VPA}')
    a(f'v_lshlrev_b32 v{VPA}, 4, v{VPA}'); a(f'v_add_u32 v{VPA}, {F_WF if which == 1 else F_DF}, v{VPA}')
    a(f's_lshl_b32 {T0}, s29, 4'); a(f's_lshl_b32 {T1}, {W}, 2'); a(f's_add_u32 {T0}, {T0}, {T1}'); a(f'v_mov_b32 v{VFA}, {T0}')
    a(f'v_mov_b32 v{VONE}, 1')
    if which == 1:
        a('v_lshlrev_b32 v13, 2, v4'); a(f's_lshl_b32 {T0}, {W}, 5'); a(f'v_add_u32 v14, {T0}, v13')
    else:
        a('v_cmp_eq_u32 s[44:45], 0, v5')
    a('s_waitcnt lgkmcnt(0)')
    a.srd(SP, S_PWS, 32*MB, add=WS_P1 if which == 1 else WS_P2)
    if which == 1:
        a.srd(SX, S_PW, 4*MB); a.srd(SH, S_PWS, 4*MB, add=WS_HB); a.srd(SO, S_PWS, 4*MB, add=WS_HN)
    else:
        a.srd(SX, S_PWS, 4*MB, add=WS_HB); a.srd(SO, S_PW, 4*MB)
    a(f's_mov_b32 s{S_SEG}, s28')
    L, X, F, G, H = 16, 144, 160, 16, 48
    TLV = [210, 211, 212]
    tl_init(a, TLV)
    tl_stamp(a, TLV[2], 2)
    a.label(f'{N}_TOP')
    a(f's_lshl_b32 s{S_FM}, s{S_SEG}, 16')
    a(f's_lshl_b32 s{S_PO}, s{S_SEG}, 17')
    if which == 1:
        for it in range(4):
            for h in range(2):
                r = X + (it*2 + h)*2
                a(f'buffer_load_dwordx2 v[{r}:{r+1}], v{VR}, s[{SX}:{SX+3}], s{S_FM} offen offset:{it*128 + h*16}')
    seg_foff(a)
    poll(a, N + '_P', VPA, 200, 4, 204)
    tl_stamp(a, TLV[0])
    for ks in range(4):
        for it in range(4):
            a(f's_add_u32 {T2}, s{S_PO}, {ks*(1<<23) + it*8192}')
            for h in range(2):
                r = L + ((ks*4 + it)*2 + h)*4
                a(f'buffer_load_dwordx4 v[{r}:{r+3}], v{VP}, s[{SP}:{SP+3}], {T2} offen offset:{h*1024}')
    nx = 0
    if which == 2:
        for it in range(4):
            a(f's_add_u32 {T2}, s{S_FM}, {it*4096}')
            a(f'buffer_load_dwordx4 v[{X+4*it}:{X+4*it+3}], v{VF}, s[{SX}:{SX+3}], {T2} offen')
        nx = 4
    tasks2.red_sum(a, L, F, nx)
    a('s_waitcnt vmcnt(0)')
    for i in range(16):
        a(f'v_lshlrev_b32 v{G+2*i}, 16, v{X+i}'); a(f'v_and_b32 v{G+2*i+1}, 0xffff0000, v{X+i}')
    for i in range(32): a(f'v_add_f32 v{F+i}, v{F+i}, v{G+i}')
    for i in range(16): a(f'v_cvt_pk_bf16_f32 v{H+i}, v{F+2*i}, v{F+2*i+1}')
    if which == 1:
        for it in range(4):
            a(f's_add_u32 {T2}, s{S_FM}, {it*4096}')
            a(f'buffer_store_dwordx4 v[{H+4*it}:{H+4*it+3}], v{VF}, s[{SH}:{SH+3}], {T2} offen sc1')
        for i in range(16):
            a(f'v_lshlrev_b32 v{F+2*i}, 16, v{H+i}'); a(f'v_and_b32 v{F+2*i+1}, 0xffff0000, v{H+i}')
        A0 = 100
        for c in range(4): a(f'v_add_f32 v{A0+c}, v{F+c}, v{F+4+c}')
        for i in range(8, 32, 4):
            for c in range(4): a(f'v_add_f32 v{A0+c}, v{A0+c}, v{F+i+c}')
        a(f'v_add_f32 v{A0}, v{A0}, v{A0+1}'); a(f'v_add_f32 v{A0+2}, v{A0+2}, v{A0+3}'); a(f'v_add_f32 v{A0}, v{A0}, v{A0+2}')
        reduce_bits345(a, A0, A0 + 4)
        a(f'ds_write_b32 v14, v{A0} offset:{ldsb}')
        a('s_waitcnt lgkmcnt(0)')
        a('s_barrier')
        for w in range(4): a(f'ds_read_b32 v{A0+w}, v13 offset:{ldsb + w*32}')
        a('s_waitcnt lgkmcnt(0)')
        MU = 10
        a(f'v_add_f32 v{A0}, v{A0}, v{A0+1}'); a(f'v_add_f32 v{A0+2}, v{A0+2}, v{A0+3}'); a(f'v_add_f32 v{MU}, v{A0}, v{A0+2}')
        a(f'v_mul_f32 v{MU}, 0x3a800000, v{MU}')
        for c in range(4): a(f'v_mov_b32 v{64+c}, 0')
        for i in range(0, 32, 4):
            for c in range(4): a(f'v_sub_f32 v{68+c}, v{F+i+c}, v{MU}')
            for c in range(4): a(f'v_fmac_f32 v{64+c}, v{68+c}, v{68+c}')
        RS = 11
        a('v_add_f32 v64, v64, v65'); a('v_add_f32 v66, v66, v67'); a(f'v_add_f32 v{RS}, v64, v66')
        reduce_bits345(a, RS, A0 + 4)
        a(f'ds_write_b32 v14, v{RS} offset:{ldsb + 128}')
        a('s_waitcnt lgkmcnt(0)')
        a('s_barrier')
        for w in range(4): a(f'ds_read_b32 v{64+w}, v13 offset:{ldsb + 128 + w*32}')
        a('s_waitcnt lgkmcnt(0)')
        a('v_add_f32 v64, v64, v65'); a('v_add_f32 v66, v66, v67'); a(f'v_add_f32 v{RS}, v64, v66')
        a(f'v_mul_f32 v{RS}, 0x3a800000, v{RS}')
        bf16_round(a, RS, RS)
        a(f'v_add_f32 v{RS}, 0x3727c5ac, v{RS}')
        bf16_round(a, RS, RS)
        a(f'v_sqrt_f32 v{RS}, v{RS}')
        a('s_nop 0')
        bf16_round(a, RS, RS)
        a(f'v_rcp_f32 v{RS}, v{RS}')
        bf16_round(a, MU, MU)
        for i in range(32): a(f'v_sub_f32 v{F+i}, v{F+i}, v{MU}')
        for i in range(16): a(f'v_cvt_pk_bf16_f32 v{G+i}, v{F+2*i}, v{F+2*i+1}')
        for i in range(16):
            a(f'v_lshlrev_b32 v{F+2*i}, 16, v{G+i}'); a(f'v_and_b32 v{F+2*i+1}, 0xffff0000, v{G+i}')
        for i in range(32): a(f'v_mul_f32 v{F+i}, v{F+i}, v{RS}')
        OO = 80
        for i in range(16): a(f'v_cvt_pk_bf16_f32 v{OO+i}, v{F+2*i}, v{F+2*i+1}')
        for it in range(4):
            a(f's_add_u32 {T2}, s{S_FM}, {it*4096}')
            a(f'buffer_store_dwordx4 v[{OO+4*it}:{OO+4*it+3}], v{VF}, s[{SO}:{SO+3}], {T2} offen sc1')
        a('s_waitcnt vmcnt(0)')
        set_flag(a, VFA, VONE, F_RF)
    else:
        S, R, OO = 64, 80, 96
        for it in range(4):
            for c in range(2):
                a(f'v_cndmask_b32 v{S+2*it+c}, v{H+4*it+c}, v{H+4*it+2+c}, s[44:45]')
        a('s_nop 1')
        for i in range(8):
            a(f'v_mov_b32_dpp v{R+i}, v{S+i} row_ror:8 row_mask:0xf bank_mask:0xf')
        for it in range(4):
            for c in range(2):
                a(f'v_cndmask_b32 v{OO+4*it+c}, v{R+2*it+c}, v{H+4*it+c}, s[44:45]')
                a(f'v_cndmask_b32 v{OO+4*it+2+c}, v{H+4*it+2+c}, v{R+2*it+c}, s[44:45]')
        for it in range(4):
            a(f'buffer_store_dwordx4 v[{OO+4*it}:{OO+4*it+3}], v{VR}, s[{SO}:{SO+3}], s{S_FM} offen offset:{it*128}')
    if TL and which == 2: a('s_waitcnt vmcnt(0)')
    tl_stamp(a, TLV[1])
    a(f's_add_u32 s{S_SEG}, s{S_SEG}, 2')
    a(f's_cmp_lt_u32 s{S_SEG}, {nseg}'); a(f's_cbranch_scc1 {N}_TOP')
    tl_dump(a, TLV)
```

```python
import sys; sys.path.insert(0,'gen')
from asmlib import *
import tasks, tasks2, mega, k_recc as rc
from mega import *
import mega2
from mega2 import role_gemmx, S_WM
from gemm2 import Eng, S_WAVE, S_T0, S_T1, S_T2
from tasks import S_RB, S_CB, S_KS, S_PW, S_PWS, S_OSRD, MB, task_gemm
from k_ln import bf16_round, reduce_bits345

def gen_prep(cfg):
    a = Asm()
    a('s_cmp_ge_u32 s2, 256')
    a('s_cbranch_scc1 PREP_END')
    a(f's_load_dwordx2 s[4:5], s[0:1], {KA_WS}')
    a(f's_load_dwordx2 s[6:7], s[0:1], {KA_MEM0}')
    a(f's_load_dwordx2 s[24:25], s[0:1], {KA_X}')
    a('v_and_b32 v21, 63, v0'); a('v_lshrrev_b32 v22, 6, v0'); a('s_nop 0'); a('v_readfirstlane_b32 s19, v22')
    a('v_and_b32 v24, 7, v21'); a('v_bfe_u32 v25, v21, 3, 1'); a('v_lshrrev_b32 v26, 4, v21')
    a('s_lshr_b32 s30, s2, 2'); a('s_and_b32 s31, s2, 3'); a('s_lshl_b32 s31, s31, 3')
    a('v_add_u32 v27, s31, v24')
    a('v_lshlrev_b32 v23, 11, v27'); a('v_lshl_add_u32 v23, v26, 5, v23'); a('v_lshl_add_u32 v23, v25, 3, v23')
    a('s_lshl_b32 s32, s19, 9'); a('s_lshl_b32 s33, s30, 16'); a('s_add_u32 s32, s32, s33'); a('v_add_u32 v23, s32, v23')
    a('v_lshl_add_u32 v28, v25, 5, v27'); a('v_lshlrev_b32 v28, 4, v28'); a('v_lshl_add_u32 v28, v26, 10, v28')
    a('s_lshl_b32 s32, s19, 14'); a('s_add_u32 s32, s32, s33'); a('v_add_u32 v28, s32, v28')
    a('v_lshlrev_b32 v29, 2, v24'); a('s_lshl_b32 s32, s19, 5'); a('v_add_u32 v30, s32, v29')
    a('s_lshl_b32 s3, s2, 12')
    a('v_lshlrev_b32 v1, 4, v0')
    a('v_add_u32 v1, s3, v1')
    for r in range(4):
        a(f'v_mov_b32 v{4+r}, -1'); a(f'v_mov_b32 v{8+r}, 0')
    a('s_waitcnt lgkmcnt(0)')
    a.srd(36, 24, 4*MB)
    X = 32
    for it in range(4):
        for h in range(2):
            r = X + (it*2 + h)*2
            a(f'buffer_load_dwordx2 v[{r}:{r+1}], v23, s[36:39], 0 offen offset:{it*128 + h*16}')
    a.srd(8, 4, SM_SIZE, add=WS_SM)
    a.srd(12, 6, 8 * 1024 * 2)
    a.srd(20, 4, 64 << 20, add=rc.WS_X)
    a.srd(40, 4, 4*MB, add=WS_XN)
    a(f's_mov_b32 s16, {rc.C_PART}')
    a('buffer_store_dwordx4 v[4:7], v1, s[8:11], s16 offen')
    a.srd(44, 4, 0x2100000, add=WS_P1)
    a('buffer_store_dwordx4 v[4:7], v1, s[44:47], 0 offen')
    a(f's_mov_b32 s16, {WS_P2 - WS_P1}')
    a('buffer_store_dwordx4 v[4:7], v1, s[44:47], s16 offen')
    a('s_lshr_b32 s17, s2, 3'); a(f's_mul_i32 s17, s17, {cfg.NS*32768}')
    a('s_and_b32 s18, s2, 7'); a('s_lshl_b32 s18, s18, 12'); a('s_add_u32 s17, s17, s18')
    a('v_lshlrev_b32 v2, 4, v0')
    for i in range(3):
        a('buffer_store_dwordx4 v[4:7], v2, s[20:23], s17 offen')
        a('s_add_u32 s17, s17, 32768')
    a('v_lshrrev_b32 v3, 11, v1'); a('v_lshlrev_b32 v3, 12, v3'); a('v_and_b32 v12, 2047, v1'); a('v_add_u32 v3, v3, v12')
    a(f's_mov_b32 s16, {SM_QKM + 2048}')
    for i in range(4):
        a('buffer_store_dwordx4 v[4:7], v3, s[8:11], s16 offen'); a(f's_add_u32 s16, s16, {2*MB}')
    a(f's_mov_b32 s16, {SM_VMG}')
    for i in range(4):
        a('buffer_store_dwordx4 v[4:7], v1, s[8:11], s16 offen'); a(f's_add_u32 s16, s16, {MB}')
    nfl = FL_SEG + 65*4096 - FL_KVQ
    a(f'v_cmp_gt_u32 vcc, {nfl}, v1') if nfl <= 64 else (a(f's_mov_b32 s17, {nfl}'), a('v_cmp_gt_u32 vcc, s17, v1'))
    a('s_and_saveexec_b64 s[26:27], vcc')
    a(f's_mov_b32 s16, {FL_KVQ}')
    a('buffer_store_dwordx4 v[8:11], v1, s[8:11], s16 offen')
    a('s_mov_b64 exec, s[26:27]')
    a('s_cmp_eq_u32 s2, 16'); a('s_cbranch_scc0 PREP_N1')
    a(f's_mov_b32 s16, {rc.C_CNT}')
    a('buffer_store_dwordx4 v[8:11], v2, s[8:11], s16 offen')
    a.label('PREP_N1')
    a('s_cmp_eq_u32 s2, 17'); a('s_cbranch_scc0 PREP_N2')
    a(f's_mov_b32 s16, {rc.C_CNT + 4096}')
    a('buffer_store_dwordx4 v[4:7], v2, s[8:11], s16 offen')
    a.label('PREP_N2')
    a('s_cmp_ge_u32 s2, 16'); a('s_cbranch_scc1 PREP_LN')
    a('s_cmp_lt_u32 s2, 4')
    a('s_cbranch_scc1 PREP_M0')
    a(f's_mov_b32 s16, {rc.C_MEMF}')
    a('buffer_store_dwordx4 v[4:7], v1, s[8:11], s16 offen')
    a('s_branch PREP_LN')
    a.label('PREP_M0')
    a('v_lshrrev_b32 v2, 4, v1')
    rc.memf0_src(a, cfg, 2, 3, 12)
    for t in range(4):
        a(f'buffer_load_dword v{12+t}, v3, s[12:15], 0 offen offset:{t*8}')
    a('s_waitcnt vmcnt(0)')
    for t in range(4):
        a(f'v_min_u32 v{12+t}, -2, v{12+t}')
    a(f's_mov_b32 s16, {rc.C_MEMF}')
    a('buffer_store_dwordx4 v[12:15], v1, s[8:11], s16 offen')
    a.label('PREP_LN')
    F, G, A0, MU, RS = 64, 96, 16, 20, 21
    a('s_waitcnt vmcnt(0)')
    for i in range(16):
        a(f'v_lshlrev_b32 v{F+2*i}, 16, v{X+i}'); a(f'v_and_b32 v{F+2*i+1}, 0xffff0000, v{X+i}')
    for c in range(4): a(f'v_add_f32 v{A0+c}, v{F+c}, v{F+4+c}')
    for i in range(8, 32, 4):
        for c in range(4): a(f'v_add_f32 v{A0+c}, v{A0+c}, v{F+i+c}')
    a(f'v_add_f32 v{A0}, v{A0}, v{A0+1}'); a(f'v_add_f32 v{A0+2}, v{A0+2}, v{A0+3}'); a(f'v_add_f32 v{A0}, v{A0}, v{A0+2}')
    reduce_bits345(a, A0, 31)
    a(f'ds_write_b32 v30, v{A0}')
    a('s_waitcnt lgkmcnt(0)'); a('s_barrier')
    for w in range(4): a(f'ds_read_b32 v{A0+w}, v29 offset:{w*32}')
    a('s_waitcnt lgkmcnt(0)')
    a(f'v_add_f32 v{A0}, v{A0}, v{A0+1}'); a(f'v_add_f32 v{A0+2}, v{A0+2}, v{A0+3}'); a(f'v_add_f32 v{MU}, v{A0}, v{A0+2}')
    a(f'v_mul_f32 v{MU}, 0x3a800000, v{MU}')
    for c in range(4): a(f'v_mov_b32 v{A0+c}, 0')
    for i in range(0, 32, 4):
        for c in range(4): a(f'v_sub_f32 v{G+c}, v{F+i+c}, v{MU}')
        for c in range(4): a(f'v_fmac_f32 v{A0+c}, v{G+c}, v{G+c}')
    a(f'v_add_f32 v{A0}, v{A0}, v{A0+1}'); a(f'v_add_f32 v{A0+2}, v{A0+2}, v{A0+3}'); a(f'v_add_f32 v{RS}, v{A0}, v{A0+2}')
    reduce_bits345(a, RS, 31)
    a(f'ds_write_b32 v30, v{RS} offset:128')
    a('s_waitcnt lgkmcnt(0)'); a('s_barrier')
    for w in range(4): a(f'ds_read_b32 v{A0+w}, v29 offset:{128 + w*32}')
    a('s_waitcnt lgkmcnt(0)')
    a(f'v_add_f32 v{A0}, v{A0}, v{A0+1}'); a(f'v_add_f32 v{A0+2}, v{A0+2}, v{A0+3}'); a(f'v_add_f32 v{RS}, v{A0}, v{A0+2}')
    a(f'v_mul_f32 v{RS}, 0x3a800000, v{RS}')
    bf16_round(a, RS, RS)
    a(f'v_add_f32 v{RS}, 0x3727c5ac, v{RS}')
    bf16_round(a, RS, RS)
    a(f'v_sqrt_f32 v{RS}, v{RS}')
    a('s_nop 0')
    bf16_round(a, RS, RS)
    a(f'v_rcp_f32 v{RS}, v{RS}')
    bf16_round(a, MU, MU)
    for i in range(32): a(f'v_sub_f32 v{F+i}, v{F+i}, v{MU}')
    for i in range(16): a(f'v_cvt_pk_bf16_f32 v{G+i}, v{F+2*i}, v{F+2*i+1}')
    for i in range(16):
        a(f'v_lshlrev_b32 v{F+2*i}, 16, v{G+i}'); a(f'v_and_b32 v{F+2*i+1}, 0xffff0000, v{G+i}')
    for i in range(32): a(f'v_mul_f32 v{F+i}, v{F+i}, v{RS}')
    for i in range(16): a(f'v_cvt_pk_bf16_f32 v{G+i}, v{F+2*i}, v{F+2*i+1}')
    for it in range(4):
        a(f's_mov_b32 s16, {it*4096}')
        a(f'buffer_store_dwordx4 v[{G+4*it}:{G+4*it+3}], v28, s[40:43], s16 offen')
    a.label('PREP_END')
    a('s_endpgm')
    return a.text()


def kvq_loop(a, g, nbg_rounds=9):
    T0, T1, T2 = f's{S_T0}', f's{S_T1}', f's{S_T2}'
    if K0:
        if PLACE: a(f's_cmp_ge_u32 s{S_WID}, 64'); a('s_cbranch_scc1 KQ_END')
        else:
            a(f's_cmp_lt_u32 s{S_WID}, 64'); a('s_cbranch_scc1 KQ_END')
            a(f's_and_b32 {T0}, s{S_WID}, 16'); a(f's_cmp_eq_u32 {T0}, 0'); a('s_cbranch_scc1 KQ_END')
    a(f's_mov_b32 s{S_RND}, {1 if K0 else 0}')
    a.label('KQ_TOP')
    a(f's_cmp_lg_u32 s{S_RND}, 0'); a('s_cbranch_scc1 KQ_BG')
    a(f's_and_b32 {T0}, s{S_WID}, 31'); a(f's_and_b32 s{S_RB}, {T0}, 3')
    a(f's_lshr_b32 {T0}, {T0}, 2'); a(f's_lshr_b32 {T1}, s{S_WID}, 5'); a(f's_lshl_b32 {T1}, {T1}, 3'); a(f's_add_u32 s31, {T0}, {T1}')
    a('s_branch KQ_DEC')
    a.label('KQ_BG')
    if PLACE:
        a(f's_sub_u32 {T1}, s{S_RND}, 1'); a(f's_mul_i32 {T0}, {T1}, 43'); a(f's_lshr_b32 {T0}, {T0}, 7')
        a(f's_mul_i32 {T2}, {T0}, 3'); a(f's_sub_u32 {T1}, {T1}, {T2}')
        a(f's_lshl_b32 {T0}, {T0}, 2'); a(f's_add_u32 {T0}, {T0}, 4'); a(f's_and_b32 {T2}, s{S_WID}, 3')
        a(f's_add_u32 s{S_RB}, {T0}, {T2}')
        a(f's_lshl_b32 {T1}, {T1}, 4'); a(f's_lshr_b32 {T2}, s{S_WID}, 2'); a(f's_add_u32 s31, {T1}, {T2}')
    else:
        a(f's_sub_u32 {T0}, s{S_WID}, 64'); a(f's_lshr_b32 {T0}, {T0}, 5'); a(f's_lshl_b32 {T0}, {T0}, 4')
        a(f's_and_b32 {T1}, s{S_WID}, 15'); a(f's_add_u32 {T0}, {T0}, {T1}')
        a(f's_sub_u32 {T1}, s{S_RND}, 1'); a(f's_lshl_b32 {T1}, {T1}, 6'); a(f's_add_u32 {T0}, {T0}, {T1}')
        a(f's_mul_i32 {T1}, {T0}, 683'); a(f's_lshr_b32 {T1}, {T1}, 16')
        a(f's_mul_i32 {T2}, {T1}, 96'); a(f's_sub_u32 {T0}, {T0}, {T2}')
        a(f's_lshl_b32 {T1}, {T1}, 1'); a(f's_add_u32 {T1}, {T1}, 4'); a(f's_and_b32 {T2}, {T0}, 1')
        a(f's_add_u32 s{S_RB}, {T1}, {T2}'); a(f's_lshr_b32 s31, {T0}, 1')
    a.label('KQ_DEC')
    a(f's_and_b32 s{S_RB}, s{S_RB}, 15')
    a(f's_and_b32 s{S_CB}, s31, 15'); a(f's_mov_b32 s{S_KS}, 0')
    a('s_lshr_b32 s31, s31, 4')
    a(f's_lshl_b32 {T0}, s{S_RB}, 11'); a(f's_lshl_b32 {T1}, s{S_CB}, 7'); a(f's_add_u32 {T0}, {T0}, {T1}')
    a(f's_lshl_b32 {T1}, s31, 2'); a(f's_add_u32 {T0}, {T0}, {T1}'); a(f's_add_u32 s{S_FOFF}, {T0}, {FL_KVQ}')
    a('s_cmp_eq_u32 s31, 1'); a('s_cbranch_scc1 KQ_V')
    a('s_cmp_eq_u32 s31, 2'); a('s_cbranch_scc1 KQ_Q')
    task_gemm(a, g, 'K'); a('s_branch KQ_FIN')
    a.label('KQ_V'); task_gemm(a, g, 'V'); a('s_branch KQ_FIN')
    a.label('KQ_Q'); task_gemm(a, g, 'Q')
    a.label('KQ_FIN')
    a('s_waitcnt vmcnt(0)')
    a('s_barrier')
    if mega.TL:
        a('s_memrealtime s[88:89]'); a('s_waitcnt lgkmcnt(0)'); a('s_mov_b32 s101, s88')
    a(f's_cmp_lg_u32 s{S_WAVE}, 0'); a('s_cbranch_scc1 KQ_NF')
    a(f'v_mov_b32 v1, 0x{KV_FULL:x}')
    a('s_mov_b64 exec, 1')
    a(f'buffer_store_dword v1, off, {FLS}, s{S_FOFF} sc1')
    a('s_mov_b64 exec, -1')
    a.label('KQ_NF')
    a(f's_add_u32 s{S_RND}, s{S_RND}, 1')
    if PLACE:
        a(f's_cmp_ge_u32 s{S_WID}, 64'); a('s_cbranch_scc1 KQ_END')
    else:
        a(f's_cmp_lt_u32 s{S_WID}, 64'); a('s_cbranch_scc1 KQ_END')
        a(f's_and_b32 {T0}, s{S_WID}, 16'); a(f's_cmp_eq_u32 {T0}, 0'); a('s_cbranch_scc1 KQ_END')
    if mega.TL:
        pass
    a(f's_cmp_le_u32 s{S_RND}, {nbg_rounds}'); a('s_cbranch_scc1 KQ_TOP')
    if mega.TL:
        a('v_mov_b32 v12, 0'); a('v_writelane_b32 v12, s100, 0'); a('v_writelane_b32 v12, s101, 1')
        mega.tl_dump(a, [12, 12, 12])
    a('s_endpgm')
    a.label('KQ_END')


K0 = True
RC_SIG = 1
K0_WHEN = 1
K0_TS = {}
def k0ts(a, name, once=None):
    if mega.TL and name in K0_TS:
        lab = a.newlabel('K0TS')
        if once is not None: a(f's_cmp_eq_u32 s28, {once}'); a(f's_cbranch_scc0 {lab}')
        a('s_memrealtime s[88:89]'); a('s_waitcnt lgkmcnt(0)'); a(f's_mov_b32 s{K0_TS[name]}, s88')
        a.label(lab)
K0_VD, K0_VA, K0_W, K0_ACC, K0_T, K0_VO = 64, 66, 76, 108, 140, 74
def k0_pre(a):
    WV = f's{rc.S_WV}'
    a(f's_lshr_b32 s70, s{S_WID}, 6')
    a('s_cmp_eq_u32 s70, 1'); a('s_cbranch_scc1 K0_LV')
    a('s_cmp_eq_u32 s70, 2'); a('s_cbranch_scc1 K0_LQ')
    a(f's_load_dwordx2 s[64:65], s[0:1], {KA_WK}'); a('s_branch K0_LD')
    a.label('K0_LV'); a(f's_load_dwordx2 s[64:65], s[0:1], {KA_WV}'); a('s_branch K0_LD')
    a.label('K0_LQ'); a(f's_load_dwordx2 s[64:65], s[0:1], {KA_WQ}')
    a.label('K0_LD')
    VD = K0_VD
    a(f'v_lshrrev_b32 v{VD+1}, 8, v{rc.V_L16}')
    a(f'v_bfe_u32 v{VD}, v{rc.V_L16}, 4, 4')
    a(f'v_lshlrev_b32 v8, 2, v{VD+1}'); a(f'v_xor_b32 v{VD}, v{VD}, v8')
    a(f'v_lshrrev_b32 v8, 3, v{VD}'); a(f'v_and_b32 v{VD}, 7, v{VD}')
    a(f'v_lshlrev_b32 v{VD}, 4, v{VD}'); a(f'v_lshl_add_u32 v{VD}, v8, 22, v{VD}')
    a(f'v_lshl_add_u32 v{VD}, v{VD+1}, 13, v{VD}')
    a(f's_and_b32 s71, s{S_WID}, 63'); a('s_lshl_b32 s71, s71, 7'); a(f'v_add_u32 v{VD}, s71, v{VD}')
    a(f's_lshl_b32 s76, {WV}, 16')
    a(f's_lshl_b32 s77, {WV}, 11')
    a('s_waitcnt lgkmcnt(0)')
    a.srd(72, 64, 8*MB)
    for st in range(16):
        for i in range(2):
            a(f's_add_u32 m0, s77, {st*8192 + i*1024}')
            if st or i: a(f's_add_u32 s76, s76, {4*8192 if i else 28*8192}')
            else: a('s_nop 0')
            a(f'buffer_load_dwordx4 v{VD}, s[72:75], s76 offen lds')

def k0_main(a):
    W = S_WAVE
    D = 60
    k0ts(a, 'ver')
    RB, XC, XN_, XT, OO = 28, 16, 17, 18, 20
    a(f's_load_dwordx2 s[34:35], s[0:1], {KA_WS}')
    a(f's_lshr_b32 s31, s{S_WID}, 6'); a(f's_and_b32 s29, s{S_WID}, 63')
    a(f's_lshl_b32 s{XC}, s{W}, 16'); a(f's_add_u32 s{XN_}, s{XC}, 262144')
    a(f's_mov_b32 s{RB}, 0')
    t1, t2 = 8, 9
    a('v_and_b32 v10, 63, v0')
    a(f'v_bfe_u32 v{t1}, v10, 2, 2'); a(f'v_lshrrev_b32 v{t2}, 5, v10'); a(f'v_lshl_add_u32 v{t2}, v{t2}, 2, v{t1}'); a(f'v_lshlrev_b32 v{t2}, 8, v{t2}')
    a('v_bfe_u32 v11, v10, 4, 1'); a(f'v_lshl_add_u32 v{t2}, v11, 5, v{t2}')
    a('v_bfe_u32 v11, v10, 1, 1'); a(f'v_lshl_add_u32 v{t2}, v11, 4, v{t2}')
    a('v_and_b32 v11, 1, v10'); a(f'v_lshl_add_u32 v{t2}, v11, 3, v{t2}')
    for t4 in range(4):
        r = K0_VA + 2*t4
        a(f'v_xor_b32 v{r}, {t4}, v{t1}'); a(f'v_lshl_add_u32 v{r}, v{r}, 6, v{t2}'); a(f'v_add_u32 v{r+1}, 65536, v{r}')
    a('s_waitcnt lgkmcnt(0)')
    a.srd(8, 34, 4*MB, add=WS_XN)
    a.srd(12, 34, 4*MB, add=WS_XN)
    def xload(f, nxt):
        out = []
        if f % 4 == 0 or f == D % 64 and nxt is None: pass
        return out
    VL = rc.V_L16
    for f in range(D):
        if f % 4 == 0: a(f's_add_u32 s{XT}, s{XC}, {(f >> 2)*4096}')
        a(f'buffer_load_dwordx4 a[{4*f}:{4*f+3}], v{VL}, s[8:11], s{XT} offen offset:{(f & 3)*1024}')
    a('s_cmp_eq_u32 s31, 1'); a(f's_mov_b32 s22, 0x{WS_KF:x}'); a(f's_cselect_b32 s22, 0x{WS_VT:x}, s22')
    a('s_cmp_eq_u32 s31, 2'); a(f's_cselect_b32 s22, 0x{WS_QF:x}, s22')
    a('s_add_u32 s36, s34, s22'); a('s_addc_u32 s37, s35, 0'); a('s_and_b32 s37, s37, 0xffff')
    a(f's_mov_b32 s38, 0x{16*MB:x}'); a('s_mov_b32 s39, 0x00020000')
    a('s_lshl_b32 s22, s29, 12'); a(f's_lshl_b32 s23, s{W}, 18'); a('s_add_u32 s22, s22, s23'); a(f'v_add_u32 v{K0_VO}, s22, v{VL}')
    a(f's_mov_b32 s{OO}, 0')
    a('s_lshr_b32 s22, s29, 2'); a('s_lshl_b32 s22, s22, 7'); a('s_lshl_b32 s23, s31, 2'); a('s_add_u32 s22, s22, s23')
    a('s_and_b32 s23, s29, 3'); a('s_add_u32 s22, s22, s23'); a(f's_add_u32 s{S_FOFF}, s22, {FL_KVQ}')
    a(f'v_mov_b32 v{K0_VO+1}, 1')
    a(f's_waitcnt vmcnt({D})'); a('s_barrier')
    k0ts(a, 'wrdy')
    def wread(k):
        half, st, kk = k >> 5, (k >> 1) & 15, k & 1
        out = []
        for nt in range(2):
            r = K0_W + (k & 3)*8 + nt*4; ad = K0_VA + 2*(2*half + nt) + (st >> 3)
            off = (st & 7)*8192 + kk*4096
            out.append(f'ds_read_b64_tr_b16 v[{r}:{r+1}], v{ad} offset:{off}')
            out.append(f'ds_read_b64_tr_b16 v[{r+2}:{r+3}], v{ad} offset:{off + 2048}')
        return out
    def flag(tag):
        a(f's_cmp_lg_u32 s{W}, 0'); a(f's_cbranch_scc1 {tag}')
        a('s_mov_b64 exec, 1')
        a(f'buffer_store_byte v{K0_VO+1}, off, {FLS}, s{S_FOFF} sc1')
        a('s_mov_b64 exec, -1')
        a.label(tag)
        a(f's_add_u32 s{S_FOFF}, s{S_FOFF}, 2048')
    def body(swap, tag):
        a.ext(wread(0)); a.ext(wread(1))
        a.label(f'{tag}_L')
        for k in range(64):
            if k == 28:
                a(f's_cmp_eq_u32 s{RB}, 0'); a(f's_cbranch_scc1 {tag}_NF')
                a('s_waitcnt vmcnt(28)'); a('s_barrier')
                flag(f'{tag}_F')
                a.label(f'{tag}_NF')
            a(f's_waitcnt vmcnt({D-1}) lgkmcnt(4)')
            def mf(nt):
                ac = K0_ACC + 16*nt; w = f'v[{K0_W + (k & 3)*8 + nt*4}:{K0_W + (k & 3)*8 + nt*4 + 3}]'; x = f'a[{4*k}:{4*k+3}]'
                A, B = (x, w) if swap else (w, x)
                c = '0' if k == 0 else f'v[{ac}:{ac+15}]'
                return f'v_mfma_f32_32x32x16_bf16 v[{ac}:{ac+15}], {A}, {B}, {c}'
            a(mf(0))
            a.ext(wread((k + 2) & 63))
            f = (k + D) & 63; nxt = k + D >= 64
            if f % 4 == 0 or k == 0: a(f's_add_u32 s{XT}, s{XN_ if nxt else XC}, {(f >> 2)*4096}')
            a(f'buffer_load_dwordx4 a[{4*f}:{4*f+3}], v{VL}, s[{12 if nxt else 8}:{15 if nxt else 11}], s{XT} offen offset:{(f & 3)*1024}')
            a(mf(1))
        k0ts(a, 'rb0', 0); k0ts(a, 'rb1', 1); k0ts(a, 'rb2', 2)
        a('s_nop 7'); a('s_nop 7')
        for nt in range(2):
            ac = K0_ACC + 16*nt; t = K0_T + 8*nt
            for r in range(8): a(f'v_cvt_pk_bf16_f32 v{t+r}, v{ac+2*r}, v{ac+2*r+1}')
            a(f'buffer_store_dwordx4 v[{t}:{t+3}], v{K0_VO}, s[36:39], s{OO} offen offset:{nt*2048} sc1')
            a(f'buffer_store_dwordx4 v[{t+4}:{t+7}], v{K0_VO}, s[36:39], s{OO} offen offset:{nt*2048 + 1024} sc1')
        a(f's_add_u32 s{OO}, s{OO}, {4*262144}')
        a(f's_add_u32 s{XC}, s{XC}, 262144'); a(f's_add_u32 s{XN_}, s{XN_}, 262144')
        a(f's_add_u32 s{RB}, s{RB}, 1')
        a(f's_cmp_eq_u32 s{RB}, 3'); a('s_cselect_b32 s14, 0, s14')
        a(f's_cmp_lt_u32 s{RB}, 4'); a(f's_cbranch_scc1 {tag}_L')
        a('s_waitcnt vmcnt(0) lgkmcnt(0)'); a('s_barrier')
        flag(f'{tag}_G')
    a('s_cmp_eq_u32 s31, 1'); a('s_cbranch_scc1 K0_V')
    body(False, 'K0A'); a('s_branch K0_END')
    a.label('K0_V')
    body(True, 'K0B')
    a.label('K0_END')
    if mega.TL and 101 not in K0_TS.values():
        a('s_memrealtime s[88:89]'); a('s_waitcnt lgkmcnt(0)'); a('s_mov_b32 s101, s88')


MERGE = True
S_RST = 99
S_DBG = 92
def prep_merged(a, cfg):
    V = lambda r: r + 128
    SM = f's[{rc.S_SM}:{rc.S_SM+3}]'; XR = f's[{rc.S_X}:{rc.S_X+3}]'
    WV = f's{rc.S_WV}'
    C = ' sc1'
    A16, A17, A18 = 's70', 's71', 's3'
    a.srd(72, 64, 4*MB)
    a.srd(S_DBG, 68, 256)
    a(f's_getreg_b32 s{rc.S_J}, hwreg(HW_REG_XCC_ID, 0, 4)'); a(f's_and_b32 s{rc.S_J}, s{rc.S_J}, 7')
    a(f's_cmp_eq_u32 {WV}, 0'); a('s_cbranch_scc0 PM_NT')
    a(f's_lshl_b32 s70, s{rc.S_J}, 4'); a(f'v_mov_b32 v{V(52)}, 1'); a(f'v_mov_b32 v{V(53)}, s70')
    a('s_mov_b64 exec, 1')
    a(f'buffer_atomic_add v{V(52)}, v{V(53)}, s[{S_DBG}:{S_DBG+3}], 0 offen sc0 sc1')
    a('s_mov_b64 exec, -1')
    a.label('PM_NT')
    a(f'v_and_b32 v{V(21)}, 63, v0')
    a(f'v_and_b32 v{V(24)}, 7, v{V(21)}'); a(f'v_bfe_u32 v{V(25)}, v{V(21)}, 3, 1'); a(f'v_lshrrev_b32 v{V(26)}, 4, v{V(21)}')
    a('s_lshr_b32 s70, s2, 2'); a('s_and_b32 s71, s2, 3'); a('s_lshl_b32 s71, s71, 3')
    a(f'v_add_u32 v{V(27)}, s71, v{V(24)}')
    a(f'v_lshlrev_b32 v{V(23)}, 11, v{V(27)}'); a(f'v_lshl_add_u32 v{V(23)}, v{V(26)}, 5, v{V(23)}'); a(f'v_lshl_add_u32 v{V(23)}, v{V(25)}, 3, v{V(23)}')
    a(f's_lshl_b32 s90, {WV}, 9'); a('s_lshl_b32 s91, s70, 16'); a('s_add_u32 s90, s90, s91'); a(f'v_add_u32 v{V(23)}, s90, v{V(23)}')
    X = V(32)
    for it in range(4):
        for h in range(2):
            r = X + (it*2 + h)*2
            a(f'buffer_load_dwordx2 v[{r}:{r+1}], v{V(23)}, s[72:75], 0 offen offset:{it*128 + h*16}')
    a(f'v_lshlrev_b32 v{V(1)}, 4, v0'); a('s_lshl_b32 s3, s2, 12'); a(f'v_add_u32 v{V(1)}, s3, v{V(1)}')
    a.srd(76, 66, 8 * 1024 * 2)
    a('s_cmp_lt_u32 s2, 4'); a('s_cbranch_scc0 PM_N0')
    a(f'v_lshrrev_b32 v{V(2)}, 4, v{V(1)}')
    rc.memf0_src(a, cfg, V(2), V(3), V(12))
    for t in range(4):
        a(f'buffer_load_dword v{V(48)+t}, v{V(3)}, s[76:79], 0 offen offset:{t*8}')
    a.label('PM_N0')
    a(f'v_lshl_add_u32 v{V(28)}, v{V(25)}, 5, v{V(27)}'); a(f'v_lshlrev_b32 v{V(28)}, 4, v{V(28)}'); a(f'v_lshl_add_u32 v{V(28)}, v{V(26)}, 10, v{V(28)}')
    a(f's_lshl_b32 s90, {WV}, 14'); a('s_add_u32 s90, s90, s91'); a(f'v_add_u32 v{V(28)}, s90, v{V(28)}')
    a(f'v_lshlrev_b32 v{V(29)}, 2, v{V(24)}'); a(f'v_add_u32 v{V(29)}, {rc.L_M}, v{V(29)}')
    a(f's_lshl_b32 s90, {WV}, 5'); a(f'v_add_u32 v{V(30)}, s90, v{V(29)}')
    for r in range(4):
        a(f'v_mov_b32 v{V(4)+r}, -1'); a(f'v_mov_b32 v{V(8)+r}, 0')
    N1, Z = f'v[{V(4)}:{V(7)}]', f'v[{V(8)}:{V(11)}]'
    a.srd(80, rc.S_WS, 4*MB, add=WS_XN)
    a.srd(84, rc.S_WS, 0x2100000, add=WS_P1)
    ns = 0
    a(f's_mov_b32 {A16}, {rc.C_PART}')
    a(f'buffer_store_dwordx4 {N1}, v{V(1)}, {SM}, {A16} offen' + C)
    a(f'buffer_store_dwordx4 {N1}, v{V(1)}, s[84:87], 0 offen' + C)
    a(f's_mov_b32 {A16}, {WS_P2 - WS_P1}')
    a(f'buffer_store_dwordx4 {N1}, v{V(1)}, s[84:87], {A16} offen' + C)
    a(f's_lshr_b32 {A17}, s2, 3'); a(f's_mul_i32 {A17}, {A17}, {cfg.NS*32768}')
    a(f's_and_b32 {A18}, s2, 7'); a(f's_lshl_b32 {A18}, {A18}, 12'); a(f's_add_u32 {A17}, {A17}, {A18}')
    a(f'v_lshlrev_b32 v{V(2)}, 4, v0')
    for i in range(3):
        a(f'buffer_store_dwordx4 {N1}, v{V(2)}, {XR}, {A17} offen' + C)
        a(f's_add_u32 {A17}, {A17}, 32768')
    a(f'v_lshrrev_b32 v{V(3)}, 11, v{V(1)}'); a(f'v_lshlrev_b32 v{V(3)}, 12, v{V(3)}'); a(f'v_and_b32 v{V(12)}, 2047, v{V(1)}'); a(f'v_add_u32 v{V(3)}, v{V(3)}, v{V(12)}')
    a(f's_mov_b32 {A16}, {SM_QKM + 2048}')
    for i in range(4):
        a(f'buffer_store_dwordx4 {N1}, v{V(3)}, {SM}, {A16} offen' + C); a(f's_add_u32 {A16}, {A16}, {2*MB}')
    a(f's_mov_b32 {A16}, {SM_VMG}')
    for i in range(4):
        a(f'buffer_store_dwordx4 {N1}, v{V(1)}, {SM}, {A16} offen' + C); a(f's_add_u32 {A16}, {A16}, {MB}')
    nclr = 14
    nfl = FL_SEG + 65*4096 - FL_KVQ
    a(f's_mov_b32 {A17}, {nfl}'); a(f'v_cmp_gt_u32 vcc, {A17}, v{V(1)}')
    a('s_and_saveexec_b64 s[90:91], vcc')
    a('s_cbranch_execz PM_NF')
    a(f's_mov_b32 {A16}, {FL_KVQ}')
    a(f'buffer_store_dwordx4 {Z}, v{V(1)}, {SM}, {A16} offen' + C)
    a.label('PM_NF')
    a('s_mov_b64 exec, s[90:91]')
    a('s_cmp_eq_u32 s2, 17'); a('s_cbranch_scc0 PM_N2')
    a(f's_mov_b32 {A16}, {rc.C_CNT + 4096}')
    a(f'buffer_store_dwordx4 {N1}, v{V(2)}, {SM}, {A16} offen' + C)
    a.label('PM_N2')
    a('s_cmp_ge_u32 s2, 16'); a('s_cbranch_scc1 PM_LN')
    a('s_cmp_lt_u32 s2, 4'); a('s_cbranch_scc1 PM_LN')
    a(f's_mov_b32 {A16}, {rc.C_MEMF}')
    a(f'buffer_store_dwordx4 {N1}, v{V(1)}, {SM}, {A16} offen' + C)
    a.label('PM_LN')
    F, G, A0, MU, RS = V(64), V(96), V(16), V(20), V(21)
    a(f's_waitcnt vmcnt({nclr})')
    a('s_cmp_lt_u32 s2, 4'); a('s_cbranch_scc0 PM_N1')
    for t in range(4):
        a(f'v_min_u32 v{V(48)+t}, -2, v{V(48)+t}')
    a(f's_mov_b32 {A16}, {rc.C_MEMF}')
    a(f'buffer_store_dwordx4 v[{V(48)}:{V(51)}], v{V(1)}, {SM}, {A16} offen' + C)
    a.label('PM_N1')
    a(f's_cmp_eq_u32 {WV}, 0'); a('s_cbranch_scc0 PM_NB')
    a(f'v_mov_b32 v{V(53)}, {rc.L_R}')
    a('s_mov_b64 exec, 1')
    a(f'ds_write_b32 v{V(53)}, v{V(52)}')
    a('s_mov_b64 exec, -1')
    a.label('PM_NB')
    T31 = V(31)
    for i in range(16):
        a(f'v_lshlrev_b32 v{F+2*i}, 16, v{X+i}'); a(f'v_and_b32 v{F+2*i+1}, 0xffff0000, v{X+i}')
    for c in range(4): a(f'v_add_f32 v{A0+c}, v{F+c}, v{F+4+c}')
    for i in range(8, 32, 4):
        for c in range(4): a(f'v_add_f32 v{A0+c}, v{A0+c}, v{F+i+c}')
    a(f'v_add_f32 v{A0}, v{A0}, v{A0+1}'); a(f'v_add_f32 v{A0+2}, v{A0+2}, v{A0+3}'); a(f'v_add_f32 v{A0}, v{A0}, v{A0+2}')
    reduce_bits345(a, A0, T31)
    a(f'ds_write_b32 v{V(30)}, v{A0}')
    a('s_waitcnt lgkmcnt(0)'); a('s_barrier')
    a(f'v_mov_b32 v{V(53)}, {rc.L_R}')
    for w in range(4): a(f'ds_read_b32 v{A0+w}, v{V(29)} offset:{w*32}')
    a(f'ds_read_b32 v{V(52)}, v{V(53)}')
    a('s_waitcnt lgkmcnt(0)')
    a(f'v_readfirstlane_b32 s{rc.S_H}, v{V(52)}')
    a(f'v_add_f32 v{A0}, v{A0}, v{A0+1}'); a(f'v_add_f32 v{A0+2}, v{A0+2}, v{A0+3}'); a(f'v_add_f32 v{MU}, v{A0}, v{A0+2}')
    a(f'v_mul_f32 v{MU}, 0x3a800000, v{MU}')
    for c in range(4): a(f'v_mov_b32 v{A0+c}, 0')
    for i in range(0, 32, 4):
        for c in range(4): a(f'v_sub_f32 v{G+c}, v{F+i+c}, v{MU}')
        for c in range(4): a(f'v_fmac_f32 v{A0+c}, v{G+c}, v{G+c}')
    a(f'v_add_f32 v{A0}, v{A0}, v{A0+1}'); a(f'v_add_f32 v{A0+2}, v{A0+2}, v{A0+3}'); a(f'v_add_f32 v{RS}, v{A0}, v{A0+2}')
    reduce_bits345(a, RS, T31)
    a(f'ds_write_b32 v{V(30)}, v{RS} offset:128')
    a('s_waitcnt lgkmcnt(0)'); a('s_barrier')
    for w in range(4): a(f'ds_read_b32 v{A0+w}, v{V(29)} offset:{128 + w*32}')
    a('s_waitcnt lgkmcnt(0)')
    a(f'v_add_f32 v{A0}, v{A0}, v{A0+1}'); a(f'v_add_f32 v{A0+2}, v{A0+2}, v{A0+3}'); a(f'v_add_f32 v{RS}, v{A0}, v{A0+2}')
    a(f'v_mul_f32 v{RS}, 0x3a800000, v{RS}')
    bf16_round(a, RS, RS)
    a(f'v_add_f32 v{RS}, 0x3727c5ac, v{RS}')
    bf16_round(a, RS, RS)
    a(f'v_sqrt_f32 v{RS}, v{RS}')
    a('s_nop 0')
    bf16_round(a, RS, RS)
    a(f'v_rcp_f32 v{RS}, v{RS}')
    bf16_round(a, MU, MU)
    for i in range(32): a(f'v_sub_f32 v{F+i}, v{F+i}, v{MU}')
    for i in range(16): a(f'v_cvt_pk_bf16_f32 v{G+i}, v{F+2*i}, v{F+2*i+1}')
    for i in range(16):
        a(f'v_lshlrev_b32 v{F+2*i}, 16, v{G+i}'); a(f'v_and_b32 v{F+2*i+1}, 0xffff0000, v{G+i}')
    for i in range(32): a(f'v_mul_f32 v{F+i}, v{F+i}, v{RS}')
    for i in range(16): a(f'v_cvt_pk_bf16_f32 v{G+i}, v{F+2*i}, v{F+2*i+1}')
    for it in range(4):
        a(f's_mov_b32 {A16}, {it*4096}')
        a(f'buffer_store_dwordx4 v[{G+4*it}:{G+4*it+3}], v{V(28)}, s[80:83], {A16} offen' + C)

def signal_done(a, tag, nnew):
    l = f'{tag}_SG'
    a(f's_waitcnt vmcnt({nnew})')
    a('s_barrier')
    a(f's_cmp_eq_u32 s{rc.S_WV}, 0'); a(f's_cbranch_scc0 {l}')
    a('s_getreg_b32 s70, hwreg(HW_REG_XCC_ID, 0, 4)')
    a('s_and_b32 s70, s70, 7'); a('s_lshl_b32 s70, s70, 4'); a('s_add_u32 s70, s70, 128')
    a('v_mov_b32 v8, 1'); a('v_mov_b32 v10, s70')
    a('s_mov_b64 exec, 1')
    a(f'buffer_atomic_add v8, v10, s[{S_DBG}:{S_DBG+3}], 0 offen sc1')
    a('s_mov_b64 exec, -1')
    a.label(l)

def verify(a, tag, force_fallback, nowait=False):
    lw, lp, dn = f'{tag}_VW', f'{tag}_VP', f'{tag}_VD'
    a(f's_cmp_eq_u32 s{rc.S_WV}, 0'); a(f's_cbranch_scc0 {lw}')
    a('s_mov_b64 exec, 0xff')
    a(f'v_add_u32 v9, 128, v{rc.V_L16}')
    a('s_mov_b32 s70, 200000')
    a.label(lp)
    a(f'buffer_load_dword v10, v9, s[{S_DBG}:{S_DBG+3}], 0 offen sc1')
    a('s_waitcnt vmcnt(0)')
    for k in range(8): a(f'v_readlane_b32 s{80+k}, v10, {k}')
    for k in range(1, 8): a(f's_add_u32 s80, s80, s{80+k}')
    a('s_cmp_eq_u32 s80, 256'); a(f's_cbranch_scc1 {dn}')
    a('s_sub_u32 s70, s70, 1'); a('s_cmp_lg_u32 s70, 0'); a(f's_cbranch_scc1 {lp}')
    a.label(dn)
    a('v_cmp_ne_u32 vcc, 32, v10')
    a('s_cmp_eq_u64 vcc, 0'); a('s_cselect_b32 s70, 1, 2')
    if force_fallback: a('s_mov_b32 s70, 2')
    a('v_mov_b32 v8, s70'); a(f'v_mov_b32 v9, {rc.L_R}')
    a('ds_write_b32 v9, v8')
    a('s_mov_b64 exec, -1')
    a('s_waitcnt lgkmcnt(0)')
    a.label(lw)
    a('s_barrier')
    a(f'v_mov_b32 v9, {rc.L_R}')
    a('ds_read_b32 v8, v9')
    a('s_waitcnt lgkmcnt(0)')
    a('v_readfirstlane_b32 s70, v8')
    a('s_barrier')
    a('s_cmp_eq_u32 s70, 1'); a('s_cbranch_scc0 MG_FALL')

EXP_START = None
PLACE = mega.PLACE
EXP_WARM = 0
EXP_HALF = 0
EXP_NEAR = None
def gen_mega(cfg, dbg=None, prof=False):
    tasks.set_coh(True)
    a = Asm()
    P = 'RC'
    a('s_cmp_ge_u32 s2, 256')
    a('s_cbranch_scc1 MG_EXIT')
    def rstamp(sreg):
        if mega.TL:
            a('s_memrealtime s[88:89]'); a('s_waitcnt lgkmcnt(0)'); a(f's_mov_b32 s{sreg}, s88')
    rstamp(100)
    if MERGE:
        rc.common_setup(a, [f's_load_dwordx2 s[64:65], s[0:1], {KA_X}', f's_load_dwordx2 s[66:67], s[0:1], {KA_MEM0}', f's_load_dwordx2 s[68:69], s[0:1], {KA_DBG}'])
        prep_merged(a, cfg)
        a(f's_mov_b32 s{S_RST}, 0'); a(f's_mov_b32 s{rc.S_MODE}, 1')
        a('s_branch MG_ROLE')
        a.label('MG_FALL')
        a('s_waitcnt vmcnt(0)'); a('s_barrier')
        a(f's_mov_b32 s{S_RST}, 1'); a(f's_mov_b32 s{rc.S_MODE}, 2')
        a(f's_and_b32 s{rc.S_J}, s2, 1'); a(f's_lshr_b32 s{rc.S_H}, s2, 1')
        a(f'v_lshrrev_b32 v0, 4, v{rc.V_L16}'); a(f's_lshl_b32 s70, s{rc.S_WV}, 6'); a('v_or_b32 v0, s70, v0')
        a.label('MG_ROLE')
        a(f's_cmp_lt_u32 s{rc.S_J}, 2'); a('s_cbranch_scc0 MG_WORK')
        a(f's_cmp_lt_u32 s{rc.S_H}, 32'); a('s_cbranch_scc0 MG_WORK')
        a(f's_and_b32 s{rc.S_H}, s{rc.S_H}, 31'); a(f's_and_b32 s{rc.S_J}, s{rc.S_J}, 1')
    else:
        rc.common_setup(a)
    if EXP_WARM:
        a(f's_cmp_eq_u32 s{rc.S_WV}, 1'); a('s_cbranch_scc0 MG_NOWARM')
        a('s_load_dwordx8 s[64:71], s[0:1], 16')
        a(f'v_lshrrev_b32 v200, 4, v{rc.V_L16}'); a(f'v_mul_u32_u24 v200, {EXP_WARM*1024}, v200')
        a('s_waitcnt lgkmcnt(0)')
        n = (8 << 20) // (64 * EXP_WARM * 1024)
        for m in range(4):
            a.srd(72, 64 + 2*m, 8 << 20)
            for i in range(n):
                a(f's_mov_b32 s76, {i * 64 * EXP_WARM * 1024}')
                a(f'buffer_load_dword v{201 + (m*n + i) % 50}, v200, s[72:75], s76 offen')
        a.label('MG_NOWARM')
    if not MERGE: rc.role_dynamic(a, cfg, P, 'MG_WORK', nx=8)
    rstamp(101)
    if EXP_HALF:
        a(f's_cmp_ge_u32 s{rc.S_H}, {EXP_HALF}'); a('s_cbranch_scc1 MG_EXIT')
    RS, CT, RL = rc.impl(cfg)
    def xs(i):
        if rc.EXP_STAMP:
            a('s_memrealtime s[88:89]'); a('s_waitcnt lgkmcnt(0)'); a(f'v_writelane_b32 v60, s88, {i}')
    xs(0)
    RS(a, cfg)
    a(f's_mov_b32 s{rc.S_NST}, 63')
    xs(1)
    CT(a)
    def mid(a, n=32):
        a(f's_cmp_eq_u32 s{S_RST}, 0'); a('s_cbranch_scc0 RC_NOSIG')
        signal_done(a, 'RC', n)
        a.label('RC_NOSIG')
    if MERGE and RC_SIG == 0: mid(a, 0)
    rc.stage_weights(a, P, (mid if RC_SIG == 2 else None) if MERGE else None, (lambda a: mid(a, 16)) if MERGE and RC_SIG == 1 else None)
    rstamp(72)
    if MERGE:
        a(f's_cmp_eq_u32 s{S_RST}, 0'); a('s_cbranch_scc0 RC_NOVER')
        verify(a, 'RC', cfg.force_fallback)
        a.label('RC_NOVER')
    if EXP_NEAR is None: rc.near_measure(a, cfg, P)
    else: rc.near_static(a, EXP_NEAR)
    rc.x_offsets(a, cfg)
    a('s_waitcnt vmcnt(0) lgkmcnt(0)')
    a('s_barrier')
    rstamp(73)
    a(f's_cmp_eq_u32 s{rc.S_MODE}, 1')
    a(f's_cbranch_scc0 {P}_FB')
    if not EXP_START: RL(a, cfg, P, '', dbg)
    if mega.TL:
        rstamp(74)
        a.srd(84, rc.S_WS, 1 << 20, add=mega.TL_BASE + (1 << 20))
        a(f's_lshl_b32 s76, s{rc.S_H}, 1'); a(f's_add_u32 s76, s76, s{rc.S_J}'); a('s_lshl_b32 s76, s76, 2')
        a(f's_add_u32 s76, s76, s{rc.S_WV}'); a('s_lshl_b32 s76, s76, 5')
        a('v_mov_b32 v9, 0'); a('s_mov_b64 exec, 1')
        for i, r in enumerate([100, 101, 72, 73, 74, 75]):
            a(f'v_mov_b32 v8, s{r}'); a(f'buffer_store_dword v8, v9, s[84:87], s76 offen offset:{4*i}')
        if rc.EXP_STAMP:
            a('s_mov_b64 exec, -1'); a('s_lshl_b32 s76, s76, 3'); a('s_add_u32 s76, s76, 65536')
            a(f'v_lshrrev_b32 v9, 2, v{rc.V_L16}')
            a('buffer_store_dword v60, v9, s[84:87], s76 offen')
        a('s_waitcnt vmcnt(0)')
    a('s_endpgm')
    a.label(f'{P}_FB')
    RL(a, cfg, P + 'F', ' sc1', None)
    a('s_endpgm')
    a.label('MG_WORK')
    if EXP_START == 'now': a('s_endpgm')
    T0, T1 = 's46', 's47'
    a(f's_sub_u32 {T0}, s{rc.S_J}, 2'); a(f's_lshl_b32 {T0}, {T0}, 5'); a(f's_add_u32 {T0}, {T0}, s{rc.S_H}')
    a(f's_sub_u32 {T1}, s{rc.S_H}, 32'); a(f's_lshl_b32 {T1}, {T1}, 1'); a(f's_add_u32 {T1}, {T1}, s{rc.S_J}')
    a(f's_cmp_eq_u32 s{rc.S_MODE}, 1'); a(f's_cselect_b32 s{S_WID}, {T0}, {T1}')
    def pre():
        a(f's_cmp_ge_u32 s{S_WID}, 192'); a('s_cbranch_scc1 K0_SKIP')
        k0_pre(a); a('s_branch K0_P1')
        a.label('K0_SKIP'); a('s_waitcnt vmcnt(0)')
        a.label('K0_P1')
    if K0 and K0_WHEN == 0: pre()
    if MERGE:
        a(f's_cmp_eq_u32 s{S_RST}, 0'); a('s_cbranch_scc0 WK_NOVER0')
        signal_done(a, 'WK', 32 if K0 and K0_WHEN == 0 else 0)
        a.label('WK_NOVER0')
        if EXP_START == 'now2': a('s_endpgm')
        if K0 and K0_WHEN == 1: pre()
        a(f's_cmp_eq_u32 s{S_RST}, 0'); a('s_cbranch_scc0 WK_NOVER')
        verify(a, 'WK', cfg.force_fallback, nowait=(K0 and K0_WHEN == 1))
        a.label('WK_NOVER')
    a(f's_cmp_ge_u32 s{S_WID}, 192'); a('s_cbranch_scc1 MG_EXIT')
    if K0 and K0_WHEN == 2: k0_pre(a)
    a(f's_mov_b32 s{S_WAVE}, s{rc.S_WV}')
    a.srd(S_FL, rc.S_WS, SM_SIZE, add=WS_SM)
    a(f's_mov_b32 s{S_BUDW}, 200000')
    a(f's_mov_b32 s{S_WM}, s{rc.S_MODE}')
    g = Eng()
    if K0: k0_main(a)
    kvq_loop(a, g)
    W = f's{S_WID}'
    def rng(lo, hi, lab):
        a(f's_cmp_lt_u32 {W}, {hi}'); a(f's_cbranch_scc1 {lab}')
    if not PLACE:
        rng(0, 32, 'MG_WO'); rng(0, 64, 'MG_DN')
    a(f's_sub_u32 s46, {W}, 64'); a('s_lshr_b32 s46, s46, 5'); a(f's_and_b32 s47, {W}, 31')
    if PLACE:
        a('s_cmp_ge_u32 s47, 24'); a('s_cbranch_scc1 MG_DN')
        a('s_cmp_ge_u32 s47, 16'); a('s_cbranch_scc1 MG_WO')
    a('s_cmp_ge_u32 s47, 14'); a('s_cbranch_scc1 MG_AT')
    a('s_mul_i32 s29, s46, 14'); a('s_add_u32 s29, s29, s47'); a('s_mov_b32 s28, s46')
    role_gemmx(a, 'GU'); a('s_endpgm')
    a.label('MG_WO')
    if PLACE: a('s_mov_b32 s28, s46'); a('s_and_b32 s29, s47, 7')
    else: a(f's_lshr_b32 s28, {W}, 3'); a(f's_and_b32 s29, {W}, 7')
    role_gemmx(a, 'WO'); a('s_endpgm')
    a.label('MG_DN')
    if PLACE: a('s_mov_b32 s28, s46'); a('s_and_b32 s29, s47, 7')
    else: a(f's_sub_u32 s29, {W}, 32'); a('s_lshr_b32 s28, s29, 3'); a('s_and_b32 s29, s29, 7')
    role_gemmx(a, 'DN'); a('s_endpgm')
    a.label('MG_AT')
    a('s_lshl_b32 s28, s46, 1'); a('s_add_u32 s28, s28, s47'); a('s_sub_u32 s28, s28, 14')
    role_att(a)
    a.label('MG_EXIT')
    a('s_endpgm')
    return a.text()


def header():
    src = open('cdna_kernels/' + KNAME[:-7] + '.s.ref').read().split('\n')
    out = []
    for l in src:
        if l.startswith('; Override launch'): break
        out.append(l)
    return '\n'.join(out)

OLD = False
FFB = False
def build(path, hdr='; test', cfg=None, **kw):
    import k_rec2
    C = rc.Cfg if OLD else k_rec2.Cfg2
    cfg = cfg or C(force_fallback=FFB, dynamic=True, RS_PERM=False, EARLY_CLR=True, kvflag=FL_KVQ, tl=mega.TL, NOPK=False)
    if MERGE:
        ks = [(KNAME, gen_mega(cfg, **kw), 512, 256)]
        ls = [(KNAME, (256,1,1), (256,1,1), 163840)]
    else:
        ks = [('prep_kernel', gen_prep(cfg), 128, 128), ('mega_kernel', gen_mega(cfg, **kw), 512, 256)]
        ls = [('prep_kernel', (256,1,1), (256,1,1), 1024), ('mega_kernel', (256,1,1), (256,1,1), 163840)]
    txt = assemble_file(hdr, ls, ks)
    open(path, 'w').write(txt)
    print('bytes', len(txt), 'lines', txt.count('\n'))
if __name__ == '__main__':
    p = sys.argv[1] if len(sys.argv) > 1 else 'mg.s'
    if len(sys.argv) > 2 and 'tl' in sys.argv[2:]: mega.TL = True
    if 'prof' in sys.argv[2:]: mega2.PROF = True
    if 'x2' in sys.argv[2:]: mega2.TLX2 = True
    if 'lite' in sys.argv[2:]: mega2.TLLITE = True
    if 'last' in sys.argv[2:]: mega2.TLFROM = 63
    if 'p1' in sys.argv[2:]: mega2.PIPE2 = False
    if 'nostream' in sys.argv[2:]: mega2.STREAM = False
    if 'nopf' in sys.argv[2:]: mega2.PF = False
    if 'nordf' in sys.argv[2:]: mega2.RDFIRST = False
    for x in sys.argv[2:]:
        if x.startswith('we='): mega2.WEVERY = int(x[3:])
    if 'old' in sys.argv[2:]: OLD = True
    if 'nomerge' in sys.argv[2:]: MERGE = False; K0 = False
    if 'nok0' in sys.argv[2:]: K0 = False
    for x in sys.argv[2:]:
        if x.startswith('when='): K0_WHEN = int(x[5:])
        if x.startswith('rsig='): RC_SIG = int(x[5:])
        if x.startswith('ts='):
            u, v = x[3:].split(','); K0_TS[u] = 100; K0_TS[v] = 101
    if 'ffb' in sys.argv[2:]: FFB = True
    if 'now' in sys.argv[2:]: EXP_START = 'now'
    if 'now2' in sys.argv[2:]: EXP_START = 'now2'
    for x in sys.argv[2:]:
        if x.startswith('half='): EXP_HALF = int(x[5:])
        if x.startswith('warm='): EXP_WARM = int(x[5:])
        if x.startswith('near='): EXP_NEAR = int(x[5:])
        if x == 'lin': rc.EXP_LIN = True
        if x == 'reg': rc.EXP_REG = True
        if x.startswith('fl='): rc.EXP_FL = ' ' + x[3:].replace('+', ' ')
        if x == 'xs': rc.EXP_STAMP = True
    build(p, header())
    import chk; chk.chk(p)
```

```python
import sys; sys.path.insert(0,'gen')
from asmlib import *
import k_ln, tasks
from gemm2 import *
from tasks import *
from build_v1 import dec_kqv, dec_gu, dec_part
def stamp(a, i):
    a(f's_memtime s[{64+2*i}:{65+2*i}]'); a('s_waitcnt lgkmcnt(0)')
def kern(kind, name, ntask, decode, NB, nloop):
    a = Asm(); g = Eng(NBUF=NB)
    old = tasks.GK[kind]['nloop']; tasks.GK[kind]['nloop'] = nloop
    a(f's_cmp_ge_u32 s2, {ntask}'); a(f's_cbranch_scc1 {name}_END')
    stamp(a, 0)
    wave_id(a); decode(a)
    gemm_params(a, kind)
    g.setup(a, 1, 2, 3)
    stamp(a, 1)
    g.mainloop(a, kind == 'V', kind)
    stamp(a, 2)
    epi_KQ(a, g, WS_KF)
    stamp(a, 3)
    a('s_waitcnt vmcnt(0)')
    stamp(a, 4)
    a(f's_load_dwordx2 s[6:7], s[0:1], {KA_DBG}')
    a('s_waitcnt lgkmcnt(0)')
    a.srd(12, 6, 4096)
    a('s_cmp_ge_u32 s2, 32'); a(f's_cbranch_scc1 {name}_END')
    a(f's_cmp_lg_u32 s{S_WAVE}, 0'); a(f's_cbranch_scc1 {name}_END')
    a('s_lshl_b32 s20, s2, 5')
    a('v_mov_b32 v1, s20')
    for i in range(1, 5):
        a(f's_sub_u32 s21, s{64+2*i}, s64'); a('v_mov_b32 v2, s21')
        a(f'buffer_store_dword v2, v1, s[12:15], 0 offen offset:{4*i}')
    a.label(f'{name}_END'); a('s_endpgm')
    tasks.GK[kind]['nloop'] = old
    return a.text().replace('K_loop', name+'_loop'), g
if __name__ == '__main__':
    ks = [('ln1_kernel', k_ln.gen_ln1(), 256, 256)]; ls = [('ln1_kernel', (64,1,1), (256,1,1), 0)]
    for nm, NB, nl in [('k4', 4, 7), ('k6', 6, 4), ('k3', 3, 9)]:
        t, g = kern('K', nm.upper(), 256, dec_kqv, NB, nl)
        ks.append((nm + '_kernel', t, 512, 256)); ls.append((nm + '_kernel', (256,1,1), (256,1,1), g.lds))
        print(nm, g.lds)
    open('g1.s', 'w').write(assemble_file('; test', ls, ks))
    import chk; chk.chk('g1.s')
```
